```python
import torch

def _softmax(x, axis=-1):
    return torch.softmax(x, dim=axis)
def _gelu(x):
    return torch.nn.functional.gelu(x, approximate="tanh")
def _silu(x):
    return torch.nn.functional.silu(x)
def _sigmoid(x):
    return torch.sigmoid(x)
def _layernorm(x, axis=-1, eps=1e-5):
    m = x.mean(dim=axis, keepdim=True)
    v = x.var(dim=axis, keepdim=True, unbiased=False)
    return (x - m) / torch.sqrt(v + eps)
def _scatter_add(tgt, idx, src, axis=0):
    return tgt.clone().index_add_(axis, idx, src)
def _segment_sum(src, seg, n):
    out = torch.zeros((n,) + src.shape[1:], dtype=src.dtype)
    return out.index_add_(0, seg, src)
def _pad(x, pw):
    flat = tuple(v for pair in reversed(pw) for v in pair)
    return torch.nn.functional.pad(x, flat)

kernel_name = 'gated_mix__mha_block__glu_gated_glu__prompt'

def setup_inputs():

    _w = (lambda a: (lambda t: t.to(torch.bfloat16) if t.is_floating_point() else t)(torch.as_tensor(a)))
    def _A_setup():
        B, S, D, H = 1, 2048, 512, 32
        return {
            "x": _w((lambda *s: torch.randn(*s, dtype=torch.bfloat16) * 0.05)(B, S, D)),
            "wqkv": _w((lambda *s: torch.randn(*s, dtype=torch.bfloat16) * 0.8)(D, 3 * D)),
            "wo": _w((lambda *s: torch.randn(*s, dtype=torch.bfloat16) * 0.1)(D, D)),
        }
    _A_in = _A_setup()

    def _B_setup():
        B, S, D, F = 1, 2048, 512, 1376
        return {
            "x": _w((lambda *s: torch.randn(*s, dtype=torch.bfloat16) * 0.05)(B, S, D)),
            "w_gate": _w((lambda *s: torch.randn(*s, dtype=torch.bfloat16) * 0.8)(D, F)),
            "w_up": _w((lambda *s: torch.randn(*s, dtype=torch.bfloat16) * 0.05)(D, F)),
            "w_down": _w((lambda *s: torch.randn(*s, dtype=torch.bfloat16) * 0.05)(F, D)),
        }
    _B_in = _B_setup()

    return {
        "A_x": _A_in["x"],
        "A_wqkv": _A_in["wqkv"],
        "A_wo": _A_in["wo"],
        "B_x": _B_in["x"],
        "B_w_gate": _B_in["w_gate"],
        "B_w_up": _B_in["w_up"],
        "B_w_down": _B_in["w_down"],
        "gate_w": _w((lambda *s: torch.randn(*s, dtype=torch.bfloat16) * 0.05)(512) * 16.0),
    }

def reference(A_x, A_wqkv, A_wo, B_x, B_w_gate, B_w_up, B_w_down, gate_w):
    def _A_ref(x, wqkv, wo):
        B, S, D = x.shape
        H = 32
        Dh = D // H
        qkv = (lambda x, *d: x.permute(*d))((x @ wqkv).reshape(B, S, 3, H, Dh), 2, 0, 3, 1, 4)
        q, k, v = qkv[0], qkv[1], qkv[2]
        scores = torch.einsum("bhqd,bhkd->bhqk", q, k) * (Dh ** -0.5)
        p = _softmax(scores, axis=-1)
        o = torch.einsum("bhqk,bhkd->bhqd", p, v)
        return (lambda x, *d: x.permute(*d))(o, 0, 2, 1, 3).reshape(B, S, D) @ wo

    def _B_ref(x, w_gate, w_up, w_down):
        g = torch.einsum("bsd,df->bsf", x, w_gate)
        u = torch.einsum("bsd,df->bsf", x, w_up)
        h = _sigmoid(g) * u
        return torch.einsum("bsf,fd->bsd", h, w_down)

    x = A_x
    g = _sigmoid((x * gate_w).sum(-1, keepdims=True))
    a = _A_ref(x, A_wqkv, A_wo)
    b = _B_ref(x, B_w_gate, B_w_up, B_w_down)
    return g * a + (1 - g) * b
```

```python
class Asm:
    def __init__(self):
        self.lines = []
        self.uid = 0
    def __call__(self, s=""):
        for l in s.split("\n"):
            l = l.strip()
            if not l:
                continue
            if l.endswith(":") or l.startswith("."):
                self.lines.append(l)
            else:
                self.lines.append("    " + l)
    def label(self, name):
        self.lines.append(name + ":")
    def newlabel(self, base):
        self.uid += 1
        return f"L_{base}_{self.uid}"
    def text(self):
        return "\n".join(self.lines) + "\n"

def v(n, cnt=1):
    return f"v{n}" if cnt == 1 else f"v[{n}:{n+cnt-1}]"
def s(n, cnt=1):
    return f"s{n}" if cnt == 1 else f"s[{n}:{n+cnt-1}]"

class Regs:
    def __init__(self, start=0):
        self.n = start
        self.hi = start
    def alloc(self, cnt=1, align=None):
        if align is None:
            align = 1 if cnt == 1 else (2 if cnt == 2 else 4)
        self.n = (self.n + align - 1) // align * align
        r = self.n
        self.n += cnt
        self.hi = max(self.hi, self.n)
        return r

def kernel_header(a, name):
    a(f".globl {name}")
    a(".p2align 8")
    a(f".type {name},@function")
    a.label(name)

def kernel_desc(name, vgprs, sgprs=96):
    nv = (vgprs + 7) // 8 * 8
    acc = (vgprs + 3) // 4 * 4
    acc = min(max(acc, 4), 256)
    return f""".p2align 6
.amdhsa_kernel {name}
  .amdhsa_next_free_vgpr {nv}
  .amdhsa_next_free_sgpr {sgprs}
  .amdhsa_accum_offset {min(nv,256)}
  .amdhsa_group_segment_fixed_size 0
  .amdhsa_kernarg_size 88
  .amdhsa_user_sgpr_count 2
  .amdhsa_user_sgpr_kernarg_segment_ptr 1
  .amdhsa_system_sgpr_workgroup_id_x 1
.end_amdhsa_kernel
"""

def f32bits(x):
    import struct
    return "0x%08x" % struct.unpack("<I", struct.pack("<f", x))[0]
```

```python
import math, sys
from asmlib import *

MB = 1 << 20
QF, KF, VF, OF, HF, WTF, BF, GA = 0, 2*MB, 4*MB, 6*MB, 8*MB, 14*MB, 17*MB, 19*MB
WS_BYTES = 20*MB
LOG2E = 1.4426950408889634
QSCALE = 0.25 * LOG2E

def srd(a, d, lo, hi, nbytes):
    a(f"s_mov_b32 s{d}, s{lo}")
    a(f"s_and_b32 s{d+1}, s{hi}, 0xffff")
    a(f"s_mov_b32 s{d+2}, {nbytes}")
    a(f"s_mov_b32 s{d+3}, 0x20000")

K1_XB = 0
K1_GB = 16384
K1_UB = 16384 + 18432 + 128
K1_SLOT = 53504
K1_LDS = 3 * K1_SLOT
NU = 9

def gen_k1(a):
    name = "k1_kernel"
    kernel_header(a, name)
    SX, SW, SWS = 28, 32, 36
    s_rb, s_cg, s_wave = 42, 43, 44
    a("s_cmp_ge_u32 s2, 256")
    a("s_cbranch_scc1 L_k1_end")
    a("s_load_dwordx16 s[4:19], s[0:1], 0")
    a("s_load_dwordx2 s[24:25], s[0:1], 80")
    a("v_lshrrev_b32 v1, 6, v0")
    a("v_and_b32 v0, 63, v0")
    a("s_and_b32 s40, s2, 7")
    a("s_lshr_b32 s41, s2, 3")
    a(f"v_readfirstlane_b32 s{s_wave}, v1")
    a("s_and_b32 s45, s40, 1")
    a("s_lshl_b32 s45, s45, 3")
    a("s_and_b32 s46, s41, 7")
    a(f"s_add_u32 s{s_rb}, s45, s46")
    a("s_lshr_b32 s45, s40, 1")
    a("s_lshl_b32 s45, s45, 2")
    a("s_lshr_b32 s46, s41, 3")
    a(f"s_add_u32 s{s_cg}, s45, s46")
    a(f"s_cmp_lt_u32 s{s_wave}, 4")
    a("s_cbranch_scc1 L_k1_compute")

    s_lw, s_pitch, s_ldsx, s_ldsw, s_xoff, s_woff, s_wstep, s_slot, s_cnt = 48, 49, 50, 51, 52, 53, 54, 55, 56
    a(f"s_sub_u32 s{s_lw}, s{s_wave}, 4")
    a("v_lshrrev_b32 v2, 3, v0")
    a("v_and_b32 v3, 7, v0")
    a("v_lshrrev_b32 v4, 1, v2")
    a(f"s_and_b32 s45, s{s_lw}, 1")
    a("s_lshl_b32 s46, s45, 2")
    a("v_add_u32 v4, s46, v4")
    a("v_and_b32 v4, 7, v4")
    a("v_xor_b32 v3, v3, v4")
    a("v_lshlrev_b32 v3, 4, v3")
    a(f"s_lshl_b32 s46, s{s_rb}, 7")
    a(f"s_lshl_b32 s47, s{s_lw}, 3")
    a("s_add_u32 s46, s46, s47")
    a("v_add_u32 v2, s46, v2")
    a("v_lshlrev_b32 v2, 10, v2")
    a("v_add_u32 v10, v2, v3")
    for j in range(1, 4):
        a(f"v_add_u32 v{10+j}, {32768*j}, v10")
    a(f"s_cmp_lt_u32 s{s_cg}, 6")
    a(f"s_cselect_b32 s{s_pitch}, 3072, 2752") if False else None
    a("s_movk_i32 s46, 3072")
    a("s_movk_i32 s47, 2752")
    a(f"s_cselect_b32 s{s_pitch}, s46, s47")
    a("s_mul_i32 s46, s45, 576")
    a("v_add_u32 v2, s46, v0")
    a("s_movk_i32 s47, 3641")
    for j in range(9):
        if j:
            a("v_add_u32 v2, 64, v2")
        a("v_mul_u32_u24 v3, s47, v2")
        a("v_lshrrev_b32 v3, 16, v3")
        a("v_mul_u32_u24 v4, 18, v3")
        a("v_sub_u32 v4, v2, v4")
        a("v_lshlrev_b32 v4, 4, v4")
        a(f"v_mad_u32_u24 v{14+j}, v3, s{s_pitch}, v4")
    a(f"s_lshl_b32 s{s_wstep}, s{s_pitch}, 6")
    a(f"s_lshl_b32 s{s_ldsx}, s{s_lw}, 10")
    a(f"s_mul_i32 s46, s45, {9*1024}")
    a(f"s_cmp_lt_u32 s{s_lw}, 2")
    a(f"s_mov_b32 s47, {K1_GB}")
    a(f"s_mov_b32 s57, {K1_UB}")
    a("s_cselect_b32 s47, s47, s57")
    a(f"s_add_u32 s{s_ldsw}, s46, s47")
    a("s_waitcnt lgkmcnt(0)")
    srd(a, SX, 4, 5, 2048*1024)
    srd(a, SWS, 24, 25, WS_BYTES)
    a(f"s_lshr_b32 s45, s{s_lw}, 1")
    a(f"s_cmp_lt_u32 s{s_cg}, 6")
    a("s_cbranch_scc0 L_k1_ld_ffn")
    a(f"s_lshl_b32 s46, s{s_cg}, 9")
    a("s_lshl_b32 s47, s45, 8")
    a("s_add_u32 s46, s46, s47")
    a(f"s_add_u32 s{SW}, s6, s46")
    a(f"s_addc_u32 s{SW+1}, s7, 0")
    a(f"s_sub_u32 s{SW+2}, {512*3072}, s46")
    a("s_branch L_k1_ld_go")
    a.label("L_k1_ld_ffn")
    a(f"s_sub_u32 s46, s{s_cg}, 6")
    a("s_mul_i32 s46, s46, 288")
    a("s_cmp_eq_u32 s45, 0")
    a("s_cselect_b32 s58, s12, s14")
    a("s_cselect_b32 s59, s13, s15")
    a(f"s_add_u32 s{SW}, s58, s46")
    a(f"s_addc_u32 s{SW+1}, s59, 0")
    a(f"s_sub_u32 s{SW+2}, {512*2752}, s46")
    a.label("L_k1_ld_go")
    a(f"s_and_b32 s{SW+1}, s{SW+1}, 0xffff")
    a(f"s_mov_b32 s{SW+3}, 0x20000")
    a(f"s_mov_b32 s{s_xoff}, 0")
    a(f"s_mov_b32 s{s_woff}, 0")
    a(f"s_mov_b32 s{s_slot}, 0")
    a(f"s_mov_b32 s{s_cnt}, 0")

    def issue_stage():
        a(f"s_add_u32 m0, s{s_slot}, s{s_ldsx}")
        for j in range(4):
            a("s_nop 0")
            a(f"buffer_load_dwordx4 v{10+j}, s[{SX}:{SX+3}], s{s_xoff} offen lds")
            if j < 3:
                a("s_add_u32 m0, m0, 4096")
        a(f"s_add_u32 m0, s{s_slot}, s{s_ldsw}")
        for j in range(9):
            a("s_nop 0")
            a(f"buffer_load_dwordx4 v{14+j}, s[{SW}:{SW+3}], s{s_woff} offen lds")
            if j < 8:
                a("s_add_u32 m0, m0, 1024")
        a(f"s_add_u32 s{s_xoff}, s{s_xoff}, 128")
        a(f"s_add_u32 s{s_woff}, s{s_woff}, s{s_wstep}")
        a(f"s_add_u32 s{s_slot}, s{s_slot}, {K1_SLOT}")
        a(f"s_cmp_eq_u32 s{s_slot}, {3*K1_SLOT}")
        a(f"s_cselect_b32 s{s_slot}, 0, s{s_slot}")

    a.label("L_k1_ld_loop")
    issue_stage()
    a(f"s_add_u32 s{s_cnt}, s{s_cnt}, 1")
    a(f"s_cmp_lt_u32 s{s_cnt}, 3")
    a("s_cbranch_scc1 L_k1_ld_loop")
    a(f"s_cmp_eq_u32 s{s_cnt}, 8")
    a("s_cbranch_scc1 L_k1_ld_done")
    a(f"s_cmp_eq_u32 s{s_cnt}, 3")
    a("s_cbranch_scc0 L_k1_ld_skipb0")
    a("s_waitcnt vmcnt(26)")
    a("s_barrier")
    a.label("L_k1_ld_skipb0")
    a("s_waitcnt vmcnt(13)")
    a("s_barrier")
    a("s_branch L_k1_ld_loop")
    a.label("L_k1_ld_done")
    SA = 60
    SG = 64
    srd(a, SG, 18, 19, 1024)
    a("v_lshlrev_b32 v2, 4, v0")
    a("s_lshl_b32 s45, s2, 3")
    a(f"s_lshl_b32 s46, s{s_lw}, 1")
    a("s_add_u32 s57, s45, s46")
    a("s_lshl_b32 s45, s57, 10")
    a(f"buffer_load_dwordx4 v[24:27], v2, s[{SG}:{SG+3}], 0 offen")
    a(f"buffer_load_dwordx4 v[28:31], v2, s[{SX}:{SX+3}], s45 offen")
    a(f"buffer_load_dwordx4 v[32:35], v2, s[{SX}:{SX+3}], s45 offen offset:1024")
    nside = 3
    a("s_lshr_b32 s58, s2, 1")
    a("s_cmp_lt_u32 s58, 86")
    a(f"s_cselect_b32 s{SA}, s16, s8")
    a(f"s_cselect_b32 s{SA+1}, s17, s9")
    a(f"s_mov_b32 s45, {1376*1024}")
    a(f"s_mov_b32 s46, {512*1024}")
    a(f"s_cselect_b32 s{SA+2}, s45, s46")
    a("s_cselect_b32 s45, 0, 86")
    a(f"s_and_b32 s{SA+1}, s{SA+1}, 0xffff")
    a(f"s_mov_b32 s{SA+3}, 0x20000")
    a("s_sub_u32 s45, s58, s45")
    a("s_lshl_b32 s45, s45, 14")
    a("s_add_u32 s46, s45, 8192")
    a("s_and_b32 s47, s2, 1")
    a("s_lshl_b32 s47, s47, 3")
    a(f"s_lshl_b32 s59, s{s_lw}, 1")
    a("s_add_u32 s59, s59, s47")
    a("v_lshrrev_b32 v3, 5, v0")
    a("v_lshlrev_b32 v3, 12, v3")
    a("v_and_b32 v4, 31, v0")
    a("v_lshlrev_b32 v4, 1, v4")
    a("v_add_u32 v3, v3, v4")
    a("s_lshl_b32 s47, s59, 6")
    a("v_add_u32 v3, s47, v3")
    a("v_add_u32 v4, 64, v3")
    for f in range(2):
        for j in range(8):
            so = 45 if j < 4 else 46
            a(f"buffer_load_ushort v{40+8*f+j}, v{3+f}, s[{SA}:{SA+3}], s{so} offen offset:{(j&3)*1024}")
    nside += 16
    a(f"s_waitcnt vmcnt({13+nside})")
    a("s_barrier")
    a(f"s_waitcnt vmcnt({nside})")
    a("s_barrier")
    a("s_waitcnt vmcnt(16)")
    for r in range(2):
        acc = 36 + r
        a(f"v_mov_b32 v{acc}, 0")
        for i in range(4):
            xr = 28 + 4*r + i
            g = 24 + i
            a(f"v_lshlrev_b32 v5, 16, v{xr}")
            a(f"v_lshlrev_b32 v6, 16, v{g}")
            a(f"v_fmac_f32 v{acc}, v5, v6")
            a(f"v_and_b32 v5, 0xffff0000, v{xr}")
            a(f"v_and_b32 v6, 0xffff0000, v{g}")
            a(f"v_fmac_f32 v{acc}, v5, v6")
    for dpp in ["row_shr:1", "row_shr:2", "row_shr:4", "row_shr:8", "row_bcast:15 row_mask:0xa", "row_bcast:31 row_mask:0xc"]:
        a("s_nop 1")
        for r in range(2):
            a(f"v_add_f32_dpp v{36+r}, v{36+r}, v{36+r} {dpp}")
    a(f"v_mul_f32 v36, {f32bits(-LOG2E)}, v36")
    a(f"v_mul_f32 v37, {f32bits(-LOG2E)}, v37")
    a("v_exp_f32 v36, v36")
    a("v_exp_f32 v37, v37")
    a("s_nop 0")
    a("v_add_f32 v36, 1.0, v36")
    a("v_add_f32 v37, 1.0, v37")
    a("v_rcp_f32 v36, v36")
    a("v_rcp_f32 v37, v37")
    a("s_lshl_b32 s45, s57, 2")
    a(f"s_add_u32 s45, s45, {GA}")
    a("v_mov_b32 v5, 0")
    a("v_cmp_eq_u32 vcc, 63, v0")
    a("s_and_saveexec_b64 s[46:47], vcc")
    a(f"buffer_store_dwordx2 v[36:37], v5, s[{SWS}:{SWS+3}], s45 offen")
    a("s_mov_b64 exec, s[46:47]")
    a("s_cmp_ge_u32 s2, 236")
    a("s_cbranch_scc1 L_k1_end")
    a("s_waitcnt vmcnt(1)")
    for f in range(2):
        for i in range(4):
            a(f"v_lshl_or_b32 v{60+4*f+i}, v{40+8*f+2*i+1}, 16, v{40+8*f+2*i}")
    a("s_lshl_b32 s45, s58, 4")
    a("s_add_u32 s45, s45, s59")
    a("s_lshl_b32 s45, s45, 10")
    a(f"s_add_u32 s45, s45, {WTF}")
    a(f"buffer_store_dwordx4 v[60:63], v2, s[{SWS}:{SWS+3}], s45 offen")
    a(f"buffer_store_dwordx4 v[64:67], v2, s[{SWS}:{SWS+3}], s45 offen offset:1024")
    a("s_endpgm")

    a.label("L_k1_compute")
    R = Regs(8)
    xaddr = [R.alloc() for _ in range(4)]
    waddr = R.alloc()
    XF = [R.alloc(4) for _ in range(2)]
    WFR = [R.alloc(4) for _ in range(NU)]
    ACC = [R.alloc(16) for _ in range(NU)]
    TMP = R.alloc(16)
    s_stage, s_delta, s_sl = 48, 49, 50
    a("v_and_b32 v1, 31, v0")
    a("v_lshrrev_b32 v2, 5, v0")
    a("v_lshrrev_b32 v3, 1, v1")
    a("v_and_b32 v3, 7, v3")
    a("v_xor_b32 v3, v3, v2")
    a("v_lshlrev_b32 v3, 4, v3")
    a(f"s_lshl_b32 s45, s{s_wave}, 5")
    a("v_add_u32 v4, s45, v1")
    a("v_lshlrev_b32 v4, 7, v4")
    for kk in range(4):
        a(f"v_xor_b32 v5, {kk*32}, v3")
        a(f"v_add_u32 v{xaddr[kk]}, v4, v5")
    a("v_lshrrev_b32 v3, 4, v0")
    a("v_and_b32 v4, 1, v3")
    a(f"v_mul_u32_u24 v4, {K1_UB-K1_GB}, v4")
    a("v_lshlrev_b32 v5, 3, v2")
    a("v_bfe_u32 v6, v0, 2, 2")
    a("v_add_u32 v5, v5, v6")
    a("v_mul_u32_u24 v5, 288, v5")
    a("v_and_b32 v6, 3, v0")
    a("v_lshlrev_b32 v6, 3, v6")
    a("v_add3_u32 v4, v4, v5, v6")
    a(f"v_add_u32 v{waddr}, {K1_GB}, v4")
    for u in range(NU):
        for i in range(16):
            a(f"v_mov_b32 v{ACC[u]+i}, 0")
    a(f"s_mov_b32 s{s_stage}, 0")
    a(f"s_mov_b32 s{s_sl}, 0")
    a("s_waitcnt lgkmcnt(0)")
    srd(a, SWS, 24, 25, WS_BYTES)

    def rd_x(kk, buf):
        a(f"ds_read_b128 {v(XF[buf],4)}, v{xaddr[kk]}")
    def rd_w(kk, u):
        off = kk*16*288 + u*32
        a(f"ds_read_b64_tr_b16 {v(WFR[u],2)}, v{waddr} offset:{off}")
        a(f"ds_read_b64_tr_b16 {v(WFR[u]+2,2)}, v{waddr} offset:{off+4*288}")

    a("s_barrier")
    rd_x(0, 0)
    for u in range(NU):
        rd_w(0, u)
    a(f"s_cmp_eq_u32 s{s_cg}, 4")
    a("s_cbranch_scc1 L_k1_loopV")
    a(f"s_cmp_eq_u32 s{s_cg}, 5")
    a("s_cbranch_scc1 L_k1_loopV")

    def main_loop(tag, vtype):
        def mf(u, buf):
            A, B = (XF[buf], WFR[u]) if vtype else (WFR[u], XF[buf])
            a(f"v_mfma_f32_32x32x16_bf16 {v(ACC[u],16)}, {v(A,4)}, {v(B,4)}, {v(ACC[u],16)}")
        a(".p2align 6")
        a.label(f"L_k1_loop{tag}")
        for kk in range(3):
            buf = kk & 1
            for u in range(NU):
                younger = (NU-1-u)*2 + (0 if u == 0 else 1 + 2*u)
                a(f"s_waitcnt lgkmcnt({min(younger,15)})")
                mf(u, buf)
                if u == 0:
                    rd_x(kk+1, buf ^ 1)
                rd_w(kk+1, u)
        buf = 1
        NPRE = 3
        for u in range(NPRE):
            a(f"s_waitcnt lgkmcnt({min((NU-1-u)*2,15)})")
            mf(u, buf)
        a(f"s_add_u32 s{s_stage}, s{s_stage}, 1")
        a(f"s_add_u32 s{s_sl}, s{s_sl}, 1")
        a(f"s_cmp_eq_u32 s{s_sl}, 3")
        a(f"s_cselect_b32 s{s_sl}, 0, s{s_sl}")
        a(f"s_mov_b32 s45, {K1_SLOT}")
        a(f"s_mov_b32 s46, {(-2*K1_SLOT) & 0xffffffff}")
        a(f"s_cselect_b32 s{s_delta}, s46, s45")
        a("s_waitcnt lgkmcnt(0)")
        for r in xaddr + [waddr]:
            a(f"v_add_u32 v{r}, s{s_delta}, v{r}")
        a(f"s_cmp_eq_u32 s{s_stage}, 8")
        a(f"s_cbranch_scc1 L_k1_tail{tag}")
        a("s_barrier")
        rd_x(0, 0)
        for u in range(NPRE):
            rd_w(0, u)
        for u in range(NPRE, NU):
            mf(u, buf)
            rd_w(0, u)
        a(f"s_branch L_k1_loop{tag}")
        a.label(f"L_k1_tail{tag}")
        for u in range(NPRE, NU):
            mf(u, buf)

    main_loop("T", False)
    a(f"s_lshl_b32 s51, s{s_rb}, 2")
    a(f"s_add_u32 s51, s51, s{s_wave}")
    a("v_lshlrev_b32 v1, 4, v0")
    a(f"s_cmp_lt_u32 s{s_cg}, 4")
    a("s_cbranch_scc0 L_k1_epi_ffn")
    a(f"s_cmp_lt_u32 s{s_cg}, 2")
    a(f"s_mov_b32 s45, {f32bits(QSCALE)}")
    a("s_cselect_b32 s52, s45, 1.0")
    a(f"s_mov_b32 s53, s52")
    a(f"s_lshl_b32 s45, s{s_cg}, 20")
    a("s_lshl_b32 s46, s51, 10")
    a("s_add_u32 s45, s45, s46")
    a(f"s_add_u32 s46, s45, {8*65536}")
    for u in range(8):
        for half in range(2):
            t = TMP + 4*((2*u+half) & 3)
            src = ACC[u] + 8*half
            for i in range(4):
                a(f"v_pk_mul_f32 {v(src+2*i,2)}, {v(src+2*i,2)}, s[52:53]")
            for i in range(4):
                a(f"v_cvt_pk_bf16_f32 v{t+i}, v{src+2*i}, v{src+2*i+1}")
            a(f"buffer_store_dwordx4 {v(t,4)}, v1, s[{SWS}:{SWS+3}], s{45+half} offen")
        a("s_add_u32 s45, s45, 65536")
        a("s_add_u32 s46, s46, 65536")
    a("s_endpgm")
    a.label("L_k1_epi_ffn")
    a(f"s_sub_u32 s46, s{s_cg}, 6")
    a("s_mul_i32 s46, s46, 9")
    a("s_mul_i32 s45, s51, 86")
    a("s_add_u32 s45, s45, s46")
    a("s_lshl_b32 s45, s45, 10")
    a(f"s_add_u32 s45, s45, {HF}")
    a(f"s_mov_b32 s52, {f32bits(-LOG2E)}")
    a("s_mov_b32 s53, s52")
    a("s_mov_b32 s54, 1.0")
    a("s_mov_b32 s55, 1.0")
    for u in range(NU):
        if u == 5:
            a("s_cmp_eq_u32 s46, 81")
            a("s_cbranch_scc1 L_k1_end")
        if u == 8:
            a("s_nop 7")
        g = ACC[u]; up = ACC[u] + 8
        t = TMP + 4*(u & 3)
        for i in range(4):
            a(f"v_pk_mul_f32 {v(g+2*i,2)}, {v(g+2*i,2)}, s[52:53]")
        for i in range(8):
            a(f"v_exp_f32 v{g+i}, v{g+i}")
        for i in range(4):
            a(f"v_pk_add_f32 {v(g+2*i,2)}, {v(g+2*i,2)}, s[54:55]")
        for i in range(8):
            a(f"v_rcp_f32 v{g+i}, v{g+i}")
        for i in range(4):
            a(f"v_pk_mul_f32 {v(g+2*i,2)}, {v(g+2*i,2)}, {v(up+2*i,2)}")
        for i in range(4):
            a(f"v_cvt_pk_bf16_f32 v{t+i}, v{g+2*i}, v{g+2*i+1}")
        a(f"buffer_store_dwordx4 {v(t,4)}, v1, s[{SWS}:{SWS+3}], s45 offen offset:{(u&3)*1024}")
        if (u & 3) == 3:
            a("s_add_u32 s45, s45, 4096")
    a("s_endpgm")

    main_loop("V", True)
    a(f"s_lshl_b32 s51, s{s_rb}, 2")
    a(f"s_add_u32 s51, s51, s{s_wave}")
    a("v_and_b32 v1, 15, v0")
    a("v_lshlrev_b32 v1, 4, v1")
    a("v_lshrrev_b32 v2, 5, v0")
    a("v_lshlrev_b32 v2, 8, v2")
    a("v_bfe_u32 v3, v0, 4, 1")
    a("v_lshlrev_b32 v3, 19, v3")
    a("v_add3_u32 v1, v1, v2, v3")
    a(f"s_lshl_b32 s45, s{s_cg}, 20")
    a("s_lshl_b32 s46, s51, 10")
    a("s_add_u32 s45, s45, s46")
    for u in range(8):
        for half in range(2):
            t = TMP + 4*((2*u+half) & 3)
            src = ACC[u] + 8*half
            for i in range(4):
                a(f"v_cvt_pk_bf16_f32 v{t+i}, v{src+2*i}, v{src+2*i+1}")
            a(f"buffer_store_dwordx4 {v(t,4)}, v1, s[{SWS}:{SWS+3}], s45 offen offset:{half*512}")
        a("s_add_u32 s45, s45, 65536")
    a.label("L_k1_end")
    a("s_endpgm")
    return name, R.hi

K2_XCH = 131072
K2_CNT = 131072 + 16384
K2_LDS = K2_CNT + 64

def gen_k2(a):
    name = "k2_kernel"
    kernel_header(a, name)
    SWS = 8
    s_wave = 12
    a("s_cmp_ge_u32 s2, 256")
    a("s_cbranch_scc1 L_k2_end")
    a("s_load_dwordx2 s[4:5], s[0:1], 80")
    a("v_lshrrev_b32 v1, 6, v0")
    a("v_and_b32 v0, 63, v0")
    a("s_and_b32 s13, s2, 7")
    a(f"v_readfirstlane_b32 s{s_wave}, v1")
    a("s_lshr_b32 s14, s2, 3")
    a("v_lshlrev_b32 v1, 4, v0")
    a("s_waitcnt lgkmcnt(0)")
    srd(a, SWS, 4, 5, WS_BYTES)
    a(f"s_cmp_ge_u32 s{s_wave}, 8")
    a("s_cbranch_scc1 L_k2_down")
    s_head, s_T, s_t, s_pass = 16, 17, 18, 19
    R = Regs(4)
    kaddr = R.alloc(); vaddr = R.alloc()
    Q = R.alloc(4); KR = R.alloc(4); V0 = R.alloc(4); V1 = R.alloc(4)
    P = R.alloc(8); S = [R.alloc(16), R.alloc(16)]; O = R.alloc(16); C = R.alloc(16)
    a("s_lshl_b32 s15, s13, 2")
    a("s_and_b32 s20, s14, 3")
    a(f"s_add_u32 s{s_head}, s15, s20")
    a("s_lshr_b32 s20, s14, 2")
    a("s_lshl_b32 s20, s20, 3")
    a(f"s_add_u32 s{s_T}, s20, s{s_wave}")
    a(f"s_lshl_b32 s20, s{s_head}, 16")
    a(f"s_lshl_b32 s21, s{s_T}, 10")
    a("s_add_u32 s21, s21, s20")
    a(f"buffer_load_dwordx4 {v(Q,4)}, v1, s[{SWS}:{SWS+3}], s21 offen")
    a(f"s_lshl_b32 s22, s{s_wave}, 10")
    a("s_add_u32 s21, s20, s22")
    a(f"s_add_u32 s21, s21, {KF}")
    a(f"s_add_u32 s23, s21, {VF-KF}")
    for i in range(8):
        a(f"s_add_u32 m0, s22, {i*8192}")
        a("s_nop 0")
        a(f"buffer_load_dwordx4 v1, s[{SWS}:{SWS+3}], s21 offen lds")
        a(f"s_add_u32 m0, s22, {65536+i*8192}")
        a("s_add_u32 s21, s21, 8192")
        a(f"buffer_load_dwordx4 v1, s[{SWS}:{SWS+3}], s23 offen lds")
        a("s_add_u32 s23, s23, 8192")
    a("v_and_b32 v2, 31, v0")
    a("v_and_b32 v3, 27, v2")
    a("v_cmp_eq_u32 vcc, 16, v3")
    a("v_mov_b32 v3, 0x3f803f80")
    a("s_nop 0")
    for i in range(4):
        a(f"v_cndmask_b32 v{V0+i}, 0, v3, vcc")
        a(f"v_cndmask_b32 v{V1+i}, 0, v3, vcc")
    a("s_mov_b32 s24, 0x0000ffff")
    a("s_mov_b32 s25, 0x0000ffff")
    a(f"s_mov_b32 s{s_pass}, 0")
    a("s_waitcnt vmcnt(14)")
    a("s_barrier")
    a(f"ds_read_b128 {v(KR,4)}, v1")
    a("s_waitcnt lgkmcnt(0)")
    a(f"v_mfma_f32_32x32x16_bf16 {v(S[0],16)}, {v(KR,4)}, {v(Q,4)}, 0")
    a("s_nop 15")
    def maxtree(dst, src, first):
        if first:
            a(f"v_max3_f32 v{dst}, v{src}, v{src+1}, v{src+2}")
            rest = list(range(3, 16))
        else:
            rest = list(range(0, 16))
        while len(rest) >= 2:
            a(f"v_max3_f32 v{dst}, v{dst}, v{src+rest[0]}, v{src+rest[1]}")
            rest = rest[2:]
        if rest:
            a(f"v_max_f32 v{dst}, v{dst}, v{src+rest[0]}")
    maxtree(2, S[0], True)
    a.label("L_k2_setmax")
    a("v_mov_b32 v3, v2")
    a("s_nop 1")
    a("v_permlane32_swap_b32 v2, v3")
    a("s_nop 1")
    a("v_max_f32 v2, v2, v3")
    for i in range(16):
        a(f"v_sub_f32 v{C+i}, 0, v2")
    for i in range(16):
        a(f"v_mov_b32 v{O+i}, 0")
    for i in range(8):
        a(f"v_mov_b32 v{P+i}, 0")
    a(f"v_mov_b32 v{kaddr}, v1")
    a("v_and_b32 v2, 15, v0")
    a("v_lshlrev_b32 v2, 4, v2")
    a("v_lshrrev_b32 v3, 5, v0")
    a("v_lshlrev_b32 v3, 8, v3")
    a("v_add_u32 v2, v2, v3")
    a(f"v_add_u32 v{vaddr}, 65536, v2")
    for i in range(2):
        a(f"v_mov_b32 v{S[1]+14+i}, 0")
    a(f"ds_read_b128 {v(KR,4)}, v{kaddr}")
    a("s_mov_b64 exec, s[24:25]")
    a(f"ds_read_b128 {v(V1,4)}, v{vaddr} offset:512")
    a("s_mov_b64 exec, -1")
    a("s_waitcnt lgkmcnt(0)")
    a(f"v_mfma_f32_32x32x16_bf16 {v(S[0],16)}, {v(KR,4)}, {v(Q,4)}, {v(C,16)}")
    a(f"ds_read_b128 {v(KR,4)}, v{kaddr} offset:1024")
    a("s_mov_b64 exec, s[24:25]")
    a(f"ds_read_b128 {v(V0,4)}, v{vaddr}")
    a("s_mov_b64 exec, -1")
    a(f"s_mov_b32 s{s_t}, 0")
    a("s_nop 15")
    UNR = 4
    a(".p2align 6")
    a.label("L_k2_loop")
    def e(cur, i): a(f"v_exp_f32 v{cur+i}, v{cur+i}")
    def c(cur, i): a(f"v_cvt_pk_bf16_f32 v{P+i}, v{cur+2*i}, v{cur+2*i+1}")
    for tt in range(UNR):
        cur = S[tt & 1]; nxt = S[(tt+1) & 1]
        e(cur, 0)
        c(nxt, 7)
        e(cur, 1); e(cur, 2)
        a("s_waitcnt lgkmcnt(2)")
        a(f"v_mfma_f32_32x32x16_bf16 {v(O,16)}, {v(V1,4)}, {v(P+4,4)}, {v(O,16)}")
        a("s_mov_b64 exec, s[24:25]")
        a(f"ds_read_b128 {v(V1,4)}, v{vaddr} offset:{tt*1024+512}")
        a("s_mov_b64 exec, -1")
        c(cur, 0); e(cur, 3); e(cur, 4); c(cur, 1); e(cur, 5); e(cur, 6)
        a("s_waitcnt lgkmcnt(2)")
        a(f"v_mfma_f32_32x32x16_bf16 {v(nxt,16)}, {v(KR,4)}, {v(Q,4)}, {v(C,16)}")
        a(f"ds_read_b128 {v(KR,4)}, v{kaddr} offset:{(tt+2)*1024}")
        c(cur, 2); e(cur, 7); e(cur, 8); c(cur, 3); e(cur, 9); e(cur, 10)
        a("s_waitcnt lgkmcnt(2)")
        a(f"v_mfma_f32_32x32x16_bf16 {v(O,16)}, {v(V0,4)}, {v(P,4)}, {v(O,16)}")
        a("s_mov_b64 exec, s[24:25]")
        a(f"ds_read_b128 {v(V0,4)}, v{vaddr} offset:{(tt+1)*1024}")
        a("s_mov_b64 exec, -1")
        c(cur, 4); e(cur, 11); e(cur, 12); c(cur, 5); e(cur, 13); e(cur, 14); c(cur, 6); e(cur, 15)
    a(f"v_add_u32 v{kaddr}, {UNR*1024}, v{kaddr}")
    a(f"v_add_u32 v{vaddr}, {UNR*1024}, v{vaddr}")
    a(f"s_add_u32 s{s_t}, s{s_t}, {UNR}")
    a(f"s_cmp_eq_u32 s{s_t}, 4")
    a("s_cbranch_scc1 L_k2_b2")
    a(f"s_cmp_eq_u32 s{s_t}, 20")
    a("s_cbranch_scc1 L_k2_b3")
    a(f"s_cmp_lt_u32 s{s_t}, 64")
    a("s_cbranch_scc1 L_k2_loop")
    cur = S[(UNR-1) & 1]
    c(cur, 7)
    a("s_waitcnt lgkmcnt(0)")
    a("s_nop 0")
    a(f"v_mfma_f32_32x32x16_bf16 {v(O,16)}, {v(V1,4)}, {v(P+4,4)}, {v(O,16)}")
    a("s_nop 15")
    a(f"s_cmp_lg_u32 s{s_pass}, 0")
    a("s_cbranch_scc1 L_k2_fin")
    a(f"v_mov_b32 v2, {f32bits(2.0**30)}")
    a(f"v_cmp_nle_f32 vcc, v{O+8}, v2")
    a(f"v_mov_b32 v3, 0")
    for i in range(8):
        a(f"v_fma_f32 v3, v{O+i}, 0, v3")
    a(f"v_cmp_u_f32 s[26:27], v3, v3")
    a("s_nop 3")
    a("s_or_b64 vcc, vcc, s[26:27]")
    a("s_cbranch_vccnz L_k2_fallback")
    a.label("L_k2_fin")
    a(f"v_rcp_f32 v2, v{O+8}")
    a("s_nop 0")
    for i in range(8):
        a(f"v_mul_f32 v{O+i}, v2, v{O+i}")
    for i in range(4):
        a(f"v_cvt_pk_bf16_f32 v{P+i}, v{O+2*i}, v{O+2*i+1}")
    a(f"s_lshl_b32 s20, s{s_T}, 5")
    a(f"s_add_u32 s20, s20, s{s_head}")
    a("s_lshl_b32 s20, s20, 10")
    a(f"s_add_u32 s20, s20, {OF}")
    a(f"buffer_store_dwordx4 {v(P,4)}, v1, s[{SWS}:{SWS+3}], s20 offen")
    a("s_endpgm")
    a.label("L_k2_b2")
    a(f"s_cmp_lg_u32 s{s_pass}, 0")
    a("s_cbranch_scc1 L_k2_loop")
    a("s_waitcnt vmcnt(10)")
    a("s_barrier")
    a("s_branch L_k2_loop")
    a.label("L_k2_b3")
    a(f"s_cmp_lg_u32 s{s_pass}, 0")
    a("s_cbranch_scc1 L_k2_loop")
    a("s_waitcnt vmcnt(0)")
    a("s_barrier")
    a("s_branch L_k2_loop")
    a.label("L_k2_fallback")
    a(f"s_mov_b32 s{s_pass}, 1")
    a(f"v_mov_b32 v{kaddr}, v1")
    a("v_mov_b32 v2, 0xff800000")
    a(f"s_mov_b32 s{s_t}, 0")
    a.label("L_k2_fb_loop")
    a(f"ds_read_b128 {v(KR,4)}, v{kaddr}")
    a(f"v_add_u32 v{kaddr}, 1024, v{kaddr}")
    a("s_waitcnt lgkmcnt(0)")
    a(f"v_mfma_f32_32x32x16_bf16 {v(S[0],16)}, {v(KR,4)}, {v(Q,4)}, 0")
    a("s_nop 15")
    maxtree(2, S[0], False)
    a(f"s_add_u32 s{s_t}, s{s_t}, 1")
    a(f"s_cmp_lt_u32 s{s_t}, 64")
    a("s_cbranch_scc1 L_k2_fb_loop")
    a("s_branch L_k2_setmax")
    att_hi = R.hi
    att_fix = (S[1], )

    a.label("L_k2_down")
    D = 6
    R = Regs(4)
    FR = [[R.alloc(4) for _ in range(3)] for _ in range(D)]
    ACC = [R.alloc(16), R.alloc(16)]
    s_h, s_w0, s_w1, s_T, s_nt, s_i = 16, 17, 18, 19, 20, 21
    a(f"s_sub_u32 s22, s{s_wave}, 8")
    a("s_and_b32 s23, s22, 1")
    a("s_lshr_b32 s24, s22, 1")
    a("s_lshl_b32 s15, s13, 2")
    a("s_and_b32 s25, s14, 3")
    a("s_add_u32 s15, s15, s25")
    a("s_lshl_b32 s15, s15, 1")
    a(f"s_add_u32 s{s_T}, s15, s23")
    a("s_lshr_b32 s25, s14, 2")
    a("s_lshl_b32 s25, s25, 1")
    a(f"s_add_u32 s{s_nt}, s25, s24")
    a(f"s_mul_i32 s{s_h}, s{s_T}, 86")
    a(f"s_add_u32 s{s_h}, s{s_h}, s24")
    a(f"s_lshl_b32 s{s_h}, s{s_h}, 10")
    a(f"s_add_u32 s{s_h}, s{s_h}, {HF}")
    a("s_lshl_b32 s26, s24, 4")
    a(f"s_add_u32 s{s_w0}, s26, s{s_nt}")
    a(f"s_xor_b32 s{s_w1}, s{s_w0}, 1")
    a(f"s_lshl_b32 s{s_w0}, s{s_w0}, 10")
    a(f"s_lshl_b32 s{s_w1}, s{s_w1}, 10")
    a(f"s_add_u32 s{s_w0}, s{s_w0}, {WTF}")
    a(f"s_add_u32 s{s_w1}, s{s_w1}, {WTF}")
    def ld(slot):
        a(f"buffer_load_dwordx4 {v(FR[slot][0],4)}, v1, s[{SWS}:{SWS+3}], s{s_h} offen")
        a(f"buffer_load_dwordx4 {v(FR[slot][1],4)}, v1, s[{SWS}:{SWS+3}], s{s_w0} offen")
        a(f"buffer_load_dwordx4 {v(FR[slot][2],4)}, v1, s[{SWS}:{SWS+3}], s{s_w1} offen")
        a(f"s_add_u32 s{s_h}, s{s_h}, 2048")
        a(f"s_add_u32 s{s_w0}, s{s_w0}, 32768")
        a(f"s_add_u32 s{s_w1}, s{s_w1}, 32768")
    def mm(slot):
        for n in range(2):
            a(f"v_mfma_f32_32x32x16_bf16 {v(ACC[n],16)}, {v(FR[slot][1+n],4)}, {v(FR[slot][0],4)}, {v(ACC[n],16)}")
    for n in range(2):
        for i in range(16):
            a(f"v_mov_b32 v{ACC[n]+i}, 0")
    a(f"v_mov_b32 v2, {K2_CNT}")
    a("v_mov_b32 v3, 0")
    a("ds_write_b32 v2, v3")
    a("s_waitcnt lgkmcnt(0)")
    a("s_barrier")
    a("s_barrier")
    a("s_barrier")
    for d in range(D):
        ld(d)
    NST = 43
    nloop = (NST - D) // D
    rem = NST - D - nloop*D
    a(f"s_mov_b32 s{s_i}, {nloop}")
    a.label("L_k2_dloop")
    for d in range(D):
        a(f"s_waitcnt vmcnt({3*(D-1)})")
        mm(d)
        a("s_nop 1")
        ld(d)
    a(f"s_sub_u32 s{s_i}, s{s_i}, 1")
    a(f"s_cmp_lg_u32 s{s_i}, 0")
    a("s_cbranch_scc1 L_k2_dloop")
    outstanding = D
    for r in range(D + rem):
        d = r % D
        a(f"s_waitcnt vmcnt({3*(outstanding-1)})")
        mm(d)
        outstanding -= 1
        if r < rem:
            a("s_nop 1")
            ld(d)
            outstanding += 1
    a("s_nop 15")
    a("s_lshl_b32 s26, s22, 12")
    a(f"s_add_u32 s26, s26, {K2_XCH}")
    a("v_add_u32 v3, s26, v1")
    for i in range(4):
        a(f"ds_write_b128 v3, {v(ACC[1]+4*i,4)} offset:{i*1024}")
    a("s_waitcnt lgkmcnt(0)")
    a("v_mov_b32 v4, 1")
    a("v_cmp_eq_u32 vcc, 0, v0")
    a("s_and_saveexec_b64 s[26:27], vcc")
    a("ds_add_u32 v2, v4")
    a("s_mov_b64 exec, s[26:27]")
    a.label("L_k2_spin")
    a("s_sleep 1")
    a("ds_read_b32 v4, v2")
    a("s_waitcnt lgkmcnt(0)")
    a("v_readfirstlane_b32 s26, v4")
    a("s_cmp_lt_u32 s26, 4")
    a("s_cbranch_scc1 L_k2_spin")
    a("v_xor_b32 v3, 8192, v3")
    for i in range(4):
        a(f"ds_read_b128 {v(ACC[1]+4*i,4)}, v3 offset:{i*1024}")
    a("s_waitcnt lgkmcnt(0)")
    for i in range(16):
        a(f"v_add_f32 v{ACC[0]+i}, v{ACC[0]+i}, v{ACC[1]+i}")
    for i in range(8):
        a(f"v_cvt_pk_bf16_f32 v{ACC[1]+i}, v{ACC[0]+2*i}, v{ACC[0]+2*i+1}")
    a(f"s_lshl_b32 s26, s{s_T}, 4")
    a(f"s_add_u32 s26, s26, s{s_nt}")
    a("s_lshl_b32 s26, s26, 11")
    a(f"s_add_u32 s26, s26, {BF}")
    a(f"buffer_store_dwordx4 {v(ACC[1],4)}, v1, s[{SWS}:{SWS+3}], s26 offen")
    a(f"buffer_store_dwordx4 {v(ACC[1]+4,4)}, v1, s[{SWS}:{SWS+3}], s26 offen offset:1024")
    a.label("L_k2_end")
    a("s_endpgm")
    return name, max(att_hi, R.hi), S[1]

K3_LDS = 4*3*4096

def gen_k3(a):
    name = "k3_kernel"
    kernel_header(a, name)
    SWS, SO = 8, 12
    s_wave = 16
    a("s_cmp_ge_u32 s2, 256")
    a("s_cbranch_scc1 L_k3_end")
    a("s_load_dwordx2 s[4:5], s[0:1], 80")
    a("s_load_dwordx2 s[6:7], s[0:1], 64")
    a("v_lshrrev_b32 v1, 6, v0")
    a("v_and_b32 v0, 63, v0")
    a("s_and_b32 s17, s2, 7")
    a(f"v_readfirstlane_b32 s{s_wave}, v1")
    a("s_lshr_b32 s18, s2, 3")
    a("v_lshlrev_b32 v1, 4, v0")
    R = Regs(4)
    G = R.alloc()
    Bv = R.alloc(8)
    FO = [[R.alloc(4) for _ in range(2)] for _ in range(8)]
    FW = [[R.alloc(4) for _ in range(2)] for _ in range(8)]
    ACC = [R.alloc(16) for _ in range(4)]
    s_T, s_nt = 19, 20
    a("s_lshl_b32 s21, s17, 2")
    a("s_and_b32 s22, s18, 3")
    a("s_add_u32 s21, s21, s22")
    a("s_lshl_b32 s21, s21, 1")
    a(f"s_and_b32 s22, s{s_wave}, 1")
    a(f"s_add_u32 s{s_T}, s21, s22")
    a("s_lshr_b32 s21, s18, 2")
    a("s_lshl_b32 s21, s21, 1")
    a(f"s_lshr_b32 s22, s{s_wave}, 1")
    a(f"s_add_u32 s{s_nt}, s21, s22")
    a(f"s_lshl_b32 s21, s{s_T}, 15")
    a(f"s_lshl_b32 s22, s{s_wave}, 13")
    a("s_add_u32 s21, s21, s22")
    a(f"s_add_u32 s24, s21, {OF}")
    a("s_xor_b32 s25, s24, 32768")
    a(f"s_lshl_b32 s21, s{s_wave}, 17")
    a(f"s_lshl_b32 s22, s{s_nt}, 10")
    a("s_add_u32 s21, s21, s22")
    a(f"s_add_u32 s26, s21, {WTF + 86*16*1024}")
    a("s_xor_b32 s27, s26, 1024")
    a("s_waitcnt lgkmcnt(0)")
    srd(a, SWS, 4, 5, WS_BYTES)
    for i in range(8):
        a(f"buffer_load_dwordx4 {v(FO[i][0],4)}, v1, s[{SWS}:{SWS+3}], s24 offen offset:{(i&3)*1024}")
        a(f"buffer_load_dwordx4 {v(FW[i][0],4)}, v1, s[{SWS}:{SWS+3}], s26 offen")
        a(f"buffer_load_dwordx4 {v(FO[i][1],4)}, v1, s[{SWS}:{SWS+3}], s25 offen offset:{(i&3)*1024}")
        a(f"buffer_load_dwordx4 {v(FW[i][1],4)}, v1, s[{SWS}:{SWS+3}], s27 offen")
        a("s_add_u32 s26, s26, 16384")
        a("s_add_u32 s27, s27, 16384")
        if i == 3:
            a("s_add_u32 s24, s24, 4096")
            a("s_add_u32 s25, s25, 4096")
    a(f"s_lshl_b32 s21, s{s_T}, 4")
    a(f"s_add_u32 s21, s21, s{s_nt}")
    a("s_lshl_b32 s21, s21, 11")
    a(f"s_add_u32 s21, s21, {BF}")
    a(f"buffer_load_dwordx4 {v(Bv,4)}, v1, s[{SWS}:{SWS+3}], s21 offen")
    a(f"buffer_load_dwordx4 {v(Bv+4,4)}, v1, s[{SWS}:{SWS+3}], s21 offen offset:1024")
    a("v_and_b32 v2, 31, v0")
    a("v_lshlrev_b32 v3, 2, v2")
    a(f"s_lshl_b32 s21, s{s_T}, 7")
    a(f"s_add_u32 s21, s21, {GA}")
    a(f"buffer_load_dword v{G}, v3, s[{SWS}:{SWS+3}], s21 offen")
    srd(a, SO, 6, 7, 2048*1024)
    for i in range(8):
        a(f"s_waitcnt vmcnt({3 + 4*(7-i) + 2})")
        cc = "0" if i == 0 else None
        def mm(q, o, w):
            c = "0" if i == 0 else v(ACC[q],16)
            a(f"v_mfma_f32_32x32x16_bf16 {v(ACC[q],16)}, {v(FW[i][w],4)}, {v(FO[i][o],4)}, {c}")
        mm(0, 0, 0)
        a(f"s_waitcnt vmcnt({3 + 4*(7-i) + 1})")
        mm(1, 1, 0)
        a(f"s_waitcnt vmcnt({3 + 4*(7-i)})")
        mm(2, 0, 1)
        mm(3, 1, 1)
    a("s_nop 7")
    for q in range(1, 4):
        a(f"s_xor_b32 s21, s{s_wave}, {q}")
        a("s_mul_i32 s21, s21, 12288")
        a(f"s_add_u32 s21, s21, {(q-1)*4096}")
        a("v_add_u32 v3, s21, v1")
        if q == 3:
            a("s_nop 7")
        for i in range(4):
            a(f"ds_write_b128 v3, {v(ACC[q]+4*i,4)} offset:{i*1024}")
    a(f"s_mul_i32 s21, s{s_wave}, 12288")
    a("v_add_u32 v3, s21, v1")
    a("s_waitcnt lgkmcnt(0)")
    a("s_barrier")
    for q in range(1, 4):
        for i in range(4):
            a(f"ds_read_b128 {v(ACC[q]+4*i,4)}, v3 offset:{(q-1)*4096+i*1024}")
    a("v_lshlrev_b32 v2, 10, v2")
    a("v_lshrrev_b32 v3, 5, v0")
    a("v_lshlrev_b32 v3, 4, v3")
    a("v_add_u32 v2, v2, v3")
    a(f"s_lshl_b32 s21, s{s_T}, 15")
    a(f"s_lshl_b32 s22, s{s_nt}, 6")
    a("s_add_u32 s21, s21, s22")
    for q in range(1, 4):
        a(f"s_waitcnt lgkmcnt({4*(3-q)})")
        for i in range(16):
            a(f"v_add_f32 v{ACC[0]+i}, v{ACC[0]+i}, v{ACC[q]+i}")
    a("s_waitcnt vmcnt(0)")
    T1 = ACC[1]
    for i in range(8):
        a(f"v_lshlrev_b32 v{T1+2*i}, 16, v{Bv+i}")
        a(f"v_and_b32 v{T1+2*i+1}, 0xffff0000, v{Bv+i}")
    a(f"v_sub_f32 v3, 1.0, v{G}")
    for i in range(16):
        a(f"v_mul_f32 v{T1+i}, v3, v{T1+i}")
    for i in range(16):
        a(f"v_fmac_f32 v{T1+i}, v{G}, v{ACC[0]+i}")
    T2 = ACC[2]
    for i in range(8):
        a(f"v_cvt_pk_bf16_f32 v{T2+i}, v{T1+2*i}, v{T1+2*i+1}")
    a("s_nop 1")
    for p in range(2):
        b = T2 + 4*p
        a(f"v_permlane32_swap_b32 v{b}, v{b+2}")
        a(f"v_permlane32_swap_b32 v{b+1}, v{b+3}")
    a("s_nop 1")
    a(f"buffer_store_dwordx4 {v(T2,4)}, v2, s[{SO}:{SO+3}], s21 offen")
    a(f"buffer_store_dwordx4 {v(T2+4,4)}, v2, s[{SO}:{SO+3}], s21 offen offset:32")
    a.label("L_k3_end")
    a("s_endpgm")
    return name, R.hi

def main(path):
    a = Asm()
    hdr = []
    a('.amdgcn_target "amdgcn-amd-amdhsa--gfx950"')
    a(".text")
    n1, v1 = gen_k1(a)
    n2, v2, _ = gen_k2(a)
    n3, v3 = gen_k3(a)
    a('.section .rodata,"a"')
    txt = a.text() + kernel_desc(n1, v1) + kernel_desc(n2, v2) + kernel_desc(n3, v3)
    hdr = f"""; generated by gen/gen1.py
; @launch kernel=k1_kernel grid=(256,1,1) block=(512,1,1) lds={K1_LDS}
; @launch kernel=k2_kernel grid=(256,1,1) block=(768,1,1) lds={K2_LDS}
; @launch kernel=k3_kernel grid=(256,1,1) block=(256,1,1) lds={K3_LDS}
"""
    open(path, "w").write(hdr + txt)
    print("vgprs", v1, v2, v3)

if __name__ == "__main__":
    main(sys.argv[1] if len(sys.argv) > 1 else "gated_mix__mha_block__glu_gated_glu__prompt.s")
```

```python
class Asm:
    def __init__(self):
        self.lines = []
        self.uid = 0
    def __call__(self, s=""):
        for l in s.split("\n"):
            l = l.strip()
            if not l:
                continue
            if l.endswith(":") or l.startswith("."):
                self.lines.append(l)
            else:
                self.lines.append("    " + l)
    def label(self, name):
        self.lines.append(name + ":")
    def newlabel(self, base):
        self.uid += 1
        return f"L_{base}_{self.uid}"
    def text(self):
        return "\n".join(self.lines) + "\n"

def v(n, cnt=1):
    return f"v{n}" if cnt == 1 else f"v[{n}:{n+cnt-1}]"
def s(n, cnt=1):
    return f"s{n}" if cnt == 1 else f"s[{n}:{n+cnt-1}]"

class Regs:
    def __init__(self, start=0):
        self.n = start
        self.hi = start
    def alloc(self, cnt=1, align=None):
        if align is None:
            align = 1 if cnt == 1 else (2 if cnt == 2 else 4)
        self.n = (self.n + align - 1) // align * align
        r = self.n
        self.n += cnt
        self.hi = max(self.hi, self.n)
        return r

def kernel_header(a, name):
    a(f".globl {name}")
    a(".p2align 8")
    a(f".type {name},@function")
    a.label(name)

def kernel_desc(name, vgprs, sgprs=96):
    nv = (vgprs + 7) // 8 * 8
    acc = (vgprs + 3) // 4 * 4
    acc = min(max(acc, 4), 256)
    return f""".p2align 6
.amdhsa_kernel {name}
  .amdhsa_next_free_vgpr {nv}
  .amdhsa_next_free_sgpr {sgprs}
  .amdhsa_accum_offset {min(nv,256)}
  .amdhsa_group_segment_fixed_size 0
  .amdhsa_kernarg_size 88
  .amdhsa_user_sgpr_count 2
  .amdhsa_user_sgpr_kernarg_segment_ptr 1
  .amdhsa_system_sgpr_workgroup_id_x 1
.end_amdhsa_kernel
"""

def f32bits(x):
    import struct
    return "0x%08x" % struct.unpack("<I", struct.pack("<f", x))[0]

STAMP_BASE = 24 << 20
class Stamper:
    def __init__(self, a, enabled, kidx):
        self.a, self.en, self.k = a, enabled, kidx
    def stamp(self, i):
        if not self.en: return
        self.a(f"s_memtime s[{70+2*i}:{71+2*i}]")
    def real(self, i):
        if not self.en: return
        self.a(f"s_memrealtime s[{70+2*i}:{71+2*i}]")
    def init(self):
        if not self.en: return
        for i in range(70, 94):
            self.a(f"s_mov_b32 s{i}, 0")
    def flush(self, srd, s_wave, vtmp=2):
        if not self.en: return
        a = self.a
        a("s_waitcnt lgkmcnt(0) vmcnt(0)")
        a("s_mov_b64 exec, 1")
        a(f"s_lshl_b32 s94, s2, 4")
        a(f"s_add_u32 s94, s94, s{s_wave}")
        a(f"s_lshl_b32 s94, s94, 6")
        a(f"s_add_u32 s94, s94, {STAMP_BASE + self.k*(1<<20)}")
        a(f"v_mov_b32 v{vtmp+1}, 0")
        for i in range(12):
            a(f"v_mov_b32 v{vtmp}, s{70+2*i}")
            a(f"buffer_store_dword v{vtmp}, v{vtmp+1}, s[{srd}:{srd+3}], s94 offen offset:{4*i}")
            a("s_nop 1")
```

```python
import math, sys
from asmlib import *

MB = 1 << 20
QF, KF, VF, OF, HF, WTF, BF, GA = 0, 2*MB, 4*MB, 6*MB, 8*MB, 14*MB, 17*MB, 19*MB
WS_BYTES = 32*MB
INSTR = '--instr' in sys.argv
LOG2E = 1.4426950408889634
QSCALE = 0.25 * LOG2E

def srd(a, d, lo, hi, nbytes):
    a(f"s_mov_b32 s{d}, s{lo}")
    a(f"s_and_b32 s{d+1}, s{hi}, 0xffff")
    a(f"s_mov_b32 s{d+2}, {nbytes}")
    a(f"s_mov_b32 s{d+3}, 0x20000")

K1_XB = 0
K1_GB = 16384
K1_UB = 16384 + 18432 + 128
K1_SLOT = 53504
K1_LDS = 3 * K1_SLOT
NU = 9

def gen_k1(a):
    name = "k1_kernel"
    kernel_header(a, name)
    SX, SW, SWS = 28, 32, 36
    s_rb, s_cg, s_wave = 42, 43, 44
    a("s_cmp_ge_u32 s2, 256")
    a("s_cbranch_scc1 L_k1_end")
    st = Stamper(a, INSTR, 0)
    st.init(); st.real(0); st.stamp(1)
    a("s_load_dwordx16 s[4:19], s[0:1], 0")
    a("s_load_dwordx2 s[24:25], s[0:1], 80")
    a("v_lshrrev_b32 v1, 6, v0")
    a("v_and_b32 v0, 63, v0")
    a("s_and_b32 s40, s2, 7")
    a("s_lshr_b32 s41, s2, 3")
    a(f"v_readfirstlane_b32 s{s_wave}, v1")
    a("s_and_b32 s45, s40, 1")
    a("s_lshl_b32 s45, s45, 3")
    a("s_and_b32 s46, s41, 7")
    a(f"s_add_u32 s{s_rb}, s45, s46")
    a("s_lshr_b32 s45, s40, 1")
    a("s_lshl_b32 s45, s45, 2")
    a("s_lshr_b32 s46, s41, 3")
    a(f"s_add_u32 s{s_cg}, s45, s46")
    a(f"s_cmp_lt_u32 s{s_wave}, 4")
    a("s_cbranch_scc1 L_k1_compute")

    s_lw, s_pitch, s_ldsx, s_ldsw, s_xoff, s_woff, s_wstep, s_slot, s_cnt = 48, 49, 50, 51, 52, 53, 54, 55, 56
    a(f"s_sub_u32 s{s_lw}, s{s_wave}, 4")
    a("v_lshrrev_b32 v2, 3, v0")
    a("v_and_b32 v3, 7, v0")
    a("v_lshrrev_b32 v4, 1, v2")
    a(f"s_and_b32 s45, s{s_lw}, 1")
    a("s_lshl_b32 s46, s45, 2")
    a("v_add_u32 v4, s46, v4")
    a("v_and_b32 v4, 7, v4")
    a("v_xor_b32 v3, v3, v4")
    a("v_lshlrev_b32 v3, 4, v3")
    a(f"s_lshl_b32 s46, s{s_rb}, 7")
    a(f"s_lshl_b32 s47, s{s_lw}, 3")
    a("s_add_u32 s46, s46, s47")
    a("v_add_u32 v2, s46, v2")
    a("v_lshlrev_b32 v2, 10, v2")
    a("v_add_u32 v10, v2, v3")
    for j in range(1, 4):
        a(f"v_add_u32 v{10+j}, {32768*j}, v10")
    a(f"s_cmp_lt_u32 s{s_cg}, 6")
    a(f"s_cselect_b32 s{s_pitch}, 3072, 2752") if False else None
    a("s_movk_i32 s46, 3072")
    a("s_movk_i32 s47, 2752")
    a(f"s_cselect_b32 s{s_pitch}, s46, s47")
    a("s_mul_i32 s46, s45, 576")
    a("v_add_u32 v2, s46, v0")
    a("s_movk_i32 s47, 3641")
    for j in range(9):
        if j:
            a("v_add_u32 v2, 64, v2")
        a("v_mul_u32_u24 v3, s47, v2")
        a("v_lshrrev_b32 v3, 16, v3")
        a("v_mul_u32_u24 v4, 18, v3")
        a("v_sub_u32 v4, v2, v4")
        a("v_lshlrev_b32 v4, 4, v4")
        a(f"v_mad_u32_u24 v{14+j}, v3, s{s_pitch}, v4")
    a(f"s_lshl_b32 s{s_wstep}, s{s_pitch}, 6")
    a(f"s_lshl_b32 s{s_ldsx}, s{s_lw}, 10")
    a(f"s_mul_i32 s46, s45, {9*1024}")
    a(f"s_cmp_lt_u32 s{s_lw}, 2")
    a(f"s_mov_b32 s47, {K1_GB}")
    a(f"s_mov_b32 s57, {K1_UB}")
    a("s_cselect_b32 s47, s47, s57")
    a(f"s_add_u32 s{s_ldsw}, s46, s47")
    a("s_waitcnt lgkmcnt(0)")
    srd(a, SX, 4, 5, 2048*1024)
    srd(a, SWS, 24, 25, WS_BYTES)
    a(f"s_lshr_b32 s45, s{s_lw}, 1")
    a(f"s_cmp_lt_u32 s{s_cg}, 6")
    a("s_cbranch_scc0 L_k1_ld_ffn")
    a(f"s_lshl_b32 s46, s{s_cg}, 9")
    a("s_lshl_b32 s47, s45, 8")
    a("s_add_u32 s46, s46, s47")
    a(f"s_add_u32 s{SW}, s6, s46")
    a(f"s_addc_u32 s{SW+1}, s7, 0")
    a(f"s_sub_u32 s{SW+2}, {512*3072}, s46")
    a("s_branch L_k1_ld_go")
    a.label("L_k1_ld_ffn")
    a(f"s_sub_u32 s46, s{s_cg}, 6")
    a("s_mul_i32 s46, s46, 288")
    a("s_cmp_eq_u32 s45, 0")
    a("s_cselect_b32 s58, s12, s14")
    a("s_cselect_b32 s59, s13, s15")
    a(f"s_add_u32 s{SW}, s58, s46")
    a(f"s_addc_u32 s{SW+1}, s59, 0")
    a(f"s_sub_u32 s{SW+2}, {512*2752}, s46")
    a.label("L_k1_ld_go")
    a(f"s_and_b32 s{SW+1}, s{SW+1}, 0xffff")
    a(f"s_mov_b32 s{SW+3}, 0x20000")
    a(f"s_mov_b32 s{s_xoff}, 0")
    a(f"s_mov_b32 s{s_woff}, 0")
    a(f"s_mov_b32 s{s_slot}, 0")
    a(f"s_mov_b32 s{s_cnt}, 0")

    def issue_stage():
        a(f"s_add_u32 m0, s{s_slot}, s{s_ldsx}")
        for j in range(4):
            a("s_nop 0")
            a(f"buffer_load_dwordx4 v{10+j}, s[{SX}:{SX+3}], s{s_xoff} offen lds")
            if j < 3:
                a("s_add_u32 m0, m0, 4096")
        a(f"s_add_u32 m0, s{s_slot}, s{s_ldsw}")
        for j in range(9):
            a("s_nop 0")
            a(f"buffer_load_dwordx4 v{14+j}, s[{SW}:{SW+3}], s{s_woff} offen lds")
            if j < 8:
                a("s_add_u32 m0, m0, 1024")
        a(f"s_add_u32 s{s_xoff}, s{s_xoff}, 128")
        a(f"s_add_u32 s{s_woff}, s{s_woff}, s{s_wstep}")
        a(f"s_add_u32 s{s_slot}, s{s_slot}, {K1_SLOT}")
        a(f"s_cmp_eq_u32 s{s_slot}, {3*K1_SLOT}")
        a(f"s_cselect_b32 s{s_slot}, 0, s{s_slot}")

    a.label("L_k1_ld_loop")
    issue_stage()
    a(f"s_add_u32 s{s_cnt}, s{s_cnt}, 1")
    a(f"s_cmp_lt_u32 s{s_cnt}, 3")
    a("s_cbranch_scc1 L_k1_ld_loop")
    a(f"s_cmp_eq_u32 s{s_cnt}, 8")
    a("s_cbranch_scc1 L_k1_ld_done")
    a(f"s_cmp_eq_u32 s{s_cnt}, 3")
    a("s_cbranch_scc0 L_k1_ld_skipb0")
    a("s_waitcnt vmcnt(26)")
    a("s_barrier")
    a.label("L_k1_ld_skipb0")
    a("s_waitcnt vmcnt(13)")
    a("s_barrier")
    a("s_branch L_k1_ld_loop")
    a.label("L_k1_ld_done")
    SA = 60
    SG = 64
    srd(a, SG, 18, 19, 1024)
    a("v_lshlrev_b32 v2, 4, v0")
    a("s_lshl_b32 s45, s2, 3")
    a(f"s_lshl_b32 s46, s{s_lw}, 1")
    a("s_add_u32 s57, s45, s46")
    a("s_lshl_b32 s45, s57, 10")
    a(f"buffer_load_dwordx4 v[24:27], v2, s[{SG}:{SG+3}], 0 offen")
    a(f"buffer_load_dwordx4 v[28:31], v2, s[{SX}:{SX+3}], s45 offen")
    a(f"buffer_load_dwordx4 v[32:35], v2, s[{SX}:{SX+3}], s45 offen offset:1024")
    nside = 3
    a("s_lshr_b32 s58, s2, 1")
    a("s_cmp_lt_u32 s58, 86")
    a(f"s_cselect_b32 s{SA}, s16, s8")
    a(f"s_cselect_b32 s{SA+1}, s17, s9")
    a(f"s_mov_b32 s45, {1376*1024}")
    a(f"s_mov_b32 s46, {512*1024}")
    a(f"s_cselect_b32 s{SA+2}, s45, s46")
    a("s_cselect_b32 s45, 0, 86")
    a(f"s_and_b32 s{SA+1}, s{SA+1}, 0xffff")
    a(f"s_mov_b32 s{SA+3}, 0x20000")
    a("s_sub_u32 s45, s58, s45")
    a("s_lshl_b32 s45, s45, 14")
    a("s_add_u32 s46, s45, 8192")
    a("s_and_b32 s47, s2, 1")
    a("s_lshl_b32 s47, s47, 3")
    a(f"s_lshl_b32 s59, s{s_lw}, 1")
    a("s_add_u32 s59, s59, s47")
    a("v_lshrrev_b32 v3, 5, v0")
    a("v_lshlrev_b32 v3, 12, v3")
    a("v_and_b32 v4, 31, v0")
    a("v_lshlrev_b32 v4, 1, v4")
    a("v_add_u32 v3, v3, v4")
    a("s_lshl_b32 s47, s59, 6")
    a("v_add_u32 v3, s47, v3")
    a("v_add_u32 v4, 64, v3")
    for f in range(2):
        for j in range(8):
            so = 45 if j < 4 else 46
            a(f"buffer_load_ushort v{40+8*f+j}, v{3+f}, s[{SA}:{SA+3}], s{so} offen offset:{(j&3)*1024}")
    nside += 16
    a(f"s_waitcnt vmcnt({13+nside})")
    a("s_barrier")
    a(f"s_waitcnt vmcnt({nside})")
    a("s_barrier")
    a("s_waitcnt vmcnt(16)")
    for r in range(2):
        acc = 36 + r
        a(f"v_mov_b32 v{acc}, 0")
        for i in range(4):
            xr = 28 + 4*r + i
            g = 24 + i
            a(f"v_lshlrev_b32 v5, 16, v{xr}")
            a(f"v_lshlrev_b32 v6, 16, v{g}")
            a(f"v_fmac_f32 v{acc}, v5, v6")
            a(f"v_and_b32 v5, 0xffff0000, v{xr}")
            a(f"v_and_b32 v6, 0xffff0000, v{g}")
            a(f"v_fmac_f32 v{acc}, v5, v6")
    for dpp in ["row_shr:1", "row_shr:2", "row_shr:4", "row_shr:8", "row_bcast:15 row_mask:0xa", "row_bcast:31 row_mask:0xc"]:
        a("s_nop 1")
        for r in range(2):
            a(f"v_add_f32_dpp v{36+r}, v{36+r}, v{36+r} {dpp}")
    a(f"v_mul_f32 v36, {f32bits(-LOG2E)}, v36")
    a(f"v_mul_f32 v37, {f32bits(-LOG2E)}, v37")
    a("v_exp_f32 v36, v36")
    a("v_exp_f32 v37, v37")
    a("s_nop 0")
    a("v_add_f32 v36, 1.0, v36")
    a("v_add_f32 v37, 1.0, v37")
    a("v_rcp_f32 v36, v36")
    a("v_rcp_f32 v37, v37")
    a("s_lshl_b32 s45, s57, 2")
    a(f"s_add_u32 s45, s45, {GA}")
    a("v_mov_b32 v5, 0")
    a("v_cmp_eq_u32 vcc, 63, v0")
    a("s_and_saveexec_b64 s[46:47], vcc")
    a(f"buffer_store_dwordx2 v[36:37], v5, s[{SWS}:{SWS+3}], s45 offen")
    a("s_mov_b64 exec, s[46:47]")
    a("s_cmp_ge_u32 s2, 236")
    a("s_cbranch_scc1 L_k1_end")
    a("s_waitcnt vmcnt(1)")
    for f in range(2):
        for i in range(4):
            a(f"v_lshl_or_b32 v{60+4*f+i}, v{40+8*f+2*i+1}, 16, v{40+8*f+2*i}")
    a("s_lshl_b32 s45, s58, 4")
    a("s_add_u32 s45, s45, s59")
    a("s_lshl_b32 s45, s45, 10")
    a(f"s_add_u32 s45, s45, {WTF}")
    a(f"buffer_store_dwordx4 v[60:63], v2, s[{SWS}:{SWS+3}], s45 offen")
    a(f"buffer_store_dwordx4 v[64:67], v2, s[{SWS}:{SWS+3}], s45 offen offset:1024")
    a("s_endpgm")

    a.label("L_k1_compute")
    R = Regs(8)
    xaddr = [R.alloc() for _ in range(4)]
    waddr = R.alloc()
    XF = [R.alloc(4) for _ in range(2)]
    WFR = [R.alloc(4) for _ in range(NU)]
    ACC = [R.alloc(16) for _ in range(NU)]
    TMP = R.alloc(16)
    s_stage, s_delta, s_sl = 48, 49, 50
    a("v_and_b32 v1, 31, v0")
    a("v_lshrrev_b32 v2, 5, v0")
    a("v_lshrrev_b32 v3, 1, v1")
    a("v_and_b32 v3, 7, v3")
    a("v_xor_b32 v3, v3, v2")
    a("v_lshlrev_b32 v3, 4, v3")
    a(f"s_lshl_b32 s45, s{s_wave}, 5")
    a("v_add_u32 v4, s45, v1")
    a("v_lshlrev_b32 v4, 7, v4")
    for kk in range(4):
        a(f"v_xor_b32 v5, {kk*32}, v3")
        a(f"v_add_u32 v{xaddr[kk]}, v4, v5")
    a("v_lshrrev_b32 v3, 4, v0")
    a("v_and_b32 v4, 1, v3")
    a(f"v_mul_u32_u24 v4, {K1_UB-K1_GB}, v4")
    a("v_lshlrev_b32 v5, 3, v2")
    a("v_bfe_u32 v6, v0, 2, 2")
    a("v_add_u32 v5, v5, v6")
    a("v_mul_u32_u24 v5, 288, v5")
    a("v_and_b32 v6, 3, v0")
    a("v_lshlrev_b32 v6, 3, v6")
    a("v_add3_u32 v4, v4, v5, v6")
    a(f"v_add_u32 v{waddr}, {K1_GB}, v4")
    for u in range(NU):
        for i in range(16):
            a(f"v_mov_b32 v{ACC[u]+i}, 0")
    a(f"s_mov_b32 s{s_stage}, 0")
    a(f"s_mov_b32 s{s_sl}, 0")
    a("s_waitcnt lgkmcnt(0)")
    srd(a, SWS, 24, 25, WS_BYTES)

    def rd_x(kk, buf):
        a(f"ds_read_b128 {v(XF[buf],4)}, v{xaddr[kk]}")
    def rd_w(kk, u):
        off = kk*16*288 + u*32
        a(f"ds_read_b64_tr_b16 {v(WFR[u],2)}, v{waddr} offset:{off}")
        a(f"ds_read_b64_tr_b16 {v(WFR[u]+2,2)}, v{waddr} offset:{off+4*288}")

    st.stamp(2)
    a("s_barrier")
    st.stamp(3)
    a("s_waitcnt lgkmcnt(0)")
    rd_x(0, 0)
    for u in range(NU):
        rd_w(0, u)
    a(f"s_cmp_eq_u32 s{s_cg}, 4")
    a("s_cbranch_scc1 L_k1_loopV")
    a(f"s_cmp_eq_u32 s{s_cg}, 5")
    a("s_cbranch_scc1 L_k1_loopV")

    def main_loop(tag, vtype):
        def mf(u, buf):
            A, B = (XF[buf], WFR[u]) if vtype else (WFR[u], XF[buf])
            a(f"v_mfma_f32_32x32x16_bf16 {v(ACC[u],16)}, {v(A,4)}, {v(B,4)}, {v(ACC[u],16)}")
        a(".p2align 6")
        a.label(f"L_k1_loop{tag}")
        for kk in range(3):
            buf = kk & 1
            for u in range(NU):
                younger = (NU-1-u)*2 + (0 if u == 0 else 1 + 2*u)
                a(f"s_waitcnt lgkmcnt({min(younger,15)})")
                mf(u, buf)
                if u == 0:
                    rd_x(kk+1, buf ^ 1)
                rd_w(kk+1, u)
        buf = 1
        NPRE = 3
        for u in range(NPRE):
            a(f"s_waitcnt lgkmcnt({min((NU-1-u)*2,15)})")
            mf(u, buf)
        a(f"s_add_u32 s{s_stage}, s{s_stage}, 1")
        a(f"s_add_u32 s{s_sl}, s{s_sl}, 1")
        a(f"s_cmp_eq_u32 s{s_sl}, 3")
        a(f"s_cselect_b32 s{s_sl}, 0, s{s_sl}")
        a(f"s_mov_b32 s45, {K1_SLOT}")
        a(f"s_mov_b32 s46, {(-2*K1_SLOT) & 0xffffffff}")
        a(f"s_cselect_b32 s{s_delta}, s46, s45")
        a("s_waitcnt lgkmcnt(0)")
        for r in xaddr + [waddr]:
            a(f"v_add_u32 v{r}, s{s_delta}, v{r}")
        a(f"s_cmp_eq_u32 s{s_stage}, 8")
        a(f"s_cbranch_scc1 L_k1_tail{tag}")
        a("s_barrier")
        rd_x(0, 0)
        for u in range(NPRE):
            rd_w(0, u)
        for u in range(NPRE, NU):
            mf(u, buf)
            rd_w(0, u)
        a(f"s_branch L_k1_loop{tag}")
        a.label(f"L_k1_tail{tag}")
        for u in range(NPRE, NU):
            mf(u, buf)
        st.stamp(4)

    main_loop("T", False)
    a(f"s_lshl_b32 s51, s{s_rb}, 2")
    a(f"s_add_u32 s51, s51, s{s_wave}")
    a("v_lshlrev_b32 v1, 4, v0")
    a(f"s_cmp_lt_u32 s{s_cg}, 4")
    a("s_cbranch_scc0 L_k1_epi_ffn")
    a(f"s_cmp_lt_u32 s{s_cg}, 2")
    a(f"s_mov_b32 s45, {f32bits(QSCALE)}")
    a("s_cselect_b32 s52, s45, 1.0")
    a(f"s_mov_b32 s53, s52")
    a(f"s_lshl_b32 s45, s{s_cg}, 20")
    a("s_lshl_b32 s46, s51, 10")
    a("s_add_u32 s45, s45, s46")
    a(f"s_add_u32 s46, s45, {8*65536}")
    for u in range(8):
        for half in range(2):
            t = TMP + 4*((2*u+half) & 3)
            src = ACC[u] + 8*half
            for i in range(4):
                a(f"v_pk_mul_f32 {v(src+2*i,2)}, {v(src+2*i,2)}, s[52:53]")
            for i in range(4):
                a(f"v_cvt_pk_bf16_f32 v{t+i}, v{src+2*i}, v{src+2*i+1}")
            a(f"buffer_store_dwordx4 {v(t,4)}, v1, s[{SWS}:{SWS+3}], s{45+half} offen")
        a("s_add_u32 s45, s45, 65536")
        a("s_add_u32 s46, s46, 65536")
    st.stamp(5); a("s_waitcnt vmcnt(0)") if INSTR else None; st.stamp(6); st.real(7); st.flush(SWS, s_wave)
    a("s_endpgm")
    a.label("L_k1_epi_ffn")
    a(f"s_sub_u32 s46, s{s_cg}, 6")
    a("s_mul_i32 s46, s46, 9")
    a("s_mul_i32 s45, s51, 86")
    a("s_add_u32 s45, s45, s46")
    a("s_lshl_b32 s45, s45, 10")
    a(f"s_add_u32 s45, s45, {HF}")
    a(f"s_mov_b32 s52, {f32bits(-LOG2E)}")
    a("s_mov_b32 s53, s52")
    a("s_mov_b32 s54, 1.0")
    a("s_mov_b32 s55, 1.0")
    for u in range(NU):
        if u == 5:
            a("s_cmp_eq_u32 s46, 81")
            a("s_cbranch_scc1 L_k1_end")
        if u == 8:
            a("s_nop 7")
        g = ACC[u]; up = ACC[u] + 8
        t = TMP + 4*(u & 3)
        for i in range(4):
            a(f"v_pk_mul_f32 {v(g+2*i,2)}, {v(g+2*i,2)}, s[52:53]")
        for i in range(8):
            a(f"v_exp_f32 v{g+i}, v{g+i}")
        for i in range(4):
            a(f"v_pk_add_f32 {v(g+2*i,2)}, {v(g+2*i,2)}, s[54:55]")
        for i in range(8):
            a(f"v_rcp_f32 v{g+i}, v{g+i}")
        for i in range(4):
            a(f"v_pk_mul_f32 {v(g+2*i,2)}, {v(g+2*i,2)}, {v(up+2*i,2)}")
        for i in range(4):
            a(f"v_cvt_pk_bf16_f32 v{t+i}, v{g+2*i}, v{g+2*i+1}")
        a(f"buffer_store_dwordx4 {v(t,4)}, v1, s[{SWS}:{SWS+3}], s45 offen offset:{(u&3)*1024}")
        if (u & 3) == 3:
            a("s_add_u32 s45, s45, 4096")
    st.stamp(5); a("s_waitcnt vmcnt(0)") if INSTR else None; st.stamp(6); st.real(7); st.flush(SWS, s_wave)
    a("s_endpgm")

    main_loop("V", True)
    a(f"s_lshl_b32 s51, s{s_rb}, 2")
    a(f"s_add_u32 s51, s51, s{s_wave}")
    a("v_and_b32 v1, 15, v0")
    a("v_lshlrev_b32 v1, 4, v1")
    a("v_lshrrev_b32 v2, 5, v0")
    a("v_lshlrev_b32 v2, 8, v2")
    a("v_bfe_u32 v3, v0, 4, 1")
    a("v_lshlrev_b32 v3, 19, v3")
    a("v_add3_u32 v1, v1, v2, v3")
    a(f"s_lshl_b32 s45, s{s_cg}, 20")
    a("s_lshl_b32 s46, s51, 10")
    a("s_add_u32 s45, s45, s46")
    for u in range(8):
        for half in range(2):
            t = TMP + 4*((2*u+half) & 3)
            src = ACC[u] + 8*half
            for i in range(4):
                a(f"v_cvt_pk_bf16_f32 v{t+i}, v{src+2*i}, v{src+2*i+1}")
            a(f"buffer_store_dwordx4 {v(t,4)}, v1, s[{SWS}:{SWS+3}], s45 offen offset:{half*512}")
        a("s_add_u32 s45, s45, 65536")
    a.label("L_k1_end")
    a("s_endpgm")
    return name, R.hi

K2_XCH = 131072
K2_CNT = 131072 + 16384
K2_LDS = K2_CNT + 64

def gen_k2(a):
    name = "k2_kernel"
    kernel_header(a, name)
    SWS = 8
    s_wave = 12
    a("s_cmp_ge_u32 s2, 256")
    a("s_cbranch_scc1 L_k2_end")
    st = Stamper(a, INSTR, 1)
    st.init(); st.real(0); st.stamp(1)
    a("s_load_dwordx2 s[4:5], s[0:1], 80")
    a("v_lshrrev_b32 v1, 6, v0")
    a("v_and_b32 v0, 63, v0")
    a("s_and_b32 s13, s2, 7")
    a(f"v_readfirstlane_b32 s{s_wave}, v1")
    a("s_lshr_b32 s14, s2, 3")
    a("v_lshlrev_b32 v1, 4, v0")
    a("s_waitcnt lgkmcnt(0)")
    srd(a, SWS, 4, 5, WS_BYTES)
    a(f"s_cmp_ge_u32 s{s_wave}, 8")
    a("s_cbranch_scc1 L_k2_down")
    s_head, s_T, s_t, s_pass = 16, 17, 18, 19
    R = Regs(4)
    kaddr = R.alloc(); vaddr = R.alloc()
    Q = R.alloc(4); KR = R.alloc(4); V0 = R.alloc(4); V1 = R.alloc(4)
    P = R.alloc(8); S = [R.alloc(16), R.alloc(16)]; O = R.alloc(16); C = R.alloc(16)
    a("s_lshl_b32 s15, s13, 2")
    a("s_and_b32 s20, s14, 3")
    a(f"s_add_u32 s{s_head}, s15, s20")
    a("s_lshr_b32 s20, s14, 2")
    a("s_lshl_b32 s20, s20, 3")
    a(f"s_add_u32 s{s_T}, s20, s{s_wave}")
    a(f"s_lshl_b32 s20, s{s_head}, 16")
    a(f"s_lshl_b32 s21, s{s_T}, 10")
    a("s_add_u32 s21, s21, s20")
    a(f"buffer_load_dwordx4 {v(Q,4)}, v1, s[{SWS}:{SWS+3}], s21 offen")
    a(f"s_lshl_b32 s22, s{s_wave}, 10")
    a("s_add_u32 s21, s20, s22")
    a(f"s_add_u32 s21, s21, {KF}")
    a(f"s_add_u32 s23, s21, {VF-KF}")
    for i in range(8):
        a(f"s_add_u32 m0, s22, {i*8192}")
        a("s_nop 0")
        a(f"buffer_load_dwordx4 v1, s[{SWS}:{SWS+3}], s21 offen lds")
        a(f"s_add_u32 m0, s22, {65536+i*8192}")
        a("s_add_u32 s21, s21, 8192")
        a(f"buffer_load_dwordx4 v1, s[{SWS}:{SWS+3}], s23 offen lds")
        a("s_add_u32 s23, s23, 8192")
    a("v_and_b32 v2, 31, v0")
    a("v_and_b32 v3, 27, v2")
    a("v_cmp_eq_u32 vcc, 16, v3")
    a("v_mov_b32 v3, 0x3f803f80")
    a("s_nop 0")
    for i in range(4):
        a(f"v_cndmask_b32 v{V0+i}, 0, v3, vcc")
        a(f"v_cndmask_b32 v{V1+i}, 0, v3, vcc")
    a("s_mov_b32 s24, 0x0000ffff")
    a("s_mov_b32 s25, 0x0000ffff")
    a(f"s_mov_b32 s{s_pass}, 0")
    a("s_waitcnt vmcnt(14)")
    st.stamp(2)
    a("s_barrier")
    st.stamp(3)
    a(f"ds_read_b128 {v(KR,4)}, v1")
    a("s_waitcnt lgkmcnt(0)")
    a(f"v_mfma_f32_32x32x16_bf16 {v(S[0],16)}, {v(KR,4)}, {v(Q,4)}, 0")
    a("s_nop 15")
    def maxtree(dst, src, first):
        if first:
            a(f"v_max3_f32 v{dst}, v{src}, v{src+1}, v{src+2}")
            rest = list(range(3, 16))
        else:
            rest = list(range(0, 16))
        while len(rest) >= 2:
            a(f"v_max3_f32 v{dst}, v{dst}, v{src+rest[0]}, v{src+rest[1]}")
            rest = rest[2:]
        if rest:
            a(f"v_max_f32 v{dst}, v{dst}, v{src+rest[0]}")
    maxtree(2, S[0], True)
    a.label("L_k2_setmax")
    a("v_mov_b32 v3, v2")
    a("s_nop 1")
    a("v_permlane32_swap_b32 v2, v3")
    a("s_nop 1")
    a("v_max_f32 v2, v2, v3")
    for i in range(16):
        a(f"v_sub_f32 v{C+i}, 0, v2")
    for i in range(16):
        a(f"v_mov_b32 v{O+i}, 0")
    for i in range(8):
        a(f"v_mov_b32 v{P+i}, 0")
    a(f"v_mov_b32 v{kaddr}, v1")
    a("v_and_b32 v2, 15, v0")
    a("v_lshlrev_b32 v2, 4, v2")
    a("v_lshrrev_b32 v3, 5, v0")
    a("v_lshlrev_b32 v3, 8, v3")
    a("v_add_u32 v2, v2, v3")
    a(f"v_add_u32 v{vaddr}, 65536, v2")
    for i in range(2):
        a(f"v_mov_b32 v{S[1]+14+i}, 0")
    a(f"ds_read_b128 {v(KR,4)}, v{kaddr}")
    a("s_mov_b64 exec, s[24:25]")
    a(f"ds_read_b128 {v(V1,4)}, v{vaddr} offset:512")
    a("s_mov_b64 exec, -1")
    a("s_waitcnt lgkmcnt(0)")
    a(f"v_mfma_f32_32x32x16_bf16 {v(S[0],16)}, {v(KR,4)}, {v(Q,4)}, {v(C,16)}")
    a(f"ds_read_b128 {v(KR,4)}, v{kaddr} offset:1024")
    a("s_mov_b64 exec, s[24:25]")
    a(f"ds_read_b128 {v(V0,4)}, v{vaddr}")
    a("s_mov_b64 exec, -1")
    a(f"s_mov_b32 s{s_t}, 0")
    a("s_nop 15")
    UNR = 4
    a(".p2align 6")
    a.label("L_k2_loop")
    def e(cur, i): a(f"v_exp_f32 v{cur+i}, v{cur+i}")
    def c(cur, i): a(f"v_cvt_pk_bf16_f32 v{P+i}, v{cur+2*i}, v{cur+2*i+1}")
    for tt in range(UNR):
        cur = S[tt & 1]; nxt = S[(tt+1) & 1]
        e(cur, 0)
        c(nxt, 7)
        e(cur, 1); e(cur, 2)
        a("s_waitcnt lgkmcnt(2)")
        a(f"v_mfma_f32_32x32x16_bf16 {v(O,16)}, {v(V1,4)}, {v(P+4,4)}, {v(O,16)}")
        a("s_mov_b64 exec, s[24:25]")
        a(f"ds_read_b128 {v(V1,4)}, v{vaddr} offset:{tt*1024+512}")
        a("s_mov_b64 exec, -1")
        c(cur, 0); e(cur, 3); e(cur, 4); c(cur, 1); e(cur, 5); e(cur, 6)
        a("s_waitcnt lgkmcnt(2)")
        a(f"v_mfma_f32_32x32x16_bf16 {v(nxt,16)}, {v(KR,4)}, {v(Q,4)}, {v(C,16)}")
        a(f"ds_read_b128 {v(KR,4)}, v{kaddr} offset:{(tt+2)*1024}")
        c(cur, 2); e(cur, 7); e(cur, 8); c(cur, 3); e(cur, 9); e(cur, 10)
        a("s_waitcnt lgkmcnt(2)")
        a(f"v_mfma_f32_32x32x16_bf16 {v(O,16)}, {v(V0,4)}, {v(P,4)}, {v(O,16)}")
        a("s_mov_b64 exec, s[24:25]")
        a(f"ds_read_b128 {v(V0,4)}, v{vaddr} offset:{(tt+1)*1024}")
        a("s_mov_b64 exec, -1")
        c(cur, 4); e(cur, 11); e(cur, 12); c(cur, 5); e(cur, 13); e(cur, 14); c(cur, 6); e(cur, 15)
    a(f"v_add_u32 v{kaddr}, {UNR*1024}, v{kaddr}")
    a(f"v_add_u32 v{vaddr}, {UNR*1024}, v{vaddr}")
    a(f"s_add_u32 s{s_t}, s{s_t}, {UNR}")
    a(f"s_cmp_eq_u32 s{s_t}, 4")
    a("s_cbranch_scc1 L_k2_b2")
    a(f"s_cmp_eq_u32 s{s_t}, 20")
    a("s_cbranch_scc1 L_k2_b3")
    a(f"s_cmp_lt_u32 s{s_t}, 64")
    a("s_cbranch_scc1 L_k2_loop")
    st.stamp(4)
    cur = S[(UNR-1) & 1]
    c(cur, 7)
    a("s_waitcnt lgkmcnt(0)")
    a("s_nop 0")
    a(f"v_mfma_f32_32x32x16_bf16 {v(O,16)}, {v(V1,4)}, {v(P+4,4)}, {v(O,16)}")
    a("s_nop 15")
    a(f"s_cmp_lg_u32 s{s_pass}, 0")
    a("s_cbranch_scc1 L_k2_fin")
    a(f"v_mov_b32 v2, {f32bits(2.0**30)}")
    a(f"v_cmp_nle_f32 vcc, v{O+8}, v2")
    a(f"v_mov_b32 v3, 0")
    for i in range(8):
        a(f"v_fma_f32 v3, v{O+i}, 0, v3")
    a(f"v_cmp_u_f32 s[26:27], v3, v3")
    a("s_nop 3")
    a("s_or_b64 vcc, vcc, s[26:27]")
    a("s_cbranch_vccnz L_k2_fallback")
    a.label("L_k2_fin")
    a(f"v_rcp_f32 v2, v{O+8}")
    a("s_nop 0")
    for i in range(8):
        a(f"v_mul_f32 v{O+i}, v2, v{O+i}")
    for i in range(4):
        a(f"v_cvt_pk_bf16_f32 v{P+i}, v{O+2*i}, v{O+2*i+1}")
    a(f"s_lshl_b32 s20, s{s_T}, 5")
    a(f"s_add_u32 s20, s20, s{s_head}")
    a("s_lshl_b32 s20, s20, 10")
    a(f"s_add_u32 s20, s20, {OF}")
    a(f"buffer_store_dwordx4 {v(P,4)}, v1, s[{SWS}:{SWS+3}], s20 offen")
    st.stamp(5); a("s_waitcnt vmcnt(0)") if INSTR else None; st.stamp(6); st.real(7); st.flush(SWS, s_wave)
    a("s_endpgm")
    a.label("L_k2_b2")
    a(f"s_cmp_lg_u32 s{s_pass}, 0")
    a("s_cbranch_scc1 L_k2_loop")
    a("s_waitcnt vmcnt(10)")
    a("s_barrier")
    a("s_branch L_k2_loop")
    a.label("L_k2_b3")
    a(f"s_cmp_lg_u32 s{s_pass}, 0")
    a("s_cbranch_scc1 L_k2_loop")
    a("s_waitcnt vmcnt(0)")
    a("s_barrier")
    a("s_branch L_k2_loop")
    a.label("L_k2_fallback")
    a(f"s_mov_b32 s{s_pass}, 1")
    a(f"v_mov_b32 v{kaddr}, v1")
    a("v_mov_b32 v2, 0xff800000")
    a(f"s_mov_b32 s{s_t}, 0")
    a.label("L_k2_fb_loop")
    a(f"ds_read_b128 {v(KR,4)}, v{kaddr}")
    a(f"v_add_u32 v{kaddr}, 1024, v{kaddr}")
    a("s_waitcnt lgkmcnt(0)")
    a(f"v_mfma_f32_32x32x16_bf16 {v(S[0],16)}, {v(KR,4)}, {v(Q,4)}, 0")
    a("s_nop 15")
    maxtree(2, S[0], False)
    a(f"s_add_u32 s{s_t}, s{s_t}, 1")
    a(f"s_cmp_lt_u32 s{s_t}, 64")
    a("s_cbranch_scc1 L_k2_fb_loop")
    a("s_branch L_k2_setmax")
    att_hi = R.hi
    att_fix = (S[1], )

    a.label("L_k2_down")
    D = 6
    R = Regs(4)
    FR = [[R.alloc(4) for _ in range(3)] for _ in range(D)]
    ACC = [R.alloc(16), R.alloc(16)]
    s_h, s_w0, s_w1, s_T, s_nt, s_i = 16, 17, 18, 19, 20, 21
    a(f"s_sub_u32 s22, s{s_wave}, 8")
    a("s_and_b32 s23, s22, 1")
    a("s_lshr_b32 s24, s22, 1")
    a("s_lshl_b32 s15, s13, 2")
    a("s_and_b32 s25, s14, 3")
    a("s_add_u32 s15, s15, s25")
    a("s_lshl_b32 s15, s15, 1")
    a(f"s_add_u32 s{s_T}, s15, s23")
    a("s_lshr_b32 s25, s14, 2")
    a("s_lshl_b32 s25, s25, 1")
    a(f"s_add_u32 s{s_nt}, s25, s24")
    a(f"s_mul_i32 s{s_h}, s{s_T}, 86")
    a(f"s_add_u32 s{s_h}, s{s_h}, s24")
    a(f"s_lshl_b32 s{s_h}, s{s_h}, 10")
    a(f"s_add_u32 s{s_h}, s{s_h}, {HF}")
    a("s_lshl_b32 s26, s24, 4")
    a(f"s_add_u32 s{s_w0}, s26, s{s_nt}")
    a(f"s_xor_b32 s{s_w1}, s{s_w0}, 1")
    a(f"s_lshl_b32 s{s_w0}, s{s_w0}, 10")
    a(f"s_lshl_b32 s{s_w1}, s{s_w1}, 10")
    a(f"s_add_u32 s{s_w0}, s{s_w0}, {WTF}")
    a(f"s_add_u32 s{s_w1}, s{s_w1}, {WTF}")
    def ld(slot):
        a(f"buffer_load_dwordx4 {v(FR[slot][0],4)}, v1, s[{SWS}:{SWS+3}], s{s_h} offen")
        a(f"buffer_load_dwordx4 {v(FR[slot][1],4)}, v1, s[{SWS}:{SWS+3}], s{s_w0} offen")
        a(f"buffer_load_dwordx4 {v(FR[slot][2],4)}, v1, s[{SWS}:{SWS+3}], s{s_w1} offen")
        a(f"s_add_u32 s{s_h}, s{s_h}, 2048")
        a(f"s_add_u32 s{s_w0}, s{s_w0}, 32768")
        a(f"s_add_u32 s{s_w1}, s{s_w1}, 32768")
    def mm(slot):
        for n in range(2):
            a(f"v_mfma_f32_32x32x16_bf16 {v(ACC[n],16)}, {v(FR[slot][1+n],4)}, {v(FR[slot][0],4)}, {v(ACC[n],16)}")
    for n in range(2):
        for i in range(16):
            a(f"v_mov_b32 v{ACC[n]+i}, 0")
    a(f"v_mov_b32 v2, {K2_CNT}")
    a("v_mov_b32 v3, 0")
    a("ds_write_b32 v2, v3")
    a("s_waitcnt lgkmcnt(0)")
    a("s_barrier")
    a("s_barrier")
    a("s_barrier")
    st.stamp(3)
    for d in range(D):
        ld(d)
    NST = 43
    nloop = (NST - D) // D
    rem = NST - D - nloop*D
    a(f"s_mov_b32 s{s_i}, {nloop}")
    a.label("L_k2_dloop")
    for d in range(D):
        a(f"s_waitcnt vmcnt({3*(D-1)})")
        mm(d)
        a("s_nop 1")
        ld(d)
    a(f"s_sub_u32 s{s_i}, s{s_i}, 1")
    a(f"s_cmp_lg_u32 s{s_i}, 0")
    a("s_cbranch_scc1 L_k2_dloop")
    outstanding = D
    for r in range(D + rem):
        d = r % D
        a(f"s_waitcnt vmcnt({3*(outstanding-1)})")
        mm(d)
        outstanding -= 1
        if r < rem:
            a("s_nop 1")
            ld(d)
            outstanding += 1
    a("s_nop 15")
    st.stamp(4)
    a("s_lshl_b32 s26, s22, 12")
    a(f"s_add_u32 s26, s26, {K2_XCH}")
    a("v_add_u32 v3, s26, v1")
    for i in range(4):
        a(f"ds_write_b128 v3, {v(ACC[1]+4*i,4)} offset:{i*1024}")
    a("s_waitcnt lgkmcnt(0)")
    a("v_mov_b32 v4, 1")
    a("v_cmp_eq_u32 vcc, 0, v0")
    a("s_and_saveexec_b64 s[26:27], vcc")
    a("ds_add_u32 v2, v4")
    a("s_mov_b64 exec, s[26:27]")
    a.label("L_k2_spin")
    a("s_sleep 1")
    a("ds_read_b32 v4, v2")
    a("s_waitcnt lgkmcnt(0)")
    a("v_readfirstlane_b32 s26, v4")
    a("s_cmp_lt_u32 s26, 4")
    a("s_cbranch_scc1 L_k2_spin")
    a("v_xor_b32 v3, 8192, v3")
    for i in range(4):
        a(f"ds_read_b128 {v(ACC[1]+4*i,4)}, v3 offset:{i*1024}")
    a("s_waitcnt lgkmcnt(0)")
    for i in range(16):
        a(f"v_add_f32 v{ACC[0]+i}, v{ACC[0]+i}, v{ACC[1]+i}")
    for i in range(8):
        a(f"v_cvt_pk_bf16_f32 v{ACC[1]+i}, v{ACC[0]+2*i}, v{ACC[0]+2*i+1}")
    a(f"s_lshl_b32 s26, s{s_T}, 4")
    a(f"s_add_u32 s26, s26, s{s_nt}")
    a("s_lshl_b32 s26, s26, 11")
    a(f"s_add_u32 s26, s26, {BF}")
    a(f"buffer_store_dwordx4 {v(ACC[1],4)}, v1, s[{SWS}:{SWS+3}], s26 offen")
    a(f"buffer_store_dwordx4 {v(ACC[1]+4,4)}, v1, s[{SWS}:{SWS+3}], s26 offen offset:1024")
    st.stamp(5); a("s_waitcnt vmcnt(0)") if INSTR else None; st.stamp(6); st.real(7); st.flush(SWS, s_wave)
    a.label("L_k2_end")
    a("s_endpgm")
    return name, max(att_hi, R.hi), S[1]

K3_LDS = 4*3*4096

def gen_k3(a):
    name = "k3_kernel"
    kernel_header(a, name)
    SWS, SO = 8, 12
    s_wave = 16
    a("s_cmp_ge_u32 s2, 256")
    a("s_cbranch_scc1 L_k3_end")
    st = Stamper(a, INSTR, 2)
    st.init(); st.real(0); st.stamp(1)
    a("s_load_dwordx2 s[4:5], s[0:1], 80")
    a("s_load_dwordx2 s[6:7], s[0:1], 64")
    a("v_lshrrev_b32 v1, 6, v0")
    a("v_and_b32 v0, 63, v0")
    a("s_and_b32 s17, s2, 7")
    a(f"v_readfirstlane_b32 s{s_wave}, v1")
    a("s_lshr_b32 s18, s2, 3")
    a("v_lshlrev_b32 v1, 4, v0")
    R = Regs(4)
    G = R.alloc()
    Bv = R.alloc(8)
    FO = [[R.alloc(4) for _ in range(2)] for _ in range(8)]
    FW = [[R.alloc(4) for _ in range(2)] for _ in range(8)]
    ACC = [R.alloc(16) for _ in range(4)]
    s_T, s_nt = 19, 20
    a("s_lshl_b32 s21, s17, 2")
    a("s_and_b32 s22, s18, 3")
    a("s_add_u32 s21, s21, s22")
    a("s_lshl_b32 s21, s21, 1")
    a(f"s_and_b32 s22, s{s_wave}, 1")
    a(f"s_add_u32 s{s_T}, s21, s22")
    a("s_lshr_b32 s21, s18, 2")
    a("s_lshl_b32 s21, s21, 1")
    a(f"s_lshr_b32 s22, s{s_wave}, 1")
    a(f"s_add_u32 s{s_nt}, s21, s22")
    a(f"s_lshl_b32 s21, s{s_T}, 15")
    a(f"s_lshl_b32 s22, s{s_wave}, 13")
    a("s_add_u32 s21, s21, s22")
    a(f"s_add_u32 s24, s21, {OF}")
    a("s_xor_b32 s25, s24, 32768")
    a(f"s_lshl_b32 s21, s{s_wave}, 17")
    a(f"s_lshl_b32 s22, s{s_nt}, 10")
    a("s_add_u32 s21, s21, s22")
    a(f"s_add_u32 s26, s21, {WTF + 86*16*1024}")
    a("s_xor_b32 s27, s26, 1024")
    a("s_waitcnt lgkmcnt(0)")
    srd(a, SWS, 4, 5, WS_BYTES)
    for i in range(8):
        a(f"buffer_load_dwordx4 {v(FO[i][0],4)}, v1, s[{SWS}:{SWS+3}], s24 offen offset:{(i&3)*1024}")
        a(f"buffer_load_dwordx4 {v(FW[i][0],4)}, v1, s[{SWS}:{SWS+3}], s26 offen")
        a(f"buffer_load_dwordx4 {v(FO[i][1],4)}, v1, s[{SWS}:{SWS+3}], s25 offen offset:{(i&3)*1024}")
        a(f"buffer_load_dwordx4 {v(FW[i][1],4)}, v1, s[{SWS}:{SWS+3}], s27 offen")
        a("s_add_u32 s26, s26, 16384")
        a("s_add_u32 s27, s27, 16384")
        if i == 3:
            a("s_add_u32 s24, s24, 4096")
            a("s_add_u32 s25, s25, 4096")
    a(f"s_lshl_b32 s21, s{s_T}, 4")
    a(f"s_add_u32 s21, s21, s{s_nt}")
    a("s_lshl_b32 s21, s21, 11")
    a(f"s_add_u32 s21, s21, {BF}")
    a(f"buffer_load_dwordx4 {v(Bv,4)}, v1, s[{SWS}:{SWS+3}], s21 offen")
    a(f"buffer_load_dwordx4 {v(Bv+4,4)}, v1, s[{SWS}:{SWS+3}], s21 offen offset:1024")
    a("v_and_b32 v2, 31, v0")
    a("v_lshlrev_b32 v3, 2, v2")
    a(f"s_lshl_b32 s21, s{s_T}, 7")
    a(f"s_add_u32 s21, s21, {GA}")
    a(f"buffer_load_dword v{G}, v3, s[{SWS}:{SWS+3}], s21 offen")
    srd(a, SO, 6, 7, 2048*1024)
    st.stamp(2)
    for i in range(8):
        if i == 1: st.stamp(3)
        a(f"s_waitcnt vmcnt({3 + 4*(7-i) + 2})")
        cc = "0" if i == 0 else None
        def mm(q, o, w):
            c = "0" if i == 0 else v(ACC[q],16)
            a(f"v_mfma_f32_32x32x16_bf16 {v(ACC[q],16)}, {v(FW[i][w],4)}, {v(FO[i][o],4)}, {c}")
        mm(0, 0, 0)
        a(f"s_waitcnt vmcnt({3 + 4*(7-i) + 1})")
        mm(1, 1, 0)
        a(f"s_waitcnt vmcnt({3 + 4*(7-i)})")
        mm(2, 0, 1)
        mm(3, 1, 1)
    st.stamp(4)
    a("s_nop 7")
    for q in range(1, 4):
        a(f"s_xor_b32 s21, s{s_wave}, {q}")
        a("s_mul_i32 s21, s21, 12288")
        a(f"s_add_u32 s21, s21, {(q-1)*4096}")
        a("v_add_u32 v3, s21, v1")
        if q == 3:
            a("s_nop 7")
        for i in range(4):
            a(f"ds_write_b128 v3, {v(ACC[q]+4*i,4)} offset:{i*1024}")
    a(f"s_mul_i32 s21, s{s_wave}, 12288")
    a("v_add_u32 v3, s21, v1")
    a("s_waitcnt lgkmcnt(0)")
    a("s_barrier")
    for q in range(1, 4):
        for i in range(4):
            a(f"ds_read_b128 {v(ACC[q]+4*i,4)}, v3 offset:{(q-1)*4096+i*1024}")
    a("v_lshlrev_b32 v2, 10, v2")
    a("v_lshrrev_b32 v3, 5, v0")
    a("v_lshlrev_b32 v3, 4, v3")
    a("v_add_u32 v2, v2, v3")
    a(f"s_lshl_b32 s21, s{s_T}, 15")
    a(f"s_lshl_b32 s22, s{s_nt}, 6")
    a("s_add_u32 s21, s21, s22")
    for q in range(1, 4):
        a(f"s_waitcnt lgkmcnt({4*(3-q)})")
        for i in range(16):
            a(f"v_add_f32 v{ACC[0]+i}, v{ACC[0]+i}, v{ACC[q]+i}")
    a("s_waitcnt vmcnt(0)")
    T1 = ACC[1]
    for i in range(8):
        a(f"v_lshlrev_b32 v{T1+2*i}, 16, v{Bv+i}")
        a(f"v_and_b32 v{T1+2*i+1}, 0xffff0000, v{Bv+i}")
    a(f"v_sub_f32 v3, 1.0, v{G}")
    for i in range(16):
        a(f"v_mul_f32 v{T1+i}, v3, v{T1+i}")
    for i in range(16):
        a(f"v_fmac_f32 v{T1+i}, v{G}, v{ACC[0]+i}")
    T2 = ACC[2]
    for i in range(8):
        a(f"v_cvt_pk_bf16_f32 v{T2+i}, v{T1+2*i}, v{T1+2*i+1}")
    a("s_nop 1")
    for p in range(2):
        b = T2 + 4*p
        a(f"v_permlane32_swap_b32 v{b}, v{b+2}")
        a(f"v_permlane32_swap_b32 v{b+1}, v{b+3}")
    a("s_nop 1")
    a(f"buffer_store_dwordx4 {v(T2,4)}, v2, s[{SO}:{SO+3}], s21 offen")
    a(f"buffer_store_dwordx4 {v(T2+4,4)}, v2, s[{SO}:{SO+3}], s21 offen offset:32")
    st.stamp(5); a("s_waitcnt vmcnt(0)") if INSTR else None; st.stamp(6); st.real(7); st.flush(SWS, s_wave)
    a.label("L_k3_end")
    a("s_endpgm")
    return name, R.hi

def main(path):
    a = Asm()
    hdr = []
    a('.amdgcn_target "amdgcn-amd-amdhsa--gfx950"')
    a(".text")
    n1, v1 = gen_k1(a)
    n2, v2, _ = gen_k2(a)
    n3, v3 = gen_k3(a)
    a('.section .rodata,"a"')
    txt = a.text() + kernel_desc(n1, v1) + kernel_desc(n2, v2) + kernel_desc(n3, v3)
    hdr = f"""; generated by gen/gen1.py
; @launch kernel=k1_kernel grid=(256,1,1) block=(512,1,1) lds={K1_LDS}
; @launch kernel=k2_kernel grid=(256,1,1) block=(768,1,1) lds={K2_LDS}
; @launch kernel=k3_kernel grid=(256,1,1) block=(256,1,1) lds={K3_LDS}
"""
    open(path, "w").write(hdr + txt)
    print("vgprs", v1, v2, v3)

if __name__ == "__main__":
    main(sys.argv[1] if len(sys.argv) > 1 and not sys.argv[1].startswith('--') else "gated_mix__mha_block__glu_gated_glu__prompt.s")
```

```python
import math, sys
from asmlib import *

MB = 1 << 20
QF, KF, VF, OF, HF, GA, BF, FLG = 0, 2*MB, 4*MB, 6*MB, 8*MB, 14*MB, 15*MB, 17*MB
FQ = FLG
FH = FLG + 0x4000
FO = FLG + 0x8000
W0 = FLG + 0x10000
WS_BYTES = 32*MB
LOG2E = 1.4426950408889634
QSCALE = 0.25 * LOG2E
LDS_TOTAL = 163840

RING = 0
XST = 65536
WST = 98304
WIMG = 12288 + 32
WSLOT = 24832
MISC = LDS_TOTAL - 256
L_NONCE = MISC
L_ATT = MISC + 4
L_FB = MISC + 8
L_GO = MISC + 12
L_PAIR = MISC + 16

S_WAVE, S_NONCE = 26, 27
SWS, SA, SB, SC = 28, 32, 36, 40
S_XCD, S_LOC = 3, 69

class Opt:
    instr = False
    fuse_head = False
    fuse_tail = False
    fprio = 1
    fpace = 0
    no_ffn = False
    fsleep = 1

def srd(a, d, lo, hi, nbytes):
    a(f"s_mov_b32 s{d}, s{lo}")
    a(f"s_and_b32 s{d+1}, s{hi}, 0xffff")
    a(f"s_mov_b32 s{d+2}, {nbytes}")
    a(f"s_mov_b32 s{d+3}, 0x20000")

def srd_off(a, d, lo, hi, s_off, total):
    a(f"s_add_u32 s{d}, s{lo}, s{s_off}")
    a(f"s_addc_u32 s{d+1}, s{hi}, 0")
    a(f"s_and_b32 s{d+1}, s{d+1}, 0xffff")
    a(f"s_sub_u32 s{d+2}, {total}, s{s_off}")
    a(f"s_mov_b32 s{d+3}, 0x20000")

MF = "v_mfma_f32_32x32x16_bf16"

def prologue(a, name, st):
    kernel_header(a, name)
    a("s_cmp_ge_u32 s2, 256")
    a(f"s_cbranch_scc0 L_{name}_go")
    a("s_endpgm")
    a.label(f"L_{name}_go")
    st.init(); st.real(0); st.stamp(1)
    a("s_load_dwordx16 s[4:19], s[0:1], 0")
    a("s_load_dwordx4 s[20:23], s[0:1], 64")
    a("s_load_dwordx2 s[24:25], s[0:1], 80")
    a("v_lshrrev_b32 v1, 6, v0")
    a("v_and_b32 v0, 63, v0")
    a(f"s_and_b32 s{S_XCD}, s2, 7")
    a(f"v_readfirstlane_b32 s{S_WAVE}, v1")
    a(f"s_lshr_b32 s{S_LOC}, s2, 3")
    a("v_lshlrev_b32 v1, 4, v0")

def finish(a, st):
    st.stamp(5)
    if st.en: a("s_waitcnt vmcnt(0)")
    st.stamp(6); st.real(7); st.flush(SWS, S_WAVE)
    a("s_endpgm")

def make_nonce(a, tag, vt):
    a("s_cmp_eq_u32 s2, 0")
    a(f"s_cbranch_scc0 L_{tag}_mk")
    srd(a, SC, 22, 23, 256)
    a(f"s_mov_b32 s44, {W0}")
    a("s_mov_b64 exec, 1")
    a(f"buffer_load_dword v{vt}, off, s[{SWS}:{SWS+3}], s44 sc1")
    a("s_mov_b32 s45, 0x19660d")
    a("s_waitcnt vmcnt(0)")
    a(f"v_mul_lo_u32 v{vt}, v{vt}, s45")
    a(f"v_add_u32 v{vt}, 0x3c6ef35f, v{vt}")
    a(f"v_max_u32 v{vt}, 1, v{vt}")
    a(f"buffer_store_dword v{vt}, off, s[{SC}:{SC+3}], 0 sc1")
    a(f"buffer_store_dword v{vt}, off, s[{SWS}:{SWS+3}], s44 sc1")
    a("s_mov_b64 exec, -1")
    a.label(f"L_{tag}_mk")

def get_nonce(a, tag, vt):
    srd(a, SC, 22, 23, 256)
    a("s_mov_b32 s68, 0")
    a.label(f"L_{tag}_np")
    a(f"buffer_load_dword v{vt}, off, s[{SC}:{SC+3}], 0 sc1")
    a("s_add_u32 s68, s68, 1")
    a("s_waitcnt vmcnt(0)")
    a(f"v_cmp_eq_u32 vcc, 0, v{vt}")
    a("s_cmp_gt_u32 s68, 200000")
    a(f"s_cbranch_scc1 L_{tag}_ng")
    a(f"s_cbranch_vccz L_{tag}_ng")
    a("s_sleep 8")
    a(f"s_branch L_{tag}_np")
    a.label(f"L_{tag}_ng")

def init_misc(a, vt):
    a(f"v_mov_b32 v{vt+1}, 0")
    a(f"v_readfirstlane_b32 s44, v{vt}")
    a(f"v_lshlrev_b32 v{vt+2}, 2, v0")
    a(f"v_add_u32 v{vt+2}, {MISC}, v{vt+2}")
    a(f"v_writelane_b32 v{vt+1}, s44, 0")
    a(f"ds_write_b32 v{vt+2}, v{vt+1}")
    a("s_waitcnt lgkmcnt(0)")

def read_nonce(a, vt):
    a(f"v_mov_b32 v{vt}, {L_NONCE}")
    a(f"ds_read_b32 v{vt}, v{vt}")
    a("s_waitcnt lgkmcnt(0)")
    a(f"v_readfirstlane_b32 s{S_NONCE}, v{vt}")

def post_flag(a, s_off, vt):
    a(f"v_mov_b32 v{vt}, s{S_NONCE}")
    a("s_waitcnt vmcnt(0)")
    a("s_mov_b64 exec, 1")
    a(f"buffer_store_dword v{vt}, off, s[{SWS}:{SWS+3}], s{s_off} sc1")
    a("s_mov_b64 exec, -1")

def poll_flags(a, tag, s_off, vt, sleep=4):
    a("s_mov_b32 s68, 0")
    a.label(f"L_{tag}_poll")
    a(f"buffer_load_dword v{vt}, v1, s[{SWS}:{SWS+3}], s{s_off} offen sc1")
    a("s_add_u32 s68, s68, 1")
    a("s_waitcnt vmcnt(0)")
    a(f"v_cmp_ne_u32 vcc, s{S_NONCE}, v{vt}")
    a("s_cmp_gt_u32 s68, 200000")
    a(f"s_cbranch_scc1 L_{tag}_got")
    a(f"s_cbranch_vccz L_{tag}_got")
    a(f"s_sleep {sleep}")
    a(f"s_branch L_{tag}_poll")
    a.label(f"L_{tag}_got")

def lds_wait_ge(a, tag, vaddr, off, s_target, vt, sleep=1):
    a("s_mov_b32 s68, 0")
    a.label(f"L_{tag}_spin")
    a(f"ds_read_b32 v{vt}, v{vaddr} offset:{off}")
    a("s_add_u32 s68, s68, 1")
    a("s_waitcnt lgkmcnt(0)")
    a(f"v_cmp_gt_u32 vcc, {s_target}, v{vt}")
    a("s_cmp_gt_u32 s68, 2000000")
    a(f"s_cbranch_scc1 L_{tag}_ok")
    a(f"s_cbranch_vccz L_{tag}_ok")
    a(f"s_sleep {sleep}")
    a(f"s_branch L_{tag}_spin")
    a.label(f"L_{tag}_ok")

def lds_arrive(a, vaddr, off, vone):
    a("s_mov_b64 exec, 1")
    a(f"ds_add_u32 v{vaddr}, v{vone} offset:{off}")
    a("s_mov_b64 exec, -1")

A_SLOT = 32768
def phaseA_ids(a, s_tb, s_hg):
    a(f"s_and_b32 s44, s{S_XCD}, 3")
    a("s_lshl_b32 s44, s44, 3")
    a(f"s_and_b32 s45, s{S_LOC}, 7")
    a(f"s_add_u32 s{s_tb}, s44, s45")
    a(f"s_lshr_b32 s44, s{S_XCD}, 2")
    a("s_lshl_b32 s44, s44, 2")
    a(f"s_lshr_b32 s45, s{S_LOC}, 3")
    a(f"s_add_u32 s{s_hg}, s44, s45")

def phaseA_loader(a, o, st):
    s_tb, s_hg, s_xoff, s_woff, s_slot, s_cnt, s_lx, s_lw = 48, 49, 50, 51, 52, 53, 54, 55
    phaseA_ids(a, s_tb, s_hg)
    a("v_lshrrev_b32 v2, 3, v0")
    a("v_and_b32 v3, 7, v0")
    a("v_lshrrev_b32 v4, 1, v2")
    a(f"s_and_b32 s44, s{S_WAVE}, 1")
    a("s_lshl_b32 s44, s44, 2")
    a("v_or_b32 v4, s44, v4")
    a("v_xor_b32 v3, v3, v4")
    a("v_lshlrev_b32 v3, 4, v3")
    a(f"s_lshl_b32 s44, s{s_tb}, 6")
    a(f"s_lshl_b32 s45, s{S_WAVE}, 3")
    a("s_add_u32 s44, s44, s45")
    a("v_add_u32 v2, s44, v2")
    a("v_lshl_add_u32 v10, v2, 10, v3")
    a("s_movk_i32 s46, 2731")
    a("s_movk_i32 s47, 3072")
    a(f"s_lshl_b32 s44, s{s_hg}, 7")
    for j in range(3):
        a(f"v_add_u32 v2, {64*j}, v0")
        a("v_mul_u32_u24 v3, s46, v2")
        a("v_lshrrev_b32 v3, 16, v3")
        a("v_mul_u32_u24 v4, 24, v3")
        a("v_sub_u32 v4, v2, v4")
        a("v_lshrrev_b32 v5, 3, v4")
        a("v_and_b32 v4, 7, v4")
        a("v_lshlrev_b32 v6, 1, v3")
        a("v_and_b32 v6, 4, v6")
        a("v_xor_b32 v4, v4, v6")
        a("v_lshlrev_b32 v4, 4, v4")
        a("v_lshl_add_u32 v4, v5, 10, v4")
        a("v_add_u32 v3, s45, v3")
        a("v_mad_u32_u24 v4, v3, s47, v4")
        a(f"v_add_u32 v{11+j}, s44, v4")
    a(f"s_lshl_b32 s{s_lx}, s{S_WAVE}, 10")
    a(f"s_mul_i32 s{s_lw}, s{S_WAVE}, 3072")
    a(f"s_add_u32 s{s_lw}, s{s_lw}, 8192")
    a(f"s_mov_b32 s{s_xoff}, 0")
    a(f"s_mov_b32 s{s_woff}, 0")
    a(f"s_mov_b32 s{s_slot}, 0")
    a(f"s_mov_b32 s{s_cnt}, 0")
    a("s_waitcnt lgkmcnt(0)")
    srd(a, SA, 4, 5, 2048*1024)
    srd(a, SB, 6, 7, 512*3072)
    def issue():
        a(f"s_add_u32 m0, s{s_slot}, s{s_lx}")
        a(f"s_add_u32 s44, s{s_slot}, s{s_lw}")
        a(f"buffer_load_dwordx4 v10, s[{SA}:{SA+3}], s{s_xoff} offen lds")
        for j in range(3):
            a(f"s_add_u32 m0, s44, {1024*j}")
            if j == 0: a(f"s_add_u32 s{s_xoff}, s{s_xoff}, 128")
            else: a("s_nop 0")
            a(f"buffer_load_dwordx4 v{11+j}, s[{SB}:{SB+3}], s{s_woff} offen lds")
        a(f"s_add_u32 s{s_woff}, s{s_woff}, {64*3072}")
        a(f"s_add_u32 s{s_slot}, s{s_slot}, {A_SLOT}")
    a.label("L_A_ld0")
    issue()
    a(f"s_add_u32 s{s_cnt}, s{s_cnt}, 1")
    a(f"s_cmp_lt_u32 s{s_cnt}, 5")
    a("s_cbranch_scc1 L_A_ld0")
    srd(a, SWS, 24, 25, WS_BYTES)
    a(f"s_mov_b32 s{s_slot}, 0")
    a("s_waitcnt vmcnt(16)")
    st.stamp(2)
    a("s_barrier")
    a.label("L_A_ld1")
    a("s_waitcnt vmcnt(12)")
    a("s_barrier")
    issue()
    a(f"s_add_u32 s{s_cnt}, s{s_cnt}, 1")
    a(f"s_cmp_lt_u32 s{s_cnt}, 8")
    a("s_cbranch_scc1 L_A_ld1")
    a("s_waitcnt vmcnt(12)")
    a("s_barrier")
    a("s_waitcnt vmcnt(8)")
    a("s_barrier")
    a("s_waitcnt vmcnt(4)")
    a("s_barrier")
    a("s_waitcnt vmcnt(0)")
    a("s_barrier")

def phaseA_compute(a, o, st):
    s_tb, s_hg, s_stage, s_delta = 48, 49, 50, 51
    phaseA_ids(a, s_tb, s_hg)
    R = Regs(8)
    xaddr = [R.alloc() for _ in range(4)]
    waddr = R.alloc()
    XF = [R.alloc(4) for _ in range(2)]
    WF = [[R.alloc(4) for _ in range(3)] for _ in range(2)]
    ACC = [R.alloc(16) for _ in range(3)]
    TMP = R.alloc(24)
    a("v_and_b32 v2, 31, v0")
    a("v_lshrrev_b32 v3, 5, v0")
    a("v_bfe_u32 v4, v2, 1, 3")
    a("v_xor_b32 v4, v4, v3")
    a("v_lshlrev_b32 v4, 4, v4")
    a(f"s_and_b32 s44, s{S_WAVE}, 1")
    a("s_lshl_b32 s45, s44, 5")
    a("v_add_u32 v2, s45, v2")
    a("v_lshlrev_b32 v2, 7, v2")
    for kk in range(4):
        a(f"v_xor_b32 v5, {kk*32}, v4")
        a(f"v_add_u32 v{xaddr[kk]}, v2, v5")
    a("v_bfe_u32 v4, v0, 2, 2")
    a("v_lshl_add_u32 v5, v3, 3, v4")
    a("v_mul_u32_u24 v5, 384, v5")
    a("v_bfe_u32 v6, v0, 4, 1")
    a("v_lshlrev_b32 v6, 5, v6")
    a("v_and_b32 v7, 3, v0")
    a("v_lshl_add_u32 v6, v7, 3, v6")
    a(f"s_bfe_u32 s46, s{S_WAVE}, 0x10001")
    a("s_lshl_b32 s47, s46, 6")
    a("v_add_u32 v6, s47, v6")
    a("v_lshlrev_b32 v4, 5, v4")
    a("v_and_b32 v4, 64, v4")
    a("v_xor_b32 v6, v6, v4")
    a("v_add_u32 v5, v5, v6")
    a(f"v_add_u32 v{waddr}, 8192, v5")
    for u in range(3):
        for i in range(16):
            a(f"v_mov_b32 v{ACC[u]+i}, 0")
    a(f"s_lshl_b32 s52, s{s_tb}, 1")
    a("s_add_u32 s52, s52, s44")
    a(f"s_lshl_b32 s53, s{s_hg}, 1")
    a("s_add_u32 s53, s53, s46")
    a(f"s_mov_b32 s{s_stage}, 0")
    a("s_waitcnt lgkmcnt(0)")
    srd(a, SWS, 24, 25, WS_BYTES)
    if o.fuse_head:
        a(f"s_cmp_eq_u32 s{S_WAVE}, 8")
        a("s_cbranch_scc0 L_A_nn")
        make_nonce(a, "A", TMP)
        a.label("L_A_nn")
    def rd(kk, buf):
        a(f"ds_read_b128 {v(XF[buf],4)}, v{xaddr[kk]}")
        for p in range(3):
            off = kk*16*384 + p*128
            a(f"ds_read_b64_tr_b16 {v(WF[buf][p],2)}, v{waddr} offset:{off}")
            a(f"ds_read_b64_tr_b16 {v(WF[buf][p]+2,2)}, v{waddr} offset:{off+4*384}")
    def mm(buf):
        a(f"{MF} {v(ACC[0],16)}, {v(WF[buf][0],4)}, {v(XF[buf],4)}, {v(ACC[0],16)}")
        a(f"{MF} {v(ACC[1],16)}, {v(WF[buf][1],4)}, {v(XF[buf],4)}, {v(ACC[1],16)}")
        a(f"{MF} {v(ACC[2],16)}, {v(XF[buf],4)}, {v(WF[buf][2],4)}, {v(ACC[2],16)}")
    st.stamp(2)
    a("s_barrier")
    st.stamp(3)
    if st.en: a("s_waitcnt lgkmcnt(0)")
    rd(0, 0)
    a.label("L_A_loop")
    for kk in range(3):
        rd(kk+1, (kk+1) & 1)
        a("s_waitcnt lgkmcnt(7)")
        mm(kk & 1)
    a(f"s_add_u32 s{s_stage}, s{s_stage}, 1")
    a(f"s_cmp_eq_u32 s{s_stage}, 5")
    a(f"s_mov_b32 s44, {A_SLOT}")
    a(f"s_mov_b32 s45, {(-4*A_SLOT) & 0xffffffff}")
    a(f"s_cselect_b32 s{s_delta}, s45, s44")
    for r in xaddr + [waddr]:
        a(f"v_add_u32 v{r}, s{s_delta}, v{r}")
    a("s_waitcnt lgkmcnt(0)")
    a(f"s_cmp_eq_u32 s{s_stage}, 8")
    a("s_cbranch_scc1 L_A_tail")
    if o.fuse_head:
        a(f"s_cmp_eq_u32 s{s_stage}, 6")
        a("s_cbranch_scc0 L_A_nm")
        a(f"s_cmp_eq_u32 s{S_WAVE}, 8")
        a("s_cbranch_scc0 L_A_nm")
        get_nonce(a, "A", TMP)
        init_misc(a, TMP)
        a.label("L_A_nm")
    a("s_barrier")
    rd(0, 0)
    mm(1)
    a("s_branch L_A_loop")
    a.label("L_A_tail")
    mm(1)
    st.stamp(4)
    if o.fuse_head:
        read_nonce(a, 2)
    sc = " sc1" if o.fuse_head else ""
    a("s_lshl_b32 s44, s53, 17")
    a("s_lshl_b32 s45, s52, 10")
    a("s_add_u32 s44, s44, s45")
    a("s_add_u32 s45, s44, 65536")
    a(f"s_add_u32 s46, s44, {KF}")
    a(f"s_add_u32 s47, s45, {KF}")
    a(f"s_add_u32 s54, s44, {VF}")
    a(f"s_mov_b32 s56, {f32bits(QSCALE)}")
    a("s_mov_b32 s57, s56")
    a("v_and_b32 v2, 15, v0")
    a("v_lshlrev_b32 v2, 4, v2")
    a("v_lshrrev_b32 v3, 5, v0")
    a("v_lshl_add_u32 v2, v3, 8, v2")
    a("v_bfe_u32 v3, v0, 4, 1")
    a("v_lshl_add_u32 v2, v3, 16, v2")
    a("s_nop 3")
    for half in range(2):
        t = TMP + 4*half
        src = ACC[1] + 8*half
        for i in range(4):
            a(f"v_cvt_pk_bf16_f32 v{t+i}, v{src+2*i}, v{src+2*i+1}")
        a(f"buffer_store_dwordx4 {v(t,4)}, v1, s[{SWS}:{SWS+3}], s{46+half} offen{sc}")
    for half in range(2):
        t = TMP + 8 + 4*half
        src = ACC[2] + 8*half
        for i in range(4):
            a(f"v_cvt_pk_bf16_f32 v{t+i}, v{src+2*i}, v{src+2*i+1}")
        a(f"buffer_store_dwordx4 {v(t,4)}, v2, s[{SWS}:{SWS+3}], s54 offen offset:{half*512}{sc}")
    for half in range(2):
        t = TMP + 16 + 4*half
        src = ACC[0] + 8*half
        for i in range(4):
            a(f"v_pk_mul_f32 {v(src+2*i,2)}, {v(src+2*i,2)}, s[56:57]")
        for i in range(4):
            a(f"v_cvt_pk_bf16_f32 v{t+i}, v{src+2*i}, v{src+2*i+1}")
        a(f"buffer_store_dwordx4 {v(t,4)}, v1, s[{SWS}:{SWS+3}], s{44+half} offen{sc}")
    if o.fuse_head:
        a("s_lshl_b32 s44, s53, 10")
        a("s_lshl_b32 s45, s52, 4")
        a("s_add_u32 s44, s44, s45")
        a(f"s_add_u32 s44, s44, {FQ}")
        post_flag(a, 44, 2)
    return R.hi

class LQ:
    def __init__(self): self.q = []
    def push(self, tag): self.q.append(tag)
    def need(self, tag):
        if tag not in self.q: return None
        i = len(self.q) - 1 - self.q[::-1].index(tag)
        n = len(self.q) - 1 - i
        self.q = self.q[i+1:]
        return n

def attention(a, o, st):
    s_head, s_T, s_c, s_kg, s_vg, s_ld, s_tgt = 48, 49, 50, 51, 52, 53, 54
    EM = 56
    R = Regs(2)
    vt = R.alloc(); vt2 = R.alloc()
    kaddr = R.alloc(); vaddr = R.alloc(); vmisc = R.alloc(); vone = R.alloc(); vcnt = R.alloc()
    Q = [R.alloc(4), R.alloc(4)]; KR = R.alloc(4); V0 = R.alloc(4); V1 = R.alloc(4)
    P = R.alloc(8); S = [R.alloc(16), R.alloc(16)]
    O = [R.alloc(16), R.alloc(16)]; C = [R.alloc(16), R.alloc(16)]
    sc = " sc1" if o.fuse_head else ""
    a(f"s_lshl_b32 s44, s{S_XCD}, 2")
    a(f"s_and_b32 s45, s{S_LOC}, 3")
    a(f"s_add_u32 s{s_head}, s44, s45")
    a(f"s_lshr_b32 s44, s{S_LOC}, 2")
    a("s_lshl_b32 s44, s44, 3")
    a(f"s_and_b32 s45, s{S_WAVE}, 3")
    a("s_lshl_b32 s45, s45, 1")
    a("s_add_u32 s44, s44, s45")
    a(f"s_lshr_b32 s46, s{S_WAVE}, 2")
    a(f"s_add_u32 s{s_T}, s44, s46")
    a(f"v_mov_b32 v{vmisc}, {MISC}")
    a(f"v_mov_b32 v{vone}, 1")
    a(f"s_mov_b32 s{EM}, 0xffff")
    a(f"s_mov_b32 s{EM+1}, 0xffff")
    a(f"s_lshl_b32 s44, s{s_head}, 16")
    a(f"s_lshl_b32 s{s_ld}, s{S_WAVE}, 10")
    a(f"s_add_u32 s{s_kg}, s44, s{s_ld}")
    a(f"s_add_u32 s{s_vg}, s{s_kg}, {VF}")
    a(f"s_add_u32 s{s_kg}, s{s_kg}, {KF}")
    a(f"s_lshl_b32 s45, s{s_T}, 10")
    a("s_add_u32 s58, s44, s45")
    a("s_xor_b32 s59, s58, 1024")
    a("s_lshl_b32 s46, s46, 12")
    a(f"v_add_u32 v{kaddr}, s46, v1")
    a(f"v_and_b32 v{vt}, 15, v0")
    a(f"v_lshlrev_b32 v{vt}, 4, v{vt}")
    a(f"v_lshrrev_b32 v{vt2}, 5, v0")
    a(f"v_lshl_add_u32 v{vt}, v{vt2}, 8, v{vt}")
    a("s_add_u32 s46, s46, 8192")
    a(f"v_add_u32 v{vaddr}, s46, v{vt}")
    a(f"v_and_b32 v{vt}, 27, v0")
    a(f"v_cmp_eq_u32 vcc, 16, v{vt}")
    a(f"v_mov_b32 v{vt2}, 0x3f803f80")
    a("s_nop 0")
    for i in range(4):
        a(f"v_cndmask_b32 v{V0+i}, 0, v{vt2}, vcc")
        a(f"v_cndmask_b32 v{V1+i}, 0, v{vt2}, vcc")
    for q in range(2):
        for i in range(16):
            a(f"v_mov_b32 v{O[q]+i}, 0")
    for i in range(8):
        a(f"v_mov_b32 v{P+i}, 0")
    if o.fuse_head:
        read_nonce(a, vt)
        a(f"s_cmp_eq_u32 s{S_WAVE}, 0")
        a("s_cbranch_scc0 L_at_waitgo")
        a(f"s_lshr_b32 s44, s{s_head}, 1")
        a("s_lshl_b32 s44, s44, 10")
        a(f"s_add_u32 s44, s44, {FQ}")
        poll_flags(a, "atq", 44, vt)
        a(f"ds_write_b32 v{vmisc}, v{vone} offset:{L_GO-MISC}")
        a("s_branch L_at_go")
        a.label("L_at_waitgo")
        lds_wait_ge(a, "atgo", vmisc, L_GO-MISC, "1", vt)
        a.label("L_at_go")
    st.stamp(2)
    def dma(slot_expr_lit=None, s_slot=None):
        if slot_expr_lit is not None:
            a(f"s_add_u32 m0, s{s_ld}, {slot_expr_lit}")
            a("s_nop 0")
        else:
            a(f"s_add_u32 m0, s{s_ld}, s{s_slot}")
            a("s_nop 0")
        a(f"buffer_load_dwordx4 v1, s[{SWS}:{SWS+3}], s{s_kg} offen{sc} lds")
        a("s_add_u32 m0, m0, 8192")
        a(f"s_add_u32 s{s_kg}, s{s_kg}, 8192")
        a(f"buffer_load_dwordx4 v1, s[{SWS}:{SWS+3}], s{s_vg} offen{sc} lds")
        a(f"s_add_u32 s{s_vg}, s{s_vg}, 8192")
    a(f"buffer_load_dwordx4 {v(Q[0],4)}, v1, s[{SWS}:{SWS+3}], s58 offen{sc}")
    a(f"buffer_load_dwordx4 {v(Q[1],4)}, v1, s[{SWS}:{SWS+3}], s59 offen{sc}")
    dma(0); dma(16384); dma(32768)
    a("s_waitcnt vmcnt(4)")
    lds_arrive(a, vmisc, L_ATT-MISC, vone)
    lds_wait_ge(a, "at0", vmisc, L_ATT-MISC, "8", vt)
    st.stamp(3)
    a(f"ds_read_b128 {v(KR,4)}, v1")
    a("s_waitcnt lgkmcnt(0)")
    for q in range(2):
        a(f"{MF} {v(S[q],16)}, {v(KR,4)}, {v(Q[q],4)}, 0")
    a(f"ds_read_b128 {v(KR,4)}, v{kaddr}")
    a(f"s_mov_b64 exec, s[{EM}:{EM+1}]")
    a(f"ds_read_b128 {v(V0,4)}, v{vaddr}")
    a("s_mov_b64 exec, -1")
    a("s_nop 7")
    def maxtree(dst, src, first):
        if first:
            a(f"v_max3_f32 v{dst}, v{src}, v{src+1}, v{src+2}")
            rest = list(range(3, 16))
        else:
            rest = list(range(0, 16))
        while len(rest) >= 2:
            a(f"v_max3_f32 v{dst}, v{dst}, v{src+rest[0]}, v{src+rest[1]}")
            rest = rest[2:]
        if rest:
            a(f"v_max_f32 v{dst}, v{dst}, v{src+rest[0]}")
    def setC(q):
        a(f"v_mov_b32 v{vt2}, v{vt}")
        a("s_nop 1")
        a(f"v_permlane32_swap_b32 v{vt}, v{vt2}")
        a("s_nop 1")
        a(f"v_max_f32 v{vt}, v{vt}, v{vt2}")
        for i in range(16):
            a(f"v_sub_f32 v{C[q]+i}, 0, v{vt}")
    for q in range(2):
        maxtree(vt, S[q], True)
        setC(q)
    for i in range(2):
        a(f"v_mov_b32 v{S[1]+14+i}, 0")
    a("s_waitcnt lgkmcnt(0)")
    a(f"{MF} {v(S[0],16)}, {v(KR,4)}, {v(Q[0],4)}, {v(C[0],16)}")
    a(f"s_mov_b32 s{s_c}, 0")
    a(f"s_mov_b32 s{s_tgt}, 16")
    a("s_mov_b32 s60, 49152")
    a("s_nop 7")
    a("s_nop 1")
    def e(cur, i): a(f"v_exp_f32 v{cur+i}, v{cur+i}")
    def c(cur, i): a(f"v_cvt_pk_bf16_f32 v{P+i}, v{cur+2*i}, v{cur+2*i+1}")
    def body(emit, lq):
        def A(s):
            if emit: a(s)
        def w(tag):
            n = lq.need(tag)
            if n is not None: A(f"s_waitcnt lgkmcnt({n})")
        def E(cur, i):
            if emit: e(cur, i)
        def Cc(cur, i):
            if emit: c(cur, i)
        def rdv(reg, off, tag):
            A(f"s_mov_b64 exec, s[{EM}:{EM+1}]")
            A(f"ds_read_b128 {v(reg,4)}, v{vaddr} offset:{off}")
            A("s_mov_b64 exec, -1")
            lq.push(tag)
        for tt in range(4):
            for q in range(2):
                cur = S[q]; nxt = S[q ^ 1]
                E(cur, 0); Cc(nxt, 7); E(cur, 1); E(cur, 2)
                if q == 1: w("V1")
                A(f"{MF} {v(O[q^1],16)}, {v(V1,4)}, {v(P+4,4)}, {v(O[q^1],16)}")
                if q == 0:
                    rdv(V1, tt*1024 + 512, "V1")
                if tt == 0 and q == 1:
                    A("s_waitcnt vmcnt(2)")
                    A("s_mov_b64 exec, 1")
                    A(f"ds_add_u32 v{vmisc}, v{vone} offset:{L_ATT-MISC}")
                    A("s_mov_b64 exec, -1")
                    lq.push("X")
                if tt == 2 and q == 1:
                    A(f"ds_read_b32 v{vcnt}, v{vmisc} offset:{L_ATT-MISC}")
                    lq.push("CNT")
                Cc(cur, 0); E(cur, 3); E(cur, 4); Cc(cur, 1); E(cur, 5); E(cur, 6)
                if q == 1: w("K")
                A(f"{MF} {v(nxt,16)}, {v(KR,4)}, {v(Q[q^1],4)}, {v(C[q^1],16)}")
                if q == 0:
                    if tt == 3:
                        w("CNT")
                        A(f"v_cmp_gt_u32 vcc, s{s_tgt}, v{vcnt}")
                        A(f"v_add_u32 v{kaddr}, s61, v{kaddr}")
                        A("s_cbranch_vccnz L_at_slow")
                        if emit: a.label("L_at_back")
                        A(f"ds_read_b128 {v(KR,4)}, v{kaddr}")
                    else:
                        A(f"ds_read_b128 {v(KR,4)}, v{kaddr} offset:{(tt+1)*1024}")
                    lq.push("K")
                Cc(cur, 2); E(cur, 7); E(cur, 8); Cc(cur, 3); E(cur, 9); E(cur, 10)
                if q == 0: w("V0")
                A(f"{MF} {v(O[q],16)}, {v(V0,4)}, {v(P,4)}, {v(O[q],16)}")
                if q == 1:
                    if tt == 3:
                        A(f"v_add_u32 v{vaddr}, s61, v{vaddr}")
                        rdv(V0, 0, "V0")
                    else:
                        rdv(V0, (tt+1)*1024, "V0")
                if tt == 3 and q == 0 and emit:
                    a(f"s_cmp_lt_u32 s{s_c}, 5")
                    a("s_cbranch_scc0 L_at_nodma")
                    dma(s_slot=60)
                    a("s_add_u32 s60, s60, 16384")
                    a("s_and_b32 s60, s60, 0xffff")
                    a.label("L_at_dmadone")
                Cc(cur, 4); E(cur, 11); E(cur, 12); Cc(cur, 5); E(cur, 13); E(cur, 14); Cc(cur, 6); E(cur, 15)
    lq = LQ()
    body(False, lq)
    steady = list(lq.q)
    a(".p2align 6")
    a.label("L_at_loop")
    a(f"s_and_b32 s44, s{s_c}, 3")
    a("s_cmp_eq_u32 s44, 3")
    a(f"s_mov_b32 s44, {(-49152) & 0xffffffff}")
    a("s_cselect_b32 s61, s44, 16384")
    body(True, lq)
    assert lq.q == steady, (lq.q, steady)
    a(f"s_add_u32 s{s_c}, s{s_c}, 1")
    a(f"s_add_u32 s{s_tgt}, s{s_tgt}, 8")
    a(f"s_cmp_lt_u32 s{s_c}, 8")
    a("s_cbranch_scc1 L_at_loop")
    st.stamp(4)
    c(S[1], 7)
    a("s_nop 1")
    a(f"{MF} {v(O[1],16)}, {v(V1,4)}, {v(P+4,4)}, {v(O[1],16)}")
    a(f"s_mul_i32 s44, s{S_WAVE}, 3072")
    a(f"v_add_u32 v{kaddr}, s44, v1")
    a(f"s_xor_b32 s45, s{S_WAVE}, 4")
    a("s_mul_i32 s45, s45, 3072")
    a(f"v_add_u32 v{vaddr}, s45, v1")
    a(f"s_and_b32 s44, s{S_WAVE}, 3")
    a("s_lshl_b32 s44, s44, 2")
    a(f"v_add_u32 v{vmisc}, s44, v{vmisc}")
    a("s_waitcnt lgkmcnt(0)")
    a("s_nop 4")
    for i in range(3):
        a(f"ds_write_b128 v{kaddr}, {v(O[1]+4*i,4)} offset:{i*1024}")
    a("s_waitcnt lgkmcnt(0)")
    lds_arrive(a, vmisc, L_PAIR-MISC, vone)
    lds_wait_ge(a, "atp", vmisc, L_PAIR-MISC, "2", vt)
    for i in range(3):
        a(f"ds_read_b128 {v(O[1]+4*i,4)}, v{vaddr} offset:{i*1024}")
    a("s_waitcnt lgkmcnt(0)")
    for i in range(9):
        a(f"v_add_f32 v{O[0]+i}, v{O[0]+i}, v{O[1]+i}")
    a(f"v_mov_b32 v{vt}, {f32bits(2.0**30)}")
    a(f"v_cmp_nle_f32 vcc, v{O[0]+8}, v{vt}")
    a(f"v_mul_f32 v{vt2}, 0, v{O[0]}")
    for i in range(1, 8):
        a(f"v_fma_f32 v{vt2}, v{O[0]+i}, 0, v{vt2}")
    a(f"v_cmp_u_f32 s[44:45], v{vt2}, v{vt2}")
    a("s_nop 3")
    a("s_or_b64 vcc, vcc, s[44:45]")
    a("s_cbranch_vccnz L_at_fallback")
    a.label("L_at_fin")
    a(f"v_rcp_f32 v{vt}, v{O[0]+8}")
    a(f"s_lshl_b32 s44, s{s_T}, 5")
    a(f"s_add_u32 s44, s44, s{s_head}")
    a("s_lshl_b32 s44, s44, 10")
    a(f"s_add_u32 s44, s44, {OF}")
    for i in range(8):
        a(f"v_mul_f32 v{O[0]+i}, v{vt}, v{O[0]+i}")
    for i in range(4):
        a(f"v_cvt_pk_bf16_f32 v{P+i}, v{O[0]+2*i}, v{O[0]+2*i+1}")
    sct = " sc1" if o.fuse_tail else ""
    a(f"buffer_store_dwordx4 {v(P,4)}, v1, s[{SWS}:{SWS+3}], s44 offen{sct}")
    if o.fuse_tail:
        if not o.fuse_head:
            a(f"v_mov_b32 v{vt2}, {L_NONCE}")
            lds_wait_ge(a, "atn", vt2, 0, "1", vt)
            a(f"v_readfirstlane_b32 s{S_NONCE}, v{vt}")
        a(f"s_lshr_b32 s44, s{s_T}, 1")
        a("s_lshl_b32 s44, s44, 10")
        a(f"s_lshl_b32 s45, s{s_head}, 1")
        a(f"s_and_b32 s46, s{s_T}, 1")
        a("s_add_u32 s45, s45, s46")
        a("s_lshl_b32 s45, s45, 4")
        a("s_add_u32 s44, s44, s45")
        a(f"s_add_u32 s44, s44, {FO}")
        post_flag(a, 44, vt)
    finish(a, st)
    a.label("L_at_nodma")
    a("s_waitcnt vmcnt(0)")
    a("s_branch L_at_dmadone")
    a.label("L_at_slow")
    lds_wait_ge(a, "ats", vmisc, L_ATT-MISC, f"s{s_tgt}", vcnt)
    a("s_branch L_at_back")
    a.label("L_at_fallback")
    a(f"s_lshl_b32 s46, s{s_head}, 16")
    a(f"s_add_u32 s{s_kg}, s46, {KF}")
    a(f"v_mov_b32 v{vt}, 0xff800000")
    a(f"s_mov_b32 s{s_c}, 0")
    a.label("L_at_fb1")
    a(f"buffer_load_dwordx4 {v(KR,4)}, v1, s[{SWS}:{SWS+3}], s{s_kg} offen{sc}")
    a(f"s_add_u32 s{s_kg}, s{s_kg}, 1024")
    a("s_waitcnt vmcnt(0)")
    a(f"{MF} {v(S[0],16)}, {v(KR,4)}, {v(Q[0],4)}, 0")
    a("s_nop 15")
    maxtree(vt, S[0], False)
    a(f"s_add_u32 s{s_c}, s{s_c}, 1")
    a(f"s_cmp_lt_u32 s{s_c}, 64")
    a("s_cbranch_scc1 L_at_fb1")
    setC(0)
    for i in range(16):
        a(f"v_mov_b32 v{O[0]+i}, 0")
    a(f"v_and_b32 v{vt}, 15, v0")
    a(f"v_lshlrev_b32 v{vt}, 4, v{vt}")
    a(f"v_lshrrev_b32 v{vt2}, 5, v0")
    a(f"v_lshl_add_u32 v{vaddr}, v{vt2}, 8, v{vt}")
    a(f"s_add_u32 s{s_kg}, s46, {KF}")
    a(f"s_add_u32 s{s_vg}, s46, {VF}")
    a(f"s_mov_b32 s{s_c}, 0")
    a.label("L_at_fb2")
    a(f"buffer_load_dwordx4 {v(KR,4)}, v1, s[{SWS}:{SWS+3}], s{s_kg} offen{sc}")
    a(f"s_mov_b64 exec, s[{EM}:{EM+1}]")
    a(f"buffer_load_dwordx4 {v(V0,4)}, v{vaddr}, s[{SWS}:{SWS+3}], s{s_vg} offen{sc}")
    a(f"buffer_load_dwordx4 {v(V1,4)}, v{vaddr}, s[{SWS}:{SWS+3}], s{s_vg} offen offset:512{sc}")
    a("s_mov_b64 exec, -1")
    a(f"s_add_u32 s{s_kg}, s{s_kg}, 1024")
    a(f"s_add_u32 s{s_vg}, s{s_vg}, 1024")
    a("s_waitcnt vmcnt(0)")
    a(f"{MF} {v(S[0],16)}, {v(KR,4)}, {v(Q[0],4)}, {v(C[0],16)}")
    a("s_nop 15")
    for i in range(16): e(S[0], i)
    a("s_nop 0")
    for i in range(8): c(S[0], i)
    a("s_nop 1")
    a(f"{MF} {v(O[0],16)}, {v(V0,4)}, {v(P,4)}, {v(O[0],16)}")
    a(f"{MF} {v(O[0],16)}, {v(V1,4)}, {v(P+4,4)}, {v(O[0],16)}")
    a("s_nop 15")
    a(f"s_add_u32 s{s_c}, s{s_c}, 1")
    a(f"s_cmp_lt_u32 s{s_c}, 64")
    a("s_cbranch_scc1 L_at_fb2")
    a("s_branch L_at_fin")
    return R.hi

S_FBT = 67
V_MISC, V_ONE = 2, 3
def fbar(a, vt):
    tag = a.newlabel("fb")[2:]
    a(f"s_add_u32 s{S_FBT}, s{S_FBT}, 4")
    lds_arrive(a, V_MISC, L_FB-MISC, V_ONE)
    lds_wait_ge(a, tag, V_MISC, L_FB-MISC, f"s{S_FBT}", vt, sleep=Opt.fsleep)

def pace(a, o):
    if o.fpace: a(f"s_nop {o.fpace-1}")

def ffn_up(a, o, st):
    s_fw, s_rb, s_cg, s_u0, s_xoff, s_woff, s_stage, s_lx, s_lw, s_skip = 48, 49, 50, 51, 52, 53, 54, 55, 56, 57
    R = Regs(4)
    t0 = R.alloc(4)
    vx = R.alloc(); vw = [R.alloc() for _ in range(3)]
    xaddr = [R.alloc() for _ in range(4)]
    waddr = R.alloc()
    XF = [[R.alloc(4) for _ in range(2)] for _ in range(2)]
    WF = [R.alloc(4) for _ in range(3)]
    ACC = [[R.alloc(16) for _ in range(2)] for _ in range(3)]
    GT = R.alloc(12)
    a(f"s_setprio {o.fprio}")
    a(f"s_sub_u32 s{s_fw}, s{S_WAVE}, 8")
    a(f"v_mov_b32 v{V_MISC}, {MISC}")
    a(f"v_mov_b32 v{V_ONE}, 1")
    a(f"s_mov_b32 s{S_FBT}, 0")
    a(f"s_and_b32 s44, s{S_XCD}, 1")
    a("s_lshl_b32 s44, s44, 3")
    a(f"s_and_b32 s45, s{S_LOC}, 7")
    a(f"s_add_u32 s{s_rb}, s44, s45")
    a(f"s_lshr_b32 s44, s{S_XCD}, 1")
    a("s_lshl_b32 s44, s44, 2")
    a(f"s_lshr_b32 s45, s{S_LOC}, 3")
    a(f"s_add_u32 s{s_cg}, s44, s45")
    a(f"s_mul_i32 s44, s{s_cg}, 5")
    a(f"s_min_u32 s45, s{s_cg}, 6")
    a(f"s_add_u32 s{s_u0}, s44, s45")
    a(f"s_cmp_ge_u32 s{s_cg}, 6")
    a("s_cselect_b32 s44, 1, 0")
    a(f"s_lshr_b32 s45, s{s_fw}, 1")
    a(f"s_and_b32 s{s_skip}, s44, s45")
    srd(a, SA, 4, 5, 2048*1024)
    a(f"s_cmp_lt_u32 s{s_fw}, 2")
    a("s_cselect_b32 s46, s12, s14")
    a("s_cselect_b32 s47, s13, s15")
    a(f"s_lshl_b32 s44, s{s_u0}, 5")
    srd_off(a, SB, 46, 47, 44, 512*2752)
    a(f"v_lshrrev_b32 v{t0}, 3, v0")
    a(f"v_and_b32 v{t0+1}, 7, v0")
    a(f"v_lshrrev_b32 v{t0+2}, 1, v{t0}")
    a(f"s_and_b32 s44, s{s_fw}, 1")
    a("s_lshl_b32 s45, s44, 2")
    a(f"v_or_b32 v{t0+2}, s45, v{t0+2}")
    a(f"v_xor_b32 v{t0+1}, v{t0+1}, v{t0+2}")
    a(f"v_lshlrev_b32 v{t0+1}, 4, v{t0+1}")
    a(f"s_lshl_b32 s45, s{s_rb}, 7")
    a(f"s_lshl_b32 s46, s{s_fw}, 3")
    a("s_add_u32 s45, s45, s46")
    a(f"v_add_u32 v{t0}, s45, v{t0}")
    a(f"v_lshl_add_u32 v{vx}, v{t0}, 10, v{t0+1}")
    a("s_movk_i32 s46, 5462")
    a("s_movk_i32 s47, 2752")
    a("s_lshl_b32 s45, s44, 5")
    for j in range(3):
        a(f"v_add_u32 v{t0}, {64*j}, v0")
        a(f"v_mul_u32_u24 v{t0+1}, s46, v{t0}")
        a(f"v_lshrrev_b32 v{t0+1}, 16, v{t0+1}")
        a(f"v_mul_u32_u24 v{t0+2}, 12, v{t0+1}")
        a(f"v_sub_u32 v{t0+2}, v{t0}, v{t0+2}")
        a(f"v_lshlrev_b32 v{t0+2}, 4, v{t0+2}")
        a(f"v_add_u32 v{t0+1}, s45, v{t0+1}")
        a(f"v_mad_u32_u24 v{vw[j]}, v{t0+1}, s47, v{t0+2}")
    a(f"s_lshl_b32 s{s_lx}, s{s_fw}, 10")
    a(f"s_add_u32 s{s_lx}, s{s_lx}, {XST}")
    a("s_mul_i32 s45, s44, 6144")
    a(f"s_lshr_b32 s46, s{s_fw}, 1")
    a(f"s_mul_i32 s46, s46, {WIMG}")
    a("s_add_u32 s45, s45, s46")
    a(f"s_add_u32 s{s_lw}, s45, {WST}")
    a(f"s_mov_b32 s{s_xoff}, 0")
    a(f"s_mov_b32 s{s_woff}, 0")
    def issue():
        a(f"s_mov_b32 m0, s{s_lx}")
        a(f"s_mov_b32 s44, s{s_xoff}")
        for j in range(4):
            a(f"buffer_load_dwordx4 v{vx}, s[{SA}:{SA+3}], s44 offen lds")
            if j < 3:
                a("s_add_u32 m0, m0, 4096")
                a("s_add_u32 s44, s44, 32768")
        a(f"s_mov_b32 m0, s{s_lw}")
        a(f"s_add_u32 s44, s{s_woff}, {16*2752}")
        for j in range(6):
            so = s_woff if j < 3 else 44
            a(f"buffer_load_dwordx4 v{vw[j%3]}, s[{SB}:{SB+3}], s{so} offen lds")
            if j < 5:
                a("s_add_u32 m0, m0, 1024")
                a("s_nop 0")
        a(f"s_add_u32 s{s_xoff}, s{s_xoff}, 128")
        a(f"s_add_u32 s{s_woff}, s{s_woff}, {64*2752}")
        a(f"s_xor_b32 s{s_lx}, s{s_lx}, 16384")
        a(f"s_add_u32 s{s_lw}, s{s_lw}, s58")
        a("s_sub_u32 s58, 0, s58")
    a(f"s_mov_b32 s58, {WSLOT}")
    if o.fuse_head:
        fbar(a, t0)
    issue()
    srd(a, SC, 18, 19, 1024)
    a(f"s_lshl_b32 s59, s{s_rb}, 7")
    a(f"s_lshl_b32 s44, s{s_cg}, 3")
    a("s_add_u32 s59, s59, s44")
    a(f"s_lshl_b32 s44, s{s_fw}, 1")
    a("s_add_u32 s59, s59, s44")
    a("s_lshl_b32 s44, s59, 10")
    a(f"buffer_load_dwordx4 {v(GT,4)}, v1, s[{SC}:{SC+3}], 0 offen")
    a(f"buffer_load_dwordx4 {v(GT+4,4)}, v1, s[{SA}:{SA+3}], s44 offen")
    a(f"buffer_load_dwordx4 {v(GT+8,4)}, v1, s[{SA}:{SA+3}], s44 offen offset:1024")
    a(f"v_and_b32 v{t0}, 31, v0")
    a(f"v_lshrrev_b32 v{t0+1}, 5, v0")
    a(f"v_bfe_u32 v{t0+2}, v{t0}, 1, 3")
    a(f"v_xor_b32 v{t0+2}, v{t0+2}, v{t0+1}")
    a(f"v_lshlrev_b32 v{t0+2}, 4, v{t0+2}")
    a(f"s_and_b32 s44, s{s_fw}, 1")
    a("s_lshl_b32 s44, s44, 13")
    a(f"s_add_u32 s44, s44, {XST}")
    a(f"v_lshlrev_b32 v{t0}, 7, v{t0}")
    a(f"v_add_u32 v{t0}, s44, v{t0}")
    for kk in range(4):
        a(f"v_xor_b32 v{t0+3}, {kk*32}, v{t0+2}")
        a(f"v_add_u32 v{xaddr[kk]}, v{t0}, v{t0+3}")
    a(f"v_bfe_u32 v{t0}, v0, 2, 2")
    a(f"v_lshl_add_u32 v{t0}, v{t0+1}, 3, v{t0}")
    a(f"v_mul_u32_u24 v{t0}, 192, v{t0}")
    a(f"v_bfe_u32 v{t0+2}, v0, 4, 1")
    a(f"v_mul_u32_u24 v{t0+2}, {WIMG}, v{t0+2}")
    a(f"v_and_b32 v{t0+3}, 3, v0")
    a(f"v_lshlrev_b32 v{t0+3}, 3, v{t0+3}")
    a(f"v_add3_u32 v{t0}, v{t0}, v{t0+2}, v{t0+3}")
    a(f"s_lshr_b32 s44, s{s_fw}, 1")
    a("s_mul_i32 s44, s44, 96")
    a(f"s_add_u32 s44, s44, {WST}")
    a(f"v_add_u32 v{waddr}, s44, v{t0}")
    for u in range(3):
        for t in range(2):
            for i in range(16):
                a(f"v_mov_b32 v{ACC[u][t]+i}, 0")
    a(f"s_mov_b32 s{s_stage}, 0")
    a(f"s_mov_b32 s60, {WSLOT}")
    def rd_x(kk, buf):
        for t in range(2):
            a(f"ds_read_b128 {v(XF[buf][t],4)}, v{xaddr[kk]} offset:{t*4096}")
    def rd_w(kk, u):
        off = kk*16*192 + u*32
        a(f"ds_read_b64_tr_b16 {v(WF[u],2)}, v{waddr} offset:{off}")
        a(f"ds_read_b64_tr_b16 {v(WF[u]+2,2)}, v{waddr} offset:{off+4*192}")
    def mm(u, buf):
        for t in range(2):
            a(f"{MF} {v(ACC[u][t],16)}, {v(WF[u],4)}, {v(XF[buf][t],4)}, {v(ACC[u][t],16)}")
            pace(a, o)
    a.label("L_up_loop")
    a("s_waitcnt vmcnt(0)")
    fbar(a, t0)
    rd_x(0, 0)
    for u in range(3): rd_w(0, u)
    a(f"s_cmp_eq_u32 s{s_stage}, 7")
    a("s_cbranch_scc1 L_up_noissue")
    issue()
    a.label("L_up_noissue")
    a(f"s_cmp_lg_u32 s{s_skip}, 0")
    for kk in range(4):
        buf = kk & 1
        last = kk == 3
        for u in range(3):
            younger = (2-u)*2 + (0 if (u == 0 or last) else 2 + 2*u)
            a(f"s_waitcnt lgkmcnt({younger})")
            if u == 2:
                lab = a.newlabel("upskip")
                a(f"s_cbranch_scc1 {lab}")
                mm(u, buf)
                a.label(lab)
            else:
                mm(u, buf)
            if not last:
                if u == 0: rd_x(kk+1, buf ^ 1)
                rd_w(kk+1, u)
    for r in xaddr:
        a(f"v_xor_b32 v{r}, 16384, v{r}")
    a(f"v_add_u32 v{waddr}, s60, v{waddr}")
    a("s_sub_u32 s60, 0, s60")
    a(f"s_add_u32 s{s_stage}, s{s_stage}, 1")
    a(f"s_cmp_lt_u32 s{s_stage}, 8")
    a("s_cbranch_scc1 L_up_loop")
    st.stamp(8)
    if not o.fuse_head:
        get_nonce(a, "B", t0)
        a(f"v_readfirstlane_b32 s{S_NONCE}, v{t0}")
        a(f"ds_write_b32 v{V_MISC}, v{t0} offset:{L_NONCE-MISC}")
    for r in range(2):
        a(f"v_mov_b32 v{t0+r}, 0")
    for i in range(4):
        for r in range(2):
            a(f"v_dot2c_f32_bf16 v{t0+r}, v{GT+4+4*r+i}, v{GT+i}")
    a("s_nop 2")
    for dpp in ["row_shr:1", "row_shr:2", "row_shr:4", "row_shr:8", "row_bcast:15 row_mask:0xa", "row_bcast:31 row_mask:0xc"]:
        a("s_nop 0")
        for r in range(2):
            a(f"v_add_f32_dpp v{t0+r}, v{t0+r}, v{t0+r} {dpp}")
    for r in range(2): a(f"v_mul_f32 v{t0+r}, {f32bits(-LOG2E)}, v{t0+r}")
    for r in range(2): a(f"v_exp_f32 v{t0+r}, v{t0+r}")
    a("s_nop 0")
    for r in range(2): a(f"v_add_f32 v{t0+r}, 1.0, v{t0+r}")
    for r in range(2): a(f"v_rcp_f32 v{t0+r}, v{t0+r}")
    a("s_lshl_b32 s44, s59, 2")
    a(f"s_add_u32 s44, s44, {GA}")
    a("s_mov_b32 s46, 0")
    a("s_brev_b32 s47, 1")
    a("s_mov_b64 exec, s[46:47]")
    a(f"buffer_store_dwordx2 {v(t0,2)}, off, s[{SWS}:{SWS+3}], s44 sc1")
    a("s_mov_b64 exec, -1")
    a(f"s_lshl_b32 s44, s{s_rb}, 2")
    a(f"s_and_b32 s45, s{s_fw}, 1")
    a("s_lshl_b32 s45, s45, 1")
    a("s_add_u32 s44, s44, s45")
    a("s_mul_i32 s44, s44, 86")
    a(f"s_add_u32 s44, s44, s{s_u0}")
    a(f"s_lshr_b32 s45, s{s_fw}, 1")
    a("s_mul_i32 s45, s45, 3")
    a("s_add_u32 s44, s44, s45")
    a("s_lshl_b32 s44, s44, 10")
    a(f"s_add_u32 s44, s44, {HF}")
    a(f"s_add_u32 s45, s44, {86*1024}")
    a(f"s_mov_b32 s62, {f32bits(-LOG2E)}")
    a("s_mov_b32 s63, s62")
    a("s_mov_b32 s64, 1.0")
    a("s_mov_b32 s65, 1.0")
    for u in range(3):
        if u == 2:
            a(f"s_cmp_lg_u32 s{s_skip}, 0")
            a("s_cbranch_scc1 L_up_done")
        for t in range(2):
            g = ACC[u][t]; up = g + 8
            tm = XF[u & 1][t]
            for i in range(4): a(f"v_pk_mul_f32 {v(g+2*i,2)}, {v(g+2*i,2)}, s[62:63]")
            for i in range(8): a(f"v_exp_f32 v{g+i}, v{g+i}")
            for i in range(4): a(f"v_pk_add_f32 {v(g+2*i,2)}, {v(g+2*i,2)}, s[64:65]")
            for i in range(8): a(f"v_rcp_f32 v{g+i}, v{g+i}")
            for i in range(4): a(f"v_pk_mul_f32 {v(g+2*i,2)}, {v(g+2*i,2)}, {v(up+2*i,2)}")
            for i in range(4): a(f"v_cvt_pk_bf16_f32 v{tm+i}, v{g+2*i}, v{g+2*i+1}")
            a(f"buffer_store_dwordx4 {v(tm,4)}, v1, s[{SWS}:{SWS+3}], s{44+t} offen offset:{u*1024} sc1")
    a.label("L_up_done")
    a(f"s_lshl_b32 s44, s{s_rb}, 10")
    a(f"s_lshl_b32 s45, s{s_cg}, 6")
    a("s_add_u32 s44, s44, s45")
    a(f"s_lshl_b32 s45, s{s_fw}, 4")
    a("s_add_u32 s44, s44, s45")
    a(f"s_add_u32 s44, s44, {FH}")
    post_flag(a, 44, t0)
    st.stamp(9)
    return R.hi

DST = XST
DD = 5
DXCH = XST + 4*DD*2048
S_T2, S_N2 = 48, 49
def tile_ids(a):
    a(f"s_lshl_b32 s44, s{S_XCD}, 2")
    a(f"s_and_b32 s45, s{S_LOC}, 3")
    a(f"s_add_u32 s{S_T2}, s44, s45")
    a(f"s_lshr_b32 s{S_N2}, s{S_LOC}, 2")

def wrow_addrs(a, t0, vsrc, wa0, wa1, s_fw, s_lbase):
    a(f"v_lshrrev_b32 v{t0}, 3, v0")
    a(f"v_and_b32 v{t0+1}, 7, v0")
    a(f"v_lshlrev_b32 v{t0+2}, 1, v{t0}")
    a(f"v_and_b32 v{t0+2}, 4, v{t0+2}")
    a(f"v_xor_b32 v{t0+1}, v{t0+1}, v{t0+2}")
    a(f"v_lshlrev_b32 v{t0+1}, 4, v{t0+1}")
    a(f"v_lshl_add_u32 v{t0}, v{t0}, 10, v{t0+1}")
    a(f"s_lshl_b32 s44, s{S_N2}, 7")
    a(f"v_add_u32 v{vsrc}, s44, v{t0}")
    a(f"v_bfe_u32 v{t0}, v0, 2, 2")
    a(f"v_lshrrev_b32 v{t0+1}, 5, v0")
    a(f"v_lshl_add_u32 v{t0+1}, v{t0+1}, 2, v{t0}")
    a(f"v_lshlrev_b32 v{t0+1}, 7, v{t0+1}")
    a(f"v_bfe_u32 v{t0+2}, v0, 4, 1")
    a(f"v_lshlrev_b32 v{t0+2}, 5, v{t0+2}")
    a(f"v_and_b32 v{t0+3}, 3, v0")
    a(f"v_lshl_add_u32 v{t0+2}, v{t0+3}, 3, v{t0+2}")
    a(f"v_lshlrev_b32 v{t0}, 5, v{t0}")
    a(f"v_and_b32 v{t0}, 64, v{t0}")
    a(f"s_lshr_b32 s44, s{s_fw}, 1")
    a("s_lshl_b32 s44, s44, 6")
    a(f"v_xor_b32 v{t0}, s44, v{t0}")
    a(f"v_add3_u32 v{t0}, v{t0}, v{t0+1}, v{t0+2}")
    a(f"v_add_u32 v{wa0}, s{s_lbase}, v{t0}")
    a(f"v_xor_b32 v{wa1}, 64, v{wa0}")

def reduce4(a, ACC, s_fw, base, vt, vt2, hw_barrier):
    for q in range(1, 4):
        a(f"s_xor_b32 s44, s{s_fw}, {q}")
        a("s_mul_i32 s44, s44, 12288")
        a(f"s_add_u32 s44, s44, {base + (q-1)*4096}")
        a(f"v_add_u32 v{vt}, s44, v1")
        for i in range(4):
            a(f"ds_write_b128 v{vt}, {v(ACC[q]+4*i,4)} offset:{i*1024}")
    a(f"s_mul_i32 s44, s{s_fw}, 12288")
    a(f"s_add_u32 s44, s44, {base}")
    a(f"v_add_u32 v{vt}, s44, v1")
    a("s_waitcnt lgkmcnt(0)")
    if hw_barrier: a("s_barrier")
    else: fbar(a, vt2)
    for q in range(1, 4):
        for i in range(4):
            a(f"ds_read_b128 {v(ACC[q]+4*i,4)}, v{vt} offset:{(q-1)*4096+i*1024}")
    for q in range(1, 4):
        a(f"s_waitcnt lgkmcnt({4*(3-q)})")
        for i in range(8):
            a(f"v_pk_add_f32 {v(ACC[0]+2*i,2)}, {v(ACC[0]+2*i,2)}, {v(ACC[q]+2*i,2)}")

V_B = 144
def ffn_down(a, o, st):
    s_fw, s_h0, s_h1, s_w, s_lb, s_n, s_i = 50, 51, 52, 53, 54, 55, 56
    R = Regs(4)
    t0 = R.alloc(4)
    vsrc = R.alloc(); wa = [R.alloc(), R.alloc()]
    HFR = [[R.alloc(4) for _ in range(2)] for _ in range(DD)]
    WF = [R.alloc(4) for _ in range(2)]
    ACC = [R.alloc(16) for _ in range(4)]
    a(f"s_sub_u32 s{s_fw}, s{S_WAVE}, 8")
    tile_ids(a)
    a(f"s_mul_i32 s{s_lb}, s{s_fw}, {DD*2048}")
    a(f"s_add_u32 s{s_lb}, s{s_lb}, {DST}")
    wrow_addrs(a, t0, vsrc, wa[0], wa[1], s_fw, s_lb)
    srd(a, SA, 16, 17, 1376*1024)
    a(f"s_lshl_b32 s{s_w}, s{s_fw}, 14")
    a(f"s_lshl_b32 s44, s{S_T2}, 1")
    a(f"s_and_b32 s45, s{s_fw}, 1")
    a("s_add_u32 s46, s44, s45")
    a("s_xor_b32 s47, s46, 1")
    for d, sx in ((s_h0, 46), (s_h1, 47)):
        a(f"s_mul_i32 s{d}, s{sx}, 86")
        a(f"s_add_u32 s{d}, s{d}, s{s_fw}")
        a(f"s_lshl_b32 s{d}, s{d}, 10")
        a(f"s_add_u32 s{d}, s{d}, {HF}")
    for q in range(4):
        for i in range(16):
            a(f"v_mov_b32 v{ACC[q]+i}, 0")
    a(f"s_cmp_eq_u32 s{s_fw}, 0")
    a("s_cbranch_scc0 L_dn_nopoll")
    a(f"s_lshr_b32 s44, s{S_T2}, 1")
    a("s_lshl_b32 s44, s44, 10")
    a(f"s_add_u32 s44, s44, {FH}")
    poll_flags(a, "dn", 44, t0, sleep=16)
    a.label("L_dn_nopoll")
    fbar(a, t0)
    st.stamp(10)
    def ld(slot):
        a(f"s_add_u32 m0, s{s_lb}, {slot*2048}")
        a(f"s_add_u32 s44, s{s_w}, 8192")
        a(f"buffer_load_dwordx4 v{vsrc}, s[{SA}:{SA+3}], s{s_w} offen lds")
        a("s_add_u32 m0, m0, 1024")
        a(f"s_add_u32 s{s_w}, s{s_w}, 65536")
        a(f"buffer_load_dwordx4 v{vsrc}, s[{SA}:{SA+3}], s44 offen lds")
        a(f"buffer_load_dwordx4 {v(HFR[slot][0],4)}, v1, s[{SWS}:{SWS+3}], s{s_h0} offen sc1")
        a(f"buffer_load_dwordx4 {v(HFR[slot][1],4)}, v1, s[{SWS}:{SWS+3}], s{s_h1} offen sc1")
        a(f"s_add_u32 s{s_h0}, s{s_h0}, 4096")
        a(f"s_add_u32 s{s_h1}, s{s_h1}, 4096")
    def step(slot, vm):
        a(f"s_waitcnt vmcnt({vm})")
        for n in range(2):
            a(f"ds_read_b64_tr_b16 {v(WF[n],2)}, v{wa[n]} offset:{slot*2048}")
            a(f"ds_read_b64_tr_b16 {v(WF[n]+2,2)}, v{wa[n]} offset:{slot*2048+1024}")
        for n in range(2):
            a(f"s_waitcnt lgkmcnt({2*(1-n)})")
            for t in range(2):
                a(f"{MF} {v(ACC[2*n+t],16)}, {v(WF[n],4)}, {v(HFR[slot][t],4)}, {v(ACC[2*n+t],16)}")
                pace(a, o)
    for d in range(DD): ld(d)
    a(f"s_mov_b32 s{s_i}, 3")
    a.label("L_dn_loop")
    for d in range(DD):
        step(d, 4*(DD-1))
        ld(d)
    a(f"s_sub_u32 s{s_i}, s{s_i}, 1")
    a(f"s_cmp_lg_u32 s{s_i}, 0")
    a("s_cbranch_scc1 L_dn_loop")
    step(0, 4*(DD-1)); ld(0)
    step(1, 4*(DD-1)); ld(1)
    step(2, 16); step(3, 12); step(4, 8); step(0, 4)
    a(f"s_cmp_ge_u32 s{s_fw}, 2")
    a("s_cbranch_scc1 L_dn_fin")
    step(1, 0)
    a.label("L_dn_fin")
    a("s_waitcnt vmcnt(0)")
    a("s_nop 7")
    a("s_nop 3")
    st.stamp(11)
    reduce4(a, ACC, s_fw, DXCH, t0, t0+1, False)
    if not o.fuse_tail:
        for i in range(8):
            a(f"v_cvt_pk_bf16_f32 v{ACC[1]+i}, v{ACC[0]+2*i}, v{ACC[0]+2*i+1}")
        a(f"s_lshl_b32 s44, s2, 2")
        a(f"s_add_u32 s44, s44, s{s_fw}")
        a("s_lshl_b32 s44, s44, 11")
        a(f"s_add_u32 s44, s44, {BF}")
        a(f"buffer_store_dwordx4 {v(ACC[1],4)}, v1, s[{SWS}:{SWS+3}], s44 offen")
        a(f"buffer_store_dwordx4 {v(ACC[1]+4,4)}, v1, s[{SWS}:{SWS+3}], s44 offen offset:1024")
    else:
        for i in range(16):
            a(f"v_mov_b32 v{V_B+i}, v{ACC[0]+i}")
    return R.hi

WOST = XST
def tail(a, o, st, standalone):
    s_fw, s_lb, s_o0, s_o1, s_T, s_nt = 50, 51, 52, 53, 54, 55
    R = Regs(4)
    t0 = R.alloc(4)
    vsrc = R.alloc(); wa = [R.alloc(), R.alloc()]; G = R.alloc()
    FO_ = [[R.alloc(4) for _ in range(2)] for _ in range(8)]
    ACC = [R.alloc(16) for _ in range(4)]
    WF = [R.alloc(4)]
    assert R.n <= V_B
    Bv = V_B
    WF += [160, 164]
    wost = 0 if standalone else WOST
    xch = 65536 if standalone else 0
    if standalone:
        a(f"s_mov_b32 s{s_fw}, s{S_WAVE}")
        tile_ids(a)
    a(f"s_lshl_b32 s{s_lb}, s{s_fw}, 14")
    a(f"s_add_u32 s{s_lb}, s{s_lb}, {wost}")
    wrow_addrs(a, t0, vsrc, wa[0], wa[1], s_fw, s_lb)
    a(f"s_lshl_b32 s44, s{S_T2}, 1")
    a(f"s_and_b32 s45, s{s_fw}, 1")
    a(f"s_add_u32 s{s_T}, s44, s45")
    a(f"s_lshl_b32 s44, s{S_N2}, 1")
    a(f"s_lshr_b32 s45, s{s_fw}, 1")
    a(f"s_add_u32 s{s_nt}, s44, s45")
    a(f"s_lshl_b32 s44, s{s_T}, 15")
    a(f"s_lshl_b32 s45, s{s_fw}, 13")
    a("s_add_u32 s44, s44, s45")
    a(f"s_add_u32 s{s_o0}, s44, {OF}")
    a(f"s_xor_b32 s{s_o1}, s{s_o0}, 32768")
    a(f"s_lshl_b32 s56, s{s_fw}, 17")
    if standalone:
        a("s_waitcnt lgkmcnt(0)")
        srd(a, SWS, 24, 25, WS_BYTES)
    srd(a, SA, 8, 9, 512*1024)
    sc = "" if standalone else " sc1"
    def ldw(i):
        for hf in range(2):
            a(f"s_add_u32 m0, s{s_lb}, {i*2048+hf*1024}")
            a("s_nop 0")
            a(f"buffer_load_dwordx4 v{vsrc}, s[{SA}:{SA+3}], s56 offen lds")
            a("s_add_u32 s56, s56, 8192")
    def ldo(i):
        a(f"buffer_load_dwordx4 {v(FO_[i][0],4)}, v1, s[{SWS}:{SWS+3}], s{s_o0} offen offset:{(i&3)*1024}{sc}")
        a(f"buffer_load_dwordx4 {v(FO_[i][1],4)}, v1, s[{SWS}:{SWS+3}], s{s_o1} offen offset:{(i&3)*1024}{sc}")
        if i == 3:
            a(f"s_add_u32 s{s_o0}, s{s_o0}, 4096")
            a(f"s_add_u32 s{s_o1}, s{s_o1}, 4096")
    def ldg():
        a(f"v_and_b32 v{t0}, 31, v0")
        a(f"v_lshlrev_b32 v{t0}, 2, v{t0}")
        a(f"s_lshl_b32 s44, s{s_T}, 7")
        a(f"s_add_u32 s44, s44, {GA}")
        a(f"buffer_load_dword v{G}, v{t0}, s[{SWS}:{SWS+3}], s44 offen{sc}")
    def step(i, vm):
        a(f"s_waitcnt vmcnt({vm})")
        for n in range(2):
            a(f"ds_read_b64_tr_b16 {v(WF[1+n],2)}, v{wa[n]} offset:{i*2048}")
            a(f"ds_read_b64_tr_b16 {v(WF[1+n]+2,2)}, v{wa[n]} offset:{i*2048+1024}")
        for n in range(2):
            a(f"s_waitcnt lgkmcnt({2*(1-n)})")
            for t in range(2):
                c = "0" if i == 0 else v(ACC[2*n+t],16)
                a(f"{MF} {v(ACC[2*n+t],16)}, {v(WF[1+n],4)}, {v(FO_[i][t],4)}, {c}")
    if standalone:
        a(f"s_lshl_b32 s44, s2, 2")
        a(f"s_add_u32 s44, s44, s{s_fw}")
        a("s_lshl_b32 s44, s44, 11")
        a(f"s_add_u32 s44, s44, {BF}")
        a(f"buffer_load_dwordx4 {v(Bv,4)}, v1, s[{SWS}:{SWS+3}], s44 offen")
        a(f"buffer_load_dwordx4 {v(Bv+4,4)}, v1, s[{SWS}:{SWS+3}], s44 offen offset:1024")
        ldg()
        for i in range(4):
            ldw(i); ldo(i)
        st.stamp(2)
        for i in range(8):
            step(i, 12 if i < 5 else 4*(7-i))
            if i == 0: st.stamp(3)
            if i < 4:
                ldw(i+4); ldo(i+4)
    else:
        fbar(a, t0)
        for i in range(8): ldw(i)
        ldg()
        a(f"s_cmp_eq_u32 s{s_fw}, 0")
        a("s_cbranch_scc0 L_tl_nopoll")
        a(f"s_lshl_b32 s44, s{S_T2}, 10")
        a(f"s_add_u32 s44, s44, {FO}")
        poll_flags(a, "tl", 44, t0+1, sleep=4)
        a.label("L_tl_nopoll")
        a("s_barrier")
        st.stamp(2)
        for i in range(8): ldo(i)
        for i in range(8):
            step(i, 2*(7-i))
            if i == 0: st.stamp(3)
    st.stamp(4)
    srd(a, SB, 20, 21, 2048*1024)
    a("s_nop 7")
    reduce4(a, ACC, s_fw, xch, t0, t0+1, True)
    T1 = ACC[1]
    if standalone:
        for i in range(8):
            a(f"v_lshlrev_b32 v{T1+2*i}, 16, v{Bv+i}")
            a(f"v_and_b32 v{T1+2*i+1}, 0xffff0000, v{Bv+i}")
        Bs = T1
    else:
        Bs = Bv
    a(f"v_sub_f32 v{t0+2}, 1.0, v{G}")
    for i in range(16):
        a(f"v_mul_f32 v{T1+i}, v{t0+2}, v{Bs+i}")
    for i in range(16):
        a(f"v_fmac_f32 v{T1+i}, v{G}, v{ACC[0]+i}")
    T2 = ACC[2]
    for i in range(8):
        a(f"v_cvt_pk_bf16_f32 v{T2+i}, v{T1+2*i}, v{T1+2*i+1}")
    a(f"v_and_b32 v{t0}, 31, v0")
    a(f"v_lshrrev_b32 v{t0+1}, 5, v0")
    a(f"v_lshlrev_b32 v{t0+1}, 4, v{t0+1}")
    a(f"v_lshl_add_u32 v{t0}, v{t0}, 10, v{t0+1}")
    a(f"s_lshl_b32 s44, s{s_T}, 15")
    a(f"s_lshl_b32 s45, s{s_nt}, 6")
    a("s_add_u32 s44, s44, s45")
    for p in range(2):
        b = T2 + 4*p
        a(f"v_permlane32_swap_b32 v{b}, v{b+2}")
        a(f"v_permlane32_swap_b32 v{b+1}, v{b+3}")
    a("s_nop 1")
    a(f"buffer_store_dwordx4 {v(T2,4)}, v{t0}, s[{SB}:{SB+3}], s44 offen")
    a(f"buffer_store_dwordx4 {v(T2+4,4)}, v{t0}, s[{SB}:{SB+3}], s44 offen offset:32")
    finish(a, st)
    return 168

def build(o, path):
    a = Asm()
    a('.amdgcn_target "amdgcn-amd-amdhsa--gfx950"')
    a(".text")
    launches = []; descs = []
    kidx = 0
    if not o.fuse_head:
        st = Stamper(a, o.instr, kidx); kidx += 1
        prologue(a, "ka_kernel", st)
        a(f"s_cmp_ge_u32 s{S_WAVE}, 8")
        a("s_cbranch_scc1 L_A_comp")
        phaseA_loader(a, o, st)
        finish(a, st)
        a.label("L_A_comp")
        nv = phaseA_compute(a, o, st)
        finish(a, st)
        launches.append(("ka_kernel", 768, LDS_TOTAL)); descs.append(kernel_desc("ka_kernel", nv))
    st = Stamper(a, o.instr, kidx); kidx += 1
    main = "kb_kernel"
    prologue(a, main, st)
    a(f"s_cmp_ge_u32 s{S_WAVE}, 8")
    a("s_cbranch_scc1 L_B_f")
    hi = []
    if o.fuse_head:
        phaseA_loader(a, o, Stamper(a, False, 0))
    else:
        a("s_waitcnt lgkmcnt(0)")
        srd(a, SWS, 24, 25, WS_BYTES)
        a("s_barrier")
    hi.append(attention(a, o, st))
    a.label("L_B_f")
    if o.fuse_head:
        hi.append(phaseA_compute(a, o, st))
    else:
        a("s_waitcnt lgkmcnt(0)")
        srd(a, SWS, 24, 25, WS_BYTES)
        a(f"s_cmp_eq_u32 s{S_WAVE}, 8")
        a("s_cbranch_scc0 L_B_nn")
        a("v_mov_b32 v4, 0")
        init_misc(a, 4)
        a.label("L_B_nn")
        a("s_barrier")
        a(f"s_cmp_eq_u32 s{S_WAVE}, 8")
        a("s_cbranch_scc0 L_B_nn2")
        make_nonce(a, "B", 4)
        a.label("L_B_nn2")
    if o.no_ffn:
        a("s_endpgm")
    hi.append(ffn_up(a, o, st))
    hi.append(ffn_down(a, o, st))
    if o.fuse_tail:
        hi.append(tail(a, o, st, False))
    else:
        finish(a, st)
    launches.append((main, 768, LDS_TOTAL)); descs.append(kernel_desc(main, max(hi)))
    print("vgprs", hi)
    if not o.fuse_tail:
        st = Stamper(a, o.instr, kidx); kidx += 1
        prologue(a, "kc_kernel", st)
        nv = tail(a, o, st, True)
        launches.append(("kc_kernel", 256, 65536 + 49152)); descs.append(kernel_desc("kc_kernel", nv))
    a('.section .rodata,"a"')
    hdr = "; generated by gen/gen2.py\n" + "".join(f"; @launch kernel={n} grid=(256,1,1) block=({b},1,1) lds={l}\n" for n, b, l in launches)
    open(path, "w").write(hdr + a.text() + "".join(descs))

if __name__ == "__main__":
    o = Opt()
    path = sys.argv[1]
    for arg in sys.argv[2:]:
        k, _, val = arg.partition("=")
        setattr(Opt, k, int(val) if val else True)
    build(o, path)
```

```python
class Asm:
    def __init__(self):
        self.lines = []
        self.uid = 0
    def __call__(self, s=""):
        for l in s.split("\n"):
            l = l.strip()
            if not l:
                continue
            if l.endswith(":") or l.startswith("."):
                self.lines.append(l)
            else:
                self.lines.append("    " + l)
    def label(self, name):
        self.lines.append(name + ":")
    def newlabel(self, base):
        self.uid += 1
        return f"L_{base}_{self.uid}"
    def text(self):
        return "\n".join(self.lines) + "\n"

def v(n, cnt=1):
    return f"v{n}" if cnt == 1 else f"v[{n}:{n+cnt-1}]"
def s(n, cnt=1):
    return f"s{n}" if cnt == 1 else f"s[{n}:{n+cnt-1}]"

class Regs:
    def __init__(self, start=0):
        self.n = start
        self.hi = start
    def alloc(self, cnt=1, align=None):
        if align is None:
            align = 1 if cnt == 1 else (2 if cnt == 2 else 4)
        self.n = (self.n + align - 1) // align * align
        r = self.n
        self.n += cnt
        self.hi = max(self.hi, self.n)
        return r

def kernel_header(a, name):
    a(f".globl {name}")
    a(".p2align 8")
    a(f".type {name},@function")
    a.label(name)

def kernel_desc(name, vgprs, sgprs=96):
    nv = (vgprs + 7) // 8 * 8
    acc = (vgprs + 3) // 4 * 4
    acc = min(max(acc, 4), 256)
    return f""".p2align 6
.amdhsa_kernel {name}
  .amdhsa_next_free_vgpr {nv}
  .amdhsa_next_free_sgpr {sgprs}
  .amdhsa_accum_offset {min(nv,256)}
  .amdhsa_group_segment_fixed_size 0
  .amdhsa_kernarg_size 88
  .amdhsa_user_sgpr_count 2
  .amdhsa_user_sgpr_kernarg_segment_ptr 1
  .amdhsa_system_sgpr_workgroup_id_x 1
.end_amdhsa_kernel
"""

def f32bits(x):
    import struct
    return "0x%08x" % struct.unpack("<I", struct.pack("<f", x))[0]

STAMP_BASE = 24 << 20
class Stamper:
    rt = False
    def __init__(self, a, enabled, kidx):
        self.a, self.en, self.k = a, enabled, kidx
    def stamp(self, i):
        if not self.en: return
        self.a(f"{'s_memrealtime' if Stamper.rt else 's_memtime'} s[{70+2*i}:{71+2*i}]")
    def real(self, i):
        if not self.en: return
        self.a(f"s_memrealtime s[{70+2*i}:{71+2*i}]")
    def init(self):
        if not self.en: return
        for i in range(70, 94):
            self.a(f"s_mov_b32 s{i}, 0")
    def flush(self, srd, s_wave, vtmp=2):
        if not self.en: return
        a = self.a
        a("s_waitcnt lgkmcnt(0) vmcnt(0)")
        a("s_mov_b64 exec, 1")
        a(f"s_lshl_b32 s94, s2, 4")
        a(f"s_add_u32 s94, s94, s{s_wave}")
        a(f"s_lshl_b32 s94, s94, 6")
        a(f"s_add_u32 s94, s94, {STAMP_BASE + self.k*(1<<20)}")
        a(f"v_mov_b32 v{vtmp+1}, 0")
        for i in range(12):
            a(f"v_mov_b32 v{vtmp}, s{70+2*i}")
            a(f"buffer_store_dword v{vtmp}, v{vtmp+1}, s[{srd}:{srd+3}], s94 offen offset:{4*i}")
            a("s_nop 1")


def reporter(a, kidx, wave, idx, K=20, stat="max"):
    kernel_header(a, "rep_kernel")
    a("s_cmp_ge_u32 s2, 1")
    a("s_cbranch_scc1 L_rep_end")
    a("s_load_dwordx2 s[4:5], s[0:1], 80")
    a("v_lshlrev_b32 v1, 10, v0")
    a("s_waitcnt lgkmcnt(0)")
    a("s_mov_b32 s8, s4"); a("s_and_b32 s9, s5, 0xffff"); a(f"s_mov_b32 s10, {32<<20}"); a("s_mov_b32 s11, 0x20000")
    for j in range(4):
        a(f"s_mov_b32 s12, {STAMP_BASE + kidx*(1<<20) + j*65536 + wave*64 + idx*4}")
        a(f"buffer_load_dword v{2+j}, v1, s[8:11], s12 offen")
        a(f"s_mov_b32 s13, {STAMP_BASE + j*65536}")
        a(f"buffer_load_dword v{6+j}, v1, s[8:11], s13 offen")
    a("s_waitcnt vmcnt(0)")
    a("v_readfirstlane_b32 s14, v6")
    a("s_sub_u32 s14, s14, 100000")
    for j in range(8):
        a(f"v_subrev_u32 v{2+j}, s14, v{2+j}")
    op = "v_max_u32" if stat == "max" else "v_min_u32"
    a(f"{op} v2, v2, v3"); a(f"{op} v4, v4, v5"); a(f"{op} v2, v2, v4")
    a("v_min_u32 v6, v6, v7"); a("v_min_u32 v8, v8, v9"); a("v_min_u32 v6, v6, v8")
    a("s_nop 1")
    a("v_readlane_b32 s16, v2, 0"); a("v_readlane_b32 s17, v6, 0")
    sop = "s_max_u32" if stat == "max" else "s_min_u32"
    for l in range(1, 64):
        a(f"v_readlane_b32 s18, v2, {l}"); a(f"v_readlane_b32 s19, v6, {l}")
        a("s_nop 1")
        a(f"{sop} s16, s16, s18"); a("s_min_u32 s17, s17, s19")
    a("s_sub_u32 s16, s16, s17")
    a("s_min_u32 s16, s16, 20000")
    a(f"s_mul_i32 s16, s16, {K}")
    a("s_memrealtime s[20:21]")
    a("s_waitcnt lgkmcnt(0)")
    a.label("L_rep_spin")
    a("s_memrealtime s[22:23]")
    a("s_waitcnt lgkmcnt(0)")
    a("s_sub_u32 s24, s22, s20")
    a("s_cmp_lt_u32 s24, s16")
    a("s_cbranch_scc1 L_rep_spin")
    a.label("L_rep_end")
    a("s_endpgm")
```

```python
import math, sys
from asmlib import *

MB = 1 << 20
QF, KF, VF, OF, HF, GA, BF, FLG = 0, 2*MB, 4*MB, 6*MB, 8*MB, 14*MB, 15*MB, 17*MB
FQ = FLG
FH = FLG + 0x4000
FO = FLG + 0x8000
W0 = FLG + 0x10000
WS_BYTES = 32*MB
LOG2E = 1.4426950408889634
QSCALE = 0.25 * LOG2E
LDS_TOTAL = 163840

RING = 0
XST = 65536
WST = 98304
WIMG = 12288 + 32
WSLOT = 24832
MISC = LDS_TOTAL - 256
L_NONCE = MISC
L_ATT = MISC + 4
L_FB = MISC + 8
L_GO = MISC + 12
L_PAIR = MISC + 16

S_WAVE, S_NONCE = 26, 27
SWS, SA, SB, SC = 28, 32, 36, 40
S_XCD, S_LOC = 3, 69

class Opt:
    instr = False
    fuse_head = False
    fuse_tail = False
    fprio = 1
    fpace = 0
    no_ffn = False
    report = None
    fsleep = 1

def srd(a, d, lo, hi, nbytes):
    a(f"s_mov_b32 s{d}, s{lo}")
    a(f"s_and_b32 s{d+1}, s{hi}, 0xffff")
    a(f"s_mov_b32 s{d+2}, {nbytes}")
    a(f"s_mov_b32 s{d+3}, 0x20000")

def srd_off(a, d, lo, hi, s_off, total):
    a(f"s_add_u32 s{d}, s{lo}, s{s_off}")
    a(f"s_addc_u32 s{d+1}, s{hi}, 0")
    a(f"s_and_b32 s{d+1}, s{d+1}, 0xffff")
    a(f"s_sub_u32 s{d+2}, {total}, s{s_off}")
    a(f"s_mov_b32 s{d+3}, 0x20000")

MF = "v_mfma_f32_32x32x16_bf16"

def prologue(a, name, st):
    kernel_header(a, name)
    a("s_cmp_ge_u32 s2, 256")
    a(f"s_cbranch_scc0 L_{name}_go")
    a("s_endpgm")
    a.label(f"L_{name}_go")
    st.init(); st.real(0); st.stamp(1)
    a("s_load_dwordx16 s[4:19], s[0:1], 0")
    a("s_load_dwordx4 s[20:23], s[0:1], 64")
    a("s_load_dwordx2 s[24:25], s[0:1], 80")
    a("v_lshrrev_b32 v1, 6, v0")
    a("v_and_b32 v0, 63, v0")
    a(f"s_and_b32 s{S_XCD}, s2, 7")
    a(f"v_readfirstlane_b32 s{S_WAVE}, v1")
    a(f"s_lshr_b32 s{S_LOC}, s2, 3")
    a("v_lshlrev_b32 v1, 4, v0")

def finish(a, st):
    st.stamp(5)
    if st.en: a("s_waitcnt vmcnt(0)")
    st.stamp(6); st.real(7); st.flush(SWS, S_WAVE)
    a("s_endpgm")

def make_nonce(a, tag, vt):
    a("s_cmp_eq_u32 s2, 0")
    a(f"s_cbranch_scc0 L_{tag}_mk")
    srd(a, SC, 22, 23, 256)
    a(f"s_mov_b32 s44, {W0}")
    a("s_mov_b64 exec, 1")
    a(f"buffer_load_dword v{vt}, off, s[{SWS}:{SWS+3}], s44 sc1")
    a("s_mov_b32 s45, 0x19660d")
    a("s_waitcnt vmcnt(0)")
    a(f"v_mul_lo_u32 v{vt}, v{vt}, s45")
    a(f"v_add_u32 v{vt}, 0x3c6ef35f, v{vt}")
    a(f"v_max_u32 v{vt}, 1, v{vt}")
    a(f"buffer_store_dword v{vt}, off, s[{SC}:{SC+3}], 0 sc1")
    a(f"buffer_store_dword v{vt}, off, s[{SWS}:{SWS+3}], s44 sc1")
    a("s_mov_b64 exec, -1")
    a.label(f"L_{tag}_mk")

def get_nonce(a, tag, vt):
    srd(a, SC, 22, 23, 256)
    a("s_mov_b32 s68, 0")
    a.label(f"L_{tag}_np")
    a(f"buffer_load_dword v{vt}, off, s[{SC}:{SC+3}], 0 sc1")
    a("s_add_u32 s68, s68, 1")
    a("s_waitcnt vmcnt(0)")
    a(f"v_cmp_eq_u32 vcc, 0, v{vt}")
    a("s_cmp_gt_u32 s68, 200000")
    a(f"s_cbranch_scc1 L_{tag}_ng")
    a(f"s_cbranch_vccz L_{tag}_ng")
    a("s_sleep 8")
    a(f"s_branch L_{tag}_np")
    a.label(f"L_{tag}_ng")

def init_misc(a, vt):
    a(f"v_mov_b32 v{vt+1}, 0")
    a(f"v_readfirstlane_b32 s44, v{vt}")
    a(f"v_lshlrev_b32 v{vt+2}, 2, v0")
    a(f"v_add_u32 v{vt+2}, {MISC}, v{vt+2}")
    a(f"v_writelane_b32 v{vt+1}, s44, 0")
    a(f"ds_write_b32 v{vt+2}, v{vt+1}")
    a("s_waitcnt lgkmcnt(0)")

def read_nonce(a, vt):
    a(f"v_mov_b32 v{vt}, {L_NONCE}")
    a(f"ds_read_b32 v{vt}, v{vt}")
    a("s_waitcnt lgkmcnt(0)")
    a(f"v_readfirstlane_b32 s{S_NONCE}, v{vt}")

def post_flag(a, s_off, vt):
    a(f"v_mov_b32 v{vt}, s{S_NONCE}")
    a("s_waitcnt vmcnt(0)")
    a("s_mov_b64 exec, 1")
    a(f"buffer_store_dword v{vt}, off, s[{SWS}:{SWS+3}], s{s_off} sc1")
    a("s_mov_b64 exec, -1")

def poll_flags(a, tag, s_off, vt, sleep=4):
    a("s_mov_b32 s68, 0")
    a.label(f"L_{tag}_poll")
    a(f"buffer_load_dword v{vt}, v1, s[{SWS}:{SWS+3}], s{s_off} offen sc1")
    a("s_add_u32 s68, s68, 1")
    a("s_waitcnt vmcnt(0)")
    a(f"v_cmp_ne_u32 vcc, s{S_NONCE}, v{vt}")
    a("s_cmp_gt_u32 s68, 200000")
    a(f"s_cbranch_scc1 L_{tag}_got")
    a(f"s_cbranch_vccz L_{tag}_got")
    a(f"s_sleep {sleep}")
    a(f"s_branch L_{tag}_poll")
    a.label(f"L_{tag}_got")

def lds_wait_ge(a, tag, vaddr, off, s_target, vt, sleep=1):
    a("s_mov_b32 s68, 0")
    a.label(f"L_{tag}_spin")
    a(f"ds_read_b32 v{vt}, v{vaddr} offset:{off}")
    a("s_add_u32 s68, s68, 1")
    a("s_waitcnt lgkmcnt(0)")
    a(f"v_cmp_gt_u32 vcc, {s_target}, v{vt}")
    a("s_cmp_gt_u32 s68, 2000000")
    a(f"s_cbranch_scc1 L_{tag}_ok")
    a(f"s_cbranch_vccz L_{tag}_ok")
    a(f"s_sleep {sleep}")
    a(f"s_branch L_{tag}_spin")
    a.label(f"L_{tag}_ok")

def lds_arrive(a, vaddr, off, vone):
    a("s_mov_b64 exec, 1")
    a(f"ds_add_u32 v{vaddr}, v{vone} offset:{off}")
    a("s_mov_b64 exec, -1")

A_SLOT = 32768
def phaseA_ids(a, s_tb, s_hg):
    a(f"s_and_b32 s44, s{S_XCD}, 3")
    a("s_lshl_b32 s44, s44, 3")
    a(f"s_and_b32 s45, s{S_LOC}, 7")
    a(f"s_add_u32 s{s_tb}, s44, s45")
    a(f"s_lshr_b32 s44, s{S_XCD}, 2")
    a("s_lshl_b32 s44, s44, 2")
    a(f"s_lshr_b32 s45, s{S_LOC}, 3")
    a(f"s_add_u32 s{s_hg}, s44, s45")

def phaseA_loader(a, o, st):
    s_tb, s_hg, s_xoff, s_woff, s_slot, s_cnt, s_lx, s_lw = 48, 49, 50, 51, 52, 53, 54, 55
    phaseA_ids(a, s_tb, s_hg)
    a("v_lshrrev_b32 v2, 3, v0")
    a("v_and_b32 v3, 7, v0")
    a("v_lshrrev_b32 v4, 1, v2")
    a(f"s_and_b32 s44, s{S_WAVE}, 1")
    a("s_lshl_b32 s44, s44, 2")
    a("v_or_b32 v4, s44, v4")
    a("v_xor_b32 v3, v3, v4")
    a("v_lshlrev_b32 v3, 4, v3")
    a(f"s_lshl_b32 s44, s{s_tb}, 6")
    a(f"s_lshl_b32 s45, s{S_WAVE}, 3")
    a("s_add_u32 s44, s44, s45")
    a("v_add_u32 v2, s44, v2")
    a("v_lshl_add_u32 v10, v2, 10, v3")
    a("s_movk_i32 s46, 2731")
    a("s_movk_i32 s47, 3072")
    a(f"s_lshl_b32 s44, s{s_hg}, 7")
    for j in range(3):
        a(f"v_add_u32 v2, {64*j}, v0")
        a("v_mul_u32_u24 v3, s46, v2")
        a("v_lshrrev_b32 v3, 16, v3")
        a("v_mul_u32_u24 v4, 24, v3")
        a("v_sub_u32 v4, v2, v4")
        a("v_lshrrev_b32 v5, 3, v4")
        a("v_and_b32 v4, 7, v4")
        a("v_lshlrev_b32 v6, 1, v3")
        a("v_and_b32 v6, 4, v6")
        a("v_xor_b32 v4, v4, v6")
        a("v_lshlrev_b32 v4, 4, v4")
        a("v_lshl_add_u32 v4, v5, 10, v4")
        a("v_add_u32 v3, s45, v3")
        a("v_mad_u32_u24 v4, v3, s47, v4")
        a(f"v_add_u32 v{11+j}, s44, v4")
    a(f"s_lshl_b32 s{s_lx}, s{S_WAVE}, 10")
    a(f"s_mul_i32 s{s_lw}, s{S_WAVE}, 3072")
    a(f"s_add_u32 s{s_lw}, s{s_lw}, 8192")
    a(f"s_mov_b32 s{s_xoff}, 0")
    a(f"s_mov_b32 s{s_woff}, 0")
    a(f"s_mov_b32 s{s_slot}, 0")
    a(f"s_mov_b32 s{s_cnt}, 0")
    a("s_waitcnt lgkmcnt(0)")
    srd(a, SA, 4, 5, 2048*1024)
    srd(a, SB, 6, 7, 512*3072)
    def issue():
        a(f"s_add_u32 m0, s{s_slot}, s{s_lx}")
        a(f"s_add_u32 s44, s{s_slot}, s{s_lw}")
        a(f"buffer_load_dwordx4 v10, s[{SA}:{SA+3}], s{s_xoff} offen lds")
        for j in range(3):
            a(f"s_add_u32 m0, s44, {1024*j}")
            if j == 0: a(f"s_add_u32 s{s_xoff}, s{s_xoff}, 128")
            else: a("s_nop 0")
            a(f"buffer_load_dwordx4 v{11+j}, s[{SB}:{SB+3}], s{s_woff} offen lds")
        a(f"s_add_u32 s{s_woff}, s{s_woff}, {64*3072}")
        a(f"s_add_u32 s{s_slot}, s{s_slot}, {A_SLOT}")
    a.label("L_A_ld0")
    issue()
    a(f"s_add_u32 s{s_cnt}, s{s_cnt}, 1")
    a(f"s_cmp_lt_u32 s{s_cnt}, 5")
    a("s_cbranch_scc1 L_A_ld0")
    srd(a, SWS, 24, 25, WS_BYTES)
    a(f"s_mov_b32 s{s_slot}, 0")
    a("s_waitcnt vmcnt(16)")
    st.stamp(2)
    a("s_barrier")
    a.label("L_A_ld1")
    a("s_waitcnt vmcnt(12)")
    a("s_barrier")
    issue()
    a(f"s_add_u32 s{s_cnt}, s{s_cnt}, 1")
    a(f"s_cmp_lt_u32 s{s_cnt}, 8")
    a("s_cbranch_scc1 L_A_ld1")
    a("s_waitcnt vmcnt(12)")
    a("s_barrier")
    a("s_waitcnt vmcnt(8)")
    a("s_barrier")
    a("s_waitcnt vmcnt(4)")
    a("s_barrier")
    a("s_waitcnt vmcnt(0)")
    a("s_barrier")

def phaseA_compute(a, o, st):
    s_tb, s_hg, s_stage, s_delta = 48, 49, 50, 51
    phaseA_ids(a, s_tb, s_hg)
    R = Regs(8)
    xaddr = [R.alloc() for _ in range(4)]
    waddr = R.alloc()
    XF = [R.alloc(4) for _ in range(2)]
    WF = [[R.alloc(4) for _ in range(3)] for _ in range(2)]
    ACC = [R.alloc(16) for _ in range(3)]
    TMP = R.alloc(24)
    a("v_and_b32 v2, 31, v0")
    a("v_lshrrev_b32 v3, 5, v0")
    a("v_bfe_u32 v4, v2, 1, 3")
    a("v_xor_b32 v4, v4, v3")
    a("v_lshlrev_b32 v4, 4, v4")
    a(f"s_and_b32 s44, s{S_WAVE}, 1")
    a("s_lshl_b32 s45, s44, 5")
    a("v_add_u32 v2, s45, v2")
    a("v_lshlrev_b32 v2, 7, v2")
    for kk in range(4):
        a(f"v_xor_b32 v5, {kk*32}, v4")
        a(f"v_add_u32 v{xaddr[kk]}, v2, v5")
    a("v_bfe_u32 v4, v0, 2, 2")
    a("v_lshl_add_u32 v5, v3, 3, v4")
    a("v_mul_u32_u24 v5, 384, v5")
    a("v_bfe_u32 v6, v0, 4, 1")
    a("v_lshlrev_b32 v6, 5, v6")
    a("v_and_b32 v7, 3, v0")
    a("v_lshl_add_u32 v6, v7, 3, v6")
    a(f"s_bfe_u32 s46, s{S_WAVE}, 0x10001")
    a("s_lshl_b32 s47, s46, 6")
    a("v_add_u32 v6, s47, v6")
    a("v_lshlrev_b32 v4, 5, v4")
    a("v_and_b32 v4, 64, v4")
    a("v_xor_b32 v6, v6, v4")
    a("v_add_u32 v5, v5, v6")
    a(f"v_add_u32 v{waddr}, 8192, v5")
    for u in range(3):
        for i in range(16):
            a(f"v_mov_b32 v{ACC[u]+i}, 0")
    a(f"s_lshl_b32 s52, s{s_tb}, 1")
    a("s_add_u32 s52, s52, s44")
    a(f"s_lshl_b32 s53, s{s_hg}, 1")
    a("s_add_u32 s53, s53, s46")
    a(f"s_mov_b32 s{s_stage}, 0")
    a("s_waitcnt lgkmcnt(0)")
    srd(a, SWS, 24, 25, WS_BYTES)
    if o.fuse_head:
        a(f"s_cmp_eq_u32 s{S_WAVE}, 8")
        a("s_cbranch_scc0 L_A_nn")
        make_nonce(a, "A", TMP)
        a.label("L_A_nn")
    def rd(kk, buf):
        a(f"ds_read_b128 {v(XF[buf],4)}, v{xaddr[kk]}")
        for p in range(3):
            off = kk*16*384 + p*128
            a(f"ds_read_b64_tr_b16 {v(WF[buf][p],2)}, v{waddr} offset:{off}")
            a(f"ds_read_b64_tr_b16 {v(WF[buf][p]+2,2)}, v{waddr} offset:{off+4*384}")
    def mm(buf):
        a(f"{MF} {v(ACC[0],16)}, {v(WF[buf][0],4)}, {v(XF[buf],4)}, {v(ACC[0],16)}")
        a(f"{MF} {v(ACC[1],16)}, {v(WF[buf][1],4)}, {v(XF[buf],4)}, {v(ACC[1],16)}")
        a(f"{MF} {v(ACC[2],16)}, {v(XF[buf],4)}, {v(WF[buf][2],4)}, {v(ACC[2],16)}")
    st.stamp(2)
    a("s_barrier")
    st.stamp(3)
    if st.en: a("s_waitcnt lgkmcnt(0)")
    rd(0, 0)
    a.label("L_A_loop")
    for kk in range(3):
        rd(kk+1, (kk+1) & 1)
        a("s_waitcnt lgkmcnt(7)")
        mm(kk & 1)
    a(f"s_add_u32 s{s_stage}, s{s_stage}, 1")
    a(f"s_cmp_eq_u32 s{s_stage}, 5")
    a(f"s_mov_b32 s44, {A_SLOT}")
    a(f"s_mov_b32 s45, {(-4*A_SLOT) & 0xffffffff}")
    a(f"s_cselect_b32 s{s_delta}, s45, s44")
    for r in xaddr + [waddr]:
        a(f"v_add_u32 v{r}, s{s_delta}, v{r}")
    a("s_waitcnt lgkmcnt(0)")
    a(f"s_cmp_eq_u32 s{s_stage}, 8")
    a("s_cbranch_scc1 L_A_tail")
    if o.fuse_head:
        a(f"s_cmp_eq_u32 s{s_stage}, 6")
        a("s_cbranch_scc0 L_A_nm")
        a(f"s_cmp_eq_u32 s{S_WAVE}, 8")
        a("s_cbranch_scc0 L_A_nm")
        get_nonce(a, "A", TMP)
        init_misc(a, TMP)
        a.label("L_A_nm")
    a("s_barrier")
    rd(0, 0)
    mm(1)
    a("s_branch L_A_loop")
    a.label("L_A_tail")
    mm(1)
    st.stamp(4)
    if o.fuse_head:
        read_nonce(a, 2)
    sc = " sc1" if o.fuse_head else ""
    a("s_lshl_b32 s44, s53, 17")
    a("s_lshl_b32 s45, s52, 10")
    a("s_add_u32 s44, s44, s45")
    a("s_add_u32 s45, s44, 65536")
    a(f"s_add_u32 s46, s44, {KF}")
    a(f"s_add_u32 s47, s45, {KF}")
    a(f"s_add_u32 s54, s44, {VF}")
    a(f"s_mov_b32 s56, {f32bits(QSCALE)}")
    a("s_mov_b32 s57, s56")
    a("v_and_b32 v2, 15, v0")
    a("v_lshlrev_b32 v2, 4, v2")
    a("v_lshrrev_b32 v3, 5, v0")
    a("v_lshl_add_u32 v2, v3, 8, v2")
    a("v_bfe_u32 v3, v0, 4, 1")
    a("v_lshl_add_u32 v2, v3, 16, v2")
    a("s_nop 3")
    for half in range(2):
        t = TMP + 4*half
        src = ACC[1] + 8*half
        for i in range(4):
            a(f"v_cvt_pk_bf16_f32 v{t+i}, v{src+2*i}, v{src+2*i+1}")
        a(f"buffer_store_dwordx4 {v(t,4)}, v1, s[{SWS}:{SWS+3}], s{46+half} offen{sc}")
    for half in range(2):
        t = TMP + 8 + 4*half
        src = ACC[2] + 8*half
        for i in range(4):
            a(f"v_cvt_pk_bf16_f32 v{t+i}, v{src+2*i}, v{src+2*i+1}")
        a(f"buffer_store_dwordx4 {v(t,4)}, v2, s[{SWS}:{SWS+3}], s54 offen offset:{half*512}{sc}")
    for half in range(2):
        t = TMP + 16 + 4*half
        src = ACC[0] + 8*half
        for i in range(4):
            a(f"v_pk_mul_f32 {v(src+2*i,2)}, {v(src+2*i,2)}, s[56:57]")
        for i in range(4):
            a(f"v_cvt_pk_bf16_f32 v{t+i}, v{src+2*i}, v{src+2*i+1}")
        a(f"buffer_store_dwordx4 {v(t,4)}, v1, s[{SWS}:{SWS+3}], s{44+half} offen{sc}")
    if o.fuse_head:
        a("s_lshl_b32 s44, s53, 10")
        a("s_lshl_b32 s45, s52, 4")
        a("s_add_u32 s44, s44, s45")
        a(f"s_add_u32 s44, s44, {FQ}")
        post_flag(a, 44, 2)
    return R.hi

class LQ:
    def __init__(self): self.q = []
    def push(self, tag): self.q.append(tag)
    def need(self, tag):
        if tag not in self.q: return None
        i = len(self.q) - 1 - self.q[::-1].index(tag)
        n = len(self.q) - 1 - i
        self.q = self.q[i+1:]
        return n

def attention(a, o, st):
    s_head, s_T, s_c, s_kg, s_vg, s_ld, s_tgt = 48, 49, 50, 51, 52, 53, 54
    EM = 56
    R = Regs(2)
    vt = R.alloc(); vt2 = R.alloc()
    kaddr = R.alloc(); vaddr = R.alloc(); vmisc = R.alloc(); vone = R.alloc(); vcnt = R.alloc()
    Q = [R.alloc(4), R.alloc(4)]; KR = R.alloc(4); V0 = R.alloc(4); V1 = R.alloc(4)
    P = R.alloc(8); S = [R.alloc(16), R.alloc(16)]
    O = [R.alloc(16), R.alloc(16)]; C = [R.alloc(16), R.alloc(16)]
    sc = " sc1" if o.fuse_head else ""
    a(f"s_lshl_b32 s44, s{S_XCD}, 2")
    a(f"s_and_b32 s45, s{S_LOC}, 3")
    a(f"s_add_u32 s{s_head}, s44, s45")
    a(f"s_lshr_b32 s44, s{S_LOC}, 2")
    a("s_lshl_b32 s44, s44, 3")
    a(f"s_and_b32 s45, s{S_WAVE}, 3")
    a("s_lshl_b32 s45, s45, 1")
    a("s_add_u32 s44, s44, s45")
    a(f"s_lshr_b32 s46, s{S_WAVE}, 2")
    a(f"s_add_u32 s{s_T}, s44, s46")
    a(f"v_mov_b32 v{vmisc}, {MISC}")
    a(f"v_mov_b32 v{vone}, 1")
    a(f"s_mov_b32 s{EM}, 0xffff")
    a(f"s_mov_b32 s{EM+1}, 0xffff")
    a(f"s_lshl_b32 s44, s{s_head}, 16")
    a(f"s_lshl_b32 s{s_ld}, s{S_WAVE}, 10")
    a(f"s_add_u32 s{s_kg}, s44, s{s_ld}")
    a(f"s_add_u32 s{s_vg}, s{s_kg}, {VF}")
    a(f"s_add_u32 s{s_kg}, s{s_kg}, {KF}")
    a(f"s_lshl_b32 s45, s{s_T}, 10")
    a("s_add_u32 s58, s44, s45")
    a("s_xor_b32 s59, s58, 1024")
    a("s_lshl_b32 s46, s46, 12")
    a(f"v_add_u32 v{kaddr}, s46, v1")
    a(f"v_and_b32 v{vt}, 15, v0")
    a(f"v_lshlrev_b32 v{vt}, 4, v{vt}")
    a(f"v_lshrrev_b32 v{vt2}, 5, v0")
    a(f"v_lshl_add_u32 v{vt}, v{vt2}, 8, v{vt}")
    a("s_add_u32 s46, s46, 8192")
    a(f"v_add_u32 v{vaddr}, s46, v{vt}")
    a(f"v_and_b32 v{vt}, 27, v0")
    a(f"v_cmp_eq_u32 vcc, 16, v{vt}")
    a(f"v_mov_b32 v{vt2}, 0x3f803f80")
    a("s_nop 0")
    for i in range(4):
        a(f"v_cndmask_b32 v{V0+i}, 0, v{vt2}, vcc")
        a(f"v_cndmask_b32 v{V1+i}, 0, v{vt2}, vcc")
    for q in range(2):
        for i in range(16):
            a(f"v_mov_b32 v{O[q]+i}, 0")
    for i in range(8):
        a(f"v_mov_b32 v{P+i}, 0")
    if o.fuse_head:
        read_nonce(a, vt)
        a(f"s_cmp_eq_u32 s{S_WAVE}, 0")
        a("s_cbranch_scc0 L_at_waitgo")
        a(f"s_lshr_b32 s44, s{s_head}, 1")
        a("s_lshl_b32 s44, s44, 10")
        a(f"s_add_u32 s44, s44, {FQ}")
        poll_flags(a, "atq", 44, vt)
        a(f"ds_write_b32 v{vmisc}, v{vone} offset:{L_GO-MISC}")
        a("s_branch L_at_go")
        a.label("L_at_waitgo")
        lds_wait_ge(a, "atgo", vmisc, L_GO-MISC, "1", vt)
        a.label("L_at_go")
    st.stamp(2)
    def dma(slot_expr_lit=None, s_slot=None):
        if slot_expr_lit is not None:
            a(f"s_add_u32 m0, s{s_ld}, {slot_expr_lit}")
            a("s_nop 0")
        else:
            a(f"s_add_u32 m0, s{s_ld}, s{s_slot}")
            a("s_nop 0")
        a(f"buffer_load_dwordx4 v1, s[{SWS}:{SWS+3}], s{s_kg} offen{sc} lds")
        a("s_add_u32 m0, m0, 8192")
        a(f"s_add_u32 s{s_kg}, s{s_kg}, 8192")
        a(f"buffer_load_dwordx4 v1, s[{SWS}:{SWS+3}], s{s_vg} offen{sc} lds")
        a(f"s_add_u32 s{s_vg}, s{s_vg}, 8192")
    a(f"buffer_load_dwordx4 {v(Q[0],4)}, v1, s[{SWS}:{SWS+3}], s58 offen{sc}")
    a(f"buffer_load_dwordx4 {v(Q[1],4)}, v1, s[{SWS}:{SWS+3}], s59 offen{sc}")
    dma(0); dma(16384); dma(32768)
    a("s_waitcnt vmcnt(4)")
    lds_arrive(a, vmisc, L_ATT-MISC, vone)
    lds_wait_ge(a, "at0", vmisc, L_ATT-MISC, "8", vt)
    st.stamp(3)
    a(f"ds_read_b128 {v(KR,4)}, v1")
    a("s_waitcnt lgkmcnt(0)")
    for q in range(2):
        a(f"{MF} {v(S[q],16)}, {v(KR,4)}, {v(Q[q],4)}, 0")
    a(f"ds_read_b128 {v(KR,4)}, v{kaddr}")
    a(f"s_mov_b64 exec, s[{EM}:{EM+1}]")
    a(f"ds_read_b128 {v(V0,4)}, v{vaddr}")
    a("s_mov_b64 exec, -1")
    a("s_nop 7")
    def maxtree(dst, src, first):
        if first:
            a(f"v_max3_f32 v{dst}, v{src}, v{src+1}, v{src+2}")
            rest = list(range(3, 16))
        else:
            rest = list(range(0, 16))
        while len(rest) >= 2:
            a(f"v_max3_f32 v{dst}, v{dst}, v{src+rest[0]}, v{src+rest[1]}")
            rest = rest[2:]
        if rest:
            a(f"v_max_f32 v{dst}, v{dst}, v{src+rest[0]}")
    def setC(q):
        a(f"v_mov_b32 v{vt2}, v{vt}")
        a("s_nop 1")
        a(f"v_permlane32_swap_b32 v{vt}, v{vt2}")
        a("s_nop 1")
        a(f"v_max_f32 v{vt}, v{vt}, v{vt2}")
        for i in range(16):
            a(f"v_sub_f32 v{C[q]+i}, 0, v{vt}")
    for q in range(2):
        maxtree(vt, S[q], True)
        setC(q)
    for i in range(2):
        a(f"v_mov_b32 v{S[1]+14+i}, 0")
    a("s_waitcnt lgkmcnt(0)")
    a(f"{MF} {v(S[0],16)}, {v(KR,4)}, {v(Q[0],4)}, {v(C[0],16)}")
    a(f"s_mov_b32 s{s_c}, 0")
    a(f"s_mov_b32 s{s_tgt}, 16")
    a("s_mov_b32 s60, 49152")
    a("s_nop 7")
    a("s_nop 1")
    def e(cur, i): a(f"v_exp_f32 v{cur+i}, v{cur+i}")
    def c(cur, i): a(f"v_cvt_pk_bf16_f32 v{P+i}, v{cur+2*i}, v{cur+2*i+1}")
    def body(emit, lq):
        def A(s):
            if emit: a(s)
        def w(tag):
            n = lq.need(tag)
            if n is not None: A(f"s_waitcnt lgkmcnt({n})")
        def E(cur, i):
            if emit: e(cur, i)
        def Cc(cur, i):
            if emit: c(cur, i)
        def rdv(reg, off, tag):
            A(f"s_mov_b64 exec, s[{EM}:{EM+1}]")
            A(f"ds_read_b128 {v(reg,4)}, v{vaddr} offset:{off}")
            A("s_mov_b64 exec, -1")
            lq.push(tag)
        for tt in range(4):
            for q in range(2):
                cur = S[q]; nxt = S[q ^ 1]
                E(cur, 0); Cc(nxt, 7); E(cur, 1); E(cur, 2)
                if q == 1: w("V1")
                A(f"{MF} {v(O[q^1],16)}, {v(V1,4)}, {v(P+4,4)}, {v(O[q^1],16)}")
                if q == 0:
                    rdv(V1, tt*1024 + 512, "V1")
                if tt == 0 and q == 1:
                    A("s_waitcnt vmcnt(2)")
                    A("s_mov_b64 exec, 1")
                    A(f"ds_add_u32 v{vmisc}, v{vone} offset:{L_ATT-MISC}")
                    A("s_mov_b64 exec, -1")
                    lq.push("X")
                if tt == 2 and q == 1:
                    A(f"ds_read_b32 v{vcnt}, v{vmisc} offset:{L_ATT-MISC}")
                    lq.push("CNT")
                Cc(cur, 0); E(cur, 3); E(cur, 4); Cc(cur, 1); E(cur, 5); E(cur, 6)
                if q == 1: w("K")
                A(f"{MF} {v(nxt,16)}, {v(KR,4)}, {v(Q[q^1],4)}, {v(C[q^1],16)}")
                if q == 0:
                    if tt == 3:
                        w("CNT")
                        A(f"v_cmp_gt_u32 vcc, s{s_tgt}, v{vcnt}")
                        A(f"v_add_u32 v{kaddr}, s61, v{kaddr}")
                        A("s_cbranch_vccnz L_at_slow")
                        if emit: a.label("L_at_back")
                        A(f"ds_read_b128 {v(KR,4)}, v{kaddr}")
                    else:
                        A(f"ds_read_b128 {v(KR,4)}, v{kaddr} offset:{(tt+1)*1024}")
                    lq.push("K")
                Cc(cur, 2); E(cur, 7); E(cur, 8); Cc(cur, 3); E(cur, 9); E(cur, 10)
                if q == 0: w("V0")
                A(f"{MF} {v(O[q],16)}, {v(V0,4)}, {v(P,4)}, {v(O[q],16)}")
                if q == 1:
                    if tt == 3:
                        A(f"v_add_u32 v{vaddr}, s61, v{vaddr}")
                        rdv(V0, 0, "V0")
                    else:
                        rdv(V0, (tt+1)*1024, "V0")
                if tt == 3 and q == 0 and emit:
                    a(f"s_cmp_lt_u32 s{s_c}, 5")
                    a("s_cbranch_scc0 L_at_nodma")
                    dma(s_slot=60)
                    a("s_add_u32 s60, s60, 16384")
                    a("s_and_b32 s60, s60, 0xffff")
                    a.label("L_at_dmadone")
                Cc(cur, 4); E(cur, 11); E(cur, 12); Cc(cur, 5); E(cur, 13); E(cur, 14); Cc(cur, 6); E(cur, 15)
    lq = LQ()
    body(False, lq)
    steady = list(lq.q)
    a(".p2align 6")
    a.label("L_at_loop")
    a(f"s_and_b32 s44, s{s_c}, 3")
    a("s_cmp_eq_u32 s44, 3")
    a(f"s_mov_b32 s44, {(-49152) & 0xffffffff}")
    a("s_cselect_b32 s61, s44, 16384")
    body(True, lq)
    assert lq.q == steady, (lq.q, steady)
    a(f"s_add_u32 s{s_c}, s{s_c}, 1")
    a(f"s_add_u32 s{s_tgt}, s{s_tgt}, 8")
    a(f"s_cmp_lt_u32 s{s_c}, 8")
    a("s_cbranch_scc1 L_at_loop")
    st.stamp(4)
    c(S[1], 7)
    a("s_nop 1")
    a(f"{MF} {v(O[1],16)}, {v(V1,4)}, {v(P+4,4)}, {v(O[1],16)}")
    a(f"s_mul_i32 s44, s{S_WAVE}, 3072")
    a(f"v_add_u32 v{kaddr}, s44, v1")
    a(f"s_xor_b32 s45, s{S_WAVE}, 4")
    a("s_mul_i32 s45, s45, 3072")
    a(f"v_add_u32 v{vaddr}, s45, v1")
    a(f"s_and_b32 s44, s{S_WAVE}, 3")
    a("s_lshl_b32 s44, s44, 2")
    a(f"v_add_u32 v{vmisc}, s44, v{vmisc}")
    a("s_waitcnt lgkmcnt(0)")
    a("s_nop 4")
    for i in range(3):
        a(f"ds_write_b128 v{kaddr}, {v(O[1]+4*i,4)} offset:{i*1024}")
    a("s_waitcnt lgkmcnt(0)")
    lds_arrive(a, vmisc, L_PAIR-MISC, vone)
    lds_wait_ge(a, "atp", vmisc, L_PAIR-MISC, "2", vt)
    for i in range(3):
        a(f"ds_read_b128 {v(O[1]+4*i,4)}, v{vaddr} offset:{i*1024}")
    a("s_waitcnt lgkmcnt(0)")
    for i in range(9):
        a(f"v_add_f32 v{O[0]+i}, v{O[0]+i}, v{O[1]+i}")
    a(f"v_mov_b32 v{vt}, {f32bits(2.0**30)}")
    a(f"v_cmp_nle_f32 vcc, v{O[0]+8}, v{vt}")
    a(f"v_mul_f32 v{vt2}, 0, v{O[0]}")
    for i in range(1, 8):
        a(f"v_fma_f32 v{vt2}, v{O[0]+i}, 0, v{vt2}")
    a(f"v_cmp_u_f32 s[44:45], v{vt2}, v{vt2}")
    a("s_nop 3")
    a("s_or_b64 vcc, vcc, s[44:45]")
    a("s_cbranch_vccnz L_at_fallback")
    a.label("L_at_fin")
    a(f"v_rcp_f32 v{vt}, v{O[0]+8}")
    a(f"s_lshl_b32 s44, s{s_T}, 5")
    a(f"s_add_u32 s44, s44, s{s_head}")
    a("s_lshl_b32 s44, s44, 10")
    a(f"s_add_u32 s44, s44, {OF}")
    for i in range(8):
        a(f"v_mul_f32 v{O[0]+i}, v{vt}, v{O[0]+i}")
    for i in range(4):
        a(f"v_cvt_pk_bf16_f32 v{P+i}, v{O[0]+2*i}, v{O[0]+2*i+1}")
    sct = " sc1" if o.fuse_tail else ""
    a(f"buffer_store_dwordx4 {v(P,4)}, v1, s[{SWS}:{SWS+3}], s44 offen{sct}")
    if o.fuse_tail:
        if not o.fuse_head:
            a(f"v_mov_b32 v{vt2}, {L_NONCE}")
            lds_wait_ge(a, "atn", vt2, 0, "1", vt)
            a(f"v_readfirstlane_b32 s{S_NONCE}, v{vt}")
        a(f"s_lshr_b32 s44, s{s_T}, 1")
        a("s_lshl_b32 s44, s44, 10")
        a(f"s_lshl_b32 s45, s{s_head}, 1")
        a(f"s_and_b32 s46, s{s_T}, 1")
        a("s_add_u32 s45, s45, s46")
        a("s_lshl_b32 s45, s45, 4")
        a("s_add_u32 s44, s44, s45")
        a(f"s_add_u32 s44, s44, {FO}")
        post_flag(a, 44, vt)
    finish(a, st)
    a.label("L_at_nodma")
    a("s_waitcnt vmcnt(0)")
    a("s_branch L_at_dmadone")
    a.label("L_at_slow")
    lds_wait_ge(a, "ats", vmisc, L_ATT-MISC, f"s{s_tgt}", vcnt)
    a("s_branch L_at_back")
    a.label("L_at_fallback")
    a(f"s_lshl_b32 s46, s{s_head}, 16")
    a(f"s_add_u32 s{s_kg}, s46, {KF}")
    a(f"v_mov_b32 v{vt}, 0xff800000")
    a(f"s_mov_b32 s{s_c}, 0")
    a.label("L_at_fb1")
    a(f"buffer_load_dwordx4 {v(KR,4)}, v1, s[{SWS}:{SWS+3}], s{s_kg} offen{sc}")
    a(f"s_add_u32 s{s_kg}, s{s_kg}, 1024")
    a("s_waitcnt vmcnt(0)")
    a(f"{MF} {v(S[0],16)}, {v(KR,4)}, {v(Q[0],4)}, 0")
    a("s_nop 15")
    maxtree(vt, S[0], False)
    a(f"s_add_u32 s{s_c}, s{s_c}, 1")
    a(f"s_cmp_lt_u32 s{s_c}, 64")
    a("s_cbranch_scc1 L_at_fb1")
    setC(0)
    for i in range(16):
        a(f"v_mov_b32 v{O[0]+i}, 0")
    a(f"v_and_b32 v{vt}, 15, v0")
    a(f"v_lshlrev_b32 v{vt}, 4, v{vt}")
    a(f"v_lshrrev_b32 v{vt2}, 5, v0")
    a(f"v_lshl_add_u32 v{vaddr}, v{vt2}, 8, v{vt}")
    a(f"s_add_u32 s{s_kg}, s46, {KF}")
    a(f"s_add_u32 s{s_vg}, s46, {VF}")
    a(f"s_mov_b32 s{s_c}, 0")
    a.label("L_at_fb2")
    a(f"buffer_load_dwordx4 {v(KR,4)}, v1, s[{SWS}:{SWS+3}], s{s_kg} offen{sc}")
    a(f"s_mov_b64 exec, s[{EM}:{EM+1}]")
    a(f"buffer_load_dwordx4 {v(V0,4)}, v{vaddr}, s[{SWS}:{SWS+3}], s{s_vg} offen{sc}")
    a(f"buffer_load_dwordx4 {v(V1,4)}, v{vaddr}, s[{SWS}:{SWS+3}], s{s_vg} offen offset:512{sc}")
    a("s_mov_b64 exec, -1")
    a(f"s_add_u32 s{s_kg}, s{s_kg}, 1024")
    a(f"s_add_u32 s{s_vg}, s{s_vg}, 1024")
    a("s_waitcnt vmcnt(0)")
    a(f"{MF} {v(S[0],16)}, {v(KR,4)}, {v(Q[0],4)}, {v(C[0],16)}")
    a("s_nop 15")
    for i in range(16): e(S[0], i)
    a("s_nop 0")
    for i in range(8): c(S[0], i)
    a("s_nop 1")
    a(f"{MF} {v(O[0],16)}, {v(V0,4)}, {v(P,4)}, {v(O[0],16)}")
    a(f"{MF} {v(O[0],16)}, {v(V1,4)}, {v(P+4,4)}, {v(O[0],16)}")
    a("s_nop 15")
    a(f"s_add_u32 s{s_c}, s{s_c}, 1")
    a(f"s_cmp_lt_u32 s{s_c}, 64")
    a("s_cbranch_scc1 L_at_fb2")
    a("s_branch L_at_fin")
    return R.hi

S_FBT = 67
V_MISC, V_ONE = 2, 3
def fbar(a, vt):
    tag = a.newlabel("fb")[2:]
    a(f"s_add_u32 s{S_FBT}, s{S_FBT}, 4")
    lds_arrive(a, V_MISC, L_FB-MISC, V_ONE)
    lds_wait_ge(a, tag, V_MISC, L_FB-MISC, f"s{S_FBT}", vt, sleep=Opt.fsleep)

def pace(a, o):
    if o.fpace: a(f"s_nop {o.fpace-1}")

def ffn_up(a, o, st):
    s_fw, s_rb, s_cg, s_u0, s_xoff, s_woff, s_stage, s_lx, s_lw, s_skip = 48, 49, 50, 51, 52, 53, 54, 55, 56, 57
    R = Regs(4)
    t0 = R.alloc(4)
    vx = R.alloc(); vw = [R.alloc() for _ in range(3)]
    xaddr = [R.alloc() for _ in range(4)]
    waddr = R.alloc()
    XF = [[R.alloc(4) for _ in range(2)] for _ in range(2)]
    WF = [R.alloc(4) for _ in range(3)]
    ACC = [[R.alloc(16) for _ in range(2)] for _ in range(3)]
    GT = R.alloc(12)
    a(f"s_setprio {o.fprio}")
    a(f"s_sub_u32 s{s_fw}, s{S_WAVE}, 8")
    a(f"v_mov_b32 v{V_MISC}, {MISC}")
    a(f"v_mov_b32 v{V_ONE}, 1")
    a(f"s_mov_b32 s{S_FBT}, 0")
    a(f"s_and_b32 s44, s{S_XCD}, 1")
    a("s_lshl_b32 s44, s44, 3")
    a(f"s_and_b32 s45, s{S_LOC}, 7")
    a(f"s_add_u32 s{s_rb}, s44, s45")
    a(f"s_lshr_b32 s44, s{S_XCD}, 1")
    a("s_lshl_b32 s44, s44, 2")
    a(f"s_lshr_b32 s45, s{S_LOC}, 3")
    a(f"s_add_u32 s{s_cg}, s44, s45")
    a(f"s_mul_i32 s44, s{s_cg}, 5")
    a(f"s_min_u32 s45, s{s_cg}, 6")
    a(f"s_add_u32 s{s_u0}, s44, s45")
    a(f"s_cmp_ge_u32 s{s_cg}, 6")
    a("s_cselect_b32 s44, 1, 0")
    a(f"s_lshr_b32 s45, s{s_fw}, 1")
    a(f"s_and_b32 s{s_skip}, s44, s45")
    srd(a, SA, 4, 5, 2048*1024)
    a(f"s_cmp_lt_u32 s{s_fw}, 2")
    a("s_cselect_b32 s46, s12, s14")
    a("s_cselect_b32 s47, s13, s15")
    a(f"s_lshl_b32 s44, s{s_u0}, 5")
    srd_off(a, SB, 46, 47, 44, 512*2752)
    a(f"v_lshrrev_b32 v{t0}, 3, v0")
    a(f"v_and_b32 v{t0+1}, 7, v0")
    a(f"v_lshrrev_b32 v{t0+2}, 1, v{t0}")
    a(f"s_and_b32 s44, s{s_fw}, 1")
    a("s_lshl_b32 s45, s44, 2")
    a(f"v_or_b32 v{t0+2}, s45, v{t0+2}")
    a(f"v_xor_b32 v{t0+1}, v{t0+1}, v{t0+2}")
    a(f"v_lshlrev_b32 v{t0+1}, 4, v{t0+1}")
    a(f"s_lshl_b32 s45, s{s_rb}, 7")
    a(f"s_lshl_b32 s46, s{s_fw}, 3")
    a("s_add_u32 s45, s45, s46")
    a(f"v_add_u32 v{t0}, s45, v{t0}")
    a(f"v_lshl_add_u32 v{vx}, v{t0}, 10, v{t0+1}")
    a("s_movk_i32 s46, 5462")
    a("s_movk_i32 s47, 2752")
    a("s_lshl_b32 s45, s44, 5")
    for j in range(3):
        a(f"v_add_u32 v{t0}, {64*j}, v0")
        a(f"v_mul_u32_u24 v{t0+1}, s46, v{t0}")
        a(f"v_lshrrev_b32 v{t0+1}, 16, v{t0+1}")
        a(f"v_mul_u32_u24 v{t0+2}, 12, v{t0+1}")
        a(f"v_sub_u32 v{t0+2}, v{t0}, v{t0+2}")
        a(f"v_lshlrev_b32 v{t0+2}, 4, v{t0+2}")
        a(f"v_add_u32 v{t0+1}, s45, v{t0+1}")
        a(f"v_mad_u32_u24 v{vw[j]}, v{t0+1}, s47, v{t0+2}")
    a(f"s_lshl_b32 s{s_lx}, s{s_fw}, 10")
    a(f"s_add_u32 s{s_lx}, s{s_lx}, {XST}")
    a("s_mul_i32 s45, s44, 6144")
    a(f"s_lshr_b32 s46, s{s_fw}, 1")
    a(f"s_mul_i32 s46, s46, {WIMG}")
    a("s_add_u32 s45, s45, s46")
    a(f"s_add_u32 s{s_lw}, s45, {WST}")
    a(f"s_mov_b32 s{s_xoff}, 0")
    a(f"s_mov_b32 s{s_woff}, 0")
    def issue():
        a(f"s_mov_b32 m0, s{s_lx}")
        a(f"s_mov_b32 s44, s{s_xoff}")
        for j in range(4):
            a(f"buffer_load_dwordx4 v{vx}, s[{SA}:{SA+3}], s44 offen lds")
            if j < 3:
                a("s_add_u32 m0, m0, 4096")
                a("s_add_u32 s44, s44, 32768")
        a(f"s_mov_b32 m0, s{s_lw}")
        a(f"s_add_u32 s44, s{s_woff}, {16*2752}")
        for j in range(6):
            so = s_woff if j < 3 else 44
            a(f"buffer_load_dwordx4 v{vw[j%3]}, s[{SB}:{SB+3}], s{so} offen lds")
            if j < 5:
                a("s_add_u32 m0, m0, 1024")
                a("s_nop 0")
        a(f"s_add_u32 s{s_xoff}, s{s_xoff}, 128")
        a(f"s_add_u32 s{s_woff}, s{s_woff}, {64*2752}")
        a(f"s_xor_b32 s{s_lx}, s{s_lx}, 16384")
        a(f"s_add_u32 s{s_lw}, s{s_lw}, s58")
        a("s_sub_u32 s58, 0, s58")
    a(f"s_mov_b32 s58, {WSLOT}")
    if o.fuse_head:
        fbar(a, t0)
    issue()
    srd(a, SC, 18, 19, 1024)
    a(f"s_lshl_b32 s59, s{s_rb}, 7")
    a(f"s_lshl_b32 s44, s{s_cg}, 3")
    a("s_add_u32 s59, s59, s44")
    a(f"s_lshl_b32 s44, s{s_fw}, 1")
    a("s_add_u32 s59, s59, s44")
    a("s_lshl_b32 s44, s59, 10")
    a(f"buffer_load_dwordx4 {v(GT,4)}, v1, s[{SC}:{SC+3}], 0 offen")
    a(f"buffer_load_dwordx4 {v(GT+4,4)}, v1, s[{SA}:{SA+3}], s44 offen")
    a(f"buffer_load_dwordx4 {v(GT+8,4)}, v1, s[{SA}:{SA+3}], s44 offen offset:1024")
    a(f"v_and_b32 v{t0}, 31, v0")
    a(f"v_lshrrev_b32 v{t0+1}, 5, v0")
    a(f"v_bfe_u32 v{t0+2}, v{t0}, 1, 3")
    a(f"v_xor_b32 v{t0+2}, v{t0+2}, v{t0+1}")
    a(f"v_lshlrev_b32 v{t0+2}, 4, v{t0+2}")
    a(f"s_and_b32 s44, s{s_fw}, 1")
    a("s_lshl_b32 s44, s44, 13")
    a(f"s_add_u32 s44, s44, {XST}")
    a(f"v_lshlrev_b32 v{t0}, 7, v{t0}")
    a(f"v_add_u32 v{t0}, s44, v{t0}")
    for kk in range(4):
        a(f"v_xor_b32 v{t0+3}, {kk*32}, v{t0+2}")
        a(f"v_add_u32 v{xaddr[kk]}, v{t0}, v{t0+3}")
    a(f"v_bfe_u32 v{t0}, v0, 2, 2")
    a(f"v_lshl_add_u32 v{t0}, v{t0+1}, 3, v{t0}")
    a(f"v_mul_u32_u24 v{t0}, 192, v{t0}")
    a(f"v_bfe_u32 v{t0+2}, v0, 4, 1")
    a(f"v_mul_u32_u24 v{t0+2}, {WIMG}, v{t0+2}")
    a(f"v_and_b32 v{t0+3}, 3, v0")
    a(f"v_lshlrev_b32 v{t0+3}, 3, v{t0+3}")
    a(f"v_add3_u32 v{t0}, v{t0}, v{t0+2}, v{t0+3}")
    a(f"s_lshr_b32 s44, s{s_fw}, 1")
    a("s_mul_i32 s44, s44, 96")
    a(f"s_add_u32 s44, s44, {WST}")
    a(f"v_add_u32 v{waddr}, s44, v{t0}")
    for u in range(3):
        for t in range(2):
            for i in range(16):
                a(f"v_mov_b32 v{ACC[u][t]+i}, 0")
    a(f"s_mov_b32 s{s_stage}, 0")
    a(f"s_mov_b32 s60, {WSLOT}")
    def rd_x(kk, buf):
        for t in range(2):
            a(f"ds_read_b128 {v(XF[buf][t],4)}, v{xaddr[kk]} offset:{t*4096}")
    def rd_w(kk, u):
        off = kk*16*192 + u*32
        a(f"ds_read_b64_tr_b16 {v(WF[u],2)}, v{waddr} offset:{off}")
        a(f"ds_read_b64_tr_b16 {v(WF[u]+2,2)}, v{waddr} offset:{off+4*192}")
    def mm(u, buf):
        for t in range(2):
            a(f"{MF} {v(ACC[u][t],16)}, {v(WF[u],4)}, {v(XF[buf][t],4)}, {v(ACC[u][t],16)}")
            pace(a, o)
    a.label("L_up_loop")
    a("s_waitcnt vmcnt(0)")
    fbar(a, t0)
    rd_x(0, 0)
    for u in range(3): rd_w(0, u)
    a(f"s_cmp_eq_u32 s{s_stage}, 7")
    a("s_cbranch_scc1 L_up_noissue")
    issue()
    a.label("L_up_noissue")
    a(f"s_cmp_lg_u32 s{s_skip}, 0")
    for kk in range(4):
        buf = kk & 1
        last = kk == 3
        for u in range(3):
            younger = (2-u)*2 + (0 if (u == 0 or last) else 2 + 2*u)
            a(f"s_waitcnt lgkmcnt({younger})")
            if u == 2:
                lab = a.newlabel("upskip")
                a(f"s_cbranch_scc1 {lab}")
                mm(u, buf)
                a.label(lab)
            else:
                mm(u, buf)
            if not last:
                if u == 0: rd_x(kk+1, buf ^ 1)
                rd_w(kk+1, u)
    for r in xaddr:
        a(f"v_xor_b32 v{r}, 16384, v{r}")
    a(f"v_add_u32 v{waddr}, s60, v{waddr}")
    a("s_sub_u32 s60, 0, s60")
    a(f"s_add_u32 s{s_stage}, s{s_stage}, 1")
    a(f"s_cmp_lt_u32 s{s_stage}, 8")
    a("s_cbranch_scc1 L_up_loop")
    st.stamp(8)
    if not o.fuse_head:
        get_nonce(a, "B", t0)
        a(f"v_readfirstlane_b32 s{S_NONCE}, v{t0}")
        a(f"ds_write_b32 v{V_MISC}, v{t0} offset:{L_NONCE-MISC}")
    for r in range(2):
        a(f"v_mov_b32 v{t0+r}, 0")
    for i in range(4):
        for r in range(2):
            a(f"v_dot2c_f32_bf16 v{t0+r}, v{GT+4+4*r+i}, v{GT+i}")
    a("s_nop 2")
    for dpp in ["row_shr:1", "row_shr:2", "row_shr:4", "row_shr:8", "row_bcast:15 row_mask:0xa", "row_bcast:31 row_mask:0xc"]:
        a("s_nop 0")
        for r in range(2):
            a(f"v_add_f32_dpp v{t0+r}, v{t0+r}, v{t0+r} {dpp}")
    for r in range(2): a(f"v_mul_f32 v{t0+r}, {f32bits(-LOG2E)}, v{t0+r}")
    for r in range(2): a(f"v_exp_f32 v{t0+r}, v{t0+r}")
    a("s_nop 0")
    for r in range(2): a(f"v_add_f32 v{t0+r}, 1.0, v{t0+r}")
    for r in range(2): a(f"v_rcp_f32 v{t0+r}, v{t0+r}")
    a("s_lshl_b32 s44, s59, 2")
    a(f"s_add_u32 s44, s44, {GA}")
    a("s_mov_b32 s46, 0")
    a("s_brev_b32 s47, 1")
    a("s_mov_b64 exec, s[46:47]")
    a(f"buffer_store_dwordx2 {v(t0,2)}, off, s[{SWS}:{SWS+3}], s44 sc1")
    a("s_mov_b64 exec, -1")
    a(f"s_lshl_b32 s44, s{s_rb}, 2")
    a(f"s_and_b32 s45, s{s_fw}, 1")
    a("s_lshl_b32 s45, s45, 1")
    a("s_add_u32 s44, s44, s45")
    a("s_mul_i32 s44, s44, 86")
    a(f"s_add_u32 s44, s44, s{s_u0}")
    a(f"s_lshr_b32 s45, s{s_fw}, 1")
    a("s_mul_i32 s45, s45, 3")
    a("s_add_u32 s44, s44, s45")
    a("s_lshl_b32 s44, s44, 10")
    a(f"s_add_u32 s44, s44, {HF}")
    a(f"s_add_u32 s45, s44, {86*1024}")
    a(f"s_mov_b32 s62, {f32bits(-LOG2E)}")
    a("s_mov_b32 s63, s62")
    a("s_mov_b32 s64, 1.0")
    a("s_mov_b32 s65, 1.0")
    for u in range(3):
        if u == 2:
            a(f"s_cmp_lg_u32 s{s_skip}, 0")
            a("s_cbranch_scc1 L_up_done")
        for t in range(2):
            g = ACC[u][t]; up = g + 8
            tm = XF[u & 1][t]
            for i in range(4): a(f"v_pk_mul_f32 {v(g+2*i,2)}, {v(g+2*i,2)}, s[62:63]")
            for i in range(8): a(f"v_exp_f32 v{g+i}, v{g+i}")
            for i in range(4): a(f"v_pk_add_f32 {v(g+2*i,2)}, {v(g+2*i,2)}, s[64:65]")
            for i in range(8): a(f"v_rcp_f32 v{g+i}, v{g+i}")
            for i in range(4): a(f"v_pk_mul_f32 {v(g+2*i,2)}, {v(g+2*i,2)}, {v(up+2*i,2)}")
            for i in range(4): a(f"v_cvt_pk_bf16_f32 v{tm+i}, v{g+2*i}, v{g+2*i+1}")
            a(f"buffer_store_dwordx4 {v(tm,4)}, v1, s[{SWS}:{SWS+3}], s{44+t} offen offset:{u*1024} sc1")
    a.label("L_up_done")
    a(f"s_lshl_b32 s44, s{s_rb}, 10")
    a(f"s_lshl_b32 s45, s{s_cg}, 6")
    a("s_add_u32 s44, s44, s45")
    a(f"s_lshl_b32 s45, s{s_fw}, 4")
    a("s_add_u32 s44, s44, s45")
    a(f"s_add_u32 s44, s44, {FH}")
    post_flag(a, 44, t0)
    st.stamp(9)
    return R.hi

DST = XST
DD = 5
DXCH = XST + 4*DD*2048
S_T2, S_N2 = 48, 49
def tile_ids(a):
    a(f"s_lshl_b32 s44, s{S_XCD}, 2")
    a(f"s_and_b32 s45, s{S_LOC}, 3")
    a(f"s_add_u32 s{S_T2}, s44, s45")
    a(f"s_lshr_b32 s{S_N2}, s{S_LOC}, 2")

def wrow_addrs(a, t0, vsrc, wa0, wa1, s_fw, s_lbase):
    a(f"v_lshrrev_b32 v{t0}, 3, v0")
    a(f"v_and_b32 v{t0+1}, 7, v0")
    a(f"v_lshlrev_b32 v{t0+2}, 1, v{t0}")
    a(f"v_and_b32 v{t0+2}, 4, v{t0+2}")
    a(f"v_xor_b32 v{t0+1}, v{t0+1}, v{t0+2}")
    a(f"v_lshlrev_b32 v{t0+1}, 4, v{t0+1}")
    a(f"v_lshl_add_u32 v{t0}, v{t0}, 10, v{t0+1}")
    a(f"s_lshl_b32 s44, s{S_N2}, 7")
    a(f"v_add_u32 v{vsrc}, s44, v{t0}")
    a(f"v_bfe_u32 v{t0}, v0, 2, 2")
    a(f"v_lshrrev_b32 v{t0+1}, 5, v0")
    a(f"v_lshl_add_u32 v{t0+1}, v{t0+1}, 2, v{t0}")
    a(f"v_lshlrev_b32 v{t0+1}, 7, v{t0+1}")
    a(f"v_bfe_u32 v{t0+2}, v0, 4, 1")
    a(f"v_lshlrev_b32 v{t0+2}, 5, v{t0+2}")
    a(f"v_and_b32 v{t0+3}, 3, v0")
    a(f"v_lshl_add_u32 v{t0+2}, v{t0+3}, 3, v{t0+2}")
    a(f"v_lshlrev_b32 v{t0}, 5, v{t0}")
    a(f"v_and_b32 v{t0}, 64, v{t0}")
    a(f"s_lshr_b32 s44, s{s_fw}, 1")
    a("s_lshl_b32 s44, s44, 6")
    a(f"v_xor_b32 v{t0}, s44, v{t0}")
    a(f"v_add3_u32 v{t0}, v{t0}, v{t0+1}, v{t0+2}")
    a(f"v_add_u32 v{wa0}, s{s_lbase}, v{t0}")
    a(f"v_xor_b32 v{wa1}, 64, v{wa0}")

def reduce4(a, ACC, s_fw, base, vt, vt2, hw_barrier):
    for q in range(1, 4):
        a(f"s_xor_b32 s44, s{s_fw}, {q}")
        a("s_mul_i32 s44, s44, 12288")
        a(f"s_add_u32 s44, s44, {base + (q-1)*4096}")
        a(f"v_add_u32 v{vt}, s44, v1")
        for i in range(4):
            a(f"ds_write_b128 v{vt}, {v(ACC[q]+4*i,4)} offset:{i*1024}")
    a(f"s_mul_i32 s44, s{s_fw}, 12288")
    a(f"s_add_u32 s44, s44, {base}")
    a(f"v_add_u32 v{vt}, s44, v1")
    a("s_waitcnt lgkmcnt(0)")
    if hw_barrier: a("s_barrier")
    else: fbar(a, vt2)
    for q in range(1, 4):
        for i in range(4):
            a(f"ds_read_b128 {v(ACC[q]+4*i,4)}, v{vt} offset:{(q-1)*4096+i*1024}")
    for q in range(1, 4):
        a(f"s_waitcnt lgkmcnt({4*(3-q)})")
        for i in range(8):
            a(f"v_pk_add_f32 {v(ACC[0]+2*i,2)}, {v(ACC[0]+2*i,2)}, {v(ACC[q]+2*i,2)}")

V_B = 144
def ffn_down(a, o, st):
    s_fw, s_h0, s_h1, s_w, s_lb, s_n, s_i = 50, 51, 52, 53, 54, 55, 56
    R = Regs(4)
    t0 = R.alloc(4)
    vsrc = R.alloc(); wa = [R.alloc(), R.alloc()]
    HFR = [[R.alloc(4) for _ in range(2)] for _ in range(DD)]
    WF = [R.alloc(4) for _ in range(2)]
    ACC = [R.alloc(16) for _ in range(4)]
    a(f"s_sub_u32 s{s_fw}, s{S_WAVE}, 8")
    tile_ids(a)
    a(f"s_mul_i32 s{s_lb}, s{s_fw}, {DD*2048}")
    a(f"s_add_u32 s{s_lb}, s{s_lb}, {DST}")
    wrow_addrs(a, t0, vsrc, wa[0], wa[1], s_fw, s_lb)
    srd(a, SA, 16, 17, 1376*1024)
    a(f"s_lshl_b32 s{s_w}, s{s_fw}, 14")
    a(f"s_lshl_b32 s44, s{S_T2}, 1")
    a(f"s_and_b32 s45, s{s_fw}, 1")
    a("s_add_u32 s46, s44, s45")
    a("s_xor_b32 s47, s46, 1")
    for d, sx in ((s_h0, 46), (s_h1, 47)):
        a(f"s_mul_i32 s{d}, s{sx}, 86")
        a(f"s_add_u32 s{d}, s{d}, s{s_fw}")
        a(f"s_lshl_b32 s{d}, s{d}, 10")
        a(f"s_add_u32 s{d}, s{d}, {HF}")
    for q in range(4):
        for i in range(16):
            a(f"v_mov_b32 v{ACC[q]+i}, 0")
    a(f"s_cmp_eq_u32 s{s_fw}, 0")
    a("s_cbranch_scc0 L_dn_nopoll")
    a(f"s_lshr_b32 s44, s{S_T2}, 1")
    a("s_lshl_b32 s44, s44, 10")
    a(f"s_add_u32 s44, s44, {FH}")
    poll_flags(a, "dn", 44, t0, sleep=16)
    a.label("L_dn_nopoll")
    fbar(a, t0)
    st.stamp(10)
    def ld(slot):
        a(f"s_add_u32 m0, s{s_lb}, {slot*2048}")
        a(f"s_add_u32 s44, s{s_w}, 8192")
        a(f"buffer_load_dwordx4 v{vsrc}, s[{SA}:{SA+3}], s{s_w} offen lds")
        a("s_add_u32 m0, m0, 1024")
        a(f"s_add_u32 s{s_w}, s{s_w}, 65536")
        a(f"buffer_load_dwordx4 v{vsrc}, s[{SA}:{SA+3}], s44 offen lds")
        a(f"buffer_load_dwordx4 {v(HFR[slot][0],4)}, v1, s[{SWS}:{SWS+3}], s{s_h0} offen sc1")
        a(f"buffer_load_dwordx4 {v(HFR[slot][1],4)}, v1, s[{SWS}:{SWS+3}], s{s_h1} offen sc1")
        a(f"s_add_u32 s{s_h0}, s{s_h0}, 4096")
        a(f"s_add_u32 s{s_h1}, s{s_h1}, 4096")
    def step(slot, vm):
        a(f"s_waitcnt vmcnt({vm})")
        for n in range(2):
            a(f"ds_read_b64_tr_b16 {v(WF[n],2)}, v{wa[n]} offset:{slot*2048}")
            a(f"ds_read_b64_tr_b16 {v(WF[n]+2,2)}, v{wa[n]} offset:{slot*2048+1024}")
        for n in range(2):
            a(f"s_waitcnt lgkmcnt({2*(1-n)})")
            for t in range(2):
                a(f"{MF} {v(ACC[2*n+t],16)}, {v(WF[n],4)}, {v(HFR[slot][t],4)}, {v(ACC[2*n+t],16)}")
                pace(a, o)
    for d in range(DD): ld(d)
    a(f"s_mov_b32 s{s_i}, 3")
    a.label("L_dn_loop")
    for d in range(DD):
        step(d, 4*(DD-1))
        ld(d)
    a(f"s_sub_u32 s{s_i}, s{s_i}, 1")
    a(f"s_cmp_lg_u32 s{s_i}, 0")
    a("s_cbranch_scc1 L_dn_loop")
    step(0, 4*(DD-1)); ld(0)
    step(1, 4*(DD-1)); ld(1)
    step(2, 16); step(3, 12); step(4, 8); step(0, 4)
    a(f"s_cmp_ge_u32 s{s_fw}, 2")
    a("s_cbranch_scc1 L_dn_fin")
    step(1, 0)
    a.label("L_dn_fin")
    a("s_waitcnt vmcnt(0)")
    a("s_nop 7")
    a("s_nop 3")
    st.stamp(11)
    reduce4(a, ACC, s_fw, DXCH, t0, t0+1, False)
    if not o.fuse_tail:
        for i in range(8):
            a(f"v_cvt_pk_bf16_f32 v{ACC[1]+i}, v{ACC[0]+2*i}, v{ACC[0]+2*i+1}")
        a(f"s_lshl_b32 s44, s2, 2")
        a(f"s_add_u32 s44, s44, s{s_fw}")
        a("s_lshl_b32 s44, s44, 11")
        a(f"s_add_u32 s44, s44, {BF}")
        a(f"buffer_store_dwordx4 {v(ACC[1],4)}, v1, s[{SWS}:{SWS+3}], s44 offen")
        a(f"buffer_store_dwordx4 {v(ACC[1]+4,4)}, v1, s[{SWS}:{SWS+3}], s44 offen offset:1024")
    else:
        for i in range(16):
            a(f"v_mov_b32 v{V_B+i}, v{ACC[0]+i}")
    return R.hi

WOST = XST
def tail(a, o, st, standalone):
    s_fw, s_lb, s_o0, s_o1, s_T, s_nt = 50, 51, 52, 53, 54, 55
    R = Regs(4)
    t0 = R.alloc(4)
    vsrc = R.alloc(); wa = [R.alloc(), R.alloc()]; G = R.alloc()
    FO_ = [[R.alloc(4) for _ in range(2)] for _ in range(8)]
    ACC = [R.alloc(16) for _ in range(4)]
    WF = [R.alloc(4)]
    assert R.n <= V_B
    Bv = V_B
    WF += [160, 164]
    wost = 0 if standalone else WOST
    xch = 65536 if standalone else 0
    if standalone:
        a(f"s_mov_b32 s{s_fw}, s{S_WAVE}")
        tile_ids(a)
    a(f"s_lshl_b32 s{s_lb}, s{s_fw}, 14")
    a(f"s_add_u32 s{s_lb}, s{s_lb}, {wost}")
    wrow_addrs(a, t0, vsrc, wa[0], wa[1], s_fw, s_lb)
    a(f"s_lshl_b32 s44, s{S_T2}, 1")
    a(f"s_and_b32 s45, s{s_fw}, 1")
    a(f"s_add_u32 s{s_T}, s44, s45")
    a(f"s_lshl_b32 s44, s{S_N2}, 1")
    a(f"s_lshr_b32 s45, s{s_fw}, 1")
    a(f"s_add_u32 s{s_nt}, s44, s45")
    a(f"s_lshl_b32 s44, s{s_T}, 15")
    a(f"s_lshl_b32 s45, s{s_fw}, 13")
    a("s_add_u32 s44, s44, s45")
    a(f"s_add_u32 s{s_o0}, s44, {OF}")
    a(f"s_xor_b32 s{s_o1}, s{s_o0}, 32768")
    a(f"s_lshl_b32 s56, s{s_fw}, 17")
    if standalone:
        a("s_waitcnt lgkmcnt(0)")
        srd(a, SWS, 24, 25, WS_BYTES)
    srd(a, SA, 8, 9, 512*1024)
    sc = "" if standalone else " sc1"
    def ldw(i):
        for hf in range(2):
            a(f"s_add_u32 m0, s{s_lb}, {i*2048+hf*1024}")
            a("s_nop 0")
            a(f"buffer_load_dwordx4 v{vsrc}, s[{SA}:{SA+3}], s56 offen lds")
            a("s_add_u32 s56, s56, 8192")
    def ldo(i):
        a(f"buffer_load_dwordx4 {v(FO_[i][0],4)}, v1, s[{SWS}:{SWS+3}], s{s_o0} offen offset:{(i&3)*1024}{sc}")
        a(f"buffer_load_dwordx4 {v(FO_[i][1],4)}, v1, s[{SWS}:{SWS+3}], s{s_o1} offen offset:{(i&3)*1024}{sc}")
        if i == 3:
            a(f"s_add_u32 s{s_o0}, s{s_o0}, 4096")
            a(f"s_add_u32 s{s_o1}, s{s_o1}, 4096")
    def ldg():
        a(f"v_and_b32 v{t0}, 31, v0")
        a(f"v_lshlrev_b32 v{t0}, 2, v{t0}")
        a(f"s_lshl_b32 s44, s{s_T}, 7")
        a(f"s_add_u32 s44, s44, {GA}")
        a(f"buffer_load_dword v{G}, v{t0}, s[{SWS}:{SWS+3}], s44 offen{sc}")
    def step(i, vm):
        a(f"s_waitcnt vmcnt({vm})")
        for n in range(2):
            a(f"ds_read_b64_tr_b16 {v(WF[1+n],2)}, v{wa[n]} offset:{i*2048}")
            a(f"ds_read_b64_tr_b16 {v(WF[1+n]+2,2)}, v{wa[n]} offset:{i*2048+1024}")
        for n in range(2):
            a(f"s_waitcnt lgkmcnt({2*(1-n)})")
            for t in range(2):
                c = "0" if i == 0 else v(ACC[2*n+t],16)
                a(f"{MF} {v(ACC[2*n+t],16)}, {v(WF[1+n],4)}, {v(FO_[i][t],4)}, {c}")
    if standalone:
        a(f"s_lshl_b32 s44, s2, 2")
        a(f"s_add_u32 s44, s44, s{s_fw}")
        a("s_lshl_b32 s44, s44, 11")
        a(f"s_add_u32 s44, s44, {BF}")
        a(f"buffer_load_dwordx4 {v(Bv,4)}, v1, s[{SWS}:{SWS+3}], s44 offen")
        a(f"buffer_load_dwordx4 {v(Bv+4,4)}, v1, s[{SWS}:{SWS+3}], s44 offen offset:1024")
        ldg()
        for i in range(4):
            ldw(i); ldo(i)
        st.stamp(2)
        for i in range(8):
            step(i, 12 if i < 5 else 4*(7-i))
            if i == 0: st.stamp(3)
            if i < 4:
                ldw(i+4); ldo(i+4)
    else:
        fbar(a, t0)
        for i in range(8): ldw(i)
        ldg()
        a(f"s_cmp_eq_u32 s{s_fw}, 0")
        a("s_cbranch_scc0 L_tl_nopoll")
        a(f"s_lshl_b32 s44, s{S_T2}, 10")
        a(f"s_add_u32 s44, s44, {FO}")
        poll_flags(a, "tl", 44, t0+1, sleep=4)
        a.label("L_tl_nopoll")
        a("s_barrier")
        st.stamp(2)
        for i in range(8): ldo(i)
        for i in range(8):
            step(i, 2*(7-i))
            if i == 0: st.stamp(3)
    st.stamp(4)
    srd(a, SB, 20, 21, 2048*1024)
    a("s_nop 7")
    reduce4(a, ACC, s_fw, xch, t0, t0+1, True)
    T1 = ACC[1]
    if standalone:
        for i in range(8):
            a(f"v_lshlrev_b32 v{T1+2*i}, 16, v{Bv+i}")
            a(f"v_and_b32 v{T1+2*i+1}, 0xffff0000, v{Bv+i}")
        Bs = T1
    else:
        Bs = Bv
    a(f"v_sub_f32 v{t0+2}, 1.0, v{G}")
    for i in range(16):
        a(f"v_mul_f32 v{T1+i}, v{t0+2}, v{Bs+i}")
    for i in range(16):
        a(f"v_fmac_f32 v{T1+i}, v{G}, v{ACC[0]+i}")
    T2 = ACC[2]
    for i in range(8):
        a(f"v_cvt_pk_bf16_f32 v{T2+i}, v{T1+2*i}, v{T1+2*i+1}")
    a(f"v_and_b32 v{t0}, 31, v0")
    a(f"v_lshrrev_b32 v{t0+1}, 5, v0")
    a(f"v_lshlrev_b32 v{t0+1}, 4, v{t0+1}")
    a(f"v_lshl_add_u32 v{t0}, v{t0}, 10, v{t0+1}")
    a(f"s_lshl_b32 s44, s{s_T}, 15")
    a(f"s_lshl_b32 s45, s{s_nt}, 6")
    a("s_add_u32 s44, s44, s45")
    for p in range(2):
        b = T2 + 4*p
        a(f"v_permlane32_swap_b32 v{b}, v{b+2}")
        a(f"v_permlane32_swap_b32 v{b+1}, v{b+3}")
    a("s_nop 1")
    a(f"buffer_store_dwordx4 {v(T2,4)}, v{t0}, s[{SB}:{SB+3}], s44 offen")
    a(f"buffer_store_dwordx4 {v(T2+4,4)}, v{t0}, s[{SB}:{SB+3}], s44 offen offset:32")
    finish(a, st)
    return 168

def build(o, path):
    a = Asm()
    a('.amdgcn_target "amdgcn-amd-amdhsa--gfx950"')
    a(".text")
    launches = []; descs = []
    kidx = 0
    if not o.fuse_head:
        st = Stamper(a, o.instr, kidx); kidx += 1
        prologue(a, "ka_kernel", st)
        a(f"s_cmp_ge_u32 s{S_WAVE}, 8")
        a("s_cbranch_scc1 L_A_comp")
        phaseA_loader(a, o, st)
        finish(a, st)
        a.label("L_A_comp")
        nv = phaseA_compute(a, o, st)
        finish(a, st)
        launches.append(("ka_kernel", 768, LDS_TOTAL)); descs.append(kernel_desc("ka_kernel", nv))
    st = Stamper(a, o.instr, kidx); kidx += 1
    main = "kb_kernel"
    prologue(a, main, st)
    a(f"s_cmp_ge_u32 s{S_WAVE}, 8")
    a("s_cbranch_scc1 L_B_f")
    hi = []
    if o.fuse_head:
        phaseA_loader(a, o, Stamper(a, False, 0))
    else:
        a("s_waitcnt lgkmcnt(0)")
        srd(a, SWS, 24, 25, WS_BYTES)
        a("s_barrier")
    hi.append(attention(a, o, st))
    a.label("L_B_f")
    if o.fuse_head:
        hi.append(phaseA_compute(a, o, st))
    else:
        a("s_waitcnt lgkmcnt(0)")
        srd(a, SWS, 24, 25, WS_BYTES)
        a(f"s_cmp_eq_u32 s{S_WAVE}, 8")
        a("s_cbranch_scc0 L_B_nn")
        a("v_mov_b32 v4, 0")
        init_misc(a, 4)
        a.label("L_B_nn")
        a("s_barrier")
        a(f"s_cmp_eq_u32 s{S_WAVE}, 8")
        a("s_cbranch_scc0 L_B_nn2")
        make_nonce(a, "B", 4)
        a.label("L_B_nn2")
    if o.no_ffn:
        a("s_endpgm")
    hi.append(ffn_up(a, o, st))
    hi.append(ffn_down(a, o, st))
    if o.fuse_tail:
        hi.append(tail(a, o, st, False))
    else:
        finish(a, st)
    launches.append((main, 768, LDS_TOTAL)); descs.append(kernel_desc(main, max(hi)))
    print("vgprs", hi)
    if not o.fuse_tail:
        st = Stamper(a, o.instr, kidx); kidx += 1
        prologue(a, "kc_kernel", st)
        nv = tail(a, o, st, True)
        launches.append(("kc_kernel", 256, 65536 + 49152)); descs.append(kernel_desc("kc_kernel", nv))
    if o.report:
        k, w, i = [int(x) for x in str(o.report).split(",")]
        reporter(a, k, w, i)
        launches.append(("rep_kernel", 64, 0)); descs.append(kernel_desc("rep_kernel", 16))
    a('.section .rodata,"a"')
    hdr = "; generated by gen/gen2.py\n" + "".join(f"; @launch kernel={n} grid=({1 if n == 'rep_kernel' else 256},1,1) block=({b},1,1) lds={l}\n" for n, b, l in launches)
    open(path, "w").write(hdr + a.text() + "".join(descs))

if __name__ == "__main__":
    o = Opt()
    path = sys.argv[1]
    for arg in sys.argv[2:]:
        k, _, val = arg.partition("=")
        setattr(Opt, k, (val if ',' in val else int(val)) if val else True)
    if Opt.report: Opt.instr = True; Stamper.rt = True
    build(o, path)
```

```python
class Asm:
    def __init__(self):
        self.lines = []
        self.uid = 0
    def __call__(self, s=""):
        for l in s.split("\n"):
            l = l.strip()
            if not l:
                continue
            if l.endswith(":") or l.startswith("."):
                self.lines.append(l)
            else:
                self.lines.append("    " + l)
    def label(self, name):
        self.lines.append(name + ":")
    def newlabel(self, base):
        self.uid += 1
        return f"L_{base}_{self.uid}"
    def text(self):
        return "\n".join(self.lines) + "\n"

def v(n, cnt=1):
    return f"v{n}" if cnt == 1 else f"v[{n}:{n+cnt-1}]"
def s(n, cnt=1):
    return f"s{n}" if cnt == 1 else f"s[{n}:{n+cnt-1}]"

class Regs:
    def __init__(self, start=0):
        self.n = start
        self.hi = start
    def alloc(self, cnt=1, align=None):
        if align is None:
            align = 1 if cnt == 1 else (2 if cnt == 2 else 4)
        self.n = (self.n + align - 1) // align * align
        r = self.n
        self.n += cnt
        self.hi = max(self.hi, self.n)
        return r

def kernel_header(a, name):
    a(f".globl {name}")
    a(".p2align 8")
    a(f".type {name},@function")
    a.label(name)

def kernel_desc(name, vgprs, sgprs=102):
    nv = (vgprs + 7) // 8 * 8
    acc = (vgprs + 3) // 4 * 4
    acc = min(max(acc, 4), 256)
    return f""".p2align 6
.amdhsa_kernel {name}
  .amdhsa_next_free_vgpr {nv}
  .amdhsa_next_free_sgpr {sgprs}
  .amdhsa_accum_offset {min(nv,256)}
  .amdhsa_group_segment_fixed_size 0
  .amdhsa_kernarg_size 88
  .amdhsa_user_sgpr_count 2
  .amdhsa_user_sgpr_kernarg_segment_ptr 1
  .amdhsa_system_sgpr_workgroup_id_x 1
.end_amdhsa_kernel
"""

def f32bits(x):
    import struct
    return "0x%08x" % struct.unpack("<I", struct.pack("<f", x))[0]

STAMP_BASE = 24 << 20
class Stamper:
    rt = False
    def __init__(self, a, enabled, kidx):
        self.a, self.en, self.k = a, enabled, kidx
    def stamp(self, i):
        if not self.en: return
        self.a(f"{'s_memrealtime' if Stamper.rt else 's_memtime'} s[{70+2*i}:{71+2*i}]")
    def real(self, i):
        if not self.en: return
        self.a(f"s_memrealtime s[{70+2*i}:{71+2*i}]")
    def abeg(self):
        if not (self.en and Stamper.acc): return
        self.a("s_memtime s[96:97]"); self.a("s_waitcnt lgkmcnt(0)")
    def aend(self, j):
        if not (self.en and Stamper.acc): return
        self.a("s_memtime s[98:99]"); self.a("s_waitcnt lgkmcnt(0)")
        self.a("s_sub_u32 s98, s98, s96")
        self.a(f"s_add_u32 s{71+2*(8+j)}, s{71+2*(8+j)}, s98") if False else self.a(f"v_add_u32 v{Stamper.vacc+j}, s98, v{Stamper.vacc+j}") if False else self.a(f"s_add_u32 s{Stamper.sacc[j]}, s{Stamper.sacc[j]}, s98")
    acc = False
    sacc = [95, 100, 101]
    def init(self):
        if not self.en: return
        for i in list(range(70, 94)) + Stamper.sacc:
            self.a(f"s_mov_b32 s{i}, 0")
    def flush(self, srd, s_wave, vtmp=2):
        if not self.en: return
        a = self.a
        a("s_waitcnt lgkmcnt(0) vmcnt(0)")
        a("s_mov_b64 exec, 1")
        a(f"s_lshl_b32 s94, s2, 4")
        a(f"s_add_u32 s94, s94, s{s_wave}")
        a(f"s_lshl_b32 s94, s94, 6")
        a(f"s_add_u32 s94, s94, {STAMP_BASE + self.k*(1<<20)}")
        a(f"v_mov_b32 v{vtmp+1}, 0")
        for i in range(12):
            a(f"v_mov_b32 v{vtmp}, s{70+2*i}")
            a(f"buffer_store_dword v{vtmp}, v{vtmp+1}, s[{srd}:{srd+3}], s94 offen offset:{4*i}")
            a("s_nop 1")
        for j, sr in enumerate(Stamper.sacc):
            a(f"v_mov_b32 v{vtmp}, s{sr}")
            a(f"buffer_store_dword v{vtmp}, v{vtmp+1}, s[{srd}:{srd+3}], s94 offen offset:{48+4*j}")
            a("s_nop 1")


def reporter(a, kidx, wave, idx, K=20, stat="max"):
    kernel_header(a, "rep_kernel")
    a("s_cmp_ge_u32 s2, 1")
    a("s_cbranch_scc1 L_rep_end")
    a("s_load_dwordx2 s[4:5], s[0:1], 80")
    a("v_lshlrev_b32 v1, 10, v0")
    a("s_waitcnt lgkmcnt(0)")
    a("s_mov_b32 s8, s4"); a("s_and_b32 s9, s5, 0xffff"); a(f"s_mov_b32 s10, {32<<20}"); a("s_mov_b32 s11, 0x20000")
    for j in range(4):
        a(f"s_mov_b32 s12, {STAMP_BASE + kidx*(1<<20) + j*65536 + wave*64 + idx*4}")
        a(f"buffer_load_dword v{2+j}, v1, s[8:11], s12 offen")
        a(f"s_mov_b32 s13, {STAMP_BASE + j*65536}")
        a(f"buffer_load_dword v{6+j}, v1, s[8:11], s13 offen")
    a("s_waitcnt vmcnt(0)")
    a("v_readfirstlane_b32 s14, v6")
    a("s_sub_u32 s14, s14, 100000")
    for j in range(8):
        a(f"v_subrev_u32 v{2+j}, s14, v{2+j}")
    op = "v_max_u32" if stat == "max" else "v_min_u32"
    a(f"{op} v2, v2, v3"); a(f"{op} v4, v4, v5"); a(f"{op} v2, v2, v4")
    a("v_min_u32 v6, v6, v7"); a("v_min_u32 v8, v8, v9"); a("v_min_u32 v6, v6, v8")
    a("s_nop 1")
    a("v_readlane_b32 s16, v2, 0"); a("v_readlane_b32 s17, v6, 0")
    sop = "s_max_u32" if stat == "max" else "s_min_u32"
    for l in range(1, 64):
        a(f"v_readlane_b32 s18, v2, {l}"); a(f"v_readlane_b32 s19, v6, {l}")
        a("s_nop 1")
        a(f"{sop} s16, s16, s18"); a("s_min_u32 s17, s17, s19")
    a("s_sub_u32 s16, s16, s17")
    a("s_min_u32 s16, s16, 20000")
    a(f"s_mul_i32 s16, s16, {K}")
    a("s_memrealtime s[20:21]")
    a("s_waitcnt lgkmcnt(0)")
    a.label("L_rep_spin")
    a("s_memrealtime s[22:23]")
    a("s_waitcnt lgkmcnt(0)")
    a("s_sub_u32 s24, s22, s20")
    a("s_cmp_lt_u32 s24, s16")
    a("s_cbranch_scc1 L_rep_spin")
    a.label("L_rep_end")
    a("s_endpgm")
```

```python
import math, sys
from asmlib import *

MB = 1 << 20
QF, KF, VF, OF, HF, GA, FLG = 0, 2*MB, 4*MB, 6*MB, 8*MB, 14*MB, 14*MB + 0x20000
FQ = FLG
FH = FLG + 0x4000
FO = FLG + 0x8000
W0 = FLG + 0x10000
FG = FLG + 0x11000
WS_BYTES = 32*MB
LOG2E = 1.4426950408889634
QSCALE = 0.25 * LOG2E
LDS_TOTAL = 163840
KNAME = "gated_mix__mha_block__glu_gated_glu__prompt_kernel"

A_SLOT = 32768
WIMG = 12288 + 32
UX = [98304, 139520]
UW = [114688, 65536]
STG = 65536
DRING = 131072
GL = 160000
VCONST = 155904
MISC = LDS_TOTAL - 256
L_NONCE, L_ATT, L_FB, L_GO, L_PAIR, L_POST = 0, 4, 8, 12, 16, 32

S_WAVE, S_NONCE = 26, 27
SWS, SA, SB, SC = 28, 32, 36, 40
S_XCD, S_LOC, S_FBT, S_SPIN = 3, 69, 67, 68
V_L16, V_MISC, V_ONE = 1, 2, 3
MF = "v_mfma_f32_32x32x16_bf16"

class Opt:
    instr = False
    report = None
    acc = 0
    fprio = 2
    fpace = 0
    mprio = 0
    fsleep = 2
    aprio = 5
    touch = 0
    stag = 1
    pdelay = 16
    wdwarm = 0
    stagA = 1
    xat = 1
    udelay = 4
    upwarm = 0
    no_att = 0
    nodma = 0
    nomm = 0
    no_ffn = False
    psleep = 4
    ldelay = 0
    ctouch = 1
    upat = 10
o = Opt

def srd(a, d, lo, hi, nbytes):
    a(f"s_mov_b32 s{d}, s{lo}")
    a(f"s_and_b32 s{d+1}, s{hi}, 0xffff")
    a(f"s_mov_b32 s{d+2}, {nbytes}")
    a(f"s_mov_b32 s{d+3}, 0x20000")

def srd_off(a, d, lo, hi, s_off, total):
    a(f"s_add_u32 s{d}, s{lo}, s{s_off}")
    a(f"s_addc_u32 s{d+1}, s{hi}, 0")
    a(f"s_and_b32 s{d+1}, s{d+1}, 0xffff")
    a(f"s_sub_u32 s{d+2}, {total}, s{s_off}")
    a(f"s_mov_b32 s{d+3}, 0x20000")

def finish(a, st):
    if st.en: a("s_waitcnt vmcnt(0)")
    st.stamp(6); st.real(7); st.flush(SWS, S_WAVE, 4)
    a("s_endpgm")

def post_flag(a, s_off, vt):
    a(f"v_mov_b32 v{vt}, s{S_NONCE}")
    a("s_waitcnt vmcnt(0)")
    a("s_mov_b64 exec, 1")
    a(f"buffer_store_dword v{vt}, off, s[{SWS}:{SWS+3}], s{s_off} sc1")
    a("s_mov_b64 exec, -1")

def poll_flags(a, tag, s_off, vt, sleep, two=False):
    a(f"s_mov_b32 s{S_SPIN}, 0")
    if two:
        a(f"s_mov_b32 s46, s{S_NONCE}")
        a(f"s_mov_b32 s47, s{S_NONCE}")
    a.label(f"L_{tag}_poll")
    if two: a(f"buffer_load_dwordx2 {v(vt,2)}, v{V_L16}, s[{SWS}:{SWS+3}], s{s_off} offen sc1")
    else: a(f"buffer_load_dword v{vt}, v{V_L16}, s[{SWS}:{SWS+3}], s{s_off} offen sc1")
    a(f"s_add_u32 s{S_SPIN}, s{S_SPIN}, 1")
    a("s_waitcnt vmcnt(0)")
    if two: a(f"v_cmp_ne_u64 vcc, s[46:47], {v(vt,2)}")
    else: a(f"v_cmp_ne_u32 vcc, s{S_NONCE}, v{vt}")
    a(f"s_cmp_gt_u32 s{S_SPIN}, 200000")
    a(f"s_cbranch_scc1 L_{tag}_got")
    a(f"s_cbranch_vccz L_{tag}_got")
    a(f"s_sleep {sleep}")
    a(f"s_branch L_{tag}_poll")
    a.label(f"L_{tag}_got")

def lds_wait_ge(a, tag, vaddr, off, target, vt, sleep=1):
    a(f"s_mov_b32 s{S_SPIN}, 0")
    a.label(f"L_{tag}_spin")
    a(f"ds_read_b32 v{vt}, v{vaddr} offset:{off}")
    a(f"s_add_u32 s{S_SPIN}, s{S_SPIN}, 1")
    a("s_waitcnt lgkmcnt(0)")
    a(f"v_cmp_gt_u32 vcc, {target}, v{vt}")
    a(f"s_cmp_gt_u32 s{S_SPIN}, 2000000")
    a(f"s_cbranch_scc1 L_{tag}_ok")
    a(f"s_cbranch_vccz L_{tag}_ok")
    if sleep: a(f"s_sleep {sleep}")
    a(f"s_branch L_{tag}_spin")
    a.label(f"L_{tag}_ok")

def lds_arrive(a, vaddr, off):
    a("s_mov_b64 exec, 1")
    a(f"ds_add_u32 v{vaddr}, v{V_ONE} offset:{off}")
    a("s_mov_b64 exec, -1")

def read_nonce(a, vt):
    a(f"ds_read_b32 v{vt}, v{V_MISC} offset:{L_NONCE}")
    a("s_waitcnt lgkmcnt(0)")
    a(f"v_readfirstlane_b32 s{S_NONCE}, v{vt}")

def ids_A(a, s_tb, s_hg):
    a(f"s_and_b32 s44, s{S_XCD}, 3")
    a("s_lshl_b32 s44, s44, 3")
    a(f"s_and_b32 s45, s{S_LOC}, 7")
    a(f"s_add_u32 s{s_tb}, s44, s45")
    a(f"s_and_b32 s44, s{S_XCD}, 4")
    a(f"s_lshr_b32 s45, s{S_LOC}, 3")
    a(f"s_add_u32 s{s_hg}, s44, s45")

def ids_up(a, s_rb, s_cg, s_u0):
    a(f"s_and_b32 s44, s{S_XCD}, 2")
    a("s_lshl_b32 s44, s44, 2")
    a(f"s_and_b32 s45, s{S_LOC}, 7")
    a(f"s_add_u32 s{s_rb}, s44, s45")
    a(f"s_and_b32 s44, s{S_XCD}, 1")
    a("s_lshl_b32 s44, s44, 2")
    a(f"s_and_b32 s45, s{S_XCD}, 4")
    a("s_lshl_b32 s45, s45, 1")
    a("s_add_u32 s44, s44, s45")
    a(f"s_lshr_b32 s45, s{S_LOC}, 3")
    a(f"s_add_u32 s{s_cg}, s44, s45")
    a(f"s_mul_i32 s44, s{s_cg}, 5")
    a(f"s_min_u32 s45, s{s_cg}, 6")
    a(f"s_add_u32 s{s_u0}, s44, s45")

def stagger(a, mode=None):
    mode = o.stag if mode is None else mode
    if mode == 1:
        a(f"s_lshr_b32 s44, s{S_LOC}, 3")
        a("s_lshl_b32 s44, s44, 1")
        a(f"s_add_u32 s44, s44, s{S_LOC}")
        a("s_and_b32 s44, s44, 7")
    elif mode == 2:
        a(f"s_lshr_b32 s44, s{S_LOC}, 3")
        a(f"s_add_u32 s44, s44, s{S_LOC}")
        a("s_and_b32 s44, s44, 3")
        a("s_lshl_b32 s44, s44, 1")
    elif mode == 3:
        a(f"s_lshr_b32 s44, s{S_LOC}, 3")
        a(f"s_add_u32 s44, s44, s{S_LOC}")
        a("s_and_b32 s44, s44, 1")
        a("s_lshl_b32 s44, s44, 2")
    else:
        a("s_mov_b32 s44, 0")

def up_dma_setup(a, t0, vx, vw, s_fw, s_rb, s_cg, s_u0, s_lx, s_lw, s_xoff, s_woff):
    a(f"v_lshrrev_b32 v{t0}, 3, v0")
    a(f"v_and_b32 v{t0+1}, 7, v0")
    a(f"v_lshrrev_b32 v{t0+2}, 1, v{t0}")
    ids_up(a, s_rb, s_cg, s_u0)
    a(f"s_and_b32 s46, s{s_fw}, 1")
    a("s_lshl_b32 s45, s46, 2")
    a(f"v_or_b32 v{t0+2}, s45, v{t0+2}")
    a(f"v_xor_b32 v{t0+1}, v{t0+1}, v{t0+2}")
    a(f"v_lshlrev_b32 v{t0+1}, 4, v{t0+1}")
    a(f"s_lshl_b32 s44, s{s_rb}, 7")
    a(f"s_lshl_b32 s45, s{s_fw}, 3")
    a("s_add_u32 s44, s44, s45")
    a(f"v_add_u32 v{t0}, s44, v{t0}")
    a(f"v_lshl_add_u32 v{vx}, v{t0}, 10, v{t0+1}")
    a("s_movk_i32 s44, 5462")
    a("s_movk_i32 s47, 2752")
    a("s_lshl_b32 s45, s46, 5")
    for j in range(3):
        a(f"v_add_u32 v{t0}, {64*j}, v0")
        a(f"v_mul_u32_u24 v{t0+1}, s44, v{t0}")
        a(f"v_lshrrev_b32 v{t0+1}, 16, v{t0+1}")
        a(f"v_mul_u32_u24 v{t0+2}, 12, v{t0+1}")
        a(f"v_sub_u32 v{t0+2}, v{t0}, v{t0+2}")
        a(f"v_lshlrev_b32 v{t0+2}, 4, v{t0+2}")
        a(f"v_add_u32 v{t0+1}, s45, v{t0+1}")
        a(f"v_mad_u32_u24 v{vw[j]}, v{t0+1}, s47, v{t0+2}")
    a(f"s_lshl_b32 s{s_lx}, s{s_fw}, 10")
    a(f"s_add_u32 s{s_lx}, s{s_lx}, {UX[0]}")
    a("s_mul_i32 s45, s46, 6144")
    a(f"s_lshr_b32 s46, s{s_fw}, 1")
    a(f"s_mul_i32 s47, s46, {WIMG}")
    a("s_add_u32 s45, s45, s47")
    a(f"s_add_u32 s{s_lw}, s45, {UW[0]}")
    stagger(a)
    a(f"s_lshl_b32 s{s_xoff}, s44, 7")
    a(f"s_mul_i32 s{s_woff}, s44, {64*2752}")

def up_srd(a, s_fw, s_u0):
    srd(a, SA, 4, 5, 2048*1024)
    a(f"s_cmp_lt_u32 s{s_fw}, 2")
    a("s_cselect_b32 s46, s12, s14")
    a("s_cselect_b32 s47, s13, s15")
    a(f"s_lshl_b32 s44, s{s_u0}, 5")
    srd_off(a, SB, 46, 47, 44, 512*2752)

def up_dma_groups(vx, vw, s_lx, s_lw, s_xoff, s_woff):
    g = []
    for j in range(4):
        if j == 0: pre = [f"s_mov_b32 m0, s{s_lx}", f"s_mov_b32 s46, s{s_xoff}"]
        else: pre = ["s_add_u32 m0, m0, 4096", "s_add_u32 s46, s46, 32768"]
        g.append(pre + [f"buffer_load_dwordx4 v{vx}, s[{SA}:{SA+3}], s46 offen lds"])
    for j in range(6):
        if j == 0: pre = [f"s_mov_b32 m0, s{s_lw}", f"s_add_u32 s46, s{s_woff}, {16*2752}"]
        else: pre = ["s_add_u32 m0, m0, 1024", "s_nop 0"]
        so = s_woff if j < 3 else 46
        g.append(pre + [f"buffer_load_dwordx4 v{vw[j%3]}, s[{SB}:{SB+3}], s{so} offen lds"])
    return g

class LQ:
    def __init__(self): self.q = []
    def push(self, tag): self.q.append(tag)
    def need(self, tag):
        if tag not in self.q: return None
        i = len(self.q) - 1 - self.q[::-1].index(tag)
        n = len(self.q) - 1 - i
        self.q = self.q[i+1:]
        return n

def a_waves(a, st):
    R = Regs(4)
    vt = R.alloc(); vt2 = R.alloc(); vt3 = R.alloc(); vt4 = R.alloc()
    kaddr = R.alloc(); vaddr = R.alloc(); vcnt = R.alloc(); vstep = R.alloc(); vmask = R.alloc()
    vx0 = R.alloc(); vx1 = R.alloc(); vw = R.alloc()
    vg = vx0; vgo = vx1
    GG = R.alloc(4)
    Q = [R.alloc(4), R.alloc(4)]; KR = R.alloc(4); V0 = R.alloc(4); V1 = R.alloc(4)
    P = R.alloc(8); S = [R.alloc(16), R.alloc(16)]
    O = [R.alloc(16), R.alloc(16)]; C = [R.alloc(16), R.alloc(16)]
    JUNK = S[0]
    s_head, s_T, s_c, s_kg, s_vg, s_ld, s_tgt = 48, 49, 50, 51, 52, 53, 54
    s_q0, s_q1, s_slot, s_step = 55, 56, 57, 58
    s_tb, s_hg, s_xoff, s_woff, s_lslot, s_cnt, s_lx, s_lw = 59, 60, 61, 62, 63, 64, 65, 66
    ids_A(a, s_tb, s_hg)
    a(f"s_cmp_ge_u32 s{S_WAVE}, 4")
    a("s_cbranch_scc1 L_help0")
    a(f"v_lshrrev_b32 v{vt}, 3, v0")
    a(f"v_and_b32 v{vt2}, 7, v0")
    a(f"v_lshrrev_b32 v{vt3}, 1, v{vt}")
    a(f"v_xor_b32 v{vt4}, v{vt2}, v{vt3}")
    a(f"v_lshlrev_b32 v{vt4}, 4, v{vt4}")
    a(f"s_lshl_b32 s44, s{s_tb}, 6")
    a(f"s_lshl_b32 s45, s{S_WAVE}, 4")
    a("s_add_u32 s44, s44, s45")
    a(f"v_add_u32 v{vx0}, s44, v{vt}")
    a(f"v_lshl_add_u32 v{vx0}, v{vx0}, 10, v{vt4}")
    a(f"v_xor_b32 v{vx1}, 64, v{vx0}")
    a(f"v_add_u32 v{vx1}, 8192, v{vx1}")
    a(f"v_lshlrev_b32 v{vt3}, 2, v{vt3}")
    a(f"v_and_b32 v{vt3}, 4, v{vt3}")
    a(f"v_xor_b32 v{vt2}, v{vt2}, v{vt3}")
    a(f"v_lshlrev_b32 v{vt2}, 4, v{vt2}")
    a(f"v_mul_u32_u24 v{vw}, 3072, v{vt}")
    a(f"s_lshl_b32 s44, s{s_hg}, 7")
    a(f"v_add3_u32 v{vw}, v{vw}, v{vt2}, s44")
    a(f"s_lshl_b32 s{s_lx}, s{S_WAVE}, 11")
    a(f"s_mul_i32 s{s_lw}, s{S_WAVE}, 6144")
    a(f"s_add_u32 s{s_lw}, s{s_lw}, 8192")
    stagger(a, o.stagA)
    a(f"s_lshl_b32 s{s_xoff}, s44, 7")
    a("s_lshl_b32 s44, s44, 2")
    a(f"s_add_u32 s44, s44, s{S_WAVE}")
    a(f"s_mul_i32 s{s_woff}, s44, {16*3072}")
    a(f"s_mov_b32 s{s_lslot}, {A_SLOT}")
    a(f"s_mov_b32 s{s_cnt}, 0")
    a("s_waitcnt lgkmcnt(0)")
    srd(a, SA, 4, 5, 2048*1024)
    srd(a, SB, 6, 7, 512*3072)
    st.stamp(2)
    a.label("L_ld0")
    a(f"s_add_u32 m0, s{s_lslot}, s{s_lx}")
    a(f"s_add_u32 s44, s{s_woff}, {8*3072}")
    a(f"buffer_load_dwordx4 v{vx0}, s[{SA}:{SA+3}], s{s_xoff} offen lds")
    a("s_add_u32 m0, m0, 1024")
    a(f"s_add_u32 s{s_cnt}, s{s_cnt}, 1")
    a(f"buffer_load_dwordx4 v{vx1}, s[{SA}:{SA+3}], s{s_xoff} offen lds")
    a(f"s_add_u32 m0, s{s_lslot}, s{s_lw}")
    a(f"s_add_u32 s{s_xoff}, s{s_xoff}, 128")
    for p in range(3):
        a(f"buffer_load_dwordx4 v{vw}, s[{SB}:{SB+3}], s{s_woff} offen offset:{p*1024} lds")
    a("s_add_u32 m0, m0, 3072")
    a(f"s_add_u32 s{s_woff}, s{s_woff}, {64*3072}")
    for p in range(3):
        a(f"buffer_load_dwordx4 v{vw}, s[{SB}:{SB+3}], s44 offen offset:{p*1024} lds")
    a(f"s_and_b32 s{s_xoff}, s{s_xoff}, 1023")
    a(f"s_cselect_b32 s44, 0, {512*3072}")
    a(f"s_sub_u32 s{s_woff}, s{s_woff}, s44")
    a(f"s_add_u32 s{s_lslot}, s{s_lslot}, {A_SLOT}")
    a(f"s_cmp_eq_u32 s{s_lslot}, {3*A_SLOT}")
    a(f"s_cselect_b32 s{s_lslot}, 0, s{s_lslot}")
    a(f"s_cmp_lt_u32 s{s_cnt}, 2")
    a("s_cbranch_scc1 L_ld0")
    a(f"s_cmp_eq_u32 s{s_cnt}, 8")
    a("s_cbranch_scc1 L_ld_end")
    a("s_waitcnt vmcnt(8)")
    a("s_barrier")
    a("s_branch L_ld0")
    a.label("L_help0")
    GT = S[0]
    a("s_lshl_b32 s46, s2, 3")
    a(f"s_lshl_b32 s45, s{S_WAVE}, 1")
    a("s_add_u32 s46, s46, s45")
    a(f"s_sub_u32 s{s_lx}, s46, 8")
    a(f"s_lshl_b32 s44, s{s_lx}, 10")
    a("s_waitcnt lgkmcnt(0)")
    srd(a, SA, 4, 5, 2048*1024)
    srd(a, SB, 18, 19, 1024)
    a(f"buffer_load_dwordx4 {v(GT,4)}, v{V_L16}, s[{SB}:{SB+3}], 0 offen")
    a(f"buffer_load_dwordx4 {v(GT+4,4)}, v{V_L16}, s[{SA}:{SA+3}], s44 offen")
    a(f"buffer_load_dwordx4 {v(GT+8,4)}, v{V_L16}, s[{SA}:{SA+3}], s44 offen offset:1024")
    a.label("L_help2")
    srd(a, SWS, 24, 25, WS_BYTES)
    srd(a, SC, 22, 23, 256)
    a(f"s_cmp_eq_u32 s{S_WAVE}, 4")
    a("s_cbranch_scc0 L_help3")
    a("s_cmp_eq_u32 s2, 0")
    a("s_cbranch_scc0 L_help4")
    a(f"s_add_u32 s46, s24, {W0}")
    a("s_addc_u32 s47, s25, 0")
    a("s_load_dword s45, s[46:47], 0")
    a(f"s_mov_b32 s44, {W0}")
    a("s_waitcnt lgkmcnt(0)")
    a("s_mul_i32 s45, s45, 0x19660d")
    a("s_add_u32 s45, s45, 0x3c6ef35f")
    a("s_max_u32 s45, s45, 1")
    a(f"v_mov_b32 v{vt}, s45")
    a("s_mov_b64 exec, 1")
    a(f"buffer_store_dword v{vt}, off, s[{SC}:{SC+3}], 0 sc1")
    a(f"buffer_store_dword v{vt}, off, s[{SWS}:{SWS+3}], s44 sc1")
    a("s_mov_b64 exec, -1")
    a("s_branch L_help4")
    a.label("L_help3")
    if o.ctouch:
        a(f"s_cmp_eq_u32 s{S_WAVE}, 5")
        a("s_cbranch_scc0 L_help4")
        a("s_getpc_b64 s[46:47]")
        a.label("L_pc")
        a(f"s_sub_u32 s46, s46, L_pc-{KN}")
        a("s_subb_u32 s47, s47, 0")
        a(f"s_lshl_b32 s44, s{S_LOC}, 9")
        a(f"s_min_u32 s44, s44, L_code_end-{KN}-512")
        a("s_add_u32 s46, s46, s44")
        a("s_addc_u32 s47, s47, 0")
        for i in range(4):
            a(f"s_load_dword s44, s[46:47], {128*i}")
        a("s_waitcnt lgkmcnt(0)")
    a.label("L_help4")
    a("s_barrier")
    st.stamp(2)
    a("s_barrier")
    a("s_waitcnt vmcnt(0)")
    for r in range(2):
        a(f"v_mov_b32 v{vt3+r}, 0")
    for i in range(4):
        for r in range(2):
            a(f"v_dot2c_f32_bf16 v{vt3+r}, v{GT+4+4*r+i}, v{GT+i}")
    a("s_nop 2")
    for dpp in ["row_shr:1", "row_shr:2", "row_shr:4", "row_shr:8", "row_bcast:15 row_mask:0xa", "row_bcast:31 row_mask:0xc"]:
        a("s_nop 0")
        for r in range(2):
            a(f"v_add_f32_dpp v{vt3+r}, v{vt3+r}, v{vt3+r} {dpp}")
    a("s_barrier")
    for r in range(2): a(f"v_mul_f32 v{vt3+r}, {f32bits(-LOG2E)}, v{vt3+r}")
    for r in range(2): a(f"v_exp_f32 v{vt3+r}, v{vt3+r}")
    a("s_nop 0")
    for r in range(2): a(f"v_add_f32 v{vt3+r}, 1.0, v{vt3+r}")
    for r in range(2): a(f"v_rcp_f32 v{GG+2*r}, v{vt3+r}")
    a("s_barrier")
    a(f"s_cmp_eq_u32 s{S_WAVE}, 4")
    a("s_cbranch_scc0 L_help5")
    a(f"buffer_load_dword v{vt}, off, s[{SC}:{SC+3}], 0 sc1")
    a.label("L_help5")
    a("s_barrier")
    if o.upat == 11:
        hv = S[1]
        a(f"s_sub_u32 s48, s{S_WAVE}, 4")
        up_dma_setup(a, hv, hv+4, [hv+5, hv+6, hv+7], 48, 49, 50, 51, 52, 53, 54, 55)
        up_srd(a, 48, 51)
    a("s_barrier")
    a("s_barrier")
    a(f"s_cmp_eq_u32 s{S_WAVE}, 4")
    a("s_cbranch_scc0 L_help7")
    a(f"s_mov_b32 s{S_SPIN}, 0")
    a.label("L_np")
    a("s_waitcnt vmcnt(0)")
    a(f"v_cmp_eq_u32 vcc, 0, v{vt}")
    a(f"s_cmp_gt_u32 s{S_SPIN}, 200000")
    a("s_cbranch_scc1 L_ng")
    a("s_cbranch_vccz L_ng")
    a(f"s_add_u32 s{S_SPIN}, s{S_SPIN}, 1")
    a(f"buffer_load_dword v{vt}, off, s[{SC}:{SC+3}], 0 sc1")
    a("s_branch L_np")
    a.label("L_ng")
    a(f"v_cmp_eq_u32 vcc, 0, v0")
    a(f"v_lshl_add_u32 v{vt2}, v0, 2, v{V_MISC}")
    a("s_nop 0")
    a(f"v_cndmask_b32 v{vt}, 0, v{vt}, vcc")
    a(f"ds_write_b32 v{vt2}, v{vt}")
    a.label("L_help7")
    if o.upat == 11:
        for grp in up_dma_groups(hv+4, [hv+5, hv+6, hv+7], 52, 53, 54, 55):
            for l in grp: a(l)
    a("s_waitcnt lgkmcnt(0)")
    a("s_branch L_b7")
    a.label("L_ld_end")
    a("s_waitcnt vmcnt(8)")
    a("s_barrier")
    srd(a, SWS, 24, 25, WS_BYTES)
    a("s_waitcnt vmcnt(0)")
    a.label("L_b7")
    a("s_barrier")
    a(f"s_sleep {o.psleep*2}")
    a.label("L_setup")
    st.stamp(3)
    a(f"s_lshl_b32 s44, s{S_XCD}, 2")
    a(f"s_and_b32 s45, s{S_LOC}, 3")
    a(f"s_add_u32 s{s_head}, s44, s45")
    a(f"s_lshr_b32 s44, s{S_LOC}, 2")
    a("s_lshl_b32 s44, s44, 3")
    a(f"s_and_b32 s45, s{S_WAVE}, 3")
    a("s_lshl_b32 s45, s45, 1")
    a("s_add_u32 s44, s44, s45")
    a(f"s_lshr_b32 s46, s{S_WAVE}, 2")
    a(f"s_add_u32 s{s_T}, s44, s46")
    a(f"s_lshl_b32 s44, s{s_head}, 16")
    a(f"s_lshl_b32 s{s_ld}, s{S_WAVE}, 10")
    a(f"s_add_u32 s{s_kg}, s44, s{s_ld}")
    a(f"s_add_u32 s{s_vg}, s{s_kg}, {VF}")
    a(f"s_add_u32 s{s_kg}, s{s_kg}, {KF}")
    a(f"s_lshl_b32 s45, s{s_T}, 10")
    a(f"s_add_u32 s{s_q0}, s44, s45")
    a(f"s_xor_b32 s{s_q1}, s{s_q0}, 1024")
    a("s_lshl_b32 s46, s46, 12")
    a(f"v_add_u32 v{kaddr}, s46, v{V_L16}")
    a(f"v_and_b32 v{vt3}, 15, v0")
    a(f"v_lshlrev_b32 v{vt3}, 4, v{vt3}")
    a(f"v_lshrrev_b32 v{vt4}, 5, v0")
    a(f"v_lshl_add_u32 v{vt4}, v{vt4}, 8, v{vt3}")
    a("s_add_u32 s46, s46, 8192")
    a(f"v_add_u32 v{vaddr}, s46, v{vt4}")
    a(f"v_and_b32 v{vt4}, 16, v0")
    a(f"v_cmp_ne_u32 vcc, 0, v{vt4}")
    a(f"v_add_u32 v{vt3}, {VCONST}, v{vt3}")
    a(f"v_mov_b32 v{vstep}, 16384")
    a(f"v_mov_b32 v{vmask}, 0xffff")
    a(f"v_cndmask_b32 v{vaddr}, v{vaddr}, v{vt3}, vcc")
    a(f"v_cndmask_b32 v{vstep}, v{vstep}, 0, vcc")
    a(f"v_cndmask_b32 v{vmask}, v{vmask}, -1, vcc")
    a(f"s_lshl_b32 s44, s{S_WAVE}, 9")
    a(f"v_add_u32 v{vcnt}, s44, v{vt3}")
    a(f"v_and_b32 v{vt4}, 27, v0")
    a(f"v_cmp_eq_u32 vcc, 16, v{vt4}")
    a(f"v_mov_b32 v{vt3}, 0x3f803f80")
    a(f"s_mov_b32 s{s_c}, 0")
    a(f"s_mov_b32 s{s_tgt}, 16")
    for i in range(4):
        a(f"v_cndmask_b32 v{V1+i}, 0, v{vt3}, vcc")
    a("s_mov_b32 exec_lo, 0xffff0000")
    a("s_mov_b32 exec_hi, 0")
    a(f"ds_write_b128 v{vcnt}, {v(V1,4)}")
    a("s_mov_b64 exec, -1")
    for q in range(2):
        for i in range(16):
            a(f"v_mov_b32 v{O[q]+i}, 0")
    for i in range(8):
        a(f"v_mov_b32 v{P+i}, 0")
    a(f"s_mov_b32 s{s_slot}, 49152")
    a(f"v_and_b32 v{vgo}, 31, v0")
    a(f"s_and_b32 s44, s{s_T}, 7")
    a("s_lshl_b32 s44, s44, 7")
    a(f"s_add_u32 s44, s44, {GL}")
    a(f"v_lshl_add_u32 v{vgo}, v{vgo}, 2, s44")
    read_nonce(a, vt)
    a(f"s_cmp_eq_u32 s{S_WAVE}, 0")
    a("s_cbranch_scc0 L_at_waitgo")
    a(f"s_lshr_b32 s44, s{s_head}, 1")
    a("s_lshl_b32 s44, s44, 10")
    a(f"s_add_u32 s44, s44, {FQ}")
    lds_wait_ge(a, "atpost", V_MISC, L_POST, "4", vt)
    if o.pdelay: a(f"s_sleep {o.pdelay}")
    poll_flags(a, "atq", 44, vt, o.psleep)
    a(f"ds_write_b32 v{V_MISC}, v{V_ONE} offset:{L_GO}")
    a("s_branch L_at_go")
    a.label("L_at_waitgo")
    a("s_waitcnt vmcnt(0)")
    if o.upat == 11:
        a(f"s_cmp_ge_u32 s{S_WAVE}, 4")
        a("s_cbranch_scc0 L_at_nofb")
        lds_arrive(a, V_MISC, L_FB)
        a.label("L_at_nofb")
    lds_wait_ge(a, "atgo", V_MISC, L_GO, "1", vt)
    a.label("L_at_go")
    st.stamp(4)
    def dma(lit=None):
        if lit is not None: a(f"s_add_u32 m0, s{s_ld}, {lit}")
        else: a(f"s_add_u32 m0, s{s_ld}, s{s_slot}")
        a("s_nop 0")
        a(f"buffer_load_dwordx4 v{V_L16}, s[{SWS}:{SWS+3}], s{s_kg} offen sc1 lds")
        a("s_add_u32 m0, m0, 8192")
        a(f"s_add_u32 s{s_kg}, s{s_kg}, 8192")
        a(f"buffer_load_dwordx4 v{V_L16}, s[{SWS}:{SWS+3}], s{s_vg} offen sc1 lds")
        a(f"s_add_u32 s{s_vg}, s{s_vg}, 8192")
    a(f"buffer_load_dwordx4 {v(Q[0],4)}, v{V_L16}, s[{SWS}:{SWS+3}], s{s_q0} offen sc1")
    a(f"buffer_load_dwordx4 {v(Q[1],4)}, v{V_L16}, s[{SWS}:{SWS+3}], s{s_q1} offen sc1")
    dma(0)
    a("s_waitcnt vmcnt(0)")
    lds_arrive(a, V_MISC, L_ATT)
    dma(16384); dma(32768)
    a(f"s_cmp_ge_u32 s{S_WAVE}, 4")
    a("s_cbranch_scc0 L_at_nogst")
    a(f"v_mov_b32 v{GG+1}, s{S_NONCE}")
    a(f"v_mov_b32 v{GG+3}, s{S_NONCE}")
    a(f"s_lshl_b32 s44, s{s_lx}, 3")
    a(f"s_add_u32 s44, s44, {GA}")
    a("s_mov_b32 exec_lo, 0")
    a("s_brev_b32 exec_hi, 1")
    a(f"buffer_store_dwordx4 {v(GG,4)}, off, s[{SWS}:{SWS+3}], s44 sc1")
    a("s_mov_b64 exec, -1")
    a.label("L_at_nogst")
    lds_wait_ge(a, "at0", V_MISC, L_ATT, "8", vt, sleep=0)
    st.stamp(5)
    a(f"ds_read_b128 {v(V0,4)}, v{V_L16}")
    a(f"ds_read_b128 {v(KR,4)}, v{kaddr}")
    a("s_waitcnt lgkmcnt(1)")
    for q in range(2):
        a(f"{MF} {v(S[q],16)}, {v(V0,4)}, {v(Q[q],4)}, 0")
    a(f"ds_read_b128 {v(V0,4)}, v{vaddr}")
    a("s_nop 9")
    def maxtree(dst, src, first):
        if first:
            a(f"v_max3_f32 v{dst}, v{src}, v{src+1}, v{src+2}")
            rest = list(range(3, 16))
        else:
            rest = list(range(0, 16))
        while len(rest) >= 2:
            a(f"v_max3_f32 v{dst}, v{dst}, v{src+rest[0]}, v{src+rest[1]}")
            rest = rest[2:]
        if rest:
            a(f"v_max_f32 v{dst}, v{dst}, v{src+rest[0]}")
    def setC(q):
        a(f"v_mov_b32 v{vt2}, v{vt}")
        a("s_nop 1")
        a(f"v_permlane32_swap_b32 v{vt}, v{vt2}")
        a("s_nop 1")
        a(f"v_max_f32 v{vt}, v{vt}, v{vt2}")
        a(f"v_sub_f32 v{C[q]}, 0, v{vt}")
        a(f"v_sub_f32 v{C[q]+1}, 0, v{vt}")
        for i in range(1, 8):
            a(f"v_pk_mov_b32 {v(C[q]+2*i,2)}, {v(C[q],2)}, {v(C[q],2)}")
    maxtree(vt, S[0], True)
    setC(0)
    a("s_waitcnt lgkmcnt(0)")
    a("s_nop 0")
    maxtree(vt, S[1], True)
    a(f"{MF} {v(S[0],16)}, {v(KR,4)}, {v(Q[0],4)}, {v(C[0],16)}")
    setC(1)
    for i in range(2):
        a(f"v_mov_b32 v{S[1]+14+i}, 0")
    def e(cur, i): a(f"v_exp_f32 v{cur+i}, v{cur+i}")
    def c(cur, i): a(f"v_cvt_pk_bf16_f32 v{P+i}, v{cur+2*i}, v{cur+2*i+1}")
    def body(emit, lq):
        def A(s):
            if emit: a(s)
        def w(tag):
            n = lq.need(tag)
            if n is not None: A(f"s_waitcnt lgkmcnt({n})")
        def E(cur, i):
            if emit: e(cur, i)
        def Cc(cur, i):
            if emit: c(cur, i)
        def rdv(reg, off, tag):
            A(f"ds_read_b128 {v(reg,4)}, v{vaddr} offset:{off}")
            lq.push(tag)
        for tt in range(4):
            for q in range(2):
                cur = S[q]; nxt = S[q ^ 1]
                stp = 2*tt + q
                if o.aprio >= 3 and stp in (0, o.aprio+1):
                    lab = a.newlabel("pr") if emit else ""
                    A(f"s_cmp_ge_u32 s{S_WAVE}, 4")
                    A(f"s_cbranch_scc1 {lab}")
                    A(f"s_setprio {1 if stp == 0 else 0}")
                    if emit: a.label(lab)
                E(cur, 0); Cc(nxt, 7); E(cur, 1); E(cur, 2)
                if q == 1: w("K")
                A(f"{MF} {v(O[q^1],16)}, {v(V1,4)}, {v(P+4,4)}, {v(O[q^1],16)}")
                if q == 0:
                    rdv(V1, tt*1024 + 512, "V1")
                if stp == o.xat:
                    if emit: st.abeg()
                    A("s_waitcnt vmcnt(2)")
                    if emit: st.aend(0)
                    A("s_mov_b64 exec, 1")
                    A(f"ds_add_u32 v{V_MISC}, v{V_ONE} offset:{L_ATT}")
                    A("s_mov_b64 exec, -1")
                    lq.push("X")
                if tt == 2 and q == 1:
                    A(f"ds_read_b32 v{vcnt}, v{V_MISC} offset:{L_ATT}")
                    lq.push("CNT")
                Cc(cur, 0); E(cur, 3); E(cur, 4); Cc(cur, 1); E(cur, 5); E(cur, 6)
                A(f"{MF} {v(nxt,16)}, {v(KR,4)}, {v(Q[q^1],4)}, {v(C[q^1],16)}")
                if q == 0:
                    if tt == 3:
                        w("V0")
                        A(f"v_cmp_gt_u32 vcc, s{s_tgt}, v{vcnt}")
                        A(f"v_add_u32 v{kaddr}, s{s_step}, v{kaddr}")
                        A("s_cbranch_vccnz L_at_slow")
                        if emit: a.label("L_at_back")
                        A(f"ds_read_b128 {v(KR,4)}, v{kaddr}")
                    else:
                        A(f"ds_read_b128 {v(KR,4)}, v{kaddr} offset:{(tt+1)*1024}")
                    lq.push("K")
                Cc(cur, 2); E(cur, 7); E(cur, 8); Cc(cur, 3); E(cur, 9); E(cur, 10)
                if q == 0: w("V0")
                A(f"{MF} {v(O[q],16)}, {v(V0,4)}, {v(P,4)}, {v(O[q],16)}")
                if q == 1:
                    if tt == 3:
                        A(f"v_add_u32 v{vaddr}, v{vstep}, v{vaddr}")
                        A(f"v_and_b32 v{vaddr}, v{vmask}, v{vaddr}")
                        rdv(V0, 0, "V0")
                    else:
                        rdv(V0, (tt+1)*1024, "V0")
                if tt == 3 and q == 0 and emit:
                    a(f"s_cmp_lt_u32 s{s_c}, 5")
                    a("s_cbranch_scc0 L_at_nodma")
                    st.abeg()
                    dma()
                    st.aend(2)
                    a(f"s_add_u32 s{s_slot}, s{s_slot}, 16384")
                    a(f"s_and_b32 s{s_slot}, s{s_slot}, 0xffff")
                    a.label("L_at_dmadone")
                Cc(cur, 4); E(cur, 11); E(cur, 12); Cc(cur, 5); E(cur, 13); E(cur, 14); Cc(cur, 6); E(cur, 15)
    lq = LQ()
    body(False, lq)
    steady = list(lq.q)
    if o.aprio:
        a(f"s_cmp_lt_u32 s{S_WAVE}, 4")
        a("s_cbranch_scc1 L_at_np")
        a("s_setprio 1")
        a.label("L_at_np")
    st.stamp(8)
    if o.no_att: a("s_branch L_at_skip")
    a(".p2align 6")
    a.label("L_at_loop")
    a(f"s_cmp_eq_u32 s{s_c}, 3")
    a(f"s_cselect_b32 s{s_step}, {(-49152) & 0xffffffff}, s47") if False else None
    a(f"s_mov_b32 s44, {(-49152) & 0xffffffff}")
    a(f"s_cselect_b32 s{s_step}, s44, 16384")
    body(True, lq)
    assert lq.q == steady, (lq.q, steady)
    a(f"s_add_u32 s{s_c}, s{s_c}, 1")
    a(f"s_add_u32 s{s_tgt}, s{s_tgt}, 8")
    a(f"s_cmp_lt_u32 s{s_c}, 8")
    a("s_cbranch_scc1 L_at_loop")
    a.label("L_at_skip")
    st.stamp(9)
    c(S[1], 7)
    a(f"s_mul_i32 s44, s{S_WAVE}, 3072")
    a(f"s_xor_b32 s45, s{S_WAVE}, 4")
    a(f"{MF} {v(O[1],16)}, {v(V1,4)}, {v(P+4,4)}, {v(O[1],16)}")
    a(f"v_add_u32 v{kaddr}, s44, v{V_L16}")
    a("s_mul_i32 s45, s45, 3072")
    a(f"v_add_u32 v{vaddr}, s45, v{V_L16}")
    a(f"s_and_b32 s44, s{S_WAVE}, 3")
    a(f"v_lshl_add_u32 v{vt3}, s44, 2, v{V_MISC}")
    a(f"s_lshl_b32 s46, s{s_T}, 5")
    a(f"s_add_u32 s46, s46, s{s_head}")
    a("s_lshl_b32 s46, s46, 10")
    a(f"s_add_u32 s{s_q0}, s46, {OF}")
    a(f"s_lshr_b32 s44, s{s_T}, 1")
    a("s_lshl_b32 s44, s44, 10")
    a(f"s_lshl_b32 s45, s{s_head}, 1")
    a(f"s_and_b32 s46, s{s_T}, 1")
    a("s_add_u32 s45, s45, s46")
    a("s_lshl_b32 s45, s45, 4")
    a("s_add_u32 s44, s44, s45")
    a(f"s_add_u32 s{s_q1}, s44, {FO}")
    for i in range(3):
        a(f"ds_write_b128 v{kaddr}, {v(O[1]+4*i,4)} offset:{i*1024}")
    a("s_waitcnt lgkmcnt(0)")
    lds_arrive(a, vt3, L_PAIR)
    a(f"s_mov_b32 s{S_SPIN}, 0")
    a.label("L_at_pair")
    a(f"ds_read_b32 v{vt}, v{vt3} offset:{L_PAIR}")
    for i in range(3):
        a(f"ds_read_b128 {v(O[1]+4*i,4)}, v{vaddr} offset:{i*1024}")
    a(f"ds_read_b32 v{vg}, v{vgo}")
    a(f"s_add_u32 s{S_SPIN}, s{S_SPIN}, 1")
    a("s_waitcnt lgkmcnt(0)")
    a(f"v_cmp_gt_u32 vcc, 3, v{vt}")
    a(f"s_cmp_gt_u32 s{S_SPIN}, 2000000")
    a("s_cbranch_scc1 L_at_pok")
    a("s_cbranch_vccz L_at_pok")
    a(f"s_sleep {64 if o.no_att else 1}")
    a("s_branch L_at_pair")
    a.label("L_at_pok")
    a(f"v_add_f32 v{O[0]+8}, v{O[0]+8}, v{O[1]+8}")
    for i in range(4):
        a(f"v_pk_add_f32 {v(O[0]+2*i,2)}, {v(O[0]+2*i,2)}, {v(O[1]+2*i,2)}")
    a(f"v_max3_f32 v{vt2}, abs(v{O[0]}), abs(v{O[0]+1}), abs(v{O[0]+2})") if False else None
    a(f"v_mov_b32 v{vt}, {f32bits(2.0**30)}")
    a(f"v_cmp_nle_f32 vcc, v{O[0]+8}, v{vt}")
    a(f"v_pk_mul_f32 {v(S[0],2)}, {v(O[0],2)}, 0")
    for i in range(1, 4):
        a(f"v_pk_fma_f32 {v(S[0],2)}, {v(O[0]+2*i,2)}, 0, {v(S[0],2)}")
    a(f"v_cmp_u_f32 s[44:45], v{S[0]}, v{S[0]+1}")
    a(f"v_rcp_f32 v{vt}, v{O[0]+8}")
    a("s_nop 2")
    a("s_or_b64 vcc, vcc, s[44:45]")
    a("s_cbranch_vccnz L_at_fallback")
    a.label("L_at_fin")
    a(f"v_mul_f32 v{vt}, v{vg}, v{vt}")
    for i in range(4):
        a(f"v_pk_mul_f32 {v(O[0]+2*i,2)}, {v(O[0]+2*i,2)}, {v(vt,2)} op_sel_hi:[1,0]")
    for i in range(4):
        a(f"v_cvt_pk_bf16_f32 v{P+i}, v{O[0]+2*i}, v{O[0]+2*i+1}")
    a(f"buffer_store_dwordx4 {v(P,4)}, v{V_L16}, s[{SWS}:{SWS+3}], s{s_q0} offen sc1")
    st.stamp(10)
    post_flag(a, s_q1, vt3)
    finish(a, st)
    a.label("L_at_nodma")
    a("s_waitcnt vmcnt(0)")
    a("s_branch L_at_dmadone")
    a.label("L_at_slow")
    st.abeg()
    lds_wait_ge(a, "ats", V_MISC, L_ATT, f"s{s_tgt}", vcnt)
    st.aend(1)
    a("s_branch L_at_back")
    def fallback():
        a.label("L_at_fallback")
        a(f"s_lshl_b32 s46, s{s_head}, 16")
        a(f"s_add_u32 s{s_kg}, s46, {KF}")
        a(f"v_mov_b32 v{vt}, 0xff800000")
        a(f"s_mov_b32 s{s_c}, 0")
        a.label("L_at_fb1")
        a(f"buffer_load_dwordx4 {v(KR,4)}, v{V_L16}, s[{SWS}:{SWS+3}], s{s_kg} offen sc1")
        a(f"s_add_u32 s{s_kg}, s{s_kg}, 1024")
        a("s_waitcnt vmcnt(0)")
        a(f"{MF} {v(S[0],16)}, {v(KR,4)}, {v(Q[0],4)}, 0")
        a("s_nop 15")
        maxtree(vt, S[0], False)
        a(f"s_add_u32 s{s_c}, s{s_c}, 1")
        a(f"s_cmp_lt_u32 s{s_c}, 64")
        a("s_cbranch_scc1 L_at_fb1")
        setC(0)
        for i in range(16):
            a(f"v_mov_b32 v{O[0]+i}, 0")
        a(f"v_and_b32 v{vt}, 15, v0")
        a(f"v_lshlrev_b32 v{vt}, 4, v{vt}")
        a(f"v_lshrrev_b32 v{vt2}, 5, v0")
        a(f"v_lshl_add_u32 v{vaddr}, v{vt2}, 8, v{vt}")
        a(f"s_add_u32 s{s_kg}, s46, {KF}")
        a(f"s_add_u32 s{s_vg}, s46, {VF}")
        a(f"s_mov_b32 s{s_c}, 0")
        a("s_mov_b32 s44, 0xffff")
        a("s_mov_b32 s45, 0xffff")
        a.label("L_at_fb2")
        a(f"buffer_load_dwordx4 {v(KR,4)}, v{V_L16}, s[{SWS}:{SWS+3}], s{s_kg} offen sc1")
        a("s_mov_b64 exec, s[44:45]")
        a(f"buffer_load_dwordx4 {v(V0,4)}, v{vaddr}, s[{SWS}:{SWS+3}], s{s_vg} offen sc1")
        a(f"buffer_load_dwordx4 {v(V1,4)}, v{vaddr}, s[{SWS}:{SWS+3}], s{s_vg} offen offset:512 sc1")
        a("s_mov_b64 exec, -1")
        a(f"s_add_u32 s{s_kg}, s{s_kg}, 1024")
        a(f"s_add_u32 s{s_vg}, s{s_vg}, 1024")
        a("s_waitcnt vmcnt(0)")
        a(f"{MF} {v(S[0],16)}, {v(KR,4)}, {v(Q[0],4)}, {v(C[0],16)}")
        a("s_nop 15")
        for i in range(16): e(S[0], i)
        a("s_nop 0")
        for i in range(8): c(S[0], i)
        a("s_nop 1")
        a(f"{MF} {v(O[0],16)}, {v(V0,4)}, {v(P,4)}, {v(O[0],16)}")
        a(f"{MF} {v(O[0],16)}, {v(V1,4)}, {v(P+4,4)}, {v(O[0],16)}")
        a("s_nop 15")
        a(f"s_add_u32 s{s_c}, s{s_c}, 1")
        a(f"s_cmp_lt_u32 s{s_c}, 64")
        a("s_cbranch_scc1 L_at_fb2")
        a(f"v_rcp_f32 v{vt}, v{O[0]+8}")
        a("s_branch L_at_fin")
    return R.hi, fallback

def fbar(a, vt):
    tag = a.newlabel("fb")[2:]
    a(f"s_add_u32 s{S_FBT}, s{S_FBT}, 4")
    lds_arrive(a, V_MISC, L_FB)
    lds_wait_ge(a, tag, V_MISC, L_FB, f"s{S_FBT}", vt, sleep=o.fsleep)

def pace(a):
    if o.fpace: a(f"s_nop {o.fpace-1}")

def f_waves(a, st):
    t0 = 4
    vx, vw, uxaddr, uwaddr = 8, [9, 10, 11], [12, 13, 14, 15], 16
    vsrc, wa = 17, [18, 19]
    BASE = 20
    s_fw, s_rb, s_cg, s_u0, s_xoff, s_woff, s_lx, s_lw, s_skip = 48, 49, 50, 51, 52, 53, 54, 55, 56
    s_dx, s_dw, s_stage, s_T2, s_N2, s_lb = 57, 58, 59, 60, 61, 62
    s_t1, s_t2, s_t3, s_t4 = 63, 64, 65, 66
    hi = []
    a(f"s_sub_u32 s{s_fw}, s{S_WAVE}, 8")
    a(f"s_mov_b32 s{S_FBT}, 0")
    R = Regs(BASE)
    xaddr = [R.alloc() for _ in range(4)]
    waddr = R.alloc()
    XF = [R.alloc(4) for _ in range(2)]
    WF = [[R.alloc(4) for _ in range(3)] for _ in range(2)]
    ACC = [R.alloc(16) for _ in range(3)]
    TMP = R.alloc(24)
    hi.append(R.hi)
    ids_A(a, s_t1, s_t2)
    a(f"s_and_b32 s44, s{s_fw}, 1")
    a(f"s_lshr_b32 s46, s{s_fw}, 1")
    a(f"s_lshl_b32 s{s_t1}, s{s_t1}, 1")
    a(f"s_add_u32 s{s_t1}, s{s_t1}, s44")
    a(f"s_lshl_b32 s{s_t2}, s{s_t2}, 1")
    a(f"s_add_u32 s{s_t2}, s{s_t2}, s46")
    a(f"v_and_b32 v{t0}, 31, v0")
    a(f"v_lshrrev_b32 v{t0+1}, 5, v0")
    a(f"v_bfe_u32 v{t0+2}, v{t0}, 1, 3")
    a(f"v_xor_b32 v{t0+2}, v{t0+2}, v{t0+1}")
    a(f"v_lshlrev_b32 v{t0+2}, 4, v{t0+2}")
    a(f"v_lshl_add_u32 v{t0}, v{t0}, 7, v{t0+2}")
    a("s_lshl_b32 s45, s44, 12")
    a(f"s_add_u32 s45, s45, {A_SLOT}")
    a("s_lshl_b32 s47, s44, 13")
    a(f"s_add_u32 s47, s47, {UX[0]}")
    for kk in range(4):
        a(f"v_xor_b32 v{t0+3}, {kk*32}, v{t0}")
        a(f"v_add_u32 v{xaddr[kk]}, s45, v{t0+3}")
        a(f"v_add_u32 v{uxaddr[kk]}, s47, v{t0+3}")
    a(f"v_bfe_u32 v{t0}, v0, 2, 2")
    a(f"v_bfe_u32 v{t0+2}, v0, 4, 1")
    a(f"v_and_b32 v{t0+3}, 3, v0")
    a(f"v_lshlrev_b32 v{t0+3}, 3, v{t0+3}")
    a(f"v_lshl_add_u32 v{uwaddr}, v{t0+1}, 3, v{t0}")
    a(f"v_mul_u32_u24 v{uwaddr}, 192, v{uwaddr}")
    a(f"v_mul_u32_u24 v{vsrc}, {WIMG}, v{t0+2}")
    a(f"v_add3_u32 v{uwaddr}, v{uwaddr}, v{vsrc}, v{t0+3}")
    a("s_mul_i32 s45, s46, 96")
    a(f"s_add_u32 s45, s45, {UW[0]}")
    a(f"v_add_u32 v{uwaddr}, s45, v{uwaddr}")
    a(f"v_lshl_add_u32 v{t0+3}, v{t0+2}, 5, v{t0+3}")
    a(f"v_lshl_add_u32 v{t0+3}, v{t0}, 7, v{t0+3}")
    a(f"v_lshlrev_b32 v{t0}, 5, v{t0}")
    a(f"v_and_b32 v{t0}, 64, v{t0}")
    a("s_lshl_b32 s45, s46, 6")
    a(f"v_xor_b32 v{t0}, s45, v{t0}")
    a(f"v_add_u32 v{t0+3}, v{t0+3}, v{t0}")
    a(f"v_mul_u32_u24 v{t0}, 3072, v{t0+1}")
    a(f"v_add_u32 v{t0}, {8192+A_SLOT}, v{t0}")
    a(f"v_add_u32 v{waddr}, v{t0}, v{t0+3}")
    a(f"s_lshl_b32 s{s_lb}, s{s_fw}, 14")
    a(f"s_add_u32 s{s_lb}, s{s_lb}, {STG}")
    a(f"v_lshl_add_u32 v{t0+3}, v{t0+1}, 9, v{t0+3}")
    a(f"v_add_u32 v{wa[0]}, s{s_lb}, v{t0+3}")
    a(f"v_xor_b32 v{wa[1]}, 64, v{wa[0]}")
    a(f"s_lshl_b32 s44, s{S_XCD}, 2")
    a(f"s_and_b32 s45, s{S_LOC}, 3")
    a(f"s_add_u32 s{s_T2}, s44, s45")
    a(f"s_lshr_b32 s{s_N2}, s{S_LOC}, 2")
    a(f"v_lshrrev_b32 v{t0}, 3, v0")
    a(f"v_and_b32 v{t0+1}, 7, v0")
    a(f"v_lshrrev_b32 v{t0+2}, 1, v{t0}")
    a(f"v_lshlrev_b32 v{t0+3}, 2, v{t0+2}")
    a(f"v_and_b32 v{t0+3}, 4, v{t0+3}")
    a(f"v_xor_b32 v{t0+3}, v{t0+1}, v{t0+3}")
    a(f"v_lshlrev_b32 v{t0+3}, 4, v{t0+3}")
    a(f"v_lshl_add_u32 v{t0+3}, v{t0}, 10, v{t0+3}")
    a(f"s_lshl_b32 s44, s{s_N2}, 7")
    a(f"v_add_u32 v{vsrc}, s44, v{t0+3}")
    up_dma_setup(a, t0, vx, vw, s_fw, s_rb, s_cg, s_u0, s_lx, s_lw, s_xoff, s_woff)
    a(f"s_lshr_b32 s46, s{s_fw}, 1")
    a(f"s_cmp_ge_u32 s{s_cg}, 6")
    a(f"s_cselect_b32 s{s_skip}, s46, 0")
    a(f"s_mov_b32 s{s_dx}, {UX[1]-UX[0]}")
    a(f"s_mov_b32 s{s_dw}, {(UW[1]-UW[0]) & 0xffffffff}")
    for u in range(3):
        a(f"v_mov_b32 v{ACC[u]}, 0")
        a(f"v_mov_b32 v{ACC[u]+1}, 0")
        for i in range(1, 8):
            a(f"v_pk_mov_b32 {v(ACC[u]+2*i,2)}, {v(ACC[u],2)}, {v(ACC[u],2)}")
    a(f"s_mov_b32 s{s_stage}, 0")
    a("s_waitcnt lgkmcnt(0)")
    srd(a, SWS, 24, 25, WS_BYTES)
    up_srd(a, s_fw, s_u0)
    def up_groups(only_book=False):
        g = [[]] if only_book else up_dma_groups(vx, vw, s_lx, s_lw, s_xoff, s_woff)
        g[-1] += [f"s_add_u32 s{s_xoff}, s{s_xoff}, 128",
                  f"s_add_u32 s{s_woff}, s{s_woff}, {64*2752}",
                  f"s_and_b32 s{s_xoff}, s{s_xoff}, 1023",
                  f"s_cselect_b32 s{s_woff}, s{s_woff}, 0",
                  f"s_add_u32 s{s_lx}, s{s_lx}, s{s_dx}",
                  f"s_add_u32 s{s_lw}, s{s_lw}, s{s_dw}",
                  f"s_sub_u32 s{s_dx}, 0, s{s_dx}",
                  f"s_sub_u32 s{s_dw}, 0, s{s_dw}"]
        return g
    def up_issue():
        for grp in up_groups():
            for l in grp: a(l)
    def rd(kk, buf):
        a(f"ds_read_b128 {v(XF[buf],4)}, v{xaddr[kk]}")
        for p in range(3):
            off = kk*6144 + p*1024
            a(f"ds_read_b64_tr_b16 {v(WF[buf][p],2)}, v{waddr} offset:{off}")
            a(f"ds_read_b64_tr_b16 {v(WF[buf][p]+2,2)}, v{waddr} offset:{off+512}")
    def mm(buf):
        a(f"{MF} {v(ACC[1],16)}, {v(WF[buf][1],4)}, {v(XF[buf],4)}, {v(ACC[1],16)}")
        a(f"{MF} {v(ACC[2],16)}, {v(XF[buf],4)}, {v(WF[buf][2],4)}, {v(ACC[2],16)}")
        a(f"{MF} {v(ACC[0],16)}, {v(WF[buf][0],4)}, {v(XF[buf],4)}, {v(ACC[0],16)}")
    a("s_barrier")
    st.stamp(2)
    if st.en: a("s_waitcnt lgkmcnt(0)")
    rd(0, 0)
    a.label("L_A_loop")
    for kk in range(3):
        rd(kk+1, (kk+1) & 1)
        a("s_waitcnt lgkmcnt(7)")
        mm(kk & 1)
    a(f"s_add_u32 s{s_stage}, s{s_stage}, 1")
    a(f"s_lshr_b32 s44, 0x24, s{s_stage}")
    a("s_bitcmp1_b32 s44, 0")
    a(f"s_mov_b32 s45, {(-2*A_SLOT) & 0xffffffff}")
    a(f"s_cselect_b32 s44, s45, {A_SLOT}")
    for r in xaddr + [waddr]:
        a(f"v_add_u32 v{r}, s44, v{r}")
    a("s_waitcnt lgkmcnt(0)")
    a(f"s_cmp_eq_u32 s{s_stage}, 8")
    a("s_cbranch_scc1 L_A_tail")
    up_first = up_issue
    if not o.no_ffn and o.upat < 8:
        a(f"s_cmp_eq_u32 s{s_stage}, {o.upat}")
        a("s_cbranch_scc0 L_A_noup")
        up_first()
        a.label("L_A_noup")
    a("s_barrier")
    rd(0, 0)
    mm(1)
    a("s_branch L_A_loop")
    a.label("L_A_tail")
    mm(1)
    st.stamp(3)
    a(f"ds_read_b32 v{t0+2}, v{V_MISC} offset:{L_NONCE}")
    a(f"s_lshl_b32 s44, s{s_t2}, 17")
    a(f"s_lshl_b32 s45, s{s_t1}, 10")
    a("s_add_u32 s44, s44, s45")
    a(f"s_add_u32 s46, s44, {KF}")
    a(f"s_add_u32 s47, s46, 65536")
    a(f"s_add_u32 s45, s44, {VF}")
    a(f"v_and_b32 v{t0}, 15, v0")
    a(f"v_lshlrev_b32 v{t0}, 4, v{t0}")
    a(f"v_lshrrev_b32 v{t0+1}, 5, v0")
    a(f"v_lshl_add_u32 v{t0}, v{t0+1}, 8, v{t0}")
    a(f"v_bfe_u32 v{t0+1}, v0, 4, 1")
    a(f"v_lshl_add_u32 v{t0}, v{t0+1}, 16, v{t0}")
    for half in range(2):
        t = TMP + 4*half
        src = ACC[1] + 8*half
        for i in range(4):
            a(f"v_cvt_pk_bf16_f32 v{t+i}, v{src+2*i}, v{src+2*i+1}")
        a(f"buffer_store_dwordx4 {v(t,4)}, v{V_L16}, s[{SWS}:{SWS+3}], s{46+half} offen sc1")
    for half in range(2):
        t = TMP + 8 + 4*half
        src = ACC[2] + 8*half
        for i in range(4):
            a(f"v_cvt_pk_bf16_f32 v{t+i}, v{src+2*i}, v{src+2*i+1}")
        a(f"buffer_store_dwordx4 {v(t,4)}, v{t0}, s[{SWS}:{SWS+3}], s45 offen offset:{half*512} sc1")
    a(f"s_mov_b32 s46, {f32bits(QSCALE)}")
    a("s_mov_b32 s47, s46")
    a("s_add_u32 s45, s44, 65536")
    for half in range(2):
        t = TMP + 16 + 4*half
        src = ACC[0] + 8*half
        for i in range(4):
            a(f"v_pk_mul_f32 {v(src+2*i,2)}, {v(src+2*i,2)}, s[46:47]")
        for i in range(4):
            a(f"v_cvt_pk_bf16_f32 v{t+i}, v{src+2*i}, v{src+2*i+1}")
        a(f"buffer_store_dwordx4 {v(t,4)}, v{V_L16}, s[{SWS}:{SWS+3}], s{44+half} offen sc1")
    a(f"s_lshl_b32 s44, s{s_t2}, 10")
    a(f"s_lshl_b32 s45, s{s_t1}, 4")
    a("s_add_u32 s44, s44, s45")
    a(f"s_add_u32 s{s_t3}, s44, {FQ}")
    a("s_waitcnt lgkmcnt(0)")
    a(f"v_readfirstlane_b32 s{S_NONCE}, v{t0+2}")
    R = Regs(BASE)
    XF = [[R.alloc(4) for _ in range(2)] for _ in range(2)]
    WF = [R.alloc(4) for _ in range(3)]
    UACC = [[R.alloc(16) for _ in range(2)] for _ in range(3)]
    hi.append(R.hi)
    if not o.no_ffn and o.upat == 8: up_first()
    post_flag(a, s_t3, t0)
    lds_arrive(a, V_MISC, L_POST)
    st.stamp(4)
    if o.no_ffn:
        finish(a, st)
    if o.upat == 9: up_first()
    if o.upat == 11:
        for l in up_groups(True)[0]: a(l)
        a(f"s_mov_b32 s{S_FBT}, 4")
    if o.upat == 10:
        lds_wait_ge(a, "upgo", V_MISC, L_ATT, "8", t0, sleep=4)
        up_first()
    if o.upat == 12:
        lds_wait_ge(a, "upgo", V_MISC, L_GO, "1", t0, sleep=2)
        a(f"s_sleep {o.udelay}")
        up_first()
    a(f"s_setprio {o.fprio}")
    a(f"v_mov_b32 v{UACC[0][0]}, 0")
    a(f"v_mov_b32 v{UACC[0][0]+1}, 0")
    for i in range(1, 48):
        a(f"v_pk_mov_b32 {v(UACC[0][0]+2*i,2)}, {v(UACC[0][0],2)}, {v(UACC[0][0],2)}")
    a(f"s_mov_b32 s{s_stage}, 0")
    a(f"s_mov_b32 s{s_t1}, {UX[1]-UX[0]}")
    a(f"s_mov_b32 s{s_t2}, {(UW[1]-UW[0]) & 0xffffffff}")
    def rd_x(kk, buf):
        for t in range(2):
            a(f"ds_read_b128 {v(XF[buf][t],4)}, v{uxaddr[kk]} offset:{t*4096}")
    def rd_w(kk, u):
        off = kk*16*192 + u*32
        a(f"ds_read_b64_tr_b16 {v(WF[u],2)}, v{uwaddr} offset:{off}")
        a(f"ds_read_b64_tr_b16 {v(WF[u]+2,2)}, v{uwaddr} offset:{off+4*192}")
    def nops(n):
        if n > 0: a(f"s_nop {n-1}")
    def umm(u, buf, fill=None, after=3):
        for t in range(2):
            if not o.nomm: a(f"{MF} {v(UACC[u][t],16)}, {v(WF[u],4)}, {v(XF[buf][t],4)}, {v(UACC[u][t],16)}")
            if fill:
                for l in fill.pop(0):
                    if not (o.nodma and "buffer_load" in l): a(l)
            else:
                nops(o.fpace - (after if t == 1 else 0))
    st.abeg()
    a("s_waitcnt vmcnt(0)")
    fbar(a, t0)
    st.aend(2)
    rd_x(0, 0)
    for u in range(3): rd_w(0, u)
    a(f"s_setprio {o.mprio}")
    def umm_skip(u, buf):
        if u == 2:
            lab = a.newlabel("upskip")
            a(f"s_cmp_lg_u32 s{s_skip}, 0")
            a(f"s_cbranch_scc1 {lab}")
            umm(u, buf)
            a.label(lab)
        else:
            umm(u, buf)
    if o.upwarm:
        srd(a, SC, 16, 17, 1376*1024)
        a(f"s_and_b32 s44, s{S_LOC}, 3")
        a("s_lshl_b32 s44, s44, 2")
        a(f"s_add_u32 s44, s44, s{s_fw}")
        a(f"s_mul_i32 s{s_t4}, s44, {88*1024}")
    a.label("L_up_loop")
    groups = up_groups()
    if o.upwarm:
        for i in range(2):
            groups.append([f"buffer_load_dwordx4 v[160:163], v{vsrc}, s[{SC}:{SC+3}], s{s_t4} offen",
                           f"s_add_u32 s{s_t4}, s{s_t4}, 8192"])
    for kk in range(3):
        buf = kk & 1
        for u in range(3):
            younger = (2-u)*2 + (0 if u == 0 else 2 + 2*u)
            a(f"s_waitcnt lgkmcnt({younger})")
            if u == 2: umm_skip(u, buf)
            else: umm(u, buf, groups, 5 if u == 0 else 3)
            if u == 0: rd_x(kk+1, buf ^ 1)
            rd_w(kk+1, u)
    assert not groups
    a("s_waitcnt lgkmcnt(4)")
    umm(0, 1)
    a(f"s_cmp_eq_u32 s{s_stage}, 7")
    a("s_cbranch_scc1 L_up_last")
    st.abeg()
    a(f"s_waitcnt vmcnt({2 if o.upwarm else 0}) lgkmcnt(0)")
    st.aend(0)
    a(f"s_add_u32 s{S_FBT}, s{S_FBT}, 4")
    lds_arrive(a, V_MISC, L_FB)
    umm(1, 1)
    a(f"s_setprio {o.fprio}")
    for r in uxaddr:
        a(f"v_add_u32 v{r}, s{s_t1}, v{r}")
    a(f"v_add_u32 v{uwaddr}, s{s_t2}, v{uwaddr}")
    st.abeg()
    lds_wait_ge(a, "upb", V_MISC, L_FB, f"s{S_FBT}", t0, sleep=1)
    st.aend(1)
    a(f"s_setprio {o.mprio}")
    rd_x(0, 0)
    rd_w(0, 0); rd_w(0, 1)
    umm_skip(2, 1)
    rd_w(0, 2)
    a(f"s_sub_u32 s{s_t1}, 0, s{s_t1}")
    a(f"s_sub_u32 s{s_t2}, 0, s{s_t2}")
    a(f"s_add_u32 s{s_stage}, s{s_stage}, 1")
    a(f"s_cmp_eq_u32 s{s_stage}, 7")
    a(f"s_cselect_b32 s{SA+2}, 0, s{SA+2}")
    a(f"s_cselect_b32 s{SB+2}, 0, s{SB+2}")
    if o.upwarm:
        a(f"s_cmp_ge_u32 s{s_stage}, 6")
        a(f"s_cselect_b32 s{SC+2}, 0, s{SC+2}")
    a("s_branch L_up_loop")
    a.label("L_up_last")
    a("s_waitcnt lgkmcnt(0)")
    umm(1, 1)
    umm_skip(2, 1)
    a(f"s_setprio {o.fprio}")
    st.stamp(5)
    a(f"s_lshl_b32 s44, s{s_rb}, 2")
    a(f"s_and_b32 s45, s{s_fw}, 1")
    a("s_lshl_b32 s45, s45, 1")
    a("s_add_u32 s44, s44, s45")
    a("s_mul_i32 s44, s44, 86")
    a(f"s_add_u32 s44, s44, s{s_u0}")
    a(f"s_lshr_b32 s45, s{s_fw}, 1")
    a("s_mul_i32 s45, s45, 3")
    a("s_add_u32 s44, s44, s45")
    a("s_lshl_b32 s44, s44, 10")
    a(f"s_add_u32 s44, s44, {HF}")
    a(f"s_add_u32 s45, s44, {86*1024}")
    a(f"s_mov_b32 s{s_t2}, {f32bits(-LOG2E)}")
    a(f"s_mov_b32 s{s_t3}, s{s_t2}")
    assert s_t2 % 2 == 0 and s_t3 == s_t2 + 1
    for u in range(3):
        if u == 2:
            a(f"s_cmp_lg_u32 s{s_skip}, 0")
            a("s_cbranch_scc1 L_up_done")
        for t in range(2):
            g = UACC[u][t]; up = g + 8
            tm = XF[u & 1][t]
            for i in range(4): a(f"v_pk_mul_f32 {v(g+2*i,2)}, {v(g+2*i,2)}, s[{s_t2}:{s_t3}]")
            for i in range(8): a(f"v_exp_f32 v{g+i}, v{g+i}")
            for i in range(4): a(f"v_pk_add_f32 {v(g+2*i,2)}, {v(g+2*i,2)}, 1.0 op_sel_hi:[1,0]")
            for i in range(8): a(f"v_rcp_f32 v{g+i}, v{g+i}")
            for i in range(4): a(f"v_pk_mul_f32 {v(g+2*i,2)}, {v(g+2*i,2)}, {v(up+2*i,2)}")
            for i in range(4): a(f"v_cvt_pk_bf16_f32 v{tm+i}, v{g+2*i}, v{g+2*i+1}")
            a(f"buffer_store_dwordx4 {v(tm,4)}, v{V_L16}, s[{SWS}:{SWS+3}], s{44+t} offen offset:{u*1024} sc1")
    a.label("L_up_done")
    a(f"s_lshl_b32 s44, s{s_rb}, 10")
    a(f"s_lshl_b32 s45, s{s_cg}, 6")
    a("s_add_u32 s44, s44, s45")
    a(f"s_lshl_b32 s45, s{s_fw}, 4")
    a("s_add_u32 s44, s44, s45")
    a(f"s_add_u32 s44, s44, {FH}")
    post_flag(a, 44, t0)
    st.stamp(8)
    s_h0, s_h1, s_w, s_i, s_T, s_nt, s_idx, s_dl = 49, 50, 51, 52, 53, 54, 55, 56
    R = Regs(BASE)
    ACC = [R.alloc(16) for _ in range(4)]
    HFR = [[R.alloc(4) for _ in range(2)] for _ in range(8)]
    WF = [[R.alloc(4) for _ in range(2)] for _ in range(2)]
    G = [8, 10]; VOUT = 12; da = [13, 14]
    hi.append(R.hi)
    fbar(a, t0)
    srd(a, SA, 8, 9, 512*1024)
    a(f"s_lshl_b32 s{s_w}, s{s_fw}, 17")
    a(f"s_mov_b32 m0, s{s_lb}")
    a(f"s_mov_b32 s{s_i}, 14")
    a.label("L_wo_ld")
    a(f"buffer_load_dwordx4 v{vsrc}, s[{SA}:{SA+3}], s{s_w} offen lds")
    a("s_add_u32 m0, m0, 1024")
    a(f"s_add_u32 s{s_w}, s{s_w}, 8192")
    a(f"s_sub_u32 s{s_i}, s{s_i}, 1")
    a(f"s_cmp_lg_u32 s{s_i}, 0")
    a("s_cbranch_scc1 L_wo_ld")
    srd(a, SA, 16, 17, 1376*1024)
    if o.wdwarm:
        a(f"s_and_b32 s44, s{S_LOC}, 3")
        a("s_lshl_b32 s44, s44, 2")
        a(f"s_add_u32 s44, s44, s{s_fw}")
        a(f"s_mul_i32 s44, s44, {88*1024}")
        a(f"s_mov_b32 s{s_i}, 11")
        a.label("L_wd_warm")
        a(f"buffer_load_dwordx4 {v(HFR[7][0],4)}, v{vsrc}, s[{SA}:{SA+3}], s44 offen")
        a("s_add_u32 s44, s44, 8192")
        a(f"s_sub_u32 s{s_i}, s{s_i}, 1")
        a(f"s_cmp_lg_u32 s{s_i}, 0")
        a("s_cbranch_scc1 L_wd_warm")
    a(f"s_mul_i32 s{s_dl}, s{s_fw}, 6144")
    a(f"s_add_u32 s{s_dl}, s{s_dl}, {DRING}")
    a(f"s_sub_u32 s44, s{s_dl}, s{s_lb}")
    for n in range(2): a(f"v_add_u32 v{da[n]}, s44, v{wa[n]}")
    a(f"s_lshl_b32 s{s_w}, s{s_fw}, 14")
    a(f"s_lshl_b32 s44, s{s_T2}, 1")
    a(f"s_and_b32 s45, s{s_fw}, 1")
    a(f"s_add_u32 s{s_T}, s44, s45")
    a(f"s_xor_b32 s47, s{s_T}, 1")
    for d, sx in ((s_h0, s_T), (s_h1, 47)):
        a(f"s_mul_i32 s{d}, s{sx}, 86")
        a(f"s_add_u32 s{d}, s{d}, s{s_fw}")
        a(f"s_lshl_b32 s{d}, s{d}, 10")
        a(f"s_add_u32 s{d}, s{d}, {HF}")
    a(f"s_lshl_b32 s44, s{s_N2}, 1")
    a(f"s_lshr_b32 s45, s{s_fw}, 1")
    a(f"s_add_u32 s{s_nt}, s44, s45")
    a(f"v_and_b32 v{t0}, 31, v0")
    a(f"v_lshrrev_b32 v{t0+1}, 5, v0")
    a(f"v_lshlrev_b32 v{t0+1}, 4, v{t0+1}")
    a(f"v_lshl_add_u32 v{VOUT}, v{t0}, 10, v{t0+1}")
    a(f"v_lshlrev_b32 v{t0}, 2, v{t0}")
    a(f"s_cmp_eq_u32 s{s_fw}, 1")
    a("s_cbranch_scc0 L_dn_nog")
    GR = HFR[0][0]
    a(f"s_lshl_b32 s44, s{s_N2}, 11")
    a(f"s_add_u32 s44, s44, {GA}")
    a(f"s_lshl_b32 s45, s{s_T2}, 9")
    a(f"s_add_u32 s45, s45, {GA}")
    a(f"v_lshlrev_b32 v{t0+2}, 2, v{t0}")
    a(f"s_mov_b32 s{S_SPIN}, 0")
    a.label("L_g_poll")
    a(f"buffer_load_dwordx4 {v(GR,4)}, v{V_L16}, s[{SWS}:{SWS+3}], s44 offen sc1")
    a(f"buffer_load_dwordx4 {v(GR+4,4)}, v{V_L16}, s[{SWS}:{SWS+3}], s44 offen offset:1024 sc1")
    a(f"buffer_load_dwordx4 {v(GR+8,4)}, v{t0+2}, s[{SWS}:{SWS+3}], s45 offen sc1")
    a(f"s_add_u32 s{S_SPIN}, s{S_SPIN}, 1")
    a("s_waitcnt vmcnt(0)")
    for i in range(6): a(f"v_xor_b32 v{GR+1+2*i}, s{S_NONCE}, v{GR+1+2*i}")
    a(f"v_or3_b32 v{GR+1}, v{GR+1}, v{GR+3}, v{GR+5}")
    a(f"v_or3_b32 v{GR+1}, v{GR+1}, v{GR+7}, v{GR+9}")
    a(f"v_or_b32 v{GR+1}, v{GR+1}, v{GR+11}")
    a(f"v_cmp_ne_u32 vcc, 0, v{GR+1}")
    a(f"s_cmp_gt_u32 s{S_SPIN}, 200000")
    a("s_cbranch_scc1 L_g_got")
    a("s_cbranch_vccz L_g_got")
    a("s_sleep 8")
    a("s_branch L_g_poll")
    a.label("L_g_got")
    a(f"v_lshlrev_b32 v{t0+1}, 3, v0")
    a(f"v_add_u32 v{t0+1}, {GL}, v{t0+1}")
    a(f"v_lshlrev_b32 v{t0+2}, 1, v{t0}")
    a(f"v_add_u32 v{t0+2}, {GL+1024}, v{t0+2}")
    a(f"ds_write2_b32 v{t0+1}, v{GR}, v{GR+2} offset0:0 offset1:1")
    a(f"ds_write2_b32 v{t0+1}, v{GR+4}, v{GR+6} offset0:128 offset1:129")
    a(f"ds_write2_b32 v{t0+2}, v{GR+8}, v{GR+10} offset0:0 offset1:1")
    a(f"v_lshl_add_u32 v{t0+1}, v0, 2, v{V_MISC}")
    a("s_waitcnt lgkmcnt(0)")
    a("s_mov_b64 exec, 15")
    a(f"ds_add_u32 v{t0+1}, v{V_ONE} offset:{L_PAIR}")
    a("s_mov_b64 exec, -1")
    a.label("L_dn_nog")
    a(f"s_cmp_eq_u32 s{s_fw}, 0")
    a("s_cbranch_scc0 L_dn_nopoll")
    a(f"s_lshr_b32 s44, s{s_T2}, 1")
    a("s_lshl_b32 s44, s44, 10")
    a(f"s_add_u32 s44, s44, {FH}")
    poll_flags(a, "dn", 44, t0+1, 8)
    a.label("L_dn_nopoll")
    fbar(a, t0+1)
    st.stamp(9)
    a(f"s_and_b32 s44, s{s_fw}, 1")
    a("s_lshl_b32 s44, s44, 7")
    a(f"s_add_u32 s44, s44, {GL+1024}")
    a(f"v_add_u32 v{t0}, s44, v{t0}")
    a(f"v_xor_b32 v{t0+1}, 128, v{t0}")
    for t in range(2): a(f"ds_read_b32 v{G[t]}, v{t0+t}")
    def ld_parts(g, wrap=True):
        p0 = [f"s_add_u32 m0, s{s_dl}, {(g%4)*2048}" if g % 4 < 3 else f"s_add_u32 m0, s{s_lb}, {7*2048}",
              f"s_add_u32 s44, s{s_w}, 8192",
              f"buffer_load_dwordx4 v{vsrc}, s[{SA}:{SA+3}], s{s_w} offen lds"]
        p1 = ["s_add_u32 m0, m0, 1024",
              f"s_add_u32 s{s_idx}, s{s_idx}, 1",
              f"buffer_load_dwordx4 v{vsrc}, s[{SA}:{SA+3}], s44 offen lds"]
        p2 = [f"buffer_load_dwordx4 {v(HFR[g%4][0],4)}, v{V_L16}, s[{SWS}:{SWS+3}], s{s_h0} offen sc1",
              f"buffer_load_dwordx4 {v(HFR[g%4][1],4)}, v{V_L16}, s[{SWS}:{SWS+3}], s{s_h1} offen sc1"]
        p3 = [f"s_cmp_eq_u32 s{s_idx}, 21",
              f"s_cselect_b32 s44, {(-20*4096) & 0xffffffff}, s47",
              f"s_add_u32 s{s_h0}, s{s_h0}, s44",
              f"s_add_u32 s{s_h1}, s{s_h1}, s44",
              "s_lshl_b32 s44, s44, 4",
              f"s_add_u32 s{s_w}, s{s_w}, s44"] if wrap else []
        return [p0, p1, [], p2 + p3]
    def ld(g, wrap=True):
        for p in ld_parts(g, wrap):
            for l in p: a(l)
    def rdw(addr, off, buf):
        for n in range(2):
            a(f"ds_read_b64_tr_b16 {v(WF[buf][n],2)}, v{addr[n]} offset:{off}")
            a(f"ds_read_b64_tr_b16 {v(WF[buf][n]+2,2)}, v{addr[n]} offset:{off+1024}")
    a("s_movk_i32 s47, 4096")
    a(f"s_and_b32 s44, s{S_LOC}, 3")
    a("s_mul_i32 s44, s44, 5")
    a(f"s_mul_i32 s45, s{s_N2}, 21")
    a("s_lshr_b32 s45, s45, 3")
    a("s_add_u32 s44, s44, s45")
    a("s_cmp_ge_u32 s44, 21")
    a("s_cselect_b32 s45, 21, 0")
    a(f"s_sub_u32 s{s_i}, s44, s45")
    if not o.stag: a(f"s_mov_b32 s{s_i}, 0")
    a(f"s_cmp_lt_u32 s{s_fw}, 2")
    a(f"s_cselect_b32 s45, {21*4096}, 0")
    a(f"s_add_u32 s{s_h0}, s{s_h0}, s45")
    a(f"s_add_u32 s{s_h1}, s{s_h1}, s45")
    a(f"s_add_u32 s{s_w}, s{s_w}, {21*65536}")
    ld(0, False)
    a(f"s_lshl_b32 s44, s{s_i}, 12")
    a("s_sub_u32 s45, s44, s45")
    a(f"s_add_u32 s{s_h0}, s{s_h0}, s45")
    a(f"s_add_u32 s{s_h1}, s{s_h1}, s45")
    a("s_lshl_b32 s44, s44, 4")
    a(f"s_add_u32 s{s_w}, s{s_w}, s44")
    a(f"s_sub_u32 s{s_w}, s{s_w}, {21*65536}")
    a(f"s_mov_b32 s{s_idx}, s{s_i}")
    ld(1); ld(2); ld(3)
    a(f"s_setprio {o.mprio}")
    a("s_waitcnt vmcnt(12)")
    rdw(da, 0, 0)
    def rstep(k, load, nleft):
        b = k & 1
        if nleft is not None:
            a(f"s_waitcnt vmcnt({4*nleft})")
            if (k+1) % 4 < 3: rdw(da, ((k+1) % 4)*2048, b ^ 1)
            else: rdw(wa, 7*2048, b ^ 1)
            a("s_waitcnt lgkmcnt(4)")
        else:
            a("s_waitcnt lgkmcnt(0)")
        parts = ld_parts(k+4) if load else [[], [], [], []]
        for n in range(2):
            for t in range(2):
                c = "0" if k == 0 else v(ACC[2*n+t],16)
                a(f"{MF} {v(ACC[2*n+t],16)}, {v(WF[b][n],4)}, {v(HFR[k%4][t],4)}, {c}")
                for l in parts[2*n+t]: a(l)
                if not parts[2*n+t]: nops(o.fpace)
    rstep(0, True, 2)
    a(f"s_mov_b32 s{s_i}, 4")
    a.label("L_dn_loop")
    for k in range(1, 5): rstep(k, True, 2)
    a(f"s_sub_u32 s{s_i}, s{s_i}, 1")
    a(f"s_cmp_lg_u32 s{s_i}, 0")
    a("s_cbranch_scc1 L_dn_loop")
    rstep(17, True, 2); rstep(18, False, 2); rstep(19, False, 1); rstep(20, False, 0); rstep(21, False, None)
    srd(a, SA, 8, 9, 512*1024)
    a(f"s_lshl_b32 s44, s{s_fw}, 17")
    a(f"s_add_u32 s44, s44, {14*8192}")
    a(f"s_add_u32 m0, s{s_lb}, {14*1024}")
    a("s_add_u32 s45, s44, 8192")
    a(f"buffer_load_dwordx4 v{vsrc}, s[{SA}:{SA+3}], s44 offen lds")
    a("s_add_u32 m0, m0, 1024")
    a("s_nop 0")
    a(f"buffer_load_dwordx4 v{vsrc}, s[{SA}:{SA+3}], s45 offen lds")
    a(f"s_setprio {o.fprio}")
    st.stamp(10)
    s_o0, s_o1 = 49, 50
    rdw(wa, 0, 0)
    for t in range(2): a(f"v_sub_f32 v{G[t]}, 1.0, v{G[t]}")
    srd(a, SB, 20, 21, 2048*1024)
    a(f"s_lshl_b32 s44, s{s_T}, 15")
    a(f"s_lshl_b32 s45, s{s_fw}, 13")
    a("s_add_u32 s45, s44, s45")
    a(f"s_add_u32 s{s_o0}, s45, {OF}")
    a(f"s_xor_b32 s{s_o1}, s{s_o0}, 32768")
    a(f"s_lshl_b32 s45, s{s_nt}, 6")
    a(f"s_add_u32 s{s_t1}, s44, s45")
    a(f"v_add_u32 v{t0}, s{s_lb}, v{V_L16}")
    for q in range(4):
        for i in range(8):
            a(f"v_pk_mul_f32 {v(ACC[q]+2*i,2)}, {v(ACC[q]+2*i,2)}, {v(G[q&1],2)} op_sel_hi:[1,0]")
    a("s_barrier")
    a(f"s_cmp_eq_u32 s{s_fw}, 0")
    a("s_cbranch_scc0 L_tl_nopoll")
    a(f"s_lshl_b32 s44, s{s_T2}, 10")
    a(f"s_add_u32 s44, s44, {FO}")
    poll_flags(a, "tl", 44, t0+1, o.psleep)
    a.label("L_tl_nopoll")
    a("s_barrier")
    st.stamp(11)
    for i in range(8):
        a(f"buffer_load_dwordx4 {v(HFR[i][0],4)}, v{V_L16}, s[{SWS}:{SWS+3}], s{s_o0} offen offset:{(i&3)*1024} sc1")
        a(f"buffer_load_dwordx4 {v(HFR[i][1],4)}, v{V_L16}, s[{SWS}:{SWS+3}], s{s_o1} offen offset:{(i&3)*1024} sc1")
        if i == 3:
            a(f"s_add_u32 s{s_o0}, s{s_o0}, 4096")
            a(f"s_add_u32 s{s_o1}, s{s_o1}, 4096")
    for q in range(1, 4):
        a(f"v_xor_b32 v{t0+q}, {q*16384}, v{t0}")
    for i in range(8):
        buf = i & 1
        if i < 7: rdw(wa, (i+1)*2048, buf ^ 1)
        a(f"s_waitcnt vmcnt({2*(7-i)}) lgkmcnt({4 if i < 7 else 0})")
        for n, t in [(0, 1), (1, 0), (1, 1), (0, 0)]:
            a(f"{MF} {v(ACC[2*n+t],16)}, {v(WF[buf][n],4)}, {v(HFR[i][t],4)}, {v(ACC[2*n+t],16)}")
    a("s_nop 8")
    for q in range(1, 4):
        for i in range(4):
            a(f"ds_write_b128 v{t0}, {v(ACC[q]+4*i,4)} offset:{(q-1)*4096+i*1024}")
    a("s_waitcnt lgkmcnt(0)")
    a("s_barrier")
    for q in range(1, 4):
        for i in range(4):
            a(f"ds_read_b128 {v(ACC[q]+4*i,4)}, v{t0+q} offset:{(q-1)*4096+i*1024}")
    for q in range(1, 4):
        a(f"s_waitcnt lgkmcnt({4*(3-q)})")
        for i in range(8):
            a(f"v_pk_add_f32 {v(ACC[0]+2*i,2)}, {v(ACC[0]+2*i,2)}, {v(ACC[q]+2*i,2)}")
    T2 = ACC[2]
    for i in range(8):
        a(f"v_cvt_pk_bf16_f32 v{T2+i}, v{ACC[0]+2*i}, v{ACC[0]+2*i+1}")
    a("s_nop 1")
    for p in range(2):
        b = T2 + 4*p
        a(f"v_permlane32_swap_b32 v{b}, v{b+2}")
        a(f"v_permlane32_swap_b32 v{b+1}, v{b+3}")
    a("s_nop 1")
    a(f"buffer_store_dwordx4 {v(T2,4)}, v{VOUT}, s[{SB}:{SB+3}], s{s_t1} offen")
    a(f"buffer_store_dwordx4 {v(T2+4,4)}, v{VOUT}, s[{SB}:{SB+3}], s{s_t1} offen offset:32")
    finish(a, st)
    return hi

def build(path):
    global KN
    KN = "kb_kernel" if (o.report or o.instr) else KNAME
    a = Asm()
    a('.amdgcn_target "amdgcn-amd-amdhsa--gfx950"')
    a(".text")
    st = Stamper(a, o.instr, 0)
    kernel_header(a, KN)
    a("s_cmp_ge_u32 s2, 256")
    a("s_cbranch_scc1 L_exit")
    a("s_load_dwordx16 s[4:19], s[0:1], 0")
    a("s_load_dwordx4 s[20:23], s[0:1], 64")
    a("s_load_dwordx2 s[24:25], s[0:1], 80")
    st.init(); st.real(0); st.stamp(1)
    a("v_lshrrev_b32 v1, 6, v0")
    a("v_and_b32 v0, 63, v0")
    a(f"s_and_b32 s{S_XCD}, s2, 7")
    a(f"v_readfirstlane_b32 s{S_WAVE}, v1")
    a(f"s_lshr_b32 s{S_LOC}, s2, 3")
    a(f"v_lshlrev_b32 v{V_L16}, 4, v0")
    a(f"v_mov_b32 v{V_MISC}, {MISC}")
    a(f"v_mov_b32 v{V_ONE}, 1")
    a(f"s_cmp_ge_u32 s{S_WAVE}, 8")
    a("s_cbranch_scc1 L_F")
    ahi, fallback = a_waves(a, st)
    a.label("L_F")
    hi = f_waves(a, st) + [ahi]
    a.label("L_code_end")
    fallback()
    a.label("L_exit")
    a("s_endpgm")
    print("vgprs", hi)
    assert max(hi) <= 168
    descs = [kernel_desc(KN, 168)]
    if o.report or o.instr:
        hdr = f"; @launch kernel={KN} grid=(256,1,1) block=(768,1,1) lds={LDS_TOTAL}\n"
        if o.report:
            k, w, i = [int(x) for x in str(o.report).split(",")]
            reporter(a, k, w, i)
            hdr += "; @launch kernel=rep_kernel grid=(1,1,1) block=(64,1,1) lds=0\n"
            descs.append(kernel_desc("rep_kernel", 16))
    else:
        hdr = f"; @launch grid=(256,1,1) block=(768,1,1) lds={LDS_TOTAL}\n"
    a('.section .rodata,"a"')
    open(path, "w").write("; generated by gen/gen6.py\n" + hdr + a.text() + "".join(descs))

if __name__ == "__main__":
    path = sys.argv[1]
    for arg in sys.argv[2:]:
        k, _, val = arg.partition("=")
        assert hasattr(Opt, k), k
        setattr(Opt, k, (val if ',' in val else int(val)) if val else True)
    if Opt.report: Opt.instr = True; Stamper.rt = True
    if Opt.acc: Stamper.acc = True
    build(path)
```

```python
import math, sys
from asmlib import *

MB = 1 << 20
QF, KF, VF, OF, HF = 0, 2*MB, 4*MB, 6*MB, 8*MB
GA = 14*MB
CNT = 14*MB + 0x10000
CQ, CH, CO = CNT, CNT + 64*128, CNT + 128*128
W0 = 14*MB + 0x20000
WS_BYTES = 32*MB
LOG2E = 1.4426950408889634
QSCALE = 0.25 * LOG2E
LDS_TOTAL = 163840
KNAME = "gated_mix__mha_block__glu_gated_glu__prompt_kernel"

TS0, TSTR = 32768, 33024
TG, TU = 16384, 16384 + 8192 + 32
WIMG = 12288 + 32
UX = [65792, 131840]
UW = [82176, 107008]
STG = 65536
DRING = 131072
VCONST = 156672
GL = 160768
MISC = LDS_TOTAL - 256
L_NONCE, L_ATT, L_FB, L_GO, L_PAIR, L_POST = 0, 4, 8, 12, 16, 32

S_WAVE, S_NONCE = 26, 27
SWS, SA, SB, SC = 28, 32, 36, 40
S_XCD, S_LOC, S_FBT, S_SPIN = 3, 69, 67, 68
V_L16, V_MISC, V_ONE = 1, 2, 3
MF = "v_mfma_f32_32x32x16_bf16"

class Opt:
    instr = False
    report = None
    acc = 0
    rt = 0
    ppdelay = 20
    fprio = 2
    mprio = 0
    aprio = 5
    psleep = 2
    stag1 = 0
    stag2 = 1
    pdelay = 20
    dper = 1
    upause = 0
    ost = 0
    pf31 = 0
    upat = 10
    pf0 = 1
    pfup = 6
    stagU = 1
    fpace = 0
    la = 3
    udelay = 0
    xat = 1
    ctouch = 1
    tdelay = 0
o = Opt

def srd(a, d, lo, hi, nbytes):
    a(f"s_mov_b32 s{d}, s{lo}")
    a(f"s_and_b32 s{d+1}, s{hi}, 0xffff")
    a(f"s_mov_b32 s{d+2}, {nbytes}")
    a(f"s_mov_b32 s{d+3}, 0x20000")

def finish(a, st):
    if st.en: a("s_waitcnt vmcnt(0)")
    st.stamp(6); st.real(7); st.flush(SWS, S_WAVE, 4)
    a("s_endpgm")

def post(a, s_off):
    a("s_waitcnt vmcnt(0)")
    a("s_mov_b64 exec, 1")
    a(f"buffer_atomic_add v{V_ONE}, off, s[{SWS}:{SWS+3}], s{s_off} sc1")
    a("s_mov_b64 exec, -1")

def poll(a, tag, vt, voff, s_off, target, sleep, first_issued=False):
    def ld():
        if voff is None: a(f"buffer_load_dword v{vt}, off, s[{SWS}:{SWS+3}], s{s_off} sc1")
        else: a(f"buffer_load_dword v{vt}, v{voff}, s[{SWS}:{SWS+3}], s{s_off} offen sc1")
    a(f"s_mov_b32 s{S_SPIN}, 0")
    if not first_issued: ld()
    a.label(f"L_{tag}_poll")
    a(f"s_add_u32 s{S_SPIN}, s{S_SPIN}, 1")
    a("s_waitcnt vmcnt(0)")
    a(f"v_cmp_gt_u32 vcc, {target}, v{vt}")
    a(f"s_cmp_gt_u32 s{S_SPIN}, 200000")
    a(f"s_cbranch_scc1 L_{tag}_got")
    a(f"s_cbranch_vccz L_{tag}_got")
    if sleep: a(f"s_sleep {sleep}")
    ld()
    a(f"s_branch L_{tag}_poll")
    a.label(f"L_{tag}_got")

def lds_wait_ge(a, tag, vaddr, off, target, vt, sleep=1):
    a(f"s_mov_b32 s{S_SPIN}, 0")
    a.label(f"L_{tag}_spin")
    a(f"ds_read_b32 v{vt}, v{vaddr} offset:{off}")
    a(f"s_add_u32 s{S_SPIN}, s{S_SPIN}, 1")
    a("s_waitcnt lgkmcnt(0)")
    a(f"v_cmp_gt_u32 vcc, {target}, v{vt}")
    a(f"s_cmp_gt_u32 s{S_SPIN}, 2000000")
    a(f"s_cbranch_scc1 L_{tag}_ok")
    a(f"s_cbranch_vccz L_{tag}_ok")
    if sleep: a(f"s_sleep {sleep}")
    a(f"s_branch L_{tag}_spin")
    a.label(f"L_{tag}_ok")

def lds_arrive(a, vaddr, off):
    a("s_mov_b64 exec, 1")
    a(f"ds_add_u32 v{vaddr}, v{V_ONE} offset:{off}")
    a("s_mov_b64 exec, -1")

def tile_ids(a, s_rb, s_lc):
    a(f"s_and_b32 s44, s{S_XCD}, 3")
    a("s_lshl_b32 s44, s44, 2")
    a(f"s_and_b32 s45, s{S_LOC}, 3")
    a(f"s_add_u32 s{s_rb}, s44, s45")
    a(f"s_lshr_b32 s{s_lc}, s{S_LOC}, 2")

def ids_up(a, s_rb, s_cg, s_u0):
    a(f"s_and_b32 s44, s{S_XCD}, 2")
    a("s_lshl_b32 s44, s44, 2")
    a(f"s_and_b32 s45, s{S_LOC}, 7")
    a(f"s_add_u32 s{s_rb}, s44, s45")
    a(f"s_and_b32 s44, s{S_XCD}, 1")
    a("s_lshl_b32 s44, s44, 2")
    a(f"s_and_b32 s45, s{S_XCD}, 4")
    a("s_lshl_b32 s45, s45, 1")
    a("s_add_u32 s44, s44, s45")
    a(f"s_lshr_b32 s45, s{S_LOC}, 3")
    a(f"s_add_u32 s{s_cg}, s44, s45")
    a(f"s_mul_i32 s44, s{s_cg}, 5")
    a(f"s_min_u32 s45, s{s_cg}, 6")
    a(f"s_add_u32 s{s_u0}, s44, s45")

def stagger(a, mode=None):
    pass
    if mode == 1:
        a(f"s_lshr_b32 s44, s{S_LOC}, 3")
        a("s_lshl_b32 s44, s44, 1")
        a(f"s_add_u32 s44, s44, s{S_LOC}")
        a("s_and_b32 s44, s44, 7")
    elif mode == 2:
        a(f"s_lshr_b32 s44, s{S_LOC}, 3")
        a(f"s_add_u32 s44, s44, s{S_LOC}")
        a("s_and_b32 s44, s44, 3")
        a("s_lshl_b32 s44, s44, 1")
    elif mode == 3:
        a(f"s_lshr_b32 s44, s{S_LOC}, 3")
        a(f"s_add_u32 s44, s44, s{S_LOC}")
        a("s_and_b32 s44, s44, 1")
        a("s_lshl_b32 s44, s44, 2")
    else:
        a("s_mov_b32 s44, 0")

def up_dma_setup(a, t0, vx, vw, s_fw, s_rb, s_cg, s_u0, s_lx, s_lw, s_xoff, s_woff):
    a(f"v_lshrrev_b32 v{t0}, 3, v0")
    a(f"v_and_b32 v{t0+1}, 7, v0")
    a(f"v_lshrrev_b32 v{t0+2}, 1, v{t0}")
    ids_up(a, s_rb, s_cg, s_u0)
    a(f"s_and_b32 s46, s{s_fw}, 1")
    a("s_lshl_b32 s45, s46, 2")
    a(f"v_or_b32 v{t0+2}, s45, v{t0+2}")
    a(f"v_xor_b32 v{t0+1}, v{t0+1}, v{t0+2}")
    a(f"v_lshlrev_b32 v{t0+1}, 4, v{t0+1}")
    a(f"s_lshl_b32 s44, s{s_rb}, 7")
    a(f"s_lshl_b32 s45, s{s_fw}, 3")
    a("s_add_u32 s44, s44, s45")
    a(f"v_add_u32 v{t0}, s44, v{t0}")
    a(f"v_lshl_add_u32 v{vx}, v{t0}, 10, v{t0+1}")
    a("s_movk_i32 s44, 5462")
    a("s_movk_i32 s47, 2752")
    a("s_lshl_b32 s45, s46, 5")
    for j in range(3):
        a(f"v_add_u32 v{t0}, {64*j}, v0")
        a(f"v_mul_u32_u24 v{t0+1}, s44, v{t0}")
        a(f"v_lshrrev_b32 v{t0+1}, 16, v{t0+1}")
        a(f"v_mul_u32_u24 v{t0+2}, 12, v{t0+1}")
        a(f"v_sub_u32 v{t0+2}, v{t0}, v{t0+2}")
        a(f"v_lshlrev_b32 v{t0+2}, 4, v{t0+2}")
        a(f"v_add_u32 v{t0+1}, s45, v{t0+1}")
        a(f"v_mad_u32_u24 v{vw[j]}, v{t0+1}, s47, v{t0+2}")
    a(f"s_lshl_b32 s{s_lx}, s{s_fw}, 10")
    a(f"s_add_u32 s{s_lx}, s{s_lx}, {UX[0]}")
    a("s_mul_i32 s45, s46, 6144")
    a(f"s_lshr_b32 s46, s{s_fw}, 1")
    a(f"s_mul_i32 s47, s46, {WIMG}")
    a("s_add_u32 s45, s45, s47")
    a(f"s_add_u32 s{s_lw}, s45, {UW[0]}")
    stagger(a, o.stagU)
    a(f"s_lshl_b32 s{s_xoff}, s44, 7")
    a(f"s_mul_i32 s{s_woff}, s44, {64*2752}")

def up_srd(a, s_fw, s_u0):
    srd(a, SA, 4, 5, 2048*1024)
    a(f"s_cmp_lt_u32 s{s_fw}, 2")
    a("s_cselect_b32 s46, s12, s14")
    a("s_cselect_b32 s47, s13, s15")
    a(f"s_lshl_b32 s44, s{s_u0}, 5")
    srd_off(a, SB, 46, 47, 44, 512*2752)

def up_dma_groups(vx, vw, s_lx, s_lw, s_xoff, s_woff):
    g = []
    for j in range(4):
        if j == 0: pre = [f"s_mov_b32 m0, s{s_lx}", f"s_mov_b32 s46, s{s_xoff}"]
        else: pre = ["s_add_u32 m0, m0, 4096", "s_add_u32 s46, s46, 32768"]
        g.append(pre + [f"buffer_load_dwordx4 v{vx}, s[{SA}:{SA+3}], s46 offen lds"])
    for j in range(6):
        if j == 0: pre = [f"s_mov_b32 m0, s{s_lw}", f"s_add_u32 s46, s{s_woff}, {16*2752}"]
        else: pre = ["s_add_u32 m0, m0, 1024", "s_nop 0"]
        so = s_woff if j < 3 else 46
        g.append(pre + [f"buffer_load_dwordx4 v{vw[j%3]}, s[{SB}:{SB+3}], s{so} offen lds"])
    return g

def srd_off(a, d, lo, hi, s_off, total):
    a(f"s_add_u32 s{d}, s{lo}, s{s_off}")
    a(f"s_addc_u32 s{d+1}, s{hi}, 0")
    a(f"s_and_b32 s{d+1}, s{d+1}, 0xffff")
    a(f"s_sub_u32 s{d+2}, {total}, s{s_off}")
    a(f"s_mov_b32 s{d+3}, 0x20000")

def dma_lanes(a, vr8, vc8, vx0, vx1, t, s_rb, s_w):
    a(f"v_lshrrev_b32 v{vr8}, 3, v0")
    a(f"v_and_b32 v{t}, 7, v0")
    a(f"v_lshrrev_b32 v{t+1}, 1, v{vr8}")
    a(f"v_xor_b32 v{t+2}, v{t}, v{t+1}")
    a(f"v_lshlrev_b32 v{t+2}, 4, v{t+2}")
    a(f"s_lshl_b32 s44, s{s_rb}, 7")
    a(f"s_lshl_b32 s45, s{s_w}, 5")
    a("s_add_u32 s44, s44, s45")
    a(f"v_add_u32 v{vx0}, s44, v{vr8}")
    a(f"v_lshl_add_u32 v{vx0}, v{vx0}, 10, v{t+2}")
    a(f"v_xor_b32 v{vx1}, 64, v{vx0}")
    a(f"v_add_u32 v{vx1}, 8192, v{vx1}")
    a(f"v_lshlrev_b32 v{t+1}, 2, v{t+1}")
    a(f"v_and_b32 v{t+1}, 4, v{t+1}")
    a(f"v_xor_b32 v{t}, v{t}, v{t+1}")
    a(f"v_lshlrev_b32 v{vc8}, 4, v{t}")

def dma_lds(a, s_lx, s_lw, s_w):
    a(f"s_lshl_b32 s{s_lx}, s{s_w}, 12")
    a(f"s_lshr_b32 s46, s{s_w}, 1")
    a(f"s_and_b32 s47, s{s_w}, 1")
    a(f"s_mul_i32 s44, s46, {TU-TG}")
    a("s_lshl_b32 s45, s47, 12")
    a("s_add_u32 s44, s44, s45")
    a(f"s_add_u32 s{s_lw}, s44, {TG}")

def start_stage(a, mode, s_lc, s_w, s_xoff, s_woff, pitch):
    if mode == 1:
        a(f"s_lshl_b32 s44, s{S_LOC}, 1")
        a(f"s_add_u32 s44, s44, s{s_lc}")
        a("s_and_b32 s44, s44, 7")
    elif mode == 2:
        a(f"s_lshl_b32 s44, s{S_LOC}, 1")
        a("s_and_b32 s44, s44, 7")
    else:
        a("s_mov_b32 s44, 0")
    a(f"s_lshl_b32 s{s_xoff}, s44, 7")
    a("s_lshl_b32 s44, s44, 1")
    a(f"s_and_b32 s45, s{s_w}, 1")
    a("s_add_u32 s44, s44, s45")
    a("s_lshl_b32 s44, s44, 5")
    a(f"s_mul_i32 s{s_woff}, s44, {pitch}")

def ffn_srd(a, s_w, s_u):
    a(f"s_cmp_lt_u32 s{s_w}, 2")
    a("s_cselect_b32 s46, s12, s14")
    a("s_cselect_b32 s47, s13, s15")
    a(f"s_lshl_b32 s44, s{s_u}, 5")
    a(f"s_add_u32 s{SB}, s46, s44")
    a(f"s_addc_u32 s{SB+1}, s47, 0")
    a(f"s_and_b32 s{SB+1}, s{SB+1}, 0xffff")
    a(f"s_sub_u32 s{SB+2}, {512*2752}, s44")
    a(f"s_mov_b32 s{SB+3}, 0x20000")

class LQ:
    def __init__(self): self.q = []
    def push(self, tag): self.q.append(tag)
    def need(self, tag):
        if tag not in self.q: return None
        i = len(self.q) - 1 - self.q[::-1].index(tag)
        n = len(self.q) - 1 - i
        self.q = self.q[i+1:]
        return n

def a_waves(a, st):
    R = Regs(4)
    vt = R.alloc(); vt2 = R.alloc(); vt3 = R.alloc(); vt4 = R.alloc()
    kaddr = R.alloc(); vaddr = R.alloc(); vcnt = R.alloc(); vstep = R.alloc(); vmask = R.alloc()
    vx0 = R.alloc(); vx1 = R.alloc(); vw = R.alloc()
    GG = R.alloc(4)
    vr8, vc8, vxu = GG, GG+1, GG+2
    Q = [R.alloc(4), R.alloc(4)]; KR = R.alloc(4); V0 = R.alloc(4); V1 = R.alloc(4)
    P = R.alloc(8); S = [R.alloc(16), R.alloc(16)]
    O = [R.alloc(16), R.alloc(16)]; C = [R.alloc(16), R.alloc(16)]
    s_head, s_T, s_c, s_kg, s_vg, s_ld, s_tgt = 48, 49, 50, 51, 52, 53, 54
    s_q0, s_q1, s_slot, s_step, s_tok = 55, 56, 57, 58, 59
    a(f"s_cmp_ge_u32 s{S_WAVE}, 4")
    a("s_cbranch_scc1 L_help0")
    s_rb, s_lc, s_um, s_ue = 48, 49, 50, 51
    s_xoff, s_woff, s_lslot, s_cnt, s_lx, s_lw, s_pitch, s_xslot, s_xu, s_lxu = 52, 53, 54, 55, 56, 57, 58, 59, 60, 61
    JUNK = S[0]
    a(f"s_cmp_ge_u32 s{S_LOC}, 24")
    a("s_cbranch_scc1 L_pf")
    tile_ids(a, s_rb, s_lc)
    dma_lanes(a, vr8, vc8, vx0, vx1, vt2, s_rb, S_WAVE)
    dma_lds(a, s_lx, s_lw, S_WAVE)
    a(f"s_mov_b32 s{s_lslot}, {TS0+TSTR}")
    a(f"s_mov_b32 s{s_cnt}, 0")
    start_stage(a, o.stag1, s_lc, S_WAVE, s_xoff, s_woff, 3072)
    a(f"v_mul_u32_u24 v{vw}, 3072, v{vr8}")
    a(f"s_lshr_b32 s44, s{S_XCD}, 2")
    a("s_mul_i32 s44, s44, 6")
    a(f"s_add_u32 s44, s44, s{s_lc}")
    a("s_lshl_b32 s44, s44, 1")
    a("s_add_u32 s44, s44, s46")
    a("s_lshl_b32 s44, s44, 7")
    a(f"v_add3_u32 v{vw}, v{vw}, v{vc8}, s44")
    a("s_waitcnt lgkmcnt(0)")
    srd(a, SA, 4, 5, 2048*1024)
    srd(a, SB, 6, 7, 512*3072)
    a.label("L_ld0")
    a(f"s_add_u32 m0, s{s_lslot}, s{s_lx}")
    a(f"s_add_u32 s44, s{s_xoff}, 16384")
    for j in range(4):
        a(f"buffer_load_dwordx4 v{vx1 if j & 1 else vx0}, s[{SA}:{SA+3}], s{s_xoff if j < 2 else 44} offen lds")
        if j < 3: a("s_add_u32 m0, m0, 1024")
        else: a(f"s_add_u32 m0, s{s_lslot}, s{s_lw}")
        a([f"s_add_u32 s{s_cnt}, s{s_cnt}, 1", f"s_mov_b32 s45, s{s_woff}", f"s_add_u32 s{s_xoff}, s{s_xoff}, 128", "s_nop 0"][j])
    for j in range(4):
        a(f"buffer_load_dwordx4 v{vw}, s[{SB}:{SB+3}], s45 offen lds")
        if j < 3:
            a("s_add_u32 m0, m0, 1024")
            a(f"s_add_u32 s45, s45, {8*3072}")
    a(f"s_add_u32 s{s_woff}, s{s_woff}, {64*3072}")
    a(f"s_and_b32 s{s_xoff}, s{s_xoff}, 1023")
    a(f"s_cselect_b32 s46, 0, {512*3072}")
    a(f"s_sub_u32 s{s_woff}, s{s_woff}, s46")
    a(f"s_add_u32 s{s_lslot}, s{s_lslot}, {TSTR}")
    a(f"s_cmp_eq_u32 s{s_lslot}, {TS0+3*TSTR}")
    a(f"s_cselect_b32 s{s_lslot}, {TS0}, s{s_lslot}")
    a(f"s_cmp_lt_u32 s{s_cnt}, 2")
    a("s_cbranch_scc1 L_ld0")
    a(f"s_cmp_eq_u32 s{s_cnt}, 8")
    a("s_cbranch_scc1 L_ld_end")
    a("s_waitcnt vmcnt(8)")
    a("s_barrier")
    a("s_branch L_ld0")
    a.label("L_pf")
    a(f"v_lshrrev_b32 v{vt}, 3, v0")
    a(f"v_and_b32 v{vt2}, 7, v0")
    a(f"v_lshlrev_b32 v{vt2}, 4, v{vt2}")
    a(f"v_lshl_add_u32 v{vx0}, v{vt}, 10, v{vt2}")
    a(f"v_mov_b32 v{vt3}, 1024")
    a(f"v_mov_b32 v{vt4}, 2560")
    a("v_cmp_gt_u32 vcc, 32, v0")
    a(f"s_sub_u32 s46, s{S_LOC}, 24")
    a("s_lshl_b32 s46, s46, 2")
    a(f"s_add_u32 s46, s46, s{S_WAVE}")
    a(f"v_cndmask_b32 v{vt3}, v{vt4}, v{vt3}, vcc")
    a(f"v_add_u32 v{vx1}, v{vt3}, v{V_L16}")
    a(f"s_and_b32 s44, s{S_XCD}, 3")
    a("s_lshl_b32 s44, s44, 5")
    a("s_add_u32 s44, s44, s46")
    a(f"s_lshl_b32 s{s_xoff}, s44, 14")
    a(f"s_add_u32 s{s_xoff}, s{s_xoff}, {128*o.pf0}")
    a(f"s_lshr_b32 s44, s{S_XCD}, 2")
    a("s_mul_i32 s44, s44, 1536")
    a(f"s_mul_i32 s{s_woff}, s46, {2*3072}")
    a(f"s_add_u32 s{s_woff}, s{s_woff}, s44")
    a(f"s_add_u32 s{s_woff}, s{s_woff}, {64*3072*o.pf0}")
    a(f"s_mov_b32 s{s_cnt}, {o.pf0}")
    a("s_waitcnt lgkmcnt(0)")
    srd(a, SA, 4, 5, 2048*1024)
    srd(a, SB, 6, 7, 512*3072)
    a(f"s_cmp_eq_u32 s{S_LOC}, 31")
    a("s_cbranch_scc0 L_pf1")
    a("s_barrier")
    a.label("L_pf1")
    a(f"s_add_u32 s44, s{s_xoff}, 8192")
    a(f"buffer_load_dwordx4 {v(JUNK,4)}, v{vx0}, s[{SA}:{SA+3}], s{s_xoff} offen")
    a(f"buffer_load_dwordx4 {v(JUNK,4)}, v{vx0}, s[{SA}:{SA+3}], s44 offen")
    a(f"buffer_load_dwordx4 {v(JUNK,4)}, v{V_L16}, s[{SB}:{SB+3}], s{s_woff} offen")
    a(f"buffer_load_dwordx4 {v(JUNK,4)}, v{vx1}, s[{SB}:{SB+3}], s{s_woff} offen")
    a(f"buffer_load_dwordx4 {v(JUNK,4)}, v{V_L16}, s[{SB}:{SB+3}], s{s_woff} offen offset:3584")
    a(f"s_add_u32 s{s_xoff}, s{s_xoff}, 128")
    a(f"s_add_u32 s{s_woff}, s{s_woff}, {64*3072}")
    a(f"s_add_u32 s{s_cnt}, s{s_cnt}, 1")
    a(f"s_cmp_lt_u32 s{s_cnt}, 8")
    a("s_cbranch_scc1 L_pf1")
    if o.pfup:
        if not o.pf31:
            a(f"s_cmp_eq_u32 s{S_LOC}, 31")
            a("s_cbranch_scc1 L_pf3")
        srd(a, SB, 12, 13, 512*2752)
        srd(a, SC, 14, 15, 512*2752)
        a(f"s_and_b32 s44, s{S_XCD}, 1")
        a(f"s_lshr_b32 s45, s{S_XCD}, 2")
        a("s_lshl_b32 s45, s45, 1")
        a("s_add_u32 s44, s44, s45")
        a("s_lshl_b32 s44, s44, 2")
        a("s_mul_i32 s45, s44, 5")
        a("s_min_u32 s44, s44, 6")
        a("s_add_u32 s44, s44, s45")
        a("s_lshl_b32 s44, s44, 5")
        a(f"s_mul_i32 s{s_woff}, s46, 2752")
        a(f"s_add_u32 s{s_woff}, s{s_woff}, s44")
        a(f"s_and_b32 s44, s{S_XCD}, 3")
        a("s_xor_b32 s44, s44, 1")
        a("s_lshl_b32 s44, s44, 5")
        a("s_add_u32 s44, s44, s46")
        a(f"s_lshl_b32 s{s_xoff}, s44, 14")
        a(f"s_mov_b32 s{s_cnt}, 0")
        a.label("L_pf2")
        a("s_mov_b32 exec_hi, 0x3ffff")
        a(f"buffer_load_dwordx4 {v(JUNK,4)}, v{V_L16}, s[{SB}:{SB+3}], s{s_woff} offen")
        a(f"buffer_load_dwordx4 {v(JUNK,4)}, v{V_L16}, s[{SC}:{SC+3}], s{s_woff} offen")
        a("s_mov_b32 exec_hi, -1")
        a(f"buffer_load_dwordx4 {v(JUNK,4)}, v{vx0}, s[{SA}:{SA+3}], s{s_xoff} offen")
        a(f"s_add_u32 s{s_woff}, s{s_woff}, {32*2752}")
        a(f"s_add_u32 s{s_cnt}, s{s_cnt}, 1")
        a(f"s_bitcmp1_b32 s{s_cnt}, 0")
        a(f"s_mov_b32 s44, {(128-8192) & 0xffffffff}")
        a("s_cselect_b32 s44, 8192, s44")
        a(f"s_add_u32 s{s_xoff}, s{s_xoff}, s44")
        a(f"s_cmp_lt_u32 s{s_cnt}, {o.pfup}")
        a("s_cbranch_scc1 L_pf2")
    a(f"s_cmp_eq_u32 s{S_LOC}, 31")
    a("s_cbranch_scc1 L_pf3")
    a("s_barrier")
    a.label("L_pf3")
    for i in range(5): a("s_barrier")
    a.label("L_ld_end")
    srd(a, SWS, 24, 25, WS_BYTES)
    a("s_waitcnt vmcnt(8)")
    a("s_barrier")
    a("s_waitcnt vmcnt(0)")
    a("s_branch L_b7")

    a.label("L_help0")
    GT = S[0]
    a(f"v_lshl_add_u32 v{vt2}, v0, 2, v{V_MISC}")
    a(f"v_mov_b32 v{vt}, 0")
    a(f"ds_write_b32 v{vt2}, v{vt}")
    a("s_lshl_b32 s46, s2, 3")
    a(f"s_lshl_b32 s45, s{S_WAVE}, 1")
    a("s_add_u32 s46, s46, s45")
    a(f"s_sub_u32 s{s_tok}, s46, 8")
    a(f"s_lshl_b32 s44, s{s_tok}, 10")
    a("s_waitcnt lgkmcnt(0)")
    srd(a, SA, 4, 5, 2048*1024)
    srd(a, SB, 18, 19, 1024)
    srd(a, SWS, 24, 25, WS_BYTES)
    srd(a, SC, 22, 23, 256)
    a(f"s_cmp_eq_u32 s{S_WAVE}, 4")
    a("s_cbranch_scc0 L_help2")
    a(f"s_cmp_eq_u32 s{S_LOC}, 31")
    a("s_cbranch_scc0 L_help2")
    a(f"s_add_u32 s46, s24, {W0}")
    a("s_addc_u32 s47, s25, 0")
    a("s_load_dword s45, s[46:47], 0 glc")
    for i in range(4): a(f"v_mov_b32 v{GT+i}, 0")
    a(f"s_lshl_b32 s46, s{S_XCD}, 12")
    a(f"s_add_u32 s46, s46, {CNT}")
    for i in range(4):
        a(f"buffer_store_dwordx4 {v(GT,4)}, v{V_L16}, s[{SWS}:{SWS+3}], s46 offen offset:{i*1024} sc1")
    a("s_waitcnt lgkmcnt(0)")
    a("s_mul_i32 s45, s45, 0x19660d")
    a("s_add_u32 s45, s45, 0x3c6ef35f")
    a("s_max_u32 s45, s45, 1")
    a(f"v_mov_b32 v{vt3}, s45")
    a(f"s_lshl_b32 s46, s{S_XCD}, 2")
    a("s_waitcnt vmcnt(0)")
    a("s_mov_b64 exec, 1")
    a(f"buffer_store_dword v{vt3}, off, s[{SC}:{SC+3}], s46 sc1")
    a("s_mov_b64 exec, -1")
    a.label("L_help2")
    a(f"buffer_load_dwordx4 {v(GT,4)}, v{V_L16}, s[{SB}:{SB+3}], 0 offen")
    a(f"buffer_load_dwordx4 {v(GT+4,4)}, v{V_L16}, s[{SA}:{SA+3}], s44 offen")
    a(f"buffer_load_dwordx4 {v(GT+8,4)}, v{V_L16}, s[{SA}:{SA+3}], s44 offen offset:1024")
    a.label("L_help3")
    if o.ctouch:
        a(f"s_cmp_eq_u32 s{S_WAVE}, 5")
        a("s_cbranch_scc0 L_help4")
        a("s_getpc_b64 s[46:47]")
        a.label("L_pc")
        a(f"s_sub_u32 s46, s46, L_pc-{KN}")
        a("s_subb_u32 s47, s47, 0")
        a(f"s_lshl_b32 s44, s{S_LOC}, 9")
        a(f"s_min_u32 s44, s44, L_code_end-{KN}-512")
        a("s_add_u32 s46, s46, s44")
        a("s_addc_u32 s47, s47, 0")
        for i in range(8):
            a(f"s_load_dword s44, s[46:47], {64*i}")
        a("s_waitcnt lgkmcnt(0)")
    a.label("L_help4")
    a("s_barrier")
    st.stamp(2)
    a("s_barrier")
    a("s_waitcnt vmcnt(0)")
    for r in range(2):
        a(f"v_mov_b32 v{vt3+r}, 0")
    for i in range(4):
        for r in range(2):
            a(f"v_dot2c_f32_bf16 v{vt3+r}, v{GT+4+4*r+i}, v{GT+i}")
    a("s_nop 2")
    for dpp in ["row_shr:1", "row_shr:2", "row_shr:4", "row_shr:8", "row_bcast:15 row_mask:0xa", "row_bcast:31 row_mask:0xc"]:
        a("s_nop 0")
        for r in range(2):
            a(f"v_add_f32_dpp v{vt3+r}, v{vt3+r}, v{vt3+r} {dpp}")
    a("s_barrier")
    for r in range(2): a(f"v_mul_f32 v{vt3+r}, {f32bits(-LOG2E)}, v{vt3+r}")
    for r in range(2): a(f"v_exp_f32 v{vt3+r}, v{vt3+r}")
    a("s_nop 0")
    for r in range(2): a(f"v_add_f32 v{vt3+r}, 1.0, v{vt3+r}")
    for r in range(2): a(f"v_rcp_f32 v{GG+2*r}, v{vt3+r}")
    a(f"v_and_b32 v{vt2}, 7, v0")
    a(f"v_lshlrev_b32 v{vt2}, 2, v{vt2}")
    a("s_barrier")
    a("s_barrier")
    a(f"s_cmp_eq_u32 s{S_WAVE}, 4")
    a("s_cbranch_scc0 L_help5")
    a(f"buffer_load_dword v{vt}, v{vt2}, s[{SC}:{SC+3}], 0 offen sc1")
    a.label("L_help5")
    a("s_barrier")
    a("s_barrier")
    a("s_barrier")
    a(f"s_cmp_eq_u32 s{S_WAVE}, 4")
    a("s_cbranch_scc0 L_b7x")
    a(f"s_mov_b32 s{S_SPIN}, 0")
    a.label("L_np")
    a("s_waitcnt vmcnt(0)")
    a(f"v_cmp_eq_u32 vcc, 0, v{vt}")
    a(f"s_cmp_gt_u32 s{S_SPIN}, 200000")
    a("s_cbranch_scc1 L_ng")
    a("s_cbranch_vccz L_ng")
    a(f"s_add_u32 s{S_SPIN}, s{S_SPIN}, 1")
    a("s_sleep 4")
    a(f"buffer_load_dword v{vt}, v{vt2}, s[{SC}:{SC+3}], 0 offen sc1")
    a("s_branch L_np")
    a.label("L_ng")
    a("s_mov_b64 exec, 1")
    a(f"ds_write_b32 v{V_MISC}, v{vt} offset:{L_NONCE}")
    a("s_cmp_eq_u32 s2, 255")
    a("s_cbranch_scc0 L_nw")
    a(f"s_mov_b32 s44, {W0}")
    a(f"buffer_store_dword v{vt}, off, s[{SWS}:{SWS+3}], s44 sc1")
    a.label("L_nw")
    a("s_mov_b64 exec, -1")
    a("s_branch L_b7x")
    a.label("L_b7")
    a("s_barrier")
    a.label("L_b7x")
    a("s_sleep 8")
    st.stamp(3)
    a(f"s_lshl_b32 s44, s{S_XCD}, 2")
    a(f"s_and_b32 s45, s{S_LOC}, 3")
    a(f"s_add_u32 s{s_head}, s44, s45")
    a(f"s_lshr_b32 s44, s{S_LOC}, 2")
    a("s_lshl_b32 s44, s44, 3")
    a(f"s_and_b32 s45, s{S_WAVE}, 3")
    a("s_lshl_b32 s45, s45, 1")
    a("s_add_u32 s44, s44, s45")
    a(f"s_lshr_b32 s46, s{S_WAVE}, 2")
    a(f"s_add_u32 s{s_T}, s44, s46")
    a(f"s_lshl_b32 s44, s{s_head}, 16")
    a(f"s_lshl_b32 s{s_ld}, s{S_WAVE}, 10")
    a(f"s_add_u32 s{s_kg}, s44, s{s_ld}")
    a(f"s_add_u32 s{s_vg}, s{s_kg}, {VF}")
    a(f"s_add_u32 s{s_kg}, s{s_kg}, {KF}")
    a(f"s_lshl_b32 s45, s{s_T}, 10")
    a(f"s_add_u32 s{s_q0}, s44, s45")
    a(f"s_xor_b32 s{s_q1}, s{s_q0}, 1024")
    a("s_lshl_b32 s46, s46, 12")
    a(f"v_add_u32 v{kaddr}, s46, v{V_L16}")
    a(f"v_and_b32 v{vt3}, 15, v0")
    a(f"v_lshlrev_b32 v{vt3}, 4, v{vt3}")
    a(f"v_lshrrev_b32 v{vt4}, 5, v0")
    a(f"v_lshl_add_u32 v{vt4}, v{vt4}, 8, v{vt3}")
    a("s_add_u32 s46, s46, 8192")
    a(f"v_add_u32 v{vaddr}, s46, v{vt4}")
    a(f"v_and_b32 v{vt4}, 16, v0")
    a(f"v_cmp_ne_u32 vcc, 0, v{vt4}")
    a(f"v_add_u32 v{vt3}, {VCONST}, v{vt3}")
    a(f"v_mov_b32 v{vstep}, 16384")
    a(f"v_mov_b32 v{vmask}, 0xffff")
    a(f"v_cndmask_b32 v{vaddr}, v{vaddr}, v{vt3}, vcc")
    a(f"v_cndmask_b32 v{vstep}, v{vstep}, 0, vcc")
    a(f"v_cndmask_b32 v{vmask}, v{vmask}, -1, vcc")
    a(f"s_lshl_b32 s44, s{S_WAVE}, 9")
    a(f"v_add_u32 v{vcnt}, s44, v{vt3}")
    a(f"v_and_b32 v{vt4}, 27, v0")
    a(f"v_cmp_eq_u32 vcc, 16, v{vt4}")
    a(f"v_mov_b32 v{vt3}, 0x3f803f80")
    a(f"s_mov_b32 s{s_c}, 0")
    a(f"s_mov_b32 s{s_tgt}, 16")
    for i in range(4):
        a(f"v_cndmask_b32 v{V1+i}, 0, v{vt3}, vcc")
    a("s_mov_b32 exec_lo, 0xffff0000")
    a("s_mov_b32 exec_hi, 0")
    a(f"ds_write_b128 v{vcnt}, {v(V1,4)}")
    a("s_mov_b64 exec, -1")
    a(f"v_mov_b32 v{P}, 0")
    a(f"v_mov_b32 v{P+1}, 0")
    for i in range(1, 4): a(f"v_pk_mov_b32 {v(P+2*i,2)}, {v(P,2)}, {v(P,2)}")
    for i in range(16): a(f"v_pk_mov_b32 {v(O[0]+2*i,2)}, {v(P,2)}, {v(P,2)}")
    a(f"s_mov_b32 s{s_slot}, 49152")
    a(f"s_cmp_eq_u32 s{S_WAVE}, 0")
    a("s_cbranch_scc0 L_at_waitgo")
    a(f"s_lshr_b32 s44, s{S_XCD}, 1")
    a("s_lshl_b32 s44, s44, 1")
    a(f"s_bfe_u32 s45, s{S_LOC}, 0x10001")
    a("s_add_u32 s44, s44, s45")
    a("s_lshl_b32 s44, s44, 10")
    a(f"s_add_u32 s44, s44, {CQ}")
    a(f"v_min_u32 v{vw}, 5, v0")
    a(f"v_lshlrev_b32 v{vw}, 7, v{vw}")
    lds_wait_ge(a, "atpost", V_MISC, L_POST, "4", vt)
    if o.pdelay: a(f"s_sleep {o.pdelay}")
    if o.ppdelay:
        a(f"s_sub_u32 s45, s{S_LOC}, 24")
        a(f"s_cmp_lt_u32 s45, {7 if o.pf31 else 8}")
        a("s_cbranch_scc0 L_at_ppd")
        a(f"s_sleep {o.ppdelay}")
        a.label("L_at_ppd")
    st.stamp(2)
    poll(a, "atq", vt, vw, 44, 16, o.psleep)
    if st.en: a(f"s_mov_b32 s101, s{S_SPIN}")
    a(f"ds_write_b32 v{V_MISC}, v{V_ONE} offset:{L_GO}")
    a("s_branch L_at_go")
    a.label("L_at_waitgo")
    lds_wait_ge(a, "atgo", V_MISC, L_GO, "1", vt)
    a.label("L_at_go")
    st.stamp(4)
    def dma(lit=None):
        if lit is not None: a(f"s_add_u32 m0, s{s_ld}, {lit}")
        else: a(f"s_add_u32 m0, s{s_ld}, s{s_slot}")
        a("s_nop 0")
        a(f"buffer_load_dwordx4 v{V_L16}, s[{SWS}:{SWS+3}], s{s_kg} offen sc1 lds")
        a("s_add_u32 m0, m0, 8192")
        a(f"s_add_u32 s{s_kg}, s{s_kg}, 8192")
        a(f"buffer_load_dwordx4 v{V_L16}, s[{SWS}:{SWS+3}], s{s_vg} offen sc1 lds")
        a(f"s_add_u32 s{s_vg}, s{s_vg}, 8192")
    a(f"buffer_load_dwordx4 {v(Q[0],4)}, v{V_L16}, s[{SWS}:{SWS+3}], s{s_q0} offen sc1")
    a(f"buffer_load_dwordx4 {v(Q[1],4)}, v{V_L16}, s[{SWS}:{SWS+3}], s{s_q1} offen sc1")
    dma(0)
    a(f"ds_read_b32 v{vx1}, v{V_MISC} offset:{L_NONCE}")
    a("s_waitcnt vmcnt(0) lgkmcnt(0)")
    lds_arrive(a, V_MISC, L_ATT)
    dma(16384); dma(32768)
    a(f"s_cmp_ge_u32 s{S_WAVE}, 4")
    a("s_cbranch_scc0 L_at_nogst")
    a(f"v_mov_b32 v{GG+1}, v{vx1}")
    a(f"v_mov_b32 v{GG+3}, v{vx1}")
    a(f"s_lshl_b32 s44, s{s_tok}, 3")
    a(f"s_add_u32 s44, s44, {GA}")
    a("s_mov_b32 exec_lo, 0")
    a("s_brev_b32 exec_hi, 1")
    a(f"buffer_store_dwordx4 {v(GG,4)}, off, s[{SWS}:{SWS+3}], s44 sc1")
    a("s_mov_b64 exec, -1")
    a.label("L_at_nogst")
    lds_wait_ge(a, "at0", V_MISC, L_ATT, "8", vt, sleep=0)
    st.stamp(5)
    a(f"ds_read_b128 {v(V0,4)}, v{V_L16}")
    a(f"ds_read_b128 {v(KR,4)}, v{kaddr}")
    a("s_waitcnt lgkmcnt(1)")
    for q in range(2):
        a(f"{MF} {v(S[q],16)}, {v(V0,4)}, {v(Q[q],4)}, 0")
    a(f"ds_read_b128 {v(V0,4)}, v{vaddr}")
    a("s_nop 9")
    def maxtree(dst, src, first):
        if first:
            a(f"v_max3_f32 v{dst}, v{src}, v{src+1}, v{src+2}")
            rest = list(range(3, 16))
        else:
            rest = list(range(0, 16))
        while len(rest) >= 2:
            a(f"v_max3_f32 v{dst}, v{dst}, v{src+rest[0]}, v{src+rest[1]}")
            rest = rest[2:]
        if rest:
            a(f"v_max_f32 v{dst}, v{dst}, v{src+rest[0]}")
    def setC(q):
        a(f"v_mov_b32 v{vt2}, v{vt}")
        a("s_nop 1")
        a(f"v_permlane32_swap_b32 v{vt}, v{vt2}")
        a("s_nop 1")
        a(f"v_max_f32 v{vt}, v{vt}, v{vt2}")
        a(f"v_sub_f32 v{C[q]}, 0, v{vt}")
        a(f"v_sub_f32 v{C[q]+1}, 0, v{vt}")
        for i in range(1, 8):
            a(f"v_pk_mov_b32 {v(C[q]+2*i,2)}, {v(C[q],2)}, {v(C[q],2)}")
    maxtree(vt, S[0], True)
    setC(0)
    a("s_waitcnt lgkmcnt(0)")
    a("s_nop 0")
    maxtree(vt, S[1], True)
    a(f"{MF} {v(S[0],16)}, {v(KR,4)}, {v(Q[0],4)}, {v(C[0],16)}")
    setC(1)
    for i in range(2):
        a(f"v_mov_b32 v{S[1]+14+i}, 0")
    def e(cur, i): a(f"v_exp_f32 v{cur+i}, v{cur+i}")
    def c(cur, i): a(f"v_cvt_pk_bf16_f32 v{P+i}, v{cur+2*i}, v{cur+2*i+1}")
    def body(emit, lq):
        def A(s):
            if emit: a(s)
        def w(tag):
            n = lq.need(tag)
            if n is not None: A(f"s_waitcnt lgkmcnt({n})")
        def E(cur, i):
            if emit: e(cur, i)
        def Cc(cur, i):
            if emit: c(cur, i)
        def rdv(reg, off, tag):
            A(f"ds_read_b128 {v(reg,4)}, v{vaddr} offset:{off}")
            lq.push(tag)
        for tt in range(4):
            for q in range(2):
                cur = S[q]; nxt = S[q ^ 1]
                stp = 2*tt + q
                if o.aprio >= 3 and stp in (0, o.aprio+1):
                    lab = a.newlabel("pr") if emit else ""
                    A(f"s_cmp_ge_u32 s{S_WAVE}, 4")
                    A(f"s_cbranch_scc1 {lab}")
                    A(f"s_setprio {1 if stp == 0 else 0}")
                    if emit: a.label(lab)
                E(cur, 0); Cc(nxt, 7); E(cur, 1); E(cur, 2)
                if q == 1: w("K")
                A(f"{MF} {v(O[q^1],16)}, {v(V1,4)}, {v(P+4,4)}, {v(O[q^1],16)}")
                if q == 0:
                    rdv(V1, tt*1024 + 512, "V1")
                if stp == o.xat:
                    if emit: st.abeg()
                    A("s_waitcnt vmcnt(2)")
                    if emit: st.aend(0)
                    A("s_mov_b64 exec, 1")
                    A(f"ds_add_u32 v{V_MISC}, v{V_ONE} offset:{L_ATT}")
                    A("s_mov_b64 exec, -1")
                    lq.push("X")
                if tt == 2 and q == 1:
                    A(f"ds_read_b32 v{vcnt}, v{V_MISC} offset:{L_ATT}")
                    lq.push("CNT")
                Cc(cur, 0); E(cur, 3); E(cur, 4); Cc(cur, 1); E(cur, 5); E(cur, 6)
                A(f"{MF} {v(nxt,16)}, {v(KR,4)}, {v(Q[q^1],4)}, {v(C[q^1],16)}")
                if q == 0:
                    if tt == 3:
                        w("V0")
                        A(f"v_cmp_gt_u32 vcc, s{s_tgt}, v{vcnt}")
                        A(f"v_add_u32 v{kaddr}, s{s_step}, v{kaddr}")
                        A("s_cbranch_vccnz L_at_slow")
                        if emit: a.label("L_at_back")
                        A(f"ds_read_b128 {v(KR,4)}, v{kaddr}")
                    else:
                        A(f"ds_read_b128 {v(KR,4)}, v{kaddr} offset:{(tt+1)*1024}")
                    lq.push("K")
                Cc(cur, 2); E(cur, 7); E(cur, 8); Cc(cur, 3); E(cur, 9); E(cur, 10)
                if q == 0: w("V0")
                A(f"{MF} {v(O[q],16)}, {v(V0,4)}, {v(P,4)}, {v(O[q],16)}")
                if q == 1:
                    if tt == 3:
                        A(f"v_add_u32 v{vaddr}, v{vstep}, v{vaddr}")
                        A(f"v_and_b32 v{vaddr}, v{vmask}, v{vaddr}")
                        rdv(V0, 0, "V0")
                    else:
                        rdv(V0, (tt+1)*1024, "V0")
                if tt == 3 and q == 0 and emit:
                    a(f"s_cmp_lt_u32 s{s_c}, 5")
                    a("s_cbranch_scc0 L_at_nodma")
                    st.abeg()
                    dma()
                    st.aend(2)
                    a(f"s_add_u32 s{s_slot}, s{s_slot}, 16384")
                    a(f"s_and_b32 s{s_slot}, s{s_slot}, 0xffff")
                    a.label("L_at_dmadone")
                Cc(cur, 4); E(cur, 11); E(cur, 12); Cc(cur, 5); E(cur, 13); E(cur, 14); Cc(cur, 6); E(cur, 15)
    lq = LQ()
    body(False, lq)
    steady = list(lq.q)
    if o.aprio:
        a(f"s_cmp_lt_u32 s{S_WAVE}, 4")
        a("s_cbranch_scc1 L_at_np")
        a("s_setprio 1")
        a.label("L_at_np")
    st.stamp(8)
    a(".p2align 6")
    a.label("L_at_loop")
    a(f"s_cmp_eq_u32 s{s_c}, 3")
    a(f"s_mov_b32 s44, {(-49152) & 0xffffffff}")
    a(f"s_cselect_b32 s{s_step}, s44, 16384")
    body(True, lq)
    assert lq.q == steady, (lq.q, steady)
    a(f"s_add_u32 s{s_c}, s{s_c}, 1")
    a(f"s_add_u32 s{s_tgt}, s{s_tgt}, 8")
    a(f"s_cmp_lt_u32 s{s_c}, 8")
    a("s_cbranch_scc1 L_at_loop")
    st.stamp(9)
    c(S[1], 7)
    a(f"s_mul_i32 s44, s{S_WAVE}, 3072")
    a(f"s_xor_b32 s45, s{S_WAVE}, 4")
    a(f"{MF} {v(O[1],16)}, {v(V1,4)}, {v(P+4,4)}, {v(O[1],16)}")
    a(f"v_add_u32 v{kaddr}, s44, v{V_L16}")
    a("s_mul_i32 s45, s45, 3072")
    a(f"v_add_u32 v{vaddr}, s45, v{V_L16}")
    a(f"s_and_b32 s44, s{S_WAVE}, 3")
    a(f"v_lshl_add_u32 v{vt3}, s44, 2, v{V_MISC}")
    a(f"s_lshl_b32 s46, s{s_T}, 5")
    a(f"s_add_u32 s46, s46, s{s_head}")
    a("s_lshl_b32 s46, s46, 10")
    a(f"s_add_u32 s{s_q0}, s46, {OF}")
    a(f"s_lshl_b32 s44, s{s_T}, 1")
    a(f"s_lshr_b32 s45, s{s_head}, 4")
    a("s_add_u32 s44, s44, s45")
    a("s_lshl_b32 s44, s44, 7")
    a(f"s_add_u32 s{s_q1}, s44, {CO}")
    for i in range(3):
        a(f"ds_write_b128 v{kaddr}, {v(O[1]+4*i,4)} offset:{16384+i*1024}")
    a("s_waitcnt lgkmcnt(0)")
    lds_arrive(a, vt3, L_PAIR)
    a(f"s_mov_b32 s{S_SPIN}, 0")
    a.label("L_at_pair")
    a(f"ds_read_b32 v{vt}, v{vt3} offset:{L_PAIR}")
    for i in range(3):
        a(f"ds_read_b128 {v(O[1]+4*i,4)}, v{vaddr} offset:{16384+i*1024}")
    a(f"s_add_u32 s{S_SPIN}, s{S_SPIN}, 1")
    a("s_waitcnt lgkmcnt(0)")
    a(f"v_cmp_gt_u32 vcc, 2, v{vt}")
    a(f"s_cmp_gt_u32 s{S_SPIN}, 2000000")
    a("s_cbranch_scc1 L_at_pok")
    a("s_cbranch_vccz L_at_pok")
    a("s_sleep 1")
    a("s_branch L_at_pair")
    a.label("L_at_pok")
    a(f"v_add_f32 v{O[0]+8}, v{O[0]+8}, v{O[1]+8}")
    for i in range(4):
        a(f"v_pk_add_f32 {v(O[0]+2*i,2)}, {v(O[0]+2*i,2)}, {v(O[1]+2*i,2)}")
    a(f"v_mov_b32 v{vt}, {f32bits(2.0**30)}")
    a(f"v_cmp_nle_f32 vcc, v{O[0]+8}, v{vt}")
    a(f"v_pk_mul_f32 {v(S[0],2)}, {v(O[0],2)}, 0")
    for i in range(1, 4):
        a(f"v_pk_fma_f32 {v(S[0],2)}, {v(O[0]+2*i,2)}, 0, {v(S[0],2)}")
    a(f"v_cmp_u_f32 s[44:45], v{S[0]}, v{S[0]+1}")
    a(f"v_rcp_f32 v{vt}, v{O[0]+8}")
    a("s_nop 2")
    a("s_or_b64 vcc, vcc, s[44:45]")
    a("s_cbranch_vccnz L_at_fallback")
    a.label("L_at_fin")
    for i in range(4):
        a(f"v_pk_mul_f32 {v(O[0]+2*i,2)}, {v(O[0]+2*i,2)}, {v(vt,2)} op_sel_hi:[1,0]")
    for i in range(4):
        a(f"v_cvt_pk_bf16_f32 v{P+i}, v{O[0]+2*i}, v{O[0]+2*i+1}")
    a(f"buffer_store_dwordx4 {v(P,4)}, v{V_L16}, s[{SWS}:{SWS+3}], s{s_q0} offen sc1")
    st.stamp(10)
    post(a, s_q1)
    st.stamp(11)
    finish(a, st)
    a.label("L_at_nodma")
    a("s_waitcnt vmcnt(0)")
    a("s_branch L_at_dmadone")
    a.label("L_at_slow")
    st.abeg()
    lds_wait_ge(a, "ats", V_MISC, L_ATT, f"s{s_tgt}", vcnt)
    st.aend(1)
    a("s_branch L_at_back")
    def fallback():
        a.label("L_at_fallback")
        a(f"s_lshl_b32 s46, s{s_head}, 16")
        a(f"s_add_u32 s{s_kg}, s46, {KF}")
        a(f"v_mov_b32 v{vt}, 0xff800000")
        a(f"s_mov_b32 s{s_c}, 0")
        a.label("L_at_fb1")
        a(f"buffer_load_dwordx4 {v(KR,4)}, v{V_L16}, s[{SWS}:{SWS+3}], s{s_kg} offen sc1")
        a(f"s_add_u32 s{s_kg}, s{s_kg}, 1024")
        a("s_waitcnt vmcnt(0)")
        a(f"{MF} {v(S[0],16)}, {v(KR,4)}, {v(Q[0],4)}, 0")
        a("s_nop 15")
        maxtree(vt, S[0], False)
        a(f"s_add_u32 s{s_c}, s{s_c}, 1")
        a(f"s_cmp_lt_u32 s{s_c}, 64")
        a("s_cbranch_scc1 L_at_fb1")
        setC(0)
        for i in range(16):
            a(f"v_mov_b32 v{O[0]+i}, 0")
        a(f"v_and_b32 v{vt}, 15, v0")
        a(f"v_lshlrev_b32 v{vt}, 4, v{vt}")
        a(f"v_lshrrev_b32 v{vt2}, 5, v0")
        a(f"v_lshl_add_u32 v{vaddr}, v{vt2}, 8, v{vt}")
        a(f"s_add_u32 s{s_kg}, s46, {KF}")
        a(f"s_add_u32 s{s_vg}, s46, {VF}")
        a(f"s_mov_b32 s{s_c}, 0")
        a("s_mov_b32 s44, 0xffff")
        a("s_mov_b32 s45, 0xffff")
        a.label("L_at_fb2")
        a(f"buffer_load_dwordx4 {v(KR,4)}, v{V_L16}, s[{SWS}:{SWS+3}], s{s_kg} offen sc1")
        a("s_mov_b64 exec, s[44:45]")
        a(f"buffer_load_dwordx4 {v(V0,4)}, v{vaddr}, s[{SWS}:{SWS+3}], s{s_vg} offen sc1")
        a(f"buffer_load_dwordx4 {v(V1,4)}, v{vaddr}, s[{SWS}:{SWS+3}], s{s_vg} offen offset:512 sc1")
        a("s_mov_b64 exec, -1")
        a(f"s_add_u32 s{s_kg}, s{s_kg}, 1024")
        a(f"s_add_u32 s{s_vg}, s{s_vg}, 1024")
        a("s_waitcnt vmcnt(0)")
        a(f"{MF} {v(S[0],16)}, {v(KR,4)}, {v(Q[0],4)}, {v(C[0],16)}")
        a("s_nop 15")
        for i in range(16): e(S[0], i)
        a("s_nop 0")
        for i in range(8): c(S[0], i)
        a("s_nop 1")
        a(f"{MF} {v(O[0],16)}, {v(V0,4)}, {v(P,4)}, {v(O[0],16)}")
        a(f"{MF} {v(O[0],16)}, {v(V1,4)}, {v(P+4,4)}, {v(O[0],16)}")
        a("s_nop 15")
        a(f"s_add_u32 s{s_c}, s{s_c}, 1")
        a(f"s_cmp_lt_u32 s{s_c}, 64")
        a("s_cbranch_scc1 L_at_fb2")
        a(f"v_rcp_f32 v{vt}, v{O[0]+8}")
        a("s_branch L_at_fin")
    return R.hi, fallback

def fbar(a, vt):
    tag = a.newlabel("fb")[2:]
    a(f"s_add_u32 s{S_FBT}, s{S_FBT}, 4")
    lds_arrive(a, V_MISC, L_FB)
    lds_wait_ge(a, tag, V_MISC, L_FB, f"s{S_FBT}", vt, sleep=2)

def f_waves(a, st):
    t0 = 4
    vx, vw, uxaddr, uwaddr = 8, [9, 10, 11], [16, 17, 18, 19], 12
    vsrc, wa = 14, 15
    s_fw, s_rb, s_lc, s_stage, s_cb, s_T2, s_N2, s_lb = 48, 49, 50, 53, 54, 60, 61, 62
    s_urb, s_cg, s_u0, s_skip, s_dx, s_dw = 51, 52, 55, 56, 57, 58
    s_lx, s_lw, s_xoff, s_woff = 63, 64, 65, 66
    hi = []
    R = Regs(20)
    xaddr = [R.alloc() for _ in range(4)]; waddr = R.alloc()
    XF = [[R.alloc(4) for _ in range(2)] for _ in range(2)]
    WF = [[R.alloc(4) for _ in range(2)] for _ in range(2)]
    ACC = [[R.alloc(16) for _ in range(2)] for _ in range(2)]
    TMP = R.alloc(16)
    hi.append(R.hi)
    a(f"s_sub_u32 s{s_fw}, s{S_WAVE}, 8")
    a(f"s_mov_b32 s{S_FBT}, 0")
    tile_ids(a, s_rb, s_lc)
    a(f"s_lshr_b32 s44, s{S_XCD}, 2")
    a("s_mul_i32 s44, s44, 6")
    a(f"s_add_u32 s{s_cb}, s44, s{s_lc}")
    a(f"s_and_b32 s44, s{s_fw}, 1")
    a(f"s_lshr_b32 s46, s{s_fw}, 1")
    a(f"v_and_b32 v{t0}, 31, v0")
    a(f"v_lshrrev_b32 v{t0+1}, 5, v0")
    a(f"v_bfe_u32 v{t0+2}, v{t0}, 1, 3")
    a(f"v_xor_b32 v{t0+2}, v{t0+2}, v{t0+1}")
    a(f"v_lshlrev_b32 v{t0+2}, 4, v{t0+2}")
    a(f"v_lshl_add_u32 v{t0}, v{t0}, 7, v{t0+2}")
    a("s_lshl_b32 s45, s44, 13")
    a(f"s_add_u32 s45, s45, {TS0+TSTR}")
    assert UX[0] == TS0+TSTR
    for kk in range(4):
        a(f"v_xor_b32 v{t0+3}, {kk*32}, v{t0}")
        a(f"v_add_u32 v{xaddr[kk]}, s45, v{t0+3}")
        a(f"v_add_u32 v{uxaddr[kk]}, s45, v{t0+3}")
    a(f"v_bfe_u32 v{t0}, v0, 2, 2")
    a(f"v_bfe_u32 v{t0+2}, v0, 4, 1")
    a(f"v_and_b32 v{t0+3}, 3, v0")
    a(f"v_lshlrev_b32 v{t0+3}, 3, v{t0+3}")
    a(f"v_lshl_add_u32 v{uwaddr}, v{t0+1}, 3, v{t0}")
    a(f"v_lshl_add_u32 v{waddr}, v{uwaddr}, 7, v{t0+3}")
    a(f"v_mul_u32_u24 v{uwaddr}, 192, v{uwaddr}")
    a(f"v_mul_u32_u24 v{vsrc}, {WIMG}, v{t0+2}")
    a(f"v_add3_u32 v{uwaddr}, v{uwaddr}, v{vsrc}, v{t0+3}")
    a("s_mul_i32 s45, s46, 96")
    a(f"s_add_u32 s45, s45, {UW[0]}")
    a(f"v_add_u32 v{uwaddr}, s45, v{uwaddr}")
    a(f"v_lshlrev_b32 v{wa}, 5, v{t0}")
    a(f"v_and_b32 v{wa}, 64, v{wa}")
    a("s_lshl_b32 s45, s46, 6")
    a(f"v_xor_b32 v{wa}, s45, v{wa}")
    a(f"v_mul_u32_u24 v{vsrc}, {TU-TG}, v{t0+2}")
    a(f"v_add3_u32 v{waddr}, v{waddr}, v{vsrc}, v{wa}")
    a(f"v_add_u32 v{waddr}, {TS0+TSTR+TG}, v{waddr}")
    a(f"v_lshl_add_u32 v{t0+3}, v{t0+2}, 5, v{t0+3}")
    a(f"v_lshl_add_u32 v{t0}, v{t0+1}, 2, v{t0}")
    a(f"v_lshl_add_u32 v{t0+3}, v{t0}, 7, v{t0+3}")
    a(f"v_add_u32 v{wa}, v{wa}, v{t0+3}")
    a(f"s_lshl_b32 s{s_lb}, s{s_fw}, 14")
    a(f"s_add_u32 s{s_lb}, s{s_lb}, {STG}")
    a(f"s_lshl_b32 s44, s{S_XCD}, 2")
    a(f"s_and_b32 s45, s{S_LOC}, 3")
    a(f"s_add_u32 s{s_T2}, s44, s45")
    a(f"s_lshr_b32 s{s_N2}, s{S_LOC}, 2")
    a(f"v_lshrrev_b32 v{t0}, 3, v0")
    a(f"v_and_b32 v{t0+1}, 7, v0")
    a(f"v_lshlrev_b32 v{t0+3}, 1, v{t0}")
    a(f"v_and_b32 v{t0+3}, 4, v{t0+3}")
    a(f"v_xor_b32 v{t0+3}, v{t0+1}, v{t0+3}")
    a(f"v_lshlrev_b32 v{t0+3}, 4, v{t0+3}")
    a(f"v_lshl_add_u32 v{t0+3}, v{t0}, 10, v{t0+3}")
    a(f"s_lshl_b32 s44, s{s_N2}, 7")
    a(f"v_add_u32 v{vsrc}, s44, v{t0+3}")
    def zero(r, n):
        a(f"v_mov_b32 v{r}, 0")
        a(f"v_mov_b32 v{r+1}, 0")
        for i in range(1, n//2): a(f"v_pk_mov_b32 {v(r+2*i,2)}, {v(r,2)}, {v(r,2)}")
    up_dma_setup(a, t0, vx, vw, s_fw, s_urb, s_cg, s_u0, s_lx, s_lw, s_xoff, s_woff)
    a(f"s_lshr_b32 s46, s{s_fw}, 1")
    a(f"s_cmp_ge_u32 s{s_cg}, 6")
    a(f"s_cselect_b32 s{s_skip}, s46, 0")
    a(f"s_mov_b32 s{s_dx}, {UX[1]-UX[0]}")
    a(f"s_mov_b32 s{s_dw}, {UW[1]-UW[0]}")
    zero(ACC[0][0], 64)
    a(f"s_mov_b32 s{s_stage}, 0")
    a("s_waitcnt lgkmcnt(0)")
    srd(a, SWS, 24, 25, WS_BYTES)
    up_srd(a, s_fw, s_u0)
    a(f"s_cmp_lt_u32 s{S_LOC}, 24")
    a("s_cbranch_scc1 L_E_work")
    for i in range(8): a("s_barrier")
    a("s_branch L_E_done")
    a.label("L_E_work")
    def rd(kk, buf, xu):
        for t in range(2):
            a(f"ds_read_b128 {v(XF[buf][t],4)}, v{xaddr[kk]} offset:{t*4096}")
            a(f"ds_read_b64_tr_b16 {v(WF[buf][t],2)}, v{waddr} offset:{kk*2048+t*32}")
            a(f"ds_read_b64_tr_b16 {v(WF[buf][t]+2,2)}, v{waddr} offset:{kk*2048+t*32+512}")
        if xu: rdxu(kk, buf)
    def rdxu(kk, buf):
        a(f"ds_read_b64_tr_b16 {v(WF[buf][2],2)}, v{xuaddr} offset:{kk*1024}")
        a(f"ds_read_b64_tr_b16 {v(WF[buf][2]+2,2)}, v{xuaddr} offset:{kk*1024+256}")
    a("s_barrier")
    st.stamp(2)
    if st.en: a("s_waitcnt lgkmcnt(0)")
    rd(0, 0, False)
    a(f"s_cmp_ge_u32 s{s_cb}, 8")
    a("s_cbranch_scc1 L_E_loopV")
    def mm(tag, buf):
        for u in range(3 if tag == "X" else 2):
            for t in range(2):
                A_, B_ = (XF[buf][t], WF[buf][u]) if tag == "V" else (WF[buf][u], XF[buf][t])
                a(f"{MF} {v(ACC[u][t],16)}, {v(A_,4)}, {v(B_,4)}, {v(ACC[u][t],16)}")
    def loop(tag):
        xu = tag == "X"
        a.label(f"L_E_loop{tag}")
        for kk in range(3):
            rd(kk+1, (kk+1) & 1, xu)
            a(f"s_waitcnt lgkmcnt({8 if xu else 6})")
            mm(tag, kk & 1)
        a(f"s_add_u32 s{s_stage}, s{s_stage}, 1")
        a(f"s_cmp_eq_u32 s{s_stage}, 8")
        a(f"s_cbranch_scc1 L_E_tail{tag}")
        a(f"s_lshr_b32 s44, 0x24, s{s_stage}")
        a("s_bitcmp1_b32 s44, 0")
        a(f"s_mov_b32 s45, {(-2*TSTR) & 0xffffffff}")
        a(f"s_cselect_b32 s44, s45, {TSTR}")
        if xu:
            a(f"s_mov_b32 s45, {(-2*XSTR) & 0xffffffff}")
            a(f"s_cselect_b32 s45, s45, {XSTR}")
            a(f"v_add_u32 v{xuaddr}, s45, v{xuaddr}")
        for r in xaddr + [waddr]:
            a(f"v_add_u32 v{r}, s44, v{r}")
        a("s_waitcnt lgkmcnt(0)")
        a("s_barrier")
        rd(0, 0, xu)
        mm(tag, 1)
        a(f"s_branch L_E_loop{tag}")
        a.label(f"L_E_tail{tag}")
        a("s_waitcnt lgkmcnt(0)")
        mm(tag, 1)
    loop("T")
    a(f"v_mov_b32 v{t0}, v{V_L16}")
    a(f"s_mov_b32 s47, {4*65536}")
    a("s_branch L_E_epiQ")
    loop("V")
    a(f"v_and_b32 v{t0}, 15, v0")
    a(f"v_lshlrev_b32 v{t0}, 4, v{t0}")
    a(f"v_lshrrev_b32 v{t0+1}, 5, v0")
    a(f"v_lshl_add_u32 v{t0}, v{t0+1}, 8, v{t0}")
    a(f"v_bfe_u32 v{t0+1}, v0, 4, 1")
    a(f"v_lshl_add_u32 v{t0}, v{t0+1}, 18, v{t0}")
    a("s_mov_b32 s47, 512")
    a.label("L_E_epiQ")
    st.stamp(3)
    a(f"s_lshl_b32 s44, s{s_cb}, 19")
    a(f"s_lshr_b32 s45, s{s_fw}, 1")
    a("s_lshl_b32 s45, s45, 17")
    a("s_add_u32 s44, s44, s45")
    a(f"s_lshl_b32 s45, s{s_rb}, 12")
    a("s_add_u32 s44, s44, s45")
    a(f"s_and_b32 s45, s{s_fw}, 1")
    a("s_lshl_b32 s45, s45, 11")
    a("s_add_u32 s44, s44, s45")
    a("s_add_u32 s45, s44, s47")
    a(f"s_cmp_lt_u32 s{s_cb}, 4")
    a("s_cbranch_scc0 L_E_noscale")
    a(f"s_mov_b32 s46, {f32bits(QSCALE)}")
    a("s_mov_b32 s47, s46")
    for i in range(32):
        a(f"v_pk_mul_f32 {v(ACC[0][0]+2*i,2)}, {v(ACC[0][0]+2*i,2)}, s[46:47]")
    a.label("L_E_noscale")
    n = 0
    for u in range(2):
        for t in range(2):
            for half in range(2):
                tm = TMP + 4*(n & 3); n += 1
                src = ACC[u][t] + 8*half
                for i in range(4):
                    a(f"v_cvt_pk_bf16_f32 v{tm+i}, v{src+2*i}, v{src+2*i+1}")
                a(f"buffer_store_dwordx4 {v(tm,4)}, v{t0}, s[{SWS}:{SWS+3}], s{44+half} offen offset:{t*1024} sc1")
        if u == 0:
            a("s_add_u32 s44, s44, 65536")
            a("s_add_u32 s45, s45, 65536")
    a(f"s_and_b32 s44, s{s_cb}, 3")
    a("s_lshl_b32 s44, s44, 1")
    a(f"s_lshr_b32 s45, s{s_fw}, 1")
    a("s_add_u32 s44, s44, s45")
    a("s_lshl_b32 s44, s44, 3")
    a(f"s_lshr_b32 s45, s{s_cb}, 2")
    a("s_lshl_b32 s45, s45, 1")
    a("s_add_u32 s44, s44, s45")
    a(f"s_and_b32 s45, s{s_fw}, 1")
    a("s_add_u32 s44, s44, s45")
    a("s_lshl_b32 s44, s44, 7")
    a(f"s_add_u32 s44, s44, {CQ}")
    lds_wait_ge(a, "tg1", V_MISC, L_NONCE, "1", t0+1)
    post(a, 44)
    a("s_branch L_E_done2")
    a.label("L_E_done")
    lds_wait_ge(a, "tg2", V_MISC, L_NONCE, "1", t0+1)
    a.label("L_E_done2")
    lds_arrive(a, V_MISC, L_POST)
    st.stamp(4)
    R = Regs(20)
    XF = [[R.alloc(4) for _ in range(2)] for _ in range(2)]
    WF = [R.alloc(4) for _ in range(3)]
    UACC = [[R.alloc(16) for _ in range(2)] for _ in range(3)]
    hi.append(R.hi)
    def up_groups():
        g = up_dma_groups(vx, vw, s_lx, s_lw, s_xoff, s_woff)
        g[-1] += [f"s_add_u32 s{s_xoff}, s{s_xoff}, 128",
                  f"s_add_u32 s{s_woff}, s{s_woff}, {64*2752}",
                  f"s_and_b32 s{s_xoff}, s{s_xoff}, 1023",
                  f"s_cselect_b32 s{s_woff}, s{s_woff}, 0",
                  f"s_add_u32 s{s_lx}, s{s_lx}, s{s_dx}",
                  f"s_add_u32 s{s_lw}, s{s_lw}, s{s_dw}",
                  f"s_sub_u32 s{s_dx}, 0, s{s_dx}",
                  f"s_sub_u32 s{s_dw}, 0, s{s_dw}"]
        return g
    zero(UACC[0][0], 96)
    a(f"s_setprio {o.fprio}")
    if o.upat == 9: lds_wait_ge(a, "upgo", V_MISC, L_POST, "4", t0, sleep=2)
    if o.upat == 10: lds_wait_ge(a, "upgo", V_MISC, L_ATT, "8", t0, sleep=4)
    if o.upat == 12: lds_wait_ge(a, "upgo", V_MISC, L_GO, "1", t0, sleep=2)
    if o.udelay: a(f"s_sleep {o.udelay}")
    for grp in up_groups():
        for l in grp: a(l)
    a(f"s_mov_b32 s{s_stage}, 0")
    a(f"s_mov_b32 s{s_rb}, {UX[1]-UX[0]}")
    a(f"s_mov_b32 s{s_lc}, {UW[1]-UW[0]}")
    def rd_x(kk, buf):
        for t in range(2):
            a(f"ds_read_b128 {v(XF[buf][t],4)}, v{uxaddr[kk]} offset:{t*4096}")
    def rd_w(kk, u):
        off = kk*16*192 + u*32
        a(f"ds_read_b64_tr_b16 {v(WF[u],2)}, v{uwaddr} offset:{off}")
        a(f"ds_read_b64_tr_b16 {v(WF[u]+2,2)}, v{uwaddr} offset:{off+4*192}")
    def nops(n):
        if n > 0: a(f"s_nop {n-1}")
    def umm(u, buf, fill=None, after=3):
        for t in range(2):
            a(f"{MF} {v(UACC[u][t],16)}, {v(WF[u],4)}, {v(XF[buf][t],4)}, {v(UACC[u][t],16)}")
            if fill:
                for _ in range(o.dper):
                    if fill:
                        for l in fill.pop(0): a(l)
            else:
                nops(o.fpace - (after if t == 1 else 0))
    st.abeg()
    a("s_waitcnt vmcnt(0)")
    fbar(a, t0)
    st.aend(2)
    rd_x(0, 0)
    for u in range(3): rd_w(0, u)
    if o.upause == -1: lds_wait_ge(a, "upp0", V_MISC, L_ATT, "8", t0, sleep=4)
    a(f"s_setprio {o.mprio}")
    def umm_skip(u, buf):
        if u == 2:
            lab = a.newlabel("upskip")
            a(f"s_cmp_lg_u32 s{s_skip}, 0")
            a(f"s_cbranch_scc1 {lab}")
            umm(u, buf)
            a.label(lab)
        else:
            umm(u, buf)
    a.label("L_up_loop")
    groups = up_groups()
    for kk in range(3):
        buf = kk & 1
        for u in range(3):
            younger = (2-u)*2 + (0 if u == 0 else 2 + 2*u)
            a(f"s_waitcnt lgkmcnt({younger})")
            if u == 2: umm_skip(u, buf)
            else: umm(u, buf, groups, 5 if u == 0 else 3)
            if u == 0: rd_x(kk+1, buf ^ 1)
            rd_w(kk+1, u)
    assert not groups
    a("s_waitcnt lgkmcnt(4)")
    umm(0, 1)
    a(f"s_cmp_eq_u32 s{s_stage}, 7")
    a("s_cbranch_scc1 L_up_last")
    st.abeg()
    a("s_waitcnt vmcnt(0) lgkmcnt(0)")
    st.aend(0)
    a(f"s_add_u32 s{S_FBT}, s{S_FBT}, 4")
    lds_arrive(a, V_MISC, L_FB)
    umm(1, 1)
    a(f"s_setprio {o.fprio}")
    for r in uxaddr:
        a(f"v_add_u32 v{r}, s{s_rb}, v{r}")
    a(f"v_add_u32 v{uwaddr}, s{s_lc}, v{uwaddr}")
    st.abeg()
    lds_wait_ge(a, "upb", V_MISC, L_FB, f"s{S_FBT}", t0, sleep=1)
    st.aend(1)
    a(f"s_setprio {o.mprio}")
    rd_x(0, 0)
    rd_w(0, 0); rd_w(0, 1)
    umm_skip(2, 1)
    rd_w(0, 2)
    a(f"s_sub_u32 s{s_rb}, 0, s{s_rb}")
    a(f"s_sub_u32 s{s_lc}, 0, s{s_lc}")
    a(f"s_add_u32 s{s_stage}, s{s_stage}, 1")
    a(f"s_cmp_eq_u32 s{s_stage}, 7")
    a(f"s_cselect_b32 s{SA+2}, 0, s{SA+2}")
    a(f"s_cselect_b32 s{SB+2}, 0, s{SB+2}")
    if o.upause > 0:
        a(f"s_cmp_eq_u32 s{s_stage}, {o.upause}")
        a("s_cbranch_scc0 L_up_loop")
        a(f"s_setprio {o.fprio}")
        lds_wait_ge(a, "upp", V_MISC, L_ATT, "8", t0, sleep=4)
        a(f"s_setprio {o.mprio}")
    a("s_branch L_up_loop")
    a.label("L_up_last")
    a("s_waitcnt lgkmcnt(0)")
    umm(1, 1)
    umm_skip(2, 1)
    a(f"s_setprio {o.fprio}")
    st.stamp(5)
    a(f"s_lshl_b32 s44, s{s_urb}, 2")
    a(f"s_and_b32 s45, s{s_fw}, 1")
    a("s_lshl_b32 s45, s45, 1")
    a("s_add_u32 s44, s44, s45")
    a("s_mul_i32 s44, s44, 86")
    a(f"s_add_u32 s44, s44, s{s_u0}")
    a(f"s_lshr_b32 s45, s{s_fw}, 1")
    a("s_mul_i32 s45, s45, 3")
    a("s_add_u32 s44, s44, s45")
    a("s_lshl_b32 s44, s44, 10")
    a(f"s_add_u32 s44, s44, {HF}")
    a(f"s_add_u32 s45, s44, {86*1024}")
    a(f"s_mov_b32 s46, {f32bits(-LOG2E)}")
    a("s_mov_b32 s47, s46")
    for u in range(3):
        if u == 2:
            a(f"s_cmp_lg_u32 s{s_skip}, 0")
            a("s_cbranch_scc1 L_up_done")
        for t in range(2):
            g = UACC[u][t]; up = g + 8
            tm = XF[u & 1][t]
            for i in range(4): a(f"v_pk_mul_f32 {v(g+2*i,2)}, {v(g+2*i,2)}, s[46:47]")
            for i in range(8): a(f"v_exp_f32 v{g+i}, v{g+i}")
            for i in range(4): a(f"v_pk_add_f32 {v(g+2*i,2)}, {v(g+2*i,2)}, 1.0 op_sel_hi:[1,0]")
            for i in range(8): a(f"v_rcp_f32 v{g+i}, v{g+i}")
            for i in range(4): a(f"v_pk_mul_f32 {v(g+2*i,2)}, {v(g+2*i,2)}, {v(up+2*i,2)}")
            for i in range(4): a(f"v_cvt_pk_bf16_f32 v{tm+i}, v{g+2*i}, v{g+2*i+1}")
            a(f"buffer_store_dwordx4 {v(tm,4)}, v{V_L16}, s[{SWS}:{SWS+3}], s{44+t} offen offset:{u*1024} sc1")
    a.label("L_up_done")
    a(f"s_lshl_b32 s44, s{s_urb}, 2")
    a(f"s_add_u32 s44, s44, s{s_fw}")
    a("s_lshl_b32 s44, s44, 7")
    a(f"s_add_u32 s44, s44, {CH}")
    post(a, 44)
    st.stamp(8)
    s_h0, s_h1, s_w, s_i, s_T, s_nt, s_idx, s_dl = 49, 50, 51, 52, 53, 54, 55, 56
    R = Regs(16)
    ACC = [R.alloc(16) for _ in range(4)]
    HFR = [[R.alloc(4) for _ in range(2)] for _ in range(8)]
    WF = [[R.alloc(4) for _ in range(2)] for _ in range(2)]
    G = 8; VOUT = 10; da = [11, 12]; db = [R.alloc(), R.alloc()]
    hi.append(R.hi)
    fbar(a, t0)
    a(f"ds_read_b32 v{t0+3}, v{V_MISC} offset:{L_NONCE}")
    srd(a, SA, 8, 9, 512*1024)
    a(f"s_lshl_b32 s{s_w}, s{s_fw}, 17")
    a(f"s_mov_b32 m0, s{s_lb}")
    a(f"s_mov_b32 s{s_i}, 14")
    a.label("L_wo_ld")
    a(f"buffer_load_dwordx4 v{vsrc}, s[{SA}:{SA+3}], s{s_w} offen lds")
    a("s_add_u32 m0, m0, 1024")
    a(f"s_add_u32 s{s_w}, s{s_w}, 8192")
    a(f"s_sub_u32 s{s_i}, s{s_i}, 1")
    a(f"s_cmp_lg_u32 s{s_i}, 0")
    a("s_cbranch_scc1 L_wo_ld")
    srd(a, SA, 16, 17, 1376*1024)
    a(f"s_mul_i32 s{s_dl}, s{s_fw}, 6144")
    a(f"s_add_u32 s{s_dl}, s{s_dl}, {DRING}")
    a(f"v_add_u32 v{da[0]}, s{s_dl}, v{wa}")
    a(f"v_xor_b32 v{da[1]}, 64, v{da[0]}")
    a(f"v_add_u32 v{db[0]}, s{s_lb}, v{wa}")
    a(f"v_xor_b32 v{db[1]}, 64, v{db[0]}")
    a(f"s_lshl_b32 s{s_w}, s{s_fw}, 14")
    a(f"s_lshl_b32 s44, s{s_T2}, 1")
    a(f"s_and_b32 s45, s{s_fw}, 1")
    a(f"s_add_u32 s{s_T}, s44, s45")
    a(f"s_xor_b32 s47, s{s_T}, 1")
    for d, sx in ((s_h0, s_T), (s_h1, 47)):
        a(f"s_mul_i32 s{d}, s{sx}, 86")
        a(f"s_add_u32 s{d}, s{d}, s{s_fw}")
        a(f"s_lshl_b32 s{d}, s{d}, 10")
        a(f"s_add_u32 s{d}, s{d}, {HF}")
    a(f"s_lshl_b32 s44, s{s_N2}, 1")
    a(f"s_lshr_b32 s45, s{s_fw}, 1")
    a(f"s_add_u32 s{s_nt}, s44, s45")
    a(f"v_and_b32 v{t0}, 31, v0")
    a(f"v_lshrrev_b32 v{t0+1}, 5, v0")
    a(f"v_lshlrev_b32 v{t0+1}, 4, v{t0+1}")
    a(f"v_lshl_add_u32 v{VOUT}, v{t0}, 10, v{t0+1}")
    a("s_waitcnt lgkmcnt(0)")
    a(f"v_readfirstlane_b32 s{S_NONCE}, v{t0+3}")
    a(f"v_lshlrev_b32 v{t0+1}, 3, v{t0}")
    a(f"s_lshl_b32 s44, s{s_T}, 8")
    a(f"s_add_u32 s44, s44, {GA}")
    a(f"s_mov_b32 s{S_SPIN}, 0")
    a.label("L_g_poll")
    a(f"buffer_load_dwordx2 {v(G,2)}, v{t0+1}, s[{SWS}:{SWS+3}], s44 offen sc1")
    a(f"s_add_u32 s{S_SPIN}, s{S_SPIN}, 1")
    a("s_waitcnt vmcnt(0)")
    a(f"v_cmp_ne_u32 vcc, s{S_NONCE}, v{G+1}")
    a(f"s_cmp_gt_u32 s{S_SPIN}, 200000")
    a("s_cbranch_scc1 L_g_got")
    a("s_cbranch_vccz L_g_got")
    a("s_sleep 8")
    a("s_branch L_g_poll")
    a.label("L_g_got")
    a(f"v_sub_f32 v{G+1}, 1.0, v{G}")
    a(f"s_cmp_eq_u32 s{s_fw}, 0")
    a("s_cbranch_scc0 L_dn_nopoll")
    a(f"s_lshr_b32 s44, s{s_T2}, 1")
    a("s_lshl_b32 s44, s44, 2")
    a(f"s_and_b32 s45, s{s_T2}, 1")
    a("s_add_u32 s44, s44, s45")
    a("s_lshl_b32 s44, s44, 7")
    a(f"s_add_u32 s44, s44, {CH}")
    a(f"v_and_b32 v{t0+2}, 1, v0")
    a(f"v_lshlrev_b32 v{t0+2}, 8, v{t0+2}")
    poll(a, "dn", t0+1, t0+2, 44, 16, 8)
    a.label("L_dn_nopoll")
    fbar(a, t0+1)
    st.stamp(9)
    def ld_parts(g, wrap=True):
        p0 = [f"s_add_u32 m0, s{s_dl}, {(g%4)*2048}" if g % 4 < 3 else f"s_add_u32 m0, s{s_lb}, {7*2048}",
              f"s_add_u32 s44, s{s_w}, 8192",
              f"buffer_load_dwordx4 v{vsrc}, s[{SA}:{SA+3}], s{s_w} offen lds"]
        p1 = ["s_add_u32 m0, m0, 1024",
              f"s_add_u32 s{s_idx}, s{s_idx}, 1",
              f"buffer_load_dwordx4 v{vsrc}, s[{SA}:{SA+3}], s44 offen lds"]
        p2 = [f"buffer_load_dwordx4 {v(HFR[g%4][0],4)}, v{V_L16}, s[{SWS}:{SWS+3}], s{s_h0} offen sc1",
              f"buffer_load_dwordx4 {v(HFR[g%4][1],4)}, v{V_L16}, s[{SWS}:{SWS+3}], s{s_h1} offen sc1"]
        p3 = [f"s_cmp_eq_u32 s{s_idx}, 21",
              f"s_cselect_b32 s44, {(-20*4096) & 0xffffffff}, s47",
              f"s_add_u32 s{s_h0}, s{s_h0}, s44",
              f"s_add_u32 s{s_h1}, s{s_h1}, s44",
              "s_lshl_b32 s44, s44, 4",
              f"s_add_u32 s{s_w}, s{s_w}, s44"] if wrap else []
        return [p0, p1, [], p2 + p3]
    def ld(g, wrap=True):
        for p in ld_parts(g, wrap):
            for l in p: a(l)
    def rdw(off, buf, ad=da):
        for n in range(2):
            a(f"ds_read_b64_tr_b16 {v(WF[buf][n],2)}, v{ad[n]} offset:{off}")
            a(f"ds_read_b64_tr_b16 {v(WF[buf][n]+2,2)}, v{ad[n]} offset:{off+1024}")
    a("s_movk_i32 s47, 4096")
    a(f"s_and_b32 s44, s{S_LOC}, 3")
    a("s_mul_i32 s44, s44, 5")
    a(f"s_mul_i32 s45, s{s_N2}, 21")
    a("s_lshr_b32 s45, s45, 3")
    a("s_add_u32 s44, s44, s45")
    a("s_cmp_ge_u32 s44, 21")
    a("s_cselect_b32 s45, 21, 0")
    a(f"s_sub_u32 s{s_i}, s44, s45")
    a(f"s_cmp_lt_u32 s{s_fw}, 2")
    a(f"s_cselect_b32 s45, {21*4096}, 0")
    a(f"s_add_u32 s{s_h0}, s{s_h0}, s45")
    a(f"s_add_u32 s{s_h1}, s{s_h1}, s45")
    a(f"s_add_u32 s{s_w}, s{s_w}, {21*65536}")
    ld(0, False)
    a(f"s_lshl_b32 s44, s{s_i}, 12")
    a("s_sub_u32 s45, s44, s45")
    a(f"s_add_u32 s{s_h0}, s{s_h0}, s45")
    a(f"s_add_u32 s{s_h1}, s{s_h1}, s45")
    a("s_lshl_b32 s44, s44, 4")
    a(f"s_add_u32 s{s_w}, s{s_w}, s44")
    a(f"s_sub_u32 s{s_w}, s{s_w}, {21*65536}")
    a(f"s_mov_b32 s{s_idx}, s{s_i}")
    LA = o.la
    for g in range(1, LA+1): ld(g)
    a(f"s_setprio {o.mprio}")
    a(f"s_waitcnt vmcnt({4*LA})")
    rdw(0, 0)
    def rstep(k):
        b = k & 1
        load = k + LA + 1 <= 21
        if k < 21:
            a(f"s_waitcnt vmcnt({4*min(LA-1, 20-k)})")
            if (k+1) % 4 < 3: rdw(((k+1) % 4)*2048, b ^ 1)
            else: rdw(7*2048, b ^ 1, db)
            a("s_waitcnt lgkmcnt(4)")
        else:
            a("s_waitcnt lgkmcnt(0)")
        parts = ld_parts(k+LA+1) if load else [[], [], [], []]
        for n in range(2):
            for t in range(2):
                c = "0" if k == 0 else v(ACC[2*n+t],16)
                a(f"{MF} {v(ACC[2*n+t],16)}, {v(WF[b][n],4)}, {v(HFR[k%4][t],4)}, {c}")
                for l in parts[2*n+t]: a(l)
                if not parts[2*n+t]: nops(o.fpace)
    rstep(0)
    a(f"s_mov_b32 s{s_i}, 4")
    a.label("L_dn_loop")
    for k in range(1, 5): rstep(k)
    a(f"s_sub_u32 s{s_i}, s{s_i}, 1")
    a(f"s_cmp_lg_u32 s{s_i}, 0")
    a("s_cbranch_scc1 L_dn_loop")
    for k in range(17, 22): rstep(k)
    a(f"s_setprio {o.fprio}")
    st.stamp(10)
    srd(a, SA, 8, 9, 512*1024)
    a(f"s_lshl_b32 s44, s{s_fw}, 17")
    a(f"s_add_u32 s44, s44, {14*8192}")
    a(f"s_add_u32 m0, s{s_lb}, {14*1024}")
    a("s_add_u32 s45, s44, 8192")
    a(f"buffer_load_dwordx4 v{vsrc}, s[{SA}:{SA+3}], s44 offen lds")
    a("s_add_u32 m0, m0, 1024")
    a("s_nop 0")
    a(f"buffer_load_dwordx4 v{vsrc}, s[{SA}:{SA+3}], s45 offen lds")
    lds_wait_ge(a, "xw", V_MISC, L_ATT, "56", t0+1, sleep=8)
    a(f"v_add_u32 v{t0}, s{s_dl}, v{V_L16}")
    a(f"s_lshl_b32 s44, s{s_fw}, 12")
    a(f"v_add_u32 v{t0+2}, s44, v{V_L16}")
    for i in range(4):
        a(f"ds_write_b128 v{t0}, {v(ACC[1]+4*i,4)} offset:{i*1024}")
    for i in range(4):
        a(f"ds_write_b128 v{t0+2}, {v(ACC[3]+4*i,4)} offset:{i*1024}")
    a(f"s_xor_b32 s44, s{s_fw}, 1")
    a("s_mul_i32 s44, s44, 6144")
    a(f"s_add_u32 s44, s44, {DRING}")
    a("s_waitcnt lgkmcnt(0)")
    a(f"v_add_u32 v{t0}, s44, v{V_L16}")
    a(f"v_xor_b32 v{t0+2}, 4096, v{t0+2}")
    fbar(a, t0+1)
    for i in range(4):
        a(f"ds_read_b128 {v(ACC[1]+4*i,4)}, v{t0} offset:{i*1024}")
    for i in range(4):
        a(f"ds_read_b128 {v(ACC[3]+4*i,4)}, v{t0+2} offset:{i*1024}")
    BQ = [ACC[0], ACC[2]]
    for n in range(2):
        a(f"s_waitcnt lgkmcnt({4*(1-n)})")
        for i in range(8):
            a(f"v_pk_add_f32 {v(BQ[n]+2*i,2)}, {v(BQ[n]+2*i,2)}, {v(ACC[2*n+1]+2*i,2)}")
        for i in range(8):
            a(f"v_pk_mul_f32 {v(BQ[n]+2*i,2)}, {v(BQ[n]+2*i,2)}, {v(G,2)} op_sel:[0,1] op_sel_hi:[1,1]")
    s_o, s_out, s_co = 49, 50, 51
    srd(a, SB, 20, 21, 2048*1024)
    a(f"s_lshr_b32 s46, s{s_fw}, 1")
    a("s_lshl_b32 s44, s46, 15")
    a(f"s_add_u32 s44, s44, {STG}")
    a(f"v_add_u32 v{da[0]}, s44, v{wa}")
    a(f"v_xor_b32 v{da[1]}, 64, v{da[0]}")
    a(f"s_lshl_b32 s44, s{s_T}, 15")
    a("s_lshl_b32 s45, s46, 14")
    a("s_add_u32 s45, s44, s45")
    a(f"s_add_u32 s{s_o}, s45, {OF}")
    a(f"s_lshl_b32 s45, s{s_nt}, 6")
    a(f"s_add_u32 s{s_out}, s44, s45")
    a(f"s_lshl_b32 s44, s{s_T}, 1")
    a("s_add_u32 s44, s44, s46")
    a("s_lshl_b32 s44, s44, 7")
    a(f"s_add_u32 s{s_co}, s44, {CO}")
    a(f"s_lshl_b32 s44, s{s_fw}, 12")
    a("s_add_u32 s44, s44, 49152")
    a(f"v_add_u32 v{t0}, s44, v{V_L16}")
    a(f"v_xor_b32 v{t0+2}, 8192, v{t0}")
    a("s_waitcnt vmcnt(0)")
    a("s_barrier")
    rdw(0, 0)
    if o.tdelay: a(f"s_sleep {o.tdelay}")
    poll(a, "tl", t0+1, None, s_co, 16, o.psleep)
    st.stamp(11)
    OFR = [HFR[i >> 1][i & 1] for i in range(16)]
    for i in range(16):
        a(f"buffer_load_dwordx4 {v(OFR[i],4)}, v{V_L16}, s[{SWS}:{SWS+3}], s{s_o} offen offset:{(i&3)*1024} sc1")
        if i & 3 == 3 and i < 15: a(f"s_add_u32 s{s_o}, s{s_o}, 4096")
    AO = [ACC[1], ACC[3]]
    for i in range(16):
        buf = i & 1
        if i < 15: rdw((i+1)*2048, buf ^ 1)
        a(f"s_waitcnt vmcnt({15-i}) lgkmcnt({4 if i < 15 else 0})")
        for n in (1, 0):
            c = "0" if i == 0 else v(AO[n],16)
            a(f"{MF} {v(AO[n],16)}, {v(WF[buf][n],4)}, {v(OFR[i],4)}, {c}")
    a("s_nop 10")
    for i in range(4):
        for j in (2*i, 2*i+1):
            a(f"v_pk_fma_f32 {v(BQ[1]+2*j,2)}, {v(AO[1]+2*j,2)}, {v(G,2)}, {v(BQ[1]+2*j,2)} op_sel_hi:[1,0,1]")
        a(f"ds_write_b128 v{t0}, {v(BQ[1]+4*i,4)} offset:{i*1024}")
    for i in range(8):
        a(f"v_pk_fma_f32 {v(BQ[0]+2*i,2)}, {v(AO[0]+2*i,2)}, {v(G,2)}, {v(BQ[0]+2*i,2)} op_sel_hi:[1,0,1]")
    a("s_waitcnt lgkmcnt(0)")
    a("s_barrier")
    for i in range(4):
        a(f"ds_read_b128 {v(AO[1]+4*i,4)}, v{t0+2} offset:{i*1024}")
    T2 = AO[0]
    for p in range(2):
        a(f"s_waitcnt lgkmcnt({2*(1-p)})")
        for i in range(4*p, 4*p+4):
            a(f"v_pk_add_f32 {v(BQ[0]+2*i,2)}, {v(BQ[0]+2*i,2)}, {v(AO[1]+2*i,2)}")
        for i in range(4*p, 4*p+4):
            a(f"v_cvt_pk_bf16_f32 v{T2+i}, v{BQ[0]+2*i}, v{BQ[0]+2*i+1}")
        b = T2 + 4*p
        a("s_nop 1")
        a(f"v_permlane32_swap_b32 v{b}, v{b+2}")
        a(f"v_permlane32_swap_b32 v{b+1}, v{b+3}")
        a("s_nop 1")
        a(f"buffer_store_dwordx4 {v(b,4)}, v{VOUT}, s[{SB}:{SB+3}], s{s_out} offen offset:{32*p}{['', ' sc1', ' nt', ' sc0 sc1', ' sc1 nt'][o.ost]}")
    finish(a, st)
    return hi

def build(path):
    global KN
    KN = "kb_kernel" if (o.report or o.instr) else KNAME
    a = Asm()
    a('.amdgcn_target "amdgcn-amd-amdhsa--gfx950"')
    a(".text")
    st = Stamper(a, o.instr, 0)
    kernel_header(a, KN)
    a("s_cmp_ge_u32 s2, 256")
    a("s_cbranch_scc1 L_exit")
    a("s_load_dwordx16 s[4:19], s[0:1], 0")
    a("s_load_dwordx4 s[20:23], s[0:1], 64")
    a("s_load_dwordx2 s[24:25], s[0:1], 80")
    st.init(); st.real(0); st.stamp(1)
    a("v_lshrrev_b32 v1, 6, v0")
    a("v_and_b32 v0, 63, v0")
    a(f"s_and_b32 s{S_XCD}, s2, 7")
    a(f"v_readfirstlane_b32 s{S_WAVE}, v1")
    a(f"s_lshr_b32 s{S_LOC}, s2, 3")
    a(f"v_lshlrev_b32 v{V_L16}, 4, v0")
    a(f"v_mov_b32 v{V_MISC}, {MISC}")
    a(f"v_mov_b32 v{V_ONE}, 1")
    a(f"s_cmp_ge_u32 s{S_WAVE}, 8")
    a("s_cbranch_scc1 L_F")
    ahi, fallback = a_waves(a, st)
    a.label("L_F")
    hi = f_waves(a, st) + [ahi]
    a.label("L_code_end")
    fallback()
    a.label("L_exit")
    a("s_endpgm")
    print("vgprs", hi)
    assert max(hi) <= 168
    descs = [kernel_desc(KN, 168)]
    if o.report or o.instr:
        hdr = f"; @launch kernel={KN} grid=(256,1,1) block=(768,1,1) lds={LDS_TOTAL}\n"
        if o.report:
            k, w, i = [int(x) for x in str(o.report).split(",")]
            reporter(a, k, w, i)
            hdr += "; @launch kernel=rep_kernel grid=(1,1,1) block=(64,1,1) lds=0\n"
            descs.append(kernel_desc("rep_kernel", 16))
    else:
        hdr = f"; @launch grid=(256,1,1) block=(768,1,1) lds={LDS_TOTAL}\n"
    a('.section .rodata,"a"')
    open(path, "w").write("; generated by gen/gen13.py\n" + hdr + a.text() + "".join(descs))

if __name__ == "__main__":
    path = sys.argv[1]
    for arg in sys.argv[2:]:
        k, _, val = arg.partition("=")
        assert hasattr(Opt, k), k
        setattr(Opt, k, (val if ',' in val else int(val)) if val else True)
    if Opt.report: Opt.instr = True; Stamper.rt = True
    if Opt.acc: Stamper.acc = True
    if Opt.rt: Stamper.rt = True
    build(path)
```

```python
import math, sys
from asmlib import *

MB = 1 << 20
QF, KF, VF, OF, HF = 0, 2*MB, 4*MB, 6*MB, 8*MB
GA = 14*MB
CNT = 14*MB + 0x10000
CQ, CH, CO = CNT, CNT + 64*128, CNT + 128*128
W0 = 14*MB + 0x20000
WS_BYTES = 32*MB
LOG2E = 1.4426950408889634
QSCALE = 0.25 * LOG2E
LDS_TOTAL = 163840
KNAME = "gated_mix__mha_block__glu_gated_glu__prompt_kernel"

TS0, TSTR = 32768, 33024
TG, TU = 16384, 16384 + 8192 + 32
WIMG = 12288 + 32
UX = [65792, 131840]
UW = [82176, 107008]
STG = 65536
DRING = 131072
VCONST = 156672
GL = 160768
MISC = LDS_TOTAL - 256
L_NONCE, L_ATT, L_FB, L_GO, L_PAIR, L_POST = 0, 4, 8, 12, 16, 32

S_WAVE, S_NONCE = 26, 27
SWS, SA, SB, SC = 28, 32, 36, 40
S_XCD, S_LOC, S_FBT, S_SPIN = 3, 69, 67, 68
V_L16, V_MISC, V_ONE = 1, 2, 3
MF = "v_mfma_f32_32x32x16_bf16"

class Opt:
    instr = False
    report = None
    acc = 0
    rt = 0
    ppdelay = 20
    fprio = 2
    mprio = 0
    aprio = 5
    psleep = 2
    stag1 = 0
    stag2 = 1
    pdelay = 20
    dper = 1
    upause = 0
    ost = 0
    pf31 = 1
    upat = 10
    pf0 = 2
    rot = 0
    stagD = 1
    nfirst = 10
    tprof = 0
    tsleep = 4
    pfup = 5
    stagU = 1
    fpace = 0
    la = 3
    udelay = 0
    xat = 1
    ctouch = 1
    tdelay = 0
o = Opt

def srd(a, d, lo, hi, nbytes):
    a(f"s_mov_b32 s{d}, s{lo}")
    a(f"s_and_b32 s{d+1}, s{hi}, 0xffff")
    a(f"s_mov_b32 s{d+2}, {nbytes}")
    a(f"s_mov_b32 s{d+3}, 0x20000")

def finish(a, st):
    if st.en: a("s_waitcnt vmcnt(0)")
    st.stamp(6); st.real(7); st.flush(SWS, S_WAVE, 4)
    a("s_endpgm")

def post(a, s_off):
    a("s_waitcnt vmcnt(0)")
    a("s_mov_b64 exec, 1")
    a(f"buffer_atomic_add v{V_ONE}, off, s[{SWS}:{SWS+3}], s{s_off} sc1")
    a("s_mov_b64 exec, -1")

def poll(a, tag, vt, voff, s_off, target, sleep, first_issued=False):
    def ld():
        if voff is None: a(f"buffer_load_dword v{vt}, off, s[{SWS}:{SWS+3}], s{s_off} sc1")
        else: a(f"buffer_load_dword v{vt}, v{voff}, s[{SWS}:{SWS+3}], s{s_off} offen sc1")
    a(f"s_mov_b32 s{S_SPIN}, 0")
    if not first_issued: ld()
    a.label(f"L_{tag}_poll")
    a(f"s_add_u32 s{S_SPIN}, s{S_SPIN}, 1")
    a("s_waitcnt vmcnt(0)")
    a(f"v_cmp_gt_u32 vcc, {target}, v{vt}")
    a(f"s_cmp_gt_u32 s{S_SPIN}, 200000")
    a(f"s_cbranch_scc1 L_{tag}_got")
    a(f"s_cbranch_vccz L_{tag}_got")
    if sleep: a(f"s_sleep {sleep}")
    ld()
    a(f"s_branch L_{tag}_poll")
    a.label(f"L_{tag}_got")

def lds_wait_ge(a, tag, vaddr, off, target, vt, sleep=1):
    a(f"s_mov_b32 s{S_SPIN}, 0")
    a.label(f"L_{tag}_spin")
    a(f"ds_read_b32 v{vt}, v{vaddr} offset:{off}")
    a(f"s_add_u32 s{S_SPIN}, s{S_SPIN}, 1")
    a("s_waitcnt lgkmcnt(0)")
    a(f"v_cmp_gt_u32 vcc, {target}, v{vt}")
    a(f"s_cmp_gt_u32 s{S_SPIN}, 2000000")
    a(f"s_cbranch_scc1 L_{tag}_ok")
    a(f"s_cbranch_vccz L_{tag}_ok")
    if sleep: a(f"s_sleep {sleep}")
    a(f"s_branch L_{tag}_spin")
    a.label(f"L_{tag}_ok")

def lds_arrive(a, vaddr, off):
    a("s_mov_b64 exec, 1")
    a(f"ds_add_u32 v{vaddr}, v{V_ONE} offset:{off}")
    a("s_mov_b64 exec, -1")

def tile_ids(a, s_rb, s_lc):
    a(f"s_and_b32 s44, s{S_XCD}, 3")
    a("s_lshl_b32 s44, s44, 2")
    a(f"s_and_b32 s45, s{S_LOC}, 3")
    a(f"s_add_u32 s{s_rb}, s44, s45")
    a(f"s_lshr_b32 s{s_lc}, s{S_LOC}, 2")

def ids_up(a, s_rb, s_cg, s_u0):
    a(f"s_and_b32 s44, s{S_XCD}, 2")
    a("s_lshl_b32 s44, s44, 2")
    a(f"s_and_b32 s45, s{S_LOC}, 7")
    a(f"s_add_u32 s{s_rb}, s44, s45")
    a(f"s_and_b32 s44, s{S_XCD}, 1")
    a("s_lshl_b32 s44, s44, 2")
    a(f"s_and_b32 s45, s{S_XCD}, 4")
    a("s_lshl_b32 s45, s45, 1")
    a("s_add_u32 s44, s44, s45")
    a(f"s_lshr_b32 s45, s{S_LOC}, 3")
    a(f"s_add_u32 s{s_cg}, s44, s45")
    a(f"s_mul_i32 s44, s{s_cg}, 5")
    a(f"s_min_u32 s45, s{s_cg}, 6")
    a(f"s_add_u32 s{s_u0}, s44, s45")

def stagger(a, mode=None):
    pass
    if mode == 1:
        a(f"s_lshr_b32 s44, s{S_LOC}, 3")
        a("s_lshl_b32 s44, s44, 1")
        a(f"s_add_u32 s44, s44, s{S_LOC}")
        a("s_and_b32 s44, s44, 7")
    elif mode == 2:
        a(f"s_lshr_b32 s44, s{S_LOC}, 3")
        a(f"s_add_u32 s44, s44, s{S_LOC}")
        a("s_and_b32 s44, s44, 3")
        a("s_lshl_b32 s44, s44, 1")
    elif mode == 3:
        a(f"s_lshr_b32 s44, s{S_LOC}, 3")
        a(f"s_add_u32 s44, s44, s{S_LOC}")
        a("s_and_b32 s44, s44, 1")
        a("s_lshl_b32 s44, s44, 2")
    else:
        a("s_mov_b32 s44, 0")

def up_dma_setup(a, t0, vx, vw, s_fw, s_rb, s_cg, s_u0, s_lx, s_lw, s_xoff, s_woff):
    a(f"v_lshrrev_b32 v{t0}, 3, v0")
    a(f"v_and_b32 v{t0+1}, 7, v0")
    a(f"v_lshrrev_b32 v{t0+2}, 1, v{t0}")
    ids_up(a, s_rb, s_cg, s_u0)
    a(f"s_and_b32 s46, s{s_fw}, 1")
    a("s_lshl_b32 s45, s46, 2")
    a(f"v_or_b32 v{t0+2}, s45, v{t0+2}")
    a(f"v_xor_b32 v{t0+1}, v{t0+1}, v{t0+2}")
    a(f"v_lshlrev_b32 v{t0+1}, 4, v{t0+1}")
    a(f"s_lshl_b32 s44, s{s_rb}, 7")
    a(f"s_lshl_b32 s45, s{s_fw}, 3")
    a("s_add_u32 s44, s44, s45")
    a(f"v_add_u32 v{t0}, s44, v{t0}")
    a(f"v_lshl_add_u32 v{vx}, v{t0}, 10, v{t0+1}")
    a("s_movk_i32 s44, 5462")
    a("s_movk_i32 s47, 2752")
    a("s_lshl_b32 s45, s46, 5")
    for j in range(3):
        a(f"v_add_u32 v{t0}, {64*j}, v0")
        a(f"v_mul_u32_u24 v{t0+1}, s44, v{t0}")
        a(f"v_lshrrev_b32 v{t0+1}, 16, v{t0+1}")
        a(f"v_mul_u32_u24 v{t0+2}, 12, v{t0+1}")
        a(f"v_sub_u32 v{t0+2}, v{t0}, v{t0+2}")
        a(f"v_lshlrev_b32 v{t0+2}, 4, v{t0+2}")
        a(f"v_add_u32 v{t0+1}, s45, v{t0+1}")
        a(f"v_mad_u32_u24 v{vw[j]}, v{t0+1}, s47, v{t0+2}")
    a(f"s_lshl_b32 s{s_lx}, s{s_fw}, 10")
    a(f"s_add_u32 s{s_lx}, s{s_lx}, {UX[0]}")
    a("s_mul_i32 s45, s46, 6144")
    a(f"s_lshr_b32 s46, s{s_fw}, 1")
    a(f"s_mul_i32 s47, s46, {WIMG}")
    a("s_add_u32 s45, s45, s47")
    a(f"s_add_u32 s{s_lw}, s45, {UW[0]}")
    stagger(a, o.stagU)
    a(f"s_lshl_b32 s{s_xoff}, s44, 7")
    a(f"s_mul_i32 s{s_woff}, s44, {64*2752}")

def up_srd(a, s_fw, s_u0):
    srd(a, SA, 4, 5, 2048*1024)
    a(f"s_cmp_lt_u32 s{s_fw}, 2")
    a("s_cselect_b32 s46, s12, s14")
    a("s_cselect_b32 s47, s13, s15")
    a(f"s_lshl_b32 s44, s{s_u0}, 5")
    srd_off(a, SB, 46, 47, 44, 512*2752)

def up_dma_groups(vx, vw, s_lx, s_lw, s_xoff, s_woff):
    g = []
    for j in range(4):
        if j == 0: pre = [f"s_mov_b32 m0, s{s_lx}", f"s_mov_b32 s46, s{s_xoff}"]
        else: pre = ["s_add_u32 m0, m0, 4096", "s_add_u32 s46, s46, 32768"]
        g.append(pre + [f"buffer_load_dwordx4 v{vx}, s[{SA}:{SA+3}], s46 offen lds"])
    for j in range(6):
        if j == 0: pre = [f"s_mov_b32 m0, s{s_lw}", f"s_add_u32 s46, s{s_woff}, {16*2752}"]
        else: pre = ["s_add_u32 m0, m0, 1024", "s_nop 0"]
        so = s_woff if j < 3 else 46
        g.append(pre + [f"buffer_load_dwordx4 v{vw[j%3]}, s[{SB}:{SB+3}], s{so} offen lds"])
    return g

def srd_off(a, d, lo, hi, s_off, total):
    a(f"s_add_u32 s{d}, s{lo}, s{s_off}")
    a(f"s_addc_u32 s{d+1}, s{hi}, 0")
    a(f"s_and_b32 s{d+1}, s{d+1}, 0xffff")
    a(f"s_sub_u32 s{d+2}, {total}, s{s_off}")
    a(f"s_mov_b32 s{d+3}, 0x20000")

def dma_lanes(a, vr8, vc8, vx0, vx1, t, s_rb, s_w):
    a(f"v_lshrrev_b32 v{vr8}, 3, v0")
    a(f"v_and_b32 v{t}, 7, v0")
    a(f"v_lshrrev_b32 v{t+1}, 1, v{vr8}")
    a(f"v_xor_b32 v{t+2}, v{t}, v{t+1}")
    a(f"v_lshlrev_b32 v{t+2}, 4, v{t+2}")
    a(f"s_lshl_b32 s44, s{s_rb}, 7")
    a(f"s_lshl_b32 s45, s{s_w}, 5")
    a("s_add_u32 s44, s44, s45")
    a(f"v_add_u32 v{vx0}, s44, v{vr8}")
    a(f"v_lshl_add_u32 v{vx0}, v{vx0}, 10, v{t+2}")
    a(f"v_xor_b32 v{vx1}, 64, v{vx0}")
    a(f"v_add_u32 v{vx1}, 8192, v{vx1}")
    a(f"v_lshlrev_b32 v{t+1}, 2, v{t+1}")
    a(f"v_and_b32 v{t+1}, 4, v{t+1}")
    a(f"v_xor_b32 v{t}, v{t}, v{t+1}")
    a(f"v_lshlrev_b32 v{vc8}, 4, v{t}")

def dma_lds(a, s_lx, s_lw, s_w):
    a(f"s_lshl_b32 s{s_lx}, s{s_w}, 12")
    a(f"s_lshr_b32 s46, s{s_w}, 1")
    a(f"s_and_b32 s47, s{s_w}, 1")
    a(f"s_mul_i32 s44, s46, {TU-TG}")
    a("s_lshl_b32 s45, s47, 12")
    a("s_add_u32 s44, s44, s45")
    a(f"s_add_u32 s{s_lw}, s44, {TG}")

def start_stage(a, mode, s_lc, s_w, s_xoff, s_woff, pitch):
    if mode == 1:
        a(f"s_lshl_b32 s44, s{S_LOC}, 1")
        a(f"s_add_u32 s44, s44, s{s_lc}")
        a("s_and_b32 s44, s44, 7")
    elif mode == 2:
        a(f"s_lshl_b32 s44, s{S_LOC}, 1")
        a("s_and_b32 s44, s44, 7")
    else:
        a("s_mov_b32 s44, 0")
    a(f"s_lshl_b32 s{s_xoff}, s44, 7")
    a("s_lshl_b32 s44, s44, 1")
    a(f"s_and_b32 s45, s{s_w}, 1")
    a("s_add_u32 s44, s44, s45")
    a("s_lshl_b32 s44, s44, 5")
    a(f"s_mul_i32 s{s_woff}, s44, {pitch}")

def ffn_srd(a, s_w, s_u):
    a(f"s_cmp_lt_u32 s{s_w}, 2")
    a("s_cselect_b32 s46, s12, s14")
    a("s_cselect_b32 s47, s13, s15")
    a(f"s_lshl_b32 s44, s{s_u}, 5")
    a(f"s_add_u32 s{SB}, s46, s44")
    a(f"s_addc_u32 s{SB+1}, s47, 0")
    a(f"s_and_b32 s{SB+1}, s{SB+1}, 0xffff")
    a(f"s_sub_u32 s{SB+2}, {512*2752}, s44")
    a(f"s_mov_b32 s{SB+3}, 0x20000")

class LQ:
    def __init__(self): self.q = []
    def push(self, tag): self.q.append(tag)
    def need(self, tag):
        if tag not in self.q: return None
        i = len(self.q) - 1 - self.q[::-1].index(tag)
        n = len(self.q) - 1 - i
        self.q = self.q[i+1:]
        return n

def a_waves(a, st):
    R = Regs(4)
    vt = R.alloc(); vt2 = R.alloc(); vt3 = R.alloc(); vt4 = R.alloc()
    kaddr = R.alloc(); vaddr = R.alloc(); vcnt = R.alloc(); vstep = R.alloc(); vmask = R.alloc()
    vx0 = R.alloc(); vx1 = R.alloc(); vw = R.alloc()
    GG = R.alloc(4)
    vr8, vc8, vxu = GG, GG+1, GG+2
    Q = [R.alloc(4), R.alloc(4)]; KR = R.alloc(4); V0 = R.alloc(4); V1 = R.alloc(4)
    P = R.alloc(8); S = [R.alloc(16), R.alloc(16)]
    O = [R.alloc(16), R.alloc(16)]; C = [R.alloc(16), R.alloc(16)]
    s_head, s_T, s_c, s_kg, s_vg, s_ld, s_tgt = 48, 49, 50, 51, 52, 53, 54
    s_q0, s_q1, s_slot, s_step, s_tok = 55, 56, 57, 58, 59
    a(f"s_cmp_ge_u32 s{S_WAVE}, 4")
    a("s_cbranch_scc1 L_help0")
    s_rb, s_lc, s_um, s_ue = 48, 49, 50, 51
    s_xoff, s_woff, s_lslot, s_cnt, s_lx, s_lw, s_pitch, s_xslot, s_xu, s_lxu = 52, 53, 54, 55, 56, 57, 58, 59, 60, 61
    JUNK = S[0]
    a(f"s_cmp_ge_u32 s{S_LOC}, 24")
    a("s_cbranch_scc1 L_pf")
    tile_ids(a, s_rb, s_lc)
    dma_lanes(a, vr8, vc8, vx0, vx1, vt2, s_rb, S_WAVE)
    dma_lds(a, s_lx, s_lw, S_WAVE)
    a(f"s_mov_b32 s{s_lslot}, {TS0+TSTR}")
    a(f"s_mov_b32 s{s_cnt}, 0")
    start_stage(a, o.stag1, s_lc, S_WAVE, s_xoff, s_woff, 3072)
    if o.rot:
        a(f"s_mov_b32 s63, s{s_woff}")
        a(f"s_add_u32 s62, s{S_LOC}, s{s_lc}")
        a(f"s_and_b32 s62, s62, {o.rot}")
        a(f"s_lshl_b32 s{s_xoff}, s62, 7")
        a(f"s_mul_i32 s44, s62, {64*3072}")
        a(f"s_add_u32 s{s_woff}, s44, s63")
    a(f"v_mul_u32_u24 v{vw}, 3072, v{vr8}")
    a(f"s_lshr_b32 s44, s{S_XCD}, 2")
    a("s_mul_i32 s44, s44, 6")
    a(f"s_add_u32 s44, s44, s{s_lc}")
    a("s_lshl_b32 s44, s44, 1")
    a("s_add_u32 s44, s44, s46")
    a("s_lshl_b32 s44, s44, 7")
    a(f"v_add3_u32 v{vw}, v{vw}, v{vc8}, s44")
    a("s_waitcnt lgkmcnt(0)")
    srd(a, SA, 4, 5, 2048*1024)
    srd(a, SB, 6, 7, 512*3072)
    a.label("L_ld0")
    a(f"s_add_u32 m0, s{s_lslot}, s{s_lx}")
    a(f"s_add_u32 s44, s{s_xoff}, 16384")
    for j in range(4):
        a(f"buffer_load_dwordx4 v{vx1 if j & 1 else vx0}, s[{SA}:{SA+3}], s{s_xoff if j < 2 else 44} offen lds")
        if j < 3: a("s_add_u32 m0, m0, 1024")
        else: a(f"s_add_u32 m0, s{s_lslot}, s{s_lw}")
        a([f"s_add_u32 s{s_cnt}, s{s_cnt}, 1", f"s_mov_b32 s45, s{s_woff}", f"s_add_u32 s{s_xoff}, s{s_xoff}, 128", "s_nop 0"][j])
    for j in range(4):
        a(f"buffer_load_dwordx4 v{vw}, s[{SB}:{SB+3}], s45 offen lds")
        if j < 3:
            a("s_add_u32 m0, m0, 1024")
            a(f"s_add_u32 s45, s45, {8*3072}")
    if o.rot:
        a(f"s_xor_b32 s44, s{s_cnt}, s62")
        a(f"s_cmp_lt_u32 s{s_cnt}, {o.rot+1}")
        a(f"s_cselect_b32 s44, s44, s{s_cnt}")
        a(f"s_lshl_b32 s{s_xoff}, s44, 7")
        a(f"s_mul_i32 s44, s44, {64*3072}")
        a(f"s_add_u32 s{s_woff}, s44, s63")
    else:
        a(f"s_add_u32 s{s_woff}, s{s_woff}, {64*3072}")
        a(f"s_and_b32 s{s_xoff}, s{s_xoff}, 1023")
        a(f"s_cselect_b32 s46, 0, {512*3072}")
        a(f"s_sub_u32 s{s_woff}, s{s_woff}, s46")
    a(f"s_add_u32 s{s_lslot}, s{s_lslot}, {TSTR}")
    a(f"s_cmp_eq_u32 s{s_lslot}, {TS0+3*TSTR}")
    a(f"s_cselect_b32 s{s_lslot}, {TS0}, s{s_lslot}")
    a(f"s_cmp_lt_u32 s{s_cnt}, 2")
    a("s_cbranch_scc1 L_ld0")
    a(f"s_cmp_eq_u32 s{s_cnt}, 8")
    a("s_cbranch_scc1 L_ld_end")
    a("s_waitcnt vmcnt(8)")
    a("s_barrier")
    a("s_branch L_ld0")
    a.label("L_pf")
    a(f"v_lshrrev_b32 v{vt}, 3, v0")
    a(f"v_and_b32 v{vt2}, 7, v0")
    a(f"v_lshlrev_b32 v{vt2}, 4, v{vt2}")
    a(f"v_lshl_add_u32 v{vx0}, v{vt}, 10, v{vt2}")
    a(f"v_mov_b32 v{vt3}, 1024")
    a(f"v_mov_b32 v{vt4}, 2560")
    a("v_cmp_gt_u32 vcc, 32, v0")
    a(f"s_sub_u32 s46, s{S_LOC}, 24")
    a("s_lshl_b32 s46, s46, 2")
    a(f"s_add_u32 s46, s46, s{S_WAVE}")
    a(f"v_cndmask_b32 v{vt3}, v{vt4}, v{vt3}, vcc")
    a(f"v_add_u32 v{vx1}, v{vt3}, v{V_L16}")
    a(f"s_and_b32 s44, s{S_XCD}, 3")
    a("s_lshl_b32 s44, s44, 5")
    a("s_add_u32 s44, s44, s46")
    a(f"s_lshl_b32 s{s_xoff}, s44, 14")
    a(f"s_add_u32 s{s_xoff}, s{s_xoff}, {128*o.pf0}")
    a(f"s_lshr_b32 s44, s{S_XCD}, 2")
    a("s_mul_i32 s44, s44, 1536")
    a(f"s_mul_i32 s{s_woff}, s46, {2*3072}")
    a(f"s_add_u32 s{s_woff}, s{s_woff}, s44")
    a(f"s_add_u32 s{s_woff}, s{s_woff}, {64*3072*o.pf0}")
    a(f"s_mov_b32 s{s_cnt}, {o.pf0}")
    a("s_waitcnt lgkmcnt(0)")
    srd(a, SA, 4, 5, 2048*1024)
    srd(a, SB, 6, 7, 512*3072)
    a(f"s_cmp_eq_u32 s{S_LOC}, 31")
    a("s_cbranch_scc0 L_pf1")
    a("s_sleep 4")
    a.label("L_pf1")
    a(f"s_add_u32 s44, s{s_xoff}, 8192")
    a(f"buffer_load_dwordx4 {v(JUNK,4)}, v{vx0}, s[{SA}:{SA+3}], s{s_xoff} offen")
    a(f"buffer_load_dwordx4 {v(JUNK,4)}, v{vx0}, s[{SA}:{SA+3}], s44 offen")
    a(f"buffer_load_dwordx4 {v(JUNK,4)}, v{V_L16}, s[{SB}:{SB+3}], s{s_woff} offen")
    a(f"buffer_load_dwordx4 {v(JUNK,4)}, v{vx1}, s[{SB}:{SB+3}], s{s_woff} offen")
    a(f"buffer_load_dwordx4 {v(JUNK,4)}, v{V_L16}, s[{SB}:{SB+3}], s{s_woff} offen offset:3584")
    a(f"s_add_u32 s{s_xoff}, s{s_xoff}, 128")
    a(f"s_add_u32 s{s_woff}, s{s_woff}, {64*3072}")
    a(f"s_add_u32 s{s_cnt}, s{s_cnt}, 1")
    a(f"s_cmp_lt_u32 s{s_cnt}, 8")
    a("s_cbranch_scc1 L_pf1")
    if o.pfup:
        if not o.pf31:
            a(f"s_cmp_eq_u32 s{S_LOC}, 31")
            a("s_cbranch_scc1 L_pf3")
        srd(a, SB, 12, 13, 512*2752)
        srd(a, SC, 14, 15, 512*2752)
        a(f"s_and_b32 s44, s{S_XCD}, 1")
        a(f"s_lshr_b32 s45, s{S_XCD}, 2")
        a("s_lshl_b32 s45, s45, 1")
        a("s_add_u32 s44, s44, s45")
        a("s_lshl_b32 s44, s44, 2")
        a("s_mul_i32 s45, s44, 5")
        a("s_min_u32 s44, s44, 6")
        a("s_add_u32 s44, s44, s45")
        a("s_lshl_b32 s44, s44, 5")
        a(f"s_mul_i32 s{s_woff}, s46, 2752")
        a(f"s_add_u32 s{s_woff}, s{s_woff}, s44")
        a(f"s_and_b32 s44, s{S_XCD}, 3")
        a("s_xor_b32 s44, s44, 1")
        a("s_lshl_b32 s44, s44, 5")
        a("s_add_u32 s44, s44, s46")
        a(f"s_lshl_b32 s{s_xoff}, s44, 14")
        a(f"s_mov_b32 s{s_cnt}, 0")
        a.label("L_pf2")
        a("s_mov_b32 exec_hi, 0x3ffff")
        a(f"buffer_load_dwordx4 {v(JUNK,4)}, v{V_L16}, s[{SB}:{SB+3}], s{s_woff} offen")
        a(f"buffer_load_dwordx4 {v(JUNK,4)}, v{V_L16}, s[{SC}:{SC+3}], s{s_woff} offen")
        a("s_mov_b32 exec_hi, -1")
        a(f"buffer_load_dwordx4 {v(JUNK,4)}, v{vx0}, s[{SA}:{SA+3}], s{s_xoff} offen")
        a(f"s_add_u32 s{s_woff}, s{s_woff}, {32*2752}")
        a(f"s_add_u32 s{s_cnt}, s{s_cnt}, 1")
        a(f"s_bitcmp1_b32 s{s_cnt}, 0")
        a(f"s_mov_b32 s44, {(128-8192) & 0xffffffff}")
        a("s_cselect_b32 s44, 8192, s44")
        a(f"s_add_u32 s{s_xoff}, s{s_xoff}, s44")
        a(f"s_cmp_lt_u32 s{s_cnt}, {o.pfup}")
        a("s_cbranch_scc1 L_pf2")
    a.label("L_pf3")
    for i in range(6): a("s_barrier")
    a.label("L_ld_end")
    srd(a, SWS, 24, 25, WS_BYTES)
    a("s_waitcnt vmcnt(8)")
    a("s_barrier")
    a("s_waitcnt vmcnt(0)")
    a("s_branch L_b7")

    a.label("L_help0")
    GT = S[0]
    a(f"v_lshl_add_u32 v{vt2}, v0, 2, v{V_MISC}")
    a(f"v_mov_b32 v{vt}, 0")
    a(f"ds_write_b32 v{vt2}, v{vt}")
    a("s_lshl_b32 s46, s2, 3")
    a(f"s_lshl_b32 s45, s{S_WAVE}, 1")
    a("s_add_u32 s46, s46, s45")
    a(f"s_sub_u32 s{s_tok}, s46, 8")
    a(f"s_lshl_b32 s44, s{s_tok}, 10")
    a("s_waitcnt lgkmcnt(0)")
    srd(a, SA, 4, 5, 2048*1024)
    srd(a, SB, 18, 19, 1024)
    srd(a, SWS, 24, 25, WS_BYTES)
    srd(a, SC, 22, 23, 256)
    a(f"s_cmp_eq_u32 s{S_WAVE}, 4")
    a("s_cbranch_scc0 L_help2")
    a(f"s_cmp_eq_u32 s{S_LOC}, 31")
    a("s_cbranch_scc0 L_help2")
    a("s_setprio 3")
    a(f"s_add_u32 s46, s24, {W0}")
    a("s_addc_u32 s47, s25, 0")
    a("s_load_dword s45, s[46:47], 0 glc")
    for i in range(4): a(f"v_mov_b32 v{GT+i}, 0")
    a(f"s_lshl_b32 s46, s{S_XCD}, 12")
    a(f"s_add_u32 s46, s46, {CNT}")
    for i in range(4):
        a(f"buffer_store_dwordx4 {v(GT,4)}, v{V_L16}, s[{SWS}:{SWS+3}], s46 offen offset:{i*1024} sc1")
    a("s_waitcnt lgkmcnt(0)")
    a("s_mul_i32 s45, s45, 0x19660d")
    a("s_add_u32 s45, s45, 0x3c6ef35f")
    a("s_max_u32 s45, s45, 1")
    a(f"v_mov_b32 v{vt3}, s45")
    a(f"s_lshl_b32 s46, s{S_XCD}, 2")
    a("s_waitcnt vmcnt(0)")
    a("s_mov_b64 exec, 1")
    a(f"buffer_store_dword v{vt3}, off, s[{SC}:{SC+3}], s46 sc1")
    a("s_mov_b64 exec, -1")
    a("s_setprio 0")
    st.stamp(11)
    a.label("L_help2")
    a(f"buffer_load_dwordx4 {v(GT,4)}, v{V_L16}, s[{SB}:{SB+3}], 0 offen")
    a(f"buffer_load_dwordx4 {v(GT+4,4)}, v{V_L16}, s[{SA}:{SA+3}], s44 offen")
    a(f"buffer_load_dwordx4 {v(GT+8,4)}, v{V_L16}, s[{SA}:{SA+3}], s44 offen offset:1024")
    a.label("L_help3")
    if o.ctouch:
        a(f"s_cmp_eq_u32 s{S_WAVE}, 5")
        a("s_cbranch_scc0 L_help4")
        a("s_getpc_b64 s[46:47]")
        a.label("L_pc")
        a(f"s_sub_u32 s46, s46, L_pc-{KN}")
        a("s_subb_u32 s47, s47, 0")
        a(f"s_lshl_b32 s44, s{S_LOC}, 9")
        a(f"s_min_u32 s44, s44, L_code_end-{KN}-512")
        a("s_add_u32 s46, s46, s44")
        a("s_addc_u32 s47, s47, 0")
        for i in range(8):
            a(f"s_load_dword s44, s[46:47], {64*i}")
        a("s_waitcnt lgkmcnt(0)")
    a.label("L_help4")
    a("s_barrier")
    st.stamp(2)
    a("s_barrier")
    a("s_waitcnt vmcnt(0)")
    for r in range(2):
        a(f"v_mov_b32 v{vt3+r}, 0")
    for i in range(4):
        for r in range(2):
            a(f"v_dot2c_f32_bf16 v{vt3+r}, v{GT+4+4*r+i}, v{GT+i}")
    a("s_nop 2")
    for dpp in ["row_shr:1", "row_shr:2", "row_shr:4", "row_shr:8", "row_bcast:15 row_mask:0xa", "row_bcast:31 row_mask:0xc"]:
        a("s_nop 0")
        for r in range(2):
            a(f"v_add_f32_dpp v{vt3+r}, v{vt3+r}, v{vt3+r} {dpp}")
    a("s_barrier")
    for r in range(2): a(f"v_mul_f32 v{vt3+r}, {f32bits(-LOG2E)}, v{vt3+r}")
    for r in range(2): a(f"v_exp_f32 v{vt3+r}, v{vt3+r}")
    a("s_nop 0")
    for r in range(2): a(f"v_add_f32 v{vt3+r}, 1.0, v{vt3+r}")
    for r in range(2): a(f"v_rcp_f32 v{GG+2*r}, v{vt3+r}")
    a(f"v_and_b32 v{vt2}, 7, v0")
    a(f"v_lshlrev_b32 v{vt2}, 2, v{vt2}")
    a("s_barrier")
    a("s_barrier")
    a(f"s_cmp_eq_u32 s{S_WAVE}, 4")
    a("s_cbranch_scc0 L_help5")
    a(f"buffer_load_dword v{vt}, v{vt2}, s[{SC}:{SC+3}], 0 offen sc1")
    a.label("L_help5")
    a("s_barrier")
    a("s_barrier")
    a("s_barrier")
    a(f"s_cmp_eq_u32 s{S_WAVE}, 4")
    a("s_cbranch_scc0 L_b7x")
    a(f"s_mov_b32 s{S_SPIN}, 0")
    a.label("L_np")
    a("s_waitcnt vmcnt(0)")
    a(f"v_cmp_eq_u32 vcc, 0, v{vt}")
    a(f"s_cmp_gt_u32 s{S_SPIN}, 200000")
    a("s_cbranch_scc1 L_ng")
    a("s_cbranch_vccz L_ng")
    a(f"s_add_u32 s{S_SPIN}, s{S_SPIN}, 1")
    a("s_sleep 4")
    a(f"buffer_load_dword v{vt}, v{vt2}, s[{SC}:{SC+3}], 0 offen sc1")
    a("s_branch L_np")
    a.label("L_ng")
    a("s_mov_b64 exec, 1")
    a(f"ds_write_b32 v{V_MISC}, v{vt} offset:{L_NONCE}")
    a("s_cmp_eq_u32 s2, 255")
    a("s_cbranch_scc0 L_nw")
    a(f"s_mov_b32 s44, {W0}")
    a(f"buffer_store_dword v{vt}, off, s[{SWS}:{SWS+3}], s44 sc1")
    a.label("L_nw")
    a("s_mov_b64 exec, -1")
    a("s_branch L_b7x")
    a.label("L_b7")
    a("s_barrier")
    a.label("L_b7x")
    a("s_sleep 8")
    st.stamp(3)
    a(f"s_lshl_b32 s44, s{S_XCD}, 2")
    a(f"s_and_b32 s45, s{S_LOC}, 3")
    a(f"s_add_u32 s{s_head}, s44, s45")
    a(f"s_lshr_b32 s44, s{S_LOC}, 2")
    a("s_lshl_b32 s44, s44, 3")
    a(f"s_and_b32 s45, s{S_WAVE}, 3")
    a("s_lshl_b32 s45, s45, 1")
    a("s_add_u32 s44, s44, s45")
    a(f"s_lshr_b32 s46, s{S_WAVE}, 2")
    a(f"s_add_u32 s{s_T}, s44, s46")
    a(f"s_lshl_b32 s44, s{s_head}, 16")
    a(f"s_lshl_b32 s{s_ld}, s{S_WAVE}, 10")
    a(f"s_add_u32 s{s_kg}, s44, s{s_ld}")
    a(f"s_add_u32 s{s_vg}, s{s_kg}, {VF}")
    a(f"s_add_u32 s{s_kg}, s{s_kg}, {KF}")
    a(f"s_lshl_b32 s45, s{s_T}, 10")
    a(f"s_add_u32 s{s_q0}, s44, s45")
    a(f"s_xor_b32 s{s_q1}, s{s_q0}, 1024")
    a("s_lshl_b32 s46, s46, 12")
    a(f"v_add_u32 v{kaddr}, s46, v{V_L16}")
    a(f"v_and_b32 v{vt3}, 15, v0")
    a(f"v_lshlrev_b32 v{vt3}, 4, v{vt3}")
    a(f"v_lshrrev_b32 v{vt4}, 5, v0")
    a(f"v_lshl_add_u32 v{vt4}, v{vt4}, 8, v{vt3}")
    a("s_add_u32 s46, s46, 8192")
    a(f"v_add_u32 v{vaddr}, s46, v{vt4}")
    a(f"v_and_b32 v{vt4}, 16, v0")
    a(f"v_cmp_ne_u32 vcc, 0, v{vt4}")
    a(f"v_add_u32 v{vt3}, {VCONST}, v{vt3}")
    a(f"v_mov_b32 v{vstep}, 16384")
    a(f"v_mov_b32 v{vmask}, 0xffff")
    a(f"v_cndmask_b32 v{vaddr}, v{vaddr}, v{vt3}, vcc")
    a(f"v_cndmask_b32 v{vstep}, v{vstep}, 0, vcc")
    a(f"v_cndmask_b32 v{vmask}, v{vmask}, -1, vcc")
    a(f"s_lshl_b32 s44, s{S_WAVE}, 9")
    a(f"v_add_u32 v{vcnt}, s44, v{vt3}")
    a(f"v_and_b32 v{vt4}, 27, v0")
    a(f"v_cmp_eq_u32 vcc, 16, v{vt4}")
    a(f"v_mov_b32 v{vt3}, 0x3f803f80")
    a(f"s_mov_b32 s{s_c}, 0")
    a(f"s_mov_b32 s{s_tgt}, 16")
    for i in range(4):
        a(f"v_cndmask_b32 v{V1+i}, 0, v{vt3}, vcc")
    a("s_mov_b32 exec_lo, 0xffff0000")
    a("s_mov_b32 exec_hi, 0")
    a(f"ds_write_b128 v{vcnt}, {v(V1,4)}")
    a("s_mov_b64 exec, -1")
    a(f"v_mov_b32 v{P}, 0")
    a(f"v_mov_b32 v{P+1}, 0")
    for i in range(1, 4): a(f"v_pk_mov_b32 {v(P+2*i,2)}, {v(P,2)}, {v(P,2)}")
    for i in range(16): a(f"v_pk_mov_b32 {v(O[0]+2*i,2)}, {v(P,2)}, {v(P,2)}")
    a(f"s_mov_b32 s{s_slot}, 49152")
    a(f"s_cmp_eq_u32 s{S_WAVE}, 0")
    a("s_cbranch_scc0 L_at_waitgo")
    a(f"s_lshr_b32 s44, s{S_XCD}, 1")
    a("s_lshl_b32 s44, s44, 1")
    a(f"s_bfe_u32 s45, s{S_LOC}, 0x10001")
    a("s_add_u32 s44, s44, s45")
    a("s_lshl_b32 s44, s44, 10")
    a(f"s_add_u32 s44, s44, {CQ}")
    a(f"v_min_u32 v{vw}, 5, v0")
    a(f"v_lshlrev_b32 v{vw}, 7, v{vw}")
    lds_wait_ge(a, "atpost", V_MISC, L_POST, "4", vt)
    if o.pdelay: a(f"s_sleep {o.pdelay}")
    if o.ppdelay:
        a(f"s_sub_u32 s45, s{S_LOC}, 24")
        a("s_cmp_lt_u32 s45, 8")
        a("s_cbranch_scc0 L_at_ppd")
        a(f"s_sleep {o.ppdelay}")
        a.label("L_at_ppd")
    st.stamp(2)
    poll(a, "atq", vt, vw, 44, 16, o.psleep)
    if st.en: a(f"s_mov_b32 s101, s{S_SPIN}")
    a(f"ds_write_b32 v{V_MISC}, v{V_ONE} offset:{L_GO}")
    a("s_branch L_at_go")
    a.label("L_at_waitgo")
    lds_wait_ge(a, "atgo", V_MISC, L_GO, "1", vt)
    a.label("L_at_go")
    st.stamp(4)
    def dma(lit=None):
        if lit is not None: a(f"s_add_u32 m0, s{s_ld}, {lit}")
        else: a(f"s_add_u32 m0, s{s_ld}, s{s_slot}")
        a("s_nop 0")
        a(f"buffer_load_dwordx4 v{V_L16}, s[{SWS}:{SWS+3}], s{s_kg} offen sc1 lds")
        a("s_add_u32 m0, m0, 8192")
        a(f"s_add_u32 s{s_kg}, s{s_kg}, 8192")
        a(f"buffer_load_dwordx4 v{V_L16}, s[{SWS}:{SWS+3}], s{s_vg} offen sc1 lds")
        a(f"s_add_u32 s{s_vg}, s{s_vg}, 8192")
    a(f"buffer_load_dwordx4 {v(Q[0],4)}, v{V_L16}, s[{SWS}:{SWS+3}], s{s_q0} offen sc1")
    a(f"buffer_load_dwordx4 {v(Q[1],4)}, v{V_L16}, s[{SWS}:{SWS+3}], s{s_q1} offen sc1")
    dma(0)
    a(f"ds_read_b32 v{vx1}, v{V_MISC} offset:{L_NONCE}")
    a("s_waitcnt vmcnt(0) lgkmcnt(0)")
    lds_arrive(a, V_MISC, L_ATT)
    dma(16384); dma(32768)
    a(f"s_cmp_ge_u32 s{S_WAVE}, 4")
    a("s_cbranch_scc0 L_at_nogst")
    a(f"v_mov_b32 v{GG+1}, v{vx1}")
    a(f"v_mov_b32 v{GG+3}, v{vx1}")
    a(f"s_lshl_b32 s44, s{s_tok}, 3")
    a(f"s_add_u32 s44, s44, {GA}")
    a("s_mov_b32 exec_lo, 0")
    a("s_brev_b32 exec_hi, 1")
    a(f"buffer_store_dwordx4 {v(GG,4)}, off, s[{SWS}:{SWS+3}], s44 sc1")
    a("s_mov_b64 exec, -1")
    a.label("L_at_nogst")
    lds_wait_ge(a, "at0", V_MISC, L_ATT, "8", vt, sleep=0)
    st.stamp(5)
    a(f"ds_read_b128 {v(V0,4)}, v{V_L16}")
    a(f"ds_read_b128 {v(KR,4)}, v{kaddr}")
    a("s_waitcnt lgkmcnt(1)")
    for q in range(2):
        a(f"{MF} {v(S[q],16)}, {v(V0,4)}, {v(Q[q],4)}, 0")
    a(f"ds_read_b128 {v(V0,4)}, v{vaddr}")
    a("s_nop 9")
    def maxtree(dst, src, first):
        if first:
            a(f"v_max3_f32 v{dst}, v{src}, v{src+1}, v{src+2}")
            rest = list(range(3, 16))
        else:
            rest = list(range(0, 16))
        while len(rest) >= 2:
            a(f"v_max3_f32 v{dst}, v{dst}, v{src+rest[0]}, v{src+rest[1]}")
            rest = rest[2:]
        if rest:
            a(f"v_max_f32 v{dst}, v{dst}, v{src+rest[0]}")
    def setC(q):
        a(f"v_mov_b32 v{vt2}, v{vt}")
        a("s_nop 1")
        a(f"v_permlane32_swap_b32 v{vt}, v{vt2}")
        a("s_nop 1")
        a(f"v_max_f32 v{vt}, v{vt}, v{vt2}")
        a(f"v_sub_f32 v{C[q]}, 0, v{vt}")
        a(f"v_sub_f32 v{C[q]+1}, 0, v{vt}")
        for i in range(1, 8):
            a(f"v_pk_mov_b32 {v(C[q]+2*i,2)}, {v(C[q],2)}, {v(C[q],2)}")
    maxtree(vt, S[0], True)
    setC(0)
    a("s_waitcnt lgkmcnt(0)")
    a("s_nop 0")
    maxtree(vt, S[1], True)
    a(f"{MF} {v(S[0],16)}, {v(KR,4)}, {v(Q[0],4)}, {v(C[0],16)}")
    setC(1)
    for i in range(2):
        a(f"v_mov_b32 v{S[1]+14+i}, 0")
    def e(cur, i): a(f"v_exp_f32 v{cur+i}, v{cur+i}")
    def c(cur, i): a(f"v_cvt_pk_bf16_f32 v{P+i}, v{cur+2*i}, v{cur+2*i+1}")
    def body(emit, lq):
        def A(s):
            if emit: a(s)
        def w(tag):
            n = lq.need(tag)
            if n is not None: A(f"s_waitcnt lgkmcnt({n})")
        def E(cur, i):
            if emit: e(cur, i)
        def Cc(cur, i):
            if emit: c(cur, i)
        def rdv(reg, off, tag):
            A(f"ds_read_b128 {v(reg,4)}, v{vaddr} offset:{off}")
            lq.push(tag)
        for tt in range(4):
            for q in range(2):
                cur = S[q]; nxt = S[q ^ 1]
                stp = 2*tt + q
                if o.aprio >= 3 and stp in (0, o.aprio+1):
                    lab = a.newlabel("pr") if emit else ""
                    A(f"s_cmp_ge_u32 s{S_WAVE}, 4")
                    A(f"s_cbranch_scc1 {lab}")
                    A(f"s_setprio {1 if stp == 0 else 0}")
                    if emit: a.label(lab)
                E(cur, 0); Cc(nxt, 7); E(cur, 1); E(cur, 2)
                if q == 1: w("K")
                A(f"{MF} {v(O[q^1],16)}, {v(V1,4)}, {v(P+4,4)}, {v(O[q^1],16)}")
                if q == 0:
                    rdv(V1, tt*1024 + 512, "V1")
                if stp == o.xat:
                    if emit: st.abeg()
                    A("s_waitcnt vmcnt(2)")
                    if emit: st.aend(0)
                    A("s_mov_b64 exec, 1")
                    A(f"ds_add_u32 v{V_MISC}, v{V_ONE} offset:{L_ATT}")
                    A("s_mov_b64 exec, -1")
                    lq.push("X")
                if tt == 2 and q == 1:
                    A(f"ds_read_b32 v{vcnt}, v{V_MISC} offset:{L_ATT}")
                    lq.push("CNT")
                Cc(cur, 0); E(cur, 3); E(cur, 4); Cc(cur, 1); E(cur, 5); E(cur, 6)
                A(f"{MF} {v(nxt,16)}, {v(KR,4)}, {v(Q[q^1],4)}, {v(C[q^1],16)}")
                if q == 0:
                    if tt == 3:
                        w("V0")
                        A(f"v_cmp_gt_u32 vcc, s{s_tgt}, v{vcnt}")
                        A(f"v_add_u32 v{kaddr}, s{s_step}, v{kaddr}")
                        A("s_cbranch_vccnz L_at_slow")
                        if emit: a.label("L_at_back")
                        A(f"ds_read_b128 {v(KR,4)}, v{kaddr}")
                    else:
                        A(f"ds_read_b128 {v(KR,4)}, v{kaddr} offset:{(tt+1)*1024}")
                    lq.push("K")
                Cc(cur, 2); E(cur, 7); E(cur, 8); Cc(cur, 3); E(cur, 9); E(cur, 10)
                if q == 0: w("V0")
                A(f"{MF} {v(O[q],16)}, {v(V0,4)}, {v(P,4)}, {v(O[q],16)}")
                if q == 1:
                    if tt == 3:
                        A(f"v_add_u32 v{vaddr}, v{vstep}, v{vaddr}")
                        A(f"v_and_b32 v{vaddr}, v{vmask}, v{vaddr}")
                        rdv(V0, 0, "V0")
                    else:
                        rdv(V0, (tt+1)*1024, "V0")
                if tt == 3 and q == 0 and emit:
                    a(f"s_cmp_lt_u32 s{s_c}, 5")
                    a("s_cbranch_scc0 L_at_nodma")
                    st.abeg()
                    dma()
                    st.aend(2)
                    a(f"s_add_u32 s{s_slot}, s{s_slot}, 16384")
                    a(f"s_and_b32 s{s_slot}, s{s_slot}, 0xffff")
                    a.label("L_at_dmadone")
                Cc(cur, 4); E(cur, 11); E(cur, 12); Cc(cur, 5); E(cur, 13); E(cur, 14); Cc(cur, 6); E(cur, 15)
    lq = LQ()
    body(False, lq)
    steady = list(lq.q)
    if o.aprio:
        a(f"s_cmp_lt_u32 s{S_WAVE}, 4")
        a("s_cbranch_scc1 L_at_np")
        a("s_setprio 1")
        a.label("L_at_np")
    st.stamp(8)
    a(".p2align 6")
    a.label("L_at_loop")
    a(f"s_cmp_eq_u32 s{s_c}, 3")
    a(f"s_mov_b32 s44, {(-49152) & 0xffffffff}")
    a(f"s_cselect_b32 s{s_step}, s44, 16384")
    body(True, lq)
    assert lq.q == steady, (lq.q, steady)
    a(f"s_add_u32 s{s_c}, s{s_c}, 1")
    a(f"s_add_u32 s{s_tgt}, s{s_tgt}, 8")
    a(f"s_cmp_lt_u32 s{s_c}, 8")
    a("s_cbranch_scc1 L_at_loop")
    st.stamp(9)
    c(S[1], 7)
    a(f"s_mul_i32 s44, s{S_WAVE}, 3072")
    a(f"s_xor_b32 s45, s{S_WAVE}, 4")
    a(f"{MF} {v(O[1],16)}, {v(V1,4)}, {v(P+4,4)}, {v(O[1],16)}")
    a(f"v_add_u32 v{kaddr}, s44, v{V_L16}")
    a("s_mul_i32 s45, s45, 3072")
    a(f"v_add_u32 v{vaddr}, s45, v{V_L16}")
    a(f"s_and_b32 s44, s{S_WAVE}, 3")
    a(f"v_lshl_add_u32 v{vt3}, s44, 2, v{V_MISC}")
    a(f"s_lshl_b32 s46, s{s_T}, 5")
    a(f"s_add_u32 s46, s46, s{s_head}")
    a("s_lshl_b32 s46, s46, 10")
    a(f"s_add_u32 s{s_q0}, s46, {OF}")
    a(f"s_lshl_b32 s44, s{s_T}, 1")
    a(f"s_lshr_b32 s45, s{s_head}, 4")
    a("s_add_u32 s44, s44, s45")
    a("s_lshl_b32 s44, s44, 7")
    a(f"s_add_u32 s{s_q1}, s44, {CO}")
    for i in range(3):
        a(f"ds_write_b128 v{kaddr}, {v(O[1]+4*i,4)} offset:{16384+i*1024}")
    a("s_waitcnt lgkmcnt(0)")
    lds_arrive(a, vt3, L_PAIR)
    a(f"s_mov_b32 s{S_SPIN}, 0")
    a.label("L_at_pair")
    a(f"ds_read_b32 v{vt}, v{vt3} offset:{L_PAIR}")
    for i in range(3):
        a(f"ds_read_b128 {v(O[1]+4*i,4)}, v{vaddr} offset:{16384+i*1024}")
    a(f"s_add_u32 s{S_SPIN}, s{S_SPIN}, 1")
    a("s_waitcnt lgkmcnt(0)")
    a(f"v_cmp_gt_u32 vcc, 2, v{vt}")
    a(f"s_cmp_gt_u32 s{S_SPIN}, 2000000")
    a("s_cbranch_scc1 L_at_pok")
    a("s_cbranch_vccz L_at_pok")
    a("s_sleep 1")
    a("s_branch L_at_pair")
    a.label("L_at_pok")
    a(f"v_add_f32 v{O[0]+8}, v{O[0]+8}, v{O[1]+8}")
    for i in range(4):
        a(f"v_pk_add_f32 {v(O[0]+2*i,2)}, {v(O[0]+2*i,2)}, {v(O[1]+2*i,2)}")
    a(f"v_mov_b32 v{vt}, {f32bits(2.0**30)}")
    a(f"v_cmp_nle_f32 vcc, v{O[0]+8}, v{vt}")
    a(f"v_pk_mul_f32 {v(S[0],2)}, {v(O[0],2)}, 0")
    for i in range(1, 4):
        a(f"v_pk_fma_f32 {v(S[0],2)}, {v(O[0]+2*i,2)}, 0, {v(S[0],2)}")
    a(f"v_cmp_u_f32 s[44:45], v{S[0]}, v{S[0]+1}")
    a(f"v_rcp_f32 v{vt}, v{O[0]+8}")
    a("s_nop 2")
    a("s_or_b64 vcc, vcc, s[44:45]")
    a("s_cbranch_vccnz L_at_fallback")
    a.label("L_at_fin")
    for i in range(4):
        a(f"v_pk_mul_f32 {v(O[0]+2*i,2)}, {v(O[0]+2*i,2)}, {v(vt,2)} op_sel_hi:[1,0]")
    for i in range(4):
        a(f"v_cvt_pk_bf16_f32 v{P+i}, v{O[0]+2*i}, v{O[0]+2*i+1}")
    a(f"buffer_store_dwordx4 {v(P,4)}, v{V_L16}, s[{SWS}:{SWS+3}], s{s_q0} offen sc1")
    st.stamp(10)
    post(a, s_q1)
    st.stamp(11)
    finish(a, st)
    a.label("L_at_nodma")
    a("s_waitcnt vmcnt(0)")
    a("s_branch L_at_dmadone")
    a.label("L_at_slow")
    st.abeg()
    lds_wait_ge(a, "ats", V_MISC, L_ATT, f"s{s_tgt}", vcnt)
    st.aend(1)
    a("s_branch L_at_back")
    def fallback():
        a.label("L_at_fallback")
        a(f"s_lshl_b32 s46, s{s_head}, 16")
        a(f"s_add_u32 s{s_kg}, s46, {KF}")
        a(f"v_mov_b32 v{vt}, 0xff800000")
        a(f"s_mov_b32 s{s_c}, 0")
        a.label("L_at_fb1")
        a(f"buffer_load_dwordx4 {v(KR,4)}, v{V_L16}, s[{SWS}:{SWS+3}], s{s_kg} offen sc1")
        a(f"s_add_u32 s{s_kg}, s{s_kg}, 1024")
        a("s_waitcnt vmcnt(0)")
        a(f"{MF} {v(S[0],16)}, {v(KR,4)}, {v(Q[0],4)}, 0")
        a("s_nop 15")
        maxtree(vt, S[0], False)
        a(f"s_add_u32 s{s_c}, s{s_c}, 1")
        a(f"s_cmp_lt_u32 s{s_c}, 64")
        a("s_cbranch_scc1 L_at_fb1")
        setC(0)
        for i in range(16):
            a(f"v_mov_b32 v{O[0]+i}, 0")
        a(f"v_and_b32 v{vt}, 15, v0")
        a(f"v_lshlrev_b32 v{vt}, 4, v{vt}")
        a(f"v_lshrrev_b32 v{vt2}, 5, v0")
        a(f"v_lshl_add_u32 v{vaddr}, v{vt2}, 8, v{vt}")
        a(f"s_add_u32 s{s_kg}, s46, {KF}")
        a(f"s_add_u32 s{s_vg}, s46, {VF}")
        a(f"s_mov_b32 s{s_c}, 0")
        a("s_mov_b32 s44, 0xffff")
        a("s_mov_b32 s45, 0xffff")
        a.label("L_at_fb2")
        a(f"buffer_load_dwordx4 {v(KR,4)}, v{V_L16}, s[{SWS}:{SWS+3}], s{s_kg} offen sc1")
        a("s_mov_b64 exec, s[44:45]")
        a(f"buffer_load_dwordx4 {v(V0,4)}, v{vaddr}, s[{SWS}:{SWS+3}], s{s_vg} offen sc1")
        a(f"buffer_load_dwordx4 {v(V1,4)}, v{vaddr}, s[{SWS}:{SWS+3}], s{s_vg} offen offset:512 sc1")
        a("s_mov_b64 exec, -1")
        a(f"s_add_u32 s{s_kg}, s{s_kg}, 1024")
        a(f"s_add_u32 s{s_vg}, s{s_vg}, 1024")
        a("s_waitcnt vmcnt(0)")
        a(f"{MF} {v(S[0],16)}, {v(KR,4)}, {v(Q[0],4)}, {v(C[0],16)}")
        a("s_nop 15")
        for i in range(16): e(S[0], i)
        a("s_nop 0")
        for i in range(8): c(S[0], i)
        a("s_nop 1")
        a(f"{MF} {v(O[0],16)}, {v(V0,4)}, {v(P,4)}, {v(O[0],16)}")
        a(f"{MF} {v(O[0],16)}, {v(V1,4)}, {v(P+4,4)}, {v(O[0],16)}")
        a("s_nop 15")
        a(f"s_add_u32 s{s_c}, s{s_c}, 1")
        a(f"s_cmp_lt_u32 s{s_c}, 64")
        a("s_cbranch_scc1 L_at_fb2")
        a(f"v_rcp_f32 v{vt}, v{O[0]+8}")
        a("s_branch L_at_fin")
    return R.hi, fallback

def fbar(a, vt):
    tag = a.newlabel("fb")[2:]
    a(f"s_add_u32 s{S_FBT}, s{S_FBT}, 4")
    lds_arrive(a, V_MISC, L_FB)
    lds_wait_ge(a, tag, V_MISC, L_FB, f"s{S_FBT}", vt, sleep=2)

def f_waves(a, st):
    t0 = 4
    vx, vw, uxaddr, uwaddr = 8, [9, 10, 11], [16, 17, 18, 19], 12
    vsrc, wa = 14, 15
    s_fw, s_rb, s_lc, s_stage, s_cb, s_T2, s_N2, s_lb = 48, 49, 50, 53, 54, 60, 61, 62
    s_urb, s_cg, s_u0, s_skip, s_dx, s_dw = 51, 52, 55, 56, 57, 58
    s_lx, s_lw, s_xoff, s_woff = 63, 64, 65, 66
    hi = []
    R = Regs(20)
    xaddr = [R.alloc() for _ in range(4)]; waddr = R.alloc()
    XF = [[R.alloc(4) for _ in range(2)] for _ in range(2)]
    WF = [[R.alloc(4) for _ in range(2)] for _ in range(2)]
    ACC = [[R.alloc(16) for _ in range(2)] for _ in range(2)]
    TMP = R.alloc(16)
    hi.append(R.hi)
    a(f"s_sub_u32 s{s_fw}, s{S_WAVE}, 8")
    a(f"s_mov_b32 s{S_FBT}, 0")
    tile_ids(a, s_rb, s_lc)
    a(f"s_lshr_b32 s44, s{S_XCD}, 2")
    a("s_mul_i32 s44, s44, 6")
    a(f"s_add_u32 s{s_cb}, s44, s{s_lc}")
    a(f"s_and_b32 s44, s{s_fw}, 1")
    a(f"s_lshr_b32 s46, s{s_fw}, 1")
    a(f"v_and_b32 v{t0}, 31, v0")
    a(f"v_lshrrev_b32 v{t0+1}, 5, v0")
    a(f"v_bfe_u32 v{t0+2}, v{t0}, 1, 3")
    a(f"v_xor_b32 v{t0+2}, v{t0+2}, v{t0+1}")
    a(f"v_lshlrev_b32 v{t0+2}, 4, v{t0+2}")
    a(f"v_lshl_add_u32 v{t0}, v{t0}, 7, v{t0+2}")
    a("s_lshl_b32 s45, s44, 13")
    a(f"s_add_u32 s45, s45, {TS0+TSTR}")
    assert UX[0] == TS0+TSTR
    for kk in range(4):
        a(f"v_xor_b32 v{t0+3}, {kk*32}, v{t0}")
        a(f"v_add_u32 v{xaddr[kk]}, s45, v{t0+3}")
        a(f"v_add_u32 v{uxaddr[kk]}, s45, v{t0+3}")
    a(f"v_bfe_u32 v{t0}, v0, 2, 2")
    a(f"v_bfe_u32 v{t0+2}, v0, 4, 1")
    a(f"v_and_b32 v{t0+3}, 3, v0")
    a(f"v_lshlrev_b32 v{t0+3}, 3, v{t0+3}")
    a(f"v_lshl_add_u32 v{uwaddr}, v{t0+1}, 3, v{t0}")
    a(f"v_lshl_add_u32 v{waddr}, v{uwaddr}, 7, v{t0+3}")
    a(f"v_mul_u32_u24 v{uwaddr}, 192, v{uwaddr}")
    a(f"v_mul_u32_u24 v{vsrc}, {WIMG}, v{t0+2}")
    a(f"v_add3_u32 v{uwaddr}, v{uwaddr}, v{vsrc}, v{t0+3}")
    a("s_mul_i32 s45, s46, 96")
    a(f"s_add_u32 s45, s45, {UW[0]}")
    a(f"v_add_u32 v{uwaddr}, s45, v{uwaddr}")
    a(f"v_lshlrev_b32 v{wa}, 5, v{t0}")
    a(f"v_and_b32 v{wa}, 64, v{wa}")
    a("s_lshl_b32 s45, s46, 6")
    a(f"v_xor_b32 v{wa}, s45, v{wa}")
    a(f"v_mul_u32_u24 v{vsrc}, {TU-TG}, v{t0+2}")
    a(f"v_add3_u32 v{waddr}, v{waddr}, v{vsrc}, v{wa}")
    a(f"v_add_u32 v{waddr}, {TS0+TSTR+TG}, v{waddr}")
    a(f"v_lshl_add_u32 v{t0+3}, v{t0+2}, 5, v{t0+3}")
    a(f"v_lshl_add_u32 v{t0}, v{t0+1}, 2, v{t0}")
    a(f"v_lshl_add_u32 v{t0+3}, v{t0}, 7, v{t0+3}")
    a(f"v_add_u32 v{wa}, v{wa}, v{t0+3}")
    a(f"s_lshl_b32 s{s_lb}, s{s_fw}, 14")
    a(f"s_add_u32 s{s_lb}, s{s_lb}, {STG}")
    a(f"s_lshl_b32 s44, s{S_XCD}, 2")
    a(f"s_and_b32 s45, s{S_LOC}, 3")
    a(f"s_add_u32 s{s_T2}, s44, s45")
    a(f"s_lshr_b32 s{s_N2}, s{S_LOC}, 2")
    a(f"v_lshrrev_b32 v{t0}, 3, v0")
    a(f"v_and_b32 v{t0+1}, 7, v0")
    a(f"v_lshlrev_b32 v{t0+3}, 1, v{t0}")
    a(f"v_and_b32 v{t0+3}, 4, v{t0+3}")
    a(f"v_xor_b32 v{t0+3}, v{t0+1}, v{t0+3}")
    a(f"v_lshlrev_b32 v{t0+3}, 4, v{t0+3}")
    a(f"v_lshl_add_u32 v{t0+3}, v{t0}, 10, v{t0+3}")
    a(f"s_lshl_b32 s44, s{s_N2}, 7")
    a(f"v_add_u32 v{vsrc}, s44, v{t0+3}")
    def zero(r, n):
        a(f"v_mov_b32 v{r}, 0")
        a(f"v_mov_b32 v{r+1}, 0")
        for i in range(1, n//2): a(f"v_pk_mov_b32 {v(r+2*i,2)}, {v(r,2)}, {v(r,2)}")
    up_dma_setup(a, t0, vx, vw, s_fw, s_urb, s_cg, s_u0, s_lx, s_lw, s_xoff, s_woff)
    a(f"s_lshr_b32 s46, s{s_fw}, 1")
    a(f"s_cmp_ge_u32 s{s_cg}, 6")
    a(f"s_cselect_b32 s{s_skip}, s46, 0")
    a(f"s_mov_b32 s{s_dx}, {UX[1]-UX[0]}")
    a(f"s_mov_b32 s{s_dw}, {UW[1]-UW[0]}")
    zero(ACC[0][0], 64)
    a(f"s_mov_b32 s{s_stage}, 0")
    a("s_waitcnt lgkmcnt(0)")
    srd(a, SWS, 24, 25, WS_BYTES)
    up_srd(a, s_fw, s_u0)
    a(f"s_cmp_lt_u32 s{S_LOC}, 24")
    a("s_cbranch_scc1 L_E_work")
    for i in range(8): a("s_barrier")
    a("s_branch L_E_done")
    a.label("L_E_work")
    def rx(kk, buf, t): a(f"ds_read_b128 {v(XF[buf][t],4)}, v{xaddr[kk]} offset:{t*4096}")
    def rw(kk, buf, u, h): a(f"ds_read_b64_tr_b16 {v(WF[buf][u]+2*h,2)}, v{waddr} offset:{kk*2048+u*32+h*512}")
    a("s_barrier")
    st.stamp(2)
    if st.en: a("s_waitcnt lgkmcnt(0)")
    rx(0, 0, 0); rw(0, 0, 0, 0); rw(0, 0, 0, 1); rx(0, 0, 1); rw(0, 0, 1, 0); rw(0, 0, 1, 1)
    a(f"s_cmp_ge_u32 s{s_cb}, 8")
    a("s_cbranch_scc1 L_E_loopV")
    def loop(tag):
        def mm(buf, u, t):
            A_, B_ = (XF[buf][t], WF[buf][u]) if tag == "V" else (WF[buf][u], XF[buf][t])
            a(f"{MF} {v(ACC[u][t],16)}, {v(A_,4)}, {v(B_,4)}, {v(ACC[u][t],16)}")
        a.label(f"L_E_loop{tag}")
        for kk in range(3):
            b = kk & 1; n = b ^ 1
            a("s_waitcnt lgkmcnt(3)")
            mm(b, 0, 0)
            rx(kk+1, n, 0); rw(kk+1, n, 0, 0)
            a("s_waitcnt lgkmcnt(4)")
            mm(b, 0, 1)
            rw(kk+1, n, 0, 1); rx(kk+1, n, 1)
            a("s_waitcnt lgkmcnt(4)")
            mm(b, 1, 0)
            rw(kk+1, n, 1, 0); rw(kk+1, n, 1, 1)
            mm(b, 1, 1)
            if kk == 2:
                a(f"s_add_u32 s{s_stage}, s{s_stage}, 1")
                a(f"s_lshr_b32 s44, 0x24, s{s_stage}")
                a("s_bitcmp1_b32 s44, 0")
                a(f"s_mov_b32 s45, {(-2*TSTR) & 0xffffffff}")
                a(f"s_cselect_b32 s44, s45, {TSTR}")
        a("s_waitcnt lgkmcnt(3)")
        mm(1, 0, 0)
        for r in xaddr + [waddr]:
            a(f"v_add_u32 v{r}, s44, v{r}")
        a(f"s_cmp_eq_u32 s{s_stage}, 8")
        a("s_waitcnt lgkmcnt(0)")
        mm(1, 0, 1)
        a(f"s_cbranch_scc1 L_E_tail{tag}")
        a("s_barrier")
        rx(0, 0, 0); rw(0, 0, 0, 0); rw(0, 0, 0, 1)
        mm(1, 1, 0)
        rx(0, 0, 1); rw(0, 0, 1, 0); rw(0, 0, 1, 1)
        mm(1, 1, 1)
        a(f"s_branch L_E_loop{tag}")
        a.label(f"L_E_tail{tag}")
        mm(1, 1, 0)
        mm(1, 1, 1)
    loop("T")
    a(f"v_mov_b32 v{t0}, v{V_L16}")
    a(f"s_mov_b32 s47, {4*65536}")
    a("s_branch L_E_epiQ")
    loop("V")
    a(f"v_and_b32 v{t0}, 15, v0")
    a(f"v_lshlrev_b32 v{t0}, 4, v{t0}")
    a(f"v_lshrrev_b32 v{t0+1}, 5, v0")
    a(f"v_lshl_add_u32 v{t0}, v{t0+1}, 8, v{t0}")
    a(f"v_bfe_u32 v{t0+1}, v0, 4, 1")
    a(f"v_lshl_add_u32 v{t0}, v{t0+1}, 18, v{t0}")
    a("s_mov_b32 s47, 512")
    a.label("L_E_epiQ")
    st.stamp(3)
    a(f"s_lshl_b32 s44, s{s_cb}, 19")
    a(f"s_lshr_b32 s45, s{s_fw}, 1")
    a("s_lshl_b32 s45, s45, 17")
    a("s_add_u32 s44, s44, s45")
    a(f"s_lshl_b32 s45, s{s_rb}, 12")
    a("s_add_u32 s44, s44, s45")
    a(f"s_and_b32 s45, s{s_fw}, 1")
    a("s_lshl_b32 s45, s45, 11")
    a("s_add_u32 s44, s44, s45")
    a("s_add_u32 s45, s44, s47")
    a(f"s_cmp_lt_u32 s{s_cb}, 4")
    a("s_cbranch_scc0 L_E_noscale")
    a(f"s_mov_b32 s46, {f32bits(QSCALE)}")
    a("s_mov_b32 s47, s46")
    for i in range(32):
        a(f"v_pk_mul_f32 {v(ACC[0][0]+2*i,2)}, {v(ACC[0][0]+2*i,2)}, s[46:47]")
    a.label("L_E_noscale")
    n = 0
    for u in range(2):
        for t in range(2):
            for half in range(2):
                tm = TMP + 4*(n & 3); n += 1
                src = ACC[u][t] + 8*half
                for i in range(4):
                    a(f"v_cvt_pk_bf16_f32 v{tm+i}, v{src+2*i}, v{src+2*i+1}")
                a(f"buffer_store_dwordx4 {v(tm,4)}, v{t0}, s[{SWS}:{SWS+3}], s{44+half} offen offset:{t*1024} sc1")
        if u == 0:
            a("s_add_u32 s44, s44, 65536")
            a("s_add_u32 s45, s45, 65536")
    a(f"s_and_b32 s44, s{s_cb}, 3")
    a("s_lshl_b32 s44, s44, 1")
    a(f"s_lshr_b32 s45, s{s_fw}, 1")
    a("s_add_u32 s44, s44, s45")
    a("s_lshl_b32 s44, s44, 3")
    a(f"s_lshr_b32 s45, s{s_cb}, 2")
    a("s_lshl_b32 s45, s45, 1")
    a("s_add_u32 s44, s44, s45")
    a(f"s_and_b32 s45, s{s_fw}, 1")
    a("s_add_u32 s44, s44, s45")
    a("s_lshl_b32 s44, s44, 7")
    a(f"s_add_u32 s44, s44, {CQ}")
    lds_wait_ge(a, "tg1", V_MISC, L_NONCE, "1", t0+1)
    post(a, 44)
    a("s_branch L_E_done2")
    a.label("L_E_done")
    lds_wait_ge(a, "tg2", V_MISC, L_NONCE, "1", t0+1)
    a.label("L_E_done2")
    lds_arrive(a, V_MISC, L_POST)
    st.stamp(4)
    R = Regs(20)
    XF = [[R.alloc(4) for _ in range(2)] for _ in range(2)]
    WF = [R.alloc(4) for _ in range(3)]
    UACC = [[R.alloc(16) for _ in range(2)] for _ in range(3)]
    hi.append(R.hi)
    def up_groups():
        g = up_dma_groups(vx, vw, s_lx, s_lw, s_xoff, s_woff)
        g[-1] += [f"s_add_u32 s{s_xoff}, s{s_xoff}, 128",
                  f"s_add_u32 s{s_woff}, s{s_woff}, {64*2752}",
                  f"s_and_b32 s{s_xoff}, s{s_xoff}, 1023",
                  f"s_cselect_b32 s{s_woff}, s{s_woff}, 0",
                  f"s_add_u32 s{s_lx}, s{s_lx}, s{s_dx}",
                  f"s_add_u32 s{s_lw}, s{s_lw}, s{s_dw}",
                  f"s_sub_u32 s{s_dx}, 0, s{s_dx}",
                  f"s_sub_u32 s{s_dw}, 0, s{s_dw}"]
        return g
    zero(UACC[0][0], 96)
    a(f"s_setprio {o.fprio}")
    if o.upat == 9: lds_wait_ge(a, "upgo", V_MISC, L_POST, "4", t0, sleep=2)
    if o.upat == 10: lds_wait_ge(a, "upgo", V_MISC, L_ATT, "8", t0, sleep=4)
    if o.upat == 12: lds_wait_ge(a, "upgo", V_MISC, L_GO, "1", t0, sleep=2)
    if o.udelay: a(f"s_sleep {o.udelay}")
    for grp in up_groups():
        for l in grp: a(l)
    a(f"s_mov_b32 s{s_stage}, 0")
    a(f"s_mov_b32 s{s_rb}, {UX[1]-UX[0]}")
    a(f"s_mov_b32 s{s_lc}, {UW[1]-UW[0]}")
    def rd_x(kk, buf):
        for t in range(2):
            a(f"ds_read_b128 {v(XF[buf][t],4)}, v{uxaddr[kk]} offset:{t*4096}")
    def rd_w(kk, u):
        off = kk*16*192 + u*32
        a(f"ds_read_b64_tr_b16 {v(WF[u],2)}, v{uwaddr} offset:{off}")
        a(f"ds_read_b64_tr_b16 {v(WF[u]+2,2)}, v{uwaddr} offset:{off+4*192}")
    def nops(n):
        if n > 0: a(f"s_nop {n-1}")
    def umm(u, buf, fill=None, after=3):
        for t in range(2):
            a(f"{MF} {v(UACC[u][t],16)}, {v(WF[u],4)}, {v(XF[buf][t],4)}, {v(UACC[u][t],16)}")
            if fill:
                for _ in range(o.dper):
                    if fill:
                        for l in fill.pop(0): a(l)
            else:
                nops(o.fpace - (after if t == 1 else 0))
    st.abeg()
    a("s_waitcnt vmcnt(0)")
    fbar(a, t0)
    st.aend(2)
    rd_x(0, 0)
    for u in range(3): rd_w(0, u)
    if o.upause == -1: lds_wait_ge(a, "upp0", V_MISC, L_ATT, "8", t0, sleep=4)
    a(f"s_setprio {o.mprio}")
    def umm_skip(u, buf):
        if u == 2:
            lab = a.newlabel("upskip")
            a(f"s_cmp_lg_u32 s{s_skip}, 0")
            a(f"s_cbranch_scc1 {lab}")
            umm(u, buf)
            a.label(lab)
        else:
            umm(u, buf)
    a.label("L_up_loop")
    groups = up_groups()
    for kk in range(3):
        buf = kk & 1
        for u in range(3):
            younger = (2-u)*2 + (0 if u == 0 else 2 + 2*u)
            a(f"s_waitcnt lgkmcnt({younger})")
            if u == 2: umm_skip(u, buf)
            else: umm(u, buf, groups, 5 if u == 0 else 3)
            if u == 0: rd_x(kk+1, buf ^ 1)
            rd_w(kk+1, u)
    assert not groups
    a("s_waitcnt lgkmcnt(4)")
    umm(0, 1)
    a(f"s_cmp_eq_u32 s{s_stage}, 7")
    a("s_cbranch_scc1 L_up_last")
    st.abeg()
    a("s_waitcnt vmcnt(0) lgkmcnt(0)")
    st.aend(0)
    a(f"s_add_u32 s{S_FBT}, s{S_FBT}, 4")
    lds_arrive(a, V_MISC, L_FB)
    umm(1, 1)
    a(f"s_setprio {o.fprio}")
    for r in uxaddr:
        a(f"v_add_u32 v{r}, s{s_rb}, v{r}")
    a(f"v_add_u32 v{uwaddr}, s{s_lc}, v{uwaddr}")
    st.abeg()
    lds_wait_ge(a, "upb", V_MISC, L_FB, f"s{S_FBT}", t0, sleep=1)
    st.aend(1)
    a(f"s_setprio {o.mprio}")
    rd_x(0, 0)
    rd_w(0, 0); rd_w(0, 1)
    umm_skip(2, 1)
    rd_w(0, 2)
    a(f"s_sub_u32 s{s_rb}, 0, s{s_rb}")
    a(f"s_sub_u32 s{s_lc}, 0, s{s_lc}")
    a(f"s_add_u32 s{s_stage}, s{s_stage}, 1")
    a(f"s_cmp_eq_u32 s{s_stage}, 7")
    a(f"s_cselect_b32 s{SA+2}, 0, s{SA+2}")
    a(f"s_cselect_b32 s{SB+2}, 0, s{SB+2}")
    if o.upause > 0:
        a(f"s_cmp_eq_u32 s{s_stage}, {o.upause}")
        a("s_cbranch_scc0 L_up_loop")
        a(f"s_setprio {o.fprio}")
        lds_wait_ge(a, "upp", V_MISC, L_ATT, "8", t0, sleep=4)
        a(f"s_setprio {o.mprio}")
    a("s_branch L_up_loop")
    a.label("L_up_last")
    a("s_waitcnt lgkmcnt(0)")
    umm(1, 1)
    umm_skip(2, 1)
    a(f"s_setprio {o.fprio}")
    st.stamp(5)
    a(f"s_lshl_b32 s44, s{s_urb}, 2")
    a(f"s_and_b32 s45, s{s_fw}, 1")
    a("s_lshl_b32 s45, s45, 1")
    a("s_add_u32 s44, s44, s45")
    a("s_mul_i32 s44, s44, 86")
    a(f"s_add_u32 s44, s44, s{s_u0}")
    a(f"s_lshr_b32 s45, s{s_fw}, 1")
    a("s_mul_i32 s45, s45, 3")
    a("s_add_u32 s44, s44, s45")
    a("s_lshl_b32 s44, s44, 10")
    a(f"s_add_u32 s44, s44, {HF}")
    a(f"s_add_u32 s45, s44, {86*1024}")
    a(f"s_mov_b32 s46, {f32bits(-LOG2E)}")
    a("s_mov_b32 s47, s46")
    for u in range(3):
        if u == 2:
            a(f"s_cmp_lg_u32 s{s_skip}, 0")
            a("s_cbranch_scc1 L_up_done")
        for t in range(2):
            g = UACC[u][t]; up = g + 8
            tm = XF[u & 1][t]
            for i in range(4): a(f"v_pk_mul_f32 {v(g+2*i,2)}, {v(g+2*i,2)}, s[46:47]")
            for i in range(8): a(f"v_exp_f32 v{g+i}, v{g+i}")
            for i in range(4): a(f"v_pk_add_f32 {v(g+2*i,2)}, {v(g+2*i,2)}, 1.0 op_sel_hi:[1,0]")
            for i in range(8): a(f"v_rcp_f32 v{g+i}, v{g+i}")
            for i in range(4): a(f"v_pk_mul_f32 {v(g+2*i,2)}, {v(g+2*i,2)}, {v(up+2*i,2)}")
            for i in range(4): a(f"v_cvt_pk_bf16_f32 v{tm+i}, v{g+2*i}, v{g+2*i+1}")
            a(f"buffer_store_dwordx4 {v(tm,4)}, v{V_L16}, s[{SWS}:{SWS+3}], s{44+t} offen offset:{u*1024} sc1")
    a.label("L_up_done")
    a(f"s_lshl_b32 s44, s{s_urb}, 2")
    a(f"s_add_u32 s44, s44, s{s_fw}")
    a("s_lshl_b32 s44, s44, 7")
    a(f"s_add_u32 s44, s44, {CH}")
    post(a, 44)
    st.stamp(8)
    s_h0, s_h1, s_w, s_i, s_T, s_nt, s_idx, s_dl = 49, 50, 51, 52, 53, 54, 55, 56
    R = Regs(16)
    ACC = [R.alloc(16) for _ in range(4)]
    HFR = [[R.alloc(4) for _ in range(2)] for _ in range(8)]
    WF = [[R.alloc(4) for _ in range(2)] for _ in range(2)]
    G = 8; VOUT = 10; da = [11, 12]; db = [R.alloc(), R.alloc()]
    hi.append(R.hi)
    fbar(a, t0)
    a(f"ds_read_b32 v{t0+3}, v{V_MISC} offset:{L_NONCE}")
    srd(a, SA, 8, 9, 512*1024)
    a(f"s_lshl_b32 s{s_w}, s{s_fw}, 17")
    a(f"s_mov_b32 m0, s{s_lb}")
    a(f"s_mov_b32 s{s_i}, 14")
    a.label("L_wo_ld")
    a(f"buffer_load_dwordx4 v{vsrc}, s[{SA}:{SA+3}], s{s_w} offen lds")
    a("s_add_u32 m0, m0, 1024")
    a(f"s_add_u32 s{s_w}, s{s_w}, 8192")
    a(f"s_sub_u32 s{s_i}, s{s_i}, 1")
    a(f"s_cmp_lg_u32 s{s_i}, 0")
    a("s_cbranch_scc1 L_wo_ld")
    srd(a, SA, 16, 17, 1376*1024)
    a(f"s_mul_i32 s{s_dl}, s{s_fw}, 6144")
    a(f"s_add_u32 s{s_dl}, s{s_dl}, {DRING}")
    a(f"v_add_u32 v{da[0]}, s{s_dl}, v{wa}")
    a(f"v_xor_b32 v{da[1]}, 64, v{da[0]}")
    a(f"v_add_u32 v{db[0]}, s{s_lb}, v{wa}")
    a(f"v_xor_b32 v{db[1]}, 64, v{db[0]}")
    a(f"s_lshl_b32 s{s_w}, s{s_fw}, 14")
    a(f"s_lshl_b32 s44, s{s_T2}, 1")
    a(f"s_and_b32 s45, s{s_fw}, 1")
    a(f"s_add_u32 s{s_T}, s44, s45")
    a(f"s_xor_b32 s47, s{s_T}, 1")
    for d, sx in ((s_h0, s_T), (s_h1, 47)):
        a(f"s_mul_i32 s{d}, s{sx}, 86")
        a(f"s_add_u32 s{d}, s{d}, s{s_fw}")
        a(f"s_lshl_b32 s{d}, s{d}, 10")
        a(f"s_add_u32 s{d}, s{d}, {HF}")
    a(f"s_lshl_b32 s44, s{s_N2}, 1")
    a(f"s_lshr_b32 s45, s{s_fw}, 1")
    a(f"s_add_u32 s{s_nt}, s44, s45")
    a(f"v_and_b32 v{t0}, 31, v0")
    a(f"v_lshrrev_b32 v{t0+1}, 5, v0")
    a(f"v_lshlrev_b32 v{t0+1}, 4, v{t0+1}")
    a(f"v_lshl_add_u32 v{VOUT}, v{t0}, 10, v{t0+1}")
    a("s_waitcnt lgkmcnt(0)")
    a(f"v_readfirstlane_b32 s{S_NONCE}, v{t0+3}")
    a(f"v_lshlrev_b32 v{t0+1}, 3, v{t0}")
    a(f"s_lshl_b32 s44, s{s_T}, 8")
    a(f"s_add_u32 s44, s44, {GA}")
    a(f"s_mov_b32 s{S_SPIN}, 0")
    a.label("L_g_poll")
    a(f"buffer_load_dwordx2 {v(G,2)}, v{t0+1}, s[{SWS}:{SWS+3}], s44 offen sc1")
    a(f"s_add_u32 s{S_SPIN}, s{S_SPIN}, 1")
    a("s_waitcnt vmcnt(0)")
    a(f"v_cmp_ne_u32 vcc, s{S_NONCE}, v{G+1}")
    a(f"s_cmp_gt_u32 s{S_SPIN}, 200000")
    a("s_cbranch_scc1 L_g_got")
    a("s_cbranch_vccz L_g_got")
    a("s_sleep 8")
    a("s_branch L_g_poll")
    a.label("L_g_got")
    a(f"v_sub_f32 v{G+1}, 1.0, v{G}")
    a(f"s_cmp_eq_u32 s{s_fw}, 0")
    a("s_cbranch_scc0 L_dn_nopoll")
    a(f"s_lshr_b32 s44, s{s_T2}, 1")
    a("s_lshl_b32 s44, s44, 2")
    a(f"s_and_b32 s45, s{s_T2}, 1")
    a("s_add_u32 s44, s44, s45")
    a("s_lshl_b32 s44, s44, 7")
    a(f"s_add_u32 s44, s44, {CH}")
    a(f"v_and_b32 v{t0+2}, 1, v0")
    a(f"v_lshlrev_b32 v{t0+2}, 8, v{t0+2}")
    poll(a, "dn", t0+1, t0+2, 44, 16, 8)
    a.label("L_dn_nopoll")
    fbar(a, t0+1)
    st.stamp(9)
    s_wend, s_hend = 57, 58
    s_o, s_out, s_co = 49, 50, 51
    def ldw(g):
        m = f"s_add_u32 m0, s{s_dl}, {(g%4)*2048}" if g % 4 < 3 else f"s_add_u32 m0, s{s_lb}, {7*2048}"
        p0 = [m, f"s_add_u32 s44, s{s_w}, 8192", f"buffer_load_dwordx4 v{vsrc}, s[{SA}:{SA+3}], s{s_w} offen lds"]
        p1 = ["s_add_u32 m0, m0, 1024", f"s_add_u32 s{s_w}, s{s_w}, 65536", f"buffer_load_dwordx4 v{vsrc}, s[{SA}:{SA+3}], s44 offen lds"]
        if o.stagD: p1 += [f"s_cmp_eq_u32 s{s_w}, s{s_wend}", f"s_cselect_b32 s{s_w}, s46, s{s_w}"]
        return [p0, p1]
    def ldh(g):
        p0 = [f"s_add_u32 s45, s{s_h0}, s{s_h1}", f"buffer_load_dwordx4 {v(HFR[g%4][0],4)}, v{V_L16}, s[{SWS}:{SWS+3}], s{s_h0} offen sc1"]
        p1 = [f"s_add_u32 s{s_h0}, s{s_h0}, 4096", f"buffer_load_dwordx4 {v(HFR[g%4][1],4)}, v{V_L16}, s[{SWS}:{SWS+3}], s45 offen sc1"]
        if o.stagD: p1 += [f"s_cmp_eq_u32 s{s_h0}, s{s_hend}", f"s_cselect_b32 s{s_h0}, s47, s{s_h0}"]
        return [p0, p1]
    def emit(ps):
        for p in ps:
            for l in p: a(l)
    def rdw1(off, buf, ad, n):
        a(f"ds_read_b64_tr_b16 {v(WF[buf][n],2)}, v{ad[n]} offset:{off}")
        a(f"ds_read_b64_tr_b16 {v(WF[buf][n]+2,2)}, v{ad[n]} offset:{off+1024}")
    def rdw(off, buf, ad=da):
        for n in range(2): rdw1(off, buf, ad, n)
    a(f"s_sub_u32 s{s_h1}, s{s_h1}, s{s_h0}")
    a(f"s_mov_b32 s46, s{s_w}")
    a(f"s_mov_b32 s47, s{s_h0}")
    a(f"s_add_u32 s{s_wend}, s46, {21*65536}")
    a(f"s_add_u32 s{s_hend}, s47, {21*4096}")
    if o.stagD:
        a(f"s_and_b32 s44, s{S_LOC}, 3")
        a("s_mul_i32 s44, s44, 5")
        a(f"s_mul_i32 s45, s{s_N2}, 21")
        a("s_lshr_b32 s45, s45, 3")
        a("s_add_u32 s44, s44, s45")
        a("s_cmp_ge_u32 s44, 21")
        a("s_cselect_b32 s45, 21, 0")
        a(f"s_sub_u32 s{s_i}, s44, s45")
    else:
        a(f"s_mov_b32 s{s_i}, 0")
    a(f"s_mov_b32 s{s_w}, s{s_wend}")
    a(f"s_cmp_lt_u32 s{s_fw}, 2")
    a(f"s_cselect_b32 s{s_h0}, s{s_hend}, s47")
    emit(ldw(0))
    a(f"s_lshl_b32 s44, s{s_i}, 16")
    a(f"s_add_u32 s{s_w}, s46, s44")
    emit(ldw(1)); emit(ldh(0))
    a(f"s_lshl_b32 s44, s{s_i}, 12")
    a(f"s_add_u32 s{s_h0}, s47, s44")
    emit(ldw(2)); emit(ldh(1))
    emit(ldw(3)); emit(ldh(2))
    a(f"s_setprio {o.mprio}")
    a("s_waitcnt vmcnt(12)")
    rdw(0, 0)
    def rstep(k):
        b = k & 1
        issued = lambda j: (2 if j + 4 <= 21 else 0) + (2 if j + 3 <= 21 else 0) + (2 if j == 19 else 0)
        a(f"s_waitcnt vmcnt({issued(k-2) + issued(k-1)}) lgkmcnt(0)")
        parts = (ldw(k+4) if k + 4 <= 21 else [[], []]) + (ldh(k+3) if k + 3 <= 21 else [[], []])
        if k == 19:
            parts = [[f"s_mov_b32 s{SA}, s8", f"s_and_b32 s{SA+1}, s9, 0xffff", f"s_mov_b32 s{SA+2}, {512*1024}",
                      f"s_lshl_b32 s44, s{s_fw}, 17", f"s_add_u32 s44, s44, {14*8192}"],
                     [f"s_add_u32 m0, s{s_lb}, {14*1024}", "s_add_u32 s45, s44, 8192",
                      f"buffer_load_dwordx4 v{vsrc}, s[{SA}:{SA+3}], s44 offen lds"],
                     ["s_add_u32 m0, m0, 1024", "s_nop 0", f"buffer_load_dwordx4 v{vsrc}, s[{SA}:{SA+3}], s45 offen lds"], []]
        if k == 20:
            parts = [[f"s_mov_b32 s{SB}, s20", f"s_and_b32 s{SB+1}, s21, 0xffff", f"s_mov_b32 s{SB+2}, {2048*1024}", f"s_mov_b32 s{SB+3}, 0x20000"],
                     [f"s_lshr_b32 s46, s{s_fw}, 1", f"s_lshl_b32 s44, s{s_T}, 15", "s_lshl_b32 s45, s46, 14", "s_add_u32 s45, s44, s45",
                      f"s_add_u32 s{s_o}, s45, {OF}"],
                     [f"s_lshl_b32 s45, s{s_nt}, 6", f"s_add_u32 s{s_out}, s44, s45", f"s_lshl_b32 s44, s{s_T}, 1", "s_add_u32 s44, s44, s46"],
                     ["s_lshl_b32 s44, s44, 7", f"s_add_u32 s{s_co}, s44, {CO}"]]
        for n in range(2):
            for t in range(2):
                c = "0" if k == 0 else v(ACC[2*n+t],16)
                a(f"{MF} {v(ACC[2*n+t],16)}, {v(WF[b][n],4)}, {v(HFR[k%4][t],4)}, {c}")
                if n == 0 and k < 21:
                    if (k+1) % 4 < 3: rdw1(((k+1) % 4)*2048, b ^ 1, da, t)
                    else: rdw1(7*2048, b ^ 1, db, t)
                for l in parts[2*n+t]: a(l)
    rstep(0)
    a(f"s_mov_b32 s{s_i}, 4")
    a.label("L_dn_loop")
    for k in range(1, 5): rstep(k)
    a(f"s_sub_u32 s{s_i}, s{s_i}, 1")
    a(f"s_cmp_lg_u32 s{s_i}, 0")
    a("s_cbranch_scc1 L_dn_loop")
    for k in range(17, 22): rstep(k)
    a(f"s_setprio {o.fprio}")
    st.stamp(10)
    a("s_waitcnt vmcnt(0)")
    a("s_barrier")
    if o.tdelay: a(f"s_sleep {o.tdelay}")
    a(f"buffer_load_dword v{t0+1}, off, s[{SWS}:{SWS+3}], s{s_co} sc1")
    a("s_lshl_b32 s44, s46, 15")
    a(f"s_add_u32 s44, s44, {STG}")
    a(f"v_add_u32 v{da[0]}, s44, v{wa}")
    a(f"v_xor_b32 v{da[1]}, 64, v{da[0]}")
    a(f"s_lshl_b32 s44, s{s_fw}, 13")
    a(f"v_add_u32 v{t0}, s44, v{V_L16}")
    a(f"v_xor_b32 v{t0+2}, 8192, v{t0}")
    a(f"v_xor_b32 v{t0+3}, 16384, v{t0}")
    for n in range(2):
        for i in range(4):
            a(f"ds_write_b128 v{t0}, {v(ACC[2*n+1]+4*i,4)} offset:{n*4096+i*1024}")
    a("s_waitcnt lgkmcnt(0)")
    a("s_barrier")
    for n in range(2):
        for i in range(4):
            a(f"ds_read_b128 {v(ACC[2*n+1]+4*i,4)}, v{t0+2} offset:{n*4096+i*1024}")
    WF.append([160, 164])
    hi.append(168)
    for n in (1, 0): rdw1(0, 0, da, n)
    BQ = [ACC[0], ACC[2]]
    def bsum():
        for n in range(2):
            a(f"s_waitcnt lgkmcnt({4*(1-n)+4})")
            for i in range(8):
                a(f"v_pk_add_f32 {v(BQ[n]+2*i,2)}, {v(BQ[n]+2*i,2)}, {v(ACC[2*n+1]+2*i,2)}")
            for i in range(8):
                a(f"v_pk_mul_f32 {v(BQ[n]+2*i,2)}, {v(BQ[n]+2*i,2)}, {v(G,2)} op_sel:[0,1] op_sel_hi:[1,1]")
    poll(a, "tl", t0+1, None, s_co, 16, o.tsleep, first_issued=True)
    st.stamp(11)
    if st.en: a("s_waitcnt lgkmcnt(0)")
    OFR = [HFR[i >> 1][i & 1] for i in range(16)]
    def ldo(i):
        a(f"buffer_load_dwordx4 {v(OFR[i],4)}, v{V_L16}, s[{SWS}:{SWS+3}], s{s_o} offen offset:{(i&3)*1024} sc1")
        if i & 3 == 3 and i < 15: a(f"s_add_u32 s{s_o}, s{s_o}, 4096")
    for i in range(o.nfirst): ldo(i)
    bsum()
    if o.tprof: st.stamp(2); a("s_waitcnt lgkmcnt(0)")
    for n in (1, 0): rdw1(2048, 1, da, n)
    pend = list(range(o.nfirst, 16))
    AO = [ACC[1], ACC[3]]
    for i in range(16):
        buf = i % 3
        a(f"s_waitcnt vmcnt({15-len(pend)-i}) lgkmcnt({4 if i < 15 else 0})")
        if o.tprof and i == 0: st.stamp(3); a("s_waitcnt lgkmcnt(0)")
        for n in (1, 0):
            c = "0" if i == 0 else v(AO[n],16)
            a(f"{MF} {v(AO[n],16)}, {v(WF[buf][n],4)}, {v(OFR[i],4)}, {c}")
            if i < 14: rdw1((i+2)*2048, (i+2) % 3, da, n)
            if pend: ldo(pend.pop(0))
    if o.tprof: st.stamp(4)
    a("s_nop 10")
    for i in range(4):
        for j in (2*i, 2*i+1):
            a(f"v_pk_fma_f32 {v(BQ[1]+2*j,2)}, {v(AO[1]+2*j,2)}, {v(G,2)}, {v(BQ[1]+2*j,2)} op_sel_hi:[1,0,1]")
        a(f"ds_write_b128 v{t0}, {v(BQ[1]+4*i,4)} offset:{32768+i*1024}")
    for i in range(8):
        a(f"v_pk_fma_f32 {v(BQ[0]+2*i,2)}, {v(AO[0]+2*i,2)}, {v(G,2)}, {v(BQ[0]+2*i,2)} op_sel_hi:[1,0,1]")
    a("s_waitcnt lgkmcnt(0)")
    a("s_barrier")
    for i in range(4):
        a(f"ds_read_b128 {v(AO[1]+4*i,4)}, v{t0+3} offset:{32768+i*1024}")
    if o.tprof: st.stamp(5); a("s_waitcnt lgkmcnt(0)")
    T2 = AO[0]
    for p in range(2):
        a(f"s_waitcnt lgkmcnt({2*(1-p)})")
        for i in range(4*p, 4*p+4):
            a(f"v_pk_add_f32 {v(BQ[0]+2*i,2)}, {v(BQ[0]+2*i,2)}, {v(AO[1]+2*i,2)}")
        for i in range(4*p, 4*p+4):
            a(f"v_cvt_pk_bf16_f32 v{T2+i}, v{BQ[0]+2*i}, v{BQ[0]+2*i+1}")
        b = T2 + 4*p
        a("s_nop 1")
        a(f"v_permlane32_swap_b32 v{b}, v{b+2}")
        a(f"v_permlane32_swap_b32 v{b+1}, v{b+3}")
        a("s_nop 1")
        a(f"buffer_store_dwordx4 {v(b,4)}, v{VOUT}, s[{SB}:{SB+3}], s{s_out} offen offset:{32*p}{['', ' sc1', ' nt', ' sc0 sc1', ' sc1 nt'][o.ost]}")
    if o.tprof: st.stamp(8)
    finish(a, st)
    return hi

def build(path):
    global KN
    KN = "kb_kernel" if (o.report or o.instr) else KNAME
    a = Asm()
    a('.amdgcn_target "amdgcn-amd-amdhsa--gfx950"')
    a(".text")
    st = Stamper(a, o.instr, 0)
    kernel_header(a, KN)
    a("s_cmp_ge_u32 s2, 256")
    a("s_cbranch_scc1 L_exit")
    a("s_load_dwordx16 s[4:19], s[0:1], 0")
    a("s_load_dwordx4 s[20:23], s[0:1], 64")
    a("s_load_dwordx2 s[24:25], s[0:1], 80")
    st.init(); st.real(0); st.stamp(1)
    a("v_lshrrev_b32 v1, 6, v0")
    a("v_and_b32 v0, 63, v0")
    a(f"s_and_b32 s{S_XCD}, s2, 7")
    a(f"v_readfirstlane_b32 s{S_WAVE}, v1")
    a(f"s_lshr_b32 s{S_LOC}, s2, 3")
    a(f"v_lshlrev_b32 v{V_L16}, 4, v0")
    a(f"v_mov_b32 v{V_MISC}, {MISC}")
    a(f"v_mov_b32 v{V_ONE}, 1")
    a(f"s_cmp_ge_u32 s{S_WAVE}, 8")
    a("s_cbranch_scc1 L_F")
    ahi, fallback = a_waves(a, st)
    a.label("L_F")
    hi = f_waves(a, st) + [ahi]
    a.label("L_code_end")
    fallback()
    a.label("L_exit")
    a("s_endpgm")
    print("vgprs", hi)
    assert max(hi) <= 168
    descs = [kernel_desc(KN, 168)]
    if o.report or o.instr:
        hdr = f"; @launch kernel={KN} grid=(256,1,1) block=(768,1,1) lds={LDS_TOTAL}\n"
        if o.report:
            k, w, i = [int(x) for x in str(o.report).split(",")]
            reporter(a, k, w, i)
            hdr += "; @launch kernel=rep_kernel grid=(1,1,1) block=(64,1,1) lds=0\n"
            descs.append(kernel_desc("rep_kernel", 16))
    else:
        hdr = f"; @launch grid=(256,1,1) block=(768,1,1) lds={LDS_TOTAL}\n"
    a('.section .rodata,"a"')
    open(path, "w").write("; generated by gen/gen17.py\n" + hdr + a.text() + "".join(descs))

if __name__ == "__main__":
    path = sys.argv[1]
    for arg in sys.argv[2:]:
        k, _, val = arg.partition("=")
        assert hasattr(Opt, k), k
        setattr(Opt, k, (val if ',' in val else int(val)) if val else True)
    if Opt.report: Opt.instr = True; Stamper.rt = True
    if Opt.acc: Stamper.acc = True
    if Opt.rt: Stamper.rt = True
    build(path)
```

```python
import math, sys
from asmlib import *

MB = 1 << 20
QF, KF, VF, OF, HF = 0, 2*MB, 4*MB, 6*MB, 8*MB
GA = 14*MB
CNT = 14*MB + 0x10000
CQ, CH, CO = CNT, CNT + 64*128, CNT + 128*128
W0 = 14*MB + 0x20000
WS_BYTES = 32*MB
LOG2E = 1.4426950408889634
QSCALE = 0.25 * LOG2E
LDS_TOTAL = 163840
KNAME = "gated_mix__mha_block__glu_gated_glu__prompt_kernel"

TS0, TSTR = 32768, 33024
TG, TU = 16384, 16384 + 8192 + 32
WIMG = 12288 + 32
UX = [65792, 131840]
UW = [82176, 107008]
STG = 65536
DRING = 131072
VCONST = 156672
GL = 160768
MISC = LDS_TOTAL - 256
L_NONCE, L_ATT, L_FB, L_GO, L_PAIR, L_POST = 0, 4, 8, 12, 16, 32

S_WAVE, S_NONCE = 26, 27
SWS, SA, SB, SC = 28, 32, 36, 40
S_XCD, S_LOC, S_FBT, S_SPIN = 3, 69, 67, 68
V_L16, V_MISC, V_ONE = 1, 2, 3
MF = "v_mfma_f32_32x32x16_bf16"
SM = "v_smfmac_f32_32x32x32_bf16"

class Opt:
    instr = False
    report = None
    acc = 0
    rt = 0
    ppdelay = 2
    fprio = 2
    mprio = 0
    aprio = 5
    psleep = 2
    stag1 = 0
    stag2 = 1
    pdelay = 16
    dper = 1
    upause = 0
    ost = 0
    pf31 = 1
    upat = 9
    upwarm = 0
    w0 = 2
    rotU = 0
    pf0 = 2
    rot = 0
    stagD = 1
    nfirst = 10
    tprof = 0
    tsleep = 4
    cuts = '2,6,10'
    pfup = 6
    stagU = 0
    fpace = 0
    la = 3
    udelay = 0
    xat = 1
    ctouch = 1
    tdelay = 0
o = Opt

def srd(a, d, lo, hi, nbytes):
    a(f"s_mov_b32 s{d}, s{lo}")
    a(f"s_and_b32 s{d+1}, s{hi}, 0xffff")
    a(f"s_mov_b32 s{d+2}, {nbytes}")
    a(f"s_mov_b32 s{d+3}, 0x20000")

def finish(a, st):
    if st.en: a("s_waitcnt vmcnt(0)")
    st.stamp(6); st.real(7); st.flush(SWS, S_WAVE, 4)
    a("s_endpgm")

def post(a, s_off):
    a("s_waitcnt vmcnt(0)")
    a("s_mov_b64 exec, 1")
    a(f"buffer_atomic_add v{V_ONE}, off, s[{SWS}:{SWS+3}], s{s_off} sc1")
    a("s_mov_b64 exec, -1")

def poll(a, tag, vt, voff, s_off, target, sleep, first_issued=False):
    def ld():
        if voff is None: a(f"buffer_load_dword v{vt}, off, s[{SWS}:{SWS+3}], s{s_off} sc1")
        else: a(f"buffer_load_dword v{vt}, v{voff}, s[{SWS}:{SWS+3}], s{s_off} offen sc1")
    a(f"s_mov_b32 s{S_SPIN}, 0")
    if not first_issued: ld()
    a.label(f"L_{tag}_poll")
    a(f"s_add_u32 s{S_SPIN}, s{S_SPIN}, 1")
    a("s_waitcnt vmcnt(0)")
    a(f"v_cmp_gt_u32 vcc, {target}, v{vt}")
    a(f"s_cmp_gt_u32 s{S_SPIN}, 200000")
    a(f"s_cbranch_scc1 L_{tag}_got")
    a(f"s_cbranch_vccz L_{tag}_got")
    if sleep: a(f"s_sleep {sleep}")
    ld()
    a(f"s_branch L_{tag}_poll")
    a.label(f"L_{tag}_got")

def lds_wait_ge(a, tag, vaddr, off, target, vt, sleep=1):
    a(f"s_mov_b32 s{S_SPIN}, 0")
    a.label(f"L_{tag}_spin")
    a(f"ds_read_b32 v{vt}, v{vaddr} offset:{off}")
    a(f"s_add_u32 s{S_SPIN}, s{S_SPIN}, 1")
    a("s_waitcnt lgkmcnt(0)")
    a(f"v_cmp_gt_u32 vcc, {target}, v{vt}")
    a(f"s_cmp_gt_u32 s{S_SPIN}, 2000000")
    a(f"s_cbranch_scc1 L_{tag}_ok")
    a(f"s_cbranch_vccz L_{tag}_ok")
    if sleep: a(f"s_sleep {sleep}")
    a(f"s_branch L_{tag}_spin")
    a.label(f"L_{tag}_ok")

def lds_arrive(a, vaddr, off):
    a("s_mov_b64 exec, 1")
    a(f"ds_add_u32 v{vaddr}, v{V_ONE} offset:{off}")
    a("s_mov_b64 exec, -1")

def tile_ids(a, s_rb, s_lc):
    a(f"s_and_b32 s44, s{S_XCD}, 3")
    a("s_lshl_b32 s44, s44, 2")
    a(f"s_and_b32 s45, s{S_LOC}, 3")
    a(f"s_add_u32 s{s_rb}, s44, s45")
    a(f"s_lshr_b32 s{s_lc}, s{S_LOC}, 2")

def ids_up(a, s_rb, s_cg, s_u0):
    a(f"s_and_b32 s44, s{S_XCD}, 2")
    a("s_lshl_b32 s44, s44, 2")
    a(f"s_and_b32 s45, s{S_LOC}, 7")
    a(f"s_add_u32 s{s_rb}, s44, s45")
    a(f"s_and_b32 s44, s{S_XCD}, 1")
    a("s_lshl_b32 s44, s44, 2")
    a(f"s_and_b32 s45, s{S_XCD}, 4")
    a("s_lshl_b32 s45, s45, 1")
    a("s_add_u32 s44, s44, s45")
    a(f"s_lshr_b32 s45, s{S_LOC}, 3")
    a(f"s_add_u32 s{s_cg}, s44, s45")
    a(f"s_mul_i32 s44, s{s_cg}, 5")
    a(f"s_min_u32 s45, s{s_cg}, 6")
    a(f"s_add_u32 s{s_u0}, s44, s45")

def stagger(a, mode=None):
    pass
    if mode == 1:
        a(f"s_lshr_b32 s44, s{S_LOC}, 3")
        a("s_lshl_b32 s44, s44, 1")
        a(f"s_add_u32 s44, s44, s{S_LOC}")
        a("s_and_b32 s44, s44, 7")
    elif mode == 2:
        a(f"s_lshr_b32 s44, s{S_LOC}, 3")
        a(f"s_add_u32 s44, s44, s{S_LOC}")
        a("s_and_b32 s44, s44, 3")
        a("s_lshl_b32 s44, s44, 1")
    elif mode == 3:
        a(f"s_lshr_b32 s44, s{S_LOC}, 3")
        a(f"s_add_u32 s44, s44, s{S_LOC}")
        a("s_and_b32 s44, s44, 1")
        a("s_lshl_b32 s44, s44, 2")
    else:
        a("s_mov_b32 s44, 0")

def up_dma_setup(a, t0, vx, vw, s_fw, s_rb, s_cg, s_u0, s_lx, s_lw, s_xoff, s_woff):
    a(f"v_lshrrev_b32 v{t0}, 3, v0")
    a(f"v_and_b32 v{t0+1}, 7, v0")
    a(f"v_lshrrev_b32 v{t0+2}, 1, v{t0}")
    ids_up(a, s_rb, s_cg, s_u0)
    a(f"s_and_b32 s46, s{s_fw}, 1")
    a("s_lshl_b32 s45, s46, 2")
    a(f"v_or_b32 v{t0+2}, s45, v{t0+2}")
    a(f"v_xor_b32 v{t0+1}, v{t0+1}, v{t0+2}")
    a(f"v_lshlrev_b32 v{t0+1}, 4, v{t0+1}")
    a(f"s_lshl_b32 s44, s{s_rb}, 7")
    a(f"s_lshl_b32 s45, s{s_fw}, 3")
    a("s_add_u32 s44, s44, s45")
    a(f"v_add_u32 v{t0}, s44, v{t0}")
    a(f"v_lshl_add_u32 v{vx}, v{t0}, 10, v{t0+1}")
    a("s_movk_i32 s44, 5462")
    a("s_movk_i32 s47, 2752")
    a("s_lshl_b32 s45, s46, 5")
    for j in range(3):
        a(f"v_add_u32 v{t0}, {64*j}, v0")
        a(f"v_mul_u32_u24 v{t0+1}, s44, v{t0}")
        a(f"v_lshrrev_b32 v{t0+1}, 16, v{t0+1}")
        a(f"v_mul_u32_u24 v{t0+2}, 12, v{t0+1}")
        a(f"v_sub_u32 v{t0+2}, v{t0}, v{t0+2}")
        a(f"v_lshlrev_b32 v{t0+2}, 4, v{t0+2}")
        a(f"v_add_u32 v{t0+1}, s45, v{t0+1}")
        a(f"v_mad_u32_u24 v{vw[j]}, v{t0+1}, s47, v{t0+2}")
    a(f"s_lshl_b32 s{s_lx}, s{s_fw}, 10")
    a(f"s_add_u32 s{s_lx}, s{s_lx}, {UX[0]}")
    a("s_mul_i32 s45, s46, 6144")
    a(f"s_lshr_b32 s46, s{s_fw}, 1")
    a(f"s_mul_i32 s47, s46, {WIMG}")
    a("s_add_u32 s45, s45, s47")
    a(f"s_add_u32 s{s_lw}, s45, {UW[0]}")
    stagger(a, o.stagU)
    a(f"s_lshl_b32 s{s_xoff}, s44, 7")
    a(f"s_mul_i32 s{s_woff}, s44, {64*2752}")

def up_srd(a, s_fw, s_u0):
    srd(a, SA, 4, 5, 2048*1024)
    a(f"s_cmp_lt_u32 s{s_fw}, 2")
    a("s_cselect_b32 s46, s12, s14")
    a("s_cselect_b32 s47, s13, s15")
    a(f"s_lshl_b32 s44, s{s_u0}, 5")
    srd_off(a, SB, 46, 47, 44, 512*2752)

def up_dma_groups(vx, vw, s_lx, s_lw, s_xoff, s_woff):
    g = []
    for j in range(4):
        if j == 0: pre = [f"s_mov_b32 m0, s{s_lx}", f"s_mov_b32 s46, s{s_xoff}"]
        else: pre = ["s_add_u32 m0, m0, 4096", "s_add_u32 s46, s46, 32768"]
        g.append(pre + [f"buffer_load_dwordx4 v{vx}, s[{SA}:{SA+3}], s46 offen lds"])
    for j in range(6):
        if j == 0: pre = [f"s_mov_b32 m0, s{s_lw}", f"s_add_u32 s46, s{s_woff}, {16*2752}"]
        else: pre = ["s_add_u32 m0, m0, 1024", "s_nop 0"]
        so = s_woff if j < 3 else 46
        g.append(pre + [f"buffer_load_dwordx4 v{vw[j%3]}, s[{SB}:{SB+3}], s{so} offen lds"])
    return g

def srd_off(a, d, lo, hi, s_off, total):
    a(f"s_add_u32 s{d}, s{lo}, s{s_off}")
    a(f"s_addc_u32 s{d+1}, s{hi}, 0")
    a(f"s_and_b32 s{d+1}, s{d+1}, 0xffff")
    a(f"s_sub_u32 s{d+2}, {total}, s{s_off}")
    a(f"s_mov_b32 s{d+3}, 0x20000")

def dma_lanes(a, vr8, vc8, vx0, vx1, t, s_rb, s_w):
    a(f"v_lshrrev_b32 v{vr8}, 3, v0")
    a(f"v_and_b32 v{t}, 7, v0")
    a(f"v_lshrrev_b32 v{t+1}, 1, v{vr8}")
    a(f"v_xor_b32 v{t+2}, v{t}, v{t+1}")
    a(f"v_lshlrev_b32 v{t+2}, 4, v{t+2}")
    a(f"s_lshl_b32 s44, s{s_rb}, 7")
    a(f"s_lshl_b32 s45, s{s_w}, 5")
    a("s_add_u32 s44, s44, s45")
    a(f"v_add_u32 v{vx0}, s44, v{vr8}")
    a(f"v_lshl_add_u32 v{vx0}, v{vx0}, 10, v{t+2}")
    a(f"v_xor_b32 v{vx1}, 64, v{vx0}")
    a(f"v_add_u32 v{vx1}, 8192, v{vx1}")
    a(f"v_lshlrev_b32 v{t+1}, 2, v{t+1}")
    a(f"v_and_b32 v{t+1}, 4, v{t+1}")
    a(f"v_xor_b32 v{t}, v{t}, v{t+1}")
    a(f"v_lshlrev_b32 v{vc8}, 4, v{t}")

def dma_lds(a, s_lx, s_lw, s_w):
    a(f"s_lshl_b32 s{s_lx}, s{s_w}, 12")
    a(f"s_lshr_b32 s46, s{s_w}, 1")
    a(f"s_and_b32 s47, s{s_w}, 1")
    a(f"s_mul_i32 s44, s46, {TU-TG}")
    a("s_lshl_b32 s45, s47, 12")
    a("s_add_u32 s44, s44, s45")
    a(f"s_add_u32 s{s_lw}, s44, {TG}")

def start_stage(a, mode, s_lc, s_w, s_xoff, s_woff, pitch):
    if mode == 1:
        a(f"s_lshl_b32 s44, s{S_LOC}, 1")
        a(f"s_add_u32 s44, s44, s{s_lc}")
        a("s_and_b32 s44, s44, 7")
    elif mode == 2:
        a(f"s_lshl_b32 s44, s{S_LOC}, 1")
        a("s_and_b32 s44, s44, 7")
    else:
        a("s_mov_b32 s44, 0")
    a(f"s_lshl_b32 s{s_xoff}, s44, 7")
    a("s_lshl_b32 s44, s44, 1")
    a(f"s_and_b32 s45, s{s_w}, 1")
    a("s_add_u32 s44, s44, s45")
    a("s_lshl_b32 s44, s44, 5")
    a(f"s_mul_i32 s{s_woff}, s44, {pitch}")

def ffn_srd(a, s_w, s_u):
    a(f"s_cmp_lt_u32 s{s_w}, 2")
    a("s_cselect_b32 s46, s12, s14")
    a("s_cselect_b32 s47, s13, s15")
    a(f"s_lshl_b32 s44, s{s_u}, 5")
    a(f"s_add_u32 s{SB}, s46, s44")
    a(f"s_addc_u32 s{SB+1}, s47, 0")
    a(f"s_and_b32 s{SB+1}, s{SB+1}, 0xffff")
    a(f"s_sub_u32 s{SB+2}, {512*2752}, s44")
    a(f"s_mov_b32 s{SB+3}, 0x20000")

class LQ:
    def __init__(self): self.q = []
    def push(self, tag): self.q.append(tag)
    def need(self, tag):
        if tag not in self.q: return None
        i = len(self.q) - 1 - self.q[::-1].index(tag)
        n = len(self.q) - 1 - i
        self.q = self.q[i+1:]
        return n

def a_waves(a, st):
    R = Regs(4)
    vt = R.alloc(); vt2 = R.alloc(); vt3 = R.alloc(); vt4 = R.alloc()
    kaddr = R.alloc(); vaddr = R.alloc(); vcnt = R.alloc(); vstep = R.alloc(); vmask = R.alloc()
    vx0 = R.alloc(); vx1 = R.alloc(); vw = R.alloc()
    GG = R.alloc(4)
    vr8, vc8, vxu = GG, GG+1, GG+2
    Q = [R.alloc(4), R.alloc(4)]; KR = R.alloc(4); V0 = R.alloc(4); V1 = R.alloc(4)
    P = R.alloc(4); S = [R.alloc(16), R.alloc(16)]
    IDX = R.alloc(); vkp = R.alloc()
    O = [R.alloc(16), R.alloc(16)]; C = [R.alloc(16), R.alloc(16)]
    s_head, s_T, s_c, s_kg, s_vg, s_ld, s_tgt = 48, 49, 50, 51, 52, 53, 54
    s_q0, s_q1, s_slot, s_step, s_tok = 55, 56, 57, 58, 59
    a(f"s_cmp_ge_u32 s{S_WAVE}, 4")
    a("s_cbranch_scc1 L_help0")
    s_rb, s_lc, s_um, s_ue = 48, 49, 50, 51
    s_xoff, s_woff, s_lslot, s_cnt, s_lx, s_lw, s_pitch, s_xslot, s_xu, s_lxu = 52, 53, 54, 55, 56, 57, 58, 59, 60, 61
    JUNK = S[0]
    a(f"s_cmp_ge_u32 s{S_LOC}, 24")
    a("s_cbranch_scc1 L_pf")
    tile_ids(a, s_rb, s_lc)
    dma_lanes(a, vr8, vc8, vx0, vx1, vt2, s_rb, S_WAVE)
    dma_lds(a, s_lx, s_lw, S_WAVE)
    a(f"s_mov_b32 s{s_lslot}, {TS0+TSTR}")
    a(f"s_mov_b32 s{s_cnt}, 0")
    start_stage(a, o.stag1, s_lc, S_WAVE, s_xoff, s_woff, 3072)
    if o.rot:
        a(f"s_mov_b32 s63, s{s_woff}")
        a(f"s_add_u32 s62, s{S_LOC}, s{s_lc}")
        a(f"s_and_b32 s62, s62, {o.rot}")
        a(f"s_lshl_b32 s{s_xoff}, s62, 7")
        a(f"s_mul_i32 s44, s62, {64*3072}")
        a(f"s_add_u32 s{s_woff}, s44, s63")
    a(f"v_mul_u32_u24 v{vw}, 3072, v{vr8}")
    a(f"s_lshr_b32 s44, s{S_XCD}, 2")
    a("s_mul_i32 s44, s44, 6")
    a(f"s_add_u32 s44, s44, s{s_lc}")
    a("s_lshl_b32 s44, s44, 1")
    a("s_add_u32 s44, s44, s46")
    a("s_lshl_b32 s44, s44, 7")
    a(f"v_add3_u32 v{vw}, v{vw}, v{vc8}, s44")
    a("s_waitcnt lgkmcnt(0)")
    srd(a, SA, 4, 5, 2048*1024)
    srd(a, SB, 6, 7, 512*3072)
    a.label("L_ld0")
    a(f"s_add_u32 m0, s{s_lslot}, s{s_lx}")
    a(f"s_add_u32 s44, s{s_xoff}, 16384")
    for j in range(4):
        a(f"buffer_load_dwordx4 v{vx1 if j & 1 else vx0}, s[{SA}:{SA+3}], s{s_xoff if j < 2 else 44} offen lds")
        if j < 3: a("s_add_u32 m0, m0, 1024")
        else: a(f"s_add_u32 m0, s{s_lslot}, s{s_lw}")
        a([f"s_add_u32 s{s_cnt}, s{s_cnt}, 1", f"s_mov_b32 s45, s{s_woff}", f"s_add_u32 s{s_xoff}, s{s_xoff}, 128", "s_nop 0"][j])
    for j in range(4):
        a(f"buffer_load_dwordx4 v{vw}, s[{SB}:{SB+3}], s45 offen lds")
        if j < 3:
            a("s_add_u32 m0, m0, 1024")
            a(f"s_add_u32 s45, s45, {8*3072}")
    if o.rot:
        a(f"s_xor_b32 s44, s{s_cnt}, s62")
        a(f"s_cmp_lt_u32 s{s_cnt}, {o.rot+1}")
        a(f"s_cselect_b32 s44, s44, s{s_cnt}")
        a(f"s_lshl_b32 s{s_xoff}, s44, 7")
        a(f"s_mul_i32 s44, s44, {64*3072}")
        a(f"s_add_u32 s{s_woff}, s44, s63")
    else:
        a(f"s_add_u32 s{s_woff}, s{s_woff}, {64*3072}")
        a(f"s_and_b32 s{s_xoff}, s{s_xoff}, 1023")
        a(f"s_cselect_b32 s46, 0, {512*3072}")
        a(f"s_sub_u32 s{s_woff}, s{s_woff}, s46")
    a(f"s_add_u32 s{s_lslot}, s{s_lslot}, {TSTR}")
    a(f"s_cmp_eq_u32 s{s_lslot}, {TS0+3*TSTR}")
    a(f"s_cselect_b32 s{s_lslot}, {TS0}, s{s_lslot}")
    a(f"s_cmp_lt_u32 s{s_cnt}, 2")
    a("s_cbranch_scc1 L_ld0")
    a(f"s_cmp_eq_u32 s{s_cnt}, 8")
    a("s_cbranch_scc1 L_ld_end")
    a("s_waitcnt vmcnt(8)")
    a("s_barrier")
    a("s_branch L_ld0")
    a.label("L_pf")
    a(f"v_lshrrev_b32 v{vt}, 3, v0")
    a(f"v_and_b32 v{vt2}, 7, v0")
    a(f"v_lshlrev_b32 v{vt2}, 4, v{vt2}")
    a(f"v_lshl_add_u32 v{vx0}, v{vt}, 10, v{vt2}")
    a(f"v_mov_b32 v{vt3}, 1024")
    a(f"v_mov_b32 v{vt4}, 2560")
    a("v_cmp_gt_u32 vcc, 32, v0")
    a(f"s_sub_u32 s46, s{S_LOC}, 24")
    a("s_lshl_b32 s46, s46, 2")
    a(f"s_add_u32 s46, s46, s{S_WAVE}")
    a(f"v_cndmask_b32 v{vt3}, v{vt4}, v{vt3}, vcc")
    a(f"v_add_u32 v{vx1}, v{vt3}, v{V_L16}")
    a(f"s_and_b32 s44, s{S_XCD}, 3")
    a("s_lshl_b32 s44, s44, 5")
    a("s_add_u32 s44, s44, s46")
    a(f"s_lshl_b32 s{s_xoff}, s44, 14")
    a(f"s_add_u32 s{s_xoff}, s{s_xoff}, {128*o.pf0}")
    a(f"s_lshr_b32 s44, s{S_XCD}, 2")
    a("s_mul_i32 s44, s44, 1536")
    a(f"s_mul_i32 s{s_woff}, s46, {2*3072}")
    a(f"s_add_u32 s{s_woff}, s{s_woff}, s44")
    a(f"s_add_u32 s{s_woff}, s{s_woff}, {64*3072*o.pf0}")
    a(f"s_mov_b32 s{s_cnt}, {o.pf0}")
    a("s_waitcnt lgkmcnt(0)")
    srd(a, SA, 4, 5, 2048*1024)
    srd(a, SB, 6, 7, 512*3072)
    a(f"s_cmp_eq_u32 s{S_LOC}, 31")
    a("s_cbranch_scc0 L_pf1")
    a("s_sleep 4")
    a.label("L_pf1")
    a(f"s_add_u32 s44, s{s_xoff}, 8192")
    a(f"buffer_load_dwordx4 {v(JUNK,4)}, v{vx0}, s[{SA}:{SA+3}], s{s_xoff} offen")
    a(f"buffer_load_dwordx4 {v(JUNK,4)}, v{vx0}, s[{SA}:{SA+3}], s44 offen")
    a(f"buffer_load_dwordx4 {v(JUNK,4)}, v{V_L16}, s[{SB}:{SB+3}], s{s_woff} offen")
    a(f"buffer_load_dwordx4 {v(JUNK,4)}, v{vx1}, s[{SB}:{SB+3}], s{s_woff} offen")
    a(f"buffer_load_dwordx4 {v(JUNK,4)}, v{V_L16}, s[{SB}:{SB+3}], s{s_woff} offen offset:3584")
    a(f"s_add_u32 s{s_xoff}, s{s_xoff}, 128")
    a(f"s_add_u32 s{s_woff}, s{s_woff}, {64*3072}")
    a(f"s_add_u32 s{s_cnt}, s{s_cnt}, 1")
    a(f"s_cmp_lt_u32 s{s_cnt}, 8")
    a("s_cbranch_scc1 L_pf1")
    if o.pfup:
        if not o.pf31:
            a(f"s_cmp_eq_u32 s{S_LOC}, 31")
            a("s_cbranch_scc1 L_pf3")
        srd(a, SB, 12, 13, 512*2752)
        srd(a, SC, 14, 15, 512*2752)
        a(f"s_and_b32 s44, s{S_XCD}, 1")
        a(f"s_lshr_b32 s45, s{S_XCD}, 2")
        a("s_lshl_b32 s45, s45, 1")
        a("s_add_u32 s44, s44, s45")
        a("s_lshl_b32 s44, s44, 2")
        a("s_mul_i32 s45, s44, 5")
        a("s_min_u32 s44, s44, 6")
        a("s_add_u32 s44, s44, s45")
        a("s_lshl_b32 s44, s44, 5")
        a(f"s_mul_i32 s{s_woff}, s46, 2752")
        a(f"s_add_u32 s{s_woff}, s{s_woff}, s44")
        a(f"s_and_b32 s44, s{S_XCD}, 3")
        a("s_xor_b32 s44, s44, 1")
        a("s_lshl_b32 s44, s44, 5")
        a("s_add_u32 s44, s44, s46")
        a(f"s_lshl_b32 s{s_xoff}, s44, 14")
        a(f"s_mov_b32 s{s_cnt}, 0")
        a.label("L_pf2")
        a("s_mov_b32 exec_hi, 0x3ffff")
        a(f"buffer_load_dwordx4 {v(JUNK,4)}, v{V_L16}, s[{SB}:{SB+3}], s{s_woff} offen")
        a(f"buffer_load_dwordx4 {v(JUNK,4)}, v{V_L16}, s[{SC}:{SC+3}], s{s_woff} offen")
        a("s_mov_b32 exec_hi, -1")
        a(f"buffer_load_dwordx4 {v(JUNK,4)}, v{vx0}, s[{SA}:{SA+3}], s{s_xoff} offen")
        a(f"s_add_u32 s{s_woff}, s{s_woff}, {32*2752}")
        a(f"s_add_u32 s{s_cnt}, s{s_cnt}, 1")
        a(f"s_bitcmp1_b32 s{s_cnt}, 0")
        a(f"s_mov_b32 s44, {(128-8192) & 0xffffffff}")
        a("s_cselect_b32 s44, 8192, s44")
        a(f"s_add_u32 s{s_xoff}, s{s_xoff}, s44")
        a(f"s_cmp_lt_u32 s{s_cnt}, {o.pfup}")
        a("s_cbranch_scc1 L_pf2")
    a.label("L_pf3")
    for i in range(6): a("s_barrier")
    a.label("L_ld_end")
    srd(a, SWS, 24, 25, WS_BYTES)
    a("s_waitcnt vmcnt(8)")
    a("s_barrier")
    a("s_waitcnt vmcnt(0)")
    a("s_branch L_b7")

    a.label("L_help0")
    GT = S[0]
    a(f"v_lshl_add_u32 v{vt2}, v0, 2, v{V_MISC}")
    a(f"v_mov_b32 v{vt}, 0")
    a(f"ds_write_b32 v{vt2}, v{vt}")
    a("s_lshl_b32 s46, s2, 3")
    a(f"s_lshl_b32 s45, s{S_WAVE}, 1")
    a("s_add_u32 s46, s46, s45")
    a(f"s_sub_u32 s{s_tok}, s46, 8")
    a(f"s_lshl_b32 s44, s{s_tok}, 10")
    a("s_waitcnt lgkmcnt(0)")
    srd(a, SA, 4, 5, 2048*1024)
    srd(a, SB, 18, 19, 1024)
    srd(a, SWS, 24, 25, WS_BYTES)
    srd(a, SC, 22, 23, 256)
    a(f"s_cmp_eq_u32 s{S_WAVE}, 4")
    a("s_cbranch_scc0 L_help2")
    a(f"s_cmp_eq_u32 s{S_LOC}, 31")
    a("s_cbranch_scc0 L_help2")
    a("s_setprio 3")
    a(f"s_add_u32 s46, s24, {W0}")
    a("s_addc_u32 s47, s25, 0")
    a("s_load_dword s45, s[46:47], 0 glc")
    for i in range(4): a(f"v_mov_b32 v{GT+i}, 0")
    a(f"s_lshl_b32 s46, s{S_XCD}, 12")
    a(f"s_add_u32 s46, s46, {CNT}")
    for i in range(4):
        a(f"buffer_store_dwordx4 {v(GT,4)}, v{V_L16}, s[{SWS}:{SWS+3}], s46 offen offset:{i*1024} sc1")
    a("s_waitcnt lgkmcnt(0)")
    a("s_mul_i32 s45, s45, 0x19660d")
    a("s_add_u32 s45, s45, 0x3c6ef35f")
    a("s_max_u32 s45, s45, 1")
    a(f"v_mov_b32 v{vt3}, s45")
    a(f"s_lshl_b32 s46, s{S_XCD}, 2")
    a("s_waitcnt vmcnt(0)")
    a("s_mov_b64 exec, 1")
    a(f"buffer_store_dword v{vt3}, off, s[{SC}:{SC+3}], s46 sc1")
    a("s_mov_b64 exec, -1")
    a("s_setprio 0")
    if st.en:
        a("s_memrealtime s[96:97]"); a("s_waitcnt lgkmcnt(0)"); a("s_sub_u32 s95, s96, s70")
    a.label("L_help2")
    a(f"buffer_load_dwordx4 {v(GT,4)}, v{V_L16}, s[{SB}:{SB+3}], 0 offen")
    a(f"buffer_load_dwordx4 {v(GT+4,4)}, v{V_L16}, s[{SA}:{SA+3}], s44 offen")
    a(f"buffer_load_dwordx4 {v(GT+8,4)}, v{V_L16}, s[{SA}:{SA+3}], s44 offen offset:1024")
    a.label("L_help3")
    if o.ctouch:
        a(f"s_cmp_eq_u32 s{S_WAVE}, 5")
        a("s_cbranch_scc0 L_help4")
        a("s_getpc_b64 s[46:47]")
        a.label("L_pc")
        a(f"s_sub_u32 s46, s46, L_pc-{KN}")
        a("s_subb_u32 s47, s47, 0")
        a(f"s_lshl_b32 s44, s{S_LOC}, 9")
        a(f"s_min_u32 s44, s44, L_code_end-{KN}-512")
        a("s_add_u32 s46, s46, s44")
        a("s_addc_u32 s47, s47, 0")
        for i in range(8):
            a(f"s_load_dword s44, s[46:47], {64*i}")
        a("s_waitcnt lgkmcnt(0)")
    a.label("L_help4")
    a("s_barrier")
    st.stamp(2)
    a("s_barrier")
    a("s_waitcnt vmcnt(0)")
    for r in range(2):
        a(f"v_mov_b32 v{vt3+r}, 0")
    for i in range(4):
        for r in range(2):
            a(f"v_dot2c_f32_bf16 v{vt3+r}, v{GT+4+4*r+i}, v{GT+i}")
    a("s_nop 2")
    for dpp in ["row_shr:1", "row_shr:2", "row_shr:4", "row_shr:8", "row_bcast:15 row_mask:0xa", "row_bcast:31 row_mask:0xc"]:
        a("s_nop 0")
        for r in range(2):
            a(f"v_add_f32_dpp v{vt3+r}, v{vt3+r}, v{vt3+r} {dpp}")
    a("s_barrier")
    for r in range(2): a(f"v_mul_f32 v{vt3+r}, {f32bits(-LOG2E)}, v{vt3+r}")
    for r in range(2): a(f"v_exp_f32 v{vt3+r}, v{vt3+r}")
    a("s_nop 0")
    for r in range(2): a(f"v_add_f32 v{vt3+r}, 1.0, v{vt3+r}")
    for r in range(2): a(f"v_rcp_f32 v{GG+2*r}, v{vt3+r}")
    a(f"v_and_b32 v{vt2}, 7, v0")
    a(f"v_lshlrev_b32 v{vt2}, 2, v{vt2}")
    a("s_barrier")
    a("s_barrier")
    a(f"s_cmp_eq_u32 s{S_WAVE}, 4")
    a("s_cbranch_scc0 L_help5")
    a(f"buffer_load_dword v{vt}, v{vt2}, s[{SC}:{SC+3}], 0 offen sc1")
    a.label("L_help5")
    a("s_barrier")
    a("s_barrier")
    a("s_barrier")
    a(f"s_cmp_eq_u32 s{S_WAVE}, 4")
    a("s_cbranch_scc0 L_b7x")
    a(f"s_mov_b32 s{S_SPIN}, 0")
    a.label("L_np")
    a("s_waitcnt vmcnt(0)")
    a(f"v_cmp_eq_u32 vcc, 0, v{vt}")
    a(f"s_cmp_gt_u32 s{S_SPIN}, 200000")
    a("s_cbranch_scc1 L_ng")
    a("s_cbranch_vccz L_ng")
    a(f"s_add_u32 s{S_SPIN}, s{S_SPIN}, 1")
    a("s_sleep 4")
    a(f"buffer_load_dword v{vt}, v{vt2}, s[{SC}:{SC+3}], 0 offen sc1")
    a("s_branch L_np")
    a.label("L_ng")
    if st.en: a(f"s_add_u32 s100, s{S_SPIN}, 1")
    a("s_mov_b64 exec, 1")
    a(f"ds_write_b32 v{V_MISC}, v{vt} offset:{L_NONCE}")
    a("s_cmp_eq_u32 s2, 255")
    a("s_cbranch_scc0 L_nw")
    a(f"s_mov_b32 s44, {W0}")
    a(f"buffer_store_dword v{vt}, off, s[{SWS}:{SWS+3}], s44 sc1")
    a.label("L_nw")
    a("s_mov_b64 exec, -1")
    a("s_branch L_b7x")
    a.label("L_b7")
    a("s_barrier")
    a.label("L_b7x")
    a("s_sleep 8")
    st.stamp(3)
    a(f"s_lshl_b32 s44, s{S_XCD}, 2")
    a(f"s_and_b32 s45, s{S_LOC}, 3")
    a(f"s_add_u32 s{s_head}, s44, s45")
    a(f"s_lshr_b32 s44, s{S_LOC}, 2")
    a("s_lshl_b32 s44, s44, 3")
    a(f"s_and_b32 s45, s{S_WAVE}, 3")
    a("s_lshl_b32 s45, s45, 1")
    a("s_add_u32 s44, s44, s45")
    a(f"s_lshr_b32 s46, s{S_WAVE}, 2")
    a(f"s_add_u32 s{s_T}, s44, s46")
    a(f"s_lshl_b32 s44, s{s_head}, 16")
    a(f"s_lshl_b32 s{s_ld}, s{S_WAVE}, 10")
    a(f"s_add_u32 s{s_kg}, s44, s{s_ld}")
    a(f"s_add_u32 s{s_vg}, s{s_kg}, {VF}")
    a(f"s_add_u32 s{s_kg}, s{s_kg}, {KF}")
    a(f"s_lshl_b32 s45, s{s_T}, 10")
    a(f"s_add_u32 s{s_q0}, s44, s45")
    a(f"s_xor_b32 s{s_q1}, s{s_q0}, 1024")
    a("s_lshl_b32 s46, s46, 12")
    a(f"v_and_b32 v{vkp}, 51, v0")
    a(f"v_bfe_u32 v{vt3}, v0, 2, 1")
    a(f"v_lshl_or_b32 v{vkp}, v{vt3}, 3, v{vkp}")
    a(f"v_bfe_u32 v{vt3}, v0, 3, 1")
    a(f"v_lshl_or_b32 v{vkp}, v{vt3}, 2, v{vkp}")
    a(f"v_lshlrev_b32 v{vkp}, 4, v{vkp}")
    a(f"v_add_u32 v{kaddr}, s46, v{vkp}")
    a(f"v_mov_b32 v{IDX}, 0xdddddddd")
    a(f"v_and_b32 v{vt3}, 15, v0")
    a(f"v_lshlrev_b32 v{vt3}, 4, v{vt3}")
    a(f"v_lshrrev_b32 v{vt4}, 5, v0")
    a(f"v_lshl_add_u32 v{vt4}, v{vt4}, 8, v{vt3}")
    a("s_add_u32 s46, s46, 8192")
    a(f"v_add_u32 v{vaddr}, s46, v{vt4}")
    a(f"v_and_b32 v{vt4}, 16, v0")
    a(f"v_cmp_ne_u32 vcc, 0, v{vt4}")
    a(f"v_add_u32 v{vt3}, {VCONST}, v{vt3}")
    a(f"v_mov_b32 v{vstep}, 16384")
    a(f"v_mov_b32 v{vmask}, 0xffff")
    a(f"v_cndmask_b32 v{vaddr}, v{vaddr}, v{vt3}, vcc")
    a(f"v_cndmask_b32 v{vstep}, v{vstep}, 0, vcc")
    a(f"v_cndmask_b32 v{vmask}, v{vmask}, -1, vcc")
    a(f"s_lshl_b32 s44, s{S_WAVE}, 9")
    a(f"v_add_u32 v{vcnt}, s44, v{vt3}")
    a(f"v_and_b32 v{vt4}, 27, v0")
    a(f"v_cmp_eq_u32 vcc, 16, v{vt4}")
    a(f"v_mov_b32 v{vt3}, 0x3f803f80")
    a(f"s_mov_b32 s{s_c}, 0")
    a(f"s_mov_b32 s{s_tgt}, 16")
    for i in range(4):
        a(f"v_cndmask_b32 v{V1+i}, 0, v{vt3}, vcc")
    a("s_mov_b32 exec_lo, 0xffff0000")
    a("s_mov_b32 exec_hi, 0")
    a(f"ds_write_b128 v{vcnt}, {v(V1,4)}")
    a("s_mov_b64 exec, -1")
    a(f"v_mov_b32 v{P}, 0")
    a(f"v_mov_b32 v{P+1}, 0")
    for i in range(16): a(f"v_pk_mov_b32 {v(O[0]+2*i,2)}, {v(P,2)}, {v(P,2)}")
    a(f"s_mov_b32 s{s_slot}, 49152")
    a(f"s_cmp_eq_u32 s{S_WAVE}, 0")
    a("s_cbranch_scc0 L_at_waitgo")
    a(f"s_lshr_b32 s44, s{S_XCD}, 1")
    a("s_lshl_b32 s44, s44, 1")
    a(f"s_bfe_u32 s45, s{S_LOC}, 0x10001")
    a("s_add_u32 s44, s44, s45")
    a("s_lshl_b32 s44, s44, 10")
    a(f"s_add_u32 s44, s44, {CQ}")
    a(f"v_min_u32 v{vw}, 5, v0")
    a(f"v_lshlrev_b32 v{vw}, 7, v{vw}")
    lds_wait_ge(a, "atpost", V_MISC, L_POST, "4", vt)
    a(f"s_cmp_ge_u32 s{S_LOC}, 24")
    a("s_cbranch_scc1 L_at_pp")
    a(f"s_sleep {o.pdelay}")
    a("s_branch L_at_ppd")
    a.label("L_at_pp")
    a(f"s_lshl_b32 s45, s{S_XCD}, 10")
    a(f"s_add_u32 s45, s45, {CQ + 6*128}")
    poll(a, "atp", vt, None, 45, 1, 4)
    if o.ppdelay: a(f"s_sleep {o.ppdelay}")
    a.label("L_at_ppd")
    st.stamp(2)
    poll(a, "atq", vt, vw, 44, 16, o.psleep)
    if st.en: a(f"s_mov_b32 s101, s{S_SPIN}")
    a(f"ds_write_b32 v{V_MISC}, v{V_ONE} offset:{L_GO}")
    a("s_branch L_at_go")
    a.label("L_at_waitgo")
    lds_wait_ge(a, "atgo", V_MISC, L_GO, "1", vt)
    a.label("L_at_go")
    st.stamp(4)
    def dma(lit=None):
        if lit is not None: a(f"s_add_u32 m0, s{s_ld}, {lit}")
        else: a(f"s_add_u32 m0, s{s_ld}, s{s_slot}")
        a("s_nop 0")
        a(f"buffer_load_dwordx4 v{V_L16}, s[{SWS}:{SWS+3}], s{s_kg} offen sc1 lds")
        a("s_add_u32 m0, m0, 8192")
        a(f"s_add_u32 s{s_kg}, s{s_kg}, 8192")
        a(f"buffer_load_dwordx4 v{V_L16}, s[{SWS}:{SWS+3}], s{s_vg} offen sc1 lds")
        a(f"s_add_u32 s{s_vg}, s{s_vg}, 8192")
    a(f"buffer_load_dwordx4 {v(Q[0],4)}, v{V_L16}, s[{SWS}:{SWS+3}], s{s_q0} offen sc1")
    a(f"buffer_load_dwordx4 {v(Q[1],4)}, v{V_L16}, s[{SWS}:{SWS+3}], s{s_q1} offen sc1")
    dma(0)
    a(f"ds_read_b32 v{vx1}, v{V_MISC} offset:{L_NONCE}")
    a("s_waitcnt vmcnt(0) lgkmcnt(0)")
    lds_arrive(a, V_MISC, L_ATT)
    dma(16384); dma(32768)
    a(f"s_cmp_ge_u32 s{S_WAVE}, 4")
    a("s_cbranch_scc0 L_at_nogst")
    a(f"v_mov_b32 v{GG+1}, v{vx1}")
    a(f"v_mov_b32 v{GG+3}, v{vx1}")
    a(f"s_lshl_b32 s44, s{s_tok}, 3")
    a(f"s_add_u32 s44, s44, {GA}")
    a("s_mov_b32 exec_lo, 0")
    a("s_brev_b32 exec_hi, 1")
    a(f"buffer_store_dwordx4 {v(GG,4)}, off, s[{SWS}:{SWS+3}], s44 sc1")
    a("s_mov_b64 exec, -1")
    a.label("L_at_nogst")
    lds_wait_ge(a, "at0", V_MISC, L_ATT, "8", vt, sleep=0)
    st.stamp(5)
    a(f"ds_read_b128 {v(V0,4)}, v{V_L16}")
    a(f"ds_read_b128 {v(KR,4)}, v{kaddr}")
    a("s_waitcnt lgkmcnt(1)")
    for q in range(2):
        a(f"{MF} {v(S[q],16)}, {v(V0,4)}, {v(Q[q],4)}, 0")
    a(f"ds_read_b128 {v(V0,4)}, v{vaddr}")
    a("s_nop 9")
    def maxtree(dst, src, first):
        if first:
            a(f"v_max3_f32 v{dst}, v{src}, v{src+1}, v{src+2}")
            rest = list(range(3, 16))
        else:
            rest = list(range(0, 16))
        while len(rest) >= 2:
            a(f"v_max3_f32 v{dst}, v{dst}, v{src+rest[0]}, v{src+rest[1]}")
            rest = rest[2:]
        if rest:
            a(f"v_max_f32 v{dst}, v{dst}, v{src+rest[0]}")
    def setC(q):
        a(f"v_mov_b32 v{vt2}, v{vt}")
        a("s_nop 1")
        a(f"v_permlane32_swap_b32 v{vt}, v{vt2}")
        a("s_nop 1")
        a(f"v_max_f32 v{vt}, v{vt}, v{vt2}")
        a(f"v_sub_f32 v{C[q]}, 0, v{vt}")
        a(f"v_sub_f32 v{C[q]+1}, 0, v{vt}")
        for i in range(1, 8):
            a(f"v_pk_mov_b32 {v(C[q]+2*i,2)}, {v(C[q],2)}, {v(C[q],2)}")
    maxtree(vt, S[0], True)
    setC(0)
    a("s_waitcnt lgkmcnt(0)")
    a("s_nop 0")
    maxtree(vt, S[1], True)
    a(f"{MF} {v(S[0],16)}, {v(KR,4)}, {v(Q[0],4)}, {v(C[0],16)}")
    setC(1)
    for i in range(4):
        a(f"v_pk_mov_b32 {v(S[1]+8+2*i,2)}, {v(P,2)}, {v(P,2)}")
    def e(cur, i): a(f"v_exp_f32 v{cur+i}, v{cur+i}")
    c0, c1, c2 = [int(x) for x in o.cuts.split(",")]
    def body(emit, lq):
        def A(s):
            if emit: a(s)
        def w(tag):
            n = lq.need(tag)
            if n is not None: A(f"s_waitcnt lgkmcnt({n})")
        def E(cur, lo, hi):
            if emit:
                for i in range(lo, hi): e(cur, i)
        def rdv(reg, off, tag):
            A(f"ds_read_b128 {v(reg,4)}, v{vaddr} offset:{off}")
            lq.push(tag)
        for tt in range(4):
            for q in range(2):
                cur = S[q]; nxt = S[q ^ 1]
                stp = 2*tt + q
                if o.aprio >= 3 and stp in (0, o.aprio+1):
                    lab = a.newlabel("pr") if emit else ""
                    A(f"s_cmp_ge_u32 s{S_WAVE}, 4")
                    A(f"s_cbranch_scc1 {lab}")
                    A(f"s_setprio {1 if stp == 0 else 0}")
                    if emit: a.label(lab)
                E(cur, 0, c0)
                if q == 1: w("K")
                A(f"{SM} {v(O[q^1],16)}, {v(V1,4)}, {v(nxt+8,8)}, v{IDX}")
                if q == 0:
                    rdv(V1, tt*1024 + 512, "V1")
                if stp == o.xat:
                    if emit: st.abeg()
                    A("s_waitcnt vmcnt(2)")
                    if emit: st.aend(0)
                    A("s_mov_b64 exec, 1")
                    A(f"ds_add_u32 v{V_MISC}, v{V_ONE} offset:{L_ATT}")
                    A("s_mov_b64 exec, -1")
                    lq.push("X")
                if tt == 2 and q == 1:
                    A(f"ds_read_b32 v{vcnt}, v{V_MISC} offset:{L_ATT}")
                    lq.push("CNT")
                E(cur, c0, c1)
                A(f"{MF} {v(nxt,16)}, {v(KR,4)}, {v(Q[q^1],4)}, {v(C[q^1],16)}")
                if q == 0:
                    if tt == 3:
                        w("V0")
                        A(f"v_cmp_gt_u32 vcc, s{s_tgt}, v{vcnt}")
                        A(f"v_add_u32 v{kaddr}, s{s_step}, v{kaddr}")
                        A("s_cbranch_vccnz L_at_slow")
                        if emit: a.label("L_at_back")
                        A(f"ds_read_b128 {v(KR,4)}, v{kaddr}")
                    else:
                        A(f"ds_read_b128 {v(KR,4)}, v{kaddr} offset:{(tt+1)*1024}")
                    lq.push("K")
                E(cur, c1, c2)
                if q == 0: w("V0")
                A(f"{SM} {v(O[q],16)}, {v(V0,4)}, {v(cur,8)}, v{IDX}")
                if q == 1:
                    if tt == 3:
                        A(f"v_add_u32 v{vaddr}, v{vstep}, v{vaddr}")
                        A(f"v_and_b32 v{vaddr}, v{vmask}, v{vaddr}")
                        rdv(V0, 0, "V0")
                    else:
                        rdv(V0, (tt+1)*1024, "V0")
                if tt == 3 and q == 0 and emit:
                    a(f"s_cmp_lt_u32 s{s_c}, 5")
                    a("s_cbranch_scc0 L_at_nodma")
                    st.abeg()
                    dma()
                    st.aend(2)
                    a(f"s_add_u32 s{s_slot}, s{s_slot}, 16384")
                    a(f"s_and_b32 s{s_slot}, s{s_slot}, 0xffff")
                    a.label("L_at_dmadone")
                E(cur, c2, 16)
    lq = LQ()
    body(False, lq)
    steady = list(lq.q)
    if o.aprio:
        a(f"s_cmp_lt_u32 s{S_WAVE}, 4")
        a("s_cbranch_scc1 L_at_np")
        a("s_setprio 1")
        a.label("L_at_np")
    st.stamp(8)
    a(".p2align 6")
    a.label("L_at_loop")
    a(f"s_cmp_eq_u32 s{s_c}, 3")
    a(f"s_mov_b32 s44, {(-49152) & 0xffffffff}")
    a(f"s_cselect_b32 s{s_step}, s44, 16384")
    body(True, lq)
    assert lq.q == steady, (lq.q, steady)
    a(f"s_add_u32 s{s_c}, s{s_c}, 1")
    a(f"s_add_u32 s{s_tgt}, s{s_tgt}, 8")
    a(f"s_cmp_lt_u32 s{s_c}, 8")
    a("s_cbranch_scc1 L_at_loop")
    st.stamp(9)
    a(f"{SM} {v(O[1],16)}, {v(V1,4)}, {v(S[1]+8,8)}, v{IDX}")
    a(f"s_mul_i32 s44, s{S_WAVE}, 3072")
    a(f"s_xor_b32 s45, s{S_WAVE}, 4")
    a(f"v_add_u32 v{kaddr}, s44, v{V_L16}")
    a("s_mul_i32 s45, s45, 3072")
    a(f"v_add_u32 v{vaddr}, s45, v{V_L16}")
    a(f"s_and_b32 s44, s{S_WAVE}, 3")
    a(f"v_lshl_add_u32 v{vt3}, s44, 2, v{V_MISC}")
    a(f"s_lshl_b32 s46, s{s_T}, 5")
    a(f"s_add_u32 s46, s46, s{s_head}")
    a("s_lshl_b32 s46, s46, 10")
    a(f"s_add_u32 s{s_q0}, s46, {OF}")
    a(f"s_lshl_b32 s44, s{s_T}, 1")
    a(f"s_lshr_b32 s45, s{s_head}, 4")
    a("s_add_u32 s44, s44, s45")
    a("s_lshl_b32 s44, s44, 7")
    a(f"s_add_u32 s{s_q1}, s44, {CO}")
    for i in range(3):
        a(f"ds_write_b128 v{kaddr}, {v(O[1]+4*i,4)} offset:{16384+i*1024}")
    a("s_waitcnt lgkmcnt(0)")
    lds_arrive(a, vt3, L_PAIR)
    a(f"s_mov_b32 s{S_SPIN}, 0")
    a.label("L_at_pair")
    a(f"ds_read_b32 v{vt}, v{vt3} offset:{L_PAIR}")
    for i in range(3):
        a(f"ds_read_b128 {v(O[1]+4*i,4)}, v{vaddr} offset:{16384+i*1024}")
    a(f"s_add_u32 s{S_SPIN}, s{S_SPIN}, 1")
    a("s_waitcnt lgkmcnt(0)")
    a(f"v_cmp_gt_u32 vcc, 2, v{vt}")
    a(f"s_cmp_gt_u32 s{S_SPIN}, 2000000")
    a("s_cbranch_scc1 L_at_pok")
    a("s_cbranch_vccz L_at_pok")
    a("s_sleep 1")
    a("s_branch L_at_pair")
    a.label("L_at_pok")
    a(f"v_add_f32 v{O[0]+8}, v{O[0]+8}, v{O[1]+8}")
    for i in range(4):
        a(f"v_pk_add_f32 {v(O[0]+2*i,2)}, {v(O[0]+2*i,2)}, {v(O[1]+2*i,2)}")
    a(f"v_mov_b32 v{vt}, {f32bits(2.0**30)}")
    a(f"v_cmp_nle_f32 vcc, v{O[0]+8}, v{vt}")
    a(f"v_pk_mul_f32 {v(S[0],2)}, {v(O[0],2)}, 0")
    for i in range(1, 4):
        a(f"v_pk_fma_f32 {v(S[0],2)}, {v(O[0]+2*i,2)}, 0, {v(S[0],2)}")
    a(f"v_cmp_u_f32 s[44:45], v{S[0]}, v{S[0]+1}")
    a(f"v_rcp_f32 v{vt}, v{O[0]+8}")
    a("s_nop 2")
    a("s_or_b64 vcc, vcc, s[44:45]")
    a("s_cbranch_vccnz L_at_fallback")
    a.label("L_at_fin")
    for i in range(4):
        a(f"v_pk_mul_f32 {v(O[0]+2*i,2)}, {v(O[0]+2*i,2)}, {v(vt,2)} op_sel_hi:[1,0]")
    for i in range(4):
        a(f"v_cvt_pk_bf16_f32 v{P+i}, v{O[0]+2*i}, v{O[0]+2*i+1}")
    a(f"buffer_store_dwordx4 {v(P,4)}, v{V_L16}, s[{SWS}:{SWS+3}], s{s_q0} offen sc1")
    st.stamp(10)
    post(a, s_q1)
    st.stamp(11)
    finish(a, st)
    a.label("L_at_nodma")
    a("s_waitcnt vmcnt(0)")
    a("s_branch L_at_dmadone")
    a.label("L_at_slow")
    st.abeg()
    lds_wait_ge(a, "ats", V_MISC, L_ATT, f"s{s_tgt}", vcnt)
    st.aend(1)
    a("s_branch L_at_back")
    def fallback():
        a.label("L_at_fallback")
        a(f"s_lshl_b32 s46, s{s_head}, 16")
        a(f"s_add_u32 s{s_kg}, s46, {KF}")
        a(f"v_mov_b32 v{vt}, 0xff800000")
        a(f"s_mov_b32 s{s_c}, 0")
        a.label("L_at_fb1")
        a(f"buffer_load_dwordx4 {v(KR,4)}, v{V_L16}, s[{SWS}:{SWS+3}], s{s_kg} offen sc1")
        a(f"s_add_u32 s{s_kg}, s{s_kg}, 1024")
        a("s_waitcnt vmcnt(0)")
        a(f"{MF} {v(S[0],16)}, {v(KR,4)}, {v(Q[0],4)}, 0")
        a("s_nop 15")
        maxtree(vt, S[0], False)
        a(f"s_add_u32 s{s_c}, s{s_c}, 1")
        a(f"s_cmp_lt_u32 s{s_c}, 64")
        a("s_cbranch_scc1 L_at_fb1")
        setC(0)
        for i in range(16):
            a(f"v_mov_b32 v{O[0]+i}, 0")
        a(f"v_and_b32 v{vt}, 15, v0")
        a(f"v_lshlrev_b32 v{vt}, 4, v{vt}")
        a(f"v_lshrrev_b32 v{vt2}, 5, v0")
        a(f"v_lshl_add_u32 v{vaddr}, v{vt2}, 8, v{vt}")
        a(f"s_add_u32 s{s_kg}, s46, {KF}")
        a(f"s_add_u32 s{s_vg}, s46, {VF}")
        a(f"s_mov_b32 s{s_c}, 0")
        a("s_mov_b32 s44, 0xffff")
        a("s_mov_b32 s45, 0xffff")
        a.label("L_at_fb2")
        a(f"buffer_load_dwordx4 {v(KR,4)}, v{vkp}, s[{SWS}:{SWS+3}], s{s_kg} offen sc1")
        a("s_mov_b64 exec, s[44:45]")
        a(f"buffer_load_dwordx4 {v(V0,4)}, v{vaddr}, s[{SWS}:{SWS+3}], s{s_vg} offen sc1")
        a(f"buffer_load_dwordx4 {v(V1,4)}, v{vaddr}, s[{SWS}:{SWS+3}], s{s_vg} offen offset:512 sc1")
        a("s_mov_b64 exec, -1")
        a(f"s_add_u32 s{s_kg}, s{s_kg}, 1024")
        a(f"s_add_u32 s{s_vg}, s{s_vg}, 1024")
        a("s_waitcnt vmcnt(0)")
        a(f"{MF} {v(S[0],16)}, {v(KR,4)}, {v(Q[0],4)}, {v(C[0],16)}")
        a("s_nop 15")
        for i in range(16): e(S[0], i)
        a("s_nop 2")
        a(f"{SM} {v(O[0],16)}, {v(V0,4)}, {v(S[0],8)}, v{IDX}")
        a(f"{SM} {v(O[0],16)}, {v(V1,4)}, {v(S[0]+8,8)}, v{IDX}")
        a("s_nop 15")
        a(f"s_add_u32 s{s_c}, s{s_c}, 1")
        a(f"s_cmp_lt_u32 s{s_c}, 64")
        a("s_cbranch_scc1 L_at_fb2")
        a(f"v_rcp_f32 v{vt}, v{O[0]+8}")
        a("s_branch L_at_fin")
    return R.hi, fallback

def fbar(a, vt):
    tag = a.newlabel("fb")[2:]
    a(f"s_add_u32 s{S_FBT}, s{S_FBT}, 4")
    lds_arrive(a, V_MISC, L_FB)
    lds_wait_ge(a, tag, V_MISC, L_FB, f"s{S_FBT}", vt, sleep=2)

def f_waves(a, st):
    t0 = 4
    vx, vw, uxaddr, uwaddr = 8, [9, 10, 11], [16, 17, 18, 19], 12
    vsrc, wa = 14, 15
    s_fw, s_rb, s_lc, s_stage, s_cb, s_T2, s_N2, s_lb = 48, 49, 50, 53, 54, 60, 61, 62
    s_urb, s_cg, s_u0, s_skip, s_dx, s_dw = 51, 52, 55, 56, 57, 58
    s_lx, s_lw, s_xoff, s_woff = 63, 64, 65, 66
    hi = []
    R = Regs(20)
    xaddr = [R.alloc() for _ in range(4)]; waddr = R.alloc()
    XF = [[R.alloc(4) for _ in range(2)] for _ in range(2)]
    WF = [[R.alloc(4) for _ in range(2)] for _ in range(2)]
    ACC = [[R.alloc(16) for _ in range(2)] for _ in range(2)]
    TMP = R.alloc(16)
    hi.append(R.hi)
    a(f"s_sub_u32 s{s_fw}, s{S_WAVE}, 8")
    a(f"s_mov_b32 s{S_FBT}, 0")
    tile_ids(a, s_rb, s_lc)
    a(f"s_lshr_b32 s44, s{S_XCD}, 2")
    a("s_mul_i32 s44, s44, 6")
    a(f"s_add_u32 s{s_cb}, s44, s{s_lc}")
    a(f"s_and_b32 s44, s{s_fw}, 1")
    a(f"s_lshr_b32 s46, s{s_fw}, 1")
    a(f"v_and_b32 v{t0}, 31, v0")
    a(f"v_lshrrev_b32 v{t0+1}, 5, v0")
    a(f"v_bfe_u32 v{t0+2}, v{t0}, 1, 3")
    a(f"v_xor_b32 v{t0+2}, v{t0+2}, v{t0+1}")
    a(f"v_lshlrev_b32 v{t0+2}, 4, v{t0+2}")
    a(f"v_lshl_add_u32 v{t0}, v{t0}, 7, v{t0+2}")
    a("s_lshl_b32 s45, s44, 13")
    a(f"s_add_u32 s45, s45, {TS0+TSTR}")
    assert UX[0] == TS0+TSTR
    for kk in range(4):
        a(f"v_xor_b32 v{t0+3}, {kk*32}, v{t0}")
        a(f"v_add_u32 v{xaddr[kk]}, s45, v{t0+3}")
        a(f"v_add_u32 v{uxaddr[kk]}, s45, v{t0+3}")
    a(f"v_bfe_u32 v{t0}, v0, 2, 2")
    a(f"v_bfe_u32 v{t0+2}, v0, 4, 1")
    a(f"v_and_b32 v{t0+3}, 3, v0")
    a(f"v_lshlrev_b32 v{t0+3}, 3, v{t0+3}")
    a(f"v_lshl_add_u32 v{uwaddr}, v{t0+1}, 3, v{t0}")
    a(f"v_lshl_add_u32 v{waddr}, v{uwaddr}, 7, v{t0+3}")
    a(f"v_mul_u32_u24 v{uwaddr}, 192, v{uwaddr}")
    a(f"v_mul_u32_u24 v{vsrc}, {WIMG}, v{t0+2}")
    a(f"v_add3_u32 v{uwaddr}, v{uwaddr}, v{vsrc}, v{t0+3}")
    a("s_mul_i32 s45, s46, 96")
    a(f"s_add_u32 s45, s45, {UW[0]}")
    a(f"v_add_u32 v{uwaddr}, s45, v{uwaddr}")
    a(f"v_lshlrev_b32 v{wa}, 5, v{t0}")
    a(f"v_and_b32 v{wa}, 64, v{wa}")
    a("s_lshl_b32 s45, s46, 6")
    a(f"v_xor_b32 v{wa}, s45, v{wa}")
    a(f"v_mul_u32_u24 v{vsrc}, {TU-TG}, v{t0+2}")
    a(f"v_add3_u32 v{waddr}, v{waddr}, v{vsrc}, v{wa}")
    a(f"v_add_u32 v{waddr}, {TS0+TSTR+TG}, v{waddr}")
    a(f"v_lshl_add_u32 v{t0+3}, v{t0+2}, 5, v{t0+3}")
    a(f"v_lshl_add_u32 v{t0}, v{t0+1}, 2, v{t0}")
    a(f"v_lshl_add_u32 v{t0+3}, v{t0}, 7, v{t0+3}")
    a(f"v_add_u32 v{wa}, v{wa}, v{t0+3}")
    a(f"s_lshl_b32 s{s_lb}, s{s_fw}, 14")
    a(f"s_add_u32 s{s_lb}, s{s_lb}, {STG}")
    a(f"s_lshl_b32 s44, s{S_XCD}, 2")
    a(f"s_and_b32 s45, s{S_LOC}, 3")
    a(f"s_add_u32 s{s_T2}, s44, s45")
    a(f"s_lshr_b32 s{s_N2}, s{S_LOC}, 2")
    a(f"v_lshrrev_b32 v{t0}, 3, v0")
    a(f"v_and_b32 v{t0+1}, 7, v0")
    a(f"v_lshlrev_b32 v{t0+3}, 1, v{t0}")
    a(f"v_and_b32 v{t0+3}, 4, v{t0+3}")
    a(f"v_xor_b32 v{t0+3}, v{t0+1}, v{t0+3}")
    a(f"v_lshlrev_b32 v{t0+3}, 4, v{t0+3}")
    a(f"v_lshl_add_u32 v{t0+3}, v{t0}, 10, v{t0+3}")
    a(f"s_lshl_b32 s44, s{s_N2}, 7")
    a(f"v_add_u32 v{vsrc}, s44, v{t0+3}")
    def zero(r, n):
        a(f"v_mov_b32 v{r}, 0")
        a(f"v_mov_b32 v{r+1}, 0")
        for i in range(1, n//2): a(f"v_pk_mov_b32 {v(r+2*i,2)}, {v(r,2)}, {v(r,2)}")
    up_dma_setup(a, t0, vx, vw, s_fw, s_urb, s_cg, s_u0, s_lx, s_lw, s_xoff, s_woff)
    a(f"s_lshr_b32 s46, s{s_fw}, 1")
    a(f"s_cmp_ge_u32 s{s_cg}, 6")
    a(f"s_cselect_b32 s{s_skip}, s46, 0")
    a(f"s_mov_b32 s{s_dx}, {UX[1]-UX[0]}")
    a(f"s_mov_b32 s{s_dw}, {UW[1]-UW[0]}")
    zero(ACC[0][0], 64)
    a(f"s_mov_b32 s{s_stage}, 0")
    a("s_waitcnt lgkmcnt(0)")
    srd(a, SWS, 24, 25, WS_BYTES)
    up_srd(a, s_fw, s_u0)
    a(f"s_cmp_lt_u32 s{S_LOC}, 24")
    a("s_cbranch_scc1 L_E_work")
    for i in range(8): a("s_barrier")
    a("s_branch L_E_done")
    a.label("L_E_work")
    def rx(kk, buf, t): a(f"ds_read_b128 {v(XF[buf][t],4)}, v{xaddr[kk]} offset:{t*4096}")
    def rw(kk, buf, u, h): a(f"ds_read_b64_tr_b16 {v(WF[buf][u]+2*h,2)}, v{waddr} offset:{kk*2048+u*32+h*512}")
    a("s_barrier")
    st.stamp(2)
    if st.en: a("s_waitcnt lgkmcnt(0)")
    rx(0, 0, 0); rw(0, 0, 0, 0); rw(0, 0, 0, 1); rx(0, 0, 1); rw(0, 0, 1, 0); rw(0, 0, 1, 1)
    a(f"s_cmp_ge_u32 s{s_cb}, 8")
    a("s_cbranch_scc1 L_E_loopV")
    def loop(tag):
        def mm(buf, u, t):
            A_, B_ = (XF[buf][t], WF[buf][u]) if tag == "V" else (WF[buf][u], XF[buf][t])
            a(f"{MF} {v(ACC[u][t],16)}, {v(A_,4)}, {v(B_,4)}, {v(ACC[u][t],16)}")
        a.label(f"L_E_loop{tag}")
        for kk in range(3):
            b = kk & 1; n = b ^ 1
            a("s_waitcnt lgkmcnt(3)")
            mm(b, 0, 0)
            rx(kk+1, n, 0); rw(kk+1, n, 0, 0)
            a("s_waitcnt lgkmcnt(4)")
            mm(b, 0, 1)
            rw(kk+1, n, 0, 1); rx(kk+1, n, 1)
            a("s_waitcnt lgkmcnt(4)")
            mm(b, 1, 0)
            rw(kk+1, n, 1, 0); rw(kk+1, n, 1, 1)
            mm(b, 1, 1)
            if kk == 2:
                a(f"s_add_u32 s{s_stage}, s{s_stage}, 1")
                a(f"s_lshr_b32 s44, 0x24, s{s_stage}")
                a("s_bitcmp1_b32 s44, 0")
                a(f"s_mov_b32 s45, {(-2*TSTR) & 0xffffffff}")
                a(f"s_cselect_b32 s44, s45, {TSTR}")
        a("s_waitcnt lgkmcnt(3)")
        mm(1, 0, 0)
        for r in xaddr + [waddr]:
            a(f"v_add_u32 v{r}, s44, v{r}")
        a(f"s_cmp_eq_u32 s{s_stage}, 8")
        a("s_waitcnt lgkmcnt(0)")
        mm(1, 0, 1)
        a(f"s_cbranch_scc1 L_E_tail{tag}")
        a("s_barrier")
        rx(0, 0, 0); rw(0, 0, 0, 0); rw(0, 0, 0, 1)
        mm(1, 1, 0)
        rx(0, 0, 1); rw(0, 0, 1, 0); rw(0, 0, 1, 1)
        mm(1, 1, 1)
        a(f"s_branch L_E_loop{tag}")
        a.label(f"L_E_tail{tag}")
        mm(1, 1, 0)
        mm(1, 1, 1)
    loop("T")
    a(f"v_mov_b32 v{t0}, v{V_L16}")
    a(f"s_mov_b32 s47, {4*65536}")
    a("s_branch L_E_epiQ")
    loop("V")
    a(f"v_and_b32 v{t0}, 15, v0")
    a(f"v_lshlrev_b32 v{t0}, 4, v{t0}")
    a(f"v_lshrrev_b32 v{t0+1}, 5, v0")
    a(f"v_lshl_add_u32 v{t0}, v{t0+1}, 8, v{t0}")
    a(f"v_bfe_u32 v{t0+1}, v0, 4, 1")
    a(f"v_lshl_add_u32 v{t0}, v{t0+1}, 18, v{t0}")
    a("s_mov_b32 s47, 512")
    a.label("L_E_epiQ")
    st.stamp(3)
    a(f"s_lshl_b32 s44, s{s_cb}, 19")
    a(f"s_lshr_b32 s45, s{s_fw}, 1")
    a("s_lshl_b32 s45, s45, 17")
    a("s_add_u32 s44, s44, s45")
    a(f"s_lshl_b32 s45, s{s_rb}, 12")
    a("s_add_u32 s44, s44, s45")
    a(f"s_and_b32 s45, s{s_fw}, 1")
    a("s_lshl_b32 s45, s45, 11")
    a("s_add_u32 s44, s44, s45")
    a("s_add_u32 s45, s44, s47")
    a(f"s_cmp_lt_u32 s{s_cb}, 4")
    a("s_cbranch_scc0 L_E_noscale")
    a(f"s_mov_b32 s46, {f32bits(QSCALE)}")
    a("s_mov_b32 s47, s46")
    for i in range(32):
        a(f"v_pk_mul_f32 {v(ACC[0][0]+2*i,2)}, {v(ACC[0][0]+2*i,2)}, s[46:47]")
    a.label("L_E_noscale")
    n = 0
    for u in range(2):
        for t in range(2):
            for half in range(2):
                tm = TMP + 4*(n & 3); n += 1
                src = ACC[u][t] + 8*half
                for i in range(4):
                    a(f"v_cvt_pk_bf16_f32 v{tm+i}, v{src+2*i}, v{src+2*i+1}")
                a(f"buffer_store_dwordx4 {v(tm,4)}, v{t0}, s[{SWS}:{SWS+3}], s{44+half} offen offset:{t*1024} sc1")
        if u == 0:
            a("s_add_u32 s44, s44, 65536")
            a("s_add_u32 s45, s45, 65536")
    a(f"s_and_b32 s44, s{s_cb}, 3")
    a("s_lshl_b32 s44, s44, 1")
    a(f"s_lshr_b32 s45, s{s_fw}, 1")
    a("s_add_u32 s44, s44, s45")
    a("s_lshl_b32 s44, s44, 3")
    a(f"s_lshr_b32 s45, s{s_cb}, 2")
    a("s_lshl_b32 s45, s45, 1")
    a("s_add_u32 s44, s44, s45")
    a(f"s_and_b32 s45, s{s_fw}, 1")
    a("s_add_u32 s44, s44, s45")
    a("s_lshl_b32 s44, s44, 7")
    a(f"s_add_u32 s44, s44, {CQ}")
    lds_wait_ge(a, "tg1", V_MISC, L_NONCE, "1", t0+1)
    post(a, 44)
    a(f"s_add_u32 s44, s{S_LOC}, s{s_fw}")
    a("s_cmp_eq_u32 s44, 0")
    a("s_cbranch_scc0 L_E_done2")
    a(f"s_lshl_b32 s44, s{S_XCD}, 10")
    a(f"s_add_u32 s44, s44, {CQ + 6*128}")
    a("s_mov_b64 exec, 1")
    a(f"buffer_atomic_add v{V_ONE}, off, s[{SWS}:{SWS+3}], s44 sc1")
    a("s_mov_b64 exec, -1")
    a("s_branch L_E_done2")
    a.label("L_E_done")
    lds_wait_ge(a, "tg2", V_MISC, L_NONCE, "1", t0+1)
    a.label("L_E_done2")
    lds_arrive(a, V_MISC, L_POST)
    st.stamp(4)
    R = Regs(20)
    XF = [[R.alloc(4) for _ in range(2)] for _ in range(2)]
    WF = [R.alloc(4) for _ in range(3)]
    UACC = [[R.alloc(16) for _ in range(2)] for _ in range(3)]
    hi.append(R.hi)
    def up_groups():
        g = up_dma_groups(vx, vw, s_lx, s_lw, s_xoff, s_woff)
        g[-1] += [f"s_add_u32 s{s_xoff}, s{s_xoff}, 128",
                  f"s_add_u32 s{s_woff}, s{s_woff}, {64*2752}",
                  f"s_and_b32 s{s_xoff}, s{s_xoff}, 1023",
                  f"s_cselect_b32 s{s_woff}, s{s_woff}, {o.rotU*64*2752}",
                  f"s_cselect_b32 s{s_xoff}, s{s_xoff}, {o.rotU*128}",
                  f"s_add_u32 s{s_lx}, s{s_lx}, s{s_dx}",
                  f"s_add_u32 s{s_lw}, s{s_lw}, s{s_dw}",
                  f"s_sub_u32 s{s_dx}, 0, s{s_dx}",
                  f"s_sub_u32 s{s_dw}, 0, s{s_dw}"]
        return g
    zero(UACC[0][0], 96)
    a(f"s_setprio {o.fprio}")
    if o.upat == 9: lds_wait_ge(a, "upgo", V_MISC, L_POST, "4", t0, sleep=2)
    if o.upat == 10: lds_wait_ge(a, "upgo", V_MISC, L_ATT, "8", t0, sleep=4)
    if o.upat == 12: lds_wait_ge(a, "upgo", V_MISC, L_GO, "1", t0, sleep=2)
    if o.udelay: a(f"s_sleep {o.udelay}")
    for grp in up_groups():
        for l in grp: a(l)
    a(f"s_mov_b32 s{s_stage}, 0")
    a(f"s_mov_b32 s{s_rb}, {UX[1]-UX[0]}")
    a(f"s_mov_b32 s{s_lc}, {UW[1]-UW[0]}")
    def rd_x(kk, buf):
        for t in range(2):
            a(f"ds_read_b128 {v(XF[buf][t],4)}, v{uxaddr[kk]} offset:{t*4096}")
    def rd_w(kk, u):
        off = kk*16*192 + u*32
        a(f"ds_read_b64_tr_b16 {v(WF[u],2)}, v{uwaddr} offset:{off}")
        a(f"ds_read_b64_tr_b16 {v(WF[u]+2,2)}, v{uwaddr} offset:{off+4*192}")
    def nops(n):
        if n > 0: a(f"s_nop {n-1}")
    def umm(u, buf, fill=None, after=3):
        for t in range(2):
            a(f"{MF} {v(UACC[u][t],16)}, {v(WF[u],4)}, {v(XF[buf][t],4)}, {v(UACC[u][t],16)}")
            if fill:
                for _ in range(o.dper):
                    if fill:
                        for l in fill.pop(0): a(l)
            else:
                nops(o.fpace - (after if t == 1 else 0))
    st.abeg()
    a("s_waitcnt vmcnt(0)")
    fbar(a, t0)
    st.aend(2)
    rd_x(0, 0)
    for u in range(3): rd_w(0, u)
    if o.upause == -1: lds_wait_ge(a, "upp0", V_MISC, L_ATT, "8", t0, sleep=4)
    a(f"s_setprio {o.mprio}")
    def umm_skip(u, buf):
        if u == 2:
            lab = a.newlabel("upskip")
            a(f"s_cmp_lg_u32 s{s_skip}, 0")
            a(f"s_cbranch_scc1 {lab}")
            umm(u, buf)
            a.label(lab)
        else:
            umm(u, buf)
    if o.upwarm:
        srd(a, SC, 16, 17, 0)
        a(f"s_and_b32 s44, s{S_LOC}, 3")
        a("s_lshl_b32 s44, s44, 2")
        a(f"s_add_u32 s44, s44, s{s_fw}")
        a(f"s_mul_i32 s59, s44, {86*1024}")
        a(f"s_sub_u32 s59, s59, {o.w0*16384}")
        a(f"s_lshl_b32 s44, s{s_N2}, 7")
        a("s_add_u32 s59, s59, s44")
        a("v_lshrrev_b32 v13, 2, v0")
        a(f"v_and_b32 v{t0+1}, 3, v0")
        a(f"v_lshlrev_b32 v{t0+1}, 5, v{t0+1}")
        a(f"v_lshl_add_u32 v13, v13, 10, v{t0+1}")
    a.label("L_up_loop")
    groups = up_groups()
    if o.upwarm:
        groups.append([f"buffer_load_dword v{t0+3}, v13, s[{SC}:{SC+3}], s59 offen", "s_add_u32 s59, s59, 16384"])
    for kk in range(3):
        buf = kk & 1
        for u in range(3):
            younger = (2-u)*2 + (0 if u == 0 else 2 + 2*u)
            a(f"s_waitcnt lgkmcnt({younger})")
            if u == 2: umm_skip(u, buf)
            else: umm(u, buf, groups, 5 if u == 0 else 3)
            if u == 0: rd_x(kk+1, buf ^ 1)
            rd_w(kk+1, u)
    assert not groups
    a("s_waitcnt lgkmcnt(4)")
    umm(0, 1)
    a(f"s_cmp_eq_u32 s{s_stage}, 7")
    a("s_cbranch_scc1 L_up_last")
    st.abeg()
    a(f"s_waitcnt vmcnt({1 if o.upwarm else 0}) lgkmcnt(0)")
    st.aend(0)
    a(f"s_add_u32 s{S_FBT}, s{S_FBT}, 4")
    lds_arrive(a, V_MISC, L_FB)
    umm(1, 1)
    a(f"s_setprio {o.fprio}")
    for r in uxaddr:
        a(f"v_add_u32 v{r}, s{s_rb}, v{r}")
    a(f"v_add_u32 v{uwaddr}, s{s_lc}, v{uwaddr}")
    st.abeg()
    lds_wait_ge(a, "upb", V_MISC, L_FB, f"s{S_FBT}", t0, sleep=1)
    st.aend(1)
    a(f"s_setprio {o.mprio}")
    rd_x(0, 0)
    rd_w(0, 0); rd_w(0, 1)
    umm_skip(2, 1)
    rd_w(0, 2)
    a(f"s_sub_u32 s{s_rb}, 0, s{s_rb}")
    a(f"s_sub_u32 s{s_lc}, 0, s{s_lc}")
    a(f"s_add_u32 s{s_stage}, s{s_stage}, 1")
    a(f"s_cmp_eq_u32 s{s_stage}, 7")
    a(f"s_cselect_b32 s{SA+2}, 0, s{SA+2}")
    a(f"s_cselect_b32 s{SB+2}, 0, s{SB+2}")
    if o.rotU:
        n = 8 - o.rotU
        a(f"s_cmp_eq_u32 s{s_stage}, {o.rotU-1}")
        a("s_cbranch_scc0 L_up_nr")
        a(f"s_lshr_b32 s44, s{S_LOC}, 3")
        a(f"s_and_b32 s45, s{S_LOC}, 7")
        a("s_add_u32 s44, s44, s45")
        for _ in range(2):
            a(f"s_cmp_ge_u32 s44, {n}")
            a(f"s_cselect_b32 s45, {n}, 0")
            a("s_sub_u32 s44, s44, s45")
        a(f"s_add_u32 s44, s44, {o.rotU}")
        a(f"s_lshl_b32 s{s_xoff}, s44, 7")
        a(f"s_mul_i32 s{s_woff}, s44, {64*2752}")
        a.label("L_up_nr")
    if o.upwarm:
        a(f"s_cmp_eq_u32 s{s_stage}, {o.w0}")
        a(f"s_cselect_b32 s{SC+2}, {1376*1024}, s{SC+2}")
    if o.upause > 0:
        a(f"s_cmp_eq_u32 s{s_stage}, {o.upause}")
        a("s_cbranch_scc0 L_up_loop")
        a(f"s_setprio {o.fprio}")
        lds_wait_ge(a, "upp", V_MISC, L_ATT, "8", t0, sleep=4)
        a(f"s_setprio {o.mprio}")
    a("s_branch L_up_loop")
    a.label("L_up_last")
    a("s_waitcnt lgkmcnt(0)")
    umm(1, 1)
    umm_skip(2, 1)
    a(f"s_setprio {o.fprio}")
    st.stamp(5)
    a(f"s_lshl_b32 s44, s{s_urb}, 2")
    a(f"s_and_b32 s45, s{s_fw}, 1")
    a("s_lshl_b32 s45, s45, 1")
    a("s_add_u32 s44, s44, s45")
    a("s_mul_i32 s44, s44, 86")
    a(f"s_add_u32 s44, s44, s{s_u0}")
    a(f"s_lshr_b32 s45, s{s_fw}, 1")
    a("s_mul_i32 s45, s45, 3")
    a("s_add_u32 s44, s44, s45")
    a("s_lshl_b32 s44, s44, 10")
    a(f"s_add_u32 s44, s44, {HF}")
    a(f"s_add_u32 s45, s44, {86*1024}")
    a(f"s_mov_b32 s46, {f32bits(-LOG2E)}")
    a("s_mov_b32 s47, s46")
    for u in range(3):
        if u == 2:
            a(f"s_cmp_lg_u32 s{s_skip}, 0")
            a("s_cbranch_scc1 L_up_done")
        for t in range(2):
            g = UACC[u][t]; up = g + 8
            tm = XF[u & 1][t]
            for i in range(4): a(f"v_pk_mul_f32 {v(g+2*i,2)}, {v(g+2*i,2)}, s[46:47]")
            for i in range(8): a(f"v_exp_f32 v{g+i}, v{g+i}")
            for i in range(4): a(f"v_pk_add_f32 {v(g+2*i,2)}, {v(g+2*i,2)}, 1.0 op_sel_hi:[1,0]")
            for i in range(8): a(f"v_rcp_f32 v{g+i}, v{g+i}")
            for i in range(4): a(f"v_pk_mul_f32 {v(g+2*i,2)}, {v(g+2*i,2)}, {v(up+2*i,2)}")
            for i in range(4): a(f"v_cvt_pk_bf16_f32 v{tm+i}, v{g+2*i}, v{g+2*i+1}")
            a(f"buffer_store_dwordx4 {v(tm,4)}, v{V_L16}, s[{SWS}:{SWS+3}], s{44+t} offen offset:{u*1024} sc1")
    a.label("L_up_done")
    a(f"s_lshl_b32 s44, s{s_urb}, 2")
    a(f"s_add_u32 s44, s44, s{s_fw}")
    a("s_lshl_b32 s44, s44, 7")
    a(f"s_add_u32 s44, s44, {CH}")
    post(a, 44)
    st.stamp(8)
    s_h0, s_h1, s_w, s_i, s_T, s_nt, s_idx, s_dl = 49, 50, 51, 52, 53, 54, 55, 56
    R = Regs(16)
    ACC = [R.alloc(16) for _ in range(4)]
    HFR = [[R.alloc(4) for _ in range(2)] for _ in range(8)]
    WF = [[R.alloc(4) for _ in range(2)] for _ in range(2)]
    G = 8; VOUT = 10; da = [11, 12]; db = [R.alloc(), R.alloc()]
    hi.append(R.hi)
    fbar(a, t0)
    a(f"ds_read_b32 v{t0+3}, v{V_MISC} offset:{L_NONCE}")
    srd(a, SA, 8, 9, 512*1024)
    a(f"s_lshl_b32 s{s_w}, s{s_fw}, 17")
    a(f"s_mov_b32 m0, s{s_lb}")
    a(f"s_mov_b32 s{s_i}, 14")
    a.label("L_wo_ld")
    a(f"buffer_load_dwordx4 v{vsrc}, s[{SA}:{SA+3}], s{s_w} offen lds")
    a("s_add_u32 m0, m0, 1024")
    a(f"s_add_u32 s{s_w}, s{s_w}, 8192")
    a(f"s_sub_u32 s{s_i}, s{s_i}, 1")
    a(f"s_cmp_lg_u32 s{s_i}, 0")
    a("s_cbranch_scc1 L_wo_ld")
    srd(a, SA, 16, 17, 1376*1024)
    a(f"s_mul_i32 s{s_dl}, s{s_fw}, 6144")
    a(f"s_add_u32 s{s_dl}, s{s_dl}, {DRING}")
    a(f"v_add_u32 v{da[0]}, s{s_dl}, v{wa}")
    a(f"v_xor_b32 v{da[1]}, 64, v{da[0]}")
    a(f"v_add_u32 v{db[0]}, s{s_lb}, v{wa}")
    a(f"v_xor_b32 v{db[1]}, 64, v{db[0]}")
    a(f"s_lshl_b32 s{s_w}, s{s_fw}, 14")
    a(f"s_lshl_b32 s44, s{s_T2}, 1")
    a(f"s_and_b32 s45, s{s_fw}, 1")
    a(f"s_add_u32 s{s_T}, s44, s45")
    a(f"s_xor_b32 s47, s{s_T}, 1")
    for d, sx in ((s_h0, s_T), (s_h1, 47)):
        a(f"s_mul_i32 s{d}, s{sx}, 86")
        a(f"s_add_u32 s{d}, s{d}, s{s_fw}")
        a(f"s_lshl_b32 s{d}, s{d}, 10")
        a(f"s_add_u32 s{d}, s{d}, {HF}")
    a(f"s_lshl_b32 s44, s{s_N2}, 1")
    a(f"s_lshr_b32 s45, s{s_fw}, 1")
    a(f"s_add_u32 s{s_nt}, s44, s45")
    a(f"v_and_b32 v{t0}, 31, v0")
    a(f"v_lshrrev_b32 v{t0+1}, 5, v0")
    a(f"v_lshlrev_b32 v{t0+1}, 4, v{t0+1}")
    a(f"v_lshl_add_u32 v{VOUT}, v{t0}, 10, v{t0+1}")
    a("s_waitcnt lgkmcnt(0)")
    a(f"v_readfirstlane_b32 s{S_NONCE}, v{t0+3}")
    a(f"v_lshlrev_b32 v{t0+1}, 3, v{t0}")
    a(f"s_lshl_b32 s44, s{s_T}, 8")
    a(f"s_add_u32 s44, s44, {GA}")
    a(f"s_mov_b32 s{S_SPIN}, 0")
    a.label("L_g_poll")
    a(f"buffer_load_dwordx2 {v(G,2)}, v{t0+1}, s[{SWS}:{SWS+3}], s44 offen sc1")
    a(f"s_add_u32 s{S_SPIN}, s{S_SPIN}, 1")
    a("s_waitcnt vmcnt(0)")
    a(f"v_cmp_ne_u32 vcc, s{S_NONCE}, v{G+1}")
    a(f"s_cmp_gt_u32 s{S_SPIN}, 200000")
    a("s_cbranch_scc1 L_g_got")
    a("s_cbranch_vccz L_g_got")
    a("s_sleep 8")
    a("s_branch L_g_poll")
    a.label("L_g_got")
    a(f"v_sub_f32 v{G+1}, 1.0, v{G}")
    a(f"s_cmp_eq_u32 s{s_fw}, 0")
    a("s_cbranch_scc0 L_dn_nopoll")
    a(f"s_lshr_b32 s44, s{s_T2}, 1")
    a("s_lshl_b32 s44, s44, 2")
    a(f"s_and_b32 s45, s{s_T2}, 1")
    a("s_add_u32 s44, s44, s45")
    a("s_lshl_b32 s44, s44, 7")
    a(f"s_add_u32 s44, s44, {CH}")
    a(f"v_and_b32 v{t0+2}, 1, v0")
    a(f"v_lshlrev_b32 v{t0+2}, 8, v{t0+2}")
    poll(a, "dn", t0+1, t0+2, 44, 16, 8)
    a.label("L_dn_nopoll")
    fbar(a, t0+1)
    st.stamp(9)
    s_wend, s_hend = 57, 58
    s_o, s_out, s_co = 49, 50, 51
    def ldw(g):
        m = f"s_add_u32 m0, s{s_dl}, {(g%4)*2048}" if g % 4 < 3 else f"s_add_u32 m0, s{s_lb}, {7*2048}"
        p0 = [m, f"s_add_u32 s44, s{s_w}, 8192", f"buffer_load_dwordx4 v{vsrc}, s[{SA}:{SA+3}], s{s_w} offen lds"]
        p1 = ["s_add_u32 m0, m0, 1024", f"s_add_u32 s{s_w}, s{s_w}, 65536", f"buffer_load_dwordx4 v{vsrc}, s[{SA}:{SA+3}], s44 offen lds"]
        if o.stagD: p1 += [f"s_cmp_eq_u32 s{s_w}, s{s_wend}", f"s_cselect_b32 s{s_w}, s46, s{s_w}"]
        return [p0, p1]
    def ldh(g):
        p0 = [f"s_add_u32 s45, s{s_h0}, s{s_h1}", f"buffer_load_dwordx4 {v(HFR[g%4][0],4)}, v{V_L16}, s[{SWS}:{SWS+3}], s{s_h0} offen sc1"]
        p1 = [f"s_add_u32 s{s_h0}, s{s_h0}, 4096", f"buffer_load_dwordx4 {v(HFR[g%4][1],4)}, v{V_L16}, s[{SWS}:{SWS+3}], s45 offen sc1"]
        if o.stagD: p1 += [f"s_cmp_eq_u32 s{s_h0}, s{s_hend}", f"s_cselect_b32 s{s_h0}, s47, s{s_h0}"]
        return [p0, p1]
    def emit(ps):
        for p in ps:
            for l in p: a(l)
    def rdw1(off, buf, ad, n):
        a(f"ds_read_b64_tr_b16 {v(WF[buf][n],2)}, v{ad[n]} offset:{off}")
        a(f"ds_read_b64_tr_b16 {v(WF[buf][n]+2,2)}, v{ad[n]} offset:{off+1024}")
    def rdw(off, buf, ad=da):
        for n in range(2): rdw1(off, buf, ad, n)
    a(f"s_sub_u32 s{s_h1}, s{s_h1}, s{s_h0}")
    a(f"s_mov_b32 s46, s{s_w}")
    a(f"s_mov_b32 s47, s{s_h0}")
    a(f"s_add_u32 s{s_wend}, s46, {21*65536}")
    a(f"s_add_u32 s{s_hend}, s47, {21*4096}")
    if o.stagD:
        a(f"s_and_b32 s44, s{S_LOC}, 3")
        a("s_mul_i32 s44, s44, 5")
        a(f"s_mul_i32 s45, s{s_N2}, 21")
        a("s_lshr_b32 s45, s45, 3")
        a("s_add_u32 s44, s44, s45")
        a("s_cmp_ge_u32 s44, 21")
        a("s_cselect_b32 s45, 21, 0")
        a(f"s_sub_u32 s{s_i}, s44, s45")
    else:
        a(f"s_mov_b32 s{s_i}, 0")
    a(f"s_mov_b32 s{s_w}, s{s_wend}")
    a(f"s_cmp_lt_u32 s{s_fw}, 2")
    a(f"s_cselect_b32 s{s_h0}, s{s_hend}, s47")
    emit(ldw(0))
    a(f"s_lshl_b32 s44, s{s_i}, 16")
    a(f"s_add_u32 s{s_w}, s46, s44")
    emit(ldw(1)); emit(ldh(0))
    a(f"s_lshl_b32 s44, s{s_i}, 12")
    a(f"s_add_u32 s{s_h0}, s47, s44")
    emit(ldw(2)); emit(ldh(1))
    emit(ldw(3)); emit(ldh(2))
    a(f"s_setprio {o.mprio}")
    a("s_waitcnt vmcnt(12)")
    rdw(0, 0)
    def rstep(k):
        b = k & 1
        issued = lambda j: (2 if j + 4 <= 21 else 0) + (2 if j + 3 <= 21 else 0) + (2 if j == 19 else 0)
        a(f"s_waitcnt vmcnt({issued(k-2) + issued(k-1)}) lgkmcnt(0)")
        parts = (ldw(k+4) if k + 4 <= 21 else [[], []]) + (ldh(k+3) if k + 3 <= 21 else [[], []])
        if k == 19:
            parts = [[f"s_mov_b32 s{SA}, s8", f"s_and_b32 s{SA+1}, s9, 0xffff", f"s_mov_b32 s{SA+2}, {512*1024}",
                      f"s_lshl_b32 s44, s{s_fw}, 17", f"s_add_u32 s44, s44, {14*8192}"],
                     [f"s_add_u32 m0, s{s_lb}, {14*1024}", "s_add_u32 s45, s44, 8192",
                      f"buffer_load_dwordx4 v{vsrc}, s[{SA}:{SA+3}], s44 offen lds"],
                     ["s_add_u32 m0, m0, 1024", "s_nop 0", f"buffer_load_dwordx4 v{vsrc}, s[{SA}:{SA+3}], s45 offen lds"], []]
        if k == 20:
            parts = [[f"s_mov_b32 s{SB}, s20", f"s_and_b32 s{SB+1}, s21, 0xffff", f"s_mov_b32 s{SB+2}, {2048*1024}", f"s_mov_b32 s{SB+3}, 0x20000"],
                     [f"s_lshr_b32 s46, s{s_fw}, 1", f"s_lshl_b32 s44, s{s_T}, 15", "s_lshl_b32 s45, s46, 14", "s_add_u32 s45, s44, s45",
                      f"s_add_u32 s{s_o}, s45, {OF}"],
                     [f"s_lshl_b32 s45, s{s_nt}, 6", f"s_add_u32 s{s_out}, s44, s45", f"s_lshl_b32 s44, s{s_T}, 1", "s_add_u32 s44, s44, s46"],
                     ["s_lshl_b32 s44, s44, 7", f"s_add_u32 s{s_co}, s44, {CO}"]]
        for n in range(2):
            for t in range(2):
                c = "0" if k == 0 else v(ACC[2*n+t],16)
                a(f"{MF} {v(ACC[2*n+t],16)}, {v(WF[b][n],4)}, {v(HFR[k%4][t],4)}, {c}")
                if n == 0 and k < 21:
                    if (k+1) % 4 < 3: rdw1(((k+1) % 4)*2048, b ^ 1, da, t)
                    else: rdw1(7*2048, b ^ 1, db, t)
                for l in parts[2*n+t]: a(l)
    rstep(0)
    a(f"s_mov_b32 s{s_i}, 4")
    a.label("L_dn_loop")
    for k in range(1, 5): rstep(k)
    a(f"s_sub_u32 s{s_i}, s{s_i}, 1")
    a(f"s_cmp_lg_u32 s{s_i}, 0")
    a("s_cbranch_scc1 L_dn_loop")
    for k in range(17, 22): rstep(k)
    a(f"s_setprio {o.fprio}")
    st.stamp(10)
    a("s_waitcnt vmcnt(0)")
    a("s_barrier")
    if o.tdelay: a(f"s_sleep {o.tdelay}")
    a(f"buffer_load_dword v{t0+1}, off, s[{SWS}:{SWS+3}], s{s_co} sc1")
    a("s_lshl_b32 s44, s46, 15")
    a(f"s_add_u32 s44, s44, {STG}")
    a(f"v_add_u32 v{da[0]}, s44, v{wa}")
    a(f"v_xor_b32 v{da[1]}, 64, v{da[0]}")
    a(f"s_lshl_b32 s44, s{s_fw}, 13")
    a(f"v_add_u32 v{t0}, s44, v{V_L16}")
    a(f"v_xor_b32 v{t0+2}, 8192, v{t0}")
    a(f"v_xor_b32 v{t0+3}, 16384, v{t0}")
    for n in range(2):
        for i in range(4):
            a(f"ds_write_b128 v{t0}, {v(ACC[2*n+1]+4*i,4)} offset:{n*4096+i*1024}")
    a("s_waitcnt lgkmcnt(0)")
    a("s_barrier")
    for n in range(2):
        for i in range(4):
            a(f"ds_read_b128 {v(ACC[2*n+1]+4*i,4)}, v{t0+2} offset:{n*4096+i*1024}")
    WF.append([160, 164])
    hi.append(168)
    for n in (1, 0): rdw1(0, 0, da, n)
    BQ = [ACC[0], ACC[2]]
    def bsum():
        for n in range(2):
            a(f"s_waitcnt lgkmcnt({4*(1-n)+4})")
            for i in range(8):
                a(f"v_pk_add_f32 {v(BQ[n]+2*i,2)}, {v(BQ[n]+2*i,2)}, {v(ACC[2*n+1]+2*i,2)}")
            for i in range(8):
                a(f"v_pk_mul_f32 {v(BQ[n]+2*i,2)}, {v(BQ[n]+2*i,2)}, {v(G,2)} op_sel:[0,1] op_sel_hi:[1,1]")
    poll(a, "tl", t0+1, None, s_co, 16, o.tsleep, first_issued=True)
    st.stamp(11)
    if st.en: a("s_waitcnt lgkmcnt(0)")
    OFR = [HFR[i >> 1][i & 1] for i in range(16)]
    def ldo(i):
        a(f"buffer_load_dwordx4 {v(OFR[i],4)}, v{V_L16}, s[{SWS}:{SWS+3}], s{s_o} offen offset:{(i&3)*1024} sc1")
        if i & 3 == 3 and i < 15: a(f"s_add_u32 s{s_o}, s{s_o}, 4096")
    for i in range(o.nfirst): ldo(i)
    bsum()
    if o.tprof: st.stamp(2); a("s_waitcnt lgkmcnt(0)")
    for n in (1, 0): rdw1(2048, 1, da, n)
    pend = list(range(o.nfirst, 16))
    AO = [ACC[1], ACC[3]]
    for i in range(16):
        buf = i % 3
        a(f"s_waitcnt vmcnt({15-len(pend)-i}) lgkmcnt({4 if i < 15 else 0})")
        if o.tprof and i == 0: st.stamp(3); a("s_waitcnt lgkmcnt(0)")
        for n in (1, 0):
            c = "0" if i == 0 else v(AO[n],16)
            a(f"{MF} {v(AO[n],16)}, {v(WF[buf][n],4)}, {v(OFR[i],4)}, {c}")
            if i < 14: rdw1((i+2)*2048, (i+2) % 3, da, n)
            if pend: ldo(pend.pop(0))
    if o.tprof: st.stamp(4)
    a("s_nop 10")
    for i in range(4):
        for j in (2*i, 2*i+1):
            a(f"v_pk_fma_f32 {v(BQ[1]+2*j,2)}, {v(AO[1]+2*j,2)}, {v(G,2)}, {v(BQ[1]+2*j,2)} op_sel_hi:[1,0,1]")
        a(f"ds_write_b128 v{t0}, {v(BQ[1]+4*i,4)} offset:{32768+i*1024}")
    for i in range(8):
        a(f"v_pk_fma_f32 {v(BQ[0]+2*i,2)}, {v(AO[0]+2*i,2)}, {v(G,2)}, {v(BQ[0]+2*i,2)} op_sel_hi:[1,0,1]")
    a("s_waitcnt lgkmcnt(0)")
    a("s_barrier")
    for i in range(4):
        a(f"ds_read_b128 {v(AO[1]+4*i,4)}, v{t0+3} offset:{32768+i*1024}")
    if o.tprof: st.stamp(5); a("s_waitcnt lgkmcnt(0)")
    T2 = AO[0]
    for p in range(2):
        a(f"s_waitcnt lgkmcnt({2*(1-p)})")
        for i in range(4*p, 4*p+4):
            a(f"v_pk_add_f32 {v(BQ[0]+2*i,2)}, {v(BQ[0]+2*i,2)}, {v(AO[1]+2*i,2)}")
        for i in range(4*p, 4*p+4):
            a(f"v_cvt_pk_bf16_f32 v{T2+i}, v{BQ[0]+2*i}, v{BQ[0]+2*i+1}")
        b = T2 + 4*p
        a("s_nop 1")
        a(f"v_permlane32_swap_b32 v{b}, v{b+2}")
        a(f"v_permlane32_swap_b32 v{b+1}, v{b+3}")
        a("s_nop 1")
        a(f"buffer_store_dwordx4 {v(b,4)}, v{VOUT}, s[{SB}:{SB+3}], s{s_out} offen offset:{32*p}{['', ' sc1', ' nt', ' sc0 sc1', ' sc1 nt'][o.ost]}")
    if o.tprof: st.stamp(8)
    finish(a, st)
    return hi

def build(path):
    global KN
    KN = "kb_kernel" if (o.report or o.instr) else KNAME
    a = Asm()
    a('.amdgcn_target "amdgcn-amd-amdhsa--gfx950"')
    a(".text")
    st = Stamper(a, o.instr, 0)
    kernel_header(a, KN)
    a("s_cmp_ge_u32 s2, 256")
    a("s_cbranch_scc1 L_exit")
    a("s_load_dwordx16 s[4:19], s[0:1], 0")
    a("s_load_dwordx4 s[20:23], s[0:1], 64")
    a("s_load_dwordx2 s[24:25], s[0:1], 80")
    st.init(); st.real(0); st.stamp(1)
    a("v_lshrrev_b32 v1, 6, v0")
    a("v_and_b32 v0, 63, v0")
    a(f"s_and_b32 s{S_XCD}, s2, 7")
    a(f"v_readfirstlane_b32 s{S_WAVE}, v1")
    a(f"s_lshr_b32 s{S_LOC}, s2, 3")
    a(f"v_lshlrev_b32 v{V_L16}, 4, v0")
    a(f"v_mov_b32 v{V_MISC}, {MISC}")
    a(f"v_mov_b32 v{V_ONE}, 1")
    a(f"s_cmp_ge_u32 s{S_WAVE}, 8")
    a("s_cbranch_scc1 L_F")
    ahi, fallback = a_waves(a, st)
    a.label("L_F")
    hi = f_waves(a, st) + [ahi]
    a.label("L_code_end")
    fallback()
    a.label("L_exit")
    a("s_endpgm")
    print("vgprs", hi)
    assert max(hi) <= 168
    descs = [kernel_desc(KN, 168)]
    if o.report or o.instr:
        hdr = f"; @launch kernel={KN} grid=(256,1,1) block=(768,1,1) lds={LDS_TOTAL}\n"
        if o.report:
            k, w, i = [int(x) for x in str(o.report).split(",")]
            reporter(a, k, w, i)
            hdr += "; @launch kernel=rep_kernel grid=(1,1,1) block=(64,1,1) lds=0\n"
            descs.append(kernel_desc("rep_kernel", 16))
    else:
        hdr = f"; @launch grid=(256,1,1) block=(768,1,1) lds={LDS_TOTAL}\n"
    a('.section .rodata,"a"')
    open(path, "w").write("; generated by gen/gen19.py\n" + hdr + a.text() + "".join(descs))

if __name__ == "__main__":
    path = sys.argv[1]
    for arg in sys.argv[2:]:
        k, _, val = arg.partition("=")
        assert hasattr(Opt, k), k
        setattr(Opt, k, (val if ',' in val else int(val)) if val else True)
    if Opt.report: Opt.instr = True; Stamper.rt = True
    if Opt.acc: Stamper.acc = True
    if Opt.rt: Stamper.rt = True
    build(path)
```

```python
import math, sys
from asmlib import *

MB = 1 << 20
QF, KF, VF, OF, HF = 0, 2*MB, 4*MB, 6*MB, 8*MB
GA = 14*MB
CNT = 14*MB + 0x10000
CQ, CH, CO = CNT, CNT + 64*128, CNT + 128*128
W0 = 14*MB + 0x20000
WS_BYTES = 32*MB
LOG2E = 1.4426950408889634
QSCALE = 0.25 * LOG2E
LDS_TOTAL = 163840
KNAME = "gated_mix__mha_block__glu_gated_glu__prompt_kernel"

TS0, TSTR = 32768, 33024
TG, TU = 16384, 16384 + 8192 + 32
WIMG = 12288 + 32
UX = [49152, 65536]
UW = [81920]; UWS = 24832
STG = 65536
DRING = 131072
VCONST = 156672
GL = 160768
MISC = LDS_TOTAL - 256
L_NONCE, L_ATT, L_FB, L_GO, L_PAIR, L_POST = 0, 4, 8, 12, 16, 32

S_WAVE, S_NONCE = 26, 27
SWS, SA, SB, SC = 28, 32, 36, 40
S_XCD, S_LOC, S_FBT, S_SPIN = 3, 69, 67, 68
V_L16, V_MISC, V_ONE = 1, 2, 3
MF = "v_mfma_f32_32x32x16_bf16"
SM = "v_smfmac_f32_32x32x32_bf16"

class Opt:
    instr = False
    report = None
    acc = 0
    rt = 0
    ppdelay = 2
    fprio = 2
    mprio = 0
    aprio = 5
    psleep = 2
    stag1 = 0
    stag2 = 1
    pdelay = 16
    dper = 1
    upause = 1
    ost = 0
    pf31 = 1
    upat = 9
    upwarm = 3
    yat = 5
    noffn = 0
    w0 = 2
    rotU = 0
    hp = 0
    gapw = 0
    nwd = 11
    nwo = 4
    dprio = 0
    pf0 = 2
    rot = 0
    stagD = 1
    nfirst = 10
    tprof = 0
    tsleep = 4
    cuts = '2,6,10'
    pfup = 6
    stagU = 0
    fpace = 0
    la = 3
    udelay = 0
    xat = 1
    ctouch = 1
    tdelay = 0
o = Opt

def srd(a, d, lo, hi, nbytes):
    a(f"s_mov_b32 s{d}, s{lo}")
    a(f"s_and_b32 s{d+1}, s{hi}, 0xffff")
    a(f"s_mov_b32 s{d+2}, {nbytes}")
    a(f"s_mov_b32 s{d+3}, 0x20000")

def finish(a, st):
    if st.en: a("s_waitcnt vmcnt(0)")
    st.stamp(6); st.real(7); st.flush(SWS, S_WAVE, 4)
    a("s_endpgm")

def post(a, s_off):
    a("s_waitcnt vmcnt(0)")
    a("s_mov_b64 exec, 1")
    a(f"buffer_atomic_add v{V_ONE}, off, s[{SWS}:{SWS+3}], s{s_off} sc1")
    a("s_mov_b64 exec, -1")

def poll(a, tag, vt, voff, s_off, target, sleep, first_issued=False):
    def ld():
        if voff is None: a(f"buffer_load_dword v{vt}, off, s[{SWS}:{SWS+3}], s{s_off} sc1")
        else: a(f"buffer_load_dword v{vt}, v{voff}, s[{SWS}:{SWS+3}], s{s_off} offen sc1")
    a(f"s_mov_b32 s{S_SPIN}, 0")
    if not first_issued: ld()
    a.label(f"L_{tag}_poll")
    a(f"s_add_u32 s{S_SPIN}, s{S_SPIN}, 1")
    a("s_waitcnt vmcnt(0)")
    a(f"v_cmp_gt_u32 vcc, {target}, v{vt}")
    a(f"s_cmp_gt_u32 s{S_SPIN}, 200000")
    a(f"s_cbranch_scc1 L_{tag}_got")
    a(f"s_cbranch_vccz L_{tag}_got")
    if sleep: a(f"s_sleep {sleep}")
    ld()
    a(f"s_branch L_{tag}_poll")
    a.label(f"L_{tag}_got")

def lds_wait_ge(a, tag, vaddr, off, target, vt, sleep=1):
    a(f"s_mov_b32 s{S_SPIN}, 0")
    a.label(f"L_{tag}_spin")
    a(f"ds_read_b32 v{vt}, v{vaddr} offset:{off}")
    a(f"s_add_u32 s{S_SPIN}, s{S_SPIN}, 1")
    a("s_waitcnt lgkmcnt(0)")
    a(f"v_cmp_gt_u32 vcc, {target}, v{vt}")
    a(f"s_cmp_gt_u32 s{S_SPIN}, 2000000")
    a(f"s_cbranch_scc1 L_{tag}_ok")
    a(f"s_cbranch_vccz L_{tag}_ok")
    if sleep: a(f"s_sleep {sleep}")
    a(f"s_branch L_{tag}_spin")
    a.label(f"L_{tag}_ok")

def lds_arrive(a, vaddr, off):
    a("s_mov_b64 exec, 1")
    a(f"ds_add_u32 v{vaddr}, v{V_ONE} offset:{off}")
    a("s_mov_b64 exec, -1")

def tile_ids(a, s_rb, s_lc):
    a(f"s_and_b32 s44, s{S_XCD}, 3")
    a("s_lshl_b32 s44, s44, 2")
    a(f"s_and_b32 s45, s{S_LOC}, 3")
    a(f"s_add_u32 s{s_rb}, s44, s45")
    a(f"s_lshr_b32 s{s_lc}, s{S_LOC}, 2")

def ids_up(a, s_rb, s_cg, s_u0):
    a(f"s_and_b32 s44, s{S_XCD}, 2")
    a("s_lshl_b32 s44, s44, 2")
    a(f"s_and_b32 s45, s{S_LOC}, 7")
    a(f"s_add_u32 s{s_rb}, s44, s45")
    a(f"s_and_b32 s44, s{S_XCD}, 1")
    a("s_lshl_b32 s44, s44, 2")
    a(f"s_and_b32 s45, s{S_XCD}, 4")
    a("s_lshl_b32 s45, s45, 1")
    a("s_add_u32 s44, s44, s45")
    a(f"s_lshr_b32 s45, s{S_LOC}, 3")
    a(f"s_add_u32 s{s_cg}, s44, s45")
    a(f"s_mul_i32 s44, s{s_cg}, 5")
    a(f"s_min_u32 s45, s{s_cg}, 6")
    a(f"s_add_u32 s{s_u0}, s44, s45")

def stagger(a, mode=None):
    pass
    if mode == 1:
        a(f"s_lshr_b32 s44, s{S_LOC}, 3")
        a("s_lshl_b32 s44, s44, 1")
        a(f"s_add_u32 s44, s44, s{S_LOC}")
        a("s_and_b32 s44, s44, 7")
    elif mode == 2:
        a(f"s_lshr_b32 s44, s{S_LOC}, 3")
        a(f"s_add_u32 s44, s44, s{S_LOC}")
        a("s_and_b32 s44, s44, 3")
        a("s_lshl_b32 s44, s44, 1")
    elif mode == 3:
        a(f"s_lshr_b32 s44, s{S_LOC}, 3")
        a(f"s_add_u32 s44, s44, s{S_LOC}")
        a("s_and_b32 s44, s44, 1")
        a("s_lshl_b32 s44, s44, 2")
    else:
        a("s_mov_b32 s44, 0")

def up_dma_setup(a, t0, vx, vw, s_fw, s_rb, s_cg, s_u0, s_lx, s_lw, s_xoff, s_woff):
    a(f"v_lshrrev_b32 v{t0}, 3, v0")
    a(f"v_and_b32 v{t0+1}, 7, v0")
    a(f"v_lshrrev_b32 v{t0+2}, 1, v{t0}")
    ids_up(a, s_rb, s_cg, s_u0)
    a(f"s_and_b32 s46, s{s_fw}, 1")
    a("s_lshl_b32 s45, s46, 2")
    a(f"v_or_b32 v{t0+2}, s45, v{t0+2}")
    a(f"v_xor_b32 v{t0+1}, v{t0+1}, v{t0+2}")
    a(f"v_lshlrev_b32 v{t0+1}, 4, v{t0+1}")
    a(f"s_lshl_b32 s44, s{s_rb}, 7")
    a(f"s_lshl_b32 s45, s{s_fw}, 3")
    a("s_add_u32 s44, s44, s45")
    a(f"v_add_u32 v{t0}, s44, v{t0}")
    a(f"v_lshl_add_u32 v{vx}, v{t0}, 10, v{t0+1}")
    a("s_movk_i32 s44, 5462")
    a("s_movk_i32 s47, 2752")
    a("s_lshl_b32 s45, s46, 5")
    for j in range(3):
        a(f"v_add_u32 v{t0}, {64*j}, v0")
        a(f"v_mul_u32_u24 v{t0+1}, s44, v{t0}")
        a(f"v_lshrrev_b32 v{t0+1}, 16, v{t0+1}")
        a(f"v_mul_u32_u24 v{t0+2}, 12, v{t0+1}")
        a(f"v_sub_u32 v{t0+2}, v{t0}, v{t0+2}")
        a(f"v_lshlrev_b32 v{t0+2}, 4, v{t0+2}")
        a(f"v_add_u32 v{t0+1}, s45, v{t0+1}")
        a(f"v_mad_u32_u24 v{vw[j]}, v{t0+1}, s47, v{t0+2}")
    a(f"s_lshl_b32 s{s_lx}, s{s_fw}, 10")
    a(f"s_add_u32 s{s_lx}, s{s_lx}, {UX[0]}")
    a("s_mul_i32 s45, s46, 6144")
    a(f"s_lshr_b32 s46, s{s_fw}, 1")
    a(f"s_mul_i32 s47, s46, {WIMG}")
    a("s_add_u32 s45, s45, s47")
    a(f"s_add_u32 s{s_lw}, s45, {UW[0]}")
    stagger(a, o.stagU)
    a(f"s_lshl_b32 s{s_xoff}, s44, 7")
    a(f"s_mul_i32 s{s_woff}, s44, {64*2752}")

def up_srd(a, s_fw, s_u0):
    srd(a, SA, 4, 5, 2048*1024)
    a(f"s_cmp_lt_u32 s{s_fw}, 2")
    a("s_cselect_b32 s46, s12, s14")
    a("s_cselect_b32 s47, s13, s15")
    a(f"s_lshl_b32 s44, s{s_u0}, 5")
    srd_off(a, SB, 46, 47, 44, 512*2752)

def up_dma_groups(vx, vw, s_lx, s_lw, s_xoff, s_woff):
    g = []
    for j in range(4):
        if j == 0: pre = [f"s_mov_b32 m0, s{s_lx}", f"s_mov_b32 s46, s{s_xoff}"]
        else: pre = ["s_add_u32 m0, m0, 4096", "s_add_u32 s46, s46, 32768"]
        g.append(pre + [f"buffer_load_dwordx4 v{vx}, s[{SA}:{SA+3}], s46 offen lds"])
    for j in range(6):
        if j == 0: pre = [f"s_mov_b32 m0, s{s_lw}", f"s_add_u32 s46, s{s_woff}, {16*2752}"]
        else: pre = ["s_add_u32 m0, m0, 1024", "s_nop 0"]
        so = s_woff if j < 3 else 46
        g.append(pre + [f"buffer_load_dwordx4 v{vw[j%3]}, s[{SB}:{SB+3}], s{so} offen lds"])
    return g

def srd_off(a, d, lo, hi, s_off, total):
    a(f"s_add_u32 s{d}, s{lo}, s{s_off}")
    a(f"s_addc_u32 s{d+1}, s{hi}, 0")
    a(f"s_and_b32 s{d+1}, s{d+1}, 0xffff")
    a(f"s_sub_u32 s{d+2}, {total}, s{s_off}")
    a(f"s_mov_b32 s{d+3}, 0x20000")

def dma_lanes(a, vr8, vc8, vx0, vx1, t, s_rb, s_w):
    a(f"v_lshrrev_b32 v{vr8}, 3, v0")
    a(f"v_and_b32 v{t}, 7, v0")
    a(f"v_lshrrev_b32 v{t+1}, 1, v{vr8}")
    a(f"v_xor_b32 v{t+2}, v{t}, v{t+1}")
    a(f"v_lshlrev_b32 v{t+2}, 4, v{t+2}")
    a(f"s_lshl_b32 s44, s{s_rb}, 7")
    a(f"s_lshl_b32 s45, s{s_w}, 5")
    a("s_add_u32 s44, s44, s45")
    a(f"v_add_u32 v{vx0}, s44, v{vr8}")
    a(f"v_lshl_add_u32 v{vx0}, v{vx0}, 10, v{t+2}")
    a(f"v_xor_b32 v{vx1}, 64, v{vx0}")
    a(f"v_add_u32 v{vx1}, 8192, v{vx1}")
    a(f"v_lshlrev_b32 v{t+1}, 2, v{t+1}")
    a(f"v_and_b32 v{t+1}, 4, v{t+1}")
    a(f"v_xor_b32 v{t}, v{t}, v{t+1}")
    a(f"v_lshlrev_b32 v{vc8}, 4, v{t}")

def dma_lds(a, s_lx, s_lw, s_w):
    a(f"s_lshl_b32 s{s_lx}, s{s_w}, 12")
    a(f"s_lshr_b32 s46, s{s_w}, 1")
    a(f"s_and_b32 s47, s{s_w}, 1")
    a(f"s_mul_i32 s44, s46, {TU-TG}")
    a("s_lshl_b32 s45, s47, 12")
    a("s_add_u32 s44, s44, s45")
    a(f"s_add_u32 s{s_lw}, s44, {TG}")

def start_stage(a, mode, s_lc, s_w, s_xoff, s_woff, pitch):
    if mode == 1:
        a(f"s_lshl_b32 s44, s{S_LOC}, 1")
        a(f"s_add_u32 s44, s44, s{s_lc}")
        a("s_and_b32 s44, s44, 7")
    elif mode == 2:
        a(f"s_lshl_b32 s44, s{S_LOC}, 1")
        a("s_and_b32 s44, s44, 7")
    else:
        a("s_mov_b32 s44, 0")
    a(f"s_lshl_b32 s{s_xoff}, s44, 7")
    a("s_lshl_b32 s44, s44, 1")
    a(f"s_and_b32 s45, s{s_w}, 1")
    a("s_add_u32 s44, s44, s45")
    a("s_lshl_b32 s44, s44, 5")
    a(f"s_mul_i32 s{s_woff}, s44, {pitch}")

def ffn_srd(a, s_w, s_u):
    a(f"s_cmp_lt_u32 s{s_w}, 2")
    a("s_cselect_b32 s46, s12, s14")
    a("s_cselect_b32 s47, s13, s15")
    a(f"s_lshl_b32 s44, s{s_u}, 5")
    a(f"s_add_u32 s{SB}, s46, s44")
    a(f"s_addc_u32 s{SB+1}, s47, 0")
    a(f"s_and_b32 s{SB+1}, s{SB+1}, 0xffff")
    a(f"s_sub_u32 s{SB+2}, {512*2752}, s44")
    a(f"s_mov_b32 s{SB+3}, 0x20000")

class LQ:
    def __init__(self): self.q = []
    def push(self, tag): self.q.append(tag)
    def need(self, tag):
        if tag not in self.q: return None
        i = len(self.q) - 1 - self.q[::-1].index(tag)
        n = len(self.q) - 1 - i
        self.q = self.q[i+1:]
        return n

def a_waves(a, st):
    R = Regs(4)
    vt = R.alloc(); vt2 = R.alloc(); vt3 = R.alloc(); vt4 = R.alloc()
    kaddr = R.alloc(); vaddr = R.alloc(); vcnt = R.alloc(); vstep = R.alloc(); vmask = R.alloc()
    vx0 = R.alloc(); vx1 = R.alloc(); vw = R.alloc()
    GG = R.alloc(4)
    vr8, vc8, vxu = GG, GG+1, GG+2
    Q = [R.alloc(4), R.alloc(4)]; KR = R.alloc(4); V0 = R.alloc(4); V1 = R.alloc(4)
    P = R.alloc(4); S = [R.alloc(16), R.alloc(16)]
    IDX = R.alloc(); vkp = R.alloc()
    O = [R.alloc(16), R.alloc(16)]; C = [R.alloc(16), R.alloc(16)]
    s_head, s_T, s_c, s_kg, s_vg, s_ld, s_tgt = 48, 49, 50, 51, 52, 53, 54
    s_q0, s_q1, s_slot, s_step, s_tok = 55, 56, 57, 58, 59
    a(f"s_cmp_ge_u32 s{S_WAVE}, 4")
    a("s_cbranch_scc1 L_help0")
    s_rb, s_lc, s_um, s_ue = 48, 49, 50, 51
    s_xoff, s_woff, s_lslot, s_cnt, s_lx, s_lw, s_pitch, s_xslot, s_xu, s_lxu = 52, 53, 54, 55, 56, 57, 58, 59, 60, 61
    JUNK = S[0]
    a(f"s_cmp_ge_u32 s{S_LOC}, 24")
    a("s_cbranch_scc1 L_pf")
    tile_ids(a, s_rb, s_lc)
    dma_lanes(a, vr8, vc8, vx0, vx1, vt2, s_rb, S_WAVE)
    dma_lds(a, s_lx, s_lw, S_WAVE)
    a(f"s_mov_b32 s{s_lslot}, {TS0+TSTR}")
    a(f"s_mov_b32 s{s_cnt}, 0")
    start_stage(a, o.stag1, s_lc, S_WAVE, s_xoff, s_woff, 3072)
    if o.rot:
        a(f"s_mov_b32 s63, s{s_woff}")
        a(f"s_add_u32 s62, s{S_LOC}, s{s_lc}")
        a(f"s_and_b32 s62, s62, {o.rot}")
        a(f"s_lshl_b32 s{s_xoff}, s62, 7")
        a(f"s_mul_i32 s44, s62, {64*3072}")
        a(f"s_add_u32 s{s_woff}, s44, s63")
    a(f"v_mul_u32_u24 v{vw}, 3072, v{vr8}")
    a(f"s_lshr_b32 s44, s{S_XCD}, 2")
    a("s_mul_i32 s44, s44, 6")
    a(f"s_add_u32 s44, s44, s{s_lc}")
    a("s_lshl_b32 s44, s44, 1")
    a("s_add_u32 s44, s44, s46")
    a("s_lshl_b32 s44, s44, 7")
    a(f"v_add3_u32 v{vw}, v{vw}, v{vc8}, s44")
    a("s_waitcnt lgkmcnt(0)")
    srd(a, SA, 4, 5, 2048*1024)
    srd(a, SB, 6, 7, 512*3072)
    a.label("L_ld0")
    a(f"s_add_u32 m0, s{s_lslot}, s{s_lx}")
    a(f"s_add_u32 s44, s{s_xoff}, 16384")
    for j in range(4):
        a(f"buffer_load_dwordx4 v{vx1 if j & 1 else vx0}, s[{SA}:{SA+3}], s{s_xoff if j < 2 else 44} offen lds")
        if j < 3: a("s_add_u32 m0, m0, 1024")
        else: a(f"s_add_u32 m0, s{s_lslot}, s{s_lw}")
        a([f"s_add_u32 s{s_cnt}, s{s_cnt}, 1", f"s_mov_b32 s45, s{s_woff}", f"s_add_u32 s{s_xoff}, s{s_xoff}, 128", "s_nop 0"][j])
    for j in range(4):
        a(f"buffer_load_dwordx4 v{vw}, s[{SB}:{SB+3}], s45 offen lds")
        if j < 3:
            a("s_add_u32 m0, m0, 1024")
            a(f"s_add_u32 s45, s45, {8*3072}")
    if o.rot:
        a(f"s_xor_b32 s44, s{s_cnt}, s62")
        a(f"s_cmp_lt_u32 s{s_cnt}, {o.rot+1}")
        a(f"s_cselect_b32 s44, s44, s{s_cnt}")
        a(f"s_lshl_b32 s{s_xoff}, s44, 7")
        a(f"s_mul_i32 s44, s44, {64*3072}")
        a(f"s_add_u32 s{s_woff}, s44, s63")
    else:
        a(f"s_add_u32 s{s_woff}, s{s_woff}, {64*3072}")
        a(f"s_and_b32 s{s_xoff}, s{s_xoff}, 1023")
        a(f"s_cselect_b32 s46, 0, {512*3072}")
        a(f"s_sub_u32 s{s_woff}, s{s_woff}, s46")
    a(f"s_add_u32 s{s_lslot}, s{s_lslot}, {TSTR}")
    a(f"s_cmp_eq_u32 s{s_lslot}, {TS0+3*TSTR}")
    a(f"s_cselect_b32 s{s_lslot}, {TS0}, s{s_lslot}")
    a(f"s_cmp_lt_u32 s{s_cnt}, 2")
    a("s_cbranch_scc1 L_ld0")
    a(f"s_cmp_eq_u32 s{s_cnt}, 8")
    a("s_cbranch_scc1 L_ld_end")
    a("s_waitcnt vmcnt(8)")
    a("s_barrier")
    a("s_branch L_ld0")
    a.label("L_pf")
    a(f"v_lshrrev_b32 v{vt}, 3, v0")
    a(f"v_and_b32 v{vt2}, 7, v0")
    a(f"v_lshlrev_b32 v{vt2}, 4, v{vt2}")
    a(f"v_lshl_add_u32 v{vx0}, v{vt}, 10, v{vt2}")
    a(f"v_mov_b32 v{vt3}, 1024")
    a(f"v_mov_b32 v{vt4}, 2560")
    a("v_cmp_gt_u32 vcc, 32, v0")
    a(f"s_sub_u32 s46, s{S_LOC}, 24")
    a("s_lshl_b32 s46, s46, 2")
    a(f"s_add_u32 s46, s46, s{S_WAVE}")
    a(f"v_cndmask_b32 v{vt3}, v{vt4}, v{vt3}, vcc")
    a(f"v_add_u32 v{vx1}, v{vt3}, v{V_L16}")
    a(f"s_and_b32 s44, s{S_XCD}, 3")
    a("s_lshl_b32 s44, s44, 5")
    a("s_add_u32 s44, s44, s46")
    a(f"s_lshl_b32 s{s_xoff}, s44, 14")
    a(f"s_add_u32 s{s_xoff}, s{s_xoff}, {128*o.pf0}")
    a(f"s_lshr_b32 s44, s{S_XCD}, 2")
    a("s_mul_i32 s44, s44, 1536")
    a(f"s_mul_i32 s{s_woff}, s46, {2*3072}")
    a(f"s_add_u32 s{s_woff}, s{s_woff}, s44")
    a(f"s_add_u32 s{s_woff}, s{s_woff}, {64*3072*o.pf0}")
    a(f"s_mov_b32 s{s_cnt}, {o.pf0}")
    a("s_waitcnt lgkmcnt(0)")
    srd(a, SA, 4, 5, 2048*1024)
    srd(a, SB, 6, 7, 512*3072)
    a(f"s_cmp_eq_u32 s{S_LOC}, 31")
    a("s_cbranch_scc0 L_pf1")
    a("s_sleep 4")
    a.label("L_pf1")
    a(f"s_add_u32 s44, s{s_xoff}, 8192")
    a(f"buffer_load_dwordx4 {v(JUNK,4)}, v{vx0}, s[{SA}:{SA+3}], s{s_xoff} offen")
    a(f"buffer_load_dwordx4 {v(JUNK,4)}, v{vx0}, s[{SA}:{SA+3}], s44 offen")
    a(f"buffer_load_dwordx4 {v(JUNK,4)}, v{V_L16}, s[{SB}:{SB+3}], s{s_woff} offen")
    a(f"buffer_load_dwordx4 {v(JUNK,4)}, v{vx1}, s[{SB}:{SB+3}], s{s_woff} offen")
    a(f"buffer_load_dwordx4 {v(JUNK,4)}, v{V_L16}, s[{SB}:{SB+3}], s{s_woff} offen offset:3584")
    a(f"s_add_u32 s{s_xoff}, s{s_xoff}, 128")
    a(f"s_add_u32 s{s_woff}, s{s_woff}, {64*3072}")
    a(f"s_add_u32 s{s_cnt}, s{s_cnt}, 1")
    a(f"s_cmp_lt_u32 s{s_cnt}, 8")
    a("s_cbranch_scc1 L_pf1")
    if o.pfup:
        if not o.pf31:
            a(f"s_cmp_eq_u32 s{S_LOC}, 31")
            a("s_cbranch_scc1 L_pf3")
        srd(a, SB, 12, 13, 512*2752)
        srd(a, SC, 14, 15, 512*2752)
        a(f"s_and_b32 s44, s{S_XCD}, 1")
        a(f"s_lshr_b32 s45, s{S_XCD}, 2")
        a("s_lshl_b32 s45, s45, 1")
        a("s_add_u32 s44, s44, s45")
        a("s_lshl_b32 s44, s44, 2")
        a("s_mul_i32 s45, s44, 5")
        a("s_min_u32 s44, s44, 6")
        a("s_add_u32 s44, s44, s45")
        a("s_lshl_b32 s44, s44, 5")
        a(f"s_mul_i32 s{s_woff}, s46, 2752")
        a(f"s_add_u32 s{s_woff}, s{s_woff}, s44")
        a(f"s_and_b32 s44, s{S_XCD}, 3")
        a("s_xor_b32 s44, s44, 1")
        a("s_lshl_b32 s44, s44, 5")
        a("s_add_u32 s44, s44, s46")
        a(f"s_lshl_b32 s{s_xoff}, s44, 14")
        a(f"s_mov_b32 s{s_cnt}, 0")
        a.label("L_pf2")
        a("s_mov_b32 exec_hi, 0x3ffff")
        a(f"buffer_load_dwordx4 {v(JUNK,4)}, v{V_L16}, s[{SB}:{SB+3}], s{s_woff} offen")
        a(f"buffer_load_dwordx4 {v(JUNK,4)}, v{V_L16}, s[{SC}:{SC+3}], s{s_woff} offen")
        a("s_mov_b32 exec_hi, -1")
        a(f"buffer_load_dwordx4 {v(JUNK,4)}, v{vx0}, s[{SA}:{SA+3}], s{s_xoff} offen")
        a(f"s_add_u32 s{s_woff}, s{s_woff}, {32*2752}")
        a(f"s_add_u32 s{s_cnt}, s{s_cnt}, 1")
        a(f"s_bitcmp1_b32 s{s_cnt}, 0")
        a(f"s_mov_b32 s44, {(128-8192) & 0xffffffff}")
        a("s_cselect_b32 s44, 8192, s44")
        a(f"s_add_u32 s{s_xoff}, s{s_xoff}, s44")
        a(f"s_cmp_lt_u32 s{s_cnt}, {o.pfup}")
        a("s_cbranch_scc1 L_pf2")
    a.label("L_pf3")
    for i in range(6): a("s_barrier")
    a.label("L_ld_end")
    srd(a, SWS, 24, 25, WS_BYTES)
    a("s_waitcnt vmcnt(8)")
    a("s_barrier")
    a("s_waitcnt vmcnt(0)")
    a("s_branch L_b7")

    a.label("L_help0")
    GT = S[0]
    a(f"v_lshl_add_u32 v{vt2}, v0, 2, v{V_MISC}")
    a(f"v_mov_b32 v{vt}, 0")
    a(f"ds_write_b32 v{vt2}, v{vt}")
    a("s_lshl_b32 s46, s2, 3")
    a(f"s_lshl_b32 s45, s{S_WAVE}, 1")
    a("s_add_u32 s46, s46, s45")
    a(f"s_sub_u32 s{s_tok}, s46, 8")
    a(f"s_lshl_b32 s44, s{s_tok}, 10")
    a("s_waitcnt lgkmcnt(0)")
    srd(a, SA, 4, 5, 2048*1024)
    srd(a, SB, 18, 19, 1024)
    srd(a, SWS, 24, 25, WS_BYTES)
    srd(a, SC, 22, 23, 256)
    a(f"s_cmp_eq_u32 s{S_WAVE}, 4")
    a("s_cbranch_scc0 L_help2")
    a(f"s_cmp_eq_u32 s{S_LOC}, 31")
    a("s_cbranch_scc0 L_help2")
    a("s_setprio 3")
    a(f"s_add_u32 s46, s24, {W0}")
    a("s_addc_u32 s47, s25, 0")
    a("s_load_dword s45, s[46:47], 0 glc")
    for i in range(4): a(f"v_mov_b32 v{GT+i}, 0")
    a(f"s_lshl_b32 s46, s{S_XCD}, 12")
    a(f"s_add_u32 s46, s46, {CNT}")
    for i in range(4):
        a(f"buffer_store_dwordx4 {v(GT,4)}, v{V_L16}, s[{SWS}:{SWS+3}], s46 offen offset:{i*1024} sc1")
    a("s_waitcnt lgkmcnt(0)")
    a("s_mul_i32 s45, s45, 0x19660d")
    a("s_add_u32 s45, s45, 0x3c6ef35f")
    a("s_max_u32 s45, s45, 1")
    a(f"v_mov_b32 v{vt3}, s45")
    a(f"s_lshl_b32 s46, s{S_XCD}, 2")
    a("s_waitcnt vmcnt(0)")
    a("s_mov_b64 exec, 1")
    a(f"buffer_store_dword v{vt3}, off, s[{SC}:{SC+3}], s46 sc1")
    a("s_mov_b64 exec, -1")
    a("s_setprio 0")
    if st.en:
        a("s_memrealtime s[96:97]"); a("s_waitcnt lgkmcnt(0)"); a("s_sub_u32 s95, s96, s70")
    a.label("L_help2")
    a(f"buffer_load_dwordx4 {v(GT,4)}, v{V_L16}, s[{SB}:{SB+3}], 0 offen")
    a(f"buffer_load_dwordx4 {v(GT+4,4)}, v{V_L16}, s[{SA}:{SA+3}], s44 offen")
    a(f"buffer_load_dwordx4 {v(GT+8,4)}, v{V_L16}, s[{SA}:{SA+3}], s44 offen offset:1024")
    a.label("L_help3")
    if o.ctouch:
        a(f"s_cmp_eq_u32 s{S_WAVE}, 5")
        a("s_cbranch_scc0 L_help4")
        a("s_getpc_b64 s[46:47]")
        a.label("L_pc")
        a(f"s_sub_u32 s46, s46, L_pc-{KN}")
        a("s_subb_u32 s47, s47, 0")
        a(f"s_lshl_b32 s44, s{S_LOC}, 9")
        a(f"s_min_u32 s44, s44, L_code_end-{KN}-512")
        a("s_add_u32 s46, s46, s44")
        a("s_addc_u32 s47, s47, 0")
        for i in range(8):
            a(f"s_load_dword s44, s[46:47], {64*i}")
        a("s_waitcnt lgkmcnt(0)")
    a.label("L_help4")
    a("s_barrier")
    st.stamp(2)
    a("s_barrier")
    a("s_waitcnt vmcnt(0)")
    for r in range(2):
        a(f"v_mov_b32 v{vt3+r}, 0")
    for i in range(4):
        for r in range(2):
            a(f"v_dot2c_f32_bf16 v{vt3+r}, v{GT+4+4*r+i}, v{GT+i}")
    a("s_nop 2")
    for dpp in ["row_shr:1", "row_shr:2", "row_shr:4", "row_shr:8", "row_bcast:15 row_mask:0xa", "row_bcast:31 row_mask:0xc"]:
        a("s_nop 0")
        for r in range(2):
            a(f"v_add_f32_dpp v{vt3+r}, v{vt3+r}, v{vt3+r} {dpp}")
    a("s_barrier")
    for r in range(2): a(f"v_mul_f32 v{vt3+r}, {f32bits(-LOG2E)}, v{vt3+r}")
    for r in range(2): a(f"v_exp_f32 v{vt3+r}, v{vt3+r}")
    a("s_nop 0")
    for r in range(2): a(f"v_add_f32 v{vt3+r}, 1.0, v{vt3+r}")
    for r in range(2): a(f"v_rcp_f32 v{GG+2*r}, v{vt3+r}")
    a(f"v_and_b32 v{vt2}, 7, v0")
    a(f"v_lshlrev_b32 v{vt2}, 2, v{vt2}")
    a("s_barrier")
    a("s_barrier")
    a(f"s_cmp_eq_u32 s{S_WAVE}, 4")
    a("s_cbranch_scc0 L_help5")
    a(f"buffer_load_dword v{vt}, v{vt2}, s[{SC}:{SC+3}], 0 offen sc1")
    a.label("L_help5")
    a("s_barrier")
    a("s_barrier")
    a("s_barrier")
    a(f"s_cmp_eq_u32 s{S_WAVE}, 4")
    a("s_cbranch_scc0 L_b7x")
    a(f"s_mov_b32 s{S_SPIN}, 0")
    a.label("L_np")
    a("s_waitcnt vmcnt(0)")
    a(f"v_cmp_eq_u32 vcc, 0, v{vt}")
    a(f"s_cmp_gt_u32 s{S_SPIN}, 200000")
    a("s_cbranch_scc1 L_ng")
    a("s_cbranch_vccz L_ng")
    a(f"s_add_u32 s{S_SPIN}, s{S_SPIN}, 1")
    a("s_sleep 4")
    a(f"buffer_load_dword v{vt}, v{vt2}, s[{SC}:{SC+3}], 0 offen sc1")
    a("s_branch L_np")
    a.label("L_ng")
    if st.en: a(f"s_add_u32 s100, s{S_SPIN}, 1")
    a("s_mov_b64 exec, 1")
    a(f"ds_write_b32 v{V_MISC}, v{vt} offset:{L_NONCE}")
    a("s_cmp_eq_u32 s2, 255")
    a("s_cbranch_scc0 L_nw")
    a(f"s_mov_b32 s44, {W0}")
    a(f"buffer_store_dword v{vt}, off, s[{SWS}:{SWS+3}], s44 sc1")
    a.label("L_nw")
    a("s_mov_b64 exec, -1")
    a("s_branch L_b7x")
    a.label("L_b7")
    a("s_barrier")
    a.label("L_b7x")
    a("s_sleep 8")
    st.stamp(3)
    a(f"s_lshl_b32 s44, s{S_XCD}, 2")
    a(f"s_and_b32 s45, s{S_LOC}, 3")
    a(f"s_add_u32 s{s_head}, s44, s45")
    a(f"s_lshr_b32 s44, s{S_LOC}, 2")
    a("s_lshl_b32 s44, s44, 3")
    a(f"s_and_b32 s45, s{S_WAVE}, 3")
    a("s_lshl_b32 s45, s45, 1")
    a("s_add_u32 s44, s44, s45")
    a(f"s_lshr_b32 s46, s{S_WAVE}, 2")
    a(f"s_add_u32 s{s_T}, s44, s46")
    a(f"s_lshl_b32 s44, s{s_head}, 16")
    a(f"s_lshl_b32 s{s_ld}, s{S_WAVE}, 10")
    a(f"s_add_u32 s{s_kg}, s44, s{s_ld}")
    a(f"s_add_u32 s{s_vg}, s{s_kg}, {VF}")
    a(f"s_add_u32 s{s_kg}, s{s_kg}, {KF}")
    a(f"s_lshl_b32 s45, s{s_T}, 10")
    a(f"s_add_u32 s{s_q0}, s44, s45")
    a(f"s_xor_b32 s{s_q1}, s{s_q0}, 1024")
    a("s_lshl_b32 s46, s46, 12")
    a(f"v_and_b32 v{vkp}, 51, v0")
    a(f"v_bfe_u32 v{vt3}, v0, 2, 1")
    a(f"v_lshl_or_b32 v{vkp}, v{vt3}, 3, v{vkp}")
    a(f"v_bfe_u32 v{vt3}, v0, 3, 1")
    a(f"v_lshl_or_b32 v{vkp}, v{vt3}, 2, v{vkp}")
    a(f"v_lshlrev_b32 v{vkp}, 4, v{vkp}")
    a(f"v_add_u32 v{kaddr}, s46, v{vkp}")
    a(f"v_mov_b32 v{IDX}, 0xdddddddd")
    a(f"v_and_b32 v{vt3}, 15, v0")
    a(f"v_lshlrev_b32 v{vt3}, 4, v{vt3}")
    a(f"v_lshrrev_b32 v{vt4}, 5, v0")
    a(f"v_lshl_add_u32 v{vt4}, v{vt4}, 8, v{vt3}")
    a("s_add_u32 s46, s46, 8192")
    a(f"v_add_u32 v{vaddr}, s46, v{vt4}")
    a(f"v_and_b32 v{vt4}, 16, v0")
    a(f"v_cmp_ne_u32 vcc, 0, v{vt4}")
    a(f"v_add_u32 v{vt3}, {VCONST}, v{vt3}")
    a(f"v_mov_b32 v{vstep}, 1")
    a("s_nop 0")
    a(f"v_cndmask_b32 v{vaddr}, v{vaddr}, v{vt3}, vcc")
    a(f"v_cndmask_b32 v{vstep}, v{vstep}, 0, vcc")
    a(f"s_lshl_b32 s44, s{S_WAVE}, 9")
    a(f"v_add_u32 v{vcnt}, s44, v{vt3}")
    a(f"v_and_b32 v{vt4}, 27, v0")
    a(f"v_cmp_eq_u32 vcc, 16, v{vt4}")
    a(f"v_mov_b32 v{vt3}, 0x3f803f80")
    a(f"s_mov_b32 s{s_c}, 0")
    a(f"s_mov_b32 s{s_tgt}, 16")
    for i in range(4):
        a(f"v_cndmask_b32 v{V1+i}, 0, v{vt3}, vcc")
    a("s_mov_b32 exec_lo, 0xffff0000")
    a("s_mov_b32 exec_hi, 0")
    a(f"ds_write_b128 v{vcnt}, {v(V1,4)}")
    a("s_mov_b64 exec, -1")
    a(f"v_mov_b32 v{P}, 0")
    a(f"v_mov_b32 v{P+1}, 0")
    for i in range(16): a(f"v_pk_mov_b32 {v(O[0]+2*i,2)}, {v(P,2)}, {v(P,2)}")
    a(f"s_mov_b32 s{s_slot}, 32768")
    a("s_mov_b32 s60, 99")
    a(f"s_cmp_ge_u32 s{S_WAVE}, 4")
    a("s_cbranch_scc0 L_at_nogst")
    lds_wait_ge(a, "gtag", V_MISC, L_NONCE, "1", GG+1, sleep=2)
    a(f"v_mov_b32 v{GG+3}, v{GG+1}")
    a(f"s_mov_b32 s60, 0")
    a.label("L_at_nogst")
    a(f"s_cmp_eq_u32 s{S_WAVE}, 0")
    a("s_cbranch_scc0 L_at_waitgo")
    a(f"s_lshr_b32 s44, s{S_XCD}, 1")
    a("s_lshl_b32 s44, s44, 1")
    a(f"s_bfe_u32 s45, s{S_LOC}, 0x10001")
    a("s_add_u32 s44, s44, s45")
    a("s_lshl_b32 s44, s44, 10")
    a(f"s_add_u32 s44, s44, {CQ}")
    a(f"v_min_u32 v{vw}, 5, v0")
    a(f"v_lshlrev_b32 v{vw}, 7, v{vw}")
    lds_wait_ge(a, "atpost", V_MISC, L_POST, "4", vt)
    a(f"s_cmp_ge_u32 s{S_LOC}, 24")
    a("s_cbranch_scc1 L_at_pp")
    a(f"s_sleep {o.pdelay}")
    a("s_branch L_at_ppd")
    a.label("L_at_pp")
    a(f"s_lshl_b32 s45, s{S_XCD}, 10")
    a(f"s_add_u32 s45, s45, {CQ + 6*128}")
    poll(a, "atp", vt, None, 45, 1, 4)
    if o.ppdelay: a(f"s_sleep {o.ppdelay}")
    a.label("L_at_ppd")
    st.stamp(2)
    poll(a, "atq", vt, vw, 44, 16, o.psleep)
    if st.en: a(f"s_mov_b32 s101, s{S_SPIN}")
    a(f"ds_write_b32 v{V_MISC}, v{V_ONE} offset:{L_GO}")
    a("s_branch L_at_go")
    a.label("L_at_waitgo")
    lds_wait_ge(a, "atgo", V_MISC, L_GO, "1", vt)
    a.label("L_at_go")
    st.stamp(4)
    def dma(lit=None):
        if lit is not None: a(f"s_add_u32 m0, s{s_ld}, {lit}")
        else: a(f"s_add_u32 m0, s{s_ld}, s{s_slot}")
        a("s_nop 0")
        a(f"buffer_load_dwordx4 v{V_L16}, s[{SWS}:{SWS+3}], s{s_kg} offen sc1 lds")
        a("s_add_u32 m0, m0, 8192")
        a(f"s_add_u32 s{s_kg}, s{s_kg}, 8192")
        a(f"buffer_load_dwordx4 v{V_L16}, s[{SWS}:{SWS+3}], s{s_vg} offen sc1 lds")
        a(f"s_add_u32 s{s_vg}, s{s_vg}, 8192")
    a(f"buffer_load_dwordx4 {v(Q[0],4)}, v{V_L16}, s[{SWS}:{SWS+3}], s{s_q0} offen sc1")
    a(f"buffer_load_dwordx4 {v(Q[1],4)}, v{V_L16}, s[{SWS}:{SWS+3}], s{s_q1} offen sc1")
    dma(0)
    a("s_waitcnt vmcnt(0) lgkmcnt(0)")
    lds_arrive(a, V_MISC, L_ATT)
    dma(16384)
    lds_wait_ge(a, "at0", V_MISC, L_ATT, "8", vt, sleep=0)
    st.stamp(5)
    a(f"ds_read_b128 {v(V0,4)}, v{V_L16}")
    a(f"ds_read_b128 {v(KR,4)}, v{kaddr}")
    a("s_waitcnt lgkmcnt(1)")
    for q in range(2):
        a(f"{MF} {v(S[q],16)}, {v(V0,4)}, {v(Q[q],4)}, 0")
    a(f"ds_read_b128 {v(V0,4)}, v{vaddr}")
    a("s_nop 9")
    def maxtree(dst, src, first):
        if first:
            a(f"v_max3_f32 v{dst}, v{src}, v{src+1}, v{src+2}")
            rest = list(range(3, 16))
        else:
            rest = list(range(0, 16))
        while len(rest) >= 2:
            a(f"v_max3_f32 v{dst}, v{dst}, v{src+rest[0]}, v{src+rest[1]}")
            rest = rest[2:]
        if rest:
            a(f"v_max_f32 v{dst}, v{dst}, v{src+rest[0]}")
    def setC(q):
        a(f"v_mov_b32 v{vt2}, v{vt}")
        a("s_nop 1")
        a(f"v_permlane32_swap_b32 v{vt}, v{vt2}")
        a("s_nop 1")
        a(f"v_max_f32 v{vt}, v{vt}, v{vt2}")
        a(f"v_sub_f32 v{C[q]}, 0, v{vt}")
        a(f"v_sub_f32 v{C[q]+1}, 0, v{vt}")
        for i in range(1, 8):
            a(f"v_pk_mov_b32 {v(C[q]+2*i,2)}, {v(C[q],2)}, {v(C[q],2)}")
    maxtree(vt, S[0], True)
    setC(0)
    a("s_waitcnt lgkmcnt(0)")
    a("s_nop 0")
    maxtree(vt, S[1], True)
    a(f"{MF} {v(S[0],16)}, {v(KR,4)}, {v(Q[0],4)}, {v(C[0],16)}")
    setC(1)
    for i in range(4):
        a(f"v_pk_mov_b32 {v(S[1]+8+2*i,2)}, {v(P,2)}, {v(P,2)}")
    def e(cur, i): a(f"v_exp_f32 v{cur+i}, v{cur+i}")
    c0, c1, c2 = [int(x) for x in o.cuts.split(",")]
    def body(emit, lq):
        def A(s):
            if emit: a(s)
        def w(tag):
            n = lq.need(tag)
            if n is not None: A(f"s_waitcnt lgkmcnt({n})")
        def E(cur, lo, hi):
            if emit:
                for i in range(lo, hi): e(cur, i)
        def rdv(reg, off, tag):
            A(f"ds_read_b128 {v(reg,4)}, v{vaddr} offset:{off}")
            lq.push(tag)
        for tt in range(4):
            for q in range(2):
                cur = S[q]; nxt = S[q ^ 1]
                stp = 2*tt + q
                if o.aprio >= 3 and stp in (0, o.aprio+1):
                    lab = a.newlabel("pr") if emit else ""
                    A(f"s_cmp_ge_u32 s{S_WAVE}, 4")
                    A(f"s_cbranch_scc1 {lab}")
                    A(f"s_setprio {1 if stp == 0 else 0}")
                    if emit: a.label(lab)
                E(cur, 0, c0)
                if q == 1: w("K")
                A(f"{SM} {v(O[q^1],16)}, {v(V1,4)}, {v(nxt+8,8)}, v{IDX}")
                if q == 0:
                    rdv(V1, tt*1024 + 512, "V1")
                if stp == o.xat:
                    if emit: st.abeg()
                    A("s_waitcnt vmcnt(0)")
                    if emit: st.aend(0)
                    A("s_mov_b64 exec, 1")
                    A(f"ds_add_u32 v{V_MISC}, v{V_ONE} offset:{L_ATT}")
                    A("s_mov_b64 exec, -1")
                    lq.push("X")
                if stp == o.yat - 1:
                    A(f"ds_read_b32 v{vcnt}, v{V_MISC} offset:{L_ATT}")
                    lq.push("CNT")
                E(cur, c0, c1)
                A(f"{MF} {v(nxt,16)}, {v(KR,4)}, {v(Q[q^1],4)}, {v(C[q^1],16)}")
                if q == 0:
                    if tt == 3:
                        A(f"v_add_u32 v{kaddr}, s{s_step}, v{kaddr}")
                        A(f"ds_read_b128 {v(KR,4)}, v{kaddr}")
                    else:
                        A(f"ds_read_b128 {v(KR,4)}, v{kaddr} offset:{(tt+1)*1024}")
                    lq.push("K")
                E(cur, c1, c2)
                if q == 0: w("V0")
                A(f"{SM} {v(O[q],16)}, {v(V0,4)}, {v(cur,8)}, v{IDX}")
                if q == 1:
                    if tt == 3:
                        A(f"v_mad_i32_i24 v{vaddr}, v{vstep}, s{s_step}, v{vaddr}")
                        rdv(V0, 0, "V0")
                    else:
                        rdv(V0, (tt+1)*1024, "V0")
                if stp == o.yat:
                    w("CNT")
                    A(f"v_cmp_gt_u32 vcc, s{s_tgt}, v{vcnt}")
                    A(f"s_cmp_lt_u32 s{s_c}, 6")
                    A("s_cbranch_vccnz L_at_slow")
                    if emit:
                        a.label("L_at_back")
                        a("s_cbranch_scc0 L_at_dmadone")
                        st.abeg()
                        dma()
                        st.aend(2)
                        a(f"s_add_u32 s{s_slot}, s{s_slot}, 16384")
                        a(f"s_cmp_eq_u32 s{s_slot}, 49152")
                        a(f"s_cselect_b32 s{s_slot}, 0, s{s_slot}")
                        a(f"s_cmp_eq_u32 s{s_c}, s60")
                        a("s_cbranch_scc1 L_at_gst")
                        a.label("L_at_dmadone")
                E(cur, c2, 16)
    lq = LQ()
    body(False, lq)
    steady = list(lq.q)
    if o.aprio:
        a(f"s_cmp_lt_u32 s{S_WAVE}, 4")
        a("s_cbranch_scc1 L_at_np")
        a("s_setprio 1")
        a.label("L_at_np")
    st.stamp(8)
    a(".p2align 6")
    a.label("L_at_loop")
    assert o.xat < o.yat - 1 and o.yat <= 5
    a(f"s_bitcmp1_b32 0x24, s{s_c}")
    a(f"s_mov_b32 s44, {(-32768) & 0xffffffff}")
    a(f"s_cselect_b32 s{s_step}, s44, 16384")
    body(True, lq)
    assert lq.q == steady, (lq.q, steady)
    a(f"s_add_u32 s{s_c}, s{s_c}, 1")
    a(f"s_add_u32 s{s_tgt}, s{s_tgt}, 8")
    a(f"s_cmp_lt_u32 s{s_c}, 8")
    a("s_cbranch_scc1 L_at_loop")
    st.stamp(9)
    a(f"{SM} {v(O[1],16)}, {v(V1,4)}, {v(S[1]+8,8)}, v{IDX}")
    a(f"s_and_b32 s44, s{S_WAVE}, 3")
    a("s_lshl_b32 s44, s44, 12")
    a(f"s_lshr_b32 s45, s{S_WAVE}, 2")
    a("s_lshl_b32 s45, s45, 15")
    a("s_add_u32 s44, s44, s45")
    a(f"v_add_u32 v{kaddr}, s44, v{V_L16}")
    a(f"v_xor_b32 v{vaddr}, 32768, v{kaddr}")
    a(f"s_and_b32 s44, s{S_WAVE}, 3")
    a(f"v_lshl_add_u32 v{vt3}, s44, 2, v{V_MISC}")
    a(f"s_lshl_b32 s46, s{s_T}, 5")
    a(f"s_add_u32 s46, s46, s{s_head}")
    a("s_lshl_b32 s46, s46, 10")
    a(f"s_add_u32 s{s_q0}, s46, {OF}")
    a(f"s_lshl_b32 s44, s{s_T}, 1")
    a(f"s_lshr_b32 s45, s{s_head}, 4")
    a("s_add_u32 s44, s44, s45")
    a("s_lshl_b32 s44, s44, 7")
    a(f"s_add_u32 s{s_q1}, s44, {CO}")
    for i in range(3):
        a(f"ds_write_b128 v{kaddr}, {v(O[1]+4*i,4)} offset:{i*1024}")
    a("s_waitcnt lgkmcnt(0)")
    lds_arrive(a, vt3, L_PAIR)
    a(f"s_mov_b32 s{S_SPIN}, 0")
    a.label("L_at_pair")
    a(f"ds_read_b32 v{vt}, v{vt3} offset:{L_PAIR}")
    for i in range(3):
        a(f"ds_read_b128 {v(O[1]+4*i,4)}, v{vaddr} offset:{i*1024}")
    a(f"s_add_u32 s{S_SPIN}, s{S_SPIN}, 1")
    a("s_waitcnt lgkmcnt(0)")
    a(f"v_cmp_gt_u32 vcc, 2, v{vt}")
    a(f"s_cmp_gt_u32 s{S_SPIN}, 2000000")
    a("s_cbranch_scc1 L_at_pok")
    a("s_cbranch_vccz L_at_pok")
    a("s_sleep 1")
    a("s_branch L_at_pair")
    a.label("L_at_pok")
    a(f"v_add_f32 v{O[0]+8}, v{O[0]+8}, v{O[1]+8}")
    for i in range(4):
        a(f"v_pk_add_f32 {v(O[0]+2*i,2)}, {v(O[0]+2*i,2)}, {v(O[1]+2*i,2)}")
    a(f"v_mov_b32 v{vt}, {f32bits(2.0**30)}")
    a(f"v_cmp_nle_f32 vcc, v{O[0]+8}, v{vt}")
    a(f"v_pk_mul_f32 {v(S[0],2)}, {v(O[0],2)}, 0")
    for i in range(1, 4):
        a(f"v_pk_fma_f32 {v(S[0],2)}, {v(O[0]+2*i,2)}, 0, {v(S[0],2)}")
    a(f"v_cmp_u_f32 s[44:45], v{S[0]}, v{S[0]+1}")
    a(f"v_rcp_f32 v{vt}, v{O[0]+8}")
    a("s_nop 2")
    a("s_or_b64 vcc, vcc, s[44:45]")
    a("s_cbranch_vccnz L_at_fallback")
    a.label("L_at_fin")
    for i in range(4):
        a(f"v_pk_mul_f32 {v(O[0]+2*i,2)}, {v(O[0]+2*i,2)}, {v(vt,2)} op_sel_hi:[1,0]")
    for i in range(4):
        a(f"v_cvt_pk_bf16_f32 v{P+i}, v{O[0]+2*i}, v{O[0]+2*i+1}")
    a(f"buffer_store_dwordx4 {v(P,4)}, v{V_L16}, s[{SWS}:{SWS+3}], s{s_q0} offen sc1")
    st.stamp(10)
    post(a, s_q1)
    st.stamp(11)
    if st.en and not getattr(o, "noffn", 0):
        st.stamp(6); st.real(7)
        for i in range(3): a("s_barrier")
        a("s_sleep 40")
        st.flush(SWS, S_WAVE, 4)
        a("s_endpgm")
    finish(a, st)
    a.label("L_at_gst")
    a(f"s_lshl_b32 s44, s{s_tok}, 3")
    a(f"s_add_u32 s44, s44, {GA}")
    a("s_mov_b32 exec_lo, 0")
    a("s_brev_b32 exec_hi, 1")
    a(f"buffer_store_dwordx4 {v(GG,4)}, off, s[{SWS}:{SWS+3}], s44 sc1")
    a("s_mov_b64 exec, -1")
    a("s_branch L_at_dmadone")
    a.label("L_at_slow")
    st.abeg()
    lds_wait_ge(a, "ats", V_MISC, L_ATT, f"s{s_tgt}", vcnt)
    st.aend(1)
    a(f"s_cmp_lt_u32 s{s_c}, 6")
    a("s_branch L_at_back")
    def fallback():
        a.label("L_at_fallback")
        a(f"s_lshl_b32 s46, s{s_head}, 16")
        a(f"s_add_u32 s{s_kg}, s46, {KF}")
        a(f"v_mov_b32 v{vt}, 0xff800000")
        a(f"s_mov_b32 s{s_c}, 0")
        a.label("L_at_fb1")
        a(f"buffer_load_dwordx4 {v(KR,4)}, v{V_L16}, s[{SWS}:{SWS+3}], s{s_kg} offen sc1")
        a(f"s_add_u32 s{s_kg}, s{s_kg}, 1024")
        a("s_waitcnt vmcnt(0)")
        a(f"{MF} {v(S[0],16)}, {v(KR,4)}, {v(Q[0],4)}, 0")
        a("s_nop 15")
        maxtree(vt, S[0], False)
        a(f"s_add_u32 s{s_c}, s{s_c}, 1")
        a(f"s_cmp_lt_u32 s{s_c}, 64")
        a("s_cbranch_scc1 L_at_fb1")
        setC(0)
        for i in range(16):
            a(f"v_mov_b32 v{O[0]+i}, 0")
        a(f"v_and_b32 v{vt}, 15, v0")
        a(f"v_lshlrev_b32 v{vt}, 4, v{vt}")
        a(f"v_lshrrev_b32 v{vt2}, 5, v0")
        a(f"v_lshl_add_u32 v{vaddr}, v{vt2}, 8, v{vt}")
        a(f"s_add_u32 s{s_kg}, s46, {KF}")
        a(f"s_add_u32 s{s_vg}, s46, {VF}")
        a(f"s_mov_b32 s{s_c}, 0")
        a("s_mov_b32 s44, 0xffff")
        a("s_mov_b32 s45, 0xffff")
        a.label("L_at_fb2")
        a(f"buffer_load_dwordx4 {v(KR,4)}, v{vkp}, s[{SWS}:{SWS+3}], s{s_kg} offen sc1")
        a("s_mov_b64 exec, s[44:45]")
        a(f"buffer_load_dwordx4 {v(V0,4)}, v{vaddr}, s[{SWS}:{SWS+3}], s{s_vg} offen sc1")
        a(f"buffer_load_dwordx4 {v(V1,4)}, v{vaddr}, s[{SWS}:{SWS+3}], s{s_vg} offen offset:512 sc1")
        a("s_mov_b64 exec, -1")
        a(f"s_add_u32 s{s_kg}, s{s_kg}, 1024")
        a(f"s_add_u32 s{s_vg}, s{s_vg}, 1024")
        a("s_waitcnt vmcnt(0)")
        a(f"{MF} {v(S[0],16)}, {v(KR,4)}, {v(Q[0],4)}, {v(C[0],16)}")
        a("s_nop 15")
        for i in range(16): e(S[0], i)
        a("s_nop 2")
        a(f"{SM} {v(O[0],16)}, {v(V0,4)}, {v(S[0],8)}, v{IDX}")
        a(f"{SM} {v(O[0],16)}, {v(V1,4)}, {v(S[0]+8,8)}, v{IDX}")
        a("s_nop 15")
        a(f"s_add_u32 s{s_c}, s{s_c}, 1")
        a(f"s_cmp_lt_u32 s{s_c}, 64")
        a("s_cbranch_scc1 L_at_fb2")
        a(f"v_rcp_f32 v{vt}, v{O[0]+8}")
        a("s_branch L_at_fin")
    return R.hi, fallback

def fbar(a, vt):
    tag = a.newlabel("fb")[2:]
    a(f"s_add_u32 s{S_FBT}, s{S_FBT}, 4")
    lds_arrive(a, V_MISC, L_FB)
    lds_wait_ge(a, tag, V_MISC, L_FB, f"s{S_FBT}", vt, sleep=2)

def f_waves(a, st):
    t0 = 4
    vx, vw, uxaddr, uwaddr = 8, [9, 10, 11], [16, 17, 18, 19], 12
    vsrc, wa = 14, 15
    s_fw, s_rb, s_lc, s_stage, s_cb, s_T2, s_N2, s_lb = 48, 49, 50, 53, 54, 60, 61, 62
    s_urb, s_cg, s_u0, s_skip, s_dx, s_dw = 51, 52, 55, 56, 57, 58
    s_lx, s_lw, s_xoff, s_woff = 63, 64, 65, 66
    hi = []
    R = Regs(20)
    xaddr = [R.alloc() for _ in range(4)]; waddr = R.alloc()
    XF = [[R.alloc(4) for _ in range(2)] for _ in range(2)]
    WF = [[R.alloc(4) for _ in range(2)] for _ in range(2)]
    ACC = [[R.alloc(16) for _ in range(2)] for _ in range(2)]
    TMP = R.alloc(16)
    hi.append(R.hi)
    a(f"s_sub_u32 s{s_fw}, s{S_WAVE}, 8")
    a(f"s_mov_b32 s{S_FBT}, 0")
    tile_ids(a, s_rb, s_lc)
    a(f"s_lshr_b32 s44, s{S_XCD}, 2")
    a("s_mul_i32 s44, s44, 6")
    a(f"s_add_u32 s{s_cb}, s44, s{s_lc}")
    a(f"s_and_b32 s44, s{s_fw}, 1")
    a(f"s_lshr_b32 s46, s{s_fw}, 1")
    a(f"v_and_b32 v{t0}, 31, v0")
    a(f"v_lshrrev_b32 v{t0+1}, 5, v0")
    a(f"v_bfe_u32 v{t0+2}, v{t0}, 1, 3")
    a(f"v_xor_b32 v{t0+2}, v{t0+2}, v{t0+1}")
    a(f"v_lshlrev_b32 v{t0+2}, 4, v{t0+2}")
    a(f"v_lshl_add_u32 v{t0}, v{t0}, 7, v{t0+2}")
    a("s_lshl_b32 s45, s44, 13")
    a(f"s_add_u32 s45, s45, {TS0+TSTR}")
    a(f"s_sub_u32 s47, s45, {TS0+TSTR-UX[0]}")
    for kk in range(4):
        a(f"v_xor_b32 v{t0+3}, {kk*32}, v{t0}")
        a(f"v_add_u32 v{xaddr[kk]}, s45, v{t0+3}")
        a(f"v_add_u32 v{uxaddr[kk]}, s47, v{t0+3}")
    a(f"v_bfe_u32 v{t0}, v0, 2, 2")
    a(f"v_bfe_u32 v{t0+2}, v0, 4, 1")
    a(f"v_and_b32 v{t0+3}, 3, v0")
    a(f"v_lshlrev_b32 v{t0+3}, 3, v{t0+3}")
    a(f"v_lshl_add_u32 v{uwaddr}, v{t0+1}, 3, v{t0}")
    a(f"v_lshl_add_u32 v{waddr}, v{uwaddr}, 7, v{t0+3}")
    a(f"v_mul_u32_u24 v{uwaddr}, 192, v{uwaddr}")
    a(f"v_mul_u32_u24 v{vsrc}, {WIMG}, v{t0+2}")
    a(f"v_add3_u32 v{uwaddr}, v{uwaddr}, v{vsrc}, v{t0+3}")
    a("s_mul_i32 s45, s46, 96")
    a(f"s_add_u32 s45, s45, {UW[0]}")
    a(f"v_add_u32 v{uwaddr}, s45, v{uwaddr}")
    a(f"v_lshlrev_b32 v{wa}, 5, v{t0}")
    a(f"v_and_b32 v{wa}, 64, v{wa}")
    a("s_lshl_b32 s45, s46, 6")
    a(f"v_xor_b32 v{wa}, s45, v{wa}")
    a(f"v_mul_u32_u24 v{vsrc}, {TU-TG}, v{t0+2}")
    a(f"v_add3_u32 v{waddr}, v{waddr}, v{vsrc}, v{wa}")
    a(f"v_add_u32 v{waddr}, {TS0+TSTR+TG}, v{waddr}")
    a(f"v_lshl_add_u32 v{t0+3}, v{t0+2}, 5, v{t0+3}")
    a(f"v_lshl_add_u32 v{t0}, v{t0+1}, 2, v{t0}")
    a(f"v_lshl_add_u32 v{t0+3}, v{t0}, 7, v{t0+3}")
    a(f"v_add_u32 v{wa}, v{wa}, v{t0+3}")
    a(f"s_lshl_b32 s{s_lb}, s{s_fw}, 14")
    a(f"s_add_u32 s{s_lb}, s{s_lb}, {STG}")
    a(f"s_lshl_b32 s44, s{S_XCD}, 2")
    a(f"s_and_b32 s45, s{S_LOC}, 3")
    a(f"s_add_u32 s{s_T2}, s44, s45")
    a(f"s_lshr_b32 s{s_N2}, s{S_LOC}, 2")
    a(f"v_lshrrev_b32 v{t0}, 3, v0")
    a(f"v_and_b32 v{t0+1}, 7, v0")
    a(f"v_lshlrev_b32 v{t0+3}, 1, v{t0}")
    a(f"v_and_b32 v{t0+3}, 4, v{t0+3}")
    a(f"v_xor_b32 v{t0+3}, v{t0+1}, v{t0+3}")
    a(f"v_lshlrev_b32 v{t0+3}, 4, v{t0+3}")
    a(f"v_lshl_add_u32 v{t0+3}, v{t0}, 10, v{t0+3}")
    a(f"s_lshl_b32 s44, s{s_N2}, 7")
    a(f"v_add_u32 v{vsrc}, s44, v{t0+3}")
    def zero(r, n):
        a(f"v_mov_b32 v{r}, 0")
        a(f"v_mov_b32 v{r+1}, 0")
        for i in range(1, n//2): a(f"v_pk_mov_b32 {v(r+2*i,2)}, {v(r,2)}, {v(r,2)}")
    up_dma_setup(a, t0, vx, vw, s_fw, s_urb, s_cg, s_u0, s_lx, s_lw, s_xoff, s_woff)
    a(f"s_lshr_b32 s46, s{s_fw}, 1")
    a(f"s_cmp_ge_u32 s{s_cg}, 6")
    a(f"s_cselect_b32 s{s_skip}, s46, 0")
    a(f"s_mov_b32 s{s_dx}, {UX[1]-UX[0]}")
    a(f"s_add_u32 s{s_dw}, s{s_lw}, {3*UWS}")
    zero(ACC[0][0], 64)
    a(f"s_mov_b32 s{s_stage}, 0")
    a("s_waitcnt lgkmcnt(0)")
    srd(a, SWS, 24, 25, WS_BYTES)
    up_srd(a, s_fw, s_u0)
    a(f"s_cmp_lt_u32 s{S_LOC}, 24")
    a("s_cbranch_scc1 L_E_work")
    for i in range(8): a("s_barrier")
    a("s_branch L_E_done")
    a.label("L_E_work")
    def rx(kk, buf, t): a(f"ds_read_b128 {v(XF[buf][t],4)}, v{xaddr[kk]} offset:{t*4096}")
    def rw(kk, buf, u, h): a(f"ds_read_b64_tr_b16 {v(WF[buf][u]+2*h,2)}, v{waddr} offset:{kk*2048+u*32+h*512}")
    a("s_barrier")
    st.stamp(2)
    if st.en: a("s_waitcnt lgkmcnt(0)")
    rx(0, 0, 0); rw(0, 0, 0, 0); rw(0, 0, 0, 1); rx(0, 0, 1); rw(0, 0, 1, 0); rw(0, 0, 1, 1)
    a(f"s_cmp_ge_u32 s{s_cb}, 8")
    a("s_cbranch_scc1 L_E_loopV")
    def loop(tag):
        def mm(buf, u, t):
            A_, B_ = (XF[buf][t], WF[buf][u]) if tag == "V" else (WF[buf][u], XF[buf][t])
            a(f"{MF} {v(ACC[u][t],16)}, {v(A_,4)}, {v(B_,4)}, {v(ACC[u][t],16)}")
        a.label(f"L_E_loop{tag}")
        for kk in range(3):
            b = kk & 1; n = b ^ 1
            a("s_waitcnt lgkmcnt(3)")
            mm(b, 0, 0)
            rx(kk+1, n, 0); rw(kk+1, n, 0, 0)
            a("s_waitcnt lgkmcnt(4)")
            mm(b, 0, 1)
            rw(kk+1, n, 0, 1); rx(kk+1, n, 1)
            a("s_waitcnt lgkmcnt(4)")
            mm(b, 1, 0)
            rw(kk+1, n, 1, 0); rw(kk+1, n, 1, 1)
            mm(b, 1, 1)
            if kk == 2:
                a(f"s_add_u32 s{s_stage}, s{s_stage}, 1")
                a(f"s_lshr_b32 s44, 0x24, s{s_stage}")
                a("s_bitcmp1_b32 s44, 0")
                a(f"s_mov_b32 s45, {(-2*TSTR) & 0xffffffff}")
                a(f"s_cselect_b32 s44, s45, {TSTR}")
        a("s_waitcnt lgkmcnt(3)")
        mm(1, 0, 0)
        for r in xaddr + [waddr]:
            a(f"v_add_u32 v{r}, s44, v{r}")
        a(f"s_cmp_eq_u32 s{s_stage}, 8")
        a("s_waitcnt lgkmcnt(0)")
        mm(1, 0, 1)
        a(f"s_cbranch_scc1 L_E_tail{tag}")
        a("s_barrier")
        rx(0, 0, 0); rw(0, 0, 0, 0); rw(0, 0, 0, 1)
        mm(1, 1, 0)
        rx(0, 0, 1); rw(0, 0, 1, 0); rw(0, 0, 1, 1)
        mm(1, 1, 1)
        a(f"s_branch L_E_loop{tag}")
        a.label(f"L_E_tail{tag}")
        mm(1, 1, 0)
        mm(1, 1, 1)
    loop("T")
    a(f"v_mov_b32 v{t0}, v{V_L16}")
    a(f"s_mov_b32 s47, {4*65536}")
    a("s_branch L_E_epiQ")
    loop("V")
    a(f"v_and_b32 v{t0}, 15, v0")
    a(f"v_lshlrev_b32 v{t0}, 4, v{t0}")
    a(f"v_lshrrev_b32 v{t0+1}, 5, v0")
    a(f"v_lshl_add_u32 v{t0}, v{t0+1}, 8, v{t0}")
    a(f"v_bfe_u32 v{t0+1}, v0, 4, 1")
    a(f"v_lshl_add_u32 v{t0}, v{t0+1}, 18, v{t0}")
    a("s_mov_b32 s47, 512")
    a.label("L_E_epiQ")
    st.stamp(3)
    a(f"s_lshl_b32 s44, s{s_cb}, 19")
    a(f"s_lshr_b32 s45, s{s_fw}, 1")
    a("s_lshl_b32 s45, s45, 17")
    a("s_add_u32 s44, s44, s45")
    a(f"s_lshl_b32 s45, s{s_rb}, 12")
    a("s_add_u32 s44, s44, s45")
    a(f"s_and_b32 s45, s{s_fw}, 1")
    a("s_lshl_b32 s45, s45, 11")
    a("s_add_u32 s44, s44, s45")
    a("s_add_u32 s45, s44, s47")
    a(f"s_cmp_lt_u32 s{s_cb}, 4")
    a("s_cbranch_scc0 L_E_noscale")
    a(f"s_mov_b32 s46, {f32bits(QSCALE)}")
    a("s_mov_b32 s47, s46")
    for i in range(32):
        a(f"v_pk_mul_f32 {v(ACC[0][0]+2*i,2)}, {v(ACC[0][0]+2*i,2)}, s[46:47]")
    a.label("L_E_noscale")
    n = 0
    for u in range(2):
        for t in range(2):
            for half in range(2):
                tm = TMP + 4*(n & 3); n += 1
                src = ACC[u][t] + 8*half
                for i in range(4):
                    a(f"v_cvt_pk_bf16_f32 v{tm+i}, v{src+2*i}, v{src+2*i+1}")
                a(f"buffer_store_dwordx4 {v(tm,4)}, v{t0}, s[{SWS}:{SWS+3}], s{44+half} offen offset:{t*1024} sc1")
        if u == 0:
            a("s_add_u32 s44, s44, 65536")
            a("s_add_u32 s45, s45, 65536")
    a(f"s_and_b32 s44, s{s_cb}, 3")
    a("s_lshl_b32 s44, s44, 1")
    a(f"s_lshr_b32 s45, s{s_fw}, 1")
    a("s_add_u32 s44, s44, s45")
    a("s_lshl_b32 s44, s44, 3")
    a(f"s_lshr_b32 s45, s{s_cb}, 2")
    a("s_lshl_b32 s45, s45, 1")
    a("s_add_u32 s44, s44, s45")
    a(f"s_and_b32 s45, s{s_fw}, 1")
    a("s_add_u32 s44, s44, s45")
    a("s_lshl_b32 s44, s44, 7")
    a(f"s_add_u32 s44, s44, {CQ}")
    lds_wait_ge(a, "tg1", V_MISC, L_NONCE, "1", t0+1)
    post(a, 44)
    a(f"s_add_u32 s44, s{S_LOC}, s{s_fw}")
    a("s_cmp_eq_u32 s44, 0")
    a("s_cbranch_scc0 L_E_done2")
    a(f"s_lshl_b32 s44, s{S_XCD}, 10")
    a(f"s_add_u32 s44, s44, {CQ + 6*128}")
    a("s_mov_b64 exec, 1")
    a(f"buffer_atomic_add v{V_ONE}, off, s[{SWS}:{SWS+3}], s44 sc1")
    a("s_mov_b64 exec, -1")
    a("s_branch L_E_done2")
    a.label("L_E_done")
    lds_wait_ge(a, "tg2", V_MISC, L_NONCE, "1", t0+1)
    a.label("L_E_done2")
    lds_arrive(a, V_MISC, L_POST)
    st.stamp(4)
    if o.noffn: finish(a, st)
    R = Regs(20)
    XF = [[R.alloc(4) for _ in range(2)] for _ in range(2)]
    WF = [R.alloc(4) for _ in range(3)]
    UACC = [[R.alloc(16) for _ in range(2)] for _ in range(3)]
    hi.append(R.hi)
    def up_groups():
        g = up_dma_groups(vx, vw, s_lx, s_lw, s_xoff, s_woff)
        g[3] += [f"s_add_u32 s{s_xoff}, s{s_xoff}, 128",
                 f"s_and_b32 s{s_xoff}, s{s_xoff}, 1023",
                 f"s_add_u32 s{s_lx}, s{s_lx}, s{s_dx}",
                 f"s_sub_u32 s{s_dx}, 0, s{s_dx}"]
        g[9] += [f"s_add_u32 s{s_woff}, s{s_woff}, {64*2752}",
                 f"s_cmp_eq_u32 s{s_woff}, {512*2752}",
                 f"s_cselect_b32 s{s_woff}, 0, s{s_woff}",
                 f"s_add_u32 s{s_lw}, s{s_lw}, {UWS}",
                 f"s_cmp_eq_u32 s{s_lw}, s{s_dw}",
                 f"s_cselect_b32 s44, {3*UWS}, 0",
                 f"s_sub_u32 s{s_lw}, s{s_lw}, s44"]
        return g
    zero(UACC[0][0], 96)
    a(f"s_setprio {o.fprio}")
    if o.upat == 9: lds_wait_ge(a, "upgo", V_MISC, L_POST, "4", t0, sleep=2)
    if o.upat == 10: lds_wait_ge(a, "upgo", V_MISC, L_ATT, "8", t0, sleep=4)
    if o.upat == 12: lds_wait_ge(a, "upgo", V_MISC, L_GO, "1", t0, sleep=2)
    if o.udelay: a(f"s_sleep {o.udelay}")
    for grp in up_groups() + up_groups()[4:]:
        for l in grp: a(l)
    a(f"s_mov_b32 s{s_stage}, 0")
    a(f"s_mov_b32 s{s_rb}, {UX[1]-UX[0]}")
    a(f"s_mov_b32 s{s_lc}, {UWS}")
    def rd_x(kk, buf):
        for t in range(2):
            a(f"ds_read_b128 {v(XF[buf][t],4)}, v{uxaddr[kk]} offset:{t*4096}")
    def rd_w(kk, u):
        off = kk*16*192 + u*32
        a(f"ds_read_b64_tr_b16 {v(WF[u],2)}, v{uwaddr} offset:{off}")
        a(f"ds_read_b64_tr_b16 {v(WF[u]+2,2)}, v{uwaddr} offset:{off+4*192}")
    def nops(n):
        if n > 0: a(f"s_nop {n-1}")
    cnt = [0, o.mprio]
    def umm(u, buf, fill=None, after=3):
        for t in range(2):
            a(f"{MF} {v(UACC[u][t],16)}, {v(WF[u],4)}, {v(XF[buf][t],4)}, {v(UACC[u][t],16)}")
            if o.hp:
                want = 2 if (fill and cnt[0] < o.hp) else o.mprio
                if want != cnt[1]: a(f"s_setprio {want}"); cnt[1] = want
                cnt[0] += 1
            if fill:
                for _ in range(o.dper):
                    if fill:
                        for l in fill.pop(0): a(l)
            else:
                nops(o.fpace - (after if t == 1 else 0))
    st.abeg()
    a("s_waitcnt vmcnt(6)")
    fbar(a, t0)
    st.aend(2)
    rd_x(0, 0)
    for u in range(3): rd_w(0, u)
    if o.upause == -1: lds_wait_ge(a, "upp0", V_MISC, L_ATT, "8", t0, sleep=4)
    a(f"s_setprio {o.mprio}")
    def umm_skip(u, buf):
        if u == 2:
            lab = a.newlabel("upskip")
            a(f"s_cmp_lg_u32 s{s_skip}, 0")
            a(f"s_cbranch_scc1 {lab}")
            umm(u, buf)
            a.label(lab)
        else:
            umm(u, buf)
    if o.upwarm:
        srd(a, SC, 16, 17, 1376*1024 if o.w0 == 0 else 0)
        a(f"s_lshl_b32 s44, s{S_LOC}, 2")
        a(f"s_add_u32 s44, s44, s{s_fw}")
        a("s_lshl_b32 s54, s44, 10")
        a("s_mov_b32 s59, s54")
    a.label("L_up_loop")
    groups = up_groups()
    if o.upwarm:
        wl = [f"buffer_load_dwordx4 v[160:163], v{V_L16}, s[{SC}:{SC+3}], s59 offen", "s_add_u32 s59, s59, 131072"]
        groups.append(wl * (o.upwarm // 2)); groups.append(wl * (o.upwarm - o.upwarm // 2))
    for kk in range(3):
        buf = kk & 1
        for u in range(3):
            younger = (2-u)*2 + (0 if u == 0 else 2 + 2*u)
            a(f"s_waitcnt lgkmcnt({younger})")
            if u == 2: umm_skip(u, buf)
            else: umm(u, buf, groups, 5 if u == 0 else 3)
            if u == 0: rd_x(kk+1, buf ^ 1)
            rd_w(kk+1, u)
    assert not groups
    a("s_waitcnt lgkmcnt(4)")
    umm(0, 1)
    a(f"s_cmp_eq_u32 s{s_stage}, 7")
    a("s_cbranch_scc1 L_up_last")
    st.abeg()
    a(f"s_waitcnt vmcnt({6 + o.upwarm}) lgkmcnt(0)")
    st.aend(0)
    a(f"s_add_u32 s{S_FBT}, s{S_FBT}, 4")
    lds_arrive(a, V_MISC, L_FB)
    umm(1, 1)
    a(f"s_setprio {o.fprio}")
    for r in uxaddr:
        a(f"v_add_u32 v{r}, s{s_rb}, v{r}")
    a(f"v_add_u32 v{uwaddr}, s{s_lc}, v{uwaddr}")
    st.abeg()
    lds_wait_ge(a, "upb", V_MISC, L_FB, f"s{S_FBT}", t0, sleep=1)
    st.aend(1)
    a(f"s_setprio {o.mprio}")
    rd_x(0, 0)
    rd_w(0, 0); rd_w(0, 1)
    umm_skip(2, 1)
    rd_w(0, 2)
    a(f"s_sub_u32 s{s_rb}, 0, s{s_rb}")
    a(f"s_add_u32 s{s_stage}, s{s_stage}, 1")
    a(f"s_bitcmp1_b32 0x24, s{s_stage}")
    a(f"s_mov_b32 s44, {(-2*UWS) & 0xffffffff}")
    a(f"s_cselect_b32 s{s_lc}, s44, {UWS}")
    a(f"s_cmp_eq_u32 s{s_stage}, 7")
    a(f"s_cselect_b32 s{SA+2}, 0, s{SA+2}")
    a(f"s_cmp_eq_u32 s{s_stage}, 6")
    a(f"s_cselect_b32 s{SB+2}, 0, s{SB+2}")
    if o.upwarm:
        w1 = o.w0 + (11 + o.upwarm - 1) // o.upwarm
        if o.w0:
            a(f"s_cmp_eq_u32 s{s_stage}, {o.w0}")
            a(f"s_cselect_b32 s{SC+2}, {1376*1024}, s{SC+2}")
            a("s_cselect_b32 s59, s54, s59")
        a(f"s_and_b32 s44, s9, 0xffff")
        a(f"s_cmp_eq_u32 s{s_stage}, {w1}")
        a(f"s_cselect_b32 s{SC}, s8, s{SC}")
        a(f"s_cselect_b32 s{SC+1}, s44, s{SC+1}")
        a(f"s_cselect_b32 s{SC+2}, {512*1024}, s{SC+2}")
        a("s_cselect_b32 s59, s54, s59")
    if o.upause > 0:
        a(f"s_cmp_eq_u32 s{s_stage}, {o.upause}")
        a("s_cbranch_scc0 L_up_loop")
        a(f"s_setprio {o.fprio}")
        lds_wait_ge(a, "upp", V_MISC, L_ATT, "8", t0, sleep=4)
        a(f"s_setprio {o.mprio}")
    a("s_branch L_up_loop")
    a.label("L_up_last")
    a("s_waitcnt lgkmcnt(0)")
    umm(1, 1)
    umm_skip(2, 1)
    a(f"s_setprio {o.fprio}")
    st.stamp(5)
    a(f"s_lshl_b32 s44, s{s_urb}, 2")
    a(f"s_and_b32 s45, s{s_fw}, 1")
    a("s_lshl_b32 s45, s45, 1")
    a("s_add_u32 s44, s44, s45")
    a("s_mul_i32 s44, s44, 86")
    a(f"s_add_u32 s44, s44, s{s_u0}")
    a(f"s_lshr_b32 s45, s{s_fw}, 1")
    a("s_mul_i32 s45, s45, 3")
    a("s_add_u32 s44, s44, s45")
    a("s_lshl_b32 s44, s44, 10")
    a(f"s_add_u32 s44, s44, {HF}")
    a(f"s_add_u32 s45, s44, {86*1024}")
    a(f"s_mov_b32 s46, {f32bits(-LOG2E)}")
    a("s_mov_b32 s47, s46")
    for u in range(3):
        if u == 2:
            a(f"s_cmp_lg_u32 s{s_skip}, 0")
            a("s_cbranch_scc1 L_up_done")
        for t in range(2):
            g = UACC[u][t]; up = g + 8
            tm = XF[u & 1][t]
            for i in range(4): a(f"v_pk_mul_f32 {v(g+2*i,2)}, {v(g+2*i,2)}, s[46:47]")
            for i in range(8): a(f"v_exp_f32 v{g+i}, v{g+i}")
            for i in range(4): a(f"v_pk_add_f32 {v(g+2*i,2)}, {v(g+2*i,2)}, 1.0 op_sel_hi:[1,0]")
            for i in range(8): a(f"v_rcp_f32 v{g+i}, v{g+i}")
            for i in range(4): a(f"v_pk_mul_f32 {v(g+2*i,2)}, {v(g+2*i,2)}, {v(up+2*i,2)}")
            for i in range(4): a(f"v_cvt_pk_bf16_f32 v{tm+i}, v{g+2*i}, v{g+2*i+1}")
            a(f"buffer_store_dwordx4 {v(tm,4)}, v{V_L16}, s[{SWS}:{SWS+3}], s{44+t} offen offset:{u*1024} sc1")
    a.label("L_up_done")
    a(f"s_lshl_b32 s44, s{s_urb}, 2")
    a(f"s_add_u32 s44, s44, s{s_fw}")
    a("s_lshl_b32 s44, s44, 7")
    a(f"s_add_u32 s44, s44, {CH}")
    post(a, 44)
    st.stamp(8)
    s_h0, s_h1, s_w, s_i, s_T, s_nt, s_idx, s_dl = 49, 50, 51, 52, 53, 54, 55, 56
    R = Regs(16)
    ACC = [R.alloc(16) for _ in range(4)]
    HFR = [[R.alloc(4) for _ in range(2)] for _ in range(8)]
    WF = [[R.alloc(4) for _ in range(2)] for _ in range(2)]
    G = 8; VOUT = 10; da = [11, 12]; db = [R.alloc(), R.alloc()]
    hi.append(R.hi)
    fbar(a, t0)
    a(f"ds_read_b32 v{t0+3}, v{V_MISC} offset:{L_NONCE}")
    if not o.gapw:
        srd(a, SA, 8, 9, 512*1024)
        a(f"s_lshl_b32 s{s_w}, s{s_fw}, 17")
        a(f"s_mov_b32 m0, s{s_lb}")
        a(f"s_mov_b32 s{s_i}, 14")
        a.label("L_wo_ld")
        a(f"buffer_load_dwordx4 v{vsrc}, s[{SA}:{SA+3}], s{s_w} offen lds")
        a("s_add_u32 m0, m0, 1024")
        a(f"s_add_u32 s{s_w}, s{s_w}, 8192")
        a(f"s_sub_u32 s{s_i}, s{s_i}, 1")
        a(f"s_cmp_lg_u32 s{s_i}, 0")
        a("s_cbranch_scc1 L_wo_ld")
        srd(a, SA, 16, 17, 1376*1024)
    else:
        srd(a, SA, 16, 17, 1376*1024)
        srd(a, SC, 8, 9, 512*1024)
        if o.gapw == 1:
            a(f"s_and_b32 s44, s{S_LOC}, 3")
            a("s_lshl_b32 s44, s44, 2")
            a(f"s_add_u32 s44, s44, s{s_fw}")
            a("s_lshl_b32 s45, s44, 15")
            a(f"s_mul_i32 s44, s44, {86*1024}")
            a(f"s_mov_b32 s{s_i}, {o.nwd}")
            a.label("L_wd_warm")
            a(f"buffer_load_dwordx4 {v(HFR[7][0],4)}, v{vsrc}, s[{SA}:{SA+3}], s44 offen")
            a("s_add_u32 s44, s44, 8192")
            a(f"s_sub_u32 s{s_i}, s{s_i}, 1")
            a(f"s_cmp_lg_u32 s{s_i}, 0")
            a("s_cbranch_scc1 L_wd_warm")
            for i in range(4):
                a(f"buffer_load_dwordx4 {v(HFR[7][0],4)}, v{vsrc}, s[{SC}:{SC+3}], s45 offen")
                a("s_add_u32 s45, s45, 8192")
        elif o.gapw == 2:
            a(f"s_lshl_b32 s44, s{S_LOC}, 2")
            a(f"s_add_u32 s44, s44, s{s_fw}")
            a("s_lshl_b32 s44, s44, 10")
            a("s_mov_b32 s45, s44")
            for i in range(o.nwd):
                a(f"buffer_load_dwordx4 {v(HFR[7][0],4)}, v{V_L16}, s[{SA}:{SA+3}], s44 offen")
                a("s_add_u32 s44, s44, 131072")
            for i in range(o.nwo):
                a(f"buffer_load_dwordx4 {v(HFR[7][0],4)}, v{V_L16}, s[{SC}:{SC+3}], s45 offen")
                a("s_add_u32 s45, s45, 131072")
        a(f"s_mov_b32 s59, {(-2*1024) & 0xffffffff}")
        a(f"s_lshl_b32 s63, s{s_fw}, 17")
    a(f"s_mul_i32 s{s_dl}, s{s_fw}, 6144")
    a(f"s_add_u32 s{s_dl}, s{s_dl}, {DRING}")
    a(f"v_add_u32 v{da[0]}, s{s_dl}, v{wa}")
    a(f"v_xor_b32 v{da[1]}, 64, v{da[0]}")
    a(f"v_add_u32 v{db[0]}, s{s_lb}, v{wa}")
    a(f"v_xor_b32 v{db[1]}, 64, v{db[0]}")
    a(f"s_lshl_b32 s{s_w}, s{s_fw}, 14")
    a(f"s_lshl_b32 s44, s{s_T2}, 1")
    a(f"s_and_b32 s45, s{s_fw}, 1")
    a(f"s_add_u32 s{s_T}, s44, s45")
    a(f"s_xor_b32 s47, s{s_T}, 1")
    for d, sx in ((s_h0, s_T), (s_h1, 47)):
        a(f"s_mul_i32 s{d}, s{sx}, 86")
        a(f"s_add_u32 s{d}, s{d}, s{s_fw}")
        a(f"s_lshl_b32 s{d}, s{d}, 10")
        a(f"s_add_u32 s{d}, s{d}, {HF}")
    a(f"s_lshl_b32 s44, s{s_N2}, 1")
    a(f"s_lshr_b32 s45, s{s_fw}, 1")
    a(f"s_add_u32 s{s_nt}, s44, s45")
    a(f"v_and_b32 v{t0}, 31, v0")
    a(f"v_lshrrev_b32 v{t0+1}, 5, v0")
    a(f"v_lshlrev_b32 v{t0+1}, 4, v{t0+1}")
    a(f"v_lshl_add_u32 v{VOUT}, v{t0}, 10, v{t0+1}")
    a("s_waitcnt lgkmcnt(0)")
    a(f"v_readfirstlane_b32 s{S_NONCE}, v{t0+3}")
    a(f"v_lshlrev_b32 v{t0+1}, 3, v{t0}")
    a(f"s_lshl_b32 s44, s{s_T}, 8")
    a(f"s_add_u32 s44, s44, {GA}")
    a(f"s_mov_b32 s{S_SPIN}, 0")
    a.label("L_g_poll")
    a(f"buffer_load_dwordx2 {v(G,2)}, v{t0+1}, s[{SWS}:{SWS+3}], s44 offen sc1")
    a(f"s_add_u32 s{S_SPIN}, s{S_SPIN}, 1")
    a("s_waitcnt vmcnt(0)")
    a(f"v_cmp_ne_u32 vcc, s{S_NONCE}, v{G+1}")
    a(f"s_cmp_gt_u32 s{S_SPIN}, 200000")
    a("s_cbranch_scc1 L_g_got")
    a("s_cbranch_vccz L_g_got")
    a("s_sleep 8")
    a("s_branch L_g_poll")
    a.label("L_g_got")
    a(f"v_sub_f32 v{G+1}, 1.0, v{G}")
    a(f"s_cmp_eq_u32 s{s_fw}, 0")
    a("s_cbranch_scc0 L_dn_nopoll")
    a(f"s_lshr_b32 s44, s{s_T2}, 1")
    a("s_lshl_b32 s44, s44, 2")
    a(f"s_and_b32 s45, s{s_T2}, 1")
    a("s_add_u32 s44, s44, s45")
    a("s_lshl_b32 s44, s44, 7")
    a(f"s_add_u32 s44, s44, {CH}")
    a(f"v_and_b32 v{t0+2}, 1, v0")
    a(f"v_lshlrev_b32 v{t0+2}, 8, v{t0+2}")
    poll(a, "dn", t0+1, t0+2, 44, 16, 8)
    a.label("L_dn_nopoll")
    fbar(a, t0+1)
    st.stamp(9)
    s_wend, s_hend = 57, 58
    s_o, s_out, s_co = 49, 50, 51
    def ldw(g):
        m = f"s_add_u32 m0, s{s_dl}, {(g%4)*2048}" if g % 4 < 3 else f"s_add_u32 m0, s{s_lb}, {7*2048}"
        p0 = [m, f"s_add_u32 s44, s{s_w}, 8192", f"buffer_load_dwordx4 v{vsrc}, s[{SA}:{SA+3}], s{s_w} offen lds"]
        p1 = ["s_add_u32 m0, m0, 1024", f"s_add_u32 s{s_w}, s{s_w}, 65536", f"buffer_load_dwordx4 v{vsrc}, s[{SA}:{SA+3}], s44 offen lds"]
        if o.stagD: p1 += [f"s_cmp_eq_u32 s{s_w}, s{s_wend}", f"s_cselect_b32 s{s_w}, s46, s{s_w}"]
        return [p0, p1]
    def ldh(g):
        p0 = [f"s_add_u32 s45, s{s_h0}, s{s_h1}", f"buffer_load_dwordx4 {v(HFR[g%4][0],4)}, v{V_L16}, s[{SWS}:{SWS+3}], s{s_h0} offen sc1"]
        p1 = [f"s_add_u32 s{s_h0}, s{s_h0}, 4096", f"buffer_load_dwordx4 {v(HFR[g%4][1],4)}, v{V_L16}, s[{SWS}:{SWS+3}], s45 offen sc1"]
        if o.stagD: p1 += [f"s_cmp_eq_u32 s{s_h0}, s{s_hend}", f"s_cselect_b32 s{s_h0}, s47, s{s_h0}"]
        return [p0, p1]
    def emit(ps):
        for p in ps:
            for l in p: a(l)
    def rdw1(off, buf, ad, n):
        a(f"ds_read_b64_tr_b16 {v(WF[buf][n],2)}, v{ad[n]} offset:{off}")
        a(f"ds_read_b64_tr_b16 {v(WF[buf][n]+2,2)}, v{ad[n]} offset:{off+1024}")
    def rdw(off, buf, ad=da):
        for n in range(2): rdw1(off, buf, ad, n)
    a(f"s_sub_u32 s{s_h1}, s{s_h1}, s{s_h0}")
    a(f"s_mov_b32 s46, s{s_w}")
    a(f"s_mov_b32 s47, s{s_h0}")
    a(f"s_add_u32 s{s_wend}, s46, {21*65536}")
    a(f"s_add_u32 s{s_hend}, s47, {21*4096}")
    if o.stagD:
        a(f"s_and_b32 s44, s{S_LOC}, 3")
        a("s_mul_i32 s44, s44, 5")
        a(f"s_mul_i32 s45, s{s_N2}, 21")
        a("s_lshr_b32 s45, s45, 3")
        a("s_add_u32 s44, s44, s45")
        a("s_cmp_ge_u32 s44, 21")
        a("s_cselect_b32 s45, 21, 0")
        a(f"s_sub_u32 s{s_i}, s44, s45")
    else:
        a(f"s_mov_b32 s{s_i}, 0")
    a(f"s_mov_b32 s{s_w}, s{s_wend}")
    a(f"s_cmp_lt_u32 s{s_fw}, 2")
    a(f"s_cselect_b32 s{s_h0}, s{s_hend}, s47")
    emit(ldw(0))
    a(f"s_lshl_b32 s44, s{s_i}, 16")
    a(f"s_add_u32 s{s_w}, s46, s44")
    emit(ldw(1)); emit(ldh(0))
    a(f"s_lshl_b32 s44, s{s_i}, 12")
    a(f"s_add_u32 s{s_h0}, s47, s44")
    emit(ldw(2)); emit(ldh(1))
    emit(ldw(3)); emit(ldh(2))
    a(f"s_setprio {o.dprio}")
    a("s_waitcnt vmcnt(12)")
    rdw(0, 0)
    def rstep(k):
        b = k & 1
        issued = lambda j: (2 if j + 4 <= 21 else 0) + (2 if j + 3 <= 21 else 0) + (2 if j == 19 else 0) + (1 if (o.gapw and 1 <= j <= 16) else 0)
        a(f"s_waitcnt vmcnt({issued(k-2) + issued(k-1)}) lgkmcnt(0)")
        parts = (ldw(k+4) if k + 4 <= 21 else [[], []]) + (ldh(k+3) if k + 3 <= 21 else [[], []])
        if o.gapw and 1 <= k <= 16:
            parts[3] = parts[3] + ["s_max_i32 s44, s59, 0", f"s_add_u32 m0, s{s_lb}, s44", "s_lshl_b32 s44, s44, 3", "s_add_u32 s44, s44, s63",
                                   f"buffer_load_dwordx4 v{vsrc}, s[{SC}:{SC+3}], s44 offen lds", "s_add_u32 s59, s59, 1024"]
        if k == 19:
            parts = [[f"s_mov_b32 s{SA}, s8", f"s_and_b32 s{SA+1}, s9, 0xffff", f"s_mov_b32 s{SA+2}, {512*1024}",
                      f"s_lshl_b32 s44, s{s_fw}, 17", f"s_add_u32 s44, s44, {14*8192}"],
                     [f"s_add_u32 m0, s{s_lb}, {14*1024}", "s_add_u32 s45, s44, 8192",
                      f"buffer_load_dwordx4 v{vsrc}, s[{SA}:{SA+3}], s44 offen lds"],
                     ["s_add_u32 m0, m0, 1024", "s_nop 0", f"buffer_load_dwordx4 v{vsrc}, s[{SA}:{SA+3}], s45 offen lds"], []]
        if k == 20:
            parts = [[f"s_mov_b32 s{SB}, s20", f"s_and_b32 s{SB+1}, s21, 0xffff", f"s_mov_b32 s{SB+2}, {2048*1024}", f"s_mov_b32 s{SB+3}, 0x20000"],
                     [f"s_lshr_b32 s46, s{s_fw}, 1", f"s_lshl_b32 s44, s{s_T}, 15", "s_lshl_b32 s45, s46, 14", "s_add_u32 s45, s44, s45",
                      f"s_add_u32 s{s_o}, s45, {OF}"],
                     [f"s_lshl_b32 s45, s{s_nt}, 6", f"s_add_u32 s{s_out}, s44, s45", f"s_lshl_b32 s44, s{s_T}, 1", "s_add_u32 s44, s44, s46"],
                     ["s_lshl_b32 s44, s44, 7", f"s_add_u32 s{s_co}, s44, {CO}"]]
        for n in range(2):
            for t in range(2):
                c = "0" if k == 0 else v(ACC[2*n+t],16)
                a(f"{MF} {v(ACC[2*n+t],16)}, {v(WF[b][n],4)}, {v(HFR[k%4][t],4)}, {c}")
                if n == 0 and k < 21:
                    if (k+1) % 4 < 3: rdw1(((k+1) % 4)*2048, b ^ 1, da, t)
                    else: rdw1(7*2048, b ^ 1, db, t)
                for l in parts[2*n+t]: a(l)
    rstep(0)
    a(f"s_mov_b32 s{s_i}, 4")
    a.label("L_dn_loop")
    for k in range(1, 5): rstep(k)
    a(f"s_sub_u32 s{s_i}, s{s_i}, 1")
    a(f"s_cmp_lg_u32 s{s_i}, 0")
    a("s_cbranch_scc1 L_dn_loop")
    for k in range(17, 22): rstep(k)
    a(f"s_setprio {o.fprio}")
    st.stamp(10)
    a("s_waitcnt vmcnt(0)")
    a("s_barrier")
    if o.tdelay: a(f"s_sleep {o.tdelay}")
    a(f"buffer_load_dword v{t0+1}, off, s[{SWS}:{SWS+3}], s{s_co} sc1")
    a("s_lshl_b32 s44, s46, 15")
    a(f"s_add_u32 s44, s44, {STG}")
    a(f"v_add_u32 v{da[0]}, s44, v{wa}")
    a(f"v_xor_b32 v{da[1]}, 64, v{da[0]}")
    a(f"s_lshl_b32 s44, s{s_fw}, 13")
    a(f"v_add_u32 v{t0}, s44, v{V_L16}")
    a(f"v_xor_b32 v{t0+2}, 8192, v{t0}")
    a(f"v_xor_b32 v{t0+3}, 16384, v{t0}")
    for n in range(2):
        for i in range(4):
            a(f"ds_write_b128 v{t0}, {v(ACC[2*n+1]+4*i,4)} offset:{n*4096+i*1024}")
    a("s_waitcnt lgkmcnt(0)")
    a("s_barrier")
    for n in range(2):
        for i in range(4):
            a(f"ds_read_b128 {v(ACC[2*n+1]+4*i,4)}, v{t0+2} offset:{n*4096+i*1024}")
    WF.append([160, 164])
    hi.append(168)
    for n in (1, 0): rdw1(0, 0, da, n)
    BQ = [ACC[0], ACC[2]]
    def bsum():
        for n in range(2):
            a(f"s_waitcnt lgkmcnt({4*(1-n)+4})")
            for i in range(8):
                a(f"v_pk_add_f32 {v(BQ[n]+2*i,2)}, {v(BQ[n]+2*i,2)}, {v(ACC[2*n+1]+2*i,2)}")
            for i in range(8):
                a(f"v_pk_mul_f32 {v(BQ[n]+2*i,2)}, {v(BQ[n]+2*i,2)}, {v(G,2)} op_sel:[0,1] op_sel_hi:[1,1]")
    poll(a, "tl", t0+1, None, s_co, 16, o.tsleep, first_issued=True)
    st.stamp(11)
    if st.en: a("s_waitcnt lgkmcnt(0)")
    OFR = [HFR[i >> 1][i & 1] for i in range(16)]
    def ldo(i):
        a(f"buffer_load_dwordx4 {v(OFR[i],4)}, v{V_L16}, s[{SWS}:{SWS+3}], s{s_o} offen offset:{(i&3)*1024} sc1")
        if i & 3 == 3 and i < 15: a(f"s_add_u32 s{s_o}, s{s_o}, 4096")
    for i in range(o.nfirst): ldo(i)
    bsum()
    if o.tprof: st.stamp(2); a("s_waitcnt lgkmcnt(0)")
    for n in (1, 0): rdw1(2048, 1, da, n)
    pend = list(range(o.nfirst, 16))
    AO = [ACC[1], ACC[3]]
    for i in range(16):
        buf = i % 3
        a(f"s_waitcnt vmcnt({15-len(pend)-i}) lgkmcnt({4 if i < 15 else 0})")
        if o.tprof and i == 0: st.stamp(3); a("s_waitcnt lgkmcnt(0)")
        for n in (1, 0):
            c = "0" if i == 0 else v(AO[n],16)
            a(f"{MF} {v(AO[n],16)}, {v(WF[buf][n],4)}, {v(OFR[i],4)}, {c}")
            if i < 14: rdw1((i+2)*2048, (i+2) % 3, da, n)
            if pend: ldo(pend.pop(0))
    if o.tprof: st.stamp(4)
    a("s_nop 10")
    for i in range(4):
        for j in (2*i, 2*i+1):
            a(f"v_pk_fma_f32 {v(BQ[1]+2*j,2)}, {v(AO[1]+2*j,2)}, {v(G,2)}, {v(BQ[1]+2*j,2)} op_sel_hi:[1,0,1]")
        a(f"ds_write_b128 v{t0}, {v(BQ[1]+4*i,4)} offset:{32768+i*1024}")
    for i in range(8):
        a(f"v_pk_fma_f32 {v(BQ[0]+2*i,2)}, {v(AO[0]+2*i,2)}, {v(G,2)}, {v(BQ[0]+2*i,2)} op_sel_hi:[1,0,1]")
    a("s_waitcnt lgkmcnt(0)")
    a("s_barrier")
    for i in range(4):
        a(f"ds_read_b128 {v(AO[1]+4*i,4)}, v{t0+3} offset:{32768+i*1024}")
    if o.tprof: st.stamp(5); a("s_waitcnt lgkmcnt(0)")
    T2 = AO[0]
    for p in range(2):
        a(f"s_waitcnt lgkmcnt({2*(1-p)})")
        for i in range(4*p, 4*p+4):
            a(f"v_pk_add_f32 {v(BQ[0]+2*i,2)}, {v(BQ[0]+2*i,2)}, {v(AO[1]+2*i,2)}")
        for i in range(4*p, 4*p+4):
            a(f"v_cvt_pk_bf16_f32 v{T2+i}, v{BQ[0]+2*i}, v{BQ[0]+2*i+1}")
        b = T2 + 4*p
        a("s_nop 1")
        a(f"v_permlane32_swap_b32 v{b}, v{b+2}")
        a(f"v_permlane32_swap_b32 v{b+1}, v{b+3}")
        a("s_nop 1")
        a(f"buffer_store_dwordx4 {v(b,4)}, v{VOUT}, s[{SB}:{SB+3}], s{s_out} offen offset:{32*p}{['', ' sc1', ' nt', ' sc0 sc1', ' sc1 nt'][o.ost]}")
    if o.tprof: st.stamp(8)
    finish(a, st)
    return hi

def build(path):
    global KN
    KN = "kb_kernel" if (o.report or o.instr) else KNAME
    a = Asm()
    a('.amdgcn_target "amdgcn-amd-amdhsa--gfx950"')
    a(".text")
    st = Stamper(a, o.instr, 0)
    kernel_header(a, KN)
    a("s_cmp_ge_u32 s2, 256")
    a("s_cbranch_scc1 L_exit")
    a("s_load_dwordx16 s[4:19], s[0:1], 0")
    a("s_load_dwordx4 s[20:23], s[0:1], 64")
    a("s_load_dwordx2 s[24:25], s[0:1], 80")
    st.init(); st.real(0); st.stamp(1)
    a("v_lshrrev_b32 v1, 6, v0")
    a("v_and_b32 v0, 63, v0")
    a(f"s_and_b32 s{S_XCD}, s2, 7")
    a(f"v_readfirstlane_b32 s{S_WAVE}, v1")
    a(f"s_lshr_b32 s{S_LOC}, s2, 3")
    a(f"v_lshlrev_b32 v{V_L16}, 4, v0")
    a(f"v_mov_b32 v{V_MISC}, {MISC}")
    a(f"v_mov_b32 v{V_ONE}, 1")
    a(f"s_cmp_ge_u32 s{S_WAVE}, 8")
    a("s_cbranch_scc1 L_F")
    ahi, fallback = a_waves(a, st)
    a.label("L_F")
    hi = f_waves(a, st) + [ahi]
    a.label("L_code_end")
    fallback()
    a.label("L_exit")
    a("s_endpgm")
    print("vgprs", hi)
    assert max(hi) <= 168
    descs = [kernel_desc(KN, 168)]
    if o.report or o.instr:
        hdr = f"; @launch kernel={KN} grid=(256,1,1) block=(768,1,1) lds={LDS_TOTAL}\n"
        if o.report:
            k, w, i = [int(x) for x in str(o.report).split(",")]
            reporter(a, k, w, i)
            hdr += "; @launch kernel=rep_kernel grid=(1,1,1) block=(64,1,1) lds=0\n"
            descs.append(kernel_desc("rep_kernel", 16))
    else:
        hdr = f"; @launch grid=(256,1,1) block=(768,1,1) lds={LDS_TOTAL}\n"
    a('.section .rodata,"a"')
    open(path, "w").write("; generated by gen/gen21.py\n" + hdr + a.text() + "".join(descs))

if __name__ == "__main__":
    path = sys.argv[1]
    for arg in sys.argv[2:]:
        k, _, val = arg.partition("=")
        assert hasattr(Opt, k), k
        setattr(Opt, k, (val if ',' in val else int(val)) if val else True)
    if Opt.report: Opt.instr = True; Stamper.rt = True
    if Opt.acc: Stamper.acc = True
    if Opt.rt: Stamper.rt = True
    build(path)
```

```python
import math, sys
from asmlib import *

MB = 1 << 20
QF, KF, VF, OF, HF = 0, 2*MB, 4*MB, 6*MB, 8*MB
GA = 14*MB
CNT = 14*MB + 0x10000
CQ, CH, CO = CNT, CNT + 64*128, CNT + 128*128
W0 = 14*MB + 0x20000
WS_BYTES = 32*MB
LOG2E = 1.4426950408889634
QSCALE = 0.25 * LOG2E
LDS_TOTAL = 163840
KNAME = "gated_mix__mha_block__glu_gated_glu__prompt_kernel"

TS0, TSTR = 32768, 33024
TG, TU = 16384, 16384 + 8192 + 32
WIMG = 12288 + 32
UX = [49152, 65536]
UW = [81920]; UWS = 24832
STG = 65536
DRING = 131072
VCONST = 156672
GL = 160768
MISC = LDS_TOTAL - 256
L_NONCE, L_ATT, L_FB, L_GO, L_PAIR, L_POST = 0, 4, 8, 12, 16, 32

S_WAVE, S_NONCE = 26, 27
SWS, SA, SB, SC = 28, 32, 36, 40
S_XCD, S_LOC, S_FBT, S_SPIN = 3, 69, 67, 68
V_L16, V_MISC, V_ONE = 1, 2, 3
MF = "v_mfma_f32_32x32x16_bf16"
SM = "v_smfmac_f32_32x32x32_bf16"

class Opt:
    instr = False
    report = None
    acc = 0
    rt = 0
    ppdelay = 2
    fprio = 2
    mprio = 0
    aprio = 5
    psleep = 2
    stag1 = 0
    stag2 = 1
    pdelay = 16
    dper = 1
    upause = 1
    ost = 0
    pf31 = 1
    upat = 9
    upwarm = 3
    yat = 5
    noffn = 0
    hold = 0
    par = 1
    holdn = 1
    w0 = 2
    rotU = 0
    hp = 0
    gapw = 0
    nwd = 11
    nwo = 4
    dprio = 0
    pf0 = 2
    rot = 0
    stagD = 1
    nfirst = 10
    tprof = 0
    tsleep = 4
    cuts = '2,6,10'
    pfup = 6
    stagU = 0
    fpace = 0
    la = 3
    udelay = 0
    xat = 1
    ctouch = 1
    tdelay = 0
o = Opt

def srd(a, d, lo, hi, nbytes):
    a(f"s_mov_b32 s{d}, s{lo}")
    a(f"s_and_b32 s{d+1}, s{hi}, 0xffff")
    a(f"s_mov_b32 s{d+2}, {nbytes}")
    a(f"s_mov_b32 s{d+3}, 0x20000")

def finish(a, st):
    if st.en: a("s_waitcnt vmcnt(0)")
    st.stamp(6); st.real(7); st.flush(SWS, S_WAVE, 4)
    a("s_endpgm")

def post(a, s_off):
    a("s_waitcnt vmcnt(0)")
    a("s_mov_b64 exec, 1")
    a(f"buffer_atomic_add v{V_ONE}, off, s[{SWS}:{SWS+3}], s{s_off} sc1")
    a("s_mov_b64 exec, -1")

def poll(a, tag, vt, voff, s_off, target, sleep, first_issued=False):
    def ld():
        if voff is None: a(f"buffer_load_dword v{vt}, off, s[{SWS}:{SWS+3}], s{s_off} sc1")
        else: a(f"buffer_load_dword v{vt}, v{voff}, s[{SWS}:{SWS+3}], s{s_off} offen sc1")
    a(f"s_mov_b32 s{S_SPIN}, 0")
    if not first_issued: ld()
    a.label(f"L_{tag}_poll")
    a(f"s_add_u32 s{S_SPIN}, s{S_SPIN}, 1")
    a("s_waitcnt vmcnt(0)")
    a(f"v_cmp_gt_u32 vcc, {target}, v{vt}")
    a(f"s_cmp_gt_u32 s{S_SPIN}, 200000")
    a(f"s_cbranch_scc1 L_{tag}_got")
    a(f"s_cbranch_vccz L_{tag}_got")
    if sleep: a(f"s_sleep {sleep}")
    ld()
    a(f"s_branch L_{tag}_poll")
    a.label(f"L_{tag}_got")

def lds_wait_ge(a, tag, vaddr, off, target, vt, sleep=1):
    a(f"s_mov_b32 s{S_SPIN}, 0")
    a.label(f"L_{tag}_spin")
    a(f"ds_read_b32 v{vt}, v{vaddr} offset:{off}")
    a(f"s_add_u32 s{S_SPIN}, s{S_SPIN}, 1")
    a("s_waitcnt lgkmcnt(0)")
    a(f"v_cmp_gt_u32 vcc, {target}, v{vt}")
    a(f"s_cmp_gt_u32 s{S_SPIN}, 2000000")
    a(f"s_cbranch_scc1 L_{tag}_ok")
    a(f"s_cbranch_vccz L_{tag}_ok")
    if sleep: a(f"s_sleep {sleep}")
    a(f"s_branch L_{tag}_spin")
    a.label(f"L_{tag}_ok")

def lds_arrive(a, vaddr, off):
    a("s_mov_b64 exec, 1")
    a(f"ds_add_u32 v{vaddr}, v{V_ONE} offset:{off}")
    a("s_mov_b64 exec, -1")

def tile_ids(a, s_rb, s_lc):
    a(f"s_and_b32 s44, s{S_XCD}, 3")
    a("s_lshl_b32 s44, s44, 2")
    a(f"s_and_b32 s45, s{S_LOC}, 3")
    a(f"s_add_u32 s{s_rb}, s44, s45")
    a(f"s_lshr_b32 s{s_lc}, s{S_LOC}, 2")

def ids_up(a, s_rb, s_cg, s_u0):
    a(f"s_and_b32 s44, s{S_XCD}, 2")
    a("s_lshl_b32 s44, s44, 2")
    a(f"s_and_b32 s45, s{S_LOC}, 7")
    a(f"s_add_u32 s{s_rb}, s44, s45")
    quad_start(a, s_u0)
    a(f"s_and_b32 s44, s{S_XCD}, 1")
    if not o.par: a("s_xor_b32 s44, s44, 1")
    a(f"s_sub_u32 s{s_cg}, 6, s44")
    a(f"s_lshr_b32 s45, s{S_LOC}, 3")
    a(f"s_mul_i32 s47, s45, s{s_cg}")
    a(f"s_add_u32 s{s_u0}, s{s_u0}, s47")
    a("s_cmp_eq_u32 s45, 3")
    a("s_cselect_b32 s44, s44, 0")
    a(f"s_sub_u32 s{s_cg}, s{s_cg}, s44")

def quad_start(a, d):
    a(f"s_lshr_b32 s44, s{S_XCD}, 2")
    a("s_mul_i32 s44, s44, 43")
    a(f"s_and_b32 s45, s{S_XCD}, 1")
    if not o.par: a("s_xor_b32 s45, s45, 1")
    a("s_mul_i32 s45, s45, 24")
    a(f"s_add_u32 s{d}, s44, s45")

def stagger(a, mode=None):
    pass
    if mode == 1:
        a(f"s_lshr_b32 s44, s{S_LOC}, 3")
        a("s_lshl_b32 s44, s44, 1")
        a(f"s_add_u32 s44, s44, s{S_LOC}")
        a("s_and_b32 s44, s44, 7")
    elif mode == 2:
        a(f"s_lshr_b32 s44, s{S_LOC}, 3")
        a(f"s_add_u32 s44, s44, s{S_LOC}")
        a("s_and_b32 s44, s44, 3")
        a("s_lshl_b32 s44, s44, 1")
    elif mode == 3:
        a(f"s_lshr_b32 s44, s{S_LOC}, 3")
        a(f"s_add_u32 s44, s44, s{S_LOC}")
        a("s_and_b32 s44, s44, 1")
        a("s_lshl_b32 s44, s44, 2")
    else:
        a("s_mov_b32 s44, 0")

def up_dma_setup(a, t0, vx, vw, s_fw, s_rb, s_cg, s_u0, s_lx, s_lw, s_xoff, s_woff):
    a(f"v_lshrrev_b32 v{t0}, 3, v0")
    a(f"v_and_b32 v{t0+1}, 7, v0")
    a(f"v_lshrrev_b32 v{t0+2}, 1, v{t0}")
    ids_up(a, s_rb, s_cg, s_u0)
    a(f"s_and_b32 s46, s{s_fw}, 1")
    a("s_lshl_b32 s45, s46, 2")
    a(f"v_or_b32 v{t0+2}, s45, v{t0+2}")
    a(f"v_xor_b32 v{t0+1}, v{t0+1}, v{t0+2}")
    a(f"v_lshlrev_b32 v{t0+1}, 4, v{t0+1}")
    a(f"s_lshl_b32 s44, s{s_rb}, 7")
    a(f"s_lshl_b32 s45, s{s_fw}, 3")
    a("s_add_u32 s44, s44, s45")
    a(f"v_add_u32 v{t0}, s44, v{t0}")
    a(f"v_lshl_add_u32 v{vx}, v{t0}, 10, v{t0+1}")
    a("s_movk_i32 s44, 5462")
    a("s_movk_i32 s47, 2752")
    a("s_lshl_b32 s45, s46, 5")
    for j in range(3):
        a(f"v_add_u32 v{t0}, {64*j}, v0")
        a(f"v_mul_u32_u24 v{t0+1}, s44, v{t0}")
        a(f"v_lshrrev_b32 v{t0+1}, 16, v{t0+1}")
        a(f"v_mul_u32_u24 v{t0+2}, 12, v{t0+1}")
        a(f"v_sub_u32 v{t0+2}, v{t0}, v{t0+2}")
        a(f"v_lshrrev_b32 v{t0}, 1, v{t0+2}")
        a(f"v_cmp_gt_u32 vcc, s{s_cg}, v{t0}")
        a(f"v_lshlrev_b32 v{t0+2}, 4, v{t0+2}")
        a(f"v_add_u32 v{t0+1}, s45, v{t0+1}")
        a(f"v_mad_u32_u24 v{vw[j]}, v{t0+1}, s47, v{t0+2}")
        a(f"v_bfrev_b32 v{t0}, 2")
        a(f"v_cndmask_b32 v{vw[j]}, v{t0}, v{vw[j]}, vcc")
    a(f"s_lshl_b32 s{s_lx}, s{s_fw}, 10")
    a(f"s_add_u32 s{s_lx}, s{s_lx}, {UX[0]}")
    a("s_mul_i32 s45, s46, 6144")
    a(f"s_lshr_b32 s46, s{s_fw}, 1")
    a(f"s_mul_i32 s47, s46, {WIMG}")
    a("s_add_u32 s45, s45, s47")
    a(f"s_add_u32 s{s_lw}, s45, {UW[0]}")
    stagger(a, o.stagU)
    a(f"s_lshl_b32 s{s_xoff}, s44, 7")
    a(f"s_mul_i32 s{s_woff}, s44, {64*2752}")

def up_srd(a, s_fw, s_u0):
    srd(a, SA, 4, 5, 2048*1024)
    a(f"s_cmp_lt_u32 s{s_fw}, 2")
    a("s_cselect_b32 s46, s12, s14")
    a("s_cselect_b32 s47, s13, s15")
    a(f"s_lshl_b32 s44, s{s_u0}, 5")
    srd_off(a, SB, 46, 47, 44, 512*2752)

def up_dma_groups(vx, vw, s_lx, s_lw, s_xoff, s_woff):
    g = []
    for j in range(4):
        if j == 0: pre = [f"s_mov_b32 m0, s{s_lx}", f"s_mov_b32 s46, s{s_xoff}"]
        else: pre = ["s_add_u32 m0, m0, 4096", "s_add_u32 s46, s46, 32768"]
        g.append(pre + [f"buffer_load_dwordx4 v{vx}, s[{SA}:{SA+3}], s46 offen lds"])
    for j in range(6):
        if j == 0: pre = [f"s_mov_b32 m0, s{s_lw}", f"s_add_u32 s46, s{s_woff}, {16*2752}"]
        else: pre = ["s_add_u32 m0, m0, 1024", "s_nop 0"]
        so = s_woff if j < 3 else 46
        g.append(pre + [f"buffer_load_dwordx4 v{vw[j%3]}, s[{SB}:{SB+3}], s{so} offen lds"])
    return g

def srd_off(a, d, lo, hi, s_off, total):
    a(f"s_add_u32 s{d}, s{lo}, s{s_off}")
    a(f"s_addc_u32 s{d+1}, s{hi}, 0")
    a(f"s_and_b32 s{d+1}, s{d+1}, 0xffff")
    a(f"s_sub_u32 s{d+2}, {total}, s{s_off}")
    a(f"s_mov_b32 s{d+3}, 0x20000")

def dma_lanes(a, vr8, vc8, vx0, vx1, t, s_rb, s_w):
    a(f"v_lshrrev_b32 v{vr8}, 3, v0")
    a(f"v_and_b32 v{t}, 7, v0")
    a(f"v_lshrrev_b32 v{t+1}, 1, v{vr8}")
    a(f"v_xor_b32 v{t+2}, v{t}, v{t+1}")
    a(f"v_lshlrev_b32 v{t+2}, 4, v{t+2}")
    a(f"s_lshl_b32 s44, s{s_rb}, 7")
    a(f"s_lshl_b32 s45, s{s_w}, 5")
    a("s_add_u32 s44, s44, s45")
    a(f"v_add_u32 v{vx0}, s44, v{vr8}")
    a(f"v_lshl_add_u32 v{vx0}, v{vx0}, 10, v{t+2}")
    a(f"v_xor_b32 v{vx1}, 64, v{vx0}")
    a(f"v_add_u32 v{vx1}, 8192, v{vx1}")
    a(f"v_lshlrev_b32 v{t+1}, 2, v{t+1}")
    a(f"v_and_b32 v{t+1}, 4, v{t+1}")
    a(f"v_xor_b32 v{t}, v{t}, v{t+1}")
    a(f"v_lshlrev_b32 v{vc8}, 4, v{t}")

def dma_lds(a, s_lx, s_lw, s_w):
    a(f"s_lshl_b32 s{s_lx}, s{s_w}, 12")
    a(f"s_lshr_b32 s46, s{s_w}, 1")
    a(f"s_and_b32 s47, s{s_w}, 1")
    a(f"s_mul_i32 s44, s46, {TU-TG}")
    a("s_lshl_b32 s45, s47, 12")
    a("s_add_u32 s44, s44, s45")
    a(f"s_add_u32 s{s_lw}, s44, {TG}")

def start_stage(a, mode, s_lc, s_w, s_xoff, s_woff, pitch):
    if mode == 1:
        a(f"s_lshl_b32 s44, s{S_LOC}, 1")
        a(f"s_add_u32 s44, s44, s{s_lc}")
        a("s_and_b32 s44, s44, 7")
    elif mode == 2:
        a(f"s_lshl_b32 s44, s{S_LOC}, 1")
        a("s_and_b32 s44, s44, 7")
    else:
        a("s_mov_b32 s44, 0")
    a(f"s_lshl_b32 s{s_xoff}, s44, 7")
    a("s_lshl_b32 s44, s44, 1")
    a(f"s_and_b32 s45, s{s_w}, 1")
    a("s_add_u32 s44, s44, s45")
    a("s_lshl_b32 s44, s44, 5")
    a(f"s_mul_i32 s{s_woff}, s44, {pitch}")

def ffn_srd(a, s_w, s_u):
    a(f"s_cmp_lt_u32 s{s_w}, 2")
    a("s_cselect_b32 s46, s12, s14")
    a("s_cselect_b32 s47, s13, s15")
    a(f"s_lshl_b32 s44, s{s_u}, 5")
    a(f"s_add_u32 s{SB}, s46, s44")
    a(f"s_addc_u32 s{SB+1}, s47, 0")
    a(f"s_and_b32 s{SB+1}, s{SB+1}, 0xffff")
    a(f"s_sub_u32 s{SB+2}, {512*2752}, s44")
    a(f"s_mov_b32 s{SB+3}, 0x20000")

class LQ:
    def __init__(self): self.q = []
    def push(self, tag): self.q.append(tag)
    def need(self, tag):
        if tag not in self.q: return None
        i = len(self.q) - 1 - self.q[::-1].index(tag)
        n = len(self.q) - 1 - i
        self.q = self.q[i+1:]
        return n

def a_waves(a, st):
    R = Regs(4)
    vt = R.alloc(); vt2 = R.alloc(); vt3 = R.alloc(); vt4 = R.alloc()
    kaddr = R.alloc(); vaddr = R.alloc(); vcnt = R.alloc(); vstep = R.alloc(); vmask = R.alloc()
    vx0 = R.alloc(); vx1 = R.alloc(); vw = R.alloc()
    GG = R.alloc(4)
    vr8, vc8, vxu = GG, GG+1, GG+2
    Q = [R.alloc(4), R.alloc(4)]; KR = R.alloc(4); V0 = R.alloc(4); V1 = R.alloc(4)
    P = R.alloc(4); S = [R.alloc(16), R.alloc(16)]
    IDX = R.alloc(); vkp = R.alloc()
    O = [R.alloc(16), R.alloc(16)]; C = [R.alloc(16), R.alloc(16)]
    s_head, s_T, s_c, s_kg, s_vg, s_ld, s_tgt = 48, 49, 50, 51, 52, 53, 54
    s_q0, s_q1, s_slot, s_step, s_tok = 55, 56, 57, 58, 59
    a(f"s_cmp_ge_u32 s{S_WAVE}, 4")
    a("s_cbranch_scc1 L_help0")
    s_rb, s_lc, s_um, s_ue = 48, 49, 50, 51
    s_xoff, s_woff, s_lslot, s_cnt, s_lx, s_lw, s_pitch, s_xslot, s_xu, s_lxu = 52, 53, 54, 55, 56, 57, 58, 59, 60, 61
    JUNK = S[0]
    a(f"s_cmp_ge_u32 s{S_LOC}, 24")
    a("s_cbranch_scc1 L_pf")
    tile_ids(a, s_rb, s_lc)
    dma_lanes(a, vr8, vc8, vx0, vx1, vt2, s_rb, S_WAVE)
    dma_lds(a, s_lx, s_lw, S_WAVE)
    a(f"s_mov_b32 s{s_lslot}, {TS0+TSTR}")
    a(f"s_mov_b32 s{s_cnt}, 0")
    start_stage(a, o.stag1, s_lc, S_WAVE, s_xoff, s_woff, 3072)
    if o.rot:
        a(f"s_mov_b32 s63, s{s_woff}")
        a(f"s_add_u32 s62, s{S_LOC}, s{s_lc}")
        a(f"s_and_b32 s62, s62, {o.rot}")
        a(f"s_lshl_b32 s{s_xoff}, s62, 7")
        a(f"s_mul_i32 s44, s62, {64*3072}")
        a(f"s_add_u32 s{s_woff}, s44, s63")
    a(f"v_mul_u32_u24 v{vw}, 3072, v{vr8}")
    a(f"s_lshr_b32 s44, s{S_XCD}, 2")
    a("s_mul_i32 s44, s44, 6")
    a(f"s_add_u32 s44, s44, s{s_lc}")
    a("s_lshl_b32 s44, s44, 1")
    a("s_add_u32 s44, s44, s46")
    a("s_lshl_b32 s44, s44, 7")
    a(f"v_add3_u32 v{vw}, v{vw}, v{vc8}, s44")
    a("s_waitcnt lgkmcnt(0)")
    srd(a, SA, 4, 5, 2048*1024)
    srd(a, SB, 6, 7, 512*3072)
    a.label("L_ld0")
    a(f"s_add_u32 m0, s{s_lslot}, s{s_lx}")
    a(f"s_add_u32 s44, s{s_xoff}, 16384")
    for j in range(4):
        a(f"buffer_load_dwordx4 v{vx1 if j & 1 else vx0}, s[{SA}:{SA+3}], s{s_xoff if j < 2 else 44} offen lds")
        if j < 3: a("s_add_u32 m0, m0, 1024")
        else: a(f"s_add_u32 m0, s{s_lslot}, s{s_lw}")
        a([f"s_add_u32 s{s_cnt}, s{s_cnt}, 1", f"s_mov_b32 s45, s{s_woff}", f"s_add_u32 s{s_xoff}, s{s_xoff}, 128", "s_nop 0"][j])
    for j in range(4):
        a(f"buffer_load_dwordx4 v{vw}, s[{SB}:{SB+3}], s45 offen lds")
        if j < 3:
            a("s_add_u32 m0, m0, 1024")
            a(f"s_add_u32 s45, s45, {8*3072}")
    if o.rot:
        a(f"s_xor_b32 s44, s{s_cnt}, s62")
        a(f"s_cmp_lt_u32 s{s_cnt}, {o.rot+1}")
        a(f"s_cselect_b32 s44, s44, s{s_cnt}")
        a(f"s_lshl_b32 s{s_xoff}, s44, 7")
        a(f"s_mul_i32 s44, s44, {64*3072}")
        a(f"s_add_u32 s{s_woff}, s44, s63")
    else:
        a(f"s_add_u32 s{s_woff}, s{s_woff}, {64*3072}")
        a(f"s_and_b32 s{s_xoff}, s{s_xoff}, 1023")
        a(f"s_cselect_b32 s46, 0, {512*3072}")
        a(f"s_sub_u32 s{s_woff}, s{s_woff}, s46")
    a(f"s_add_u32 s{s_lslot}, s{s_lslot}, {TSTR}")
    a(f"s_cmp_eq_u32 s{s_lslot}, {TS0+3*TSTR}")
    a(f"s_cselect_b32 s{s_lslot}, {TS0}, s{s_lslot}")
    a(f"s_cmp_lt_u32 s{s_cnt}, 2")
    a("s_cbranch_scc1 L_ld0")
    a(f"s_cmp_eq_u32 s{s_cnt}, 8")
    a("s_cbranch_scc1 L_ld_end")
    a("s_waitcnt vmcnt(8)")
    a("s_barrier")
    a("s_branch L_ld0")
    a.label("L_pf")
    a(f"v_lshrrev_b32 v{vt}, 3, v0")
    a(f"v_and_b32 v{vt2}, 7, v0")
    a(f"v_lshlrev_b32 v{vt2}, 4, v{vt2}")
    a(f"v_lshl_add_u32 v{vx0}, v{vt}, 10, v{vt2}")
    a(f"v_mov_b32 v{vt3}, 1024")
    a(f"v_mov_b32 v{vt4}, 2560")
    a("v_cmp_gt_u32 vcc, 32, v0")
    a(f"s_sub_u32 s46, s{S_LOC}, 24")
    a("s_lshl_b32 s46, s46, 2")
    a(f"s_add_u32 s46, s46, s{S_WAVE}")
    a(f"v_cndmask_b32 v{vt3}, v{vt4}, v{vt3}, vcc")
    a(f"v_add_u32 v{vx1}, v{vt3}, v{V_L16}")
    a(f"s_and_b32 s44, s{S_XCD}, 3")
    a("s_lshl_b32 s44, s44, 5")
    a("s_add_u32 s44, s44, s46")
    a(f"s_lshl_b32 s{s_xoff}, s44, 14")
    a(f"s_add_u32 s{s_xoff}, s{s_xoff}, {128*o.pf0}")
    a(f"s_lshr_b32 s44, s{S_XCD}, 2")
    a("s_mul_i32 s44, s44, 1536")
    a(f"s_mul_i32 s{s_woff}, s46, {2*3072}")
    a(f"s_add_u32 s{s_woff}, s{s_woff}, s44")
    a(f"s_add_u32 s{s_woff}, s{s_woff}, {64*3072*o.pf0}")
    a(f"s_mov_b32 s{s_cnt}, {o.pf0}")
    a("s_waitcnt lgkmcnt(0)")
    srd(a, SA, 4, 5, 2048*1024)
    srd(a, SB, 6, 7, 512*3072)
    a(f"s_cmp_eq_u32 s{S_LOC}, 31")
    a("s_cbranch_scc0 L_pf1")
    a("s_sleep 4")
    a.label("L_pf1")
    a(f"s_add_u32 s44, s{s_xoff}, 8192")
    a(f"buffer_load_dwordx4 {v(JUNK,4)}, v{vx0}, s[{SA}:{SA+3}], s{s_xoff} offen")
    a(f"buffer_load_dwordx4 {v(JUNK,4)}, v{vx0}, s[{SA}:{SA+3}], s44 offen")
    a(f"buffer_load_dwordx4 {v(JUNK,4)}, v{V_L16}, s[{SB}:{SB+3}], s{s_woff} offen")
    a(f"buffer_load_dwordx4 {v(JUNK,4)}, v{vx1}, s[{SB}:{SB+3}], s{s_woff} offen")
    a(f"buffer_load_dwordx4 {v(JUNK,4)}, v{V_L16}, s[{SB}:{SB+3}], s{s_woff} offen offset:3584")
    a(f"s_add_u32 s{s_xoff}, s{s_xoff}, 128")
    a(f"s_add_u32 s{s_woff}, s{s_woff}, {64*3072}")
    a(f"s_add_u32 s{s_cnt}, s{s_cnt}, 1")
    a(f"s_cmp_lt_u32 s{s_cnt}, 8")
    a("s_cbranch_scc1 L_pf1")
    if o.pfup:
        if not o.pf31:
            a(f"s_cmp_eq_u32 s{S_LOC}, 31")
            a("s_cbranch_scc1 L_pf3")
        srd(a, SB, 12, 13, 512*2752)
        srd(a, SC, 14, 15, 512*2752)
        quad_start(a, 44)
        a("s_lshl_b32 s44, s44, 5")
        a(f"s_mul_i32 s{s_woff}, s46, 2752")
        a(f"s_add_u32 s{s_woff}, s{s_woff}, s44")
        a(f"s_and_b32 s44, s{S_XCD}, 3")
        a("s_xor_b32 s44, s44, 1")
        a("s_lshl_b32 s44, s44, 5")
        a("s_add_u32 s44, s44, s46")
        a(f"s_lshl_b32 s{s_xoff}, s44, 14")
        a(f"s_mov_b32 s{s_cnt}, 0")
        a.label("L_pf2")
        a("s_mov_b32 exec_hi, 0x3ffff")
        a(f"buffer_load_dwordx4 {v(JUNK,4)}, v{V_L16}, s[{SB}:{SB+3}], s{s_woff} offen")
        a(f"buffer_load_dwordx4 {v(JUNK,4)}, v{V_L16}, s[{SC}:{SC+3}], s{s_woff} offen")
        a("s_mov_b32 exec_hi, -1")
        a(f"buffer_load_dwordx4 {v(JUNK,4)}, v{vx0}, s[{SA}:{SA+3}], s{s_xoff} offen")
        a(f"s_add_u32 s{s_woff}, s{s_woff}, {32*2752}")
        a(f"s_add_u32 s{s_cnt}, s{s_cnt}, 1")
        a(f"s_bitcmp1_b32 s{s_cnt}, 0")
        a(f"s_mov_b32 s44, {(128-8192) & 0xffffffff}")
        a("s_cselect_b32 s44, 8192, s44")
        a(f"s_add_u32 s{s_xoff}, s{s_xoff}, s44")
        a(f"s_cmp_lt_u32 s{s_cnt}, {o.pfup}")
        a("s_cbranch_scc1 L_pf2")
    a.label("L_pf3")
    for i in range(6): a("s_barrier")
    a.label("L_ld_end")
    srd(a, SWS, 24, 25, WS_BYTES)
    a("s_waitcnt vmcnt(8)")
    a("s_barrier")
    a("s_waitcnt vmcnt(0)")
    a("s_branch L_b7")

    a.label("L_help0")
    GT = S[0]
    a(f"v_lshl_add_u32 v{vt2}, v0, 2, v{V_MISC}")
    a(f"v_mov_b32 v{vt}, 0")
    a(f"ds_write_b32 v{vt2}, v{vt}")
    a("s_lshl_b32 s46, s2, 3")
    a(f"s_lshl_b32 s45, s{S_WAVE}, 1")
    a("s_add_u32 s46, s46, s45")
    a(f"s_sub_u32 s{s_tok}, s46, 8")
    a(f"s_lshl_b32 s44, s{s_tok}, 10")
    a("s_waitcnt lgkmcnt(0)")
    srd(a, SA, 4, 5, 2048*1024)
    srd(a, SB, 18, 19, 1024)
    srd(a, SWS, 24, 25, WS_BYTES)
    srd(a, SC, 22, 23, 256)
    a(f"s_cmp_eq_u32 s{S_WAVE}, 4")
    a("s_cbranch_scc0 L_help2")
    a(f"s_cmp_eq_u32 s{S_LOC}, 31")
    a("s_cbranch_scc0 L_help2")
    a("s_setprio 3")
    a(f"s_add_u32 s46, s24, {W0}")
    a("s_addc_u32 s47, s25, 0")
    a("s_load_dword s45, s[46:47], 0 glc")
    for i in range(4): a(f"v_mov_b32 v{GT+i}, 0")
    a(f"s_lshl_b32 s46, s{S_XCD}, 12")
    a(f"s_add_u32 s46, s46, {CNT}")
    for i in range(4):
        a(f"buffer_store_dwordx4 {v(GT,4)}, v{V_L16}, s[{SWS}:{SWS+3}], s46 offen offset:{i*1024} sc1")
    a("s_waitcnt lgkmcnt(0)")
    a("s_mul_i32 s45, s45, 0x19660d")
    a("s_add_u32 s45, s45, 0x3c6ef35f")
    a("s_max_u32 s45, s45, 1")
    a(f"v_mov_b32 v{vt3}, s45")
    a(f"s_lshl_b32 s46, s{S_XCD}, 2")
    a("s_waitcnt vmcnt(0)")
    a("s_mov_b64 exec, 1")
    a(f"buffer_store_dword v{vt3}, off, s[{SC}:{SC+3}], s46 sc1")
    a("s_mov_b64 exec, -1")
    a("s_setprio 0")
    if st.en:
        a("s_memrealtime s[96:97]"); a("s_waitcnt lgkmcnt(0)"); a("s_sub_u32 s95, s96, s70")
    a.label("L_help2")
    a(f"buffer_load_dwordx4 {v(GT,4)}, v{V_L16}, s[{SB}:{SB+3}], 0 offen")
    a(f"buffer_load_dwordx4 {v(GT+4,4)}, v{V_L16}, s[{SA}:{SA+3}], s44 offen")
    a(f"buffer_load_dwordx4 {v(GT+8,4)}, v{V_L16}, s[{SA}:{SA+3}], s44 offen offset:1024")
    a.label("L_help3")
    if o.ctouch:
        a(f"s_cmp_eq_u32 s{S_WAVE}, 5")
        a("s_cbranch_scc0 L_help4")
        a("s_getpc_b64 s[46:47]")
        a.label("L_pc")
        a(f"s_sub_u32 s46, s46, L_pc-{KN}")
        a("s_subb_u32 s47, s47, 0")
        a(f"s_lshl_b32 s44, s{S_LOC}, 9")
        a(f"s_min_u32 s44, s44, L_code_end-{KN}-512")
        a("s_add_u32 s46, s46, s44")
        a("s_addc_u32 s47, s47, 0")
        for i in range(8):
            a(f"s_load_dword s44, s[46:47], {64*i}")
        a("s_waitcnt lgkmcnt(0)")
    a.label("L_help4")
    a("s_barrier")
    st.stamp(2)
    a("s_barrier")
    a("s_waitcnt vmcnt(0)")
    for r in range(2):
        a(f"v_mov_b32 v{vt3+r}, 0")
    for i in range(4):
        for r in range(2):
            a(f"v_dot2c_f32_bf16 v{vt3+r}, v{GT+4+4*r+i}, v{GT+i}")
    a("s_nop 2")
    for dpp in ["row_shr:1", "row_shr:2", "row_shr:4", "row_shr:8", "row_bcast:15 row_mask:0xa", "row_bcast:31 row_mask:0xc"]:
        a("s_nop 0")
        for r in range(2):
            a(f"v_add_f32_dpp v{vt3+r}, v{vt3+r}, v{vt3+r} {dpp}")
    a("s_barrier")
    for r in range(2): a(f"v_mul_f32 v{vt3+r}, {f32bits(-LOG2E)}, v{vt3+r}")
    for r in range(2): a(f"v_exp_f32 v{vt3+r}, v{vt3+r}")
    a("s_nop 0")
    for r in range(2): a(f"v_add_f32 v{vt3+r}, 1.0, v{vt3+r}")
    for r in range(2): a(f"v_rcp_f32 v{GG+2*r}, v{vt3+r}")
    a(f"v_and_b32 v{vt2}, 7, v0")
    a(f"v_lshlrev_b32 v{vt2}, 2, v{vt2}")
    a("s_barrier")
    a("s_barrier")
    a(f"s_cmp_eq_u32 s{S_WAVE}, 4")
    a("s_cbranch_scc0 L_help5")
    a(f"buffer_load_dword v{vt}, v{vt2}, s[{SC}:{SC+3}], 0 offen sc1")
    a.label("L_help5")
    a("s_barrier")
    a("s_barrier")
    a("s_barrier")
    a(f"s_cmp_eq_u32 s{S_WAVE}, 4")
    a("s_cbranch_scc0 L_b7x")
    a(f"s_mov_b32 s{S_SPIN}, 0")
    a.label("L_np")
    a("s_waitcnt vmcnt(0)")
    a(f"v_cmp_eq_u32 vcc, 0, v{vt}")
    a(f"s_cmp_gt_u32 s{S_SPIN}, 200000")
    a("s_cbranch_scc1 L_ng")
    a("s_cbranch_vccz L_ng")
    a(f"s_add_u32 s{S_SPIN}, s{S_SPIN}, 1")
    a("s_sleep 4")
    a(f"buffer_load_dword v{vt}, v{vt2}, s[{SC}:{SC+3}], 0 offen sc1")
    a("s_branch L_np")
    a.label("L_ng")
    if st.en: a(f"s_add_u32 s100, s{S_SPIN}, 1")
    a("s_mov_b64 exec, 1")
    a(f"ds_write_b32 v{V_MISC}, v{vt} offset:{L_NONCE}")
    a("s_cmp_eq_u32 s2, 255")
    a("s_cbranch_scc0 L_nw")
    a(f"s_mov_b32 s44, {W0}")
    a(f"buffer_store_dword v{vt}, off, s[{SWS}:{SWS+3}], s44 sc1")
    a.label("L_nw")
    a("s_mov_b64 exec, -1")
    a("s_branch L_b7x")
    a.label("L_b7")
    a("s_barrier")
    a.label("L_b7x")
    a("s_sleep 8")
    st.stamp(3)
    a(f"s_lshl_b32 s44, s{S_XCD}, 2")
    a(f"s_and_b32 s45, s{S_LOC}, 3")
    a(f"s_add_u32 s{s_head}, s44, s45")
    a(f"s_lshr_b32 s44, s{S_LOC}, 2")
    a("s_lshl_b32 s44, s44, 3")
    a(f"s_and_b32 s45, s{S_WAVE}, 3")
    a("s_lshl_b32 s45, s45, 1")
    a("s_add_u32 s44, s44, s45")
    a(f"s_lshr_b32 s46, s{S_WAVE}, 2")
    a(f"s_add_u32 s{s_T}, s44, s46")
    a(f"s_lshl_b32 s44, s{s_head}, 16")
    a(f"s_lshl_b32 s{s_ld}, s{S_WAVE}, 10")
    a(f"s_add_u32 s{s_kg}, s44, s{s_ld}")
    a(f"s_add_u32 s{s_vg}, s{s_kg}, {VF}")
    a(f"s_add_u32 s{s_kg}, s{s_kg}, {KF}")
    a(f"s_lshl_b32 s45, s{s_T}, 10")
    a(f"s_add_u32 s{s_q0}, s44, s45")
    a(f"s_xor_b32 s{s_q1}, s{s_q0}, 1024")
    a("s_lshl_b32 s46, s46, 12")
    a(f"v_and_b32 v{vkp}, 51, v0")
    a(f"v_bfe_u32 v{vt3}, v0, 2, 1")
    a(f"v_lshl_or_b32 v{vkp}, v{vt3}, 3, v{vkp}")
    a(f"v_bfe_u32 v{vt3}, v0, 3, 1")
    a(f"v_lshl_or_b32 v{vkp}, v{vt3}, 2, v{vkp}")
    a(f"v_lshlrev_b32 v{vkp}, 4, v{vkp}")
    a(f"v_add_u32 v{kaddr}, s46, v{vkp}")
    a(f"v_mov_b32 v{IDX}, 0xdddddddd")
    a(f"v_and_b32 v{vt3}, 15, v0")
    a(f"v_lshlrev_b32 v{vt3}, 4, v{vt3}")
    a(f"v_lshrrev_b32 v{vt4}, 5, v0")
    a(f"v_lshl_add_u32 v{vt4}, v{vt4}, 8, v{vt3}")
    a("s_add_u32 s46, s46, 8192")
    a(f"v_add_u32 v{vaddr}, s46, v{vt4}")
    a(f"v_and_b32 v{vt4}, 16, v0")
    a(f"v_cmp_ne_u32 vcc, 0, v{vt4}")
    a(f"v_add_u32 v{vt3}, {VCONST}, v{vt3}")
    a(f"v_mov_b32 v{vstep}, 1")
    a("s_nop 0")
    a(f"v_cndmask_b32 v{vaddr}, v{vaddr}, v{vt3}, vcc")
    a(f"v_cndmask_b32 v{vstep}, v{vstep}, 0, vcc")
    a(f"s_lshl_b32 s44, s{S_WAVE}, 9")
    a(f"v_add_u32 v{vcnt}, s44, v{vt3}")
    a(f"v_and_b32 v{vt4}, 27, v0")
    a(f"v_cmp_eq_u32 vcc, 16, v{vt4}")
    a(f"v_mov_b32 v{vt3}, 0x3f803f80")
    a(f"s_mov_b32 s{s_c}, 0")
    a(f"s_mov_b32 s{s_tgt}, 16")
    for i in range(4):
        a(f"v_cndmask_b32 v{V1+i}, 0, v{vt3}, vcc")
    a("s_mov_b32 exec_lo, 0xffff0000")
    a("s_mov_b32 exec_hi, 0")
    a(f"ds_write_b128 v{vcnt}, {v(V1,4)}")
    a("s_mov_b64 exec, -1")
    a(f"v_mov_b32 v{P}, 0")
    a(f"v_mov_b32 v{P+1}, 0")
    for i in range(16): a(f"v_pk_mov_b32 {v(O[0]+2*i,2)}, {v(P,2)}, {v(P,2)}")
    a(f"s_mov_b32 s{s_slot}, 32768")
    a("s_mov_b32 s60, 99")
    a(f"s_cmp_ge_u32 s{S_WAVE}, 4")
    a("s_cbranch_scc0 L_at_nogst")
    lds_wait_ge(a, "gtag", V_MISC, L_NONCE, "1", GG+1, sleep=2)
    a(f"v_mov_b32 v{GG+3}, v{GG+1}")
    a(f"s_mov_b32 s60, 0")
    a.label("L_at_nogst")
    a(f"s_cmp_eq_u32 s{S_WAVE}, 0")
    a("s_cbranch_scc0 L_at_waitgo")
    a(f"s_lshr_b32 s44, s{S_XCD}, 1")
    a("s_lshl_b32 s44, s44, 1")
    a(f"s_bfe_u32 s45, s{S_LOC}, 0x10001")
    a("s_add_u32 s44, s44, s45")
    a("s_lshl_b32 s44, s44, 10")
    a(f"s_add_u32 s44, s44, {CQ}")
    a(f"v_min_u32 v{vw}, 5, v0")
    a(f"v_lshlrev_b32 v{vw}, 7, v{vw}")
    lds_wait_ge(a, "atpost", V_MISC, L_POST, "4", vt)
    a(f"s_cmp_ge_u32 s{S_LOC}, 24")
    a("s_cbranch_scc1 L_at_pp")
    a(f"s_sleep {o.pdelay}")
    a("s_branch L_at_ppd")
    a.label("L_at_pp")
    a(f"s_lshl_b32 s45, s{S_XCD}, 10")
    a(f"s_add_u32 s45, s45, {CQ + 6*128}")
    poll(a, "atp", vt, None, 45, 1, 4)
    if o.ppdelay: a(f"s_sleep {o.ppdelay}")
    a.label("L_at_ppd")
    st.stamp(2)
    poll(a, "atq", vt, vw, 44, 16, o.psleep)
    if st.en: a(f"s_mov_b32 s101, s{S_SPIN}")
    a(f"ds_write_b32 v{V_MISC}, v{V_ONE} offset:{L_GO}")
    a("s_branch L_at_go")
    a.label("L_at_waitgo")
    lds_wait_ge(a, "atgo", V_MISC, L_GO, "1", vt)
    a.label("L_at_go")
    st.stamp(4)
    def dma(lit=None):
        if lit is not None: a(f"s_add_u32 m0, s{s_ld}, {lit}")
        else: a(f"s_add_u32 m0, s{s_ld}, s{s_slot}")
        a("s_nop 0")
        a(f"buffer_load_dwordx4 v{V_L16}, s[{SWS}:{SWS+3}], s{s_kg} offen sc1 lds")
        a("s_add_u32 m0, m0, 8192")
        a(f"s_add_u32 s{s_kg}, s{s_kg}, 8192")
        a(f"buffer_load_dwordx4 v{V_L16}, s[{SWS}:{SWS+3}], s{s_vg} offen sc1 lds")
        a(f"s_add_u32 s{s_vg}, s{s_vg}, 8192")
    a(f"buffer_load_dwordx4 {v(Q[0],4)}, v{V_L16}, s[{SWS}:{SWS+3}], s{s_q0} offen sc1")
    a(f"buffer_load_dwordx4 {v(Q[1],4)}, v{V_L16}, s[{SWS}:{SWS+3}], s{s_q1} offen sc1")
    dma(0)
    a("s_waitcnt vmcnt(0) lgkmcnt(0)")
    lds_arrive(a, V_MISC, L_ATT)
    dma(16384)
    lds_wait_ge(a, "at0", V_MISC, L_ATT, "8", vt, sleep=0)
    st.stamp(5)
    a(f"ds_read_b128 {v(V0,4)}, v{V_L16}")
    a(f"ds_read_b128 {v(KR,4)}, v{kaddr}")
    a("s_waitcnt lgkmcnt(1)")
    for q in range(2):
        a(f"{MF} {v(S[q],16)}, {v(V0,4)}, {v(Q[q],4)}, 0")
    a(f"ds_read_b128 {v(V0,4)}, v{vaddr}")
    a("s_nop 9")
    def maxtree(dst, src, first):
        if first:
            a(f"v_max3_f32 v{dst}, v{src}, v{src+1}, v{src+2}")
            rest = list(range(3, 16))
        else:
            rest = list(range(0, 16))
        while len(rest) >= 2:
            a(f"v_max3_f32 v{dst}, v{dst}, v{src+rest[0]}, v{src+rest[1]}")
            rest = rest[2:]
        if rest:
            a(f"v_max_f32 v{dst}, v{dst}, v{src+rest[0]}")
    def setC(q):
        a(f"v_mov_b32 v{vt2}, v{vt}")
        a("s_nop 1")
        a(f"v_permlane32_swap_b32 v{vt}, v{vt2}")
        a("s_nop 1")
        a(f"v_max_f32 v{vt}, v{vt}, v{vt2}")
        a(f"v_sub_f32 v{C[q]}, 0, v{vt}")
        a(f"v_sub_f32 v{C[q]+1}, 0, v{vt}")
        for i in range(1, 8):
            a(f"v_pk_mov_b32 {v(C[q]+2*i,2)}, {v(C[q],2)}, {v(C[q],2)}")
    maxtree(vt, S[0], True)
    setC(0)
    a("s_waitcnt lgkmcnt(0)")
    a("s_nop 0")
    maxtree(vt, S[1], True)
    a(f"{MF} {v(S[0],16)}, {v(KR,4)}, {v(Q[0],4)}, {v(C[0],16)}")
    setC(1)
    for i in range(4):
        a(f"v_pk_mov_b32 {v(S[1]+8+2*i,2)}, {v(P,2)}, {v(P,2)}")
    def e(cur, i): a(f"v_exp_f32 v{cur+i}, v{cur+i}")
    c0, c1, c2 = [int(x) for x in o.cuts.split(",")]
    def body(emit, lq):
        def A(s):
            if emit: a(s)
        def w(tag):
            n = lq.need(tag)
            if n is not None: A(f"s_waitcnt lgkmcnt({n})")
        def E(cur, lo, hi):
            if emit:
                for i in range(lo, hi): e(cur, i)
        def rdv(reg, off, tag):
            A(f"ds_read_b128 {v(reg,4)}, v{vaddr} offset:{off}")
            lq.push(tag)
        for tt in range(4):
            for q in range(2):
                cur = S[q]; nxt = S[q ^ 1]
                stp = 2*tt + q
                if o.aprio >= 3 and stp in (0, o.aprio+1):
                    lab = a.newlabel("pr") if emit else ""
                    A(f"s_cmp_ge_u32 s{S_WAVE}, 4")
                    A(f"s_cbranch_scc1 {lab}")
                    A(f"s_setprio {1 if stp == 0 else 0}")
                    if emit: a.label(lab)
                E(cur, 0, c0)
                if q == 1: w("K")
                A(f"{SM} {v(O[q^1],16)}, {v(V1,4)}, {v(nxt+8,8)}, v{IDX}")
                if q == 0:
                    rdv(V1, tt*1024 + 512, "V1")
                if stp == o.xat:
                    if emit: st.abeg()
                    A("s_waitcnt vmcnt(0)")
                    if emit: st.aend(0)
                    A("s_mov_b64 exec, 1")
                    A(f"ds_add_u32 v{V_MISC}, v{V_ONE} offset:{L_ATT}")
                    A("s_mov_b64 exec, -1")
                    lq.push("X")
                if stp == o.yat - 1:
                    A(f"ds_read_b32 v{vcnt}, v{V_MISC} offset:{L_ATT}")
                    lq.push("CNT")
                E(cur, c0, c1)
                A(f"{MF} {v(nxt,16)}, {v(KR,4)}, {v(Q[q^1],4)}, {v(C[q^1],16)}")
                if q == 0:
                    if tt == 3:
                        A(f"v_add_u32 v{kaddr}, s{s_step}, v{kaddr}")
                        A(f"ds_read_b128 {v(KR,4)}, v{kaddr}")
                    else:
                        A(f"ds_read_b128 {v(KR,4)}, v{kaddr} offset:{(tt+1)*1024}")
                    lq.push("K")
                E(cur, c1, c2)
                if q == 0: w("V0")
                A(f"{SM} {v(O[q],16)}, {v(V0,4)}, {v(cur,8)}, v{IDX}")
                if q == 1:
                    if tt == 3:
                        A(f"v_mad_i32_i24 v{vaddr}, v{vstep}, s{s_step}, v{vaddr}")
                        rdv(V0, 0, "V0")
                    else:
                        rdv(V0, (tt+1)*1024, "V0")
                if stp == o.yat:
                    w("CNT")
                    A(f"v_cmp_gt_u32 vcc, s{s_tgt}, v{vcnt}")
                    A(f"s_cmp_lt_u32 s{s_c}, 6")
                    A("s_cbranch_vccnz L_at_slow")
                    if emit:
                        a.label("L_at_back")
                        a("s_cbranch_scc0 L_at_dmadone")
                        st.abeg()
                        dma()
                        st.aend(2)
                        a(f"s_add_u32 s{s_slot}, s{s_slot}, 16384")
                        a(f"s_cmp_eq_u32 s{s_slot}, 49152")
                        a(f"s_cselect_b32 s{s_slot}, 0, s{s_slot}")
                        a(f"s_cmp_eq_u32 s{s_c}, s60")
                        a("s_cbranch_scc1 L_at_gst")
                        a.label("L_at_dmadone")
                E(cur, c2, 16)
    lq = LQ()
    body(False, lq)
    steady = list(lq.q)
    if o.aprio:
        a(f"s_cmp_lt_u32 s{S_WAVE}, 4")
        a("s_cbranch_scc1 L_at_np")
        a("s_setprio 1")
        a.label("L_at_np")
    st.stamp(8)
    a(".p2align 6")
    a.label("L_at_loop")
    assert o.xat < o.yat - 1 and o.yat <= 5
    a(f"s_bitcmp1_b32 0x24, s{s_c}")
    a(f"s_mov_b32 s44, {(-32768) & 0xffffffff}")
    a(f"s_cselect_b32 s{s_step}, s44, 16384")
    body(True, lq)
    assert lq.q == steady, (lq.q, steady)
    a(f"s_add_u32 s{s_c}, s{s_c}, 1")
    a(f"s_add_u32 s{s_tgt}, s{s_tgt}, 8")
    a(f"s_cmp_lt_u32 s{s_c}, 8")
    a("s_cbranch_scc1 L_at_loop")
    st.stamp(9)
    a(f"{SM} {v(O[1],16)}, {v(V1,4)}, {v(S[1]+8,8)}, v{IDX}")
    a(f"s_and_b32 s44, s{S_WAVE}, 3")
    a("s_lshl_b32 s44, s44, 12")
    a(f"s_lshr_b32 s45, s{S_WAVE}, 2")
    a("s_lshl_b32 s45, s45, 15")
    a("s_add_u32 s44, s44, s45")
    a(f"v_add_u32 v{kaddr}, s44, v{V_L16}")
    a(f"v_xor_b32 v{vaddr}, 32768, v{kaddr}")
    a(f"s_and_b32 s44, s{S_WAVE}, 3")
    a(f"v_lshl_add_u32 v{vt3}, s44, 2, v{V_MISC}")
    a(f"s_lshl_b32 s46, s{s_T}, 5")
    a(f"s_add_u32 s46, s46, s{s_head}")
    a("s_lshl_b32 s46, s46, 10")
    a(f"s_add_u32 s{s_q0}, s46, {OF}")
    a(f"s_lshl_b32 s44, s{s_T}, 1")
    a(f"s_lshr_b32 s45, s{s_head}, 4")
    a("s_add_u32 s44, s44, s45")
    a("s_lshl_b32 s44, s44, 7")
    a(f"s_add_u32 s{s_q1}, s44, {CO}")
    for i in range(3):
        a(f"ds_write_b128 v{kaddr}, {v(O[1]+4*i,4)} offset:{i*1024}")
    a("s_waitcnt lgkmcnt(0)")
    lds_arrive(a, vt3, L_PAIR)
    a(f"s_mov_b32 s{S_SPIN}, 0")
    a.label("L_at_pair")
    a(f"ds_read_b32 v{vt}, v{vt3} offset:{L_PAIR}")
    for i in range(3):
        a(f"ds_read_b128 {v(O[1]+4*i,4)}, v{vaddr} offset:{i*1024}")
    a(f"s_add_u32 s{S_SPIN}, s{S_SPIN}, 1")
    a("s_waitcnt lgkmcnt(0)")
    a(f"v_cmp_gt_u32 vcc, 2, v{vt}")
    a(f"s_cmp_gt_u32 s{S_SPIN}, 2000000")
    a("s_cbranch_scc1 L_at_pok")
    a("s_cbranch_vccz L_at_pok")
    a("s_sleep 1")
    a("s_branch L_at_pair")
    a.label("L_at_pok")
    a(f"v_add_f32 v{O[0]+8}, v{O[0]+8}, v{O[1]+8}")
    for i in range(4):
        a(f"v_pk_add_f32 {v(O[0]+2*i,2)}, {v(O[0]+2*i,2)}, {v(O[1]+2*i,2)}")
    a(f"v_mov_b32 v{vt}, {f32bits(2.0**30)}")
    a(f"v_cmp_nle_f32 vcc, v{O[0]+8}, v{vt}")
    a(f"v_pk_mul_f32 {v(S[0],2)}, {v(O[0],2)}, 0")
    for i in range(1, 4):
        a(f"v_pk_fma_f32 {v(S[0],2)}, {v(O[0]+2*i,2)}, 0, {v(S[0],2)}")
    a(f"v_cmp_u_f32 s[44:45], v{S[0]}, v{S[0]+1}")
    a(f"v_rcp_f32 v{vt}, v{O[0]+8}")
    a("s_nop 2")
    a("s_or_b64 vcc, vcc, s[44:45]")
    a("s_cbranch_vccnz L_at_fallback")
    a.label("L_at_fin")
    for i in range(4):
        a(f"v_pk_mul_f32 {v(O[0]+2*i,2)}, {v(O[0]+2*i,2)}, {v(vt,2)} op_sel_hi:[1,0]")
    for i in range(4):
        a(f"v_cvt_pk_bf16_f32 v{P+i}, v{O[0]+2*i}, v{O[0]+2*i+1}")
    a(f"buffer_store_dwordx4 {v(P,4)}, v{V_L16}, s[{SWS}:{SWS+3}], s{s_q0} offen sc1")
    st.stamp(10)
    post(a, s_q1)
    st.stamp(11)
    if st.en and not getattr(o, "noffn", 0):
        st.stamp(6); st.real(7)
        for i in range(3): a("s_barrier")
        a("s_sleep 40")
        st.flush(SWS, S_WAVE, 4)
        a("s_endpgm")
    finish(a, st)
    a.label("L_at_gst")
    a(f"s_lshl_b32 s44, s{s_tok}, 3")
    a(f"s_add_u32 s44, s44, {GA}")
    a("s_mov_b32 exec_lo, 0")
    a("s_brev_b32 exec_hi, 1")
    a(f"buffer_store_dwordx4 {v(GG,4)}, off, s[{SWS}:{SWS+3}], s44 sc1")
    a("s_mov_b64 exec, -1")
    a("s_branch L_at_dmadone")
    a.label("L_at_slow")
    st.abeg()
    lds_wait_ge(a, "ats", V_MISC, L_ATT, f"s{s_tgt}", vcnt)
    st.aend(1)
    a(f"s_cmp_lt_u32 s{s_c}, 6")
    a("s_branch L_at_back")
    def fallback():
        a.label("L_at_fallback")
        a(f"s_lshl_b32 s46, s{s_head}, 16")
        a(f"s_add_u32 s{s_kg}, s46, {KF}")
        a(f"v_mov_b32 v{vt}, 0xff800000")
        a(f"s_mov_b32 s{s_c}, 0")
        a.label("L_at_fb1")
        a(f"buffer_load_dwordx4 {v(KR,4)}, v{V_L16}, s[{SWS}:{SWS+3}], s{s_kg} offen sc1")
        a(f"s_add_u32 s{s_kg}, s{s_kg}, 1024")
        a("s_waitcnt vmcnt(0)")
        a(f"{MF} {v(S[0],16)}, {v(KR,4)}, {v(Q[0],4)}, 0")
        a("s_nop 15")
        maxtree(vt, S[0], False)
        a(f"s_add_u32 s{s_c}, s{s_c}, 1")
        a(f"s_cmp_lt_u32 s{s_c}, 64")
        a("s_cbranch_scc1 L_at_fb1")
        setC(0)
        for i in range(16):
            a(f"v_mov_b32 v{O[0]+i}, 0")
        a(f"v_and_b32 v{vt}, 15, v0")
        a(f"v_lshlrev_b32 v{vt}, 4, v{vt}")
        a(f"v_lshrrev_b32 v{vt2}, 5, v0")
        a(f"v_lshl_add_u32 v{vaddr}, v{vt2}, 8, v{vt}")
        a(f"s_add_u32 s{s_kg}, s46, {KF}")
        a(f"s_add_u32 s{s_vg}, s46, {VF}")
        a(f"s_mov_b32 s{s_c}, 0")
        a("s_mov_b32 s44, 0xffff")
        a("s_mov_b32 s45, 0xffff")
        a.label("L_at_fb2")
        a(f"buffer_load_dwordx4 {v(KR,4)}, v{vkp}, s[{SWS}:{SWS+3}], s{s_kg} offen sc1")
        a("s_mov_b64 exec, s[44:45]")
        a(f"buffer_load_dwordx4 {v(V0,4)}, v{vaddr}, s[{SWS}:{SWS+3}], s{s_vg} offen sc1")
        a(f"buffer_load_dwordx4 {v(V1,4)}, v{vaddr}, s[{SWS}:{SWS+3}], s{s_vg} offen offset:512 sc1")
        a("s_mov_b64 exec, -1")
        a(f"s_add_u32 s{s_kg}, s{s_kg}, 1024")
        a(f"s_add_u32 s{s_vg}, s{s_vg}, 1024")
        a("s_waitcnt vmcnt(0)")
        a(f"{MF} {v(S[0],16)}, {v(KR,4)}, {v(Q[0],4)}, {v(C[0],16)}")
        a("s_nop 15")
        for i in range(16): e(S[0], i)
        a("s_nop 2")
        a(f"{SM} {v(O[0],16)}, {v(V0,4)}, {v(S[0],8)}, v{IDX}")
        a(f"{SM} {v(O[0],16)}, {v(V1,4)}, {v(S[0]+8,8)}, v{IDX}")
        a("s_nop 15")
        a(f"s_add_u32 s{s_c}, s{s_c}, 1")
        a(f"s_cmp_lt_u32 s{s_c}, 64")
        a("s_cbranch_scc1 L_at_fb2")
        a(f"v_rcp_f32 v{vt}, v{O[0]+8}")
        a("s_branch L_at_fin")
    return R.hi, fallback

def fbar(a, vt):
    tag = a.newlabel("fb")[2:]
    a(f"s_add_u32 s{S_FBT}, s{S_FBT}, 4")
    lds_arrive(a, V_MISC, L_FB)
    lds_wait_ge(a, tag, V_MISC, L_FB, f"s{S_FBT}", vt, sleep=2)

def f_waves(a, st):
    t0 = 4
    vx, vw, uxaddr, uwaddr = 8, [9, 10, 11], [16, 17, 18, 19], 12
    vsrc, wa = 14, 15
    s_fw, s_rb, s_lc, s_stage, s_cb, s_T2, s_N2, s_lb = 48, 49, 50, 53, 54, 60, 61, 62
    s_urb, s_cg, s_u0, s_skip, s_dx, s_dw = 51, 52, 55, 56, 57, 58
    s_lx, s_lw, s_xoff, s_woff = 63, 64, 65, 66
    hi = []
    R = Regs(20)
    xaddr = [R.alloc() for _ in range(4)]; waddr = R.alloc()
    XF = [[R.alloc(4) for _ in range(2)] for _ in range(2)]
    WF = [[R.alloc(4) for _ in range(2)] for _ in range(2)]
    ACC = [[R.alloc(16) for _ in range(2)] for _ in range(2)]
    TMP = R.alloc(16)
    hi.append(R.hi)
    a(f"s_sub_u32 s{s_fw}, s{S_WAVE}, 8")
    a(f"s_mov_b32 s{S_FBT}, 0")
    tile_ids(a, s_rb, s_lc)
    a(f"s_lshr_b32 s44, s{S_XCD}, 2")
    a("s_mul_i32 s44, s44, 6")
    a(f"s_add_u32 s{s_cb}, s44, s{s_lc}")
    a(f"s_and_b32 s44, s{s_fw}, 1")
    a(f"s_lshr_b32 s46, s{s_fw}, 1")
    a(f"v_and_b32 v{t0}, 31, v0")
    a(f"v_lshrrev_b32 v{t0+1}, 5, v0")
    a(f"v_bfe_u32 v{t0+2}, v{t0}, 1, 3")
    a(f"v_xor_b32 v{t0+2}, v{t0+2}, v{t0+1}")
    a(f"v_lshlrev_b32 v{t0+2}, 4, v{t0+2}")
    a(f"v_lshl_add_u32 v{t0}, v{t0}, 7, v{t0+2}")
    a("s_lshl_b32 s45, s44, 13")
    a(f"s_add_u32 s45, s45, {TS0+TSTR}")
    a(f"s_sub_u32 s47, s45, {TS0+TSTR-UX[0]}")
    for kk in range(4):
        a(f"v_xor_b32 v{t0+3}, {kk*32}, v{t0}")
        a(f"v_add_u32 v{xaddr[kk]}, s45, v{t0+3}")
        a(f"v_add_u32 v{uxaddr[kk]}, s47, v{t0+3}")
    a(f"v_bfe_u32 v{t0}, v0, 2, 2")
    a(f"v_bfe_u32 v{t0+2}, v0, 4, 1")
    a(f"v_and_b32 v{t0+3}, 3, v0")
    a(f"v_lshlrev_b32 v{t0+3}, 3, v{t0+3}")
    a(f"v_lshl_add_u32 v{uwaddr}, v{t0+1}, 3, v{t0}")
    a(f"v_lshl_add_u32 v{waddr}, v{uwaddr}, 7, v{t0+3}")
    a(f"v_mul_u32_u24 v{uwaddr}, 192, v{uwaddr}")
    a(f"v_mul_u32_u24 v{vsrc}, {WIMG}, v{t0+2}")
    a(f"v_add3_u32 v{uwaddr}, v{uwaddr}, v{vsrc}, v{t0+3}")
    a(f"v_add_u32 v{uwaddr}, {UW[0]}, v{uwaddr}")
    a(f"v_lshlrev_b32 v{wa}, 5, v{t0}")
    a(f"v_and_b32 v{wa}, 64, v{wa}")
    a("s_lshl_b32 s45, s46, 6")
    a(f"v_xor_b32 v{wa}, s45, v{wa}")
    a(f"v_mul_u32_u24 v{vsrc}, {TU-TG}, v{t0+2}")
    a(f"v_add3_u32 v{waddr}, v{waddr}, v{vsrc}, v{wa}")
    a(f"v_add_u32 v{waddr}, {TS0+TSTR+TG}, v{waddr}")
    a(f"v_lshl_add_u32 v{t0+3}, v{t0+2}, 5, v{t0+3}")
    a(f"v_lshl_add_u32 v{t0}, v{t0+1}, 2, v{t0}")
    a(f"v_lshl_add_u32 v{t0+3}, v{t0}, 7, v{t0+3}")
    a(f"v_add_u32 v{wa}, v{wa}, v{t0+3}")
    a(f"s_lshl_b32 s{s_lb}, s{s_fw}, 14")
    a(f"s_add_u32 s{s_lb}, s{s_lb}, {STG}")
    a(f"s_lshl_b32 s44, s{S_XCD}, 2")
    a(f"s_and_b32 s45, s{S_LOC}, 3")
    a(f"s_add_u32 s{s_T2}, s44, s45")
    a(f"s_lshr_b32 s{s_N2}, s{S_LOC}, 2")
    a(f"v_lshrrev_b32 v{t0}, 3, v0")
    a(f"v_and_b32 v{t0+1}, 7, v0")
    a(f"v_lshlrev_b32 v{t0+3}, 1, v{t0}")
    a(f"v_and_b32 v{t0+3}, 4, v{t0+3}")
    a(f"v_xor_b32 v{t0+3}, v{t0+1}, v{t0+3}")
    a(f"v_lshlrev_b32 v{t0+3}, 4, v{t0+3}")
    a(f"v_lshl_add_u32 v{t0+3}, v{t0}, 10, v{t0+3}")
    a(f"s_lshl_b32 s44, s{s_N2}, 7")
    a(f"v_add_u32 v{vsrc}, s44, v{t0+3}")
    def zero(r, n):
        a(f"v_mov_b32 v{r}, 0")
        a(f"v_mov_b32 v{r+1}, 0")
        for i in range(1, n//2): a(f"v_pk_mov_b32 {v(r+2*i,2)}, {v(r,2)}, {v(r,2)}")
    up_dma_setup(a, t0, vx, vw, s_fw, s_urb, s_cg, s_u0, s_lx, s_lw, s_xoff, s_woff)
    uw2 = 13
    a(f"s_lshr_b32 s46, s{s_fw}, 1")
    a(f"s_cmp_eq_u32 s{s_cg}, 4")
    a("s_cselect_b32 s44, 2, 3")
    a("s_mul_i32 s44, s44, s46")
    a("s_lshl_b32 s47, 1, s46")
    a(f"s_cmp_eq_u32 s{s_cg}, 5")
    a(f"s_cselect_b32 s{s_skip}, s47, 0")
    a(f"s_cmp_eq_u32 s{s_cg}, 6")
    a(f"s_cselect_b32 s{s_skip}, 3, s{s_skip}")
    a("s_cselect_b32 s45, s44, 0")
    a("s_add_u32 s45, s45, 2")
    a("s_lshl_b32 s47, s45, 5")
    a(f"v_add_u32 v{uw2}, s47, v{uwaddr}")
    a("s_lshl_b32 s47, s44, 5")
    a(f"v_add_u32 v{uwaddr}, s47, v{uwaddr}")
    a("s_lshl_b32 s45, s45, 8")
    a(f"s_add_u32 s{s_cg}, s45, s44")
    a(f"s_mov_b32 s{s_dx}, {UX[1]-UX[0]}")
    a(f"s_add_u32 s{s_dw}, s{s_lw}, {3*UWS}")
    zero(ACC[0][0], 64)
    a(f"s_mov_b32 s{s_stage}, 0")
    a("s_waitcnt lgkmcnt(0)")
    srd(a, SWS, 24, 25, WS_BYTES)
    up_srd(a, s_fw, s_u0)
    a(f"s_cmp_lt_u32 s{S_LOC}, 24")
    a("s_cbranch_scc1 L_E_work")
    for i in range(8): a("s_barrier")
    a("s_branch L_E_done")
    a.label("L_E_work")
    def rx(kk, buf, t): a(f"ds_read_b128 {v(XF[buf][t],4)}, v{xaddr[kk]} offset:{t*4096}")
    def rw(kk, buf, u, h): a(f"ds_read_b64_tr_b16 {v(WF[buf][u]+2*h,2)}, v{waddr} offset:{kk*2048+u*32+h*512}")
    a("s_barrier")
    st.stamp(2)
    if st.en: a("s_waitcnt lgkmcnt(0)")
    rx(0, 0, 0); rw(0, 0, 0, 0); rw(0, 0, 0, 1); rx(0, 0, 1); rw(0, 0, 1, 0); rw(0, 0, 1, 1)
    a(f"s_cmp_ge_u32 s{s_cb}, 8")
    a("s_cbranch_scc1 L_E_loopV")
    def loop(tag):
        def mm(buf, u, t):
            A_, B_ = (XF[buf][t], WF[buf][u]) if tag == "V" else (WF[buf][u], XF[buf][t])
            a(f"{MF} {v(ACC[u][t],16)}, {v(A_,4)}, {v(B_,4)}, {v(ACC[u][t],16)}")
        a.label(f"L_E_loop{tag}")
        for kk in range(3):
            b = kk & 1; n = b ^ 1
            a("s_waitcnt lgkmcnt(3)")
            mm(b, 0, 0)
            rx(kk+1, n, 0); rw(kk+1, n, 0, 0)
            a("s_waitcnt lgkmcnt(4)")
            mm(b, 0, 1)
            rw(kk+1, n, 0, 1); rx(kk+1, n, 1)
            a("s_waitcnt lgkmcnt(4)")
            mm(b, 1, 0)
            rw(kk+1, n, 1, 0); rw(kk+1, n, 1, 1)
            mm(b, 1, 1)
            if kk == 2:
                a(f"s_add_u32 s{s_stage}, s{s_stage}, 1")
                a(f"s_lshr_b32 s44, 0x24, s{s_stage}")
                a("s_bitcmp1_b32 s44, 0")
                a(f"s_mov_b32 s45, {(-2*TSTR) & 0xffffffff}")
                a(f"s_cselect_b32 s44, s45, {TSTR}")
        a("s_waitcnt lgkmcnt(3)")
        mm(1, 0, 0)
        for r in xaddr + [waddr]:
            a(f"v_add_u32 v{r}, s44, v{r}")
        a(f"s_cmp_eq_u32 s{s_stage}, 8")
        a("s_waitcnt lgkmcnt(0)")
        mm(1, 0, 1)
        a(f"s_cbranch_scc1 L_E_tail{tag}")
        a("s_barrier")
        rx(0, 0, 0); rw(0, 0, 0, 0); rw(0, 0, 0, 1)
        mm(1, 1, 0)
        rx(0, 0, 1); rw(0, 0, 1, 0); rw(0, 0, 1, 1)
        mm(1, 1, 1)
        a(f"s_branch L_E_loop{tag}")
        a.label(f"L_E_tail{tag}")
        mm(1, 1, 0)
        mm(1, 1, 1)
    loop("T")
    a(f"v_mov_b32 v{t0}, v{V_L16}")
    a(f"s_mov_b32 s47, {4*65536}")
    a("s_branch L_E_epiQ")
    loop("V")
    a(f"v_and_b32 v{t0}, 15, v0")
    a(f"v_lshlrev_b32 v{t0}, 4, v{t0}")
    a(f"v_lshrrev_b32 v{t0+1}, 5, v0")
    a(f"v_lshl_add_u32 v{t0}, v{t0+1}, 8, v{t0}")
    a(f"v_bfe_u32 v{t0+1}, v0, 4, 1")
    a(f"v_lshl_add_u32 v{t0}, v{t0+1}, 18, v{t0}")
    a("s_mov_b32 s47, 512")
    a.label("L_E_epiQ")
    st.stamp(3)
    a(f"s_lshl_b32 s44, s{s_cb}, 19")
    a(f"s_lshr_b32 s45, s{s_fw}, 1")
    a("s_lshl_b32 s45, s45, 17")
    a("s_add_u32 s44, s44, s45")
    a(f"s_lshl_b32 s45, s{s_rb}, 12")
    a("s_add_u32 s44, s44, s45")
    a(f"s_and_b32 s45, s{s_fw}, 1")
    a("s_lshl_b32 s45, s45, 11")
    a("s_add_u32 s44, s44, s45")
    a("s_add_u32 s45, s44, s47")
    a(f"s_cmp_lt_u32 s{s_cb}, 4")
    a("s_cbranch_scc0 L_E_noscale")
    a(f"s_mov_b32 s46, {f32bits(QSCALE)}")
    a("s_mov_b32 s47, s46")
    for i in range(32):
        a(f"v_pk_mul_f32 {v(ACC[0][0]+2*i,2)}, {v(ACC[0][0]+2*i,2)}, s[46:47]")
    a.label("L_E_noscale")
    n = 0
    for u in range(2):
        for t in range(2):
            for half in range(2):
                tm = TMP + 4*(n & 3); n += 1
                src = ACC[u][t] + 8*half
                for i in range(4):
                    a(f"v_cvt_pk_bf16_f32 v{tm+i}, v{src+2*i}, v{src+2*i+1}")
                a(f"buffer_store_dwordx4 {v(tm,4)}, v{t0}, s[{SWS}:{SWS+3}], s{44+half} offen offset:{t*1024} sc1")
        if u == 0:
            a("s_add_u32 s44, s44, 65536")
            a("s_add_u32 s45, s45, 65536")
    a(f"s_and_b32 s44, s{s_cb}, 3")
    a("s_lshl_b32 s44, s44, 1")
    a(f"s_lshr_b32 s45, s{s_fw}, 1")
    a("s_add_u32 s44, s44, s45")
    a("s_lshl_b32 s44, s44, 3")
    a(f"s_lshr_b32 s45, s{s_cb}, 2")
    a("s_lshl_b32 s45, s45, 1")
    a("s_add_u32 s44, s44, s45")
    a(f"s_and_b32 s45, s{s_fw}, 1")
    a("s_add_u32 s44, s44, s45")
    a("s_lshl_b32 s44, s44, 7")
    a(f"s_add_u32 s44, s44, {CQ}")
    lds_wait_ge(a, "tg1", V_MISC, L_NONCE, "1", t0+1)
    post(a, 44)
    a(f"s_add_u32 s44, s{S_LOC}, s{s_fw}")
    a("s_cmp_eq_u32 s44, 0")
    a("s_cbranch_scc0 L_E_done2")
    a(f"s_lshl_b32 s44, s{S_XCD}, 10")
    a(f"s_add_u32 s44, s44, {CQ + 6*128}")
    a("s_mov_b64 exec, 1")
    a(f"buffer_atomic_add v{V_ONE}, off, s[{SWS}:{SWS+3}], s44 sc1")
    a("s_mov_b64 exec, -1")
    a("s_branch L_E_done2")
    a.label("L_E_done")
    lds_wait_ge(a, "tg2", V_MISC, L_NONCE, "1", t0+1)
    a.label("L_E_done2")
    lds_arrive(a, V_MISC, L_POST)
    st.stamp(4)
    if o.noffn: finish(a, st)
    R = Regs(20)
    XF = [[R.alloc(4) for _ in range(2)] for _ in range(2)]
    WF = [R.alloc(4) for _ in range(3)]
    UACC = [[R.alloc(16) for _ in range(2)] for _ in range(3)]
    hi.append(R.hi)
    def up_groups():
        g = up_dma_groups(vx, vw, s_lx, s_lw, s_xoff, s_woff)
        g[3] += [f"s_add_u32 s{s_xoff}, s{s_xoff}, 128",
                 f"s_and_b32 s{s_xoff}, s{s_xoff}, 1023",
                 f"s_add_u32 s{s_lx}, s{s_lx}, s{s_dx}",
                 f"s_sub_u32 s{s_dx}, 0, s{s_dx}"]
        g[9] += [f"s_add_u32 s{s_woff}, s{s_woff}, {64*2752}",
                 f"s_cmp_eq_u32 s{s_woff}, {512*2752}",
                 f"s_cselect_b32 s{s_woff}, 0, s{s_woff}",
                 f"s_add_u32 s{s_lw}, s{s_lw}, {UWS}",
                 f"s_cmp_eq_u32 s{s_lw}, s{s_dw}",
                 f"s_cselect_b32 s44, {3*UWS}, 0",
                 f"s_sub_u32 s{s_lw}, s{s_lw}, s44"]
        return g
    zero(UACC[0][0], 96)
    a(f"s_setprio {o.fprio}")
    if o.upat == 9: lds_wait_ge(a, "upgo", V_MISC, L_POST, "4", t0, sleep=2)
    if o.upat == 10: lds_wait_ge(a, "upgo", V_MISC, L_ATT, "8", t0, sleep=4)
    if o.upat == 12: lds_wait_ge(a, "upgo", V_MISC, L_GO, "1", t0, sleep=2)
    if o.udelay: a(f"s_sleep {o.udelay}")
    for grp in up_groups() + up_groups()[4:]:
        for l in grp: a(l)
    a(f"s_mov_b32 s{s_stage}, 0")
    a(f"s_mov_b32 s{s_rb}, {UX[1]-UX[0]}")
    a(f"s_mov_b32 s{s_lc}, {UWS}")
    def rd_x(kk, buf):
        for t in range(2):
            a(f"ds_read_b128 {v(XF[buf][t],4)}, v{uxaddr[kk]} offset:{t*4096}")
    def rd_w(kk, u):
        off = kk*16*192 + (u*32 if u < 2 else 0)
        ad = uwaddr if u < 2 else uw2
        a(f"ds_read_b64_tr_b16 {v(WF[u],2)}, v{ad} offset:{off}")
        a(f"ds_read_b64_tr_b16 {v(WF[u]+2,2)}, v{ad} offset:{off+4*192}")
    def nops(n):
        if n > 0: a(f"s_nop {n-1}")
    cnt = [0, o.mprio]
    def umm(u, buf, fill=None, after=3):
        for t in range(2):
            a(f"{MF} {v(UACC[u][t],16)}, {v(WF[u],4)}, {v(XF[buf][t],4)}, {v(UACC[u][t],16)}")
            if o.hp:
                want = 2 if (fill and cnt[0] < o.hp) else o.mprio
                if want != cnt[1]: a(f"s_setprio {want}"); cnt[1] = want
                cnt[0] += 1
            if fill:
                for _ in range(o.dper):
                    if fill:
                        for l in fill.pop(0): a(l)
            else:
                nops(o.fpace - (after if t == 1 else 0))
    st.abeg()
    a("s_waitcnt vmcnt(6)")
    fbar(a, t0)
    st.aend(2)
    rd_x(0, 0)
    for u in range(3): rd_w(0, u)
    if o.upause == -1: lds_wait_ge(a, "upp0", V_MISC, L_ATT, "8", t0, sleep=4)
    a(f"s_setprio {o.mprio}")
    def umm_skip(u, buf):
        for t in range(2):
            lab = a.newlabel("upskip")
            a(f"s_bitcmp1_b32 s{s_skip}, {t}")
            a(f"s_cbranch_scc0 {lab}")
            a(f"{MF} {v(UACC[u][t],16)}, {v(WF[u],4)}, {v(XF[buf][t],4)}, {v(UACC[u][t],16)}")
            a.label(lab)
        if o.hp and cnt[1] != o.mprio:
            a(f"s_setprio {o.mprio}"); cnt[1] = o.mprio
    if o.upwarm:
        srd(a, SC, 16, 17, 1376*1024 if o.w0 == 0 else 0)
        a(f"s_lshl_b32 s44, s{S_LOC}, 2")
        a(f"s_add_u32 s44, s44, s{s_fw}")
        a("s_lshl_b32 s54, s44, 10")
        a("s_mov_b32 s59, s54")
    a.label("L_up_loop")
    groups = up_groups()
    if o.upwarm:
        wl = [f"buffer_load_dwordx4 v[160:163], v{V_L16}, s[{SC}:{SC+3}], s59 offen", "s_add_u32 s59, s59, 131072"]
        groups.append(wl * (o.upwarm // 2)); groups.append(wl * (o.upwarm - o.upwarm // 2))
    for kk in range(3):
        buf = kk & 1
        for u in range(3):
            younger = (2-u)*2 + (0 if u == 0 else 2 + 2*u)
            a(f"s_waitcnt lgkmcnt({younger})")
            if u == 2: umm_skip(u, buf)
            else: umm(u, buf, groups, 5 if u == 0 else 3)
            if u == 0: rd_x(kk+1, buf ^ 1)
            rd_w(kk+1, u)
    assert not groups
    a("s_waitcnt lgkmcnt(4)")
    umm(0, 1)
    a(f"s_cmp_eq_u32 s{s_stage}, 7")
    a("s_cbranch_scc1 L_up_last")
    st.abeg()
    a(f"s_waitcnt vmcnt({6 + o.upwarm}) lgkmcnt(0)")
    st.aend(0)
    a(f"s_add_u32 s{S_FBT}, s{S_FBT}, 4")
    lds_arrive(a, V_MISC, L_FB)
    umm(1, 1)
    a(f"s_setprio {o.fprio}")
    for r in uxaddr:
        a(f"v_add_u32 v{r}, s{s_rb}, v{r}")
    a(f"v_add_u32 v{uwaddr}, s{s_lc}, v{uwaddr}")
    a(f"v_add_u32 v{uw2}, s{s_lc}, v{uw2}")
    st.abeg()
    lds_wait_ge(a, "upb", V_MISC, L_FB, f"s{S_FBT}", t0, sleep=1)
    st.aend(1)
    a(f"s_setprio {o.mprio}")
    rd_x(0, 0)
    rd_w(0, 0); rd_w(0, 1)
    umm_skip(2, 1)
    rd_w(0, 2)
    a(f"s_sub_u32 s{s_rb}, 0, s{s_rb}")
    a(f"s_add_u32 s{s_stage}, s{s_stage}, 1")
    a(f"s_bitcmp1_b32 0x24, s{s_stage}")
    a(f"s_mov_b32 s44, {(-2*UWS) & 0xffffffff}")
    a(f"s_cselect_b32 s{s_lc}, s44, {UWS}")
    a(f"s_cmp_eq_u32 s{s_stage}, 7")
    a(f"s_cselect_b32 s{SA+2}, 0, s{SA+2}")
    a(f"s_cmp_eq_u32 s{s_stage}, 6")
    a(f"s_cselect_b32 s{SB+2}, 0, s{SB+2}")
    if o.upwarm:
        w1 = o.w0 + (11 + o.upwarm - 1) // o.upwarm
        if o.w0:
            a(f"s_cmp_eq_u32 s{s_stage}, {o.w0}")
            a(f"s_cselect_b32 s{SC+2}, {1376*1024}, s{SC+2}")
            a("s_cselect_b32 s59, s54, s59")
        a(f"s_and_b32 s44, s9, 0xffff")
        a(f"s_cmp_eq_u32 s{s_stage}, {w1}")
        a(f"s_cselect_b32 s{SC}, s8, s{SC}")
        a(f"s_cselect_b32 s{SC+1}, s44, s{SC+1}")
        a(f"s_cselect_b32 s{SC+2}, {512*1024}, s{SC+2}")
        a("s_cselect_b32 s59, s54, s59")
    if o.upause > 0:
        a(f"s_cmp_eq_u32 s{s_stage}, {o.upause}")
        a("s_cbranch_scc0 L_up_loop")
        a(f"s_setprio {o.fprio}")
        lds_wait_ge(a, "upp", V_MISC, L_ATT, "8", t0, sleep=4)
        a(f"s_setprio {o.mprio}")
    a("s_branch L_up_loop")
    a.label("L_up_last")
    a("s_waitcnt lgkmcnt(0)")
    umm(1, 1)
    umm_skip(2, 1)
    a(f"s_setprio {o.fprio}")
    st.stamp(5)
    a(f"s_lshl_b32 s44, s{s_urb}, 2")
    a(f"s_and_b32 s45, s{s_fw}, 1")
    a("s_lshl_b32 s45, s45, 1")
    a("s_add_u32 s44, s44, s45")
    a("s_mul_i32 s44, s44, 86")
    a(f"s_add_u32 s44, s44, s{s_u0}")
    a(f"s_and_b32 s45, s{s_cg}, 255")
    a("s_add_u32 s44, s44, s45")
    a("s_lshl_b32 s44, s44, 10")
    a(f"s_add_u32 s44, s44, {HF}")
    a(f"s_lshr_b32 s46, s{s_cg}, 8")
    a(f"s_sub_u32 s{s_cg}, s46, s45")
    a(f"s_lshl_b32 s{s_cg}, s{s_cg}, 10")
    a(f"s_add_u32 s45, s44, {86*1024}")
    a(f"s_mov_b32 s46, {f32bits(-LOG2E)}")
    a("s_mov_b32 s47, s46")
    for u in range(3):
        if u == 2:
            a(f"s_add_u32 s44, s44, s{s_cg}")
            a(f"s_add_u32 s45, s45, s{s_cg}")
        for t in range(2):
            if u == 2:
                a(f"s_bitcmp1_b32 s{s_skip}, {t}")
                a(f"s_cbranch_scc0 {'L_up_e1' if t == 0 else 'L_up_done'}")
            g = UACC[u][t]; up = g + 8
            tm = XF[u & 1][t]
            for i in range(4): a(f"v_pk_mul_f32 {v(g+2*i,2)}, {v(g+2*i,2)}, s[46:47]")
            for i in range(8): a(f"v_exp_f32 v{g+i}, v{g+i}")
            for i in range(4): a(f"v_pk_add_f32 {v(g+2*i,2)}, {v(g+2*i,2)}, 1.0 op_sel_hi:[1,0]")
            for i in range(8): a(f"v_rcp_f32 v{g+i}, v{g+i}")
            for i in range(4): a(f"v_pk_mul_f32 {v(g+2*i,2)}, {v(g+2*i,2)}, {v(up+2*i,2)}")
            for i in range(4): a(f"v_cvt_pk_bf16_f32 v{tm+i}, v{g+2*i}, v{g+2*i+1}")
            a(f"buffer_store_dwordx4 {v(tm,4)}, v{V_L16}, s[{SWS}:{SWS+3}], s{44+t} offen offset:{(u&1)*1024} sc1")
            if u == 2 and t == 0: a.label("L_up_e1")
    a.label("L_up_done")
    a(f"s_lshl_b32 s44, s{s_urb}, 2")
    a(f"s_add_u32 s44, s44, s{s_fw}")
    a("s_lshl_b32 s44, s44, 7")
    a(f"s_add_u32 s44, s44, {CH}")
    post(a, 44)
    st.stamp(8)
    s_h0, s_h1, s_w, s_i, s_T, s_nt, s_idx, s_dl = 49, 50, 51, 52, 53, 54, 55, 56
    R = Regs(16)
    ACC = [R.alloc(16) for _ in range(4)]
    HFR = [[R.alloc(4) for _ in range(2)] for _ in range(8)]
    WF = [[R.alloc(4) for _ in range(2)] for _ in range(2)]
    G = 8; VOUT = 10; da = [11, 12]; db = [R.alloc(), R.alloc()]
    hi.append(R.hi)
    fbar(a, t0)
    a(f"ds_read_b32 v{t0+3}, v{V_MISC} offset:{L_NONCE}")
    if not o.gapw:
        srd(a, SA, 8, 9, 512*1024)
        a(f"s_lshl_b32 s{s_w}, s{s_fw}, 17")
        a(f"s_mov_b32 m0, s{s_lb}")
        a(f"s_mov_b32 s{s_i}, 14")
        a.label("L_wo_ld")
        a(f"buffer_load_dwordx4 v{vsrc}, s[{SA}:{SA+3}], s{s_w} offen lds")
        a("s_add_u32 m0, m0, 1024")
        a(f"s_add_u32 s{s_w}, s{s_w}, 8192")
        a(f"s_sub_u32 s{s_i}, s{s_i}, 1")
        a(f"s_cmp_lg_u32 s{s_i}, 0")
        a("s_cbranch_scc1 L_wo_ld")
        srd(a, SA, 16, 17, 1376*1024)
    else:
        srd(a, SA, 16, 17, 1376*1024)
        srd(a, SC, 8, 9, 512*1024)
        if o.gapw == 1:
            a(f"s_and_b32 s44, s{S_LOC}, 3")
            a("s_lshl_b32 s44, s44, 2")
            a(f"s_add_u32 s44, s44, s{s_fw}")
            a("s_lshl_b32 s45, s44, 15")
            a(f"s_mul_i32 s44, s44, {86*1024}")
            a(f"s_mov_b32 s{s_i}, {o.nwd}")
            a.label("L_wd_warm")
            a(f"buffer_load_dwordx4 {v(HFR[7][0],4)}, v{vsrc}, s[{SA}:{SA+3}], s44 offen")
            a("s_add_u32 s44, s44, 8192")
            a(f"s_sub_u32 s{s_i}, s{s_i}, 1")
            a(f"s_cmp_lg_u32 s{s_i}, 0")
            a("s_cbranch_scc1 L_wd_warm")
            for i in range(4):
                a(f"buffer_load_dwordx4 {v(HFR[7][0],4)}, v{vsrc}, s[{SC}:{SC+3}], s45 offen")
                a("s_add_u32 s45, s45, 8192")
        elif o.gapw == 2:
            a(f"s_lshl_b32 s44, s{S_LOC}, 2")
            a(f"s_add_u32 s44, s44, s{s_fw}")
            a("s_lshl_b32 s44, s44, 10")
            a("s_mov_b32 s45, s44")
            for i in range(o.nwd):
                a(f"buffer_load_dwordx4 {v(HFR[7][0],4)}, v{V_L16}, s[{SA}:{SA+3}], s44 offen")
                a("s_add_u32 s44, s44, 131072")
            for i in range(o.nwo):
                a(f"buffer_load_dwordx4 {v(HFR[7][0],4)}, v{V_L16}, s[{SC}:{SC+3}], s45 offen")
                a("s_add_u32 s45, s45, 131072")
        a(f"s_mov_b32 s59, {(-2*1024) & 0xffffffff}")
        a(f"s_lshl_b32 s63, s{s_fw}, 17")
    a(f"s_mul_i32 s{s_dl}, s{s_fw}, 6144")
    a(f"s_add_u32 s{s_dl}, s{s_dl}, {DRING}")
    a(f"v_add_u32 v{da[0]}, s{s_dl}, v{wa}")
    a(f"v_xor_b32 v{da[1]}, 64, v{da[0]}")
    a(f"v_add_u32 v{db[0]}, s{s_lb}, v{wa}")
    a(f"v_xor_b32 v{db[1]}, 64, v{db[0]}")
    a(f"s_lshl_b32 s{s_w}, s{s_fw}, 14")
    a(f"s_lshl_b32 s44, s{s_T2}, 1")
    a(f"s_and_b32 s45, s{s_fw}, 1")
    a(f"s_add_u32 s{s_T}, s44, s45")
    a(f"s_xor_b32 s47, s{s_T}, 1")
    for d, sx in ((s_h0, s_T), (s_h1, 47)):
        a(f"s_mul_i32 s{d}, s{sx}, 86")
        a(f"s_add_u32 s{d}, s{d}, s{s_fw}")
        a(f"s_lshl_b32 s{d}, s{d}, 10")
        a(f"s_add_u32 s{d}, s{d}, {HF}")
    a(f"s_lshl_b32 s44, s{s_N2}, 1")
    a(f"s_lshr_b32 s45, s{s_fw}, 1")
    a(f"s_add_u32 s{s_nt}, s44, s45")
    a(f"v_and_b32 v{t0}, 31, v0")
    a(f"v_lshrrev_b32 v{t0+1}, 5, v0")
    a(f"v_lshlrev_b32 v{t0+1}, 4, v{t0+1}")
    a(f"v_lshl_add_u32 v{VOUT}, v{t0}, 10, v{t0+1}")
    a("s_waitcnt lgkmcnt(0)")
    a(f"v_readfirstlane_b32 s{S_NONCE}, v{t0+3}")
    a(f"v_lshlrev_b32 v{t0+1}, 3, v{t0}")
    a(f"s_lshl_b32 s44, s{s_T}, 8")
    a(f"s_add_u32 s44, s44, {GA}")
    a(f"s_mov_b32 s{S_SPIN}, 0")
    a.label("L_g_poll")
    a(f"buffer_load_dwordx2 {v(G,2)}, v{t0+1}, s[{SWS}:{SWS+3}], s44 offen sc1")
    a(f"s_add_u32 s{S_SPIN}, s{S_SPIN}, 1")
    a("s_waitcnt vmcnt(0)")
    a(f"v_cmp_ne_u32 vcc, s{S_NONCE}, v{G+1}")
    a(f"s_cmp_gt_u32 s{S_SPIN}, 200000")
    a("s_cbranch_scc1 L_g_got")
    a("s_cbranch_vccz L_g_got")
    a("s_sleep 8")
    a("s_branch L_g_poll")
    a.label("L_g_got")
    a(f"v_sub_f32 v{G+1}, 1.0, v{G}")
    a(f"s_cmp_eq_u32 s{s_fw}, 0")
    a("s_cbranch_scc0 L_dn_nopoll")
    a(f"s_lshr_b32 s44, s{s_T2}, 1")
    a("s_lshl_b32 s44, s44, 2")
    a(f"s_and_b32 s45, s{s_T2}, 1")
    a("s_add_u32 s44, s44, s45")
    a("s_lshl_b32 s44, s44, 7")
    a(f"s_add_u32 s44, s44, {CH}")
    a(f"v_and_b32 v{t0+2}, 1, v0")
    a(f"v_lshlrev_b32 v{t0+2}, 8, v{t0+2}")
    poll(a, "dn", t0+1, t0+2, 44, 16, 8)
    a.label("L_dn_nopoll")
    fbar(a, t0+1)
    st.stamp(9)
    s_wend, s_hend = 57, 58
    s_o, s_out, s_co = 49, 50, 51
    def ldw(g):
        m = f"s_add_u32 m0, s{s_dl}, {(g%4)*2048}" if g % 4 < 3 else f"s_add_u32 m0, s{s_lb}, {7*2048}"
        p0 = [m, f"s_add_u32 s44, s{s_w}, 8192", f"buffer_load_dwordx4 v{vsrc}, s[{SA}:{SA+3}], s{s_w} offen lds"]
        p1 = ["s_add_u32 m0, m0, 1024", f"s_add_u32 s{s_w}, s{s_w}, 65536", f"buffer_load_dwordx4 v{vsrc}, s[{SA}:{SA+3}], s44 offen lds"]
        if o.stagD: p1 += [f"s_cmp_eq_u32 s{s_w}, s{s_wend}", f"s_cselect_b32 s{s_w}, s46, s{s_w}"]
        return [p0, p1]
    def ldh(g):
        p0 = [f"s_add_u32 s45, s{s_h0}, s{s_h1}", f"buffer_load_dwordx4 {v(HFR[g%4][0],4)}, v{V_L16}, s[{SWS}:{SWS+3}], s{s_h0} offen sc1"]
        p1 = [f"s_add_u32 s{s_h0}, s{s_h0}, 4096", f"buffer_load_dwordx4 {v(HFR[g%4][1],4)}, v{V_L16}, s[{SWS}:{SWS+3}], s45 offen sc1"]
        if o.stagD: p1 += [f"s_cmp_eq_u32 s{s_h0}, s{s_hend}", f"s_cselect_b32 s{s_h0}, s47, s{s_h0}"]
        return [p0, p1]
    def emit(ps):
        for p in ps:
            for l in p: a(l)
    def rdw1(off, buf, ad, n):
        a(f"ds_read_b64_tr_b16 {v(WF[buf][n],2)}, v{ad[n]} offset:{off}")
        a(f"ds_read_b64_tr_b16 {v(WF[buf][n]+2,2)}, v{ad[n]} offset:{off+1024}")
    def rdw(off, buf, ad=da):
        for n in range(2): rdw1(off, buf, ad, n)
    a(f"s_sub_u32 s{s_h1}, s{s_h1}, s{s_h0}")
    a(f"s_mov_b32 s46, s{s_w}")
    a(f"s_mov_b32 s47, s{s_h0}")
    a(f"s_add_u32 s{s_wend}, s46, {21*65536}")
    a(f"s_add_u32 s{s_hend}, s47, {21*4096}")
    if o.stagD:
        a(f"s_and_b32 s44, s{S_LOC}, 3")
        a("s_mul_i32 s44, s44, 5")
        a(f"s_mul_i32 s45, s{s_N2}, 21")
        a("s_lshr_b32 s45, s45, 3")
        a("s_add_u32 s44, s44, s45")
        a("s_cmp_ge_u32 s44, 21")
        a("s_cselect_b32 s45, 21, 0")
        a(f"s_sub_u32 s{s_i}, s44, s45")
    else:
        a(f"s_mov_b32 s{s_i}, 0")
    a(f"s_mov_b32 s{s_w}, s{s_wend}")
    a(f"s_cmp_lt_u32 s{s_fw}, 2")
    a(f"s_cselect_b32 s{s_h0}, s{s_hend}, s47")
    emit(ldw(0))
    a(f"s_lshl_b32 s44, s{s_i}, 16")
    a(f"s_add_u32 s{s_w}, s46, s44")
    emit(ldw(1)); emit(ldh(0))
    a(f"s_lshl_b32 s44, s{s_i}, 12")
    a(f"s_add_u32 s{s_h0}, s47, s44")
    emit(ldw(2)); emit(ldh(1))
    emit(ldw(3)); emit(ldh(2))
    a(f"s_setprio {o.dprio}")
    a("s_waitcnt vmcnt(12)")
    rdw(0, 0)
    def rstep(k):
        b = k & 1
        issued = lambda j: (2 if j + 4 <= 21 else 0) + (2 if j + 3 <= 21 else 0) + (2 if j == 19 else 0) + (1 if (o.gapw and 1 <= j <= 16) else 0)
        a(f"s_waitcnt vmcnt({issued(k-2) + issued(k-1)}) lgkmcnt(0)")
        parts = (ldw(k+4) if k + 4 <= 21 else [[], []]) + (ldh(k+3) if k + 3 <= 21 else [[], []])
        if o.gapw and 1 <= k <= 16:
            parts[3] = parts[3] + ["s_max_i32 s44, s59, 0", f"s_add_u32 m0, s{s_lb}, s44", "s_lshl_b32 s44, s44, 3", "s_add_u32 s44, s44, s63",
                                   f"buffer_load_dwordx4 v{vsrc}, s[{SC}:{SC+3}], s44 offen lds", "s_add_u32 s59, s59, 1024"]
        if k == 19:
            parts = [[f"s_mov_b32 s{SA}, s8", f"s_and_b32 s{SA+1}, s9, 0xffff", f"s_mov_b32 s{SA+2}, {512*1024}",
                      f"s_lshl_b32 s44, s{s_fw}, 17", f"s_add_u32 s44, s44, {14*8192}"],
                     [f"s_add_u32 m0, s{s_lb}, {14*1024}", "s_add_u32 s45, s44, 8192",
                      f"buffer_load_dwordx4 v{vsrc}, s[{SA}:{SA+3}], s44 offen lds"],
                     ["s_add_u32 m0, m0, 1024", "s_nop 0", f"buffer_load_dwordx4 v{vsrc}, s[{SA}:{SA+3}], s45 offen lds"], []]
        if k == 20:
            parts = [[f"s_mov_b32 s{SB}, s20", f"s_and_b32 s{SB+1}, s21, 0xffff", f"s_mov_b32 s{SB+2}, {2048*1024}", f"s_mov_b32 s{SB+3}, 0x20000"],
                     [f"s_lshr_b32 s46, s{s_fw}, 1", f"s_lshl_b32 s44, s{s_T}, 15", "s_lshl_b32 s45, s46, 14", "s_add_u32 s45, s44, s45",
                      f"s_add_u32 s{s_o}, s45, {OF}"],
                     [f"s_lshl_b32 s45, s{s_nt}, 6", f"s_add_u32 s{s_out}, s44, s45", f"s_lshl_b32 s44, s{s_T}, 1", "s_add_u32 s44, s44, s46"],
                     ["s_lshl_b32 s44, s44, 7", f"s_add_u32 s{s_co}, s44, {CO}"]]
        for n in range(2):
            for t in range(2):
                c = "0" if k == 0 else v(ACC[2*n+t],16)
                a(f"{MF} {v(ACC[2*n+t],16)}, {v(WF[b][n],4)}, {v(HFR[k%4][t],4)}, {c}")
                if n == 0 and k < 21:
                    if (k+1) % 4 < 3: rdw1(((k+1) % 4)*2048, b ^ 1, da, t)
                    else: rdw1(7*2048, b ^ 1, db, t)
                for l in parts[2*n+t]: a(l)
    rstep(0)
    a(f"s_mov_b32 s{s_i}, 4")
    def hold(tag):
        a(f"s_setprio {o.fprio}")
        a(f"v_lshl_add_u32 v{t0+2}, s{s_fw}, 2, v{V_MISC}")
        lds_wait_ge(a, tag, t0+2, L_PAIR, str(o.holdn), t0+1, sleep=4)
    a.label("L_dn_loop")
    if o.hold in (9, 13):
        a(f"s_cmp_eq_u32 s{s_i}, {(17-o.hold)//4}")
        a("s_cbranch_scc0 L_dn_nh")
        hold("hold")
        a.label("L_dn_nh")
    for k in range(1, 5): rstep(k)
    a(f"s_sub_u32 s{s_i}, s{s_i}, 1")
    a(f"s_cmp_lg_u32 s{s_i}, 0")
    a("s_cbranch_scc1 L_dn_loop")
    if o.hold == 17: hold("hold")
    for k in range(17, 22): rstep(k)
    a(f"s_setprio {o.fprio}")
    st.stamp(10)
    a("s_waitcnt vmcnt(0)")
    a("s_barrier")
    if o.tdelay: a(f"s_sleep {o.tdelay}")
    a(f"buffer_load_dword v{t0+1}, off, s[{SWS}:{SWS+3}], s{s_co} sc1")
    a("s_lshl_b32 s44, s46, 15")
    a(f"s_add_u32 s44, s44, {STG}")
    a(f"v_add_u32 v{da[0]}, s44, v{wa}")
    a(f"v_xor_b32 v{da[1]}, 64, v{da[0]}")
    a(f"s_lshl_b32 s44, s{s_fw}, 13")
    a(f"v_add_u32 v{t0}, s44, v{V_L16}")
    a(f"v_xor_b32 v{t0+2}, 8192, v{t0}")
    a(f"v_xor_b32 v{t0+3}, 16384, v{t0}")
    for n in range(2):
        for i in range(4):
            a(f"ds_write_b128 v{t0}, {v(ACC[2*n+1]+4*i,4)} offset:{n*4096+i*1024}")
    a("s_waitcnt lgkmcnt(0)")
    a("s_barrier")
    for n in range(2):
        for i in range(4):
            a(f"ds_read_b128 {v(ACC[2*n+1]+4*i,4)}, v{t0+2} offset:{n*4096+i*1024}")
    WF.append([160, 164])
    hi.append(168)
    for n in (1, 0): rdw1(0, 0, da, n)
    BQ = [ACC[0], ACC[2]]
    def bsum():
        for n in range(2):
            a(f"s_waitcnt lgkmcnt({4*(1-n)+4})")
            for i in range(8):
                a(f"v_pk_add_f32 {v(BQ[n]+2*i,2)}, {v(BQ[n]+2*i,2)}, {v(ACC[2*n+1]+2*i,2)}")
            for i in range(8):
                a(f"v_pk_mul_f32 {v(BQ[n]+2*i,2)}, {v(BQ[n]+2*i,2)}, {v(G,2)} op_sel:[0,1] op_sel_hi:[1,1]")
    poll(a, "tl", t0+1, None, s_co, 16, o.tsleep, first_issued=True)
    st.stamp(11)
    if st.en: a("s_waitcnt lgkmcnt(0)")
    OFR = [HFR[i >> 1][i & 1] for i in range(16)]
    def ldo(i):
        a(f"buffer_load_dwordx4 {v(OFR[i],4)}, v{V_L16}, s[{SWS}:{SWS+3}], s{s_o} offen offset:{(i&3)*1024} sc1")
        if i & 3 == 3 and i < 15: a(f"s_add_u32 s{s_o}, s{s_o}, 4096")
    for i in range(o.nfirst): ldo(i)
    bsum()
    if o.tprof: st.stamp(2); a("s_waitcnt lgkmcnt(0)")
    for n in (1, 0): rdw1(2048, 1, da, n)
    pend = list(range(o.nfirst, 16))
    AO = [ACC[1], ACC[3]]
    for i in range(16):
        buf = i % 3
        a(f"s_waitcnt vmcnt({15-len(pend)-i}) lgkmcnt({4 if i < 15 else 0})")
        if o.tprof and i == 0: st.stamp(3); a("s_waitcnt lgkmcnt(0)")
        for n in (1, 0):
            c = "0" if i == 0 else v(AO[n],16)
            a(f"{MF} {v(AO[n],16)}, {v(WF[buf][n],4)}, {v(OFR[i],4)}, {c}")
            if i < 14: rdw1((i+2)*2048, (i+2) % 3, da, n)
            if pend: ldo(pend.pop(0))
    if o.tprof: st.stamp(4)
    a("s_nop 10")
    for i in range(4):
        for j in (2*i, 2*i+1):
            a(f"v_pk_fma_f32 {v(BQ[1]+2*j,2)}, {v(AO[1]+2*j,2)}, {v(G,2)}, {v(BQ[1]+2*j,2)} op_sel_hi:[1,0,1]")
        a(f"ds_write_b128 v{t0}, {v(BQ[1]+4*i,4)} offset:{32768+i*1024}")
    for i in range(8):
        a(f"v_pk_fma_f32 {v(BQ[0]+2*i,2)}, {v(AO[0]+2*i,2)}, {v(G,2)}, {v(BQ[0]+2*i,2)} op_sel_hi:[1,0,1]")
    a("s_waitcnt lgkmcnt(0)")
    a("s_barrier")
    for i in range(4):
        a(f"ds_read_b128 {v(AO[1]+4*i,4)}, v{t0+3} offset:{32768+i*1024}")
    if o.tprof: st.stamp(5); a("s_waitcnt lgkmcnt(0)")
    T2 = AO[0]
    for p in range(2):
        a(f"s_waitcnt lgkmcnt({2*(1-p)})")
        for i in range(4*p, 4*p+4):
            a(f"v_pk_add_f32 {v(BQ[0]+2*i,2)}, {v(BQ[0]+2*i,2)}, {v(AO[1]+2*i,2)}")
        for i in range(4*p, 4*p+4):
            a(f"v_cvt_pk_bf16_f32 v{T2+i}, v{BQ[0]+2*i}, v{BQ[0]+2*i+1}")
        b = T2 + 4*p
        a("s_nop 1")
        a(f"v_permlane32_swap_b32 v{b}, v{b+2}")
        a(f"v_permlane32_swap_b32 v{b+1}, v{b+3}")
        a("s_nop 1")
        a(f"buffer_store_dwordx4 {v(b,4)}, v{VOUT}, s[{SB}:{SB+3}], s{s_out} offen offset:{32*p}{['', ' sc1', ' nt', ' sc0 sc1', ' sc1 nt'][o.ost]}")
    if o.tprof: st.stamp(8)
    finish(a, st)
    return hi

def build(path):
    global KN
    KN = "kb_kernel" if (o.report or o.instr) else KNAME
    a = Asm()
    a('.amdgcn_target "amdgcn-amd-amdhsa--gfx950"')
    a(".text")
    st = Stamper(a, o.instr, 0)
    kernel_header(a, KN)
    a("s_cmp_ge_u32 s2, 256")
    a("s_cbranch_scc1 L_exit")
    a("s_load_dwordx16 s[4:19], s[0:1], 0")
    a("s_load_dwordx4 s[20:23], s[0:1], 64")
    a("s_load_dwordx2 s[24:25], s[0:1], 80")
    st.init(); st.real(0); st.stamp(1)
    a("v_lshrrev_b32 v1, 6, v0")
    a("v_and_b32 v0, 63, v0")
    a(f"s_and_b32 s{S_XCD}, s2, 7")
    a(f"v_readfirstlane_b32 s{S_WAVE}, v1")
    a(f"s_lshr_b32 s{S_LOC}, s2, 3")
    a(f"v_lshlrev_b32 v{V_L16}, 4, v0")
    a(f"v_mov_b32 v{V_MISC}, {MISC}")
    a(f"v_mov_b32 v{V_ONE}, 1")
    if st.en: a("s_getreg_b32 s95, hwreg(HW_REG_XCC_ID)")
    a(f"s_cmp_ge_u32 s{S_WAVE}, 8")
    a("s_cbranch_scc1 L_F")
    ahi, fallback = a_waves(a, st)
    a.label("L_F")
    hi = f_waves(a, st) + [ahi]
    a.label("L_code_end")
    fallback()
    a.label("L_exit")
    a("s_endpgm")
    print("vgprs", hi)
    assert max(hi) <= 168
    descs = [kernel_desc(KN, 168)]
    if o.report or o.instr:
        hdr = f"; @launch kernel={KN} grid=(256,1,1) block=(768,1,1) lds={LDS_TOTAL}\n"
        if o.report:
            k, w, i = [int(x) for x in str(o.report).split(",")]
            reporter(a, k, w, i)
            hdr += "; @launch kernel=rep_kernel grid=(1,1,1) block=(64,1,1) lds=0\n"
            descs.append(kernel_desc("rep_kernel", 16))
    else:
        hdr = f"; @launch grid=(256,1,1) block=(768,1,1) lds={LDS_TOTAL}\n"
    a('.section .rodata,"a"')
    open(path, "w").write("; generated by gen/gen23.py\n" + hdr + a.text() + "".join(descs))

if __name__ == "__main__":
    path = sys.argv[1]
    for arg in sys.argv[2:]:
        k, _, val = arg.partition("=")
        assert hasattr(Opt, k), k
        setattr(Opt, k, (val if ',' in val else int(val)) if val else True)
    if Opt.report: Opt.instr = True; Stamper.rt = True
    if Opt.acc: Stamper.acc = True
    if Opt.rt: Stamper.rt = True
    build(path)
```

```python
import math, sys
from asmlib import *

MB = 1 << 20
QF, KF, VF, OF, HF = 0, 2*MB, 4*MB, 6*MB, 8*MB
GA = 14*MB
CNT = 14*MB + 0x10000
CQ, CH, CO = CNT, CNT + 64*128, CNT + 128*128
W0 = 14*MB + 0x20000
DONE = 0x8000
WS_BYTES = 32*MB
LOG2E = 1.4426950408889634
QSCALE = 0.25 * LOG2E
LDS_TOTAL = 163840
KNAME = "gated_mix__mha_block__glu_gated_glu__prompt_kernel"

TS0, TSTR = 32768, 33024
TG, TU = 16384, 16384 + 8192 + 32
WIMG = 12288 + 32
UX = [49152, 65536]
UW = [81920]; UWS = 24832
STG = 65536
DRING = 131072
VCONST = 156672
GL = 160768
MISC = LDS_TOTAL - 256
L_NONCE, L_ATT, L_FB, L_GO, L_PAIR, L_POST, L_ST = 0, 4, 8, 12, 16, 32, 36

S_WAVE, S_NONCE = 26, 27
SWS, SA, SB, SC = 28, 32, 36, 40
S_XCD, S_LOC, S_FBT, S_SPIN = 3, 69, 67, 68
V_L16, V_MISC, V_ONE = 1, 2, 3
MF = "v_mfma_f32_32x32x16_bf16"
SM = "v_smfmac_f32_32x32x32_bf16"

class Opt:
    instr = False
    report = None
    acc = 0
    rt = 0
    ppdelay = 0
    fprio = 2
    mprio = 0
    aprio = 5
    psleep = 2
    stag1 = 0
    stag2 = 1
    pdelay = 10
    dper = 1
    upause = 0
    ost = 0
    pf31 = 1
    upat = 9
    upwarm = 3
    yat = 5
    noffn = 0
    hold = 0
    par = 1
    done = 0
    early = 0
    apoll = 7
    xprio = 0
    pre = 3
    holdn = 1
    w0 = 2
    rotU = 0
    hp = 0
    gapw = 0
    nwd = 11
    nwo = 4
    dprio = 0
    pf0 = 2
    rot = 0
    stagD = 1
    nfirst = 10
    tprof = 0
    tsleep = 1
    cuts = '2,6,10'
    pfup = 6
    stagU = 0
    fpace = 0
    la = 3
    udelay = 0
    xat = 1
    ctouch = 1
    tdelay = 0
o = Opt

def srd(a, d, lo, hi, nbytes):
    a(f"s_mov_b32 s{d}, s{lo}")
    a(f"s_and_b32 s{d+1}, s{hi}, 0xffff")
    a(f"s_mov_b32 s{d+2}, {nbytes}")
    a(f"s_mov_b32 s{d+3}, 0x20000")

def finish(a, st):
    if st.en: a("s_waitcnt vmcnt(0)")
    st.stamp(6); st.real(7); st.flush(SWS, S_WAVE, 4)
    a("s_endpgm")

def post(a, s_off):
    a("s_waitcnt vmcnt(0)")
    a("s_mov_b64 exec, 1")
    a(f"buffer_atomic_add v{V_ONE}, off, s[{SWS}:{SWS+3}], s{s_off} sc1")
    a("s_mov_b64 exec, -1")

def poll_ld(a, vt, voff, s_off, at):
    if at:
        a(f"v_mov_b32 v{vt}, 0")
        if voff is None: a(f"buffer_atomic_or v{vt}, off, s[{SWS}:{SWS+3}], s{s_off} sc0 sc1")
        else: a(f"buffer_atomic_or v{vt}, v{voff}, s[{SWS}:{SWS+3}], s{s_off} offen sc0 sc1")
    elif voff is None: a(f"buffer_load_dword v{vt}, off, s[{SWS}:{SWS+3}], s{s_off} sc1")
    else: a(f"buffer_load_dword v{vt}, v{voff}, s[{SWS}:{SWS+3}], s{s_off} offen sc1")

def poll(a, tag, vt, voff, s_off, target, sleep, first_issued=False, eq=False, at=0):
    def ld(): poll_ld(a, vt, voff, s_off, at)
    a(f"s_mov_b32 s{S_SPIN}, 0")
    if at: a(f"s_mov_b64 exec, {(1 << at) - 1}")
    if not first_issued: ld()
    a.label(f"L_{tag}_poll")
    a(f"s_add_u32 s{S_SPIN}, s{S_SPIN}, 1")
    a("s_waitcnt vmcnt(0)")
    a(f"v_cmp_{'ne' if eq else 'gt'}_u32 vcc, {target}, v{vt}")
    a(f"s_cmp_gt_u32 s{S_SPIN}, 200000")
    a(f"s_cbranch_scc1 L_{tag}_got")
    a(f"s_cbranch_vccz L_{tag}_got")
    if sleep: a(f"s_sleep {sleep}")
    ld()
    a(f"s_branch L_{tag}_poll")
    a.label(f"L_{tag}_got")
    if at: a("s_mov_b64 exec, -1")

def lds_wait_ge(a, tag, vaddr, off, target, vt, sleep=1):
    a(f"s_mov_b32 s{S_SPIN}, 0")
    a.label(f"L_{tag}_spin")
    a(f"ds_read_b32 v{vt}, v{vaddr} offset:{off}")
    a(f"s_add_u32 s{S_SPIN}, s{S_SPIN}, 1")
    a("s_waitcnt lgkmcnt(0)")
    a(f"v_cmp_gt_u32 vcc, {target}, v{vt}")
    a(f"s_cmp_gt_u32 s{S_SPIN}, 2000000")
    a(f"s_cbranch_scc1 L_{tag}_ok")
    a(f"s_cbranch_vccz L_{tag}_ok")
    if sleep: a(f"s_sleep {sleep}")
    a(f"s_branch L_{tag}_spin")
    a.label(f"L_{tag}_ok")

def lds_arrive(a, vaddr, off):
    a("s_mov_b64 exec, 1")
    a(f"ds_add_u32 v{vaddr}, v{V_ONE} offset:{off}")
    a("s_mov_b64 exec, -1")

def tile_ids(a, s_rb, s_lc):
    a(f"s_and_b32 s44, s{S_XCD}, 3")
    a("s_lshl_b32 s44, s44, 2")
    a(f"s_and_b32 s45, s{S_LOC}, 3")
    a(f"s_add_u32 s{s_rb}, s44, s45")
    a(f"s_lshr_b32 s{s_lc}, s{S_LOC}, 2")

def ids_up(a, s_rb, s_cg, s_u0):
    a(f"s_and_b32 s44, s{S_XCD}, 2")
    a("s_lshl_b32 s44, s44, 2")
    a(f"s_and_b32 s45, s{S_LOC}, 7")
    a(f"s_add_u32 s{s_rb}, s44, s45")
    quad_start(a, s_u0)
    a(f"s_and_b32 s44, s{S_XCD}, 1")
    if not o.par: a("s_xor_b32 s44, s44, 1")
    a(f"s_sub_u32 s{s_cg}, 6, s44")
    a(f"s_lshr_b32 s45, s{S_LOC}, 3")
    a(f"s_mul_i32 s47, s45, s{s_cg}")
    a(f"s_add_u32 s{s_u0}, s{s_u0}, s47")
    a("s_cmp_eq_u32 s45, 3")
    a("s_cselect_b32 s44, s44, 0")
    a(f"s_sub_u32 s{s_cg}, s{s_cg}, s44")

def quad_start(a, d):
    a(f"s_lshr_b32 s44, s{S_XCD}, 2")
    a("s_mul_i32 s44, s44, 43")
    a(f"s_and_b32 s45, s{S_XCD}, 1")
    if not o.par: a("s_xor_b32 s45, s45, 1")
    a("s_mul_i32 s45, s45, 24")
    a(f"s_add_u32 s{d}, s44, s45")

def stagger(a, mode=None):
    pass
    if mode == 1:
        a(f"s_lshr_b32 s44, s{S_LOC}, 3")
        a("s_lshl_b32 s44, s44, 1")
        a(f"s_add_u32 s44, s44, s{S_LOC}")
        a("s_and_b32 s44, s44, 7")
    elif mode == 2:
        a(f"s_lshr_b32 s44, s{S_LOC}, 3")
        a(f"s_add_u32 s44, s44, s{S_LOC}")
        a("s_and_b32 s44, s44, 3")
        a("s_lshl_b32 s44, s44, 1")
    elif mode == 3:
        a(f"s_lshr_b32 s44, s{S_LOC}, 3")
        a(f"s_add_u32 s44, s44, s{S_LOC}")
        a("s_and_b32 s44, s44, 1")
        a("s_lshl_b32 s44, s44, 2")
    else:
        a("s_mov_b32 s44, 0")

def up_dma_setup(a, t0, vx, vw, s_fw, s_rb, s_cg, s_u0, s_lx, s_lw, s_xoff, s_woff):
    a(f"v_lshrrev_b32 v{t0}, 3, v0")
    a(f"v_and_b32 v{t0+1}, 7, v0")
    a(f"v_lshrrev_b32 v{t0+2}, 1, v{t0}")
    ids_up(a, s_rb, s_cg, s_u0)
    a(f"s_and_b32 s46, s{s_fw}, 1")
    a("s_lshl_b32 s45, s46, 2")
    a(f"v_or_b32 v{t0+2}, s45, v{t0+2}")
    a(f"v_xor_b32 v{t0+1}, v{t0+1}, v{t0+2}")
    a(f"v_lshlrev_b32 v{t0+1}, 4, v{t0+1}")
    a(f"s_lshl_b32 s44, s{s_rb}, 7")
    a(f"s_lshl_b32 s45, s{s_fw}, 3")
    a("s_add_u32 s44, s44, s45")
    a(f"v_add_u32 v{t0}, s44, v{t0}")
    a(f"v_lshl_add_u32 v{vx}, v{t0}, 10, v{t0+1}")
    a("s_movk_i32 s44, 5462")
    a("s_movk_i32 s47, 2752")
    a("s_lshl_b32 s45, s46, 5")
    for j in range(3):
        a(f"v_add_u32 v{t0}, {64*j}, v0")
        a(f"v_mul_u32_u24 v{t0+1}, s44, v{t0}")
        a(f"v_lshrrev_b32 v{t0+1}, 16, v{t0+1}")
        a(f"v_mul_u32_u24 v{t0+2}, 12, v{t0+1}")
        a(f"v_sub_u32 v{t0+2}, v{t0}, v{t0+2}")
        a(f"v_lshrrev_b32 v{t0}, 1, v{t0+2}")
        a(f"v_cmp_gt_u32 vcc, s{s_cg}, v{t0}")
        a(f"v_lshlrev_b32 v{t0+2}, 4, v{t0+2}")
        a(f"v_add_u32 v{t0+1}, s45, v{t0+1}")
        a(f"v_mad_u32_u24 v{vw[j]}, v{t0+1}, s47, v{t0+2}")
        a(f"v_bfrev_b32 v{t0}, 2")
        a(f"v_cndmask_b32 v{vw[j]}, v{t0}, v{vw[j]}, vcc")
    a(f"s_lshl_b32 s{s_lx}, s{s_fw}, 10")
    a(f"s_add_u32 s{s_lx}, s{s_lx}, {UX[0]}")
    a("s_mul_i32 s45, s46, 6144")
    a(f"s_lshr_b32 s46, s{s_fw}, 1")
    a(f"s_mul_i32 s47, s46, {WIMG}")
    a("s_add_u32 s45, s45, s47")
    a(f"s_add_u32 s{s_lw}, s45, {UW[0]}")
    stagger(a, o.stagU)
    a(f"s_lshl_b32 s{s_xoff}, s44, 7")
    a(f"s_mul_i32 s{s_woff}, s44, {64*2752}")

def up_srd(a, s_fw, s_u0):
    srd(a, SA, 4, 5, 2048*1024)
    a(f"s_cmp_lt_u32 s{s_fw}, 2")
    a("s_cselect_b32 s46, s12, s14")
    a("s_cselect_b32 s47, s13, s15")
    a(f"s_lshl_b32 s44, s{s_u0}, 5")
    srd_off(a, SB, 46, 47, 44, 512*2752)

def up_dma_groups(vx, vw, s_lx, s_lw, s_xoff, s_woff):
    g = []
    for j in range(4):
        if j == 0: pre = [f"s_mov_b32 m0, s{s_lx}", f"s_mov_b32 s46, s{s_xoff}"]
        else: pre = ["s_add_u32 m0, m0, 4096", "s_add_u32 s46, s46, 32768"]
        g.append(pre + [f"buffer_load_dwordx4 v{vx}, s[{SA}:{SA+3}], s46 offen lds"])
    for j in range(6):
        if j == 0: pre = [f"s_mov_b32 m0, s{s_lw}", f"s_add_u32 s46, s{s_woff}, {16*2752}"]
        else: pre = ["s_add_u32 m0, m0, 1024", "s_nop 0"]
        so = s_woff if j < 3 else 46
        g.append(pre + [f"buffer_load_dwordx4 v{vw[j%3]}, s[{SB}:{SB+3}], s{so} offen lds"])
    return g

def srd_off(a, d, lo, hi, s_off, total):
    a(f"s_add_u32 s{d}, s{lo}, s{s_off}")
    a(f"s_addc_u32 s{d+1}, s{hi}, 0")
    a(f"s_and_b32 s{d+1}, s{d+1}, 0xffff")
    a(f"s_sub_u32 s{d+2}, {total}, s{s_off}")
    a(f"s_mov_b32 s{d+3}, 0x20000")

def dma_lanes(a, vr8, vc8, vx0, vx1, t, s_rb, s_w):
    a(f"v_lshrrev_b32 v{vr8}, 3, v0")
    a(f"v_and_b32 v{t}, 7, v0")
    a(f"v_lshrrev_b32 v{t+1}, 1, v{vr8}")
    a(f"v_xor_b32 v{t+2}, v{t}, v{t+1}")
    a(f"v_lshlrev_b32 v{t+2}, 4, v{t+2}")
    a(f"s_lshl_b32 s44, s{s_rb}, 7")
    a(f"s_lshl_b32 s45, s{s_w}, 5")
    a("s_add_u32 s44, s44, s45")
    a(f"v_add_u32 v{vx0}, s44, v{vr8}")
    a(f"v_lshl_add_u32 v{vx0}, v{vx0}, 10, v{t+2}")
    a(f"v_xor_b32 v{vx1}, 64, v{vx0}")
    a(f"v_add_u32 v{vx1}, 8192, v{vx1}")
    a(f"v_lshlrev_b32 v{t+1}, 2, v{t+1}")
    a(f"v_and_b32 v{t+1}, 4, v{t+1}")
    a(f"v_xor_b32 v{t}, v{t}, v{t+1}")
    a(f"v_lshlrev_b32 v{vc8}, 4, v{t}")

def dma_lds(a, s_lx, s_lw, s_w):
    a(f"s_lshl_b32 s{s_lx}, s{s_w}, 12")
    a(f"s_lshr_b32 s46, s{s_w}, 1")
    a(f"s_and_b32 s47, s{s_w}, 1")
    a(f"s_mul_i32 s44, s46, {TU-TG}")
    a("s_lshl_b32 s45, s47, 12")
    a("s_add_u32 s44, s44, s45")
    a(f"s_add_u32 s{s_lw}, s44, {TG}")

def start_stage(a, mode, s_lc, s_w, s_xoff, s_woff, pitch):
    if mode == 1:
        a(f"s_lshl_b32 s44, s{S_LOC}, 1")
        a(f"s_add_u32 s44, s44, s{s_lc}")
        a("s_and_b32 s44, s44, 7")
    elif mode == 2:
        a(f"s_lshl_b32 s44, s{S_LOC}, 1")
        a("s_and_b32 s44, s44, 7")
    else:
        a("s_mov_b32 s44, 0")
    a(f"s_lshl_b32 s{s_xoff}, s44, 7")
    a("s_lshl_b32 s44, s44, 1")
    a(f"s_and_b32 s45, s{s_w}, 1")
    a("s_add_u32 s44, s44, s45")
    a("s_lshl_b32 s44, s44, 5")
    a(f"s_mul_i32 s{s_woff}, s44, {pitch}")

def ffn_srd(a, s_w, s_u):
    a(f"s_cmp_lt_u32 s{s_w}, 2")
    a("s_cselect_b32 s46, s12, s14")
    a("s_cselect_b32 s47, s13, s15")
    a(f"s_lshl_b32 s44, s{s_u}, 5")
    a(f"s_add_u32 s{SB}, s46, s44")
    a(f"s_addc_u32 s{SB+1}, s47, 0")
    a(f"s_and_b32 s{SB+1}, s{SB+1}, 0xffff")
    a(f"s_sub_u32 s{SB+2}, {512*2752}, s44")
    a(f"s_mov_b32 s{SB+3}, 0x20000")

class LQ:
    def __init__(self): self.q = []
    def push(self, tag): self.q.append(tag)
    def need(self, tag):
        if tag not in self.q: return None
        i = len(self.q) - 1 - self.q[::-1].index(tag)
        n = len(self.q) - 1 - i
        self.q = self.q[i+1:]
        return n

def a_waves(a, st):
    R = Regs(4)
    vt = R.alloc(); vt2 = R.alloc(); vt3 = R.alloc(); vt4 = R.alloc()
    kaddr = R.alloc(); vaddr = R.alloc(); vcnt = R.alloc(); vstep = R.alloc(); vmask = R.alloc()
    vx0 = R.alloc(); vx1 = R.alloc(); vw = R.alloc()
    GG = R.alloc(4)
    vr8, vc8, vxu = GG, GG+1, GG+2
    Q = [R.alloc(4), R.alloc(4)]; KR = R.alloc(4); V0 = R.alloc(4); V1 = R.alloc(4)
    P = R.alloc(4); S = [R.alloc(16), R.alloc(16)]
    IDX = R.alloc(); vkp = R.alloc()
    O = [R.alloc(16), R.alloc(16)]; C = [R.alloc(16), R.alloc(16)]
    s_head, s_T, s_c, s_kg, s_vg, s_ld, s_tgt = 48, 49, 50, 51, 52, 53, 54
    s_q0, s_q1, s_slot, s_step, s_tok = 55, 56, 57, 58, 59
    a(f"s_cmp_ge_u32 s{S_WAVE}, 4")
    a("s_cbranch_scc1 L_help0")
    s_rb, s_lc, s_um, s_ue = 48, 49, 50, 51
    s_xoff, s_woff, s_lslot, s_cnt, s_lx, s_lw, s_pitch, s_xslot, s_xu, s_lxu = 52, 53, 54, 55, 56, 57, 58, 59, 60, 61
    JUNK = S[0]
    a(f"s_cmp_ge_u32 s{S_LOC}, 24")
    a("s_cbranch_scc1 L_pf")
    tile_ids(a, s_rb, s_lc)
    dma_lanes(a, vr8, vc8, vx0, vx1, vt2, s_rb, S_WAVE)
    dma_lds(a, s_lx, s_lw, S_WAVE)
    a(f"s_mov_b32 s{s_lslot}, {TS0+TSTR}")
    a(f"s_mov_b32 s{s_cnt}, 0")
    start_stage(a, o.stag1, s_lc, S_WAVE, s_xoff, s_woff, 3072)
    if o.rot:
        a(f"s_mov_b32 s63, s{s_woff}")
        a(f"s_add_u32 s62, s{S_LOC}, s{s_lc}")
        a(f"s_and_b32 s62, s62, {o.rot}")
        a(f"s_lshl_b32 s{s_xoff}, s62, 7")
        a(f"s_mul_i32 s44, s62, {64*3072}")
        a(f"s_add_u32 s{s_woff}, s44, s63")
    a(f"v_mul_u32_u24 v{vw}, 3072, v{vr8}")
    a(f"s_lshr_b32 s44, s{S_XCD}, 2")
    a("s_mul_i32 s44, s44, 6")
    a(f"s_add_u32 s44, s44, s{s_lc}")
    a("s_lshl_b32 s44, s44, 1")
    a("s_add_u32 s44, s44, s46")
    a("s_lshl_b32 s44, s44, 7")
    a(f"v_add3_u32 v{vw}, v{vw}, v{vc8}, s44")
    a("s_waitcnt lgkmcnt(0)")
    srd(a, SA, 4, 5, 2048*1024)
    srd(a, SB, 6, 7, 512*3072)
    a.label("L_ld0")
    a(f"s_add_u32 m0, s{s_lslot}, s{s_lx}")
    a(f"s_add_u32 s44, s{s_xoff}, 16384")
    for j in range(4):
        a(f"buffer_load_dwordx4 v{vx1 if j & 1 else vx0}, s[{SA}:{SA+3}], s{s_xoff if j < 2 else 44} offen lds")
        if j < 3: a("s_add_u32 m0, m0, 1024")
        else: a(f"s_add_u32 m0, s{s_lslot}, s{s_lw}")
        a([f"s_add_u32 s{s_cnt}, s{s_cnt}, 1", f"s_mov_b32 s45, s{s_woff}", f"s_add_u32 s{s_xoff}, s{s_xoff}, 128", "s_nop 0"][j])
    for j in range(4):
        a(f"buffer_load_dwordx4 v{vw}, s[{SB}:{SB+3}], s45 offen lds")
        if j < 3:
            a("s_add_u32 m0, m0, 1024")
            a(f"s_add_u32 s45, s45, {8*3072}")
    if o.rot:
        a(f"s_xor_b32 s44, s{s_cnt}, s62")
        a(f"s_cmp_lt_u32 s{s_cnt}, {o.rot+1}")
        a(f"s_cselect_b32 s44, s44, s{s_cnt}")
        a(f"s_lshl_b32 s{s_xoff}, s44, 7")
        a(f"s_mul_i32 s44, s44, {64*3072}")
        a(f"s_add_u32 s{s_woff}, s44, s63")
    else:
        a(f"s_add_u32 s{s_woff}, s{s_woff}, {64*3072}")
        a(f"s_and_b32 s{s_xoff}, s{s_xoff}, 1023")
        a(f"s_cselect_b32 s46, 0, {512*3072}")
        a(f"s_sub_u32 s{s_woff}, s{s_woff}, s46")
    a(f"s_add_u32 s{s_lslot}, s{s_lslot}, {TSTR}")
    a(f"s_cmp_eq_u32 s{s_lslot}, {TS0+3*TSTR}")
    a(f"s_cselect_b32 s{s_lslot}, {TS0}, s{s_lslot}")
    a(f"s_cmp_lt_u32 s{s_cnt}, 2")
    a("s_cbranch_scc1 L_ld0")
    a(f"s_cmp_eq_u32 s{s_cnt}, 8")
    a("s_cbranch_scc1 L_ld_end")
    a("s_waitcnt vmcnt(8)")
    a("s_barrier")
    a("s_branch L_ld0")
    a.label("L_pf")
    a(f"v_lshrrev_b32 v{vt}, 3, v0")
    a(f"v_and_b32 v{vt2}, 7, v0")
    a(f"v_lshlrev_b32 v{vt2}, 4, v{vt2}")
    a(f"v_lshl_add_u32 v{vx0}, v{vt}, 10, v{vt2}")
    a(f"v_mov_b32 v{vt3}, 1024")
    a(f"v_mov_b32 v{vt4}, 2560")
    a("v_cmp_gt_u32 vcc, 32, v0")
    a(f"s_sub_u32 s46, s{S_LOC}, 24")
    a("s_lshl_b32 s46, s46, 2")
    a(f"s_add_u32 s46, s46, s{S_WAVE}")
    a(f"v_cndmask_b32 v{vt3}, v{vt4}, v{vt3}, vcc")
    a(f"v_add_u32 v{vx1}, v{vt3}, v{V_L16}")
    a(f"s_and_b32 s44, s{S_XCD}, 3")
    a("s_lshl_b32 s44, s44, 5")
    a("s_add_u32 s44, s44, s46")
    a(f"s_lshl_b32 s{s_xoff}, s44, 14")
    a(f"s_add_u32 s{s_xoff}, s{s_xoff}, {128*o.pf0}")
    a(f"s_lshr_b32 s44, s{S_XCD}, 2")
    a("s_mul_i32 s44, s44, 1536")
    a(f"s_mul_i32 s{s_woff}, s46, {2*3072}")
    a(f"s_add_u32 s{s_woff}, s{s_woff}, s44")
    a(f"s_add_u32 s{s_woff}, s{s_woff}, {64*3072*o.pf0}")
    a(f"s_mov_b32 s{s_cnt}, {o.pf0}")
    a("s_waitcnt lgkmcnt(0)")
    srd(a, SA, 4, 5, 2048*1024)
    srd(a, SB, 6, 7, 512*3072)
    a(f"s_cmp_eq_u32 s{S_LOC}, 31")
    a("s_cbranch_scc0 L_pf1")
    a("s_sleep 4")
    a.label("L_pf1")
    a(f"s_add_u32 s44, s{s_xoff}, 8192")
    a(f"buffer_load_dwordx4 {v(JUNK,4)}, v{vx0}, s[{SA}:{SA+3}], s{s_xoff} offen")
    a(f"buffer_load_dwordx4 {v(JUNK,4)}, v{vx0}, s[{SA}:{SA+3}], s44 offen")
    a(f"buffer_load_dwordx4 {v(JUNK,4)}, v{V_L16}, s[{SB}:{SB+3}], s{s_woff} offen")
    a(f"buffer_load_dwordx4 {v(JUNK,4)}, v{vx1}, s[{SB}:{SB+3}], s{s_woff} offen")
    a(f"buffer_load_dwordx4 {v(JUNK,4)}, v{V_L16}, s[{SB}:{SB+3}], s{s_woff} offen offset:3584")
    a(f"s_add_u32 s{s_xoff}, s{s_xoff}, 128")
    a(f"s_add_u32 s{s_woff}, s{s_woff}, {64*3072}")
    a(f"s_add_u32 s{s_cnt}, s{s_cnt}, 1")
    a(f"s_cmp_lt_u32 s{s_cnt}, 8")
    a("s_cbranch_scc1 L_pf1")
    if o.pfup:
        if not o.pf31:
            a(f"s_cmp_eq_u32 s{S_LOC}, 31")
            a("s_cbranch_scc1 L_pf3")
        srd(a, SB, 12, 13, 512*2752)
        srd(a, SC, 14, 15, 512*2752)
        quad_start(a, 44)
        a("s_lshl_b32 s44, s44, 5")
        a(f"s_mul_i32 s{s_woff}, s46, 2752")
        a(f"s_add_u32 s{s_woff}, s{s_woff}, s44")
        a(f"s_and_b32 s44, s{S_XCD}, 3")
        a("s_xor_b32 s44, s44, 1")
        a("s_lshl_b32 s44, s44, 5")
        a("s_add_u32 s44, s44, s46")
        a(f"s_lshl_b32 s{s_xoff}, s44, 14")
        a(f"s_mov_b32 s{s_cnt}, 0")
        a.label("L_pf2")
        a("s_mov_b32 exec_hi, 0x3ffff")
        a(f"buffer_load_dwordx4 {v(JUNK,4)}, v{V_L16}, s[{SB}:{SB+3}], s{s_woff} offen")
        a(f"buffer_load_dwordx4 {v(JUNK,4)}, v{V_L16}, s[{SC}:{SC+3}], s{s_woff} offen")
        a("s_mov_b32 exec_hi, -1")
        a(f"buffer_load_dwordx4 {v(JUNK,4)}, v{vx0}, s[{SA}:{SA+3}], s{s_xoff} offen")
        a(f"s_add_u32 s{s_woff}, s{s_woff}, {32*2752}")
        a(f"s_add_u32 s{s_cnt}, s{s_cnt}, 1")
        a(f"s_bitcmp1_b32 s{s_cnt}, 0")
        a(f"s_mov_b32 s44, {(128-8192) & 0xffffffff}")
        a("s_cselect_b32 s44, 8192, s44")
        a(f"s_add_u32 s{s_xoff}, s{s_xoff}, s44")
        a(f"s_cmp_lt_u32 s{s_cnt}, {o.pfup}")
        a("s_cbranch_scc1 L_pf2")
    a.label("L_pf3")
    for i in range(6): a("s_barrier")
    a.label("L_ld_end")
    srd(a, SWS, 24, 25, WS_BYTES)
    a("s_waitcnt vmcnt(8)")
    a("s_barrier")
    a("s_waitcnt vmcnt(0)")
    a("s_branch L_b7")

    a.label("L_help0")
    GT = S[0]
    a(f"v_lshl_add_u32 v{vt2}, v0, 2, v{V_MISC}")
    a(f"v_mov_b32 v{vt}, 0")
    a(f"ds_write_b32 v{vt2}, v{vt}")
    a("s_lshl_b32 s46, s2, 3")
    a(f"s_lshl_b32 s45, s{S_WAVE}, 1")
    a("s_add_u32 s46, s46, s45")
    a(f"s_sub_u32 s{s_tok}, s46, 8")
    a(f"s_lshl_b32 s44, s{s_tok}, 10")
    a("s_waitcnt lgkmcnt(0)")
    srd(a, SA, 4, 5, 2048*1024)
    srd(a, SB, 18, 19, 1024)
    srd(a, SWS, 24, 25, WS_BYTES)
    srd(a, SC, 22, 23, 256)
    a(f"s_cmp_eq_u32 s{S_WAVE}, 4")
    a("s_cbranch_scc0 L_help2")
    a(f"s_cmp_eq_u32 s{S_LOC}, 31")
    a("s_cbranch_scc0 L_help2")
    a("s_setprio 3")
    a(f"s_add_u32 s46, s24, {W0}")
    a("s_addc_u32 s47, s25, 0")
    a("s_load_dword s45, s[46:47], 0 glc")
    for i in range(4): a(f"v_mov_b32 v{GT+i}, 0")
    a(f"s_lshl_b32 s46, s{S_XCD}, 12")
    a(f"s_add_u32 s46, s46, {CNT}")
    for i in range(4):
        a(f"buffer_store_dwordx4 {v(GT,4)}, v{V_L16}, s[{SWS}:{SWS+3}], s46 offen offset:{i*1024} sc1")
    a("s_waitcnt lgkmcnt(0)")
    a("s_mul_i32 s45, s45, 0x19660d")
    a("s_add_u32 s45, s45, 0x3c6ef35f")
    a("s_max_u32 s45, s45, 1")
    a(f"v_mov_b32 v{vt3}, s45")
    a(f"s_lshl_b32 s46, s{S_XCD}, 2")
    a("s_waitcnt vmcnt(0)")
    a("s_mov_b64 exec, 1")
    a(f"buffer_store_dword v{vt3}, off, s[{SC}:{SC+3}], s46 sc1")
    a("s_mov_b64 exec, -1")
    a("s_setprio 0")
    if st.en:
        a("s_memrealtime s[96:97]"); a("s_waitcnt lgkmcnt(0)"); a("s_sub_u32 s95, s96, s70")
    a.label("L_help2")
    a(f"buffer_load_dwordx4 {v(GT,4)}, v{V_L16}, s[{SB}:{SB+3}], 0 offen")
    a(f"buffer_load_dwordx4 {v(GT+4,4)}, v{V_L16}, s[{SA}:{SA+3}], s44 offen")
    a(f"buffer_load_dwordx4 {v(GT+8,4)}, v{V_L16}, s[{SA}:{SA+3}], s44 offen offset:1024")
    a.label("L_help3")
    if o.ctouch:
        a(f"s_cmp_eq_u32 s{S_WAVE}, 5")
        a("s_cbranch_scc0 L_help4")
        a("s_getpc_b64 s[46:47]")
        a.label("L_pc")
        a(f"s_sub_u32 s46, s46, L_pc-{KN}")
        a("s_subb_u32 s47, s47, 0")
        a(f"s_lshl_b32 s44, s{S_LOC}, 9")
        a(f"s_min_u32 s44, s44, L_code_end-{KN}-512")
        a("s_add_u32 s46, s46, s44")
        a("s_addc_u32 s47, s47, 0")
        for i in range(8):
            a(f"s_load_dword s44, s[46:47], {64*i}")
        a("s_waitcnt lgkmcnt(0)")
    a.label("L_help4")
    a("s_barrier")
    st.stamp(2)
    a("s_barrier")
    a("s_waitcnt vmcnt(0)")
    for r in range(2):
        a(f"v_mov_b32 v{vt3+r}, 0")
    for i in range(4):
        for r in range(2):
            a(f"v_dot2c_f32_bf16 v{vt3+r}, v{GT+4+4*r+i}, v{GT+i}")
    a("s_nop 2")
    for dpp in ["row_shr:1", "row_shr:2", "row_shr:4", "row_shr:8", "row_bcast:15 row_mask:0xa", "row_bcast:31 row_mask:0xc"]:
        a("s_nop 0")
        for r in range(2):
            a(f"v_add_f32_dpp v{vt3+r}, v{vt3+r}, v{vt3+r} {dpp}")
    a("s_barrier")
    for r in range(2): a(f"v_mul_f32 v{vt3+r}, {f32bits(-LOG2E)}, v{vt3+r}")
    for r in range(2): a(f"v_exp_f32 v{vt3+r}, v{vt3+r}")
    a("s_nop 0")
    for r in range(2): a(f"v_add_f32 v{vt3+r}, 1.0, v{vt3+r}")
    for r in range(2): a(f"v_rcp_f32 v{GG+2*r}, v{vt3+r}")
    a(f"v_and_b32 v{vt2}, 7, v0")
    a(f"v_lshlrev_b32 v{vt2}, 2, v{vt2}")
    a("s_barrier")
    a("s_barrier")
    a(f"s_cmp_eq_u32 s{S_WAVE}, 4")
    a("s_cbranch_scc0 L_help5")
    a(f"buffer_load_dword v{vt}, v{vt2}, s[{SC}:{SC+3}], 0 offen sc1")
    a.label("L_help5")
    hv = S[1]
    if o.pre == 1:
        a(f"s_sub_u32 s48, s{S_WAVE}, 4")
        up_dma_setup(a, hv, hv+4, [hv+5, hv+6, hv+7], 48, 49, 50, 51, 60, 61, 62, 63)
    a("s_barrier")
    if o.pre == 1: up_srd(a, 48, 51)
    a("s_barrier")
    a("s_barrier")
    a(f"s_cmp_eq_u32 s{S_WAVE}, 4")
    a("s_cbranch_scc0 L_pre")
    a(f"s_mov_b32 s{S_SPIN}, 0")
    a.label("L_np")
    a("s_waitcnt vmcnt(0)")
    a(f"v_cmp_eq_u32 vcc, 0, v{vt}")
    a(f"s_cmp_gt_u32 s{S_SPIN}, 200000")
    a("s_cbranch_scc1 L_ng")
    a("s_cbranch_vccz L_ng")
    a(f"s_add_u32 s{S_SPIN}, s{S_SPIN}, 1")
    a("s_sleep 4")
    a(f"buffer_load_dword v{vt}, v{vt2}, s[{SC}:{SC+3}], 0 offen sc1")
    a("s_branch L_np")
    a.label("L_ng")
    if st.en: a(f"s_add_u32 s100, s{S_SPIN}, 1")
    a("s_mov_b64 exec, 1")
    a(f"ds_write_b32 v{V_MISC}, v{vt} offset:{L_NONCE}")
    a("s_cmp_eq_u32 s2, 255")
    a("s_cbranch_scc0 L_nw")
    a(f"s_mov_b32 s44, {W0}")
    a(f"buffer_store_dword v{vt}, off, s[{SWS}:{SWS+3}], s44 sc1")
    a.label("L_nw")
    a("s_mov_b64 exec, -1")
    a.label("L_pre")
    if o.pre == 1:
        lds_wait_ge(a, "pre", V_MISC, L_ST, "4", vt3, sleep=1)
        for grp in up_dma_groups(hv+4, [hv+5, hv+6, hv+7], 60, 61, 62, 63):
            for l in grp: a(l)
        a("s_waitcnt vmcnt(0)")
        lds_arrive(a, V_MISC, L_FB)
    a("s_branch L_b7x")
    a.label("L_b7")
    a("s_barrier")
    a.label("L_b7x")
    a("s_sleep 8")
    st.stamp(3)
    a(f"s_lshl_b32 s44, s{S_XCD}, 2")
    a(f"s_and_b32 s45, s{S_LOC}, 3")
    a(f"s_add_u32 s{s_head}, s44, s45")
    a(f"s_lshr_b32 s44, s{S_LOC}, 2")
    a("s_lshl_b32 s44, s44, 3")
    a(f"s_and_b32 s45, s{S_WAVE}, 3")
    a("s_lshl_b32 s45, s45, 1")
    a("s_add_u32 s44, s44, s45")
    a(f"s_lshr_b32 s46, s{S_WAVE}, 2")
    a(f"s_add_u32 s{s_T}, s44, s46")
    a(f"s_lshl_b32 s44, s{s_head}, 16")
    a(f"s_lshl_b32 s{s_ld}, s{S_WAVE}, 10")
    a(f"s_add_u32 s{s_kg}, s44, s{s_ld}")
    a(f"s_add_u32 s{s_vg}, s{s_kg}, {VF}")
    a(f"s_add_u32 s{s_kg}, s{s_kg}, {KF}")
    a(f"s_lshl_b32 s45, s{s_T}, 10")
    a(f"s_add_u32 s{s_q0}, s44, s45")
    a(f"s_xor_b32 s{s_q1}, s{s_q0}, 1024")
    a("s_lshl_b32 s46, s46, 12")
    a(f"v_and_b32 v{vkp}, 51, v0")
    a(f"v_bfe_u32 v{vt3}, v0, 2, 1")
    a(f"v_lshl_or_b32 v{vkp}, v{vt3}, 3, v{vkp}")
    a(f"v_bfe_u32 v{vt3}, v0, 3, 1")
    a(f"v_lshl_or_b32 v{vkp}, v{vt3}, 2, v{vkp}")
    a(f"v_lshlrev_b32 v{vkp}, 4, v{vkp}")
    a(f"v_add_u32 v{kaddr}, s46, v{vkp}")
    a(f"v_mov_b32 v{IDX}, 0xdddddddd")
    a(f"v_and_b32 v{vt3}, 15, v0")
    a(f"v_lshlrev_b32 v{vt3}, 4, v{vt3}")
    a(f"v_lshrrev_b32 v{vt4}, 5, v0")
    a(f"v_lshl_add_u32 v{vt4}, v{vt4}, 8, v{vt3}")
    a("s_add_u32 s46, s46, 8192")
    a(f"v_add_u32 v{vaddr}, s46, v{vt4}")
    a(f"v_and_b32 v{vt4}, 16, v0")
    a(f"v_cmp_ne_u32 vcc, 0, v{vt4}")
    a(f"v_add_u32 v{vt3}, {VCONST}, v{vt3}")
    a(f"v_mov_b32 v{vstep}, 1")
    a("s_nop 0")
    a(f"v_cndmask_b32 v{vaddr}, v{vaddr}, v{vt3}, vcc")
    a(f"v_cndmask_b32 v{vstep}, v{vstep}, 0, vcc")
    a(f"s_lshl_b32 s44, s{S_WAVE}, 9")
    a(f"v_add_u32 v{vcnt}, s44, v{vt3}")
    a(f"v_and_b32 v{vt4}, 27, v0")
    a(f"v_cmp_eq_u32 vcc, 16, v{vt4}")
    a(f"v_mov_b32 v{vt3}, 0x3f803f80")
    a(f"s_mov_b32 s{s_c}, 0")
    a(f"s_mov_b32 s{s_tgt}, 16")
    for i in range(4):
        a(f"v_cndmask_b32 v{V1+i}, 0, v{vt3}, vcc")
    a("s_mov_b32 exec_lo, 0xffff0000")
    a("s_mov_b32 exec_hi, 0")
    a(f"ds_write_b128 v{vcnt}, {v(V1,4)}")
    a("s_mov_b64 exec, -1")
    a(f"v_mov_b32 v{P}, 0")
    a(f"v_mov_b32 v{P+1}, 0")
    for i in range(16): a(f"v_pk_mov_b32 {v(O[0]+2*i,2)}, {v(P,2)}, {v(P,2)}")
    a(f"s_mov_b32 s{s_slot}, 32768")
    a("s_mov_b32 s60, 99")
    a(f"s_cmp_ge_u32 s{S_WAVE}, 4")
    a("s_cbranch_scc0 L_at_nogst")
    lds_wait_ge(a, "gtag", V_MISC, L_NONCE, "1", GG+1, sleep=2)
    a(f"v_mov_b32 v{GG+3}, v{GG+1}")
    a(f"s_mov_b32 s60, 0")
    a.label("L_at_nogst")
    a(f"s_cmp_eq_u32 s{S_WAVE}, 0")
    a("s_cbranch_scc0 L_at_waitgo")
    a(f"s_lshr_b32 s44, s{S_XCD}, 1")
    a("s_lshl_b32 s44, s44, 1")
    a(f"s_bfe_u32 s45, s{S_LOC}, 0x10001")
    a("s_add_u32 s44, s44, s45")
    a("s_lshl_b32 s44, s44, 10")
    a(f"s_add_u32 s44, s44, {CQ}")
    a(f"v_min_u32 v{vw}, 5, v0")
    a(f"v_lshlrev_b32 v{vw}, 7, v{vw}")
    lds_wait_ge(a, "atpost", V_MISC, L_POST, "4", vt)
    a(f"s_cmp_ge_u32 s{S_LOC}, 24")
    a("s_cbranch_scc1 L_at_pp")
    a(f"s_sleep {o.pdelay}")
    a("s_branch L_at_ppd")
    a.label("L_at_pp")
    a(f"s_lshl_b32 s45, s{S_XCD}, 10")
    a(f"s_add_u32 s45, s45, {CQ + 6*128}")
    poll(a, "atp", vt, None, 45, 1, 4, at=1 if o.apoll & 1 else 0)
    if o.ppdelay: a(f"s_sleep {o.ppdelay}")
    a.label("L_at_ppd")
    st.stamp(2)
    poll(a, "atq", vt, vw, 44, 16, o.psleep, at=6 if o.apoll & 1 else 0)
    if st.en: a(f"s_mov_b32 s101, s{S_SPIN}")
    a(f"ds_write_b32 v{V_MISC}, v{V_ONE} offset:{L_GO}")
    a("s_branch L_at_go")
    a.label("L_at_waitgo")
    lds_wait_ge(a, "atgo", V_MISC, L_GO, "1", vt)
    a.label("L_at_go")
    st.stamp(4)
    def dma(lit=None):
        if lit is not None: a(f"s_add_u32 m0, s{s_ld}, {lit}")
        else: a(f"s_add_u32 m0, s{s_ld}, s{s_slot}")
        a("s_nop 0")
        a(f"buffer_load_dwordx4 v{V_L16}, s[{SWS}:{SWS+3}], s{s_kg} offen sc1 lds")
        a("s_add_u32 m0, m0, 8192")
        a(f"s_add_u32 s{s_kg}, s{s_kg}, 8192")
        a(f"buffer_load_dwordx4 v{V_L16}, s[{SWS}:{SWS+3}], s{s_vg} offen sc1 lds")
        a(f"s_add_u32 s{s_vg}, s{s_vg}, 8192")
    a(f"buffer_load_dwordx4 {v(Q[0],4)}, v{V_L16}, s[{SWS}:{SWS+3}], s{s_q0} offen sc1")
    a(f"buffer_load_dwordx4 {v(Q[1],4)}, v{V_L16}, s[{SWS}:{SWS+3}], s{s_q1} offen sc1")
    dma(0)
    a("s_waitcnt vmcnt(0) lgkmcnt(0)")
    lds_arrive(a, V_MISC, L_ATT)
    dma(16384)
    lds_wait_ge(a, "at0", V_MISC, L_ATT, "8", vt, sleep=0)
    st.stamp(5)
    a(f"ds_read_b128 {v(V0,4)}, v{V_L16}")
    a(f"ds_read_b128 {v(KR,4)}, v{kaddr}")
    a("s_waitcnt lgkmcnt(1)")
    for q in range(2):
        a(f"{MF} {v(S[q],16)}, {v(V0,4)}, {v(Q[q],4)}, 0")
    a(f"ds_read_b128 {v(V0,4)}, v{vaddr}")
    a("s_nop 9")
    def maxtree(dst, src, first):
        if first:
            a(f"v_max3_f32 v{dst}, v{src}, v{src+1}, v{src+2}")
            rest = list(range(3, 16))
        else:
            rest = list(range(0, 16))
        while len(rest) >= 2:
            a(f"v_max3_f32 v{dst}, v{dst}, v{src+rest[0]}, v{src+rest[1]}")
            rest = rest[2:]
        if rest:
            a(f"v_max_f32 v{dst}, v{dst}, v{src+rest[0]}")
    def setC(q):
        a(f"v_mov_b32 v{vt2}, v{vt}")
        a("s_nop 1")
        a(f"v_permlane32_swap_b32 v{vt}, v{vt2}")
        a("s_nop 1")
        a(f"v_max_f32 v{vt}, v{vt}, v{vt2}")
        a(f"v_sub_f32 v{C[q]}, 0, v{vt}")
        a(f"v_sub_f32 v{C[q]+1}, 0, v{vt}")
        for i in range(1, 8):
            a(f"v_pk_mov_b32 {v(C[q]+2*i,2)}, {v(C[q],2)}, {v(C[q],2)}")
    maxtree(vt, S[0], True)
    setC(0)
    a("s_waitcnt lgkmcnt(0)")
    a("s_nop 0")
    maxtree(vt, S[1], True)
    a(f"{MF} {v(S[0],16)}, {v(KR,4)}, {v(Q[0],4)}, {v(C[0],16)}")
    setC(1)
    for i in range(4):
        a(f"v_pk_mov_b32 {v(S[1]+8+2*i,2)}, {v(P,2)}, {v(P,2)}")
    def e(cur, i): a(f"v_exp_f32 v{cur+i}, v{cur+i}")
    c0, c1, c2 = [int(x) for x in o.cuts.split(",")]
    def body(emit, lq):
        def A(s):
            if emit: a(s)
        def w(tag):
            n = lq.need(tag)
            if n is not None: A(f"s_waitcnt lgkmcnt({n})")
        def E(cur, lo, hi):
            if emit:
                for i in range(lo, hi): e(cur, i)
        def rdv(reg, off, tag):
            A(f"ds_read_b128 {v(reg,4)}, v{vaddr} offset:{off}")
            lq.push(tag)
        for tt in range(4):
            for q in range(2):
                cur = S[q]; nxt = S[q ^ 1]
                stp = 2*tt + q
                if o.aprio >= 3 and stp in (0, o.aprio+1):
                    lab = a.newlabel("pr") if emit else ""
                    A(f"s_cmp_ge_u32 s{S_WAVE}, 4")
                    A(f"s_cbranch_scc1 {lab}")
                    A(f"s_setprio {1 if stp == 0 else 0}")
                    if emit: a.label(lab)
                E(cur, 0, c0)
                if q == 1: w("K")
                A(f"{SM} {v(O[q^1],16)}, {v(V1,4)}, {v(nxt+8,8)}, v{IDX}")
                if q == 0:
                    rdv(V1, tt*1024 + 512, "V1")
                if stp == o.xat:
                    if emit: st.abeg()
                    A("s_waitcnt vmcnt(0)")
                    if emit: st.aend(0)
                    A("s_mov_b64 exec, 1")
                    A(f"ds_add_u32 v{V_MISC}, v{V_ONE} offset:{L_ATT}")
                    A("s_mov_b64 exec, -1")
                    lq.push("X")
                if stp == o.yat - 1:
                    A(f"ds_read_b32 v{vcnt}, v{V_MISC} offset:{L_ATT}")
                    lq.push("CNT")
                E(cur, c0, c1)
                A(f"{MF} {v(nxt,16)}, {v(KR,4)}, {v(Q[q^1],4)}, {v(C[q^1],16)}")
                if q == 0:
                    if tt == 3:
                        A(f"v_add_u32 v{kaddr}, s{s_step}, v{kaddr}")
                        A(f"ds_read_b128 {v(KR,4)}, v{kaddr}")
                    else:
                        A(f"ds_read_b128 {v(KR,4)}, v{kaddr} offset:{(tt+1)*1024}")
                    lq.push("K")
                E(cur, c1, c2)
                if q == 0: w("V0")
                A(f"{SM} {v(O[q],16)}, {v(V0,4)}, {v(cur,8)}, v{IDX}")
                if q == 1:
                    if tt == 3:
                        A(f"v_mad_i32_i24 v{vaddr}, v{vstep}, s{s_step}, v{vaddr}")
                        rdv(V0, 0, "V0")
                    else:
                        rdv(V0, (tt+1)*1024, "V0")
                if stp == o.yat:
                    w("CNT")
                    A(f"v_cmp_gt_u32 vcc, s{s_tgt}, v{vcnt}")
                    A(f"s_cmp_lt_u32 s{s_c}, 6")
                    A("s_cbranch_vccnz L_at_slow")
                    if emit:
                        a.label("L_at_back")
                        a("s_cbranch_scc0 L_at_dmadone")
                        st.abeg()
                        dma()
                        st.aend(2)
                        a(f"s_add_u32 s{s_slot}, s{s_slot}, 16384")
                        a(f"s_cmp_eq_u32 s{s_slot}, 49152")
                        a(f"s_cselect_b32 s{s_slot}, 0, s{s_slot}")
                        a(f"s_cmp_eq_u32 s{s_c}, s60")
                        a("s_cbranch_scc1 L_at_gst")
                        a.label("L_at_dmadone")
                E(cur, c2, 16)
    lq = LQ()
    body(False, lq)
    steady = list(lq.q)
    if o.aprio:
        a(f"s_cmp_lt_u32 s{S_WAVE}, 4")
        a("s_cbranch_scc1 L_at_np")
        a("s_setprio 1")
        a.label("L_at_np")
    st.stamp(8)
    a(".p2align 6")
    a.label("L_at_loop")
    assert o.xat < o.yat - 1 and o.yat <= 5
    a(f"s_bitcmp1_b32 0x24, s{s_c}")
    a(f"s_mov_b32 s44, {(-32768) & 0xffffffff}")
    a(f"s_cselect_b32 s{s_step}, s44, 16384")
    body(True, lq)
    assert lq.q == steady, (lq.q, steady)
    a(f"s_add_u32 s{s_c}, s{s_c}, 1")
    a(f"s_add_u32 s{s_tgt}, s{s_tgt}, 8")
    a(f"s_cmp_lt_u32 s{s_c}, 8")
    a("s_cbranch_scc1 L_at_loop")
    st.stamp(9)
    a(f"{SM} {v(O[1],16)}, {v(V1,4)}, {v(S[1]+8,8)}, v{IDX}")
    a(f"s_and_b32 s44, s{S_WAVE}, 3")
    a("s_lshl_b32 s44, s44, 12")
    a(f"s_lshr_b32 s45, s{S_WAVE}, 2")
    a("s_lshl_b32 s45, s45, 15")
    a("s_add_u32 s44, s44, s45")
    a(f"v_add_u32 v{kaddr}, s44, v{V_L16}")
    a(f"v_xor_b32 v{vaddr}, 32768, v{kaddr}")
    a(f"s_and_b32 s44, s{S_WAVE}, 3")
    a(f"v_lshl_add_u32 v{vt3}, s44, 2, v{V_MISC}")
    a(f"s_lshl_b32 s46, s{s_T}, 5")
    a(f"s_add_u32 s46, s46, s{s_head}")
    a("s_lshl_b32 s46, s46, 10")
    a(f"s_add_u32 s{s_q0}, s46, {OF}")
    a(f"s_lshl_b32 s44, s{s_T}, 1")
    a(f"s_lshr_b32 s45, s{s_head}, 4")
    a("s_add_u32 s44, s44, s45")
    a("s_lshl_b32 s44, s44, 7")
    a(f"s_add_u32 s{s_q1}, s44, {CO}")
    for i in range(3):
        a(f"ds_write_b128 v{kaddr}, {v(O[1]+4*i,4)} offset:{i*1024}")
    a("s_waitcnt lgkmcnt(0)")
    lds_arrive(a, vt3, L_PAIR)
    a(f"s_mov_b32 s{S_SPIN}, 0")
    a.label("L_at_pair")
    a(f"ds_read_b32 v{vt}, v{vt3} offset:{L_PAIR}")
    for i in range(3):
        a(f"ds_read_b128 {v(O[1]+4*i,4)}, v{vaddr} offset:{i*1024}")
    a(f"s_add_u32 s{S_SPIN}, s{S_SPIN}, 1")
    a("s_waitcnt lgkmcnt(0)")
    a(f"v_cmp_gt_u32 vcc, 2, v{vt}")
    a(f"s_cmp_gt_u32 s{S_SPIN}, 2000000")
    a("s_cbranch_scc1 L_at_pok")
    a("s_cbranch_vccz L_at_pok")
    a("s_sleep 1")
    a("s_branch L_at_pair")
    a.label("L_at_pok")
    a(f"v_add_f32 v{O[0]+8}, v{O[0]+8}, v{O[1]+8}")
    for i in range(4):
        a(f"v_pk_add_f32 {v(O[0]+2*i,2)}, {v(O[0]+2*i,2)}, {v(O[1]+2*i,2)}")
    a(f"v_mov_b32 v{vt}, {f32bits(2.0**30)}")
    a(f"v_cmp_nle_f32 vcc, v{O[0]+8}, v{vt}")
    a(f"v_pk_mul_f32 {v(S[0],2)}, {v(O[0],2)}, 0")
    for i in range(1, 4):
        a(f"v_pk_fma_f32 {v(S[0],2)}, {v(O[0]+2*i,2)}, 0, {v(S[0],2)}")
    a(f"v_cmp_u_f32 s[44:45], v{S[0]}, v{S[0]+1}")
    a(f"v_rcp_f32 v{vt}, v{O[0]+8}")
    a("s_nop 2")
    a("s_or_b64 vcc, vcc, s[44:45]")
    a("s_cbranch_vccnz L_at_fallback")
    a.label("L_at_fin")
    for i in range(4):
        a(f"v_pk_mul_f32 {v(O[0]+2*i,2)}, {v(O[0]+2*i,2)}, {v(vt,2)} op_sel_hi:[1,0]")
    for i in range(4):
        a(f"v_cvt_pk_bf16_f32 v{P+i}, v{O[0]+2*i}, v{O[0]+2*i+1}")
    a(f"buffer_store_dwordx4 {v(P,4)}, v{V_L16}, s[{SWS}:{SWS+3}], s{s_q0} offen sc1")
    st.stamp(10)
    if o.done:
        a(f"ds_read_b32 v{vt2}, v{V_MISC} offset:{L_NONCE}")
        a(f"v_mov_b32 v{vt}, 1")
        a(f"s_add_u32 s44, s{s_q1}, {DONE}")
        a("s_waitcnt vmcnt(0)")
        a("s_mov_b64 exec, 1")
        a(f"buffer_atomic_add v{vt}, off, s[{SWS}:{SWS+3}], s{s_q1} sc0 sc1")
        a("s_waitcnt vmcnt(0) lgkmcnt(0)")
        a(f"v_cmp_eq_u32 vcc, 15, v{vt}")
        a("s_cbranch_vccz L_at_notlast")
        a(f"buffer_store_dword v{vt2}, off, s[{SWS}:{SWS+3}], s44 sc1")
        a.label("L_at_notlast")
        a("s_mov_b64 exec, -1")
    else:
        post(a, s_q1)
    st.stamp(11)
    if st.en and not getattr(o, "noffn", 0):
        st.stamp(6); st.real(7)
        for i in range(2 if o.early else 3): a("s_barrier")
        a("s_sleep 40")
        st.flush(SWS, S_WAVE, 4)
        a("s_endpgm")
    finish(a, st)
    a.label("L_at_gst")
    a(f"s_lshl_b32 s44, s{s_tok}, 3")
    a(f"s_add_u32 s44, s44, {GA}")
    a("s_mov_b32 exec_lo, 0")
    a("s_brev_b32 exec_hi, 1")
    a(f"buffer_store_dwordx4 {v(GG,4)}, off, s[{SWS}:{SWS+3}], s44 sc1")
    a("s_mov_b64 exec, -1")
    a("s_branch L_at_dmadone")
    a.label("L_at_slow")
    st.abeg()
    lds_wait_ge(a, "ats", V_MISC, L_ATT, f"s{s_tgt}", vcnt)
    st.aend(1)
    a(f"s_cmp_lt_u32 s{s_c}, 6")
    a("s_branch L_at_back")
    def fallback():
        a.label("L_at_fallback")
        a(f"s_lshl_b32 s46, s{s_head}, 16")
        a(f"s_add_u32 s{s_kg}, s46, {KF}")
        a(f"v_mov_b32 v{vt}, 0xff800000")
        a(f"s_mov_b32 s{s_c}, 0")
        a.label("L_at_fb1")
        a(f"buffer_load_dwordx4 {v(KR,4)}, v{V_L16}, s[{SWS}:{SWS+3}], s{s_kg} offen sc1")
        a(f"s_add_u32 s{s_kg}, s{s_kg}, 1024")
        a("s_waitcnt vmcnt(0)")
        a(f"{MF} {v(S[0],16)}, {v(KR,4)}, {v(Q[0],4)}, 0")
        a("s_nop 15")
        maxtree(vt, S[0], False)
        a(f"s_add_u32 s{s_c}, s{s_c}, 1")
        a(f"s_cmp_lt_u32 s{s_c}, 64")
        a("s_cbranch_scc1 L_at_fb1")
        setC(0)
        for i in range(16):
            a(f"v_mov_b32 v{O[0]+i}, 0")
        a(f"v_and_b32 v{vt}, 15, v0")
        a(f"v_lshlrev_b32 v{vt}, 4, v{vt}")
        a(f"v_lshrrev_b32 v{vt2}, 5, v0")
        a(f"v_lshl_add_u32 v{vaddr}, v{vt2}, 8, v{vt}")
        a(f"s_add_u32 s{s_kg}, s46, {KF}")
        a(f"s_add_u32 s{s_vg}, s46, {VF}")
        a(f"s_mov_b32 s{s_c}, 0")
        a("s_mov_b32 s44, 0xffff")
        a("s_mov_b32 s45, 0xffff")
        a.label("L_at_fb2")
        a(f"buffer_load_dwordx4 {v(KR,4)}, v{vkp}, s[{SWS}:{SWS+3}], s{s_kg} offen sc1")
        a("s_mov_b64 exec, s[44:45]")
        a(f"buffer_load_dwordx4 {v(V0,4)}, v{vaddr}, s[{SWS}:{SWS+3}], s{s_vg} offen sc1")
        a(f"buffer_load_dwordx4 {v(V1,4)}, v{vaddr}, s[{SWS}:{SWS+3}], s{s_vg} offen offset:512 sc1")
        a("s_mov_b64 exec, -1")
        a(f"s_add_u32 s{s_kg}, s{s_kg}, 1024")
        a(f"s_add_u32 s{s_vg}, s{s_vg}, 1024")
        a("s_waitcnt vmcnt(0)")
        a(f"{MF} {v(S[0],16)}, {v(KR,4)}, {v(Q[0],4)}, {v(C[0],16)}")
        a("s_nop 15")
        for i in range(16): e(S[0], i)
        a("s_nop 2")
        a(f"{SM} {v(O[0],16)}, {v(V0,4)}, {v(S[0],8)}, v{IDX}")
        a(f"{SM} {v(O[0],16)}, {v(V1,4)}, {v(S[0]+8,8)}, v{IDX}")
        a("s_nop 15")
        a(f"s_add_u32 s{s_c}, s{s_c}, 1")
        a(f"s_cmp_lt_u32 s{s_c}, 64")
        a("s_cbranch_scc1 L_at_fb2")
        a(f"v_rcp_f32 v{vt}, v{O[0]+8}")
        a("s_branch L_at_fin")
    return R.hi, fallback

def fbar(a, vt):
    tag = a.newlabel("fb")[2:]
    a(f"s_add_u32 s{S_FBT}, s{S_FBT}, 4")
    lds_arrive(a, V_MISC, L_FB)
    lds_wait_ge(a, tag, V_MISC, L_FB, f"s{S_FBT}", vt, sleep=2)

def f_waves(a, st):
    t0 = 4
    vx, vw, uxaddr, uwaddr = 8, [9, 10, 11], [16, 17, 18, 19], 12
    vsrc, wa = 14, 15
    s_fw, s_rb, s_lc, s_stage, s_cb, s_T2, s_N2, s_lb = 48, 49, 50, 53, 54, 60, 61, 62
    s_urb, s_cg, s_u0, s_skip, s_dx, s_dw = 51, 52, 55, 56, 57, 58
    s_lx, s_lw, s_xoff, s_woff = 63, 64, 65, 66
    hi = []
    R = Regs(20)
    xaddr = [R.alloc() for _ in range(4)]; waddr = R.alloc()
    XF = [[R.alloc(4) for _ in range(2)] for _ in range(2)]
    WF = [[R.alloc(4) for _ in range(2)] for _ in range(2)]
    ACC = [[R.alloc(16) for _ in range(2)] for _ in range(2)]
    TMP = R.alloc(16)
    hi.append(R.hi)
    a(f"s_sub_u32 s{s_fw}, s{S_WAVE}, 8")
    a(f"s_mov_b32 s{S_FBT}, 0")
    tile_ids(a, s_rb, s_lc)
    a(f"s_lshr_b32 s44, s{S_XCD}, 2")
    a("s_mul_i32 s44, s44, 6")
    a(f"s_add_u32 s{s_cb}, s44, s{s_lc}")
    a(f"s_and_b32 s44, s{s_fw}, 1")
    a(f"s_lshr_b32 s46, s{s_fw}, 1")
    a(f"v_and_b32 v{t0}, 31, v0")
    a(f"v_lshrrev_b32 v{t0+1}, 5, v0")
    a(f"v_bfe_u32 v{t0+2}, v{t0}, 1, 3")
    a(f"v_xor_b32 v{t0+2}, v{t0+2}, v{t0+1}")
    a(f"v_lshlrev_b32 v{t0+2}, 4, v{t0+2}")
    a(f"v_lshl_add_u32 v{t0}, v{t0}, 7, v{t0+2}")
    a("s_lshl_b32 s45, s44, 13")
    a(f"s_add_u32 s45, s45, {TS0+TSTR}")
    a(f"s_sub_u32 s47, s45, {TS0+TSTR-UX[0]}")
    for kk in range(4):
        a(f"v_xor_b32 v{t0+3}, {kk*32}, v{t0}")
        a(f"v_add_u32 v{xaddr[kk]}, s45, v{t0+3}")
        a(f"v_add_u32 v{uxaddr[kk]}, s47, v{t0+3}")
    a(f"v_bfe_u32 v{t0}, v0, 2, 2")
    a(f"v_bfe_u32 v{t0+2}, v0, 4, 1")
    a(f"v_and_b32 v{t0+3}, 3, v0")
    a(f"v_lshlrev_b32 v{t0+3}, 3, v{t0+3}")
    a(f"v_lshl_add_u32 v{uwaddr}, v{t0+1}, 3, v{t0}")
    a(f"v_lshl_add_u32 v{waddr}, v{uwaddr}, 7, v{t0+3}")
    a(f"v_mul_u32_u24 v{uwaddr}, 192, v{uwaddr}")
    a(f"v_mul_u32_u24 v{vsrc}, {WIMG}, v{t0+2}")
    a(f"v_add3_u32 v{uwaddr}, v{uwaddr}, v{vsrc}, v{t0+3}")
    a(f"v_add_u32 v{uwaddr}, {UW[0]}, v{uwaddr}")
    a(f"v_lshlrev_b32 v{wa}, 5, v{t0}")
    a(f"v_and_b32 v{wa}, 64, v{wa}")
    a("s_lshl_b32 s45, s46, 6")
    a(f"v_xor_b32 v{wa}, s45, v{wa}")
    a(f"v_mul_u32_u24 v{vsrc}, {TU-TG}, v{t0+2}")
    a(f"v_add3_u32 v{waddr}, v{waddr}, v{vsrc}, v{wa}")
    a(f"v_add_u32 v{waddr}, {TS0+TSTR+TG}, v{waddr}")
    a(f"v_lshl_add_u32 v{t0+3}, v{t0+2}, 5, v{t0+3}")
    a(f"v_lshl_add_u32 v{t0}, v{t0+1}, 2, v{t0}")
    a(f"v_lshl_add_u32 v{t0+3}, v{t0}, 7, v{t0+3}")
    a(f"v_add_u32 v{wa}, v{wa}, v{t0+3}")
    a(f"s_lshl_b32 s{s_lb}, s{s_fw}, 14")
    a(f"s_add_u32 s{s_lb}, s{s_lb}, {STG}")
    a(f"s_lshl_b32 s44, s{S_XCD}, 2")
    a(f"s_and_b32 s45, s{S_LOC}, 3")
    a(f"s_add_u32 s{s_T2}, s44, s45")
    a(f"s_lshr_b32 s{s_N2}, s{S_LOC}, 2")
    a(f"v_lshrrev_b32 v{t0}, 3, v0")
    a(f"v_and_b32 v{t0+1}, 7, v0")
    a(f"v_lshlrev_b32 v{t0+3}, 1, v{t0}")
    a(f"v_and_b32 v{t0+3}, 4, v{t0+3}")
    a(f"v_xor_b32 v{t0+3}, v{t0+1}, v{t0+3}")
    a(f"v_lshlrev_b32 v{t0+3}, 4, v{t0+3}")
    a(f"v_lshl_add_u32 v{t0+3}, v{t0}, 10, v{t0+3}")
    a(f"s_lshl_b32 s44, s{s_N2}, 7")
    a(f"v_add_u32 v{vsrc}, s44, v{t0+3}")
    def zero(r, n):
        a(f"v_mov_b32 v{r}, 0")
        a(f"v_mov_b32 v{r+1}, 0")
        for i in range(1, n//2): a(f"v_pk_mov_b32 {v(r+2*i,2)}, {v(r,2)}, {v(r,2)}")
    up_dma_setup(a, t0, vx, vw, s_fw, s_urb, s_cg, s_u0, s_lx, s_lw, s_xoff, s_woff)
    uw2 = 13
    a(f"s_lshr_b32 s46, s{s_fw}, 1")
    a(f"s_cmp_eq_u32 s{s_cg}, 4")
    a("s_cselect_b32 s44, 2, 3")
    a("s_mul_i32 s44, s44, s46")
    a("s_lshl_b32 s47, 1, s46")
    a(f"s_cmp_eq_u32 s{s_cg}, 5")
    a(f"s_cselect_b32 s{s_skip}, s47, 0")
    a(f"s_cmp_eq_u32 s{s_cg}, 6")
    a(f"s_cselect_b32 s{s_skip}, 3, s{s_skip}")
    a("s_cselect_b32 s45, s44, 0")
    a("s_add_u32 s45, s45, 2")
    a("s_lshl_b32 s47, s45, 5")
    a(f"v_add_u32 v{uw2}, s47, v{uwaddr}")
    a("s_lshl_b32 s47, s44, 5")
    a(f"v_add_u32 v{uwaddr}, s47, v{uwaddr}")
    a("s_lshl_b32 s45, s45, 8")
    a(f"s_add_u32 s{s_cg}, s45, s44")
    a(f"s_mov_b32 s{s_dx}, {UX[1]-UX[0]}")
    a(f"s_add_u32 s{s_dw}, s{s_lw}, {3*UWS}")
    zero(ACC[0][0], 64)
    a(f"s_mov_b32 s{s_stage}, 0")
    a("s_waitcnt lgkmcnt(0)")
    srd(a, SWS, 24, 25, WS_BYTES)
    up_srd(a, s_fw, s_u0)
    a(f"s_cmp_lt_u32 s{S_LOC}, 24")
    a("s_cbranch_scc1 L_E_work")
    for i in range(8): a("s_barrier")
    a("s_branch L_E_done")
    a.label("L_E_work")
    def rx(kk, buf, t): a(f"ds_read_b128 {v(XF[buf][t],4)}, v{xaddr[kk]} offset:{t*4096}")
    def rw(kk, buf, u, h): a(f"ds_read_b64_tr_b16 {v(WF[buf][u]+2*h,2)}, v{waddr} offset:{kk*2048+u*32+h*512}")
    a("s_barrier")
    st.stamp(2)
    if st.en: a("s_waitcnt lgkmcnt(0)")
    rx(0, 0, 0); rw(0, 0, 0, 0); rw(0, 0, 0, 1); rx(0, 0, 1); rw(0, 0, 1, 0); rw(0, 0, 1, 1)
    a(f"s_cmp_ge_u32 s{s_cb}, 8")
    a("s_cbranch_scc1 L_E_loopV")
    def loop(tag):
        def mm(buf, u, t):
            A_, B_ = (XF[buf][t], WF[buf][u]) if tag == "V" else (WF[buf][u], XF[buf][t])
            a(f"{MF} {v(ACC[u][t],16)}, {v(A_,4)}, {v(B_,4)}, {v(ACC[u][t],16)}")
        a.label(f"L_E_loop{tag}")
        for kk in range(3):
            b = kk & 1; n = b ^ 1
            a("s_waitcnt lgkmcnt(3)")
            mm(b, 0, 0)
            rx(kk+1, n, 0); rw(kk+1, n, 0, 0)
            a("s_waitcnt lgkmcnt(4)")
            mm(b, 0, 1)
            rw(kk+1, n, 0, 1); rx(kk+1, n, 1)
            a("s_waitcnt lgkmcnt(4)")
            mm(b, 1, 0)
            rw(kk+1, n, 1, 0); rw(kk+1, n, 1, 1)
            mm(b, 1, 1)
            if kk == 2:
                a(f"s_add_u32 s{s_stage}, s{s_stage}, 1")
                a(f"s_lshr_b32 s44, 0x24, s{s_stage}")
                a("s_bitcmp1_b32 s44, 0")
                a(f"s_mov_b32 s45, {(-2*TSTR) & 0xffffffff}")
                a(f"s_cselect_b32 s44, s45, {TSTR}")
        a("s_waitcnt lgkmcnt(3)")
        mm(1, 0, 0)
        for r in xaddr + [waddr]:
            a(f"v_add_u32 v{r}, s44, v{r}")
        a(f"s_cmp_eq_u32 s{s_stage}, 8")
        a("s_waitcnt lgkmcnt(0)")
        mm(1, 0, 1)
        a(f"s_cbranch_scc1 L_E_tail{tag}")
        a("s_barrier")
        rx(0, 0, 0); rw(0, 0, 0, 0); rw(0, 0, 0, 1)
        mm(1, 1, 0)
        rx(0, 0, 1); rw(0, 0, 1, 0); rw(0, 0, 1, 1)
        mm(1, 1, 1)
        a(f"s_branch L_E_loop{tag}")
        a.label(f"L_E_tail{tag}")
        mm(1, 1, 0)
        mm(1, 1, 1)
    loop("T")
    a(f"v_mov_b32 v{t0}, v{V_L16}")
    a(f"s_mov_b32 s47, {4*65536}")
    a("s_branch L_E_epiQ")
    loop("V")
    a(f"v_and_b32 v{t0}, 15, v0")
    a(f"v_lshlrev_b32 v{t0}, 4, v{t0}")
    a(f"v_lshrrev_b32 v{t0+1}, 5, v0")
    a(f"v_lshl_add_u32 v{t0}, v{t0+1}, 8, v{t0}")
    a(f"v_bfe_u32 v{t0+1}, v0, 4, 1")
    a(f"v_lshl_add_u32 v{t0}, v{t0+1}, 18, v{t0}")
    a("s_mov_b32 s47, 512")
    a.label("L_E_epiQ")
    st.stamp(3)
    a(f"s_lshl_b32 s44, s{s_cb}, 19")
    a(f"s_lshr_b32 s45, s{s_fw}, 1")
    a("s_lshl_b32 s45, s45, 17")
    a("s_add_u32 s44, s44, s45")
    a(f"s_lshl_b32 s45, s{s_rb}, 12")
    a("s_add_u32 s44, s44, s45")
    a(f"s_and_b32 s45, s{s_fw}, 1")
    a("s_lshl_b32 s45, s45, 11")
    a("s_add_u32 s44, s44, s45")
    a("s_add_u32 s45, s44, s47")
    a(f"s_cmp_lt_u32 s{s_cb}, 4")
    a("s_cbranch_scc0 L_E_noscale")
    a(f"s_mov_b32 s46, {f32bits(QSCALE)}")
    a("s_mov_b32 s47, s46")
    for i in range(32):
        a(f"v_pk_mul_f32 {v(ACC[0][0]+2*i,2)}, {v(ACC[0][0]+2*i,2)}, s[46:47]")
    a.label("L_E_noscale")
    n = 0
    for u in range(2):
        for t in range(2):
            for half in range(2):
                tm = TMP + 4*(n & 3); n += 1
                src = ACC[u][t] + 8*half
                for i in range(4):
                    a(f"v_cvt_pk_bf16_f32 v{tm+i}, v{src+2*i}, v{src+2*i+1}")
                a(f"buffer_store_dwordx4 {v(tm,4)}, v{t0}, s[{SWS}:{SWS+3}], s{44+half} offen offset:{t*1024} sc1")
        if u == 0:
            a("s_add_u32 s44, s44, 65536")
            a("s_add_u32 s45, s45, 65536")
    if o.pre == 1: lds_arrive(a, V_MISC, L_ST)
    a(f"s_and_b32 s44, s{s_cb}, 3")
    a("s_lshl_b32 s44, s44, 1")
    a(f"s_lshr_b32 s45, s{s_fw}, 1")
    a("s_add_u32 s44, s44, s45")
    a("s_lshl_b32 s44, s44, 3")
    a(f"s_lshr_b32 s45, s{s_cb}, 2")
    a("s_lshl_b32 s45, s45, 1")
    a("s_add_u32 s44, s44, s45")
    a(f"s_and_b32 s45, s{s_fw}, 1")
    a("s_add_u32 s44, s44, s45")
    a("s_lshl_b32 s44, s44, 7")
    a(f"s_add_u32 s44, s44, {CQ}")
    lds_wait_ge(a, "tg1", V_MISC, L_NONCE, "1", t0+1)
    post(a, 44)
    a(f"s_add_u32 s44, s{S_LOC}, s{s_fw}")
    a("s_cmp_eq_u32 s44, 0")
    a("s_cbranch_scc0 L_E_done2")
    a(f"s_lshl_b32 s44, s{S_XCD}, 10")
    a(f"s_add_u32 s44, s44, {CQ + 6*128}")
    a("s_mov_b64 exec, 1")
    a(f"buffer_atomic_add v{V_ONE}, off, s[{SWS}:{SWS+3}], s44 sc1")
    a("s_mov_b64 exec, -1")
    a("s_branch L_E_done2")
    a.label("L_E_done")
    if o.pre == 1: lds_arrive(a, V_MISC, L_ST)
    lds_wait_ge(a, "tg2", V_MISC, L_NONCE, "1", t0+1)
    a.label("L_E_done2")
    lds_arrive(a, V_MISC, L_POST)
    st.stamp(4)
    if o.noffn: finish(a, st)
    R = Regs(20)
    XF = [[R.alloc(4) for _ in range(2)] for _ in range(2)]
    WF = [R.alloc(4) for _ in range(3)]
    UACC = [[R.alloc(16) for _ in range(2)] for _ in range(3)]
    hi.append(R.hi)
    def up_groups():
        g = up_dma_groups(vx, vw, s_lx, s_lw, s_xoff, s_woff)
        g[3] += [f"s_add_u32 s{s_xoff}, s{s_xoff}, 128",
                 f"s_and_b32 s{s_xoff}, s{s_xoff}, 1023",
                 f"s_add_u32 s{s_lx}, s{s_lx}, s{s_dx}",
                 f"s_sub_u32 s{s_dx}, 0, s{s_dx}"]
        g[9] += [f"s_add_u32 s{s_woff}, s{s_woff}, {64*2752}",
                 f"s_cmp_eq_u32 s{s_woff}, {512*2752}",
                 f"s_cselect_b32 s{s_woff}, 0, s{s_woff}",
                 f"s_add_u32 s{s_lw}, s{s_lw}, {UWS}",
                 f"s_cmp_eq_u32 s{s_lw}, s{s_dw}",
                 f"s_cselect_b32 s44, {3*UWS}, 0",
                 f"s_sub_u32 s{s_lw}, s{s_lw}, s44"]
        return g
    zero(UACC[0][0], 96)
    a(f"s_setprio {o.fprio}")
    if o.upat == 9: lds_wait_ge(a, "upgo", V_MISC, L_POST, "4", t0, sleep=2)
    if o.upat == 10: lds_wait_ge(a, "upgo", V_MISC, L_ATT, "8", t0, sleep=4)
    if o.upat == 12: lds_wait_ge(a, "upgo", V_MISC, L_GO, "1", t0, sleep=2)
    if o.udelay: a(f"s_sleep {o.udelay}")
    if o.pre == 3:
        for grp in up_groups() + up_groups():
            for l in grp: a(l)
    elif o.pre:
        g = up_groups()
        if o.pre == 1:
            for l in g[3][3:] + g[9][3:]: a(l)
            a(f"s_mov_b32 s{S_FBT}, 4")
        else:
            for grp in g:
                for l in grp: a(l)
        for grp in g:
            for l in grp: a(l)
        a(f"s_mov_b32 s96, s{SB+2}")
        a(f"s_mov_b32 s97, s{s_lx}")
        a(f"s_mov_b32 s98, s{s_lw}")
        a(f"s_mov_b32 s{SA+2}, 0")
        a(f"s_mov_b32 s{SB+2}, 0")
        a(f"s_mov_b32 s{s_lx}, {LDS_TOTAL}")
        a(f"s_mov_b32 s{s_lw}, {LDS_TOTAL}")
    else:
        for grp in up_groups() + up_groups()[4:]:
            for l in grp: a(l)
    a(f"s_mov_b32 s{s_stage}, 0")
    a(f"s_mov_b32 s{s_rb}, {UX[1]-UX[0]}")
    a(f"s_mov_b32 s{s_lc}, {UWS}")
    def rd_x(kk, buf):
        for t in range(2):
            a(f"ds_read_b128 {v(XF[buf][t],4)}, v{uxaddr[kk]} offset:{t*4096}")
    def rd_w(kk, u):
        off = kk*16*192 + (u*32 if u < 2 else 0)
        ad = uwaddr if u < 2 else uw2
        a(f"ds_read_b64_tr_b16 {v(WF[u],2)}, v{ad} offset:{off}")
        a(f"ds_read_b64_tr_b16 {v(WF[u]+2,2)}, v{ad} offset:{off+4*192}")
    def nops(n):
        if n > 0: a(f"s_nop {n-1}")
    cnt = [0, o.mprio]
    def umm(u, buf, fill=None, after=3):
        for t in range(2):
            a(f"{MF} {v(UACC[u][t],16)}, {v(WF[u],4)}, {v(XF[buf][t],4)}, {v(UACC[u][t],16)}")
            if o.hp:
                want = 2 if (fill and cnt[0] < o.hp) else o.mprio
                if want != cnt[1]: a(f"s_setprio {want}"); cnt[1] = want
                cnt[0] += 1
            if fill:
                for _ in range(o.dper):
                    if fill:
                        for l in fill.pop(0): a(l)
            else:
                nops(o.fpace - (after if t == 1 else 0))
    st.abeg()
    if o.pre != 1: a(f"s_waitcnt vmcnt({10 if o.pre else 6})")
    fbar(a, t0)
    st.aend(2)
    rd_x(0, 0)
    for u in range(3): rd_w(0, u)
    if o.upause == -1: lds_wait_ge(a, "upp0", V_MISC, L_ATT, "8", t0, sleep=4)
    a(f"s_setprio {o.mprio}")
    def umm_skip(u, buf):
        for t in range(2):
            lab = a.newlabel("upskip")
            a(f"s_bitcmp1_b32 s{s_skip}, {t}")
            a(f"s_cbranch_scc0 {lab}")
            a(f"{MF} {v(UACC[u][t],16)}, {v(WF[u],4)}, {v(XF[buf][t],4)}, {v(UACC[u][t],16)}")
            a.label(lab)
        if o.hp and cnt[1] != o.mprio:
            a(f"s_setprio {o.mprio}"); cnt[1] = o.mprio
    if o.pre == 3:
        a.label("L_ub_loop")
        for kk in range(4):
            buf = kk & 1
            for u in range(3):
                younger = (2-u)*2 + (0 if (u == 0 or kk == 3) else 2 + 2*u)
                a(f"s_waitcnt lgkmcnt({younger})")
                if u == 2: umm_skip(u, buf)
                else: umm(u, buf)
                if kk < 3:
                    if u == 0: rd_x(kk+1, buf ^ 1)
                    rd_w(kk+1, u)
        for r in uxaddr:
            a(f"v_add_u32 v{r}, s{s_rb}, v{r}")
        a(f"v_add_u32 v{uwaddr}, s{s_lc}, v{uwaddr}")
        a(f"v_add_u32 v{uw2}, s{s_lc}, v{uw2}")
        a(f"s_sub_u32 s{s_rb}, 0, s{s_rb}")
        a(f"s_add_u32 s{s_stage}, s{s_stage}, 1")
        a(f"s_setprio {o.fprio}")
        a(f"s_cmp_eq_u32 s{s_stage}, 2")
        a("s_cbranch_scc0 L_ub_n1")
        lds_wait_ge(a, "upb2", V_MISC, L_ATT, "8", t0, sleep=2)
        for grp in up_groups() + up_groups()[4:]:
            for l in grp: a(l)
        a("s_waitcnt vmcnt(6)")
        a(f"s_mov_b32 s{s_lc}, {(-2*UWS) & 0xffffffff}")
        a("s_branch L_ub_n2")
        a.label("L_ub_n1")
        a("s_waitcnt vmcnt(0)")
        a.label("L_ub_n2")
        fbar(a, t0)
        a(f"s_setprio {o.mprio}")
        rd_x(0, 0)
        for u in range(3): rd_w(0, u)
        a(f"s_cmp_eq_u32 s{s_stage}, 1")
        a("s_cbranch_scc1 L_ub_loop")
    if o.upwarm:
        srd(a, SC, 16, 17, 1376*1024 if (o.w0 == 0 or (o.pre == 3 and o.w0 == 2)) else 0)
        a(f"s_lshl_b32 s44, s{S_LOC}, 2")
        a(f"s_add_u32 s44, s44, s{s_fw}")
        a("s_lshl_b32 s54, s44, 10")
        a("s_mov_b32 s59, s54")
    a.label("L_up_loop")
    groups = up_groups()
    if o.upwarm:
        wl = [f"buffer_load_dwordx4 v[160:163], v{V_L16}, s[{SC}:{SC+3}], s59 offen", "s_add_u32 s59, s59, 131072"]
        groups.append(wl * (o.upwarm // 2)); groups.append(wl * (o.upwarm - o.upwarm // 2))
    for kk in range(3):
        buf = kk & 1
        for u in range(3):
            younger = (2-u)*2 + (0 if u == 0 else 2 + 2*u)
            a(f"s_waitcnt lgkmcnt({younger})")
            if u == 2: umm_skip(u, buf)
            else: umm(u, buf, groups, 5 if u == 0 else 3)
            if u == 0: rd_x(kk+1, buf ^ 1)
            rd_w(kk+1, u)
    assert not groups
    a("s_waitcnt lgkmcnt(4)")
    umm(0, 1)
    a(f"s_cmp_eq_u32 s{s_stage}, 7")
    a("s_cbranch_scc1 L_up_last")
    st.abeg()
    a(f"s_waitcnt vmcnt({6 + o.upwarm}) lgkmcnt(0)")
    st.aend(0)
    a(f"s_add_u32 s{S_FBT}, s{S_FBT}, 4")
    lds_arrive(a, V_MISC, L_FB)
    umm(1, 1)
    a(f"s_setprio {o.fprio}")
    for r in uxaddr:
        a(f"v_add_u32 v{r}, s{s_rb}, v{r}")
    a(f"v_add_u32 v{uwaddr}, s{s_lc}, v{uwaddr}")
    a(f"v_add_u32 v{uw2}, s{s_lc}, v{uw2}")
    st.abeg()
    lds_wait_ge(a, "upb", V_MISC, L_FB, f"s{S_FBT}", t0, sleep=1)
    if o.pre in (1, 2):
        a(f"s_cmp_eq_u32 s{s_stage}, 1")
        a("s_cbranch_scc0 L_up_n1")
        lds_wait_ge(a, "upb2", V_MISC, L_ATT, "8", t0, sleep=2)
        a(f"s_mov_b32 s{SA+2}, {2048*1024}")
        a(f"s_mov_b32 s{SB+2}, s96")
        a(f"s_mov_b32 s{s_lx}, s97")
        a(f"s_mov_b32 s{s_lw}, s98")
        a(f"s_movk_i32 s{s_xoff}, 256")
        a(f"s_mov_b32 s{s_woff}, {2*64*2752}")
        for grp in up_groups() + up_groups()[4:]:
            for l in grp: a(l)
        a("s_waitcnt vmcnt(6)")
        fbar(a, t0)
        a.label("L_up_n1")
    st.aend(1)
    a(f"s_setprio {o.mprio}")
    rd_x(0, 0)
    rd_w(0, 0); rd_w(0, 1)
    umm_skip(2, 1)
    rd_w(0, 2)
    a(f"s_sub_u32 s{s_rb}, 0, s{s_rb}")
    a(f"s_add_u32 s{s_stage}, s{s_stage}, 1")
    a(f"s_bitcmp1_b32 0x24, s{s_stage}")
    a(f"s_mov_b32 s44, {(-2*UWS) & 0xffffffff}")
    a(f"s_cselect_b32 s{s_lc}, s44, {UWS}")
    a(f"s_cmp_eq_u32 s{s_stage}, 7")
    a(f"s_cselect_b32 s{SA+2}, 0, s{SA+2}")
    a(f"s_cmp_eq_u32 s{s_stage}, 6")
    a(f"s_cselect_b32 s{SB+2}, 0, s{SB+2}")
    if o.upwarm:
        w1 = o.w0 + (11 + o.upwarm - 1) // o.upwarm
        if o.w0:
            a(f"s_cmp_eq_u32 s{s_stage}, {o.w0}")
            a(f"s_cselect_b32 s{SC+2}, {1376*1024}, s{SC+2}")
            a("s_cselect_b32 s59, s54, s59")
        a(f"s_and_b32 s44, s9, 0xffff")
        a(f"s_cmp_eq_u32 s{s_stage}, {w1}")
        a(f"s_cselect_b32 s{SC}, s8, s{SC}")
        a(f"s_cselect_b32 s{SC+1}, s44, s{SC+1}")
        a(f"s_cselect_b32 s{SC+2}, {512*1024}, s{SC+2}")
        a("s_cselect_b32 s59, s54, s59")
    if o.upause > 0:
        a(f"s_cmp_eq_u32 s{s_stage}, {o.upause}")
        a("s_cbranch_scc0 L_up_loop")
        a(f"s_setprio {o.fprio}")
        lds_wait_ge(a, "upp", V_MISC, L_ATT, "8", t0, sleep=4)
        a(f"s_setprio {o.mprio}")
    a("s_branch L_up_loop")
    a.label("L_up_last")
    a("s_waitcnt lgkmcnt(0)")
    umm(1, 1)
    umm_skip(2, 1)
    a(f"s_setprio {o.fprio}")
    st.stamp(5)
    a(f"s_lshl_b32 s44, s{s_urb}, 2")
    a(f"s_and_b32 s45, s{s_fw}, 1")
    a("s_lshl_b32 s45, s45, 1")
    a("s_add_u32 s44, s44, s45")
    a("s_mul_i32 s44, s44, 86")
    a(f"s_add_u32 s44, s44, s{s_u0}")
    a(f"s_and_b32 s45, s{s_cg}, 255")
    a("s_add_u32 s44, s44, s45")
    a("s_lshl_b32 s44, s44, 10")
    a(f"s_add_u32 s44, s44, {HF}")
    a(f"s_lshr_b32 s46, s{s_cg}, 8")
    a(f"s_sub_u32 s{s_cg}, s46, s45")
    a(f"s_lshl_b32 s{s_cg}, s{s_cg}, 10")
    a(f"s_add_u32 s45, s44, {86*1024}")
    a(f"s_mov_b32 s46, {f32bits(-LOG2E)}")
    a("s_mov_b32 s47, s46")
    for u in range(3):
        if u == 2:
            a(f"s_add_u32 s44, s44, s{s_cg}")
            a(f"s_add_u32 s45, s45, s{s_cg}")
        for t in range(2):
            if u == 2:
                a(f"s_bitcmp1_b32 s{s_skip}, {t}")
                a(f"s_cbranch_scc0 {'L_up_e1' if t == 0 else 'L_up_done'}")
            g = UACC[u][t]; up = g + 8
            tm = XF[u & 1][t]
            for i in range(4): a(f"v_pk_mul_f32 {v(g+2*i,2)}, {v(g+2*i,2)}, s[46:47]")
            for i in range(8): a(f"v_exp_f32 v{g+i}, v{g+i}")
            for i in range(4): a(f"v_pk_add_f32 {v(g+2*i,2)}, {v(g+2*i,2)}, 1.0 op_sel_hi:[1,0]")
            for i in range(8): a(f"v_rcp_f32 v{g+i}, v{g+i}")
            for i in range(4): a(f"v_pk_mul_f32 {v(g+2*i,2)}, {v(g+2*i,2)}, {v(up+2*i,2)}")
            for i in range(4): a(f"v_cvt_pk_bf16_f32 v{tm+i}, v{g+2*i}, v{g+2*i+1}")
            a(f"buffer_store_dwordx4 {v(tm,4)}, v{V_L16}, s[{SWS}:{SWS+3}], s{44+t} offen offset:{(u&1)*1024} sc1")
            if u == 2 and t == 0: a.label("L_up_e1")
    a.label("L_up_done")
    a(f"s_lshl_b32 s44, s{s_urb}, 2")
    a(f"s_add_u32 s44, s44, s{s_fw}")
    a("s_lshl_b32 s44, s44, 7")
    a(f"s_add_u32 s44, s44, {CH}")
    post(a, 44)
    st.stamp(8)
    s_h0, s_h1, s_w, s_i, s_T, s_nt, s_idx, s_dl = 49, 50, 51, 52, 53, 54, 55, 56
    R = Regs(16)
    ACC = [R.alloc(16) for _ in range(4)]
    HFR = [[R.alloc(4) for _ in range(2)] for _ in range(8)]
    WF = [[R.alloc(4) for _ in range(2)] for _ in range(2)]
    G = 8; VOUT = 10; da = [11, 12]; db = [R.alloc(), R.alloc()]
    hi.append(R.hi)
    fbar(a, t0)
    a(f"ds_read_b32 v{t0+3}, v{V_MISC} offset:{L_NONCE}")
    if not o.gapw:
        srd(a, SA, 8, 9, 512*1024)
        a(f"s_lshl_b32 s{s_w}, s{s_fw}, 17")
        a(f"s_mov_b32 m0, s{s_lb}")
        a(f"s_mov_b32 s{s_i}, 14")
        a.label("L_wo_ld")
        a(f"buffer_load_dwordx4 v{vsrc}, s[{SA}:{SA+3}], s{s_w} offen lds")
        a("s_add_u32 m0, m0, 1024")
        a(f"s_add_u32 s{s_w}, s{s_w}, 8192")
        a(f"s_sub_u32 s{s_i}, s{s_i}, 1")
        a(f"s_cmp_lg_u32 s{s_i}, 0")
        a("s_cbranch_scc1 L_wo_ld")
        srd(a, SA, 16, 17, 1376*1024)
    else:
        srd(a, SA, 16, 17, 1376*1024)
        srd(a, SC, 8, 9, 512*1024)
        if o.gapw == 1:
            a(f"s_and_b32 s44, s{S_LOC}, 3")
            a("s_lshl_b32 s44, s44, 2")
            a(f"s_add_u32 s44, s44, s{s_fw}")
            a("s_lshl_b32 s45, s44, 15")
            a(f"s_mul_i32 s44, s44, {86*1024}")
            a(f"s_mov_b32 s{s_i}, {o.nwd}")
            a.label("L_wd_warm")
            a(f"buffer_load_dwordx4 {v(HFR[7][0],4)}, v{vsrc}, s[{SA}:{SA+3}], s44 offen")
            a("s_add_u32 s44, s44, 8192")
            a(f"s_sub_u32 s{s_i}, s{s_i}, 1")
            a(f"s_cmp_lg_u32 s{s_i}, 0")
            a("s_cbranch_scc1 L_wd_warm")
            for i in range(4):
                a(f"buffer_load_dwordx4 {v(HFR[7][0],4)}, v{vsrc}, s[{SC}:{SC+3}], s45 offen")
                a("s_add_u32 s45, s45, 8192")
        elif o.gapw == 2:
            a(f"s_lshl_b32 s44, s{S_LOC}, 2")
            a(f"s_add_u32 s44, s44, s{s_fw}")
            a("s_lshl_b32 s44, s44, 10")
            a("s_mov_b32 s45, s44")
            for i in range(o.nwd):
                a(f"buffer_load_dwordx4 {v(HFR[7][0],4)}, v{V_L16}, s[{SA}:{SA+3}], s44 offen")
                a("s_add_u32 s44, s44, 131072")
            for i in range(o.nwo):
                a(f"buffer_load_dwordx4 {v(HFR[7][0],4)}, v{V_L16}, s[{SC}:{SC+3}], s45 offen")
                a("s_add_u32 s45, s45, 131072")
        a(f"s_mov_b32 s59, {(-2*1024) & 0xffffffff}")
        a(f"s_lshl_b32 s63, s{s_fw}, 17")
    a(f"s_mul_i32 s{s_dl}, s{s_fw}, 6144")
    a(f"s_add_u32 s{s_dl}, s{s_dl}, {DRING}")
    a(f"v_add_u32 v{da[0]}, s{s_dl}, v{wa}")
    a(f"v_xor_b32 v{da[1]}, 64, v{da[0]}")
    a(f"v_add_u32 v{db[0]}, s{s_lb}, v{wa}")
    a(f"v_xor_b32 v{db[1]}, 64, v{db[0]}")
    a(f"s_lshl_b32 s{s_w}, s{s_fw}, 14")
    a(f"s_lshl_b32 s44, s{s_T2}, 1")
    a(f"s_and_b32 s45, s{s_fw}, 1")
    a(f"s_add_u32 s{s_T}, s44, s45")
    a(f"s_xor_b32 s47, s{s_T}, 1")
    for d, sx in ((s_h0, s_T), (s_h1, 47)):
        a(f"s_mul_i32 s{d}, s{sx}, 86")
        a(f"s_add_u32 s{d}, s{d}, s{s_fw}")
        a(f"s_lshl_b32 s{d}, s{d}, 10")
        a(f"s_add_u32 s{d}, s{d}, {HF}")
    a(f"s_lshl_b32 s44, s{s_N2}, 1")
    a(f"s_lshr_b32 s45, s{s_fw}, 1")
    a(f"s_add_u32 s{s_nt}, s44, s45")
    a(f"v_and_b32 v{t0}, 31, v0")
    a(f"v_lshrrev_b32 v{t0+1}, 5, v0")
    a(f"v_lshlrev_b32 v{t0+1}, 4, v{t0+1}")
    a(f"v_lshl_add_u32 v{VOUT}, v{t0}, 10, v{t0+1}")
    a("s_waitcnt lgkmcnt(0)")
    a(f"v_readfirstlane_b32 s{S_NONCE}, v{t0+3}")
    a(f"v_lshlrev_b32 v{t0+1}, 3, v{t0}")
    a(f"s_lshl_b32 s44, s{s_T}, 8")
    a(f"s_add_u32 s44, s44, {GA}")
    a(f"s_mov_b32 s{S_SPIN}, 0")
    a.label("L_g_poll")
    a(f"buffer_load_dwordx2 {v(G,2)}, v{t0+1}, s[{SWS}:{SWS+3}], s44 offen sc1")
    a(f"s_add_u32 s{S_SPIN}, s{S_SPIN}, 1")
    a("s_waitcnt vmcnt(0)")
    a(f"v_cmp_ne_u32 vcc, s{S_NONCE}, v{G+1}")
    a(f"s_cmp_gt_u32 s{S_SPIN}, 200000")
    a("s_cbranch_scc1 L_g_got")
    a("s_cbranch_vccz L_g_got")
    a("s_sleep 8")
    a("s_branch L_g_poll")
    a.label("L_g_got")
    a(f"v_sub_f32 v{G+1}, 1.0, v{G}")
    a(f"s_cmp_eq_u32 s{s_fw}, 0")
    a("s_cbranch_scc0 L_dn_nopoll")
    a(f"s_lshr_b32 s44, s{s_T2}, 1")
    a("s_lshl_b32 s44, s44, 2")
    a(f"s_and_b32 s45, s{s_T2}, 1")
    a("s_add_u32 s44, s44, s45")
    a("s_lshl_b32 s44, s44, 7")
    a(f"s_add_u32 s44, s44, {CH}")
    a(f"v_and_b32 v{t0+2}, 1, v0")
    a(f"v_lshlrev_b32 v{t0+2}, 8, v{t0+2}")
    poll(a, "dn", t0+1, t0+2, 44, 16, 8, at=2 if o.apoll & 2 else 0)
    a.label("L_dn_nopoll")
    fbar(a, t0+1)
    st.stamp(9)
    s_wend, s_hend = 57, 58
    s_o, s_out, s_co = 49, 50, 51
    def ldw(g):
        m = f"s_add_u32 m0, s{s_dl}, {(g%4)*2048}" if g % 4 < 3 else f"s_add_u32 m0, s{s_lb}, {7*2048}"
        p0 = [m, f"s_add_u32 s44, s{s_w}, 8192", f"buffer_load_dwordx4 v{vsrc}, s[{SA}:{SA+3}], s{s_w} offen lds"]
        p1 = ["s_add_u32 m0, m0, 1024", f"s_add_u32 s{s_w}, s{s_w}, 65536", f"buffer_load_dwordx4 v{vsrc}, s[{SA}:{SA+3}], s44 offen lds"]
        if o.stagD: p1 += [f"s_cmp_eq_u32 s{s_w}, s{s_wend}", f"s_cselect_b32 s{s_w}, s46, s{s_w}"]
        return [p0, p1]
    def ldh(g):
        p0 = [f"s_add_u32 s45, s{s_h0}, s{s_h1}", f"buffer_load_dwordx4 {v(HFR[g%4][0],4)}, v{V_L16}, s[{SWS}:{SWS+3}], s{s_h0} offen sc1"]
        p1 = [f"s_add_u32 s{s_h0}, s{s_h0}, 4096", f"buffer_load_dwordx4 {v(HFR[g%4][1],4)}, v{V_L16}, s[{SWS}:{SWS+3}], s45 offen sc1"]
        if o.stagD: p1 += [f"s_cmp_eq_u32 s{s_h0}, s{s_hend}", f"s_cselect_b32 s{s_h0}, s47, s{s_h0}"]
        return [p0, p1]
    def emit(ps):
        for p in ps:
            for l in p: a(l)
    def rdw1(off, buf, ad, n):
        a(f"ds_read_b64_tr_b16 {v(WF[buf][n],2)}, v{ad[n]} offset:{off}")
        a(f"ds_read_b64_tr_b16 {v(WF[buf][n]+2,2)}, v{ad[n]} offset:{off+1024}")
    def rdw(off, buf, ad=da):
        for n in range(2): rdw1(off, buf, ad, n)
    a(f"s_sub_u32 s{s_h1}, s{s_h1}, s{s_h0}")
    a(f"s_mov_b32 s46, s{s_w}")
    a(f"s_mov_b32 s47, s{s_h0}")
    a(f"s_add_u32 s{s_wend}, s46, {21*65536}")
    a(f"s_add_u32 s{s_hend}, s47, {21*4096}")
    if o.stagD:
        a(f"s_and_b32 s44, s{S_LOC}, 3")
        a("s_mul_i32 s44, s44, 5")
        a(f"s_mul_i32 s45, s{s_N2}, 21")
        a("s_lshr_b32 s45, s45, 3")
        a("s_add_u32 s44, s44, s45")
        a("s_cmp_ge_u32 s44, 21")
        a("s_cselect_b32 s45, 21, 0")
        a(f"s_sub_u32 s{s_i}, s44, s45")
    else:
        a(f"s_mov_b32 s{s_i}, 0")
    a(f"s_mov_b32 s{s_w}, s{s_wend}")
    a(f"s_cmp_lt_u32 s{s_fw}, 2")
    a(f"s_cselect_b32 s{s_h0}, s{s_hend}, s47")
    emit(ldw(0))
    a(f"s_lshl_b32 s44, s{s_i}, 16")
    a(f"s_add_u32 s{s_w}, s46, s44")
    emit(ldw(1)); emit(ldh(0))
    a(f"s_lshl_b32 s44, s{s_i}, 12")
    a(f"s_add_u32 s{s_h0}, s47, s44")
    emit(ldw(2)); emit(ldh(1))
    emit(ldw(3)); emit(ldh(2))
    a(f"s_setprio {o.dprio}")
    a("s_waitcnt vmcnt(12)")
    rdw(0, 0)
    def rstep(k):
        b = k & 1
        issued = lambda j: (2 if j + 4 <= 21 else 0) + (2 if j + 3 <= 21 else 0) + (2 if j == 19 else 0) + (1 if (o.gapw and 1 <= j <= 16) else 0)
        a(f"s_waitcnt vmcnt({issued(k-2) + issued(k-1)}) lgkmcnt(0)")
        parts = (ldw(k+4) if k + 4 <= 21 else [[], []]) + (ldh(k+3) if k + 3 <= 21 else [[], []])
        if o.gapw and 1 <= k <= 16:
            parts[3] = parts[3] + ["s_max_i32 s44, s59, 0", f"s_add_u32 m0, s{s_lb}, s44", "s_lshl_b32 s44, s44, 3", "s_add_u32 s44, s44, s63",
                                   f"buffer_load_dwordx4 v{vsrc}, s[{SC}:{SC+3}], s44 offen lds", "s_add_u32 s59, s59, 1024"]
        if k == 19:
            parts = [[f"s_mov_b32 s{SA}, s8", f"s_and_b32 s{SA+1}, s9, 0xffff", f"s_mov_b32 s{SA+2}, {512*1024}",
                      f"s_lshl_b32 s44, s{s_fw}, 17", f"s_add_u32 s44, s44, {14*8192}"],
                     [f"s_add_u32 m0, s{s_lb}, {14*1024}", "s_add_u32 s45, s44, 8192",
                      f"buffer_load_dwordx4 v{vsrc}, s[{SA}:{SA+3}], s44 offen lds"],
                     ["s_add_u32 m0, m0, 1024", "s_nop 0", f"buffer_load_dwordx4 v{vsrc}, s[{SA}:{SA+3}], s45 offen lds"], []]
        if k == 20:
            parts = [[f"s_mov_b32 s{SB}, s20", f"s_and_b32 s{SB+1}, s21, 0xffff", f"s_mov_b32 s{SB+2}, {2048*1024}", f"s_mov_b32 s{SB+3}, 0x20000"],
                     [f"s_lshr_b32 s46, s{s_fw}, 1", f"s_lshl_b32 s44, s{s_T}, 15", "s_lshl_b32 s45, s46, 14", "s_add_u32 s45, s44, s45",
                      f"s_add_u32 s{s_o}, s45, {OF}"],
                     [f"s_lshl_b32 s45, s{s_nt}, 6", f"s_add_u32 s{s_out}, s44, s45", f"s_lshl_b32 s44, s{s_T}, 1", "s_add_u32 s44, s44, s46"],
                     ["s_lshl_b32 s44, s44, 7", f"s_add_u32 s{s_co}, s44, {CO + (DONE if o.done else 0)}"]]
        for n in range(2):
            for t in range(2):
                c = "0" if k == 0 else v(ACC[2*n+t],16)
                a(f"{MF} {v(ACC[2*n+t],16)}, {v(WF[b][n],4)}, {v(HFR[k%4][t],4)}, {c}")
                if n == 0 and k < 21:
                    if (k+1) % 4 < 3: rdw1(((k+1) % 4)*2048, b ^ 1, da, t)
                    else: rdw1(7*2048, b ^ 1, db, t)
                for l in parts[2*n+t]: a(l)
    rstep(0)
    a(f"s_mov_b32 s{s_i}, 4")
    def hold(tag):
        a(f"s_setprio {o.fprio}")
        a(f"v_lshl_add_u32 v{t0+2}, s{s_fw}, 2, v{V_MISC}")
        lds_wait_ge(a, tag, t0+2, L_PAIR, str(o.holdn), t0+1, sleep=4)
    a.label("L_dn_loop")
    if o.hold in (9, 13):
        a(f"s_cmp_eq_u32 s{s_i}, {(17-o.hold)//4}")
        a("s_cbranch_scc0 L_dn_nh")
        hold("hold")
        a.label("L_dn_nh")
    for k in range(1, 5): rstep(k)
    a(f"s_sub_u32 s{s_i}, s{s_i}, 1")
    a(f"s_cmp_lg_u32 s{s_i}, 0")
    a("s_cbranch_scc1 L_dn_loop")
    if o.hold == 17: hold("hold")
    for k in range(17, 22): rstep(k)
    a(f"s_setprio {o.fprio}")
    st.stamp(10)
    if o.early:
        a(f"s_setprio {o.xprio}")
        a(f"v_add_u32 v{t0}, s{s_dl}, v{V_L16}")
        a(f"s_lshl_b32 s44, s{s_fw}, 12")
        a(f"s_add_u32 s44, s44, {UX[0]}")
        a(f"v_add_u32 v{t0+2}, s44, v{V_L16}")
        a(f"s_xor_b32 s44, s{s_fw}, 1")
        a("s_mul_i32 s44, s44, 6144")
        a(f"s_add_u32 s44, s44, {DRING}")
        a("s_lshl_b32 s45, s46, 15")
        a(f"s_add_u32 s45, s45, {STG}")
        a(f"v_add_u32 v{da[0]}, s45, v{wa}")
        a(f"v_xor_b32 v{da[1]}, 64, v{da[0]}")
        for i in range(4):
            a(f"ds_write_b128 v{t0}, {v(ACC[1]+4*i,4)} offset:{i*1024}")
        for i in range(4):
            a(f"ds_write_b128 v{t0+2}, {v(ACC[3]+4*i,4)} offset:{i*1024}")
        a("s_waitcnt vmcnt(0) lgkmcnt(0)")
        a(f"v_add_u32 v{t0}, s44, v{V_L16}")
        a(f"v_xor_b32 v{t0+2}, 4096, v{t0+2}")
        fbar(a, t0+1)
        for i in range(4):
            a(f"ds_read_b128 {v(ACC[1]+4*i,4)}, v{t0} offset:{i*1024}")
        for i in range(4):
            a(f"ds_read_b128 {v(ACC[3]+4*i,4)}, v{t0+2} offset:{i*1024}")
        WF.append([160, 164])
        hi.append(168)
        for n in (1, 0): rdw1(0, 0, da, n)
        BQ = [ACC[0], ACC[2]]
        for n in range(2):
            a(f"s_waitcnt lgkmcnt({4*(1-n)+4})")
            for i in range(8):
                a(f"v_pk_add_f32 {v(BQ[n]+2*i,2)}, {v(BQ[n]+2*i,2)}, {v(ACC[2*n+1]+2*i,2)}")
            for i in range(8):
                a(f"v_pk_mul_f32 {v(BQ[n]+2*i,2)}, {v(BQ[n]+2*i,2)}, {v(G,2)} op_sel:[0,1] op_sel_hi:[1,1]")
        for n in (1, 0): rdw1(2048, 1, da, n)
        a(f"s_lshl_b32 s44, s{s_fw}, 13")
        a(f"v_add_u32 v{t0}, s44, v{V_L16}")
        a(f"v_xor_b32 v{t0+3}, 16384, v{t0}")
        def bsum(): pass
        a(f"s_setprio {o.fprio}")
        if o.early == 2: a("s_barrier")
        if o.tdelay: a(f"s_sleep {o.tdelay}")
        poll(a, "tl", t0+1, None, s_co, 16, o.tsleep, at=1)
    else:
        a("s_waitcnt vmcnt(0)")
        a("s_barrier")
        if o.tdelay: a(f"s_sleep {o.tdelay}")
        if o.apoll & 4: a("s_mov_b64 exec, 1")
        poll_ld(a, t0+1, None, s_co, o.apoll & 4)
        if o.apoll & 4: a("s_mov_b64 exec, -1")
        a("s_lshl_b32 s44, s46, 15")
        a(f"s_add_u32 s44, s44, {STG}")
        a(f"v_add_u32 v{da[0]}, s44, v{wa}")
        a(f"v_xor_b32 v{da[1]}, 64, v{da[0]}")
        a(f"s_lshl_b32 s44, s{s_fw}, 13")
        a(f"v_add_u32 v{t0}, s44, v{V_L16}")
        a(f"v_xor_b32 v{t0+2}, 8192, v{t0}")
        a(f"v_xor_b32 v{t0+3}, 16384, v{t0}")
        for n in range(2):
            for i in range(4):
                a(f"ds_write_b128 v{t0}, {v(ACC[2*n+1]+4*i,4)} offset:{n*4096+i*1024}")
        a("s_waitcnt lgkmcnt(0)")
        a("s_barrier")
        for n in range(2):
            for i in range(4):
                a(f"ds_read_b128 {v(ACC[2*n+1]+4*i,4)}, v{t0+2} offset:{n*4096+i*1024}")
        WF.append([160, 164])
        hi.append(168)
        for n in (1, 0): rdw1(0, 0, da, n)
        BQ = [ACC[0], ACC[2]]
        def bsum():
            for n in range(2):
                a(f"s_waitcnt lgkmcnt({4*(1-n)+4})")
                for i in range(8):
                    a(f"v_pk_add_f32 {v(BQ[n]+2*i,2)}, {v(BQ[n]+2*i,2)}, {v(ACC[2*n+1]+2*i,2)}")
                for i in range(8):
                    a(f"v_pk_mul_f32 {v(BQ[n]+2*i,2)}, {v(BQ[n]+2*i,2)}, {v(G,2)} op_sel:[0,1] op_sel_hi:[1,1]")
        if o.done: poll(a, "tl", t0+1, None, s_co, f"s{S_NONCE}", o.tsleep, first_issued=True, eq=True)
        else: poll(a, "tl", t0+1, None, s_co, 16, o.tsleep, first_issued=True, at=1 if o.apoll & 4 else 0)
    st.stamp(11)
    if st.en: a("s_waitcnt lgkmcnt(0)")
    OFR = [HFR[i >> 1][i & 1] for i in range(16)]
    def ldo(i):
        a(f"buffer_load_dwordx4 {v(OFR[i],4)}, v{V_L16}, s[{SWS}:{SWS+3}], s{s_o} offen offset:{(i&3)*1024} sc1")
        if i & 3 == 3 and i < 15: a(f"s_add_u32 s{s_o}, s{s_o}, 4096")
    for i in range(o.nfirst): ldo(i)
    bsum()
    if o.tprof: st.stamp(2); a("s_waitcnt lgkmcnt(0)")
    if not o.early:
        for n in (1, 0): rdw1(2048, 1, da, n)
    pend = list(range(o.nfirst, 16))
    AO = [ACC[1], ACC[3]]
    for i in range(16):
        buf = i % 3
        a(f"s_waitcnt vmcnt({15-len(pend)-i}) lgkmcnt({4 if i < 15 else 0})")
        if o.tprof and i == 0: st.stamp(3); a("s_waitcnt lgkmcnt(0)")
        for n in (1, 0):
            c = "0" if i == 0 else v(AO[n],16)
            a(f"{MF} {v(AO[n],16)}, {v(WF[buf][n],4)}, {v(OFR[i],4)}, {c}")
            if i < 14: rdw1((i+2)*2048, (i+2) % 3, da, n)
            if pend: ldo(pend.pop(0))
    if o.tprof: st.stamp(4)
    if o.early == 1: a("s_barrier")
    a("s_nop 10")
    for i in range(4):
        for j in (2*i, 2*i+1):
            a(f"v_pk_fma_f32 {v(BQ[1]+2*j,2)}, {v(AO[1]+2*j,2)}, {v(G,2)}, {v(BQ[1]+2*j,2)} op_sel_hi:[1,0,1]")
        a(f"ds_write_b128 v{t0}, {v(BQ[1]+4*i,4)} offset:{32768+i*1024}")
    for i in range(8):
        a(f"v_pk_fma_f32 {v(BQ[0]+2*i,2)}, {v(AO[0]+2*i,2)}, {v(G,2)}, {v(BQ[0]+2*i,2)} op_sel_hi:[1,0,1]")
    a("s_waitcnt lgkmcnt(0)")
    a("s_barrier")
    for i in range(4):
        a(f"ds_read_b128 {v(AO[1]+4*i,4)}, v{t0+3} offset:{32768+i*1024}")
    if o.tprof: st.stamp(5); a("s_waitcnt lgkmcnt(0)")
    T2 = AO[0]
    for p in range(2):
        a(f"s_waitcnt lgkmcnt({2*(1-p)})")
        for i in range(4*p, 4*p+4):
            a(f"v_pk_add_f32 {v(BQ[0]+2*i,2)}, {v(BQ[0]+2*i,2)}, {v(AO[1]+2*i,2)}")
        for i in range(4*p, 4*p+4):
            a(f"v_cvt_pk_bf16_f32 v{T2+i}, v{BQ[0]+2*i}, v{BQ[0]+2*i+1}")
        b = T2 + 4*p
        a("s_nop 1")
        a(f"v_permlane32_swap_b32 v{b}, v{b+2}")
        a(f"v_permlane32_swap_b32 v{b+1}, v{b+3}")
        a("s_nop 1")
        a(f"buffer_store_dwordx4 {v(b,4)}, v{VOUT}, s[{SB}:{SB+3}], s{s_out} offen offset:{32*p}{['', ' sc1', ' nt', ' sc0 sc1', ' sc1 nt'][o.ost]}")
    if o.tprof: st.stamp(8)
    finish(a, st)
    return hi

def build(path):
    global KN
    KN = "kb_kernel" if (o.report or o.instr) else KNAME
    a = Asm()
    a('.amdgcn_target "amdgcn-amd-amdhsa--gfx950"')
    a(".text")
    st = Stamper(a, o.instr, 0)
    kernel_header(a, KN)
    a("s_cmp_ge_u32 s2, 256")
    a("s_cbranch_scc1 L_exit")
    a("s_load_dwordx16 s[4:19], s[0:1], 0")
    a("s_load_dwordx4 s[20:23], s[0:1], 64")
    a("s_load_dwordx2 s[24:25], s[0:1], 80")
    st.init(); st.real(0); st.stamp(1)
    a("v_lshrrev_b32 v1, 6, v0")
    a("v_and_b32 v0, 63, v0")
    a(f"s_and_b32 s{S_XCD}, s2, 7")
    a(f"v_readfirstlane_b32 s{S_WAVE}, v1")
    a(f"s_lshr_b32 s{S_LOC}, s2, 3")
    a(f"v_lshlrev_b32 v{V_L16}, 4, v0")
    a(f"v_mov_b32 v{V_MISC}, {MISC}")
    a(f"v_mov_b32 v{V_ONE}, 1")
    if st.en: a("s_getreg_b32 s95, hwreg(HW_REG_XCC_ID)")
    a(f"s_cmp_ge_u32 s{S_WAVE}, 8")
    a("s_cbranch_scc1 L_F")
    ahi, fallback = a_waves(a, st)
    a.label("L_F")
    hi = f_waves(a, st) + [ahi]
    a.label("L_code_end")
    fallback()
    a.label("L_exit")
    a("s_endpgm")
    print("vgprs", hi)
    assert max(hi) <= 168
    descs = [kernel_desc(KN, 168)]
    if o.report or o.instr:
        hdr = f"; @launch kernel={KN} grid=(256,1,1) block=(768,1,1) lds={LDS_TOTAL}\n"
        if o.report:
            k, w, i = [int(x) for x in str(o.report).split(",")]
            reporter(a, k, w, i)
            hdr += "; @launch kernel=rep_kernel grid=(1,1,1) block=(64,1,1) lds=0\n"
            descs.append(kernel_desc("rep_kernel", 16))
    else:
        hdr = f"; @launch grid=(256,1,1) block=(768,1,1) lds={LDS_TOTAL}\n"
    a('.section .rodata,"a"')
    open(path, "w").write("; generated by gen/gen25.py\n" + hdr + a.text() + "".join(descs))

if __name__ == "__main__":
    path = sys.argv[1]
    for arg in sys.argv[2:]:
        k, _, val = arg.partition("=")
        assert hasattr(Opt, k), k
        setattr(Opt, k, (val if ',' in val else int(val)) if val else True)
    if Opt.report: Opt.instr = True; Stamper.rt = True
    if Opt.acc: Stamper.acc = True
    if Opt.rt: Stamper.rt = True
    build(path)
```

```python
import math, sys
from asmlib import *

MB = 1 << 20
QF, KF, VF, OF, HF = 0, 2*MB, 4*MB, 6*MB, 8*MB
GA = 14*MB
CNT = 14*MB + 0x10000
CQ, CH, CO = CNT, CNT + 64*128, CNT + 128*128
W0 = 14*MB + 0x20000
DONE = 0x8000
WS_BYTES = 32*MB
LOG2E = 1.4426950408889634
QSCALE = 0.25 * LOG2E
LDS_TOTAL = 163840
KNAME = "gated_mix__mha_block__glu_gated_glu__prompt_kernel"

TS0, TSTR = 32768, 33024
TG, TU = 16384, 16384 + 8192 + 32
WIMG = 12288 + 32
UX = [49152, 65536]
UW = [81920]; UWS = 24832
STG = 65536
DRING = 131072
VCONST = 156672
GL = 160768
MISC = LDS_TOTAL - 256
L_NONCE, L_ATT, L_FB, L_GO, L_PAIR, L_POST, L_ST = 0, 4, 8, 12, 16, 32, 36

S_WAVE, S_NONCE = 26, 27
SWS, SA, SB, SC = 28, 32, 36, 40
S_XCD, S_LOC, S_FBT, S_SPIN = 3, 69, 67, 68
V_L16, V_MISC, V_ONE = 1, 2, 3
MF = "v_mfma_f32_32x32x16_bf16"
SM = "v_smfmac_f32_32x32x32_bf16"

class Opt:
    instr = False
    report = None
    acc = 0
    rt = 0
    ppdelay = 0
    fprio = 2
    mprio = 0
    aprio = 5
    psleep = 2
    stag1 = 0
    stag2 = 1
    pdelay = 10
    dper = 1
    upause = 0
    ost = 0
    pf31 = 1
    upat = 9
    upwarm = 3
    yat = 5
    noffn = 0
    hold = 0
    par = 1
    wsoff = 0
    done = 0
    early = 0
    apoll = 7
    xprio = 0
    pre = 3
    holdn = 1
    w0 = 2
    rotU = 0
    hp = 0
    gapw = 0
    nwd = 11
    nwo = 4
    dprio = 0
    pf0 = 2
    rot = 0
    stagD = 1
    nfirst = 10
    tprof = 0
    tsleep = 1
    cuts = '2,6,10'
    pfup = 6
    stagU = 0
    fpace = 0
    la = 3
    udelay = 0
    xat = 1
    ctouch = 1
    tdelay = 0
o = Opt

def srd(a, d, lo, hi, nbytes):
    if lo == 24 and o.wsoff:
        a(f"s_add_u32 s{d}, s{lo}, {o.wsoff*MB}")
        a(f"s_addc_u32 s{d+1}, s{hi}, 0")
        a(f"s_and_b32 s{d+1}, s{d+1}, 0xffff")
        a(f"s_mov_b32 s{d+2}, {min(nbytes, (256-o.wsoff)*MB)}")
        a(f"s_mov_b32 s{d+3}, 0x20000")
        return
    a(f"s_mov_b32 s{d}, s{lo}")
    a(f"s_and_b32 s{d+1}, s{hi}, 0xffff")
    a(f"s_mov_b32 s{d+2}, {nbytes}")
    a(f"s_mov_b32 s{d+3}, 0x20000")

def finish(a, st):
    if st.en: a("s_waitcnt vmcnt(0)")
    st.stamp(6); st.real(7); st.flush(SWS, S_WAVE, 4)
    a("s_endpgm")

def post(a, s_off):
    a("s_waitcnt vmcnt(0)")
    a("s_mov_b64 exec, 1")
    a(f"buffer_atomic_add v{V_ONE}, off, s[{SWS}:{SWS+3}], s{s_off} sc1")
    a("s_mov_b64 exec, -1")

def poll_ld(a, vt, voff, s_off, at):
    if at:
        a(f"v_mov_b32 v{vt}, 0")
        if voff is None: a(f"buffer_atomic_or v{vt}, off, s[{SWS}:{SWS+3}], s{s_off} sc0 sc1")
        else: a(f"buffer_atomic_or v{vt}, v{voff}, s[{SWS}:{SWS+3}], s{s_off} offen sc0 sc1")
    elif voff is None: a(f"buffer_load_dword v{vt}, off, s[{SWS}:{SWS+3}], s{s_off} sc1")
    else: a(f"buffer_load_dword v{vt}, v{voff}, s[{SWS}:{SWS+3}], s{s_off} offen sc1")

def poll(a, tag, vt, voff, s_off, target, sleep, first_issued=False, eq=False, at=0):
    def ld(): poll_ld(a, vt, voff, s_off, at)
    a(f"s_mov_b32 s{S_SPIN}, 0")
    if at: a(f"s_mov_b64 exec, {(1 << at) - 1}")
    if not first_issued: ld()
    a.label(f"L_{tag}_poll")
    a(f"s_add_u32 s{S_SPIN}, s{S_SPIN}, 1")
    a("s_waitcnt vmcnt(0)")
    a(f"v_cmp_{'ne' if eq else 'gt'}_u32 vcc, {target}, v{vt}")
    a(f"s_cmp_gt_u32 s{S_SPIN}, 200000")
    a(f"s_cbranch_scc1 L_{tag}_got")
    a(f"s_cbranch_vccz L_{tag}_got")
    if sleep: a(f"s_sleep {sleep}")
    ld()
    a(f"s_branch L_{tag}_poll")
    a.label(f"L_{tag}_got")
    if at: a("s_mov_b64 exec, -1")

def lds_wait_ge(a, tag, vaddr, off, target, vt, sleep=1):
    a(f"s_mov_b32 s{S_SPIN}, 0")
    a.label(f"L_{tag}_spin")
    a(f"ds_read_b32 v{vt}, v{vaddr} offset:{off}")
    a(f"s_add_u32 s{S_SPIN}, s{S_SPIN}, 1")
    a("s_waitcnt lgkmcnt(0)")
    a(f"v_cmp_gt_u32 vcc, {target}, v{vt}")
    a(f"s_cmp_gt_u32 s{S_SPIN}, 2000000")
    a(f"s_cbranch_scc1 L_{tag}_ok")
    a(f"s_cbranch_vccz L_{tag}_ok")
    if sleep: a(f"s_sleep {sleep}")
    a(f"s_branch L_{tag}_spin")
    a.label(f"L_{tag}_ok")

def lds_arrive(a, vaddr, off):
    a("s_mov_b64 exec, 1")
    a(f"ds_add_u32 v{vaddr}, v{V_ONE} offset:{off}")
    a("s_mov_b64 exec, -1")

def tile_ids(a, s_rb, s_lc):
    a(f"s_and_b32 s44, s{S_XCD}, 3")
    a("s_lshl_b32 s44, s44, 2")
    a(f"s_and_b32 s45, s{S_LOC}, 3")
    a(f"s_add_u32 s{s_rb}, s44, s45")
    a(f"s_lshr_b32 s{s_lc}, s{S_LOC}, 2")

def ids_up(a, s_rb, s_cg, s_u0):
    a(f"s_and_b32 s44, s{S_XCD}, 2")
    a("s_lshl_b32 s44, s44, 2")
    a(f"s_and_b32 s45, s{S_LOC}, 7")
    a(f"s_add_u32 s{s_rb}, s44, s45")
    quad_start(a, s_u0)
    a(f"s_and_b32 s44, s{S_XCD}, 1")
    if not o.par: a("s_xor_b32 s44, s44, 1")
    a(f"s_sub_u32 s{s_cg}, 6, s44")
    a(f"s_lshr_b32 s45, s{S_LOC}, 3")
    a(f"s_mul_i32 s47, s45, s{s_cg}")
    a(f"s_add_u32 s{s_u0}, s{s_u0}, s47")
    a("s_cmp_eq_u32 s45, 3")
    a("s_cselect_b32 s44, s44, 0")
    a(f"s_sub_u32 s{s_cg}, s{s_cg}, s44")

def quad_start(a, d):
    a(f"s_lshr_b32 s44, s{S_XCD}, 2")
    a("s_mul_i32 s44, s44, 43")
    a(f"s_and_b32 s45, s{S_XCD}, 1")
    if not o.par: a("s_xor_b32 s45, s45, 1")
    a("s_mul_i32 s45, s45, 24")
    a(f"s_add_u32 s{d}, s44, s45")

def stagger(a, mode=None):
    pass
    if mode == 1:
        a(f"s_lshr_b32 s44, s{S_LOC}, 3")
        a("s_lshl_b32 s44, s44, 1")
        a(f"s_add_u32 s44, s44, s{S_LOC}")
        a("s_and_b32 s44, s44, 7")
    elif mode == 2:
        a(f"s_lshr_b32 s44, s{S_LOC}, 3")
        a(f"s_add_u32 s44, s44, s{S_LOC}")
        a("s_and_b32 s44, s44, 3")
        a("s_lshl_b32 s44, s44, 1")
    elif mode == 3:
        a(f"s_lshr_b32 s44, s{S_LOC}, 3")
        a(f"s_add_u32 s44, s44, s{S_LOC}")
        a("s_and_b32 s44, s44, 1")
        a("s_lshl_b32 s44, s44, 2")
    else:
        a("s_mov_b32 s44, 0")

def up_dma_setup(a, t0, vx, vw, s_fw, s_rb, s_cg, s_u0, s_lx, s_lw, s_xoff, s_woff):
    a(f"v_lshrrev_b32 v{t0}, 3, v0")
    a(f"v_and_b32 v{t0+1}, 7, v0")
    a(f"v_lshrrev_b32 v{t0+2}, 1, v{t0}")
    ids_up(a, s_rb, s_cg, s_u0)
    a(f"s_and_b32 s46, s{s_fw}, 1")
    a("s_lshl_b32 s45, s46, 2")
    a(f"v_or_b32 v{t0+2}, s45, v{t0+2}")
    a(f"v_xor_b32 v{t0+1}, v{t0+1}, v{t0+2}")
    a(f"v_lshlrev_b32 v{t0+1}, 4, v{t0+1}")
    a(f"s_lshl_b32 s44, s{s_rb}, 7")
    a(f"s_lshl_b32 s45, s{s_fw}, 3")
    a("s_add_u32 s44, s44, s45")
    a(f"v_add_u32 v{t0}, s44, v{t0}")
    a(f"v_lshl_add_u32 v{vx}, v{t0}, 10, v{t0+1}")
    a("s_movk_i32 s44, 5462")
    a("s_movk_i32 s47, 2752")
    a("s_lshl_b32 s45, s46, 5")
    for j in range(3):
        a(f"v_add_u32 v{t0}, {64*j}, v0")
        a(f"v_mul_u32_u24 v{t0+1}, s44, v{t0}")
        a(f"v_lshrrev_b32 v{t0+1}, 16, v{t0+1}")
        a(f"v_mul_u32_u24 v{t0+2}, 12, v{t0+1}")
        a(f"v_sub_u32 v{t0+2}, v{t0}, v{t0+2}")
        a(f"v_lshrrev_b32 v{t0}, 1, v{t0+2}")
        a(f"v_cmp_gt_u32 vcc, s{s_cg}, v{t0}")
        a(f"v_lshlrev_b32 v{t0+2}, 4, v{t0+2}")
        a(f"v_add_u32 v{t0+1}, s45, v{t0+1}")
        a(f"v_mad_u32_u24 v{vw[j]}, v{t0+1}, s47, v{t0+2}")
        a(f"v_bfrev_b32 v{t0}, 2")
        a(f"v_cndmask_b32 v{vw[j]}, v{t0}, v{vw[j]}, vcc")
    a(f"s_lshl_b32 s{s_lx}, s{s_fw}, 10")
    a(f"s_add_u32 s{s_lx}, s{s_lx}, {UX[0]}")
    a("s_mul_i32 s45, s46, 6144")
    a(f"s_lshr_b32 s46, s{s_fw}, 1")
    a(f"s_mul_i32 s47, s46, {WIMG}")
    a("s_add_u32 s45, s45, s47")
    a(f"s_add_u32 s{s_lw}, s45, {UW[0]}")
    stagger(a, o.stagU)
    a(f"s_lshl_b32 s{s_xoff}, s44, 7")
    a(f"s_mul_i32 s{s_woff}, s44, {64*2752}")

def up_srd(a, s_fw, s_u0):
    srd(a, SA, 4, 5, 2048*1024)
    a(f"s_cmp_lt_u32 s{s_fw}, 2")
    a("s_cselect_b32 s46, s12, s14")
    a("s_cselect_b32 s47, s13, s15")
    a(f"s_lshl_b32 s44, s{s_u0}, 5")
    srd_off(a, SB, 46, 47, 44, 512*2752)

def up_dma_groups(vx, vw, s_lx, s_lw, s_xoff, s_woff):
    g = []
    for j in range(4):
        if j == 0: pre = [f"s_mov_b32 m0, s{s_lx}", f"s_mov_b32 s46, s{s_xoff}"]
        else: pre = ["s_add_u32 m0, m0, 4096", "s_add_u32 s46, s46, 32768"]
        g.append(pre + [f"buffer_load_dwordx4 v{vx}, s[{SA}:{SA+3}], s46 offen lds"])
    for j in range(6):
        if j == 0: pre = [f"s_mov_b32 m0, s{s_lw}", f"s_add_u32 s46, s{s_woff}, {16*2752}"]
        else: pre = ["s_add_u32 m0, m0, 1024", "s_nop 0"]
        so = s_woff if j < 3 else 46
        g.append(pre + [f"buffer_load_dwordx4 v{vw[j%3]}, s[{SB}:{SB+3}], s{so} offen lds"])
    return g

def srd_off(a, d, lo, hi, s_off, total):
    a(f"s_add_u32 s{d}, s{lo}, s{s_off}")
    a(f"s_addc_u32 s{d+1}, s{hi}, 0")
    a(f"s_and_b32 s{d+1}, s{d+1}, 0xffff")
    a(f"s_sub_u32 s{d+2}, {total}, s{s_off}")
    a(f"s_mov_b32 s{d+3}, 0x20000")

def dma_lanes(a, vr8, vc8, vx0, vx1, t, s_rb, s_w):
    a(f"v_lshrrev_b32 v{vr8}, 3, v0")
    a(f"v_and_b32 v{t}, 7, v0")
    a(f"v_lshrrev_b32 v{t+1}, 1, v{vr8}")
    a(f"v_xor_b32 v{t+2}, v{t}, v{t+1}")
    a(f"v_lshlrev_b32 v{t+2}, 4, v{t+2}")
    a(f"s_lshl_b32 s44, s{s_rb}, 7")
    a(f"s_lshl_b32 s45, s{s_w}, 5")
    a("s_add_u32 s44, s44, s45")
    a(f"v_add_u32 v{vx0}, s44, v{vr8}")
    a(f"v_lshl_add_u32 v{vx0}, v{vx0}, 10, v{t+2}")
    a(f"v_xor_b32 v{vx1}, 64, v{vx0}")
    a(f"v_add_u32 v{vx1}, 8192, v{vx1}")
    a(f"v_lshlrev_b32 v{t+1}, 2, v{t+1}")
    a(f"v_and_b32 v{t+1}, 4, v{t+1}")
    a(f"v_xor_b32 v{t}, v{t}, v{t+1}")
    a(f"v_lshlrev_b32 v{vc8}, 4, v{t}")

def dma_lds(a, s_lx, s_lw, s_w):
    a(f"s_lshl_b32 s{s_lx}, s{s_w}, 12")
    a(f"s_lshr_b32 s46, s{s_w}, 1")
    a(f"s_and_b32 s47, s{s_w}, 1")
    a(f"s_mul_i32 s44, s46, {TU-TG}")
    a("s_lshl_b32 s45, s47, 12")
    a("s_add_u32 s44, s44, s45")
    a(f"s_add_u32 s{s_lw}, s44, {TG}")

def start_stage(a, mode, s_lc, s_w, s_xoff, s_woff, pitch):
    if mode == 1:
        a(f"s_lshl_b32 s44, s{S_LOC}, 1")
        a(f"s_add_u32 s44, s44, s{s_lc}")
        a("s_and_b32 s44, s44, 7")
    elif mode == 2:
        a(f"s_lshl_b32 s44, s{S_LOC}, 1")
        a("s_and_b32 s44, s44, 7")
    else:
        a("s_mov_b32 s44, 0")
    a(f"s_lshl_b32 s{s_xoff}, s44, 7")
    a("s_lshl_b32 s44, s44, 1")
    a(f"s_and_b32 s45, s{s_w}, 1")
    a("s_add_u32 s44, s44, s45")
    a("s_lshl_b32 s44, s44, 5")
    a(f"s_mul_i32 s{s_woff}, s44, {pitch}")

def ffn_srd(a, s_w, s_u):
    a(f"s_cmp_lt_u32 s{s_w}, 2")
    a("s_cselect_b32 s46, s12, s14")
    a("s_cselect_b32 s47, s13, s15")
    a(f"s_lshl_b32 s44, s{s_u}, 5")
    a(f"s_add_u32 s{SB}, s46, s44")
    a(f"s_addc_u32 s{SB+1}, s47, 0")
    a(f"s_and_b32 s{SB+1}, s{SB+1}, 0xffff")
    a(f"s_sub_u32 s{SB+2}, {512*2752}, s44")
    a(f"s_mov_b32 s{SB+3}, 0x20000")

class LQ:
    def __init__(self): self.q = []
    def push(self, tag): self.q.append(tag)
    def need(self, tag):
        if tag not in self.q: return None
        i = len(self.q) - 1 - self.q[::-1].index(tag)
        n = len(self.q) - 1 - i
        self.q = self.q[i+1:]
        return n

def a_waves(a, st):
    R = Regs(4)
    vt = R.alloc(); vt2 = R.alloc(); vt3 = R.alloc(); vt4 = R.alloc()
    kaddr = R.alloc(); vaddr = R.alloc(); vcnt = R.alloc(); vstep = R.alloc(); vmask = R.alloc()
    vx0 = R.alloc(); vx1 = R.alloc(); vw = R.alloc()
    GG = R.alloc(4)
    vr8, vc8, vxu = GG, GG+1, GG+2
    Q = [R.alloc(4), R.alloc(4)]; KR = R.alloc(4); V0 = R.alloc(4); V1 = R.alloc(4)
    P = R.alloc(4); S = [R.alloc(16), R.alloc(16)]
    IDX = R.alloc(); vkp = R.alloc()
    O = [R.alloc(16), R.alloc(16)]; C = [R.alloc(16), R.alloc(16)]
    s_head, s_T, s_c, s_kg, s_vg, s_ld, s_tgt = 48, 49, 50, 51, 52, 53, 54
    s_q0, s_q1, s_slot, s_step, s_tok = 55, 56, 57, 58, 59
    a(f"s_cmp_ge_u32 s{S_WAVE}, 4")
    a("s_cbranch_scc1 L_help0")
    s_rb, s_lc, s_um, s_ue = 48, 49, 50, 51
    s_xoff, s_woff, s_lslot, s_cnt, s_lx, s_lw, s_pitch, s_xslot, s_xu, s_lxu = 52, 53, 54, 55, 56, 57, 58, 59, 60, 61
    JUNK = S[0]
    a(f"s_cmp_ge_u32 s{S_LOC}, 24")
    a("s_cbranch_scc1 L_pf")
    tile_ids(a, s_rb, s_lc)
    dma_lanes(a, vr8, vc8, vx0, vx1, vt2, s_rb, S_WAVE)
    dma_lds(a, s_lx, s_lw, S_WAVE)
    a(f"s_mov_b32 s{s_lslot}, {TS0+TSTR}")
    a(f"s_mov_b32 s{s_cnt}, 0")
    start_stage(a, o.stag1, s_lc, S_WAVE, s_xoff, s_woff, 3072)
    if o.rot:
        a(f"s_mov_b32 s63, s{s_woff}")
        a(f"s_add_u32 s62, s{S_LOC}, s{s_lc}")
        a(f"s_and_b32 s62, s62, {o.rot}")
        a(f"s_lshl_b32 s{s_xoff}, s62, 7")
        a(f"s_mul_i32 s44, s62, {64*3072}")
        a(f"s_add_u32 s{s_woff}, s44, s63")
    a(f"v_mul_u32_u24 v{vw}, 3072, v{vr8}")
    a(f"s_lshr_b32 s44, s{S_XCD}, 2")
    a("s_mul_i32 s44, s44, 6")
    a(f"s_add_u32 s44, s44, s{s_lc}")
    a("s_lshl_b32 s44, s44, 1")
    a("s_add_u32 s44, s44, s46")
    a("s_lshl_b32 s44, s44, 7")
    a(f"v_add3_u32 v{vw}, v{vw}, v{vc8}, s44")
    a("s_waitcnt lgkmcnt(0)")
    srd(a, SA, 4, 5, 2048*1024)
    srd(a, SB, 6, 7, 512*3072)
    a.label("L_ld0")
    a(f"s_add_u32 m0, s{s_lslot}, s{s_lx}")
    a(f"s_add_u32 s44, s{s_xoff}, 16384")
    for j in range(4):
        a(f"buffer_load_dwordx4 v{vx1 if j & 1 else vx0}, s[{SA}:{SA+3}], s{s_xoff if j < 2 else 44} offen lds")
        if j < 3: a("s_add_u32 m0, m0, 1024")
        else: a(f"s_add_u32 m0, s{s_lslot}, s{s_lw}")
        a([f"s_add_u32 s{s_cnt}, s{s_cnt}, 1", f"s_mov_b32 s45, s{s_woff}", f"s_add_u32 s{s_xoff}, s{s_xoff}, 128", "s_nop 0"][j])
    for j in range(4):
        a(f"buffer_load_dwordx4 v{vw}, s[{SB}:{SB+3}], s45 offen lds")
        if j < 3:
            a("s_add_u32 m0, m0, 1024")
            a(f"s_add_u32 s45, s45, {8*3072}")
    if o.rot:
        a(f"s_xor_b32 s44, s{s_cnt}, s62")
        a(f"s_cmp_lt_u32 s{s_cnt}, {o.rot+1}")
        a(f"s_cselect_b32 s44, s44, s{s_cnt}")
        a(f"s_lshl_b32 s{s_xoff}, s44, 7")
        a(f"s_mul_i32 s44, s44, {64*3072}")
        a(f"s_add_u32 s{s_woff}, s44, s63")
    else:
        a(f"s_add_u32 s{s_woff}, s{s_woff}, {64*3072}")
        a(f"s_and_b32 s{s_xoff}, s{s_xoff}, 1023")
        a(f"s_cselect_b32 s46, 0, {512*3072}")
        a(f"s_sub_u32 s{s_woff}, s{s_woff}, s46")
    a(f"s_add_u32 s{s_lslot}, s{s_lslot}, {TSTR}")
    a(f"s_cmp_eq_u32 s{s_lslot}, {TS0+3*TSTR}")
    a(f"s_cselect_b32 s{s_lslot}, {TS0}, s{s_lslot}")
    a(f"s_cmp_lt_u32 s{s_cnt}, 2")
    a("s_cbranch_scc1 L_ld0")
    a(f"s_cmp_eq_u32 s{s_cnt}, 8")
    a("s_cbranch_scc1 L_ld_end")
    a("s_waitcnt vmcnt(8)")
    a("s_barrier")
    a("s_branch L_ld0")
    a.label("L_pf")
    a(f"v_lshrrev_b32 v{vt}, 3, v0")
    a(f"v_and_b32 v{vt2}, 7, v0")
    a(f"v_lshlrev_b32 v{vt2}, 4, v{vt2}")
    a(f"v_lshl_add_u32 v{vx0}, v{vt}, 10, v{vt2}")
    a(f"v_mov_b32 v{vt3}, 1024")
    a(f"v_mov_b32 v{vt4}, 2560")
    a("v_cmp_gt_u32 vcc, 32, v0")
    a(f"s_sub_u32 s46, s{S_LOC}, 24")
    a("s_lshl_b32 s46, s46, 2")
    a(f"s_add_u32 s46, s46, s{S_WAVE}")
    a(f"v_cndmask_b32 v{vt3}, v{vt4}, v{vt3}, vcc")
    a(f"v_add_u32 v{vx1}, v{vt3}, v{V_L16}")
    a(f"s_and_b32 s44, s{S_XCD}, 3")
    a("s_lshl_b32 s44, s44, 5")
    a("s_add_u32 s44, s44, s46")
    a(f"s_lshl_b32 s{s_xoff}, s44, 14")
    a(f"s_add_u32 s{s_xoff}, s{s_xoff}, {128*o.pf0}")
    a(f"s_lshr_b32 s44, s{S_XCD}, 2")
    a("s_mul_i32 s44, s44, 1536")
    a(f"s_mul_i32 s{s_woff}, s46, {2*3072}")
    a(f"s_add_u32 s{s_woff}, s{s_woff}, s44")
    a(f"s_add_u32 s{s_woff}, s{s_woff}, {64*3072*o.pf0}")
    a(f"s_mov_b32 s{s_cnt}, {o.pf0}")
    a("s_waitcnt lgkmcnt(0)")
    srd(a, SA, 4, 5, 2048*1024)
    srd(a, SB, 6, 7, 512*3072)
    a(f"s_cmp_eq_u32 s{S_LOC}, 31")
    a("s_cbranch_scc0 L_pf1")
    a("s_sleep 4")
    a.label("L_pf1")
    a(f"s_add_u32 s44, s{s_xoff}, 8192")
    a(f"buffer_load_dwordx4 {v(JUNK,4)}, v{vx0}, s[{SA}:{SA+3}], s{s_xoff} offen")
    a(f"buffer_load_dwordx4 {v(JUNK,4)}, v{vx0}, s[{SA}:{SA+3}], s44 offen")
    a(f"buffer_load_dwordx4 {v(JUNK,4)}, v{V_L16}, s[{SB}:{SB+3}], s{s_woff} offen")
    a(f"buffer_load_dwordx4 {v(JUNK,4)}, v{vx1}, s[{SB}:{SB+3}], s{s_woff} offen")
    a(f"buffer_load_dwordx4 {v(JUNK,4)}, v{V_L16}, s[{SB}:{SB+3}], s{s_woff} offen offset:3584")
    a(f"s_add_u32 s{s_xoff}, s{s_xoff}, 128")
    a(f"s_add_u32 s{s_woff}, s{s_woff}, {64*3072}")
    a(f"s_add_u32 s{s_cnt}, s{s_cnt}, 1")
    a(f"s_cmp_lt_u32 s{s_cnt}, 8")
    a("s_cbranch_scc1 L_pf1")
    if o.pfup:
        if not o.pf31:
            a(f"s_cmp_eq_u32 s{S_LOC}, 31")
            a("s_cbranch_scc1 L_pf3")
        srd(a, SB, 12, 13, 512*2752)
        srd(a, SC, 14, 15, 512*2752)
        quad_start(a, 44)
        a("s_lshl_b32 s44, s44, 5")
        a(f"s_mul_i32 s{s_woff}, s46, 2752")
        a(f"s_add_u32 s{s_woff}, s{s_woff}, s44")
        a(f"s_and_b32 s44, s{S_XCD}, 3")
        a("s_xor_b32 s44, s44, 1")
        a("s_lshl_b32 s44, s44, 5")
        a("s_add_u32 s44, s44, s46")
        a(f"s_lshl_b32 s{s_xoff}, s44, 14")
        a(f"s_mov_b32 s{s_cnt}, 0")
        a.label("L_pf2")
        a("s_mov_b32 exec_hi, 0x3ffff")
        a(f"buffer_load_dwordx4 {v(JUNK,4)}, v{V_L16}, s[{SB}:{SB+3}], s{s_woff} offen")
        a(f"buffer_load_dwordx4 {v(JUNK,4)}, v{V_L16}, s[{SC}:{SC+3}], s{s_woff} offen")
        a("s_mov_b32 exec_hi, -1")
        a(f"buffer_load_dwordx4 {v(JUNK,4)}, v{vx0}, s[{SA}:{SA+3}], s{s_xoff} offen")
        a(f"s_add_u32 s{s_woff}, s{s_woff}, {32*2752}")
        a(f"s_add_u32 s{s_cnt}, s{s_cnt}, 1")
        a(f"s_bitcmp1_b32 s{s_cnt}, 0")
        a(f"s_mov_b32 s44, {(128-8192) & 0xffffffff}")
        a("s_cselect_b32 s44, 8192, s44")
        a(f"s_add_u32 s{s_xoff}, s{s_xoff}, s44")
        a(f"s_cmp_lt_u32 s{s_cnt}, {o.pfup}")
        a("s_cbranch_scc1 L_pf2")
    a.label("L_pf3")
    for i in range(6): a("s_barrier")
    a.label("L_ld_end")
    srd(a, SWS, 24, 25, WS_BYTES)
    a("s_waitcnt vmcnt(8)")
    a("s_barrier")
    a("s_waitcnt vmcnt(0)")
    a("s_branch L_b7")

    a.label("L_help0")
    GT = S[0]
    a(f"v_lshl_add_u32 v{vt2}, v0, 2, v{V_MISC}")
    a(f"v_mov_b32 v{vt}, 0")
    a(f"ds_write_b32 v{vt2}, v{vt}")
    a("s_lshl_b32 s46, s2, 3")
    a(f"s_lshl_b32 s45, s{S_WAVE}, 1")
    a("s_add_u32 s46, s46, s45")
    a(f"s_sub_u32 s{s_tok}, s46, 8")
    a(f"s_lshl_b32 s44, s{s_tok}, 10")
    a("s_waitcnt lgkmcnt(0)")
    srd(a, SA, 4, 5, 2048*1024)
    srd(a, SB, 18, 19, 1024)
    srd(a, SWS, 24, 25, WS_BYTES)
    srd(a, SC, 22, 23, 256)
    a(f"s_cmp_eq_u32 s{S_WAVE}, 4")
    a("s_cbranch_scc0 L_help2")
    a(f"s_cmp_eq_u32 s{S_LOC}, 31")
    a("s_cbranch_scc0 L_help2")
    a("s_setprio 3")
    a(f"s_add_u32 s46, s24, {W0 + o.wsoff*MB}")
    a("s_addc_u32 s47, s25, 0")
    a("s_load_dword s45, s[46:47], 0 glc")
    for i in range(4): a(f"v_mov_b32 v{GT+i}, 0")
    a(f"s_lshl_b32 s46, s{S_XCD}, 12")
    a(f"s_add_u32 s46, s46, {CNT}")
    for i in range(4):
        a(f"buffer_store_dwordx4 {v(GT,4)}, v{V_L16}, s[{SWS}:{SWS+3}], s46 offen offset:{i*1024} sc1")
    a("s_waitcnt lgkmcnt(0)")
    a("s_mul_i32 s45, s45, 0x19660d")
    a("s_add_u32 s45, s45, 0x3c6ef35f")
    a("s_max_u32 s45, s45, 1")
    a(f"v_mov_b32 v{vt3}, s45")
    a(f"s_lshl_b32 s46, s{S_XCD}, 2")
    a("s_waitcnt vmcnt(0)")
    a("s_mov_b64 exec, 1")
    a(f"buffer_store_dword v{vt3}, off, s[{SC}:{SC+3}], s46 sc1")
    a("s_mov_b64 exec, -1")
    a("s_setprio 0")
    if st.en:
        a("s_memrealtime s[96:97]"); a("s_waitcnt lgkmcnt(0)"); a("s_sub_u32 s95, s96, s70")
    a.label("L_help2")
    a(f"buffer_load_dwordx4 {v(GT,4)}, v{V_L16}, s[{SB}:{SB+3}], 0 offen")
    a(f"buffer_load_dwordx4 {v(GT+4,4)}, v{V_L16}, s[{SA}:{SA+3}], s44 offen")
    a(f"buffer_load_dwordx4 {v(GT+8,4)}, v{V_L16}, s[{SA}:{SA+3}], s44 offen offset:1024")
    a.label("L_help3")
    if o.ctouch:
        a(f"s_cmp_eq_u32 s{S_WAVE}, 5")
        a("s_cbranch_scc0 L_help4")
        a("s_getpc_b64 s[46:47]")
        a.label("L_pc")
        a(f"s_sub_u32 s46, s46, L_pc-{KN}")
        a("s_subb_u32 s47, s47, 0")
        a(f"s_lshl_b32 s44, s{S_LOC}, 9")
        a(f"s_min_u32 s44, s44, L_code_end-{KN}-512")
        a("s_add_u32 s46, s46, s44")
        a("s_addc_u32 s47, s47, 0")
        for i in range(8):
            a(f"s_load_dword s44, s[46:47], {64*i}")
        a("s_waitcnt lgkmcnt(0)")
    a.label("L_help4")
    a("s_barrier")
    st.stamp(2)
    a("s_barrier")
    a("s_waitcnt vmcnt(0)")
    for r in range(2):
        a(f"v_mov_b32 v{vt3+r}, 0")
    for i in range(4):
        for r in range(2):
            a(f"v_dot2c_f32_bf16 v{vt3+r}, v{GT+4+4*r+i}, v{GT+i}")
    a("s_nop 2")
    for dpp in ["row_shr:1", "row_shr:2", "row_shr:4", "row_shr:8", "row_bcast:15 row_mask:0xa", "row_bcast:31 row_mask:0xc"]:
        a("s_nop 0")
        for r in range(2):
            a(f"v_add_f32_dpp v{vt3+r}, v{vt3+r}, v{vt3+r} {dpp}")
    a("s_barrier")
    for r in range(2): a(f"v_mul_f32 v{vt3+r}, {f32bits(-LOG2E)}, v{vt3+r}")
    for r in range(2): a(f"v_exp_f32 v{vt3+r}, v{vt3+r}")
    a("s_nop 0")
    for r in range(2): a(f"v_add_f32 v{vt3+r}, 1.0, v{vt3+r}")
    for r in range(2): a(f"v_rcp_f32 v{GG+2*r}, v{vt3+r}")
    a(f"v_and_b32 v{vt2}, 7, v0")
    a(f"v_lshlrev_b32 v{vt2}, 2, v{vt2}")
    a("s_barrier")
    a("s_barrier")
    a(f"s_cmp_eq_u32 s{S_WAVE}, 4")
    a("s_cbranch_scc0 L_help5")
    a(f"buffer_load_dword v{vt}, v{vt2}, s[{SC}:{SC+3}], 0 offen sc1")
    a.label("L_help5")
    hv = S[1]
    if o.pre == 1:
        a(f"s_sub_u32 s48, s{S_WAVE}, 4")
        up_dma_setup(a, hv, hv+4, [hv+5, hv+6, hv+7], 48, 49, 50, 51, 60, 61, 62, 63)
    a("s_barrier")
    if o.pre == 1: up_srd(a, 48, 51)
    a("s_barrier")
    a("s_barrier")
    a(f"s_cmp_eq_u32 s{S_WAVE}, 4")
    a("s_cbranch_scc0 L_pre")
    a(f"s_mov_b32 s{S_SPIN}, 0")
    a.label("L_np")
    a("s_waitcnt vmcnt(0)")
    a(f"v_cmp_eq_u32 vcc, 0, v{vt}")
    a(f"s_cmp_gt_u32 s{S_SPIN}, 200000")
    a("s_cbranch_scc1 L_ng")
    a("s_cbranch_vccz L_ng")
    a(f"s_add_u32 s{S_SPIN}, s{S_SPIN}, 1")
    a("s_sleep 4")
    a(f"buffer_load_dword v{vt}, v{vt2}, s[{SC}:{SC+3}], 0 offen sc1")
    a("s_branch L_np")
    a.label("L_ng")
    if st.en: a(f"s_add_u32 s100, s{S_SPIN}, 1")
    a("s_mov_b64 exec, 1")
    a(f"ds_write_b32 v{V_MISC}, v{vt} offset:{L_NONCE}")
    a("s_cmp_eq_u32 s2, 255")
    a("s_cbranch_scc0 L_nw")
    a(f"s_mov_b32 s44, {W0}")
    a(f"buffer_store_dword v{vt}, off, s[{SWS}:{SWS+3}], s44 sc1")
    a.label("L_nw")
    a("s_mov_b64 exec, -1")
    a.label("L_pre")
    if o.pre == 1:
        lds_wait_ge(a, "pre", V_MISC, L_ST, "4", vt3, sleep=1)
        for grp in up_dma_groups(hv+4, [hv+5, hv+6, hv+7], 60, 61, 62, 63):
            for l in grp: a(l)
        a("s_waitcnt vmcnt(0)")
        lds_arrive(a, V_MISC, L_FB)
    a("s_branch L_b7x")
    a.label("L_b7")
    a("s_barrier")
    a.label("L_b7x")
    a("s_sleep 8")
    st.stamp(3)
    a(f"s_lshl_b32 s44, s{S_XCD}, 2")
    a(f"s_and_b32 s45, s{S_LOC}, 3")
    a(f"s_add_u32 s{s_head}, s44, s45")
    a(f"s_lshr_b32 s44, s{S_LOC}, 2")
    a("s_lshl_b32 s44, s44, 3")
    a(f"s_and_b32 s45, s{S_WAVE}, 3")
    a("s_lshl_b32 s45, s45, 1")
    a("s_add_u32 s44, s44, s45")
    a(f"s_lshr_b32 s46, s{S_WAVE}, 2")
    a(f"s_add_u32 s{s_T}, s44, s46")
    a(f"s_lshl_b32 s44, s{s_head}, 16")
    a(f"s_lshl_b32 s{s_ld}, s{S_WAVE}, 10")
    a(f"s_add_u32 s{s_kg}, s44, s{s_ld}")
    a(f"s_add_u32 s{s_vg}, s{s_kg}, {VF}")
    a(f"s_add_u32 s{s_kg}, s{s_kg}, {KF}")
    a(f"s_lshl_b32 s45, s{s_T}, 10")
    a(f"s_add_u32 s{s_q0}, s44, s45")
    a(f"s_xor_b32 s{s_q1}, s{s_q0}, 1024")
    a("s_lshl_b32 s46, s46, 12")
    a(f"v_and_b32 v{vkp}, 51, v0")
    a(f"v_bfe_u32 v{vt3}, v0, 2, 1")
    a(f"v_lshl_or_b32 v{vkp}, v{vt3}, 3, v{vkp}")
    a(f"v_bfe_u32 v{vt3}, v0, 3, 1")
    a(f"v_lshl_or_b32 v{vkp}, v{vt3}, 2, v{vkp}")
    a(f"v_lshlrev_b32 v{vkp}, 4, v{vkp}")
    a(f"v_add_u32 v{kaddr}, s46, v{vkp}")
    a(f"v_mov_b32 v{IDX}, 0xdddddddd")
    a(f"v_and_b32 v{vt3}, 15, v0")
    a(f"v_lshlrev_b32 v{vt3}, 4, v{vt3}")
    a(f"v_lshrrev_b32 v{vt4}, 5, v0")
    a(f"v_lshl_add_u32 v{vt4}, v{vt4}, 8, v{vt3}")
    a("s_add_u32 s46, s46, 8192")
    a(f"v_add_u32 v{vaddr}, s46, v{vt4}")
    a(f"v_and_b32 v{vt4}, 16, v0")
    a(f"v_cmp_ne_u32 vcc, 0, v{vt4}")
    a(f"v_add_u32 v{vt3}, {VCONST}, v{vt3}")
    a(f"v_mov_b32 v{vstep}, 1")
    a("s_nop 0")
    a(f"v_cndmask_b32 v{vaddr}, v{vaddr}, v{vt3}, vcc")
    a(f"v_cndmask_b32 v{vstep}, v{vstep}, 0, vcc")
    a(f"s_lshl_b32 s44, s{S_WAVE}, 9")
    a(f"v_add_u32 v{vcnt}, s44, v{vt3}")
    a(f"v_and_b32 v{vt4}, 27, v0")
    a(f"v_cmp_eq_u32 vcc, 16, v{vt4}")
    a(f"v_mov_b32 v{vt3}, 0x3f803f80")
    a(f"s_mov_b32 s{s_c}, 0")
    a(f"s_mov_b32 s{s_tgt}, 16")
    for i in range(4):
        a(f"v_cndmask_b32 v{V1+i}, 0, v{vt3}, vcc")
    a("s_mov_b32 exec_lo, 0xffff0000")
    a("s_mov_b32 exec_hi, 0")
    a(f"ds_write_b128 v{vcnt}, {v(V1,4)}")
    a("s_mov_b64 exec, -1")
    a(f"v_mov_b32 v{P}, 0")
    a(f"v_mov_b32 v{P+1}, 0")
    for i in range(16): a(f"v_pk_mov_b32 {v(O[0]+2*i,2)}, {v(P,2)}, {v(P,2)}")
    a(f"s_mov_b32 s{s_slot}, 32768")
    a("s_mov_b32 s60, 99")
    a(f"s_cmp_ge_u32 s{S_WAVE}, 4")
    a("s_cbranch_scc0 L_at_nogst")
    lds_wait_ge(a, "gtag", V_MISC, L_NONCE, "1", GG+1, sleep=2)
    a(f"v_mov_b32 v{GG+3}, v{GG+1}")
    a(f"s_mov_b32 s60, 0")
    a.label("L_at_nogst")
    a(f"s_cmp_eq_u32 s{S_WAVE}, 0")
    a("s_cbranch_scc0 L_at_waitgo")
    a(f"s_lshr_b32 s44, s{S_XCD}, 1")
    a("s_lshl_b32 s44, s44, 1")
    a(f"s_bfe_u32 s45, s{S_LOC}, 0x10001")
    a("s_add_u32 s44, s44, s45")
    a("s_lshl_b32 s44, s44, 10")
    a(f"s_add_u32 s44, s44, {CQ}")
    a(f"v_min_u32 v{vw}, 5, v0")
    a(f"v_lshlrev_b32 v{vw}, 7, v{vw}")
    lds_wait_ge(a, "atpost", V_MISC, L_POST, "4", vt)
    a(f"s_cmp_ge_u32 s{S_LOC}, 24")
    a("s_cbranch_scc1 L_at_pp")
    a(f"s_sleep {o.pdelay}")
    a("s_branch L_at_ppd")
    a.label("L_at_pp")
    a(f"s_lshl_b32 s45, s{S_XCD}, 10")
    a(f"s_add_u32 s45, s45, {CQ + 6*128}")
    poll(a, "atp", vt, None, 45, 1, 4, at=1 if o.apoll & 1 else 0)
    if o.ppdelay: a(f"s_sleep {o.ppdelay}")
    a.label("L_at_ppd")
    st.stamp(2)
    poll(a, "atq", vt, vw, 44, 16, o.psleep, at=6 if o.apoll & 1 else 0)
    if st.en: a(f"s_mov_b32 s101, s{S_SPIN}")
    a(f"ds_write_b32 v{V_MISC}, v{V_ONE} offset:{L_GO}")
    a("s_branch L_at_go")
    a.label("L_at_waitgo")
    lds_wait_ge(a, "atgo", V_MISC, L_GO, "1", vt)
    a.label("L_at_go")
    st.stamp(4)
    def dma(lit=None):
        if lit is not None: a(f"s_add_u32 m0, s{s_ld}, {lit}")
        else: a(f"s_add_u32 m0, s{s_ld}, s{s_slot}")
        a("s_nop 0")
        a(f"buffer_load_dwordx4 v{V_L16}, s[{SWS}:{SWS+3}], s{s_kg} offen sc1 lds")
        a("s_add_u32 m0, m0, 8192")
        a(f"s_add_u32 s{s_kg}, s{s_kg}, 8192")
        a(f"buffer_load_dwordx4 v{V_L16}, s[{SWS}:{SWS+3}], s{s_vg} offen sc1 lds")
        a(f"s_add_u32 s{s_vg}, s{s_vg}, 8192")
    a(f"buffer_load_dwordx4 {v(Q[0],4)}, v{V_L16}, s[{SWS}:{SWS+3}], s{s_q0} offen sc1")
    a(f"buffer_load_dwordx4 {v(Q[1],4)}, v{V_L16}, s[{SWS}:{SWS+3}], s{s_q1} offen sc1")
    dma(0)
    a("s_waitcnt vmcnt(0) lgkmcnt(0)")
    lds_arrive(a, V_MISC, L_ATT)
    dma(16384)
    lds_wait_ge(a, "at0", V_MISC, L_ATT, "8", vt, sleep=0)
    st.stamp(5)
    a(f"ds_read_b128 {v(V0,4)}, v{V_L16}")
    a(f"ds_read_b128 {v(KR,4)}, v{kaddr}")
    a("s_waitcnt lgkmcnt(1)")
    for q in range(2):
        a(f"{MF} {v(S[q],16)}, {v(V0,4)}, {v(Q[q],4)}, 0")
    a(f"ds_read_b128 {v(V0,4)}, v{vaddr}")
    a("s_nop 9")
    def maxtree(dst, src, first):
        if first:
            a(f"v_max3_f32 v{dst}, v{src}, v{src+1}, v{src+2}")
            rest = list(range(3, 16))
        else:
            rest = list(range(0, 16))
        while len(rest) >= 2:
            a(f"v_max3_f32 v{dst}, v{dst}, v{src+rest[0]}, v{src+rest[1]}")
            rest = rest[2:]
        if rest:
            a(f"v_max_f32 v{dst}, v{dst}, v{src+rest[0]}")
    def setC(q):
        a(f"v_mov_b32 v{vt2}, v{vt}")
        a("s_nop 1")
        a(f"v_permlane32_swap_b32 v{vt}, v{vt2}")
        a("s_nop 1")
        a(f"v_max_f32 v{vt}, v{vt}, v{vt2}")
        a(f"v_sub_f32 v{C[q]}, 0, v{vt}")
        a(f"v_sub_f32 v{C[q]+1}, 0, v{vt}")
        for i in range(1, 8):
            a(f"v_pk_mov_b32 {v(C[q]+2*i,2)}, {v(C[q],2)}, {v(C[q],2)}")
    maxtree(vt, S[0], True)
    setC(0)
    a("s_waitcnt lgkmcnt(0)")
    a("s_nop 0")
    maxtree(vt, S[1], True)
    a(f"{MF} {v(S[0],16)}, {v(KR,4)}, {v(Q[0],4)}, {v(C[0],16)}")
    setC(1)
    for i in range(4):
        a(f"v_pk_mov_b32 {v(S[1]+8+2*i,2)}, {v(P,2)}, {v(P,2)}")
    def e(cur, i): a(f"v_exp_f32 v{cur+i}, v{cur+i}")
    c0, c1, c2 = [int(x) for x in o.cuts.split(",")]
    def body(emit, lq):
        def A(s):
            if emit: a(s)
        def w(tag):
            n = lq.need(tag)
            if n is not None: A(f"s_waitcnt lgkmcnt({n})")
        def E(cur, lo, hi):
            if emit:
                for i in range(lo, hi): e(cur, i)
        def rdv(reg, off, tag):
            A(f"ds_read_b128 {v(reg,4)}, v{vaddr} offset:{off}")
            lq.push(tag)
        for tt in range(4):
            for q in range(2):
                cur = S[q]; nxt = S[q ^ 1]
                stp = 2*tt + q
                if o.aprio >= 3 and stp in (0, o.aprio+1):
                    lab = a.newlabel("pr") if emit else ""
                    A(f"s_cmp_ge_u32 s{S_WAVE}, 4")
                    A(f"s_cbranch_scc1 {lab}")
                    A(f"s_setprio {1 if stp == 0 else 0}")
                    if emit: a.label(lab)
                E(cur, 0, c0)
                if q == 1: w("K")
                A(f"{SM} {v(O[q^1],16)}, {v(V1,4)}, {v(nxt+8,8)}, v{IDX}")
                if q == 0:
                    rdv(V1, tt*1024 + 512, "V1")
                if stp == o.xat:
                    if emit: st.abeg()
                    A("s_waitcnt vmcnt(0)")
                    if emit: st.aend(0)
                    A("s_mov_b64 exec, 1")
                    A(f"ds_add_u32 v{V_MISC}, v{V_ONE} offset:{L_ATT}")
                    A("s_mov_b64 exec, -1")
                    lq.push("X")
                if stp == o.yat - 1:
                    A(f"ds_read_b32 v{vcnt}, v{V_MISC} offset:{L_ATT}")
                    lq.push("CNT")
                E(cur, c0, c1)
                A(f"{MF} {v(nxt,16)}, {v(KR,4)}, {v(Q[q^1],4)}, {v(C[q^1],16)}")
                if q == 0:
                    if tt == 3:
                        A(f"v_add_u32 v{kaddr}, s{s_step}, v{kaddr}")
                        A(f"ds_read_b128 {v(KR,4)}, v{kaddr}")
                    else:
                        A(f"ds_read_b128 {v(KR,4)}, v{kaddr} offset:{(tt+1)*1024}")
                    lq.push("K")
                E(cur, c1, c2)
                if q == 0: w("V0")
                A(f"{SM} {v(O[q],16)}, {v(V0,4)}, {v(cur,8)}, v{IDX}")
                if q == 1:
                    if tt == 3:
                        A(f"v_mad_i32_i24 v{vaddr}, v{vstep}, s{s_step}, v{vaddr}")
                        rdv(V0, 0, "V0")
                    else:
                        rdv(V0, (tt+1)*1024, "V0")
                if stp == o.yat:
                    w("CNT")
                    A(f"v_cmp_gt_u32 vcc, s{s_tgt}, v{vcnt}")
                    A(f"s_cmp_lt_u32 s{s_c}, 6")
                    A("s_cbranch_vccnz L_at_slow")
                    if emit:
                        a.label("L_at_back")
                        a("s_cbranch_scc0 L_at_dmadone")
                        st.abeg()
                        dma()
                        st.aend(2)
                        a(f"s_add_u32 s{s_slot}, s{s_slot}, 16384")
                        a(f"s_cmp_eq_u32 s{s_slot}, 49152")
                        a(f"s_cselect_b32 s{s_slot}, 0, s{s_slot}")
                        a(f"s_cmp_eq_u32 s{s_c}, s60")
                        a("s_cbranch_scc1 L_at_gst")
                        a.label("L_at_dmadone")
                E(cur, c2, 16)
    lq = LQ()
    body(False, lq)
    steady = list(lq.q)
    if o.aprio:
        a(f"s_cmp_lt_u32 s{S_WAVE}, 4")
        a("s_cbranch_scc1 L_at_np")
        a("s_setprio 1")
        a.label("L_at_np")
    st.stamp(8)
    a(".p2align 6")
    a.label("L_at_loop")
    assert o.xat < o.yat - 1 and o.yat <= 5
    a(f"s_bitcmp1_b32 0x24, s{s_c}")
    a(f"s_mov_b32 s44, {(-32768) & 0xffffffff}")
    a(f"s_cselect_b32 s{s_step}, s44, 16384")
    body(True, lq)
    assert lq.q == steady, (lq.q, steady)
    a(f"s_add_u32 s{s_c}, s{s_c}, 1")
    a(f"s_add_u32 s{s_tgt}, s{s_tgt}, 8")
    a(f"s_cmp_lt_u32 s{s_c}, 8")
    a("s_cbranch_scc1 L_at_loop")
    st.stamp(9)
    a(f"{SM} {v(O[1],16)}, {v(V1,4)}, {v(S[1]+8,8)}, v{IDX}")
    a(f"s_and_b32 s44, s{S_WAVE}, 3")
    a("s_lshl_b32 s44, s44, 12")
    a(f"s_lshr_b32 s45, s{S_WAVE}, 2")
    a("s_lshl_b32 s45, s45, 15")
    a("s_add_u32 s44, s44, s45")
    a(f"v_add_u32 v{kaddr}, s44, v{V_L16}")
    a(f"v_xor_b32 v{vaddr}, 32768, v{kaddr}")
    a(f"s_and_b32 s44, s{S_WAVE}, 3")
    a(f"v_lshl_add_u32 v{vt3}, s44, 2, v{V_MISC}")
    a(f"s_lshl_b32 s46, s{s_T}, 5")
    a(f"s_add_u32 s46, s46, s{s_head}")
    a("s_lshl_b32 s46, s46, 10")
    a(f"s_add_u32 s{s_q0}, s46, {OF}")
    a(f"s_lshl_b32 s44, s{s_T}, 1")
    a(f"s_lshr_b32 s45, s{s_head}, 4")
    a("s_add_u32 s44, s44, s45")
    a("s_lshl_b32 s44, s44, 7")
    a(f"s_add_u32 s{s_q1}, s44, {CO}")
    for i in range(3):
        a(f"ds_write_b128 v{kaddr}, {v(O[1]+4*i,4)} offset:{i*1024}")
    a("s_waitcnt lgkmcnt(0)")
    lds_arrive(a, vt3, L_PAIR)
    a(f"s_mov_b32 s{S_SPIN}, 0")
    a.label("L_at_pair")
    a(f"ds_read_b32 v{vt}, v{vt3} offset:{L_PAIR}")
    for i in range(3):
        a(f"ds_read_b128 {v(O[1]+4*i,4)}, v{vaddr} offset:{i*1024}")
    a(f"s_add_u32 s{S_SPIN}, s{S_SPIN}, 1")
    a("s_waitcnt lgkmcnt(0)")
    a(f"v_cmp_gt_u32 vcc, 2, v{vt}")
    a(f"s_cmp_gt_u32 s{S_SPIN}, 2000000")
    a("s_cbranch_scc1 L_at_pok")
    a("s_cbranch_vccz L_at_pok")
    a("s_sleep 1")
    a("s_branch L_at_pair")
    a.label("L_at_pok")
    a(f"v_add_f32 v{O[0]+8}, v{O[0]+8}, v{O[1]+8}")
    for i in range(4):
        a(f"v_pk_add_f32 {v(O[0]+2*i,2)}, {v(O[0]+2*i,2)}, {v(O[1]+2*i,2)}")
    a(f"v_mov_b32 v{vt}, {f32bits(2.0**30)}")
    a(f"v_cmp_nle_f32 vcc, v{O[0]+8}, v{vt}")
    a(f"v_pk_mul_f32 {v(S[0],2)}, {v(O[0],2)}, 0")
    for i in range(1, 4):
        a(f"v_pk_fma_f32 {v(S[0],2)}, {v(O[0]+2*i,2)}, 0, {v(S[0],2)}")
    a(f"v_cmp_u_f32 s[44:45], v{S[0]}, v{S[0]+1}")
    a(f"v_rcp_f32 v{vt}, v{O[0]+8}")
    a("s_nop 2")
    a("s_or_b64 vcc, vcc, s[44:45]")
    a("s_cbranch_vccnz L_at_fallback")
    a.label("L_at_fin")
    for i in range(4):
        a(f"v_pk_mul_f32 {v(O[0]+2*i,2)}, {v(O[0]+2*i,2)}, {v(vt,2)} op_sel_hi:[1,0]")
    for i in range(4):
        a(f"v_cvt_pk_bf16_f32 v{P+i}, v{O[0]+2*i}, v{O[0]+2*i+1}")
    a(f"buffer_store_dwordx4 {v(P,4)}, v{V_L16}, s[{SWS}:{SWS+3}], s{s_q0} offen sc1")
    st.stamp(10)
    if o.done:
        a(f"ds_read_b32 v{vt2}, v{V_MISC} offset:{L_NONCE}")
        a(f"v_mov_b32 v{vt}, 1")
        a(f"s_add_u32 s44, s{s_q1}, {DONE}")
        a("s_waitcnt vmcnt(0)")
        a("s_mov_b64 exec, 1")
        a(f"buffer_atomic_add v{vt}, off, s[{SWS}:{SWS+3}], s{s_q1} sc0 sc1")
        a("s_waitcnt vmcnt(0) lgkmcnt(0)")
        a(f"v_cmp_eq_u32 vcc, 15, v{vt}")
        a("s_cbranch_vccz L_at_notlast")
        a(f"buffer_store_dword v{vt2}, off, s[{SWS}:{SWS+3}], s44 sc1")
        a.label("L_at_notlast")
        a("s_mov_b64 exec, -1")
    else:
        post(a, s_q1)
    st.stamp(11)
    if st.en and not getattr(o, "noffn", 0):
        st.stamp(6); st.real(7)
        for i in range(2 if o.early else 3): a("s_barrier")
        a("s_sleep 40")
        st.flush(SWS, S_WAVE, 4)
        a("s_endpgm")
    finish(a, st)
    a.label("L_at_gst")
    a(f"s_lshl_b32 s44, s{s_tok}, 3")
    a(f"s_add_u32 s44, s44, {GA}")
    a("s_mov_b32 exec_lo, 0")
    a("s_brev_b32 exec_hi, 1")
    a(f"buffer_store_dwordx4 {v(GG,4)}, off, s[{SWS}:{SWS+3}], s44 sc1")
    a("s_mov_b64 exec, -1")
    a("s_branch L_at_dmadone")
    a.label("L_at_slow")
    st.abeg()
    lds_wait_ge(a, "ats", V_MISC, L_ATT, f"s{s_tgt}", vcnt)
    st.aend(1)
    a(f"s_cmp_lt_u32 s{s_c}, 6")
    a("s_branch L_at_back")
    def fallback():
        a.label("L_at_fallback")
        a(f"s_lshl_b32 s46, s{s_head}, 16")
        a(f"s_add_u32 s{s_kg}, s46, {KF}")
        a(f"v_mov_b32 v{vt}, 0xff800000")
        a(f"s_mov_b32 s{s_c}, 0")
        a.label("L_at_fb1")
        a(f"buffer_load_dwordx4 {v(KR,4)}, v{V_L16}, s[{SWS}:{SWS+3}], s{s_kg} offen sc1")
        a(f"s_add_u32 s{s_kg}, s{s_kg}, 1024")
        a("s_waitcnt vmcnt(0)")
        a(f"{MF} {v(S[0],16)}, {v(KR,4)}, {v(Q[0],4)}, 0")
        a("s_nop 15")
        maxtree(vt, S[0], False)
        a(f"s_add_u32 s{s_c}, s{s_c}, 1")
        a(f"s_cmp_lt_u32 s{s_c}, 64")
        a("s_cbranch_scc1 L_at_fb1")
        setC(0)
        for i in range(16):
            a(f"v_mov_b32 v{O[0]+i}, 0")
        a(f"v_and_b32 v{vt}, 15, v0")
        a(f"v_lshlrev_b32 v{vt}, 4, v{vt}")
        a(f"v_lshrrev_b32 v{vt2}, 5, v0")
        a(f"v_lshl_add_u32 v{vaddr}, v{vt2}, 8, v{vt}")
        a(f"s_add_u32 s{s_kg}, s46, {KF}")
        a(f"s_add_u32 s{s_vg}, s46, {VF}")
        a(f"s_mov_b32 s{s_c}, 0")
        a("s_mov_b32 s44, 0xffff")
        a("s_mov_b32 s45, 0xffff")
        a.label("L_at_fb2")
        a(f"buffer_load_dwordx4 {v(KR,4)}, v{vkp}, s[{SWS}:{SWS+3}], s{s_kg} offen sc1")
        a("s_mov_b64 exec, s[44:45]")
        a(f"buffer_load_dwordx4 {v(V0,4)}, v{vaddr}, s[{SWS}:{SWS+3}], s{s_vg} offen sc1")
        a(f"buffer_load_dwordx4 {v(V1,4)}, v{vaddr}, s[{SWS}:{SWS+3}], s{s_vg} offen offset:512 sc1")
        a("s_mov_b64 exec, -1")
        a(f"s_add_u32 s{s_kg}, s{s_kg}, 1024")
        a(f"s_add_u32 s{s_vg}, s{s_vg}, 1024")
        a("s_waitcnt vmcnt(0)")
        a(f"{MF} {v(S[0],16)}, {v(KR,4)}, {v(Q[0],4)}, {v(C[0],16)}")
        a("s_nop 15")
        for i in range(16): e(S[0], i)
        a("s_nop 2")
        a(f"{SM} {v(O[0],16)}, {v(V0,4)}, {v(S[0],8)}, v{IDX}")
        a(f"{SM} {v(O[0],16)}, {v(V1,4)}, {v(S[0]+8,8)}, v{IDX}")
        a("s_nop 15")
        a(f"s_add_u32 s{s_c}, s{s_c}, 1")
        a(f"s_cmp_lt_u32 s{s_c}, 64")
        a("s_cbranch_scc1 L_at_fb2")
        a(f"v_rcp_f32 v{vt}, v{O[0]+8}")
        a("s_branch L_at_fin")
    return R.hi, fallback

def fbar(a, vt):
    tag = a.newlabel("fb")[2:]
    a(f"s_add_u32 s{S_FBT}, s{S_FBT}, 4")
    lds_arrive(a, V_MISC, L_FB)
    lds_wait_ge(a, tag, V_MISC, L_FB, f"s{S_FBT}", vt, sleep=2)

def f_waves(a, st):
    t0 = 4
    vx, vw, uxaddr, uwaddr = 8, [9, 10, 11], [16, 17, 18, 19], 12
    vsrc, wa = 14, 15
    s_fw, s_rb, s_lc, s_stage, s_cb, s_T2, s_N2, s_lb = 48, 49, 50, 53, 54, 60, 61, 62
    s_urb, s_cg, s_u0, s_skip, s_dx, s_dw = 51, 52, 55, 56, 57, 58
    s_lx, s_lw, s_xoff, s_woff = 63, 64, 65, 66
    hi = []
    R = Regs(20)
    xaddr = [R.alloc() for _ in range(4)]; waddr = R.alloc()
    XF = [[R.alloc(4) for _ in range(2)] for _ in range(2)]
    WF = [[R.alloc(4) for _ in range(2)] for _ in range(2)]
    ACC = [[R.alloc(16) for _ in range(2)] for _ in range(2)]
    TMP = R.alloc(16)
    hi.append(R.hi)
    a(f"s_sub_u32 s{s_fw}, s{S_WAVE}, 8")
    a(f"s_mov_b32 s{S_FBT}, 0")
    tile_ids(a, s_rb, s_lc)
    a(f"s_lshr_b32 s44, s{S_XCD}, 2")
    a("s_mul_i32 s44, s44, 6")
    a(f"s_add_u32 s{s_cb}, s44, s{s_lc}")
    a(f"s_and_b32 s44, s{s_fw}, 1")
    a(f"s_lshr_b32 s46, s{s_fw}, 1")
    a(f"v_and_b32 v{t0}, 31, v0")
    a(f"v_lshrrev_b32 v{t0+1}, 5, v0")
    a(f"v_bfe_u32 v{t0+2}, v{t0}, 1, 3")
    a(f"v_xor_b32 v{t0+2}, v{t0+2}, v{t0+1}")
    a(f"v_lshlrev_b32 v{t0+2}, 4, v{t0+2}")
    a(f"v_lshl_add_u32 v{t0}, v{t0}, 7, v{t0+2}")
    a("s_lshl_b32 s45, s44, 13")
    a(f"s_add_u32 s45, s45, {TS0+TSTR}")
    a(f"s_sub_u32 s47, s45, {TS0+TSTR-UX[0]}")
    for kk in range(4):
        a(f"v_xor_b32 v{t0+3}, {kk*32}, v{t0}")
        a(f"v_add_u32 v{xaddr[kk]}, s45, v{t0+3}")
        a(f"v_add_u32 v{uxaddr[kk]}, s47, v{t0+3}")
    a(f"v_bfe_u32 v{t0}, v0, 2, 2")
    a(f"v_bfe_u32 v{t0+2}, v0, 4, 1")
    a(f"v_and_b32 v{t0+3}, 3, v0")
    a(f"v_lshlrev_b32 v{t0+3}, 3, v{t0+3}")
    a(f"v_lshl_add_u32 v{uwaddr}, v{t0+1}, 3, v{t0}")
    a(f"v_lshl_add_u32 v{waddr}, v{uwaddr}, 7, v{t0+3}")
    a(f"v_mul_u32_u24 v{uwaddr}, 192, v{uwaddr}")
    a(f"v_mul_u32_u24 v{vsrc}, {WIMG}, v{t0+2}")
    a(f"v_add3_u32 v{uwaddr}, v{uwaddr}, v{vsrc}, v{t0+3}")
    a(f"v_add_u32 v{uwaddr}, {UW[0]}, v{uwaddr}")
    a(f"v_lshlrev_b32 v{wa}, 5, v{t0}")
    a(f"v_and_b32 v{wa}, 64, v{wa}")
    a("s_lshl_b32 s45, s46, 6")
    a(f"v_xor_b32 v{wa}, s45, v{wa}")
    a(f"v_mul_u32_u24 v{vsrc}, {TU-TG}, v{t0+2}")
    a(f"v_add3_u32 v{waddr}, v{waddr}, v{vsrc}, v{wa}")
    a(f"v_add_u32 v{waddr}, {TS0+TSTR+TG}, v{waddr}")
    a(f"v_lshl_add_u32 v{t0+3}, v{t0+2}, 5, v{t0+3}")
    a(f"v_lshl_add_u32 v{t0}, v{t0+1}, 2, v{t0}")
    a(f"v_lshl_add_u32 v{t0+3}, v{t0}, 7, v{t0+3}")
    a(f"v_add_u32 v{wa}, v{wa}, v{t0+3}")
    a(f"s_lshl_b32 s{s_lb}, s{s_fw}, 14")
    a(f"s_add_u32 s{s_lb}, s{s_lb}, {STG}")
    a(f"s_lshl_b32 s44, s{S_XCD}, 2")
    a(f"s_and_b32 s45, s{S_LOC}, 3")
    a(f"s_add_u32 s{s_T2}, s44, s45")
    a(f"s_lshr_b32 s{s_N2}, s{S_LOC}, 2")
    a(f"v_lshrrev_b32 v{t0}, 3, v0")
    a(f"v_and_b32 v{t0+1}, 7, v0")
    a(f"v_lshlrev_b32 v{t0+3}, 1, v{t0}")
    a(f"v_and_b32 v{t0+3}, 4, v{t0+3}")
    a(f"v_xor_b32 v{t0+3}, v{t0+1}, v{t0+3}")
    a(f"v_lshlrev_b32 v{t0+3}, 4, v{t0+3}")
    a(f"v_lshl_add_u32 v{t0+3}, v{t0}, 10, v{t0+3}")
    a(f"s_lshl_b32 s44, s{s_N2}, 7")
    a(f"v_add_u32 v{vsrc}, s44, v{t0+3}")
    def zero(r, n):
        a(f"v_mov_b32 v{r}, 0")
        a(f"v_mov_b32 v{r+1}, 0")
        for i in range(1, n//2): a(f"v_pk_mov_b32 {v(r+2*i,2)}, {v(r,2)}, {v(r,2)}")
    up_dma_setup(a, t0, vx, vw, s_fw, s_urb, s_cg, s_u0, s_lx, s_lw, s_xoff, s_woff)
    uw2 = 13
    a(f"s_lshr_b32 s46, s{s_fw}, 1")
    a(f"s_cmp_eq_u32 s{s_cg}, 4")
    a("s_cselect_b32 s44, 2, 3")
    a("s_mul_i32 s44, s44, s46")
    a("s_lshl_b32 s47, 1, s46")
    a(f"s_cmp_eq_u32 s{s_cg}, 5")
    a(f"s_cselect_b32 s{s_skip}, s47, 0")
    a(f"s_cmp_eq_u32 s{s_cg}, 6")
    a(f"s_cselect_b32 s{s_skip}, 3, s{s_skip}")
    a("s_cselect_b32 s45, s44, 0")
    a("s_add_u32 s45, s45, 2")
    a("s_lshl_b32 s47, s45, 5")
    a(f"v_add_u32 v{uw2}, s47, v{uwaddr}")
    a("s_lshl_b32 s47, s44, 5")
    a(f"v_add_u32 v{uwaddr}, s47, v{uwaddr}")
    a("s_lshl_b32 s45, s45, 8")
    a(f"s_add_u32 s{s_cg}, s45, s44")
    a(f"s_mov_b32 s{s_dx}, {UX[1]-UX[0]}")
    a(f"s_add_u32 s{s_dw}, s{s_lw}, {3*UWS}")
    zero(ACC[0][0], 64)
    a(f"s_mov_b32 s{s_stage}, 0")
    a("s_waitcnt lgkmcnt(0)")
    srd(a, SWS, 24, 25, WS_BYTES)
    up_srd(a, s_fw, s_u0)
    a(f"s_cmp_lt_u32 s{S_LOC}, 24")
    a("s_cbranch_scc1 L_E_work")
    for i in range(8): a("s_barrier")
    a("s_branch L_E_done")
    a.label("L_E_work")
    def rx(kk, buf, t): a(f"ds_read_b128 {v(XF[buf][t],4)}, v{xaddr[kk]} offset:{t*4096}")
    def rw(kk, buf, u, h): a(f"ds_read_b64_tr_b16 {v(WF[buf][u]+2*h,2)}, v{waddr} offset:{kk*2048+u*32+h*512}")
    a("s_barrier")
    st.stamp(2)
    if st.en: a("s_waitcnt lgkmcnt(0)")
    rx(0, 0, 0); rw(0, 0, 0, 0); rw(0, 0, 0, 1); rx(0, 0, 1); rw(0, 0, 1, 0); rw(0, 0, 1, 1)
    a(f"s_cmp_ge_u32 s{s_cb}, 8")
    a("s_cbranch_scc1 L_E_loopV")
    def loop(tag):
        def mm(buf, u, t):
            A_, B_ = (XF[buf][t], WF[buf][u]) if tag == "V" else (WF[buf][u], XF[buf][t])
            a(f"{MF} {v(ACC[u][t],16)}, {v(A_,4)}, {v(B_,4)}, {v(ACC[u][t],16)}")
        a.label(f"L_E_loop{tag}")
        for kk in range(3):
            b = kk & 1; n = b ^ 1
            a("s_waitcnt lgkmcnt(3)")
            mm(b, 0, 0)
            rx(kk+1, n, 0); rw(kk+1, n, 0, 0)
            a("s_waitcnt lgkmcnt(4)")
            mm(b, 0, 1)
            rw(kk+1, n, 0, 1); rx(kk+1, n, 1)
            a("s_waitcnt lgkmcnt(4)")
            mm(b, 1, 0)
            rw(kk+1, n, 1, 0); rw(kk+1, n, 1, 1)
            mm(b, 1, 1)
            if kk == 2:
                a(f"s_add_u32 s{s_stage}, s{s_stage}, 1")
                a(f"s_lshr_b32 s44, 0x24, s{s_stage}")
                a("s_bitcmp1_b32 s44, 0")
                a(f"s_mov_b32 s45, {(-2*TSTR) & 0xffffffff}")
                a(f"s_cselect_b32 s44, s45, {TSTR}")
        a("s_waitcnt lgkmcnt(3)")
        mm(1, 0, 0)
        for r in xaddr + [waddr]:
            a(f"v_add_u32 v{r}, s44, v{r}")
        a(f"s_cmp_eq_u32 s{s_stage}, 8")
        a("s_waitcnt lgkmcnt(0)")
        mm(1, 0, 1)
        a(f"s_cbranch_scc1 L_E_tail{tag}")
        a("s_barrier")
        rx(0, 0, 0); rw(0, 0, 0, 0); rw(0, 0, 0, 1)
        mm(1, 1, 0)
        rx(0, 0, 1); rw(0, 0, 1, 0); rw(0, 0, 1, 1)
        mm(1, 1, 1)
        a(f"s_branch L_E_loop{tag}")
        a.label(f"L_E_tail{tag}")
        mm(1, 1, 0)
        mm(1, 1, 1)
    loop("T")
    a(f"v_mov_b32 v{t0}, v{V_L16}")
    a(f"s_mov_b32 s47, {4*65536}")
    a("s_branch L_E_epiQ")
    loop("V")
    a(f"v_and_b32 v{t0}, 15, v0")
    a(f"v_lshlrev_b32 v{t0}, 4, v{t0}")
    a(f"v_lshrrev_b32 v{t0+1}, 5, v0")
    a(f"v_lshl_add_u32 v{t0}, v{t0+1}, 8, v{t0}")
    a(f"v_bfe_u32 v{t0+1}, v0, 4, 1")
    a(f"v_lshl_add_u32 v{t0}, v{t0+1}, 18, v{t0}")
    a("s_mov_b32 s47, 512")
    a.label("L_E_epiQ")
    st.stamp(3)
    a(f"s_lshl_b32 s44, s{s_cb}, 19")
    a(f"s_lshr_b32 s45, s{s_fw}, 1")
    a("s_lshl_b32 s45, s45, 17")
    a("s_add_u32 s44, s44, s45")
    a(f"s_lshl_b32 s45, s{s_rb}, 12")
    a("s_add_u32 s44, s44, s45")
    a(f"s_and_b32 s45, s{s_fw}, 1")
    a("s_lshl_b32 s45, s45, 11")
    a("s_add_u32 s44, s44, s45")
    a("s_add_u32 s45, s44, s47")
    a(f"s_cmp_lt_u32 s{s_cb}, 4")
    a("s_cbranch_scc0 L_E_noscale")
    a(f"s_mov_b32 s46, {f32bits(QSCALE)}")
    a("s_mov_b32 s47, s46")
    for i in range(32):
        a(f"v_pk_mul_f32 {v(ACC[0][0]+2*i,2)}, {v(ACC[0][0]+2*i,2)}, s[46:47]")
    a.label("L_E_noscale")
    n = 0
    for u in range(2):
        for t in range(2):
            for half in range(2):
                tm = TMP + 4*(n & 3); n += 1
                src = ACC[u][t] + 8*half
                for i in range(4):
                    a(f"v_cvt_pk_bf16_f32 v{tm+i}, v{src+2*i}, v{src+2*i+1}")
                a(f"buffer_store_dwordx4 {v(tm,4)}, v{t0}, s[{SWS}:{SWS+3}], s{44+half} offen offset:{t*1024} sc1")
        if u == 0:
            a("s_add_u32 s44, s44, 65536")
            a("s_add_u32 s45, s45, 65536")
    if o.pre == 1: lds_arrive(a, V_MISC, L_ST)
    a(f"s_and_b32 s44, s{s_cb}, 3")
    a("s_lshl_b32 s44, s44, 1")
    a(f"s_lshr_b32 s45, s{s_fw}, 1")
    a("s_add_u32 s44, s44, s45")
    a("s_lshl_b32 s44, s44, 3")
    a(f"s_lshr_b32 s45, s{s_cb}, 2")
    a("s_lshl_b32 s45, s45, 1")
    a("s_add_u32 s44, s44, s45")
    a(f"s_and_b32 s45, s{s_fw}, 1")
    a("s_add_u32 s44, s44, s45")
    a("s_lshl_b32 s44, s44, 7")
    a(f"s_add_u32 s44, s44, {CQ}")
    lds_wait_ge(a, "tg1", V_MISC, L_NONCE, "1", t0+1)
    post(a, 44)
    a(f"s_add_u32 s44, s{S_LOC}, s{s_fw}")
    a("s_cmp_eq_u32 s44, 0")
    a("s_cbranch_scc0 L_E_done2")
    a(f"s_lshl_b32 s44, s{S_XCD}, 10")
    a(f"s_add_u32 s44, s44, {CQ + 6*128}")
    a("s_mov_b64 exec, 1")
    a(f"buffer_atomic_add v{V_ONE}, off, s[{SWS}:{SWS+3}], s44 sc1")
    a("s_mov_b64 exec, -1")
    a("s_branch L_E_done2")
    a.label("L_E_done")
    if o.pre == 1: lds_arrive(a, V_MISC, L_ST)
    lds_wait_ge(a, "tg2", V_MISC, L_NONCE, "1", t0+1)
    a.label("L_E_done2")
    lds_arrive(a, V_MISC, L_POST)
    st.stamp(4)
    if o.noffn: finish(a, st)
    R = Regs(20)
    XF = [[R.alloc(4) for _ in range(2)] for _ in range(2)]
    WF = [R.alloc(4) for _ in range(3)]
    UACC = [[R.alloc(16) for _ in range(2)] for _ in range(3)]
    hi.append(R.hi)
    def up_groups():
        g = up_dma_groups(vx, vw, s_lx, s_lw, s_xoff, s_woff)
        g[3] += [f"s_add_u32 s{s_xoff}, s{s_xoff}, 128",
                 f"s_and_b32 s{s_xoff}, s{s_xoff}, 1023",
                 f"s_add_u32 s{s_lx}, s{s_lx}, s{s_dx}",
                 f"s_sub_u32 s{s_dx}, 0, s{s_dx}"]
        g[9] += [f"s_add_u32 s{s_woff}, s{s_woff}, {64*2752}",
                 f"s_cmp_eq_u32 s{s_woff}, {512*2752}",
                 f"s_cselect_b32 s{s_woff}, 0, s{s_woff}",
                 f"s_add_u32 s{s_lw}, s{s_lw}, {UWS}",
                 f"s_cmp_eq_u32 s{s_lw}, s{s_dw}",
                 f"s_cselect_b32 s44, {3*UWS}, 0",
                 f"s_sub_u32 s{s_lw}, s{s_lw}, s44"]
        return g
    zero(UACC[0][0], 96)
    a(f"s_setprio {o.fprio}")
    if o.upat == 9: lds_wait_ge(a, "upgo", V_MISC, L_POST, "4", t0, sleep=2)
    if o.upat == 10: lds_wait_ge(a, "upgo", V_MISC, L_ATT, "8", t0, sleep=4)
    if o.upat == 12: lds_wait_ge(a, "upgo", V_MISC, L_GO, "1", t0, sleep=2)
    if o.udelay: a(f"s_sleep {o.udelay}")
    if o.pre == 3:
        for grp in up_groups() + up_groups():
            for l in grp: a(l)
    elif o.pre:
        g = up_groups()
        if o.pre == 1:
            for l in g[3][3:] + g[9][3:]: a(l)
            a(f"s_mov_b32 s{S_FBT}, 4")
        else:
            for grp in g:
                for l in grp: a(l)
        for grp in g:
            for l in grp: a(l)
        a(f"s_mov_b32 s96, s{SB+2}")
        a(f"s_mov_b32 s97, s{s_lx}")
        a(f"s_mov_b32 s98, s{s_lw}")
        a(f"s_mov_b32 s{SA+2}, 0")
        a(f"s_mov_b32 s{SB+2}, 0")
        a(f"s_mov_b32 s{s_lx}, {LDS_TOTAL}")
        a(f"s_mov_b32 s{s_lw}, {LDS_TOTAL}")
    else:
        for grp in up_groups() + up_groups()[4:]:
            for l in grp: a(l)
    a(f"s_mov_b32 s{s_stage}, 0")
    a(f"s_mov_b32 s{s_rb}, {UX[1]-UX[0]}")
    a(f"s_mov_b32 s{s_lc}, {UWS}")
    def rd_x(kk, buf):
        for t in range(2):
            a(f"ds_read_b128 {v(XF[buf][t],4)}, v{uxaddr[kk]} offset:{t*4096}")
    def rd_w(kk, u):
        off = kk*16*192 + (u*32 if u < 2 else 0)
        ad = uwaddr if u < 2 else uw2
        a(f"ds_read_b64_tr_b16 {v(WF[u],2)}, v{ad} offset:{off}")
        a(f"ds_read_b64_tr_b16 {v(WF[u]+2,2)}, v{ad} offset:{off+4*192}")
    def nops(n):
        if n > 0: a(f"s_nop {n-1}")
    cnt = [0, o.mprio]
    def umm(u, buf, fill=None, after=3):
        for t in range(2):
            a(f"{MF} {v(UACC[u][t],16)}, {v(WF[u],4)}, {v(XF[buf][t],4)}, {v(UACC[u][t],16)}")
            if o.hp:
                want = 2 if (fill and cnt[0] < o.hp) else o.mprio
                if want != cnt[1]: a(f"s_setprio {want}"); cnt[1] = want
                cnt[0] += 1
            if fill:
                for _ in range(o.dper):
                    if fill:
                        for l in fill.pop(0): a(l)
            else:
                nops(o.fpace - (after if t == 1 else 0))
    st.abeg()
    if o.pre != 1: a(f"s_waitcnt vmcnt({10 if o.pre else 6})")
    fbar(a, t0)
    st.aend(2)
    rd_x(0, 0)
    for u in range(3): rd_w(0, u)
    if o.upause == -1: lds_wait_ge(a, "upp0", V_MISC, L_ATT, "8", t0, sleep=4)
    a(f"s_setprio {o.mprio}")
    def umm_skip(u, buf):
        for t in range(2):
            lab = a.newlabel("upskip")
            a(f"s_bitcmp1_b32 s{s_skip}, {t}")
            a(f"s_cbranch_scc0 {lab}")
            a(f"{MF} {v(UACC[u][t],16)}, {v(WF[u],4)}, {v(XF[buf][t],4)}, {v(UACC[u][t],16)}")
            a.label(lab)
        if o.hp and cnt[1] != o.mprio:
            a(f"s_setprio {o.mprio}"); cnt[1] = o.mprio
    if o.pre == 3:
        a.label("L_ub_loop")
        for kk in range(4):
            buf = kk & 1
            for u in range(3):
                younger = (2-u)*2 + (0 if (u == 0 or kk == 3) else 2 + 2*u)
                a(f"s_waitcnt lgkmcnt({younger})")
                if u == 2: umm_skip(u, buf)
                else: umm(u, buf)
                if kk < 3:
                    if u == 0: rd_x(kk+1, buf ^ 1)
                    rd_w(kk+1, u)
        for r in uxaddr:
            a(f"v_add_u32 v{r}, s{s_rb}, v{r}")
        a(f"v_add_u32 v{uwaddr}, s{s_lc}, v{uwaddr}")
        a(f"v_add_u32 v{uw2}, s{s_lc}, v{uw2}")
        a(f"s_sub_u32 s{s_rb}, 0, s{s_rb}")
        a(f"s_add_u32 s{s_stage}, s{s_stage}, 1")
        a(f"s_setprio {o.fprio}")
        a(f"s_cmp_eq_u32 s{s_stage}, 2")
        a("s_cbranch_scc0 L_ub_n1")
        lds_wait_ge(a, "upb2", V_MISC, L_ATT, "8", t0, sleep=2)
        for grp in up_groups() + up_groups()[4:]:
            for l in grp: a(l)
        a("s_waitcnt vmcnt(6)")
        a(f"s_mov_b32 s{s_lc}, {(-2*UWS) & 0xffffffff}")
        a("s_branch L_ub_n2")
        a.label("L_ub_n1")
        a("s_waitcnt vmcnt(0)")
        a.label("L_ub_n2")
        fbar(a, t0)
        a(f"s_setprio {o.mprio}")
        rd_x(0, 0)
        for u in range(3): rd_w(0, u)
        a(f"s_cmp_eq_u32 s{s_stage}, 1")
        a("s_cbranch_scc1 L_ub_loop")
    if o.upwarm:
        srd(a, SC, 16, 17, 1376*1024 if (o.w0 == 0 or (o.pre == 3 and o.w0 == 2)) else 0)
        a(f"s_lshl_b32 s44, s{S_LOC}, 2")
        a(f"s_add_u32 s44, s44, s{s_fw}")
        a("s_lshl_b32 s54, s44, 10")
        a("s_mov_b32 s59, s54")
    a.label("L_up_loop")
    groups = up_groups()
    if o.upwarm:
        wl = [f"buffer_load_dwordx4 v[160:163], v{V_L16}, s[{SC}:{SC+3}], s59 offen", "s_add_u32 s59, s59, 131072"]
        groups.append(wl * (o.upwarm // 2)); groups.append(wl * (o.upwarm - o.upwarm // 2))
    for kk in range(3):
        buf = kk & 1
        for u in range(3):
            younger = (2-u)*2 + (0 if u == 0 else 2 + 2*u)
            a(f"s_waitcnt lgkmcnt({younger})")
            if u == 2: umm_skip(u, buf)
            else: umm(u, buf, groups, 5 if u == 0 else 3)
            if u == 0: rd_x(kk+1, buf ^ 1)
            rd_w(kk+1, u)
    assert not groups
    a("s_waitcnt lgkmcnt(4)")
    umm(0, 1)
    a(f"s_cmp_eq_u32 s{s_stage}, 7")
    a("s_cbranch_scc1 L_up_last")
    st.abeg()
    a(f"s_waitcnt vmcnt({6 + o.upwarm}) lgkmcnt(0)")
    st.aend(0)
    a(f"s_add_u32 s{S_FBT}, s{S_FBT}, 4")
    lds_arrive(a, V_MISC, L_FB)
    umm(1, 1)
    a(f"s_setprio {o.fprio}")
    for r in uxaddr:
        a(f"v_add_u32 v{r}, s{s_rb}, v{r}")
    a(f"v_add_u32 v{uwaddr}, s{s_lc}, v{uwaddr}")
    a(f"v_add_u32 v{uw2}, s{s_lc}, v{uw2}")
    st.abeg()
    lds_wait_ge(a, "upb", V_MISC, L_FB, f"s{S_FBT}", t0, sleep=1)
    if o.pre in (1, 2):
        a(f"s_cmp_eq_u32 s{s_stage}, 1")
        a("s_cbranch_scc0 L_up_n1")
        lds_wait_ge(a, "upb2", V_MISC, L_ATT, "8", t0, sleep=2)
        a(f"s_mov_b32 s{SA+2}, {2048*1024}")
        a(f"s_mov_b32 s{SB+2}, s96")
        a(f"s_mov_b32 s{s_lx}, s97")
        a(f"s_mov_b32 s{s_lw}, s98")
        a(f"s_movk_i32 s{s_xoff}, 256")
        a(f"s_mov_b32 s{s_woff}, {2*64*2752}")
        for grp in up_groups() + up_groups()[4:]:
            for l in grp: a(l)
        a("s_waitcnt vmcnt(6)")
        fbar(a, t0)
        a.label("L_up_n1")
    st.aend(1)
    a(f"s_setprio {o.mprio}")
    rd_x(0, 0)
    rd_w(0, 0); rd_w(0, 1)
    umm_skip(2, 1)
    rd_w(0, 2)
    a(f"s_sub_u32 s{s_rb}, 0, s{s_rb}")
    a(f"s_add_u32 s{s_stage}, s{s_stage}, 1")
    a(f"s_bitcmp1_b32 0x24, s{s_stage}")
    a(f"s_mov_b32 s44, {(-2*UWS) & 0xffffffff}")
    a(f"s_cselect_b32 s{s_lc}, s44, {UWS}")
    a(f"s_cmp_eq_u32 s{s_stage}, 7")
    a(f"s_cselect_b32 s{SA+2}, 0, s{SA+2}")
    a(f"s_cmp_eq_u32 s{s_stage}, 6")
    a(f"s_cselect_b32 s{SB+2}, 0, s{SB+2}")
    if o.upwarm:
        w1 = o.w0 + (11 + o.upwarm - 1) // o.upwarm
        if o.w0:
            a(f"s_cmp_eq_u32 s{s_stage}, {o.w0}")
            a(f"s_cselect_b32 s{SC+2}, {1376*1024}, s{SC+2}")
            a("s_cselect_b32 s59, s54, s59")
        a(f"s_and_b32 s44, s9, 0xffff")
        a(f"s_cmp_eq_u32 s{s_stage}, {w1}")
        a(f"s_cselect_b32 s{SC}, s8, s{SC}")
        a(f"s_cselect_b32 s{SC+1}, s44, s{SC+1}")
        a(f"s_cselect_b32 s{SC+2}, {512*1024}, s{SC+2}")
        a("s_cselect_b32 s59, s54, s59")
    if o.upause > 0:
        a(f"s_cmp_eq_u32 s{s_stage}, {o.upause}")
        a("s_cbranch_scc0 L_up_loop")
        a(f"s_setprio {o.fprio}")
        lds_wait_ge(a, "upp", V_MISC, L_ATT, "8", t0, sleep=4)
        a(f"s_setprio {o.mprio}")
    a("s_branch L_up_loop")
    a.label("L_up_last")
    a("s_waitcnt lgkmcnt(0)")
    umm(1, 1)
    umm_skip(2, 1)
    a(f"s_setprio {o.fprio}")
    st.stamp(5)
    a(f"s_lshl_b32 s44, s{s_urb}, 2")
    a(f"s_and_b32 s45, s{s_fw}, 1")
    a("s_lshl_b32 s45, s45, 1")
    a("s_add_u32 s44, s44, s45")
    a("s_mul_i32 s44, s44, 86")
    a(f"s_add_u32 s44, s44, s{s_u0}")
    a(f"s_and_b32 s45, s{s_cg}, 255")
    a("s_add_u32 s44, s44, s45")
    a("s_lshl_b32 s44, s44, 10")
    a(f"s_add_u32 s44, s44, {HF}")
    a(f"s_lshr_b32 s46, s{s_cg}, 8")
    a(f"s_sub_u32 s{s_cg}, s46, s45")
    a(f"s_lshl_b32 s{s_cg}, s{s_cg}, 10")
    a(f"s_add_u32 s45, s44, {86*1024}")
    a(f"s_mov_b32 s46, {f32bits(-LOG2E)}")
    a("s_mov_b32 s47, s46")
    for u in range(3):
        if u == 2:
            a(f"s_add_u32 s44, s44, s{s_cg}")
            a(f"s_add_u32 s45, s45, s{s_cg}")
        for t in range(2):
            if u == 2:
                a(f"s_bitcmp1_b32 s{s_skip}, {t}")
                a(f"s_cbranch_scc0 {'L_up_e1' if t == 0 else 'L_up_done'}")
            g = UACC[u][t]; up = g + 8
            tm = XF[u & 1][t]
            for i in range(4): a(f"v_pk_mul_f32 {v(g+2*i,2)}, {v(g+2*i,2)}, s[46:47]")
            for i in range(8): a(f"v_exp_f32 v{g+i}, v{g+i}")
            for i in range(4): a(f"v_pk_add_f32 {v(g+2*i,2)}, {v(g+2*i,2)}, 1.0 op_sel_hi:[1,0]")
            for i in range(8): a(f"v_rcp_f32 v{g+i}, v{g+i}")
            for i in range(4): a(f"v_pk_mul_f32 {v(g+2*i,2)}, {v(g+2*i,2)}, {v(up+2*i,2)}")
            for i in range(4): a(f"v_cvt_pk_bf16_f32 v{tm+i}, v{g+2*i}, v{g+2*i+1}")
            a(f"buffer_store_dwordx4 {v(tm,4)}, v{V_L16}, s[{SWS}:{SWS+3}], s{44+t} offen offset:{(u&1)*1024} sc1")
            if u == 2 and t == 0: a.label("L_up_e1")
    a.label("L_up_done")
    a(f"s_lshl_b32 s44, s{s_urb}, 2")
    a(f"s_add_u32 s44, s44, s{s_fw}")
    a("s_lshl_b32 s44, s44, 7")
    a(f"s_add_u32 s44, s44, {CH}")
    post(a, 44)
    st.stamp(8)
    s_h0, s_h1, s_w, s_i, s_T, s_nt, s_idx, s_dl = 49, 50, 51, 52, 53, 54, 55, 56
    R = Regs(16)
    ACC = [R.alloc(16) for _ in range(4)]
    HFR = [[R.alloc(4) for _ in range(2)] for _ in range(8)]
    WF = [[R.alloc(4) for _ in range(2)] for _ in range(2)]
    G = 8; VOUT = 10; da = [11, 12]; db = [R.alloc(), R.alloc()]
    hi.append(R.hi)
    fbar(a, t0)
    a(f"ds_read_b32 v{t0+3}, v{V_MISC} offset:{L_NONCE}")
    if not o.gapw:
        srd(a, SA, 8, 9, 512*1024)
        a(f"s_lshl_b32 s{s_w}, s{s_fw}, 17")
        a(f"s_mov_b32 m0, s{s_lb}")
        a(f"s_mov_b32 s{s_i}, 14")
        a.label("L_wo_ld")
        a(f"buffer_load_dwordx4 v{vsrc}, s[{SA}:{SA+3}], s{s_w} offen lds")
        a("s_add_u32 m0, m0, 1024")
        a(f"s_add_u32 s{s_w}, s{s_w}, 8192")
        a(f"s_sub_u32 s{s_i}, s{s_i}, 1")
        a(f"s_cmp_lg_u32 s{s_i}, 0")
        a("s_cbranch_scc1 L_wo_ld")
        srd(a, SA, 16, 17, 1376*1024)
    else:
        srd(a, SA, 16, 17, 1376*1024)
        srd(a, SC, 8, 9, 512*1024)
        if o.gapw == 1:
            a(f"s_and_b32 s44, s{S_LOC}, 3")
            a("s_lshl_b32 s44, s44, 2")
            a(f"s_add_u32 s44, s44, s{s_fw}")
            a("s_lshl_b32 s45, s44, 15")
            a(f"s_mul_i32 s44, s44, {86*1024}")
            a(f"s_mov_b32 s{s_i}, {o.nwd}")
            a.label("L_wd_warm")
            a(f"buffer_load_dwordx4 {v(HFR[7][0],4)}, v{vsrc}, s[{SA}:{SA+3}], s44 offen")
            a("s_add_u32 s44, s44, 8192")
            a(f"s_sub_u32 s{s_i}, s{s_i}, 1")
            a(f"s_cmp_lg_u32 s{s_i}, 0")
            a("s_cbranch_scc1 L_wd_warm")
            for i in range(4):
                a(f"buffer_load_dwordx4 {v(HFR[7][0],4)}, v{vsrc}, s[{SC}:{SC+3}], s45 offen")
                a("s_add_u32 s45, s45, 8192")
        elif o.gapw == 2:
            a(f"s_lshl_b32 s44, s{S_LOC}, 2")
            a(f"s_add_u32 s44, s44, s{s_fw}")
            a("s_lshl_b32 s44, s44, 10")
            a("s_mov_b32 s45, s44")
            for i in range(o.nwd):
                a(f"buffer_load_dwordx4 {v(HFR[7][0],4)}, v{V_L16}, s[{SA}:{SA+3}], s44 offen")
                a("s_add_u32 s44, s44, 131072")
            for i in range(o.nwo):
                a(f"buffer_load_dwordx4 {v(HFR[7][0],4)}, v{V_L16}, s[{SC}:{SC+3}], s45 offen")
                a("s_add_u32 s45, s45, 131072")
        a(f"s_mov_b32 s59, {(-2*1024) & 0xffffffff}")
        a(f"s_lshl_b32 s63, s{s_fw}, 17")
    a(f"s_mul_i32 s{s_dl}, s{s_fw}, 6144")
    a(f"s_add_u32 s{s_dl}, s{s_dl}, {DRING}")
    a(f"v_add_u32 v{da[0]}, s{s_dl}, v{wa}")
    a(f"v_xor_b32 v{da[1]}, 64, v{da[0]}")
    a(f"v_add_u32 v{db[0]}, s{s_lb}, v{wa}")
    a(f"v_xor_b32 v{db[1]}, 64, v{db[0]}")
    a(f"s_lshl_b32 s{s_w}, s{s_fw}, 14")
    a(f"s_lshl_b32 s44, s{s_T2}, 1")
    a(f"s_and_b32 s45, s{s_fw}, 1")
    a(f"s_add_u32 s{s_T}, s44, s45")
    a(f"s_xor_b32 s47, s{s_T}, 1")
    for d, sx in ((s_h0, s_T), (s_h1, 47)):
        a(f"s_mul_i32 s{d}, s{sx}, 86")
        a(f"s_add_u32 s{d}, s{d}, s{s_fw}")
        a(f"s_lshl_b32 s{d}, s{d}, 10")
        a(f"s_add_u32 s{d}, s{d}, {HF}")
    a(f"s_lshl_b32 s44, s{s_N2}, 1")
    a(f"s_lshr_b32 s45, s{s_fw}, 1")
    a(f"s_add_u32 s{s_nt}, s44, s45")
    a(f"v_and_b32 v{t0}, 31, v0")
    a(f"v_lshrrev_b32 v{t0+1}, 5, v0")
    a(f"v_lshlrev_b32 v{t0+1}, 4, v{t0+1}")
    a(f"v_lshl_add_u32 v{VOUT}, v{t0}, 10, v{t0+1}")
    a("s_waitcnt lgkmcnt(0)")
    a(f"v_readfirstlane_b32 s{S_NONCE}, v{t0+3}")
    a(f"v_lshlrev_b32 v{t0+1}, 3, v{t0}")
    a(f"s_lshl_b32 s44, s{s_T}, 8")
    a(f"s_add_u32 s44, s44, {GA}")
    a(f"s_mov_b32 s{S_SPIN}, 0")
    a.label("L_g_poll")
    a(f"buffer_load_dwordx2 {v(G,2)}, v{t0+1}, s[{SWS}:{SWS+3}], s44 offen sc1")
    a(f"s_add_u32 s{S_SPIN}, s{S_SPIN}, 1")
    a("s_waitcnt vmcnt(0)")
    a(f"v_cmp_ne_u32 vcc, s{S_NONCE}, v{G+1}")
    a(f"s_cmp_gt_u32 s{S_SPIN}, 200000")
    a("s_cbranch_scc1 L_g_got")
    a("s_cbranch_vccz L_g_got")
    a("s_sleep 8")
    a("s_branch L_g_poll")
    a.label("L_g_got")
    a(f"v_sub_f32 v{G+1}, 1.0, v{G}")
    a(f"s_cmp_eq_u32 s{s_fw}, 0")
    a("s_cbranch_scc0 L_dn_nopoll")
    a(f"s_lshr_b32 s44, s{s_T2}, 1")
    a("s_lshl_b32 s44, s44, 2")
    a(f"s_and_b32 s45, s{s_T2}, 1")
    a("s_add_u32 s44, s44, s45")
    a("s_lshl_b32 s44, s44, 7")
    a(f"s_add_u32 s44, s44, {CH}")
    a(f"v_and_b32 v{t0+2}, 1, v0")
    a(f"v_lshlrev_b32 v{t0+2}, 8, v{t0+2}")
    poll(a, "dn", t0+1, t0+2, 44, 16, 8, at=2 if o.apoll & 2 else 0)
    a.label("L_dn_nopoll")
    fbar(a, t0+1)
    st.stamp(9)
    s_wend, s_hend = 57, 58
    s_o, s_out, s_co = 49, 50, 51
    def ldw(g):
        m = f"s_add_u32 m0, s{s_dl}, {(g%4)*2048}" if g % 4 < 3 else f"s_add_u32 m0, s{s_lb}, {7*2048}"
        p0 = [m, f"s_add_u32 s44, s{s_w}, 8192", f"buffer_load_dwordx4 v{vsrc}, s[{SA}:{SA+3}], s{s_w} offen lds"]
        p1 = ["s_add_u32 m0, m0, 1024", f"s_add_u32 s{s_w}, s{s_w}, 65536", f"buffer_load_dwordx4 v{vsrc}, s[{SA}:{SA+3}], s44 offen lds"]
        if o.stagD: p1 += [f"s_cmp_eq_u32 s{s_w}, s{s_wend}", f"s_cselect_b32 s{s_w}, s46, s{s_w}"]
        return [p0, p1]
    def ldh(g):
        p0 = [f"s_add_u32 s45, s{s_h0}, s{s_h1}", f"buffer_load_dwordx4 {v(HFR[g%4][0],4)}, v{V_L16}, s[{SWS}:{SWS+3}], s{s_h0} offen sc1"]
        p1 = [f"s_add_u32 s{s_h0}, s{s_h0}, 4096", f"buffer_load_dwordx4 {v(HFR[g%4][1],4)}, v{V_L16}, s[{SWS}:{SWS+3}], s45 offen sc1"]
        if o.stagD: p1 += [f"s_cmp_eq_u32 s{s_h0}, s{s_hend}", f"s_cselect_b32 s{s_h0}, s47, s{s_h0}"]
        return [p0, p1]
    def emit(ps):
        for p in ps:
            for l in p: a(l)
    def rdw1(off, buf, ad, n):
        a(f"ds_read_b64_tr_b16 {v(WF[buf][n],2)}, v{ad[n]} offset:{off}")
        a(f"ds_read_b64_tr_b16 {v(WF[buf][n]+2,2)}, v{ad[n]} offset:{off+1024}")
    def rdw(off, buf, ad=da):
        for n in range(2): rdw1(off, buf, ad, n)
    a(f"s_sub_u32 s{s_h1}, s{s_h1}, s{s_h0}")
    a(f"s_mov_b32 s46, s{s_w}")
    a(f"s_mov_b32 s47, s{s_h0}")
    a(f"s_add_u32 s{s_wend}, s46, {21*65536}")
    a(f"s_add_u32 s{s_hend}, s47, {21*4096}")
    if o.stagD:
        a(f"s_and_b32 s44, s{S_LOC}, 3")
        a("s_mul_i32 s44, s44, 5")
        a(f"s_mul_i32 s45, s{s_N2}, 21")
        a("s_lshr_b32 s45, s45, 3")
        a("s_add_u32 s44, s44, s45")
        a("s_cmp_ge_u32 s44, 21")
        a("s_cselect_b32 s45, 21, 0")
        a(f"s_sub_u32 s{s_i}, s44, s45")
    else:
        a(f"s_mov_b32 s{s_i}, 0")
    a(f"s_mov_b32 s{s_w}, s{s_wend}")
    a(f"s_cmp_lt_u32 s{s_fw}, 2")
    a(f"s_cselect_b32 s{s_h0}, s{s_hend}, s47")
    emit(ldw(0))
    a(f"s_lshl_b32 s44, s{s_i}, 16")
    a(f"s_add_u32 s{s_w}, s46, s44")
    emit(ldw(1)); emit(ldh(0))
    a(f"s_lshl_b32 s44, s{s_i}, 12")
    a(f"s_add_u32 s{s_h0}, s47, s44")
    emit(ldw(2)); emit(ldh(1))
    emit(ldw(3)); emit(ldh(2))
    a(f"s_setprio {o.dprio}")
    a("s_waitcnt vmcnt(12)")
    rdw(0, 0)
    def rstep(k):
        b = k & 1
        issued = lambda j: (2 if j + 4 <= 21 else 0) + (2 if j + 3 <= 21 else 0) + (2 if j == 19 else 0) + (1 if (o.gapw and 1 <= j <= 16) else 0)
        a(f"s_waitcnt vmcnt({issued(k-2) + issued(k-1)}) lgkmcnt(0)")
        parts = (ldw(k+4) if k + 4 <= 21 else [[], []]) + (ldh(k+3) if k + 3 <= 21 else [[], []])
        if o.gapw and 1 <= k <= 16:
            parts[3] = parts[3] + ["s_max_i32 s44, s59, 0", f"s_add_u32 m0, s{s_lb}, s44", "s_lshl_b32 s44, s44, 3", "s_add_u32 s44, s44, s63",
                                   f"buffer_load_dwordx4 v{vsrc}, s[{SC}:{SC+3}], s44 offen lds", "s_add_u32 s59, s59, 1024"]
        if k == 19:
            parts = [[f"s_mov_b32 s{SA}, s8", f"s_and_b32 s{SA+1}, s9, 0xffff", f"s_mov_b32 s{SA+2}, {512*1024}",
                      f"s_lshl_b32 s44, s{s_fw}, 17", f"s_add_u32 s44, s44, {14*8192}"],
                     [f"s_add_u32 m0, s{s_lb}, {14*1024}", "s_add_u32 s45, s44, 8192",
                      f"buffer_load_dwordx4 v{vsrc}, s[{SA}:{SA+3}], s44 offen lds"],
                     ["s_add_u32 m0, m0, 1024", "s_nop 0", f"buffer_load_dwordx4 v{vsrc}, s[{SA}:{SA+3}], s45 offen lds"], []]
        if k == 20:
            parts = [[f"s_mov_b32 s{SB}, s20", f"s_and_b32 s{SB+1}, s21, 0xffff", f"s_mov_b32 s{SB+2}, {2048*1024}", f"s_mov_b32 s{SB+3}, 0x20000"],
                     [f"s_lshr_b32 s46, s{s_fw}, 1", f"s_lshl_b32 s44, s{s_T}, 15", "s_lshl_b32 s45, s46, 14", "s_add_u32 s45, s44, s45",
                      f"s_add_u32 s{s_o}, s45, {OF}"],
                     [f"s_lshl_b32 s45, s{s_nt}, 6", f"s_add_u32 s{s_out}, s44, s45", f"s_lshl_b32 s44, s{s_T}, 1", "s_add_u32 s44, s44, s46"],
                     ["s_lshl_b32 s44, s44, 7", f"s_add_u32 s{s_co}, s44, {CO + (DONE if o.done else 0)}"]]
        for n in range(2):
            for t in range(2):
                c = "0" if k == 0 else v(ACC[2*n+t],16)
                a(f"{MF} {v(ACC[2*n+t],16)}, {v(WF[b][n],4)}, {v(HFR[k%4][t],4)}, {c}")
                if n == 0 and k < 21:
                    if (k+1) % 4 < 3: rdw1(((k+1) % 4)*2048, b ^ 1, da, t)
                    else: rdw1(7*2048, b ^ 1, db, t)
                for l in parts[2*n+t]: a(l)
    rstep(0)
    a(f"s_mov_b32 s{s_i}, 4")
    def hold(tag):
        a(f"s_setprio {o.fprio}")
        a(f"v_lshl_add_u32 v{t0+2}, s{s_fw}, 2, v{V_MISC}")
        lds_wait_ge(a, tag, t0+2, L_PAIR, str(o.holdn), t0+1, sleep=4)
    a.label("L_dn_loop")
    if o.hold in (9, 13):
        a(f"s_cmp_eq_u32 s{s_i}, {(17-o.hold)//4}")
        a("s_cbranch_scc0 L_dn_nh")
        hold("hold")
        a.label("L_dn_nh")
    for k in range(1, 5): rstep(k)
    a(f"s_sub_u32 s{s_i}, s{s_i}, 1")
    a(f"s_cmp_lg_u32 s{s_i}, 0")
    a("s_cbranch_scc1 L_dn_loop")
    if o.hold == 17: hold("hold")
    for k in range(17, 22): rstep(k)
    a(f"s_setprio {o.fprio}")
    st.stamp(10)
    if o.early:
        a(f"s_setprio {o.xprio}")
        a(f"v_add_u32 v{t0}, s{s_dl}, v{V_L16}")
        a(f"s_lshl_b32 s44, s{s_fw}, 12")
        a(f"s_add_u32 s44, s44, {UX[0]}")
        a(f"v_add_u32 v{t0+2}, s44, v{V_L16}")
        a(f"s_xor_b32 s44, s{s_fw}, 1")
        a("s_mul_i32 s44, s44, 6144")
        a(f"s_add_u32 s44, s44, {DRING}")
        a("s_lshl_b32 s45, s46, 15")
        a(f"s_add_u32 s45, s45, {STG}")
        a(f"v_add_u32 v{da[0]}, s45, v{wa}")
        a(f"v_xor_b32 v{da[1]}, 64, v{da[0]}")
        for i in range(4):
            a(f"ds_write_b128 v{t0}, {v(ACC[1]+4*i,4)} offset:{i*1024}")
        for i in range(4):
            a(f"ds_write_b128 v{t0+2}, {v(ACC[3]+4*i,4)} offset:{i*1024}")
        a("s_waitcnt vmcnt(0) lgkmcnt(0)")
        a(f"v_add_u32 v{t0}, s44, v{V_L16}")
        a(f"v_xor_b32 v{t0+2}, 4096, v{t0+2}")
        fbar(a, t0+1)
        for i in range(4):
            a(f"ds_read_b128 {v(ACC[1]+4*i,4)}, v{t0} offset:{i*1024}")
        for i in range(4):
            a(f"ds_read_b128 {v(ACC[3]+4*i,4)}, v{t0+2} offset:{i*1024}")
        WF.append([160, 164])
        hi.append(168)
        for n in (1, 0): rdw1(0, 0, da, n)
        BQ = [ACC[0], ACC[2]]
        for n in range(2):
            a(f"s_waitcnt lgkmcnt({4*(1-n)+4})")
            for i in range(8):
                a(f"v_pk_add_f32 {v(BQ[n]+2*i,2)}, {v(BQ[n]+2*i,2)}, {v(ACC[2*n+1]+2*i,2)}")
            for i in range(8):
                a(f"v_pk_mul_f32 {v(BQ[n]+2*i,2)}, {v(BQ[n]+2*i,2)}, {v(G,2)} op_sel:[0,1] op_sel_hi:[1,1]")
        for n in (1, 0): rdw1(2048, 1, da, n)
        a(f"s_lshl_b32 s44, s{s_fw}, 13")
        a(f"v_add_u32 v{t0}, s44, v{V_L16}")
        a(f"v_xor_b32 v{t0+3}, 16384, v{t0}")
        def bsum(): pass
        a(f"s_setprio {o.fprio}")
        if o.early == 2: a("s_barrier")
        if o.tdelay: a(f"s_sleep {o.tdelay}")
        poll(a, "tl", t0+1, None, s_co, 16, o.tsleep, at=1)
    else:
        a("s_waitcnt vmcnt(0)")
        a("s_barrier")
        if o.tdelay: a(f"s_sleep {o.tdelay}")
        if o.apoll & 4: a("s_mov_b64 exec, 1")
        poll_ld(a, t0+1, None, s_co, o.apoll & 4)
        if o.apoll & 4: a("s_mov_b64 exec, -1")
        a("s_lshl_b32 s44, s46, 15")
        a(f"s_add_u32 s44, s44, {STG}")
        a(f"v_add_u32 v{da[0]}, s44, v{wa}")
        a(f"v_xor_b32 v{da[1]}, 64, v{da[0]}")
        a(f"s_lshl_b32 s44, s{s_fw}, 13")
        a(f"v_add_u32 v{t0}, s44, v{V_L16}")
        a(f"v_xor_b32 v{t0+2}, 8192, v{t0}")
        a(f"v_xor_b32 v{t0+3}, 16384, v{t0}")
        for n in range(2):
            for i in range(4):
                a(f"ds_write_b128 v{t0}, {v(ACC[2*n+1]+4*i,4)} offset:{n*4096+i*1024}")
        a("s_waitcnt lgkmcnt(0)")
        a("s_barrier")
        for n in range(2):
            for i in range(4):
                a(f"ds_read_b128 {v(ACC[2*n+1]+4*i,4)}, v{t0+2} offset:{n*4096+i*1024}")
        WF.append([160, 164])
        hi.append(168)
        for n in (1, 0): rdw1(0, 0, da, n)
        BQ = [ACC[0], ACC[2]]
        def bsum():
            for n in range(2):
                a(f"s_waitcnt lgkmcnt({4*(1-n)+4})")
                for i in range(8):
                    a(f"v_pk_add_f32 {v(BQ[n]+2*i,2)}, {v(BQ[n]+2*i,2)}, {v(ACC[2*n+1]+2*i,2)}")
                for i in range(8):
                    a(f"v_pk_mul_f32 {v(BQ[n]+2*i,2)}, {v(BQ[n]+2*i,2)}, {v(G,2)} op_sel:[0,1] op_sel_hi:[1,1]")
        if o.done: poll(a, "tl", t0+1, None, s_co, f"s{S_NONCE}", o.tsleep, first_issued=True, eq=True)
        else: poll(a, "tl", t0+1, None, s_co, 16, o.tsleep, first_issued=True, at=1 if o.apoll & 4 else 0)
    st.stamp(11)
    if st.en: a("s_waitcnt lgkmcnt(0)")
    OFR = [HFR[i >> 1][i & 1] for i in range(16)]
    def ldo(i):
        a(f"buffer_load_dwordx4 {v(OFR[i],4)}, v{V_L16}, s[{SWS}:{SWS+3}], s{s_o} offen offset:{(i&3)*1024} sc1")
        if i & 3 == 3 and i < 15: a(f"s_add_u32 s{s_o}, s{s_o}, 4096")
    for i in range(o.nfirst): ldo(i)
    bsum()
    if o.tprof: st.stamp(2); a("s_waitcnt lgkmcnt(0)")
    if not o.early:
        for n in (1, 0): rdw1(2048, 1, da, n)
    pend = list(range(o.nfirst, 16))
    AO = [ACC[1], ACC[3]]
    for i in range(16):
        buf = i % 3
        a(f"s_waitcnt vmcnt({15-len(pend)-i}) lgkmcnt({4 if i < 15 else 0})")
        if o.tprof and i == 0: st.stamp(3); a("s_waitcnt lgkmcnt(0)")
        for n in (1, 0):
            c = "0" if i == 0 else v(AO[n],16)
            a(f"{MF} {v(AO[n],16)}, {v(WF[buf][n],4)}, {v(OFR[i],4)}, {c}")
            if i < 14: rdw1((i+2)*2048, (i+2) % 3, da, n)
            if pend: ldo(pend.pop(0))
    if o.tprof: st.stamp(4)
    if o.early == 1: a("s_barrier")
    a("s_nop 10")
    for i in range(4):
        for j in (2*i, 2*i+1):
            a(f"v_pk_fma_f32 {v(BQ[1]+2*j,2)}, {v(AO[1]+2*j,2)}, {v(G,2)}, {v(BQ[1]+2*j,2)} op_sel_hi:[1,0,1]")
        a(f"ds_write_b128 v{t0}, {v(BQ[1]+4*i,4)} offset:{32768+i*1024}")
    for i in range(8):
        a(f"v_pk_fma_f32 {v(BQ[0]+2*i,2)}, {v(AO[0]+2*i,2)}, {v(G,2)}, {v(BQ[0]+2*i,2)} op_sel_hi:[1,0,1]")
    a("s_waitcnt lgkmcnt(0)")
    a("s_barrier")
    for i in range(4):
        a(f"ds_read_b128 {v(AO[1]+4*i,4)}, v{t0+3} offset:{32768+i*1024}")
    if o.tprof: st.stamp(5); a("s_waitcnt lgkmcnt(0)")
    T2 = AO[0]
    for p in range(2):
        a(f"s_waitcnt lgkmcnt({2*(1-p)})")
        for i in range(4*p, 4*p+4):
            a(f"v_pk_add_f32 {v(BQ[0]+2*i,2)}, {v(BQ[0]+2*i,2)}, {v(AO[1]+2*i,2)}")
        for i in range(4*p, 4*p+4):
            a(f"v_cvt_pk_bf16_f32 v{T2+i}, v{BQ[0]+2*i}, v{BQ[0]+2*i+1}")
        b = T2 + 4*p
        a("s_nop 1")
        a(f"v_permlane32_swap_b32 v{b}, v{b+2}")
        a(f"v_permlane32_swap_b32 v{b+1}, v{b+3}")
        a("s_nop 1")
        a(f"buffer_store_dwordx4 {v(b,4)}, v{VOUT}, s[{SB}:{SB+3}], s{s_out} offen offset:{32*p}{['', ' sc1', ' nt', ' sc0 sc1', ' sc1 nt'][o.ost]}")
    if o.tprof: st.stamp(8)
    finish(a, st)
    return hi

def build(path):
    global KN
    KN = "kb_kernel" if (o.report or o.instr) else KNAME
    a = Asm()
    a('.amdgcn_target "amdgcn-amd-amdhsa--gfx950"')
    a(".text")
    st = Stamper(a, o.instr, 0)
    kernel_header(a, KN)
    a("s_cmp_ge_u32 s2, 256")
    a("s_cbranch_scc1 L_exit")
    a("s_load_dwordx16 s[4:19], s[0:1], 0")
    a("s_load_dwordx4 s[20:23], s[0:1], 64")
    a("s_load_dwordx2 s[24:25], s[0:1], 80")
    st.init(); st.real(0); st.stamp(1)
    a("v_lshrrev_b32 v1, 6, v0")
    a("v_and_b32 v0, 63, v0")
    a(f"s_and_b32 s{S_XCD}, s2, 7")
    a(f"v_readfirstlane_b32 s{S_WAVE}, v1")
    a(f"s_lshr_b32 s{S_LOC}, s2, 3")
    a(f"v_lshlrev_b32 v{V_L16}, 4, v0")
    a(f"v_mov_b32 v{V_MISC}, {MISC}")
    a(f"v_mov_b32 v{V_ONE}, 1")
    if st.en: a("s_getreg_b32 s95, hwreg(HW_REG_XCC_ID)")
    a(f"s_cmp_ge_u32 s{S_WAVE}, 8")
    a("s_cbranch_scc1 L_F")
    ahi, fallback = a_waves(a, st)
    a.label("L_F")
    hi = f_waves(a, st) + [ahi]
    a.label("L_code_end")
    fallback()
    a.label("L_exit")
    a("s_endpgm")
    print("vgprs", hi)
    assert max(hi) <= 168
    descs = [kernel_desc(KN, 168)]
    if o.report or o.instr:
        hdr = f"; @launch kernel={KN} grid=(256,1,1) block=(768,1,1) lds={LDS_TOTAL}\n"
        if o.report:
            k, w, i = [int(x) for x in str(o.report).split(",")]
            reporter(a, k, w, i)
            hdr += "; @launch kernel=rep_kernel grid=(1,1,1) block=(64,1,1) lds=0\n"
            descs.append(kernel_desc("rep_kernel", 16))
    else:
        hdr = f"; @launch grid=(256,1,1) block=(768,1,1) lds={LDS_TOTAL}\n"
    a('.section .rodata,"a"')
    open(path, "w").write("; generated by gen/gen25.py\n" + hdr + a.text() + "".join(descs))

if __name__ == "__main__":
    path = sys.argv[1]
    for arg in sys.argv[2:]:
        k, _, val = arg.partition("=")
        assert hasattr(Opt, k), k
        setattr(Opt, k, (val if ',' in val else int(val)) if val else True)
    if Opt.report: Opt.instr = True; Stamper.rt = True
    if Opt.acc: Stamper.acc = True
    if Opt.rt: Stamper.rt = True
    build(path)
```

```python
import math, sys
from asmlib import *

MB = 1 << 20
QF, KF, VF, OF, HF = 0, 2*MB, 4*MB, 6*MB, 8*MB
GA = 14*MB
CNT = 14*MB + 0x10000
CQ, CH, CO = CNT, CNT + 64*128, CNT + 128*128
W0 = 14*MB + 0x20000
DONE = 0x8000
WS_BYTES = 32*MB
LOG2E = 1.4426950408889634
QSCALE = 0.25 * LOG2E
LDS_TOTAL = 163840
KNAME = "gated_mix__mha_block__glu_gated_glu__prompt_kernel"

TS0, TSTR = 0, 33024
TG, TU = 16384, 16384 + 8192 + 32
WIMG = 12288 + 32
UX = [49152, 65536]
UW = [81920]; UWS = 24832
STG = 65536
DRING = 131072
VCONST = 156672
GL = 160768
MISC = LDS_TOTAL - 256
L_NONCE, L_ATT, L_FB, L_GO, L_PAIR, L_POST, L_ST, L_U = 0, 4, 8, 12, 16, 32, 36, 40

S_WAVE, S_NONCE = 26, 27
SWS, SA, SB, SC = 28, 32, 36, 40
S_XCD, S_LOC, S_FBT, S_SPIN = 3, 69, 67, 68
V_L16, V_MISC, V_ONE = 1, 2, 3
MF = "v_mfma_f32_32x32x16_bf16"
SM = "v_smfmac_f32_32x32x32_bf16"

class Opt:
    instr = False
    report = None
    acc = 0
    rt = 0
    ppdelay = 0
    fprio = 2
    mprio = 0
    aprio = 5
    psleep = 2
    stag1 = 0
    stag2 = 1
    pdelay = 6
    dper = 1
    upause = 0
    ost = 0
    pf31 = 1
    upat = 9
    upwarm = 3
    yat = 5
    noffn = 0
    hold = 0
    par = 1
    nb = 2
    hat = 3
    pfirst = 1
    eprio = 2
    hw2 = 0
    hprof = 0
    wsoff = 0
    done = 0
    early = 0
    apoll = 7
    xprio = 0
    pre = 3
    holdn = 1
    w0 = 2
    rotU = 0
    hp = 0
    gapw = 0
    nwd = 11
    nwo = 4
    dprio = 0
    pf0 = 2
    rot = 0
    stagD = 1
    nfirst = 10
    tprof = 0
    tsleep = 1
    cuts = '2,6,10'
    pfup = 4
    stagU = 0
    fpace = 0
    la = 3
    udelay = 0
    xat = 1
    ctouch = 1
    tdelay = 0
o = Opt

def srd(a, d, lo, hi, nbytes):
    if lo == 24 and o.wsoff:
        a(f"s_add_u32 s{d}, s{lo}, {o.wsoff*MB}")
        a(f"s_addc_u32 s{d+1}, s{hi}, 0")
        a(f"s_and_b32 s{d+1}, s{d+1}, 0xffff")
        a(f"s_mov_b32 s{d+2}, {min(nbytes, (256-o.wsoff)*MB)}")
        a(f"s_mov_b32 s{d+3}, 0x20000")
        return
    a(f"s_mov_b32 s{d}, s{lo}")
    a(f"s_and_b32 s{d+1}, s{hi}, 0xffff")
    a(f"s_mov_b32 s{d+2}, {nbytes}")
    a(f"s_mov_b32 s{d+3}, 0x20000")

def finish(a, st):
    if st.en: a("s_waitcnt vmcnt(0)")
    st.stamp(6); st.real(7); st.flush(SWS, S_WAVE, 4)
    a("s_endpgm")

def post(a, s_off):
    a("s_waitcnt vmcnt(0)")
    a("s_mov_b64 exec, 1")
    a(f"buffer_atomic_add v{V_ONE}, off, s[{SWS}:{SWS+3}], s{s_off} sc1")
    a("s_mov_b64 exec, -1")

def poll_ld(a, vt, voff, s_off, at):
    if at:
        a(f"v_mov_b32 v{vt}, 0")
        if voff is None: a(f"buffer_atomic_or v{vt}, off, s[{SWS}:{SWS+3}], s{s_off} sc0 sc1")
        else: a(f"buffer_atomic_or v{vt}, v{voff}, s[{SWS}:{SWS+3}], s{s_off} offen sc0 sc1")
    elif voff is None: a(f"buffer_load_dword v{vt}, off, s[{SWS}:{SWS+3}], s{s_off} sc1")
    else: a(f"buffer_load_dword v{vt}, v{voff}, s[{SWS}:{SWS+3}], s{s_off} offen sc1")

def poll(a, tag, vt, voff, s_off, target, sleep, first_issued=False, eq=False, at=0):
    def ld(): poll_ld(a, vt, voff, s_off, at)
    a(f"s_mov_b32 s{S_SPIN}, 0")
    if at: a(f"s_mov_b64 exec, {(1 << at) - 1}")
    if not first_issued: ld()
    a.label(f"L_{tag}_poll")
    a(f"s_add_u32 s{S_SPIN}, s{S_SPIN}, 1")
    a("s_waitcnt vmcnt(0)")
    a(f"v_cmp_{'ne' if eq else 'gt'}_u32 vcc, {target}, v{vt}")
    a(f"s_cmp_gt_u32 s{S_SPIN}, 200000")
    a(f"s_cbranch_scc1 L_{tag}_got")
    a(f"s_cbranch_vccz L_{tag}_got")
    if sleep: a(f"s_sleep {sleep}")
    ld()
    a(f"s_branch L_{tag}_poll")
    a.label(f"L_{tag}_got")
    if at: a("s_mov_b64 exec, -1")

def lds_wait_ge(a, tag, vaddr, off, target, vt, sleep=1):
    a(f"s_mov_b32 s{S_SPIN}, 0")
    a.label(f"L_{tag}_spin")
    a(f"ds_read_b32 v{vt}, v{vaddr} offset:{off}")
    a(f"s_add_u32 s{S_SPIN}, s{S_SPIN}, 1")
    a("s_waitcnt lgkmcnt(0)")
    a(f"v_cmp_gt_u32 vcc, {target}, v{vt}")
    a(f"s_cmp_gt_u32 s{S_SPIN}, 2000000")
    a(f"s_cbranch_scc1 L_{tag}_ok")
    a(f"s_cbranch_vccz L_{tag}_ok")
    if sleep: a(f"s_sleep {sleep}")
    a(f"s_branch L_{tag}_spin")
    a.label(f"L_{tag}_ok")

def lds_arrive(a, vaddr, off):
    a("s_mov_b64 exec, 1")
    a(f"ds_add_u32 v{vaddr}, v{V_ONE} offset:{off}")
    a("s_mov_b64 exec, -1")

def tile_ids(a, s_rb, s_lc):
    a(f"s_and_b32 s44, s{S_XCD}, 3")
    a("s_lshl_b32 s44, s44, 2")
    a(f"s_and_b32 s45, s{S_LOC}, 3")
    a(f"s_add_u32 s{s_rb}, s44, s45")
    a(f"s_lshr_b32 s{s_lc}, s{S_LOC}, 2")

def ids_up(a, s_rb, s_cg, s_u0):
    a(f"s_and_b32 s44, s{S_XCD}, 2")
    a("s_lshl_b32 s44, s44, 2")
    a(f"s_and_b32 s45, s{S_LOC}, 7")
    a(f"s_add_u32 s{s_rb}, s44, s45")
    quad_start(a, s_u0)
    a(f"s_and_b32 s44, s{S_XCD}, 1")
    if not o.par: a("s_xor_b32 s44, s44, 1")
    a(f"s_sub_u32 s{s_cg}, 6, s44")
    a(f"s_lshr_b32 s45, s{S_LOC}, 3")
    a(f"s_mul_i32 s47, s45, s{s_cg}")
    a(f"s_add_u32 s{s_u0}, s{s_u0}, s47")
    a("s_cmp_eq_u32 s45, 3")
    a("s_cselect_b32 s44, s44, 0")
    a(f"s_sub_u32 s{s_cg}, s{s_cg}, s44")

def quad_start(a, d):
    a(f"s_lshr_b32 s44, s{S_XCD}, 2")
    a("s_mul_i32 s44, s44, 43")
    a(f"s_and_b32 s45, s{S_XCD}, 1")
    if not o.par: a("s_xor_b32 s45, s45, 1")
    a("s_mul_i32 s45, s45, 24")
    a(f"s_add_u32 s{d}, s44, s45")

def stagger(a, mode=None):
    pass
    if mode == 1:
        a(f"s_lshr_b32 s44, s{S_LOC}, 3")
        a("s_lshl_b32 s44, s44, 1")
        a(f"s_add_u32 s44, s44, s{S_LOC}")
        a("s_and_b32 s44, s44, 7")
    elif mode == 2:
        a(f"s_lshr_b32 s44, s{S_LOC}, 3")
        a(f"s_add_u32 s44, s44, s{S_LOC}")
        a("s_and_b32 s44, s44, 3")
        a("s_lshl_b32 s44, s44, 1")
    elif mode == 3:
        a(f"s_lshr_b32 s44, s{S_LOC}, 3")
        a(f"s_add_u32 s44, s44, s{S_LOC}")
        a("s_and_b32 s44, s44, 1")
        a("s_lshl_b32 s44, s44, 2")
    else:
        a("s_mov_b32 s44, 0")

def up_dma_setup(a, t0, vx, vw, s_fw, s_rb, s_cg, s_u0, s_lx, s_lw, s_xoff, s_woff):
    a(f"v_lshrrev_b32 v{t0}, 3, v0")
    a(f"v_and_b32 v{t0+1}, 7, v0")
    a(f"v_lshrrev_b32 v{t0+2}, 1, v{t0}")
    ids_up(a, s_rb, s_cg, s_u0)
    a(f"s_and_b32 s46, s{s_fw}, 1")
    a("s_lshl_b32 s45, s46, 2")
    a(f"v_or_b32 v{t0+2}, s45, v{t0+2}")
    a(f"v_xor_b32 v{t0+1}, v{t0+1}, v{t0+2}")
    a(f"v_lshlrev_b32 v{t0+1}, 4, v{t0+1}")
    a(f"s_lshl_b32 s44, s{s_rb}, 7")
    a(f"s_lshl_b32 s45, s{s_fw}, 3")
    a("s_add_u32 s44, s44, s45")
    a(f"v_add_u32 v{t0}, s44, v{t0}")
    a(f"v_lshl_add_u32 v{vx}, v{t0}, 10, v{t0+1}")
    a("s_movk_i32 s44, 5462")
    a("s_movk_i32 s47, 2752")
    a("s_lshl_b32 s45, s46, 5")
    for j in range(3):
        a(f"v_add_u32 v{t0}, {64*j}, v0")
        a(f"v_mul_u32_u24 v{t0+1}, s44, v{t0}")
        a(f"v_lshrrev_b32 v{t0+1}, 16, v{t0+1}")
        a(f"v_mul_u32_u24 v{t0+2}, 12, v{t0+1}")
        a(f"v_sub_u32 v{t0+2}, v{t0}, v{t0+2}")
        a(f"v_lshrrev_b32 v{t0}, 1, v{t0+2}")
        a(f"v_cmp_gt_u32 vcc, s{s_cg}, v{t0}")
        a(f"v_lshlrev_b32 v{t0+2}, 4, v{t0+2}")
        a(f"v_add_u32 v{t0+1}, s45, v{t0+1}")
        a(f"v_mad_u32_u24 v{vw[j]}, v{t0+1}, s47, v{t0+2}")
        a(f"v_bfrev_b32 v{t0}, 2")
        a(f"v_cndmask_b32 v{vw[j]}, v{t0}, v{vw[j]}, vcc")
    a(f"s_lshl_b32 s{s_lx}, s{s_fw}, 10")
    a(f"s_add_u32 s{s_lx}, s{s_lx}, {UX[0]}")
    a("s_mul_i32 s45, s46, 6144")
    a(f"s_lshr_b32 s46, s{s_fw}, 1")
    a(f"s_mul_i32 s47, s46, {WIMG}")
    a("s_add_u32 s45, s45, s47")
    a(f"s_add_u32 s{s_lw}, s45, {UW[0]}")
    stagger(a, o.stagU)
    a(f"s_lshl_b32 s{s_xoff}, s44, 7")
    a(f"s_mul_i32 s{s_woff}, s44, {64*2752}")

def up_srd(a, s_fw, s_u0):
    srd(a, SA, 4, 5, 2048*1024)
    a(f"s_cmp_lt_u32 s{s_fw}, 2")
    a("s_cselect_b32 s46, s12, s14")
    a("s_cselect_b32 s47, s13, s15")
    a(f"s_lshl_b32 s44, s{s_u0}, 5")
    srd_off(a, SB, 46, 47, 44, 512*2752)

def up_dma_groups(vx, vw, s_lx, s_lw, s_xoff, s_woff):
    g = []
    for j in range(4):
        if j == 0: pre = [f"s_mov_b32 m0, s{s_lx}", f"s_mov_b32 s46, s{s_xoff}"]
        else: pre = ["s_add_u32 m0, m0, 4096", "s_add_u32 s46, s46, 32768"]
        g.append(pre + [f"buffer_load_dwordx4 v{vx}, s[{SA}:{SA+3}], s46 offen lds"])
    for j in range(6):
        if j == 0: pre = [f"s_mov_b32 m0, s{s_lw}", f"s_add_u32 s46, s{s_woff}, {16*2752}"]
        else: pre = ["s_add_u32 m0, m0, 1024", "s_nop 0"]
        so = s_woff if j < 3 else 46
        g.append(pre + [f"buffer_load_dwordx4 v{vw[j%3]}, s[{SB}:{SB+3}], s{so} offen lds"])
    return g

def srd_off(a, d, lo, hi, s_off, total):
    a(f"s_add_u32 s{d}, s{lo}, s{s_off}")
    a(f"s_addc_u32 s{d+1}, s{hi}, 0")
    a(f"s_and_b32 s{d+1}, s{d+1}, 0xffff")
    a(f"s_sub_u32 s{d+2}, {total}, s{s_off}")
    a(f"s_mov_b32 s{d+3}, 0x20000")

def dma_lanes(a, vr8, vc8, vx0, vx1, t, s_rb, s_w):
    a(f"v_lshrrev_b32 v{vr8}, 3, v0")
    a(f"v_and_b32 v{t}, 7, v0")
    a(f"v_lshrrev_b32 v{t+1}, 1, v{vr8}")
    a(f"v_xor_b32 v{t+2}, v{t}, v{t+1}")
    a(f"v_lshlrev_b32 v{t+2}, 4, v{t+2}")
    a(f"s_lshl_b32 s44, s{s_rb}, 7")
    a(f"s_lshl_b32 s45, s{s_w}, 5")
    a("s_add_u32 s44, s44, s45")
    a(f"v_add_u32 v{vx0}, s44, v{vr8}")
    a(f"v_lshl_add_u32 v{vx0}, v{vx0}, 10, v{t+2}")
    a(f"v_xor_b32 v{vx1}, 64, v{vx0}")
    a(f"v_add_u32 v{vx1}, 8192, v{vx1}")
    a(f"v_lshlrev_b32 v{t+1}, 2, v{t+1}")
    a(f"v_and_b32 v{t+1}, 4, v{t+1}")
    a(f"v_xor_b32 v{t}, v{t}, v{t+1}")
    a(f"v_lshlrev_b32 v{vc8}, 4, v{t}")

def dma_lds(a, s_lx, s_lw, s_w):
    a(f"s_lshl_b32 s{s_lx}, s{s_w}, 12")
    a(f"s_lshr_b32 s46, s{s_w}, 1")
    a(f"s_and_b32 s47, s{s_w}, 1")
    a(f"s_mul_i32 s44, s46, {TU-TG}")
    a("s_lshl_b32 s45, s47, 12")
    a("s_add_u32 s44, s44, s45")
    a(f"s_add_u32 s{s_lw}, s44, {TG}")

def start_stage(a, mode, s_lc, s_w, s_xoff, s_woff, pitch):
    if mode == 1:
        a(f"s_lshl_b32 s44, s{S_LOC}, 1")
        a(f"s_add_u32 s44, s44, s{s_lc}")
        a("s_and_b32 s44, s44, 7")
    elif mode == 2:
        a(f"s_lshl_b32 s44, s{S_LOC}, 1")
        a("s_and_b32 s44, s44, 7")
    else:
        a("s_mov_b32 s44, 0")
    a(f"s_lshl_b32 s{s_xoff}, s44, 7")
    a("s_lshl_b32 s44, s44, 1")
    a(f"s_and_b32 s45, s{s_w}, 1")
    a("s_add_u32 s44, s44, s45")
    a("s_lshl_b32 s44, s44, 5")
    a(f"s_mul_i32 s{s_woff}, s44, {pitch}")

def ffn_srd(a, s_w, s_u):
    a(f"s_cmp_lt_u32 s{s_w}, 2")
    a("s_cselect_b32 s46, s12, s14")
    a("s_cselect_b32 s47, s13, s15")
    a(f"s_lshl_b32 s44, s{s_u}, 5")
    a(f"s_add_u32 s{SB}, s46, s44")
    a(f"s_addc_u32 s{SB+1}, s47, 0")
    a(f"s_and_b32 s{SB+1}, s{SB+1}, 0xffff")
    a(f"s_sub_u32 s{SB+2}, {512*2752}, s44")
    a(f"s_mov_b32 s{SB+3}, 0x20000")

class LQ:
    def __init__(self): self.q = []
    def push(self, tag): self.q.append(tag)
    def need(self, tag):
        if tag not in self.q: return None
        i = len(self.q) - 1 - self.q[::-1].index(tag)
        n = len(self.q) - 1 - i
        self.q = self.q[i+1:]
        return n

def a_waves(a, st):
    R = Regs(4)
    vt = R.alloc(); vt2 = R.alloc(); vt3 = R.alloc(); vt4 = R.alloc()
    kaddr = R.alloc(); vaddr = R.alloc(); vcnt = R.alloc(); vstep = R.alloc(); vmask = R.alloc()
    vx0 = R.alloc(); vx1 = R.alloc(); vw = R.alloc()
    GG = R.alloc(4)
    vr8, vc8, vxu = GG, GG+1, GG+2
    Q = [R.alloc(4), R.alloc(4)]; KR = R.alloc(4); V0 = R.alloc(4); V1 = R.alloc(4)
    P = R.alloc(4); S = [R.alloc(16), R.alloc(16)]
    IDX = R.alloc(); vkp = R.alloc()
    O = [R.alloc(16), R.alloc(16)]; C = [R.alloc(16), R.alloc(16)]
    s_head, s_T, s_c, s_kg, s_vg, s_ld, s_tgt = 48, 49, 50, 51, 52, 53, 54
    s_q0, s_q1, s_slot, s_step, s_tok = 55, 56, 57, 58, 59
    a(f"s_cmp_ge_u32 s{S_WAVE}, 4")
    a("s_cbranch_scc1 L_help0")
    s_rb, s_lc, s_um, s_ue = 48, 49, 50, 51
    s_xoff, s_woff, s_lslot, s_cnt, s_lx, s_lw, s_pitch, s_xslot, s_xu, s_lxu = 52, 53, 54, 55, 56, 57, 58, 59, 60, 61
    JUNK = S[0]
    a(f"s_cmp_ge_u32 s{S_LOC}, 24")
    a("s_cbranch_scc1 L_pf")
    tile_ids(a, s_rb, s_lc)
    dma_lanes(a, vr8, vc8, vx0, vx1, vt2, s_rb, S_WAVE)
    dma_lds(a, s_lx, s_lw, S_WAVE)
    a(f"s_mov_b32 s{s_lslot}, 0")
    a(f"s_mov_b32 s{s_cnt}, 0")
    start_stage(a, o.stag1, s_lc, S_WAVE, s_xoff, s_woff, 3072)
    if o.rot:
        a(f"s_mov_b32 s63, s{s_woff}")
        a(f"s_add_u32 s62, s{S_LOC}, s{s_lc}")
        a(f"s_and_b32 s62, s62, {o.rot}")
        a(f"s_lshl_b32 s{s_xoff}, s62, 7")
        a(f"s_mul_i32 s44, s62, {64*3072}")
        a(f"s_add_u32 s{s_woff}, s44, s63")
    a(f"v_mul_u32_u24 v{vw}, 3072, v{vr8}")
    a(f"s_lshr_b32 s44, s{S_XCD}, 2")
    a("s_mul_i32 s44, s44, 6")
    a(f"s_add_u32 s44, s44, s{s_lc}")
    a("s_lshl_b32 s44, s44, 1")
    a("s_add_u32 s44, s44, s46")
    a("s_lshl_b32 s44, s44, 7")
    a(f"v_add3_u32 v{vw}, v{vw}, v{vc8}, s44")
    a("s_waitcnt lgkmcnt(0)")
    srd(a, SA, 4, 5, 2048*1024)
    srd(a, SB, 6, 7, 512*3072)
    a.label("L_ld0")
    a(f"s_add_u32 m0, s{s_lslot}, s{s_lx}")
    a(f"s_add_u32 s44, s{s_xoff}, 16384")
    for j in range(4):
        a(f"buffer_load_dwordx4 v{vx1 if j & 1 else vx0}, s[{SA}:{SA+3}], s{s_xoff if j < 2 else 44} offen lds")
        if j < 3: a("s_add_u32 m0, m0, 1024")
        else: a(f"s_add_u32 m0, s{s_lslot}, s{s_lw}")
        a([f"s_add_u32 s{s_cnt}, s{s_cnt}, 1", f"s_mov_b32 s45, s{s_woff}", f"s_add_u32 s{s_xoff}, s{s_xoff}, 128", "s_nop 0"][j])
    for j in range(4):
        a(f"buffer_load_dwordx4 v{vw}, s[{SB}:{SB+3}], s45 offen lds")
        if j < 3:
            a("s_add_u32 m0, m0, 1024")
            a(f"s_add_u32 s45, s45, {8*3072}")
    if o.rot:
        a(f"s_xor_b32 s44, s{s_cnt}, s62")
        a(f"s_cmp_lt_u32 s{s_cnt}, {o.rot+1}")
        a(f"s_cselect_b32 s44, s44, s{s_cnt}")
        a(f"s_lshl_b32 s{s_xoff}, s44, 7")
        a(f"s_mul_i32 s44, s44, {64*3072}")
        a(f"s_add_u32 s{s_woff}, s44, s63")
    else:
        a(f"s_add_u32 s{s_woff}, s{s_woff}, {64*3072}")
        a(f"s_and_b32 s{s_xoff}, s{s_xoff}, 1023")
        a(f"s_cselect_b32 s46, 0, {512*3072}")
        a(f"s_sub_u32 s{s_woff}, s{s_woff}, s46")
    a(f"s_sub_u32 s{s_lslot}, s{s_lslot}, {TSTR}")
    a(f"s_cselect_b32 s{s_lslot}, {2*TSTR}, s{s_lslot}")
    a(f"s_cmp_lt_u32 s{s_cnt}, 2")
    a("s_cbranch_scc1 L_ld0")
    a(f"s_cmp_eq_u32 s{s_cnt}, 8")
    a("s_cbranch_scc1 L_ld_end")
    a("s_waitcnt vmcnt(8)")
    if o.hprof:
        for c_, slot in ((2, 95), (3, 100), (5, 101)):
            lab = a.newlabel("hp")
            a(f"s_cmp_eq_u32 s{s_cnt}, {c_}"); a(f"s_cbranch_scc0 {lab}")
            a("s_memrealtime s[96:97]"); a("s_waitcnt lgkmcnt(0)"); a(f"s_sub_u32 s{slot}, s96, s70")
            a.label(lab)
    a("s_barrier")
    a("s_branch L_ld0")
    a.label("L_pf")
    a(f"v_lshrrev_b32 v{vt}, 3, v0")
    a(f"v_and_b32 v{vt2}, 7, v0")
    a(f"v_lshlrev_b32 v{vt2}, 4, v{vt2}")
    a(f"v_lshl_add_u32 v{vx0}, v{vt}, 10, v{vt2}")
    a(f"v_mov_b32 v{vt3}, 1024")
    a(f"v_mov_b32 v{vt4}, 2560")
    a("v_cmp_gt_u32 vcc, 32, v0")
    a(f"s_sub_u32 s46, s{S_LOC}, 24")
    a("s_lshl_b32 s46, s46, 2")
    a(f"s_add_u32 s46, s46, s{S_WAVE}")
    a(f"v_cndmask_b32 v{vt3}, v{vt4}, v{vt3}, vcc")
    a(f"v_add_u32 v{vx1}, v{vt3}, v{V_L16}")
    a(f"s_and_b32 s44, s{S_XCD}, 3")
    a("s_lshl_b32 s44, s44, 5")
    a("s_add_u32 s44, s44, s46")
    a(f"s_lshl_b32 s{s_xoff}, s44, 14")
    a(f"s_add_u32 s{s_xoff}, s{s_xoff}, {128*o.pf0}")
    a(f"s_lshr_b32 s44, s{S_XCD}, 2")
    a("s_mul_i32 s44, s44, 1536")
    a(f"s_mul_i32 s{s_woff}, s46, {2*3072}")
    a(f"s_add_u32 s{s_woff}, s{s_woff}, s44")
    a(f"s_add_u32 s{s_woff}, s{s_woff}, {64*3072*o.pf0}")
    a(f"s_mov_b32 s{s_cnt}, {o.pf0}")
    a("s_waitcnt lgkmcnt(0)")
    srd(a, SA, 4, 5, 2048*1024)
    srd(a, SB, 6, 7, 512*3072)
    a(f"s_cmp_eq_u32 s{S_LOC}, 31")
    a("s_cbranch_scc0 L_pf1")
    a("s_sleep 4")
    a.label("L_pf1")
    a(f"s_add_u32 s44, s{s_xoff}, 8192")
    a(f"buffer_load_dwordx4 {v(JUNK,4)}, v{vx0}, s[{SA}:{SA+3}], s{s_xoff} offen")
    a(f"buffer_load_dwordx4 {v(JUNK,4)}, v{vx0}, s[{SA}:{SA+3}], s44 offen")
    a(f"buffer_load_dwordx4 {v(JUNK,4)}, v{V_L16}, s[{SB}:{SB+3}], s{s_woff} offen")
    a(f"buffer_load_dwordx4 {v(JUNK,4)}, v{vx1}, s[{SB}:{SB+3}], s{s_woff} offen")
    a(f"buffer_load_dwordx4 {v(JUNK,4)}, v{V_L16}, s[{SB}:{SB+3}], s{s_woff} offen offset:3584")
    a(f"s_add_u32 s{s_xoff}, s{s_xoff}, 128")
    a(f"s_add_u32 s{s_woff}, s{s_woff}, {64*3072}")
    a(f"s_add_u32 s{s_cnt}, s{s_cnt}, 1")
    a(f"s_cmp_lt_u32 s{s_cnt}, 8")
    a("s_cbranch_scc1 L_pf1")
    if o.pfup:
        if not o.pf31:
            a(f"s_cmp_eq_u32 s{S_LOC}, 31")
            a("s_cbranch_scc1 L_pf3")
        srd(a, SB, 12, 13, 512*2752)
        srd(a, SC, 14, 15, 512*2752)
        quad_start(a, 44)
        a("s_lshl_b32 s44, s44, 5")
        a(f"s_mul_i32 s{s_woff}, s46, 2752")
        a(f"s_add_u32 s{s_woff}, s{s_woff}, s44")
        a(f"s_and_b32 s44, s{S_XCD}, 3")
        a("s_xor_b32 s44, s44, 1")
        a("s_lshl_b32 s44, s44, 5")
        a("s_add_u32 s44, s44, s46")
        a(f"s_lshl_b32 s{s_xoff}, s44, 14")
        a(f"s_mov_b32 s{s_cnt}, 0")
        a.label("L_pf2")
        a("s_mov_b32 exec_hi, 0x3ffff")
        a(f"buffer_load_dwordx4 {v(JUNK,4)}, v{V_L16}, s[{SB}:{SB+3}], s{s_woff} offen")
        a(f"buffer_load_dwordx4 {v(JUNK,4)}, v{V_L16}, s[{SC}:{SC+3}], s{s_woff} offen")
        a("s_mov_b32 exec_hi, -1")
        a(f"buffer_load_dwordx4 {v(JUNK,4)}, v{vx0}, s[{SA}:{SA+3}], s{s_xoff} offen")
        a(f"s_add_u32 s{s_woff}, s{s_woff}, {32*2752}")
        a(f"s_add_u32 s{s_cnt}, s{s_cnt}, 1")
        a(f"s_bitcmp1_b32 s{s_cnt}, 0")
        a(f"s_mov_b32 s44, {(128-8192) & 0xffffffff}")
        a("s_cselect_b32 s44, 8192, s44")
        a(f"s_add_u32 s{s_xoff}, s{s_xoff}, s44")
        a(f"s_cmp_lt_u32 s{s_cnt}, {o.pfup}")
        a("s_cbranch_scc1 L_pf2")
    a.label("L_pf3")
    for i in range(6): a("s_barrier")
    a.label("L_ld_end")
    srd(a, SWS, 24, 25, WS_BYTES)
    a("s_waitcnt vmcnt(8)")
    a("s_barrier")
    a("s_waitcnt vmcnt(0)")
    a("s_branch L_b7")

    a.label("L_help0")
    GT = S[0]
    a(f"v_lshl_add_u32 v{vt2}, v0, 2, v{V_MISC}")
    a(f"v_mov_b32 v{vt}, 0")
    a(f"ds_write_b32 v{vt2}, v{vt}")
    a("s_lshl_b32 s46, s2, 3")
    a(f"s_lshl_b32 s45, s{S_WAVE}, 1")
    a("s_add_u32 s46, s46, s45")
    a(f"s_sub_u32 s{s_tok}, s46, 8")
    a(f"s_lshl_b32 s44, s{s_tok}, 10")
    a("s_waitcnt lgkmcnt(0)")
    srd(a, SA, 4, 5, 2048*1024)
    srd(a, SB, 18, 19, 1024)
    srd(a, SWS, 24, 25, WS_BYTES)
    srd(a, SC, 22, 23, 256)
    a(f"s_cmp_eq_u32 s{S_WAVE}, 4")
    a("s_cbranch_scc0 L_help2")
    a(f"s_cmp_eq_u32 s{S_LOC}, 31")
    a("s_cbranch_scc0 L_help2")
    a("s_setprio 3")
    a(f"s_add_u32 s46, s24, {W0 + o.wsoff*MB}")
    a("s_addc_u32 s47, s25, 0")
    a("s_load_dword s45, s[46:47], 0 glc")
    for i in range(4): a(f"v_mov_b32 v{GT+i}, 0")
    a(f"s_lshl_b32 s46, s{S_XCD}, 12")
    a(f"s_add_u32 s46, s46, {CNT}")
    for i in range(4):
        a(f"buffer_store_dwordx4 {v(GT,4)}, v{V_L16}, s[{SWS}:{SWS+3}], s46 offen offset:{i*1024} sc1")
    a("s_waitcnt lgkmcnt(0)")
    a("s_mul_i32 s45, s45, 0x19660d")
    a("s_add_u32 s45, s45, 0x3c6ef35f")
    a("s_max_u32 s45, s45, 1")
    a(f"v_mov_b32 v{vt3}, s45")
    a(f"s_lshl_b32 s46, s{S_XCD}, 2")
    a("s_waitcnt vmcnt(0)")
    a("s_mov_b64 exec, 1")
    a(f"buffer_store_dword v{vt3}, off, s[{SC}:{SC+3}], s46 sc1")
    a("s_mov_b64 exec, -1")
    a("s_setprio 0")
    if st.en:
        a("s_memrealtime s[96:97]"); a("s_waitcnt lgkmcnt(0)"); a("s_sub_u32 s95, s96, s70")
    a.label("L_help2")
    a(f"buffer_load_dwordx4 {v(GT,4)}, v{V_L16}, s[{SB}:{SB+3}], 0 offen")
    a(f"buffer_load_dwordx4 {v(GT+4,4)}, v{V_L16}, s[{SA}:{SA+3}], s44 offen")
    a(f"buffer_load_dwordx4 {v(GT+8,4)}, v{V_L16}, s[{SA}:{SA+3}], s44 offen offset:1024")
    a.label("L_help3")
    a.label("L_help4")
    if o.hprof:
        a("s_memrealtime s[96:97]"); a("s_waitcnt lgkmcnt(0)"); a("s_sub_u32 s95, s96, s70")
    a("s_barrier")
    st.stamp(2)
    a("s_barrier")
    a("s_waitcnt vmcnt(0) lgkmcnt(0)")
    for r in range(2):
        a(f"v_mov_b32 v{vt3+r}, 0")
    for i in range(4):
        for r in range(2):
            a(f"v_dot2c_f32_bf16 v{vt3+r}, v{GT+4+4*r+i}, v{GT+i}")
    a("s_nop 2")
    for dpp in ["row_shr:1", "row_shr:2", "row_shr:4", "row_shr:8", "row_bcast:15 row_mask:0xa", "row_bcast:31 row_mask:0xc"]:
        a("s_nop 0")
        for r in range(2):
            a(f"v_add_f32_dpp v{vt3+r}, v{vt3+r}, v{vt3+r} {dpp}")
    a("s_barrier")
    for r in range(2): a(f"v_mul_f32 v{vt3+r}, {f32bits(-LOG2E)}, v{vt3+r}")
    for r in range(2): a(f"v_exp_f32 v{vt3+r}, v{vt3+r}")
    a("s_nop 0")
    for r in range(2): a(f"v_add_f32 v{vt3+r}, 1.0, v{vt3+r}")
    for r in range(2): a(f"v_rcp_f32 v{GG+2*r}, v{vt3+r}")
    a(f"v_and_b32 v{vt2}, 7, v0")
    a(f"v_lshlrev_b32 v{vt2}, 2, v{vt2}")
    hv = S[1]
    tmp = Asm()
    tmp(f"s_sub_u32 s48, s{S_WAVE}, 4")
    up_dma_setup(tmp, hv, hv+4, [hv+5, hv+6, hv+7], 48, 49, 50, 51, 60, 61, 62, 63)
    n3 = len(tmp.lines) // 3
    a.lines += tmp.lines[:n3]
    a("s_barrier")
    a.lines += tmp.lines[n3:2*n3]
    a("s_barrier")
    a.lines += tmp.lines[2*n3:]
    a(f"s_cmp_eq_u32 s{S_WAVE}, 4")
    a("s_cbranch_scc0 L_help5")
    a(f"buffer_load_dword v{vt}, v{vt2}, s[{SC}:{SC+3}], 0 offen sc1")
    a.label("L_help5")
    hv = S[1]
    up_srd(a, 48, 51)
    a(f"s_add_u32 s61, s61, {UWS}")
    hg = up_dma_groups(hv+4, [hv+5, hv+6, hv+7], 60, 61, 62, 63)
    def hx():
        for grp in hg[:4]:
            for l in grp: a(l)
    def hw():
        for grp in hg[4:]:
            for l in grp: a(l)
    def hw0():
        hw()
        a(f"s_add_u32 s61, s61, {UWS}")
        a(f"s_add_u32 s63, s63, {64*2752}")
    plan = [([hw0], [hx, hw], []), ([], [hw0, hx], [hw]), ([], [hw0], [hx, hw]), ([hw0], [hx], [hw]), ([], [], [hw0, hx, hw])][o.hat]
    a("s_barrier")
    if plan[0]: a("s_sleep 4")
    for f in plan[0]: f()
    a("s_barrier")
    for f in plan[1]: f()
    a("s_barrier")
    for f in plan[2]: f()
    a("s_waitcnt vmcnt(6)")
    lds_arrive(a, V_MISC, L_U)
    a(f"s_cmp_eq_u32 s{S_WAVE}, 4")
    a("s_cbranch_scc0 L_pre")
    a(f"s_mov_b32 s{S_SPIN}, 0")
    a.label("L_np")
    a("s_waitcnt vmcnt(0)")
    a(f"v_cmp_eq_u32 vcc, 0, v{vt}")
    a(f"s_cmp_gt_u32 s{S_SPIN}, 200000")
    a("s_cbranch_scc1 L_ng")
    a("s_cbranch_vccz L_ng")
    a(f"s_add_u32 s{S_SPIN}, s{S_SPIN}, 1")
    a("s_sleep 4")
    a(f"buffer_load_dword v{vt}, v{vt2}, s[{SC}:{SC+3}], 0 offen sc1")
    a("s_branch L_np")
    a.label("L_ng")
    if st.en: a(f"s_add_u32 s100, s{S_SPIN}, 1")
    a("s_mov_b64 exec, 1")
    a(f"ds_write_b32 v{V_MISC}, v{vt} offset:{L_NONCE}")
    a("s_cmp_eq_u32 s2, 255")
    a("s_cbranch_scc0 L_nw")
    a(f"s_mov_b32 s44, {W0}")
    a(f"buffer_store_dword v{vt}, off, s[{SWS}:{SWS+3}], s44 sc1")
    a.label("L_nw")
    a("s_mov_b64 exec, -1")
    a.label("L_pre")
    a(f"s_add_u32 s60, s60, {UX[1]-UX[0]}")
    a("s_add_u32 s62, s62, 128")
    a(f"s_sub_u32 s61, s61, {2*UWS}")
    a(f"s_add_u32 s63, s63, {64*2752}")
    lds_wait_ge(a, "pre", V_MISC, L_ST, "4", vt3, sleep=1)
    hx()
    if o.hw2: hw()
    a("s_waitcnt vmcnt(0)")
    lds_arrive(a, V_MISC, L_ST)
    a("s_branch L_b7x")
    a.label("L_b7")
    a("s_barrier")
    a.label("L_b7x")
    a("s_sleep 8")
    st.stamp(3)
    a(f"s_lshl_b32 s44, s{S_XCD}, 2")
    a(f"s_and_b32 s45, s{S_LOC}, 3")
    a(f"s_add_u32 s{s_head}, s44, s45")
    a(f"s_lshr_b32 s44, s{S_LOC}, 2")
    a("s_lshl_b32 s44, s44, 3")
    a(f"s_and_b32 s45, s{S_WAVE}, 3")
    a("s_lshl_b32 s45, s45, 1")
    a("s_add_u32 s44, s44, s45")
    a(f"s_lshr_b32 s46, s{S_WAVE}, 2")
    a(f"s_add_u32 s{s_T}, s44, s46")
    a(f"s_lshl_b32 s44, s{s_head}, 16")
    a(f"s_lshl_b32 s{s_ld}, s{S_WAVE}, 10")
    a(f"s_add_u32 s{s_kg}, s44, s{s_ld}")
    a(f"s_add_u32 s{s_vg}, s{s_kg}, {VF}")
    a(f"s_add_u32 s{s_kg}, s{s_kg}, {KF}")
    a(f"s_lshl_b32 s45, s{s_T}, 10")
    a(f"s_add_u32 s{s_q0}, s44, s45")
    a(f"s_xor_b32 s{s_q1}, s{s_q0}, 1024")
    a("s_lshl_b32 s46, s46, 12")
    a(f"v_and_b32 v{vkp}, 51, v0")
    a(f"v_bfe_u32 v{vt3}, v0, 2, 1")
    a(f"v_lshl_or_b32 v{vkp}, v{vt3}, 3, v{vkp}")
    a(f"v_bfe_u32 v{vt3}, v0, 3, 1")
    a(f"v_lshl_or_b32 v{vkp}, v{vt3}, 2, v{vkp}")
    a(f"v_lshlrev_b32 v{vkp}, 4, v{vkp}")
    a(f"v_add_u32 v{kaddr}, s46, v{vkp}")
    a(f"v_mov_b32 v{IDX}, 0xdddddddd")
    a(f"v_and_b32 v{vt3}, 15, v0")
    a(f"v_lshlrev_b32 v{vt3}, 4, v{vt3}")
    a(f"v_lshrrev_b32 v{vt4}, 5, v0")
    a(f"v_lshl_add_u32 v{vt4}, v{vt4}, 8, v{vt3}")
    a("s_add_u32 s46, s46, 8192")
    a(f"v_add_u32 v{vaddr}, s46, v{vt4}")
    a(f"v_and_b32 v{vt4}, 16, v0")
    a(f"v_cmp_ne_u32 vcc, 0, v{vt4}")
    a(f"v_add_u32 v{vt3}, {VCONST}, v{vt3}")
    a(f"v_mov_b32 v{vstep}, 1")
    a("s_nop 0")
    a(f"v_cndmask_b32 v{vaddr}, v{vaddr}, v{vt3}, vcc")
    a(f"v_cndmask_b32 v{vstep}, v{vstep}, 0, vcc")
    a(f"s_lshl_b32 s44, s{S_WAVE}, 9")
    a(f"v_add_u32 v{vcnt}, s44, v{vt3}")
    a(f"v_and_b32 v{vt4}, 27, v0")
    a(f"v_cmp_eq_u32 vcc, 16, v{vt4}")
    a(f"v_mov_b32 v{vt3}, 0x3f803f80")
    a(f"s_mov_b32 s{s_c}, 0")
    a(f"s_mov_b32 s{s_tgt}, 16")
    for i in range(4):
        a(f"v_cndmask_b32 v{V1+i}, 0, v{vt3}, vcc")
    a("s_mov_b32 exec_lo, 0xffff0000")
    a("s_mov_b32 exec_hi, 0")
    a(f"ds_write_b128 v{vcnt}, {v(V1,4)}")
    a("s_mov_b64 exec, -1")
    a(f"v_mov_b32 v{P}, 0")
    a(f"v_mov_b32 v{P+1}, 0")
    for i in range(16): a(f"v_pk_mov_b32 {v(O[0]+2*i,2)}, {v(P,2)}, {v(P,2)}")
    a(f"s_mov_b32 s{s_slot}, 32768")
    a("s_mov_b32 s60, 99")
    a(f"s_cmp_ge_u32 s{S_WAVE}, 4")
    a("s_cbranch_scc0 L_at_nogst")
    lds_wait_ge(a, "gtag", V_MISC, L_NONCE, "1", GG+1, sleep=2)
    a(f"v_mov_b32 v{GG+3}, v{GG+1}")
    a(f"s_mov_b32 s60, 0")
    a.label("L_at_nogst")
    a(f"s_cmp_eq_u32 s{S_WAVE}, 0")
    a("s_cbranch_scc0 L_at_waitgo")
    a(f"s_lshr_b32 s44, s{S_XCD}, 1")
    a("s_lshl_b32 s44, s44, 1")
    a(f"s_bfe_u32 s45, s{S_LOC}, 0x10001")
    a("s_add_u32 s44, s44, s45")
    a("s_lshl_b32 s44, s44, 10")
    a(f"s_add_u32 s44, s44, {CQ}")
    a(f"v_min_u32 v{vw}, 5, v0")
    a(f"v_lshlrev_b32 v{vw}, 7, v{vw}")
    lds_wait_ge(a, "atpost", V_MISC, L_POST, "4", vt)
    a(f"s_cmp_ge_u32 s{S_LOC}, 24")
    a("s_cbranch_scc1 L_at_pp")
    a(f"s_sleep {o.pdelay}")
    a("s_branch L_at_ppd")
    a.label("L_at_pp")
    a(f"s_lshl_b32 s45, s{S_XCD}, 10")
    a(f"s_add_u32 s45, s45, {CQ + 6*128}")
    poll(a, "atp", vt, None, 45, 1, 4, at=1 if o.apoll & 1 else 0)
    if o.ppdelay: a(f"s_sleep {o.ppdelay}")
    a.label("L_at_ppd")
    st.stamp(2)
    poll(a, "atq", vt, vw, 44, 16, o.psleep, at=6 if o.apoll & 1 else 0)
    if st.en and not o.hprof: a(f"s_mov_b32 s101, s{S_SPIN}")
    a(f"ds_write_b32 v{V_MISC}, v{V_ONE} offset:{L_GO}")
    a("s_branch L_at_go")
    a.label("L_at_waitgo")
    lds_wait_ge(a, "atgo", V_MISC, L_GO, "1", vt)
    a.label("L_at_go")
    st.stamp(4)
    def dma(lit=None):
        if lit is not None: a(f"s_add_u32 m0, s{s_ld}, {lit}")
        else: a(f"s_add_u32 m0, s{s_ld}, s{s_slot}")
        a("s_nop 0")
        a(f"buffer_load_dwordx4 v{V_L16}, s[{SWS}:{SWS+3}], s{s_kg} offen sc1 lds")
        a("s_add_u32 m0, m0, 8192")
        a(f"s_add_u32 s{s_kg}, s{s_kg}, 8192")
        a(f"buffer_load_dwordx4 v{V_L16}, s[{SWS}:{SWS+3}], s{s_vg} offen sc1 lds")
        a(f"s_add_u32 s{s_vg}, s{s_vg}, 8192")
    a(f"buffer_load_dwordx4 {v(Q[0],4)}, v{V_L16}, s[{SWS}:{SWS+3}], s{s_q0} offen sc1")
    a(f"buffer_load_dwordx4 {v(Q[1],4)}, v{V_L16}, s[{SWS}:{SWS+3}], s{s_q1} offen sc1")
    dma(0)
    a("s_waitcnt vmcnt(0) lgkmcnt(0)")
    lds_arrive(a, V_MISC, L_ATT)
    dma(16384)
    lds_wait_ge(a, "at0", V_MISC, L_ATT, "8", vt, sleep=0)
    st.stamp(5)
    a(f"ds_read_b128 {v(V0,4)}, v{V_L16}")
    a(f"ds_read_b128 {v(KR,4)}, v{kaddr}")
    a("s_waitcnt lgkmcnt(1)")
    for q in range(2):
        a(f"{MF} {v(S[q],16)}, {v(V0,4)}, {v(Q[q],4)}, 0")
    a(f"ds_read_b128 {v(V0,4)}, v{vaddr}")
    a("s_nop 9")
    def maxtree(dst, src, first):
        if first:
            a(f"v_max3_f32 v{dst}, v{src}, v{src+1}, v{src+2}")
            rest = list(range(3, 16))
        else:
            rest = list(range(0, 16))
        while len(rest) >= 2:
            a(f"v_max3_f32 v{dst}, v{dst}, v{src+rest[0]}, v{src+rest[1]}")
            rest = rest[2:]
        if rest:
            a(f"v_max_f32 v{dst}, v{dst}, v{src+rest[0]}")
    def setC(q):
        a(f"v_mov_b32 v{vt2}, v{vt}")
        a("s_nop 1")
        a(f"v_permlane32_swap_b32 v{vt}, v{vt2}")
        a("s_nop 1")
        a(f"v_max_f32 v{vt}, v{vt}, v{vt2}")
        a(f"v_sub_f32 v{C[q]}, 0, v{vt}")
        a(f"v_sub_f32 v{C[q]+1}, 0, v{vt}")
        for i in range(1, 8):
            a(f"v_pk_mov_b32 {v(C[q]+2*i,2)}, {v(C[q],2)}, {v(C[q],2)}")
    maxtree(vt, S[0], True)
    setC(0)
    a("s_waitcnt lgkmcnt(0)")
    a("s_nop 0")
    maxtree(vt, S[1], True)
    a(f"{MF} {v(S[0],16)}, {v(KR,4)}, {v(Q[0],4)}, {v(C[0],16)}")
    setC(1)
    for i in range(4):
        a(f"v_pk_mov_b32 {v(S[1]+8+2*i,2)}, {v(P,2)}, {v(P,2)}")
    def e(cur, i): a(f"v_exp_f32 v{cur+i}, v{cur+i}")
    c0, c1, c2 = [int(x) for x in o.cuts.split(",")]
    def body(emit, lq):
        def A(s):
            if emit: a(s)
        def w(tag):
            n = lq.need(tag)
            if n is not None: A(f"s_waitcnt lgkmcnt({n})")
        def E(cur, lo, hi):
            if emit:
                for i in range(lo, hi): e(cur, i)
        def rdv(reg, off, tag):
            A(f"ds_read_b128 {v(reg,4)}, v{vaddr} offset:{off}")
            lq.push(tag)
        for tt in range(4):
            for q in range(2):
                cur = S[q]; nxt = S[q ^ 1]
                stp = 2*tt + q
                if o.aprio >= 3 and stp in (0, o.aprio+1):
                    lab = a.newlabel("pr") if emit else ""
                    A(f"s_cmp_ge_u32 s{S_WAVE}, 4")
                    A(f"s_cbranch_scc1 {lab}")
                    A(f"s_setprio {1 if stp == 0 else 0}")
                    if emit: a.label(lab)
                E(cur, 0, c0)
                if q == 1: w("K")
                A(f"{SM} {v(O[q^1],16)}, {v(V1,4)}, {v(nxt+8,8)}, v{IDX}")
                if q == 0:
                    rdv(V1, tt*1024 + 512, "V1")
                if stp == o.xat:
                    if emit: st.abeg()
                    A("s_waitcnt vmcnt(0)")
                    if emit: st.aend(0)
                    A("s_mov_b64 exec, 1")
                    A(f"ds_add_u32 v{V_MISC}, v{V_ONE} offset:{L_ATT}")
                    A("s_mov_b64 exec, -1")
                    lq.push("X")
                if stp == o.yat - 1:
                    A(f"ds_read_b32 v{vcnt}, v{V_MISC} offset:{L_ATT}")
                    lq.push("CNT")
                E(cur, c0, c1)
                A(f"{MF} {v(nxt,16)}, {v(KR,4)}, {v(Q[q^1],4)}, {v(C[q^1],16)}")
                if q == 0:
                    if tt == 3:
                        A(f"v_add_u32 v{kaddr}, s{s_step}, v{kaddr}")
                        A(f"ds_read_b128 {v(KR,4)}, v{kaddr}")
                    else:
                        A(f"ds_read_b128 {v(KR,4)}, v{kaddr} offset:{(tt+1)*1024}")
                    lq.push("K")
                E(cur, c1, c2)
                if q == 0: w("V0")
                A(f"{SM} {v(O[q],16)}, {v(V0,4)}, {v(cur,8)}, v{IDX}")
                if q == 1:
                    if tt == 3:
                        A(f"v_mad_i32_i24 v{vaddr}, v{vstep}, s{s_step}, v{vaddr}")
                        rdv(V0, 0, "V0")
                    else:
                        rdv(V0, (tt+1)*1024, "V0")
                if stp == o.yat:
                    w("CNT")
                    A(f"v_cmp_gt_u32 vcc, s{s_tgt}, v{vcnt}")
                    A(f"s_cmp_lt_u32 s{s_c}, 6")
                    A("s_cbranch_vccnz L_at_slow")
                    if emit:
                        a.label("L_at_back")
                        a("s_cbranch_scc0 L_at_dmadone")
                        st.abeg()
                        dma()
                        st.aend(2)
                        a(f"s_add_u32 s{s_slot}, s{s_slot}, 16384")
                        a(f"s_cmp_eq_u32 s{s_slot}, 49152")
                        a(f"s_cselect_b32 s{s_slot}, 0, s{s_slot}")
                        a(f"s_cmp_eq_u32 s{s_c}, s60")
                        a("s_cbranch_scc1 L_at_gst")
                        a.label("L_at_dmadone")
                E(cur, c2, 16)
    lq = LQ()
    body(False, lq)
    steady = list(lq.q)
    if o.aprio:
        a(f"s_cmp_lt_u32 s{S_WAVE}, 4")
        a("s_cbranch_scc1 L_at_np")
        a("s_setprio 1")
        a.label("L_at_np")
    st.stamp(8)
    a(".p2align 6")
    a.label("L_at_loop")
    assert o.xat < o.yat - 1 and o.yat <= 5
    a(f"s_bitcmp1_b32 0x24, s{s_c}")
    a(f"s_mov_b32 s44, {(-32768) & 0xffffffff}")
    a(f"s_cselect_b32 s{s_step}, s44, 16384")
    body(True, lq)
    assert lq.q == steady, (lq.q, steady)
    a(f"s_add_u32 s{s_c}, s{s_c}, 1")
    a(f"s_add_u32 s{s_tgt}, s{s_tgt}, 8")
    a(f"s_cmp_lt_u32 s{s_c}, 8")
    a("s_cbranch_scc1 L_at_loop")
    st.stamp(9)
    a(f"{SM} {v(O[1],16)}, {v(V1,4)}, {v(S[1]+8,8)}, v{IDX}")
    a(f"s_and_b32 s44, s{S_WAVE}, 3")
    a("s_lshl_b32 s44, s44, 12")
    a(f"s_lshr_b32 s45, s{S_WAVE}, 2")
    a("s_lshl_b32 s45, s45, 15")
    a("s_add_u32 s44, s44, s45")
    a(f"v_add_u32 v{kaddr}, s44, v{V_L16}")
    a(f"v_xor_b32 v{vaddr}, 32768, v{kaddr}")
    a(f"s_and_b32 s44, s{S_WAVE}, 3")
    a(f"v_lshl_add_u32 v{vt3}, s44, 2, v{V_MISC}")
    a(f"s_lshl_b32 s46, s{s_T}, 5")
    a(f"s_add_u32 s46, s46, s{s_head}")
    a("s_lshl_b32 s46, s46, 10")
    a(f"s_add_u32 s{s_q0}, s46, {OF}")
    a(f"s_lshl_b32 s44, s{s_T}, 1")
    a(f"s_lshr_b32 s45, s{s_head}, 4")
    a("s_add_u32 s44, s44, s45")
    a("s_lshl_b32 s44, s44, 7")
    a(f"s_add_u32 s{s_q1}, s44, {CO}")
    for i in range(3):
        a(f"ds_write_b128 v{kaddr}, {v(O[1]+4*i,4)} offset:{i*1024}")
    a("s_waitcnt lgkmcnt(0)")
    lds_arrive(a, vt3, L_PAIR)
    a(f"s_mov_b32 s{S_SPIN}, 0")
    a.label("L_at_pair")
    a(f"ds_read_b32 v{vt}, v{vt3} offset:{L_PAIR}")
    for i in range(3):
        a(f"ds_read_b128 {v(O[1]+4*i,4)}, v{vaddr} offset:{i*1024}")
    a(f"s_add_u32 s{S_SPIN}, s{S_SPIN}, 1")
    a("s_waitcnt lgkmcnt(0)")
    a(f"v_cmp_gt_u32 vcc, 2, v{vt}")
    a(f"s_cmp_gt_u32 s{S_SPIN}, 2000000")
    a("s_cbranch_scc1 L_at_pok")
    a("s_cbranch_vccz L_at_pok")
    a("s_sleep 1")
    a("s_branch L_at_pair")
    a.label("L_at_pok")
    a(f"v_add_f32 v{O[0]+8}, v{O[0]+8}, v{O[1]+8}")
    for i in range(4):
        a(f"v_pk_add_f32 {v(O[0]+2*i,2)}, {v(O[0]+2*i,2)}, {v(O[1]+2*i,2)}")
    a(f"v_mov_b32 v{vt}, {f32bits(2.0**30)}")
    a(f"v_cmp_nle_f32 vcc, v{O[0]+8}, v{vt}")
    a(f"v_pk_mul_f32 {v(S[0],2)}, {v(O[0],2)}, 0")
    for i in range(1, 4):
        a(f"v_pk_fma_f32 {v(S[0],2)}, {v(O[0]+2*i,2)}, 0, {v(S[0],2)}")
    a(f"v_cmp_u_f32 s[44:45], v{S[0]}, v{S[0]+1}")
    a(f"v_rcp_f32 v{vt}, v{O[0]+8}")
    a("s_nop 2")
    a("s_or_b64 vcc, vcc, s[44:45]")
    a("s_cbranch_vccnz L_at_fallback")
    a.label("L_at_fin")
    for i in range(4):
        a(f"v_pk_mul_f32 {v(O[0]+2*i,2)}, {v(O[0]+2*i,2)}, {v(vt,2)} op_sel_hi:[1,0]")
    for i in range(4):
        a(f"v_cvt_pk_bf16_f32 v{P+i}, v{O[0]+2*i}, v{O[0]+2*i+1}")
    a(f"buffer_store_dwordx4 {v(P,4)}, v{V_L16}, s[{SWS}:{SWS+3}], s{s_q0} offen sc1")
    st.stamp(10)
    if o.done:
        a(f"ds_read_b32 v{vt2}, v{V_MISC} offset:{L_NONCE}")
        a(f"v_mov_b32 v{vt}, 1")
        a(f"s_add_u32 s44, s{s_q1}, {DONE}")
        a("s_waitcnt vmcnt(0)")
        a("s_mov_b64 exec, 1")
        a(f"buffer_atomic_add v{vt}, off, s[{SWS}:{SWS+3}], s{s_q1} sc0 sc1")
        a("s_waitcnt vmcnt(0) lgkmcnt(0)")
        a(f"v_cmp_eq_u32 vcc, 15, v{vt}")
        a("s_cbranch_vccz L_at_notlast")
        a(f"buffer_store_dword v{vt2}, off, s[{SWS}:{SWS+3}], s44 sc1")
        a.label("L_at_notlast")
        a("s_mov_b64 exec, -1")
    else:
        post(a, s_q1)
    st.stamp(11)
    if st.en and not getattr(o, "noffn", 0):
        st.stamp(6); st.real(7)
        for i in range(2 if o.early else 3): a("s_barrier")
        a("s_sleep 40")
        st.flush(SWS, S_WAVE, 4)
        a("s_endpgm")
    finish(a, st)
    a.label("L_at_gst")
    a(f"s_lshl_b32 s44, s{s_tok}, 3")
    a(f"s_add_u32 s44, s44, {GA}")
    a("s_mov_b32 exec_lo, 0")
    a("s_brev_b32 exec_hi, 1")
    a(f"buffer_store_dwordx4 {v(GG,4)}, off, s[{SWS}:{SWS+3}], s44 sc1")
    a("s_mov_b64 exec, -1")
    a("s_branch L_at_dmadone")
    a.label("L_at_slow")
    st.abeg()
    lds_wait_ge(a, "ats", V_MISC, L_ATT, f"s{s_tgt}", vcnt)
    st.aend(1)
    a(f"s_cmp_lt_u32 s{s_c}, 6")
    a("s_branch L_at_back")
    def fallback():
        a.label("L_at_fallback")
        a(f"s_lshl_b32 s46, s{s_head}, 16")
        a(f"s_add_u32 s{s_kg}, s46, {KF}")
        a(f"v_mov_b32 v{vt}, 0xff800000")
        a(f"s_mov_b32 s{s_c}, 0")
        a.label("L_at_fb1")
        a(f"buffer_load_dwordx4 {v(KR,4)}, v{V_L16}, s[{SWS}:{SWS+3}], s{s_kg} offen sc1")
        a(f"s_add_u32 s{s_kg}, s{s_kg}, 1024")
        a("s_waitcnt vmcnt(0)")
        a(f"{MF} {v(S[0],16)}, {v(KR,4)}, {v(Q[0],4)}, 0")
        a("s_nop 15")
        maxtree(vt, S[0], False)
        a(f"s_add_u32 s{s_c}, s{s_c}, 1")
        a(f"s_cmp_lt_u32 s{s_c}, 64")
        a("s_cbranch_scc1 L_at_fb1")
        setC(0)
        for i in range(16):
            a(f"v_mov_b32 v{O[0]+i}, 0")
        a(f"v_and_b32 v{vt}, 15, v0")
        a(f"v_lshlrev_b32 v{vt}, 4, v{vt}")
        a(f"v_lshrrev_b32 v{vt2}, 5, v0")
        a(f"v_lshl_add_u32 v{vaddr}, v{vt2}, 8, v{vt}")
        a(f"s_add_u32 s{s_kg}, s46, {KF}")
        a(f"s_add_u32 s{s_vg}, s46, {VF}")
        a(f"s_mov_b32 s{s_c}, 0")
        a("s_mov_b32 s44, 0xffff")
        a("s_mov_b32 s45, 0xffff")
        a.label("L_at_fb2")
        a(f"buffer_load_dwordx4 {v(KR,4)}, v{vkp}, s[{SWS}:{SWS+3}], s{s_kg} offen sc1")
        a("s_mov_b64 exec, s[44:45]")
        a(f"buffer_load_dwordx4 {v(V0,4)}, v{vaddr}, s[{SWS}:{SWS+3}], s{s_vg} offen sc1")
        a(f"buffer_load_dwordx4 {v(V1,4)}, v{vaddr}, s[{SWS}:{SWS+3}], s{s_vg} offen offset:512 sc1")
        a("s_mov_b64 exec, -1")
        a(f"s_add_u32 s{s_kg}, s{s_kg}, 1024")
        a(f"s_add_u32 s{s_vg}, s{s_vg}, 1024")
        a("s_waitcnt vmcnt(0)")
        a(f"{MF} {v(S[0],16)}, {v(KR,4)}, {v(Q[0],4)}, {v(C[0],16)}")
        a("s_nop 15")
        for i in range(16): e(S[0], i)
        a("s_nop 2")
        a(f"{SM} {v(O[0],16)}, {v(V0,4)}, {v(S[0],8)}, v{IDX}")
        a(f"{SM} {v(O[0],16)}, {v(V1,4)}, {v(S[0]+8,8)}, v{IDX}")
        a("s_nop 15")
        a(f"s_add_u32 s{s_c}, s{s_c}, 1")
        a(f"s_cmp_lt_u32 s{s_c}, 64")
        a("s_cbranch_scc1 L_at_fb2")
        a(f"v_rcp_f32 v{vt}, v{O[0]+8}")
        a("s_branch L_at_fin")
    return R.hi, fallback

def fbar(a, vt):
    tag = a.newlabel("fb")[2:]
    a(f"s_add_u32 s{S_FBT}, s{S_FBT}, 4")
    lds_arrive(a, V_MISC, L_FB)
    lds_wait_ge(a, tag, V_MISC, L_FB, f"s{S_FBT}", vt, sleep=2)

def f_waves(a, st):
    t0 = 4
    vx, vw, uxaddr, uwaddr = 8, [9, 10, 11], [16, 17, 18, 19], 12
    vsrc, wa = 14, 15
    s_fw, s_rb, s_lc, s_stage, s_cb, s_T2, s_N2, s_lb = 48, 49, 50, 53, 54, 60, 61, 62
    s_urb, s_cg, s_u0, s_skip, s_dx, s_dw = 51, 52, 55, 56, 57, 58
    s_lx, s_lw, s_xoff, s_woff = 63, 64, 65, 66
    hi = []
    R = Regs(20)
    xaddr = [R.alloc() for _ in range(4)]; waddr = R.alloc()
    XF = [[R.alloc(4) for _ in range(2)] for _ in range(2)]
    WF = [[R.alloc(4) for _ in range(2)] for _ in range(2)]
    ACC = [[R.alloc(16) for _ in range(2)] for _ in range(2)]
    TMP = R.alloc(16)
    hi.append(R.hi)
    def zero(r, n):
        a(f"v_mov_b32 v{r}, 0")
        a(f"v_mov_b32 v{r+1}, 0")
        for i in range(1, n//2): a(f"v_pk_mov_b32 {v(r+2*i,2)}, {v(r,2)}, {v(r,2)}")
    def xlane():
        a(f"v_and_b32 v{t0}, 31, v0")
        a(f"v_lshrrev_b32 v{t0+1}, 5, v0")
        a(f"v_bfe_u32 v{t0+2}, v{t0}, 1, 3")
        a(f"v_xor_b32 v{t0+2}, v{t0+2}, v{t0+1}")
        a(f"v_lshlrev_b32 v{t0+2}, 4, v{t0+2}")
        a(f"v_lshl_add_u32 v{t0}, v{t0}, 7, v{t0+2}")
    def trlane():
        a(f"v_bfe_u32 v{t0}, v0, 2, 2")
        a(f"v_bfe_u32 v{t0+2}, v0, 4, 1")
        a(f"v_and_b32 v{t0+3}, 3, v0")
        a(f"v_lshlrev_b32 v{t0+3}, 3, v{t0+3}")
    uw2 = 13
    def late_setup():
        xlane()
        a(f"s_and_b32 s44, s{s_fw}, 1")
        a("s_lshl_b32 s47, s44, 13")
        a(f"s_add_u32 s47, s47, {UX[0]}")
        for kk in range(4):
            a(f"v_xor_b32 v{t0+3}, {kk*32}, v{t0}")
            a(f"v_add_u32 v{uxaddr[kk]}, s47, v{t0+3}")
        trlane()
        a(f"v_lshl_add_u32 v{uwaddr}, v{t0+1}, 3, v{t0}")
        a(f"v_mul_u32_u24 v{uwaddr}, 192, v{uwaddr}")
        a(f"v_mul_u32_u24 v{vsrc}, {WIMG}, v{t0+2}")
        a(f"v_add3_u32 v{uwaddr}, v{uwaddr}, v{vsrc}, v{t0+3}")
        a(f"v_add_u32 v{uwaddr}, {UW[0]+UWS}, v{uwaddr}")
        a(f"v_lshl_add_u32 v{t0+3}, v{t0+2}, 5, v{t0+3}")
        a(f"v_lshl_add_u32 v{t0}, v{t0+1}, 2, v{t0}")
        a(f"v_lshl_add_u32 v{t0+3}, v{t0}, 7, v{t0+3}")
        a(f"v_add_u32 v{wa}, v{wa}, v{t0+3}")
        a(f"s_lshl_b32 s{s_lb}, s{s_fw}, 14")
        a(f"s_add_u32 s{s_lb}, s{s_lb}, {STG}")
        a(f"s_lshl_b32 s44, s{S_XCD}, 2")
        a(f"s_and_b32 s45, s{S_LOC}, 3")
        a(f"s_add_u32 s{s_T2}, s44, s45")
        a(f"s_lshr_b32 s{s_N2}, s{S_LOC}, 2")
        a(f"v_lshrrev_b32 v{t0}, 3, v0")
        a(f"v_and_b32 v{t0+1}, 7, v0")
        a(f"v_lshlrev_b32 v{t0+3}, 1, v{t0}")
        a(f"v_and_b32 v{t0+3}, 4, v{t0+3}")
        a(f"v_xor_b32 v{t0+3}, v{t0+1}, v{t0+3}")
        a(f"v_lshlrev_b32 v{t0+3}, 4, v{t0+3}")
        a(f"v_lshl_add_u32 v{t0+3}, v{t0}, 10, v{t0+3}")
        a(f"s_lshl_b32 s44, s{s_N2}, 7")
        a(f"v_add_u32 v{vsrc}, s44, v{t0+3}")
        up_dma_setup(a, t0, vx, vw, s_fw, s_urb, s_cg, s_u0, s_lx, s_lw, s_xoff, s_woff)
        a(f"s_lshr_b32 s46, s{s_fw}, 1")
        a(f"s_cmp_eq_u32 s{s_cg}, 4")
        a("s_cselect_b32 s44, 2, 3")
        a("s_mul_i32 s44, s44, s46")
        a("s_lshl_b32 s47, 1, s46")
        a(f"s_cmp_eq_u32 s{s_cg}, 5")
        a(f"s_cselect_b32 s{s_skip}, s47, 0")
        a(f"s_cmp_eq_u32 s{s_cg}, 6")
        a(f"s_cselect_b32 s{s_skip}, 3, s{s_skip}")
        a("s_cselect_b32 s45, s44, 0")
        a("s_add_u32 s45, s45, 2")
        a("s_lshl_b32 s47, s45, 5")
        a(f"v_add_u32 v{uw2}, s47, v{uwaddr}")
        a("s_lshl_b32 s47, s44, 5")
        a(f"v_add_u32 v{uwaddr}, s47, v{uwaddr}")
        a("s_lshl_b32 s45, s45, 8")
        a(f"s_add_u32 s{s_cg}, s45, s44")
        a(f"s_mov_b32 s{s_dx}, {UX[1]-UX[0]}")
        a(f"s_add_u32 s{s_dw}, s{s_lw}, {3*UWS}")
        up_srd(a, s_fw, s_u0)
    for i in range(4): a(f"v_mov_b32 v{XF[1][0]+i}, 0")
    a(f"s_sub_u32 s{s_fw}, s{S_WAVE}, 8")
    a(f"s_and_b32 s44, s{s_fw}, 1")
    for u in range(2):
        for t in range(2):
            a(f"{MF} {v(ACC[u][t],16)}, {v(XF[1][0],4)}, {v(XF[1][0],4)}, 0")
    a(f"s_lshr_b32 s46, s{s_fw}, 1")
    xlane()
    a("s_lshl_b32 s45, s44, 13")
    for kk in range(4):
        a(f"v_xor_b32 v{t0+3}, {kk*32}, v{t0}")
        a(f"v_add_u32 v{xaddr[kk]}, s45, v{t0+3}")
    trlane()
    a(f"v_lshl_add_u32 v{waddr}, v{t0+1}, 3, v{t0}")
    a(f"v_lshl_add_u32 v{waddr}, v{waddr}, 7, v{t0+3}")
    a(f"v_lshlrev_b32 v{wa}, 5, v{t0}")
    a(f"v_and_b32 v{wa}, 64, v{wa}")
    a("s_lshl_b32 s45, s46, 6")
    a(f"v_xor_b32 v{wa}, s45, v{wa}")
    a(f"v_mul_u32_u24 v{vsrc}, {TU-TG}, v{t0+2}")
    a(f"v_add3_u32 v{waddr}, v{waddr}, v{vsrc}, v{wa}")
    a(f"v_add_u32 v{waddr}, {TG}, v{waddr}")
    tile_ids(a, s_rb, s_lc)
    a(f"s_lshr_b32 s44, s{S_XCD}, 2")
    a("s_mul_i32 s44, s44, 6")
    a(f"s_add_u32 s{s_cb}, s44, s{s_lc}")
    a(f"s_mov_b32 s{s_stage}, 0")
    a(f"s_mov_b32 s{S_FBT}, 0")
    a("s_waitcnt lgkmcnt(0)")
    srd(a, SWS, 24, 25, WS_BYTES)
    a(f"s_cmp_lt_u32 s{S_LOC}, 24")
    a("s_cbranch_scc1 L_E_work")
    for i in range(8): a("s_barrier")
    a("s_branch L_E_late")
    a.label("L_E_work")
    if o.eprio: a(f"s_setprio {o.eprio}")
    def rx(kk, buf, t): a(f"ds_read_b128 {v(XF[buf][t],4)}, v{xaddr[kk]} offset:{t*4096}")
    def rw(kk, buf, u, h): a(f"ds_read_b64_tr_b16 {v(WF[buf][u]+2*h,2)}, v{waddr} offset:{kk*2048+u*32+h*512}")
    if o.hprof:
        a("s_memrealtime s[96:97]"); a("s_waitcnt lgkmcnt(0)"); a("s_sub_u32 s95, s96, s70")
    a("s_barrier")
    st.stamp(2)
    if st.en: a("s_waitcnt lgkmcnt(0)")
    rx(0, 0, 0); rw(0, 0, 0, 0); rw(0, 0, 0, 1); rx(0, 0, 1); rw(0, 0, 1, 0); rw(0, 0, 1, 1)
    a(f"s_cmp_ge_u32 s{s_cb}, 8")
    a("s_cbranch_scc1 L_E_loopV")
    def loop(tag):
        def mm(buf, u, t):
            A_, B_ = (XF[buf][t], WF[buf][u]) if tag == "V" else (WF[buf][u], XF[buf][t])
            a(f"{MF} {v(ACC[u][t],16)}, {v(A_,4)}, {v(B_,4)}, {v(ACC[u][t],16)}")
        a.label(f"L_E_loop{tag}")
        for kk in range(3):
            b = kk & 1; n = b ^ 1
            a("s_waitcnt lgkmcnt(3)")
            mm(b, 0, 0)
            rx(kk+1, n, 0); rw(kk+1, n, 0, 0)
            a("s_waitcnt lgkmcnt(4)")
            mm(b, 0, 1)
            rw(kk+1, n, 0, 1); rx(kk+1, n, 1)
            a("s_waitcnt lgkmcnt(4)")
            mm(b, 1, 0)
            rw(kk+1, n, 1, 0); rw(kk+1, n, 1, 1)
            mm(b, 1, 1)
            if kk == 2:
                a(f"s_add_u32 s{s_stage}, s{s_stage}, 1")
                a(f"s_bitcmp1_b32 0x92, s{s_stage}")
                a(f"s_mov_b32 s45, {(-TSTR) & 0xffffffff}")
                a(f"s_cselect_b32 s44, {2*TSTR}, s45")
        a("s_waitcnt lgkmcnt(3)")
        mm(1, 0, 0)
        for r in xaddr + [waddr]:
            a(f"v_add_u32 v{r}, s44, v{r}")
        a(f"s_cmp_eq_u32 s{s_stage}, 8")
        a("s_waitcnt lgkmcnt(0)")
        mm(1, 0, 1)
        a(f"s_cbranch_scc1 L_E_tail{tag}")
        a("s_barrier")
        rx(0, 0, 0); rw(0, 0, 0, 0); rw(0, 0, 0, 1)
        mm(1, 1, 0)
        rx(0, 0, 1); rw(0, 0, 1, 0); rw(0, 0, 1, 1)
        mm(1, 1, 1)
        a(f"s_branch L_E_loop{tag}")
        a.label(f"L_E_tail{tag}")
        mm(1, 1, 0)
        mm(1, 1, 1)
    loop("T")
    a(f"v_mov_b32 v{t0}, v{V_L16}")
    a(f"s_mov_b32 s47, {4*65536}")
    a("s_branch L_E_epiQ")
    loop("V")
    a(f"v_and_b32 v{t0}, 15, v0")
    a(f"v_lshlrev_b32 v{t0}, 4, v{t0}")
    a(f"v_lshrrev_b32 v{t0+1}, 5, v0")
    a(f"v_lshl_add_u32 v{t0}, v{t0+1}, 8, v{t0}")
    a(f"v_bfe_u32 v{t0+1}, v0, 4, 1")
    a(f"v_lshl_add_u32 v{t0}, v{t0+1}, 18, v{t0}")
    a("s_mov_b32 s47, 512")
    a.label("L_E_epiQ")
    st.stamp(3)
    a(f"s_lshl_b32 s44, s{s_cb}, 19")
    a(f"s_lshr_b32 s45, s{s_fw}, 1")
    a("s_lshl_b32 s45, s45, 17")
    a("s_add_u32 s44, s44, s45")
    a(f"s_lshl_b32 s45, s{s_rb}, 12")
    a("s_add_u32 s44, s44, s45")
    a(f"s_and_b32 s45, s{s_fw}, 1")
    a("s_lshl_b32 s45, s45, 11")
    a("s_add_u32 s44, s44, s45")
    a("s_add_u32 s45, s44, s47")
    a(f"s_cmp_lt_u32 s{s_cb}, 4")
    a("s_cbranch_scc0 L_E_noscale")
    a(f"s_mov_b32 s46, {f32bits(QSCALE)}")
    a("s_mov_b32 s47, s46")
    for i in range(32):
        a(f"v_pk_mul_f32 {v(ACC[0][0]+2*i,2)}, {v(ACC[0][0]+2*i,2)}, s[46:47]")
    a.label("L_E_noscale")
    n = 0
    for u in range(2):
        for t in range(2):
            for half in range(2):
                tm = TMP + 4*(n & 3); n += 1
                src = ACC[u][t] + 8*half
                for i in range(4):
                    a(f"v_cvt_pk_bf16_f32 v{tm+i}, v{src+2*i}, v{src+2*i+1}")
                a(f"buffer_store_dwordx4 {v(tm,4)}, v{t0}, s[{SWS}:{SWS+3}], s{44+half} offen offset:{t*1024} sc1")
        if u == 0:
            a("s_add_u32 s44, s44, 65536")
            a("s_add_u32 s45, s45, 65536")
    a(f"s_and_b32 s44, s{s_cb}, 3")
    a("s_lshl_b32 s44, s44, 1")
    a(f"s_lshr_b32 s45, s{s_fw}, 1")
    a("s_add_u32 s44, s44, s45")
    a("s_lshl_b32 s44, s44, 3")
    a(f"s_lshr_b32 s45, s{s_cb}, 2")
    a("s_lshl_b32 s45, s45, 1")
    a("s_add_u32 s44, s44, s45")
    a(f"s_and_b32 s45, s{s_fw}, 1")
    a("s_add_u32 s44, s44, s45")
    a("s_lshl_b32 s44, s44, 7")
    a(f"s_add_u32 s59, s44, {CQ}")
    a.label("L_E_late")
    lds_arrive(a, V_MISC, L_ST)
    late_setup()
    if o.noffn: finish(a, st)
    R = Regs(20)
    XF = [[R.alloc(4) for _ in range(2)] for _ in range(2)]
    WF = [R.alloc(4) for _ in range(3)]
    UACC = [[R.alloc(16) for _ in range(2)] for _ in range(3)]
    hi.append(R.hi)
    def up_groups():
        g = up_dma_groups(vx, vw, s_lx, s_lw, s_xoff, s_woff)
        g[3] += [f"s_add_u32 s{s_xoff}, s{s_xoff}, 128",
                 f"s_and_b32 s{s_xoff}, s{s_xoff}, 1023",
                 f"s_add_u32 s{s_lx}, s{s_lx}, s{s_dx}",
                 f"s_sub_u32 s{s_dx}, 0, s{s_dx}"]
        g[9] += [f"s_add_u32 s{s_woff}, s{s_woff}, {64*2752}",
                 f"s_cmp_eq_u32 s{s_woff}, {512*2752}",
                 f"s_cselect_b32 s{s_woff}, 0, s{s_woff}",
                 f"s_add_u32 s{s_lw}, s{s_lw}, {UWS}",
                 f"s_cmp_eq_u32 s{s_lw}, s{s_dw}",
                 f"s_cselect_b32 s44, {3*UWS}, 0",
                 f"s_sub_u32 s{s_lw}, s{s_lw}, s44"]
        return g
    a(f"s_movk_i32 s{s_xoff}, 256")
    a(f"s_mov_b32 s{s_woff}, {2*64*2752}")
    zero(UACC[0][0], 96)
    a(f"s_mov_b32 s{s_stage}, 0")
    a(f"s_mov_b32 s{s_rb}, {UX[1]-UX[0]}")
    a(f"s_mov_b32 s{s_lc}, {UWS}")
    def rd_x(kk, buf):
        for t in range(2):
            a(f"ds_read_b128 {v(XF[buf][t],4)}, v{uxaddr[kk]} offset:{t*4096}")
    def rd_w(kk, u):
        off = kk*16*192 + (u*32 if u < 2 else 0)
        ad = uwaddr if u < 2 else uw2
        a(f"ds_read_b64_tr_b16 {v(WF[u],2)}, v{ad} offset:{off}")
        a(f"ds_read_b64_tr_b16 {v(WF[u]+2,2)}, v{ad} offset:{off+4*192}")
    def nops(n):
        if n > 0: a(f"s_nop {n-1}")
    cnt = [0, o.mprio]
    def umm(u, buf, fill=None, after=3):
        for t in range(2):
            a(f"{MF} {v(UACC[u][t],16)}, {v(WF[u],4)}, {v(XF[buf][t],4)}, {v(UACC[u][t],16)}")
            if o.hp:
                want = 2 if (fill and cnt[0] < o.hp) else o.mprio
                if want != cnt[1]: a(f"s_setprio {want}"); cnt[1] = want
                cnt[0] += 1
            if fill:
                for _ in range(o.dper):
                    if fill:
                        for l in fill.pop(0): a(l)
            else:
                nops(o.fpace - (after if t == 1 else 0))
    def postblk():
        lds_wait_ge(a, "tg1", V_MISC, L_NONCE, "1", t0+1)
        a(f"s_cmp_lt_u32 s{S_LOC}, 24")
        a("s_cbranch_scc0 L_E_done2")
        post(a, 59)
        a(f"s_add_u32 s44, s{S_LOC}, s{s_fw}")
        a("s_cmp_eq_u32 s44, 0")
        a("s_cbranch_scc0 L_E_done2")
        a(f"s_lshl_b32 s44, s{S_XCD}, 10")
        a(f"s_add_u32 s44, s44, {CQ + 6*128}")
        a("s_mov_b64 exec, 1")
        a(f"buffer_atomic_add v{V_ONE}, off, s[{SWS}:{SWS+3}], s44 sc1")
        a("s_mov_b64 exec, -1")
        a.label("L_E_done2")
        lds_arrive(a, V_MISC, L_POST)
        st.stamp(4)
    if o.pfirst: postblk()
    lds_wait_ge(a, "u0", V_MISC, L_U, "4", t0, sleep=1)
    rd_x(0, 0)
    for u in range(3): rd_w(0, u)
    def umm_skip(u, buf):
        for t in range(2):
            lab = a.newlabel("upskip")
            a(f"s_bitcmp1_b32 s{s_skip}, {t}")
            a(f"s_cbranch_scc0 {lab}")
            a(f"{MF} {v(UACC[u][t],16)}, {v(WF[u],4)}, {v(XF[buf][t],4)}, {v(UACC[u][t],16)}")
            a.label(lab)
        if o.hp and cnt[1] != o.mprio:
            a(f"s_setprio {o.mprio}"); cnt[1] = o.mprio
    if o.pre == 3:
        a.label("L_ub_loop")
        for kk in range(4):
            buf = kk & 1
            for u in range(3):
                younger = (2-u)*2 + (0 if (u == 0 or kk == 3) else 2 + 2*u)
                a(f"s_waitcnt lgkmcnt({younger})")
                if u == 2: umm_skip(u, buf)
                else: umm(u, buf)
                if kk < 3:
                    if u == 0: rd_x(kk+1, buf ^ 1)
                    rd_w(kk+1, u)
        for r in uxaddr:
            a(f"v_add_u32 v{r}, s{s_rb}, v{r}")
        a(f"v_add_u32 v{uwaddr}, s{s_lc}, v{uwaddr}")
        a(f"v_add_u32 v{uw2}, s{s_lc}, v{uw2}")
        a(f"s_sub_u32 s{s_rb}, 0, s{s_rb}")
        a(f"s_add_u32 s{s_stage}, s{s_stage}, 1")
        a(f"s_bitcmp1_b32 0x12, s{s_stage}")
        a(f"s_mov_b32 s44, {(-2*UWS) & 0xffffffff}")
        a(f"s_cselect_b32 s{s_lc}, s44, {UWS}")
        a(f"s_setprio {o.fprio}")
        a(f"s_cmp_eq_u32 s{s_stage}, 1")
        a("s_cbranch_scc0 L_ub_n1")
        if not o.pfirst: postblk()
        if o.nb == 3:
            if o.pfirst: fbar(a, t0)
            else: lds_wait_ge(a, "upgo", V_MISC, L_POST, "4", t0, sleep=1)
            g_ = up_groups()
            if o.hw2: g_ = g_[:4] + [g_[9][3:]]
            for grp in g_:
                for l in grp: a(l)
        elif o.pfirst: fbar(a, t0)
        lds_wait_ge(a, "u1", V_MISC, L_ST, "8", t0, sleep=1)
        a("s_branch L_ub_n3")
        a.label("L_ub_n1")
        a(f"s_cmp_eq_u32 s{s_stage}, {o.nb}")
        a("s_cbranch_scc1 L_ub_n4")
        a("s_waitcnt vmcnt(0)")
        a("s_branch L_ub_n2")
        a.label("L_ub_n4")
        lds_wait_ge(a, "upb2", V_MISC, L_ATT, "8", t0, sleep=2)
        for grp in up_groups() + up_groups()[4:]:
            for l in grp: a(l)
        a("s_waitcnt vmcnt(6)")
        a.label("L_ub_n2")
        fbar(a, t0)
        a.label("L_ub_n3")
        a(f"s_setprio {o.mprio}")
        rd_x(0, 0)
        for u in range(3): rd_w(0, u)
        a(f"s_cmp_lt_u32 s{s_stage}, {o.nb}")
        a("s_cbranch_scc1 L_ub_loop")
    if o.upwarm:
        srd(a, SC, 16, 17, 1376*1024 if (o.w0 == 0 or (o.w0 == o.nb)) else 0)
        a(f"s_lshl_b32 s44, s{S_LOC}, 2")
        a(f"s_add_u32 s44, s44, s{s_fw}")
        a("s_lshl_b32 s54, s44, 10")
        a("s_mov_b32 s59, s54")
    a.label("L_up_loop")
    groups = up_groups()
    if o.upwarm:
        wl = [f"buffer_load_dwordx4 v[160:163], v{V_L16}, s[{SC}:{SC+3}], s59 offen", "s_add_u32 s59, s59, 131072"]
        groups.append(wl * (o.upwarm // 2)); groups.append(wl * (o.upwarm - o.upwarm // 2))
    for kk in range(3):
        buf = kk & 1
        for u in range(3):
            younger = (2-u)*2 + (0 if u == 0 else 2 + 2*u)
            a(f"s_waitcnt lgkmcnt({younger})")
            if u == 2: umm_skip(u, buf)
            else: umm(u, buf, groups, 5 if u == 0 else 3)
            if u == 0: rd_x(kk+1, buf ^ 1)
            rd_w(kk+1, u)
    assert not groups
    a("s_waitcnt lgkmcnt(4)")
    umm(0, 1)
    a(f"s_cmp_eq_u32 s{s_stage}, 7")
    a("s_cbranch_scc1 L_up_last")
    st.abeg()
    a(f"s_waitcnt vmcnt({6 + o.upwarm}) lgkmcnt(0)")
    st.aend(0)
    a(f"s_add_u32 s{S_FBT}, s{S_FBT}, 4")
    lds_arrive(a, V_MISC, L_FB)
    umm(1, 1)
    a(f"s_setprio {o.fprio}")
    for r in uxaddr:
        a(f"v_add_u32 v{r}, s{s_rb}, v{r}")
    a(f"v_add_u32 v{uwaddr}, s{s_lc}, v{uwaddr}")
    a(f"v_add_u32 v{uw2}, s{s_lc}, v{uw2}")
    st.abeg()
    lds_wait_ge(a, "upb", V_MISC, L_FB, f"s{S_FBT}", t0, sleep=1)
    if o.pre in (1, 2):
        a(f"s_cmp_eq_u32 s{s_stage}, 1")
        a("s_cbranch_scc0 L_up_n1")
        lds_wait_ge(a, "upb2", V_MISC, L_ATT, "8", t0, sleep=2)
        a(f"s_mov_b32 s{SA+2}, {2048*1024}")
        a(f"s_mov_b32 s{SB+2}, s96")
        a(f"s_mov_b32 s{s_lx}, s97")
        a(f"s_mov_b32 s{s_lw}, s98")
        a(f"s_movk_i32 s{s_xoff}, 256")
        a(f"s_mov_b32 s{s_woff}, {2*64*2752}")
        for grp in up_groups() + up_groups()[4:]:
            for l in grp: a(l)
        a("s_waitcnt vmcnt(6)")
        fbar(a, t0)
        a.label("L_up_n1")
    st.aend(1)
    a(f"s_setprio {o.mprio}")
    rd_x(0, 0)
    rd_w(0, 0); rd_w(0, 1)
    umm_skip(2, 1)
    rd_w(0, 2)
    a(f"s_sub_u32 s{s_rb}, 0, s{s_rb}")
    a(f"s_add_u32 s{s_stage}, s{s_stage}, 1")
    a(f"s_bitcmp1_b32 0x12, s{s_stage}")
    a(f"s_mov_b32 s44, {(-2*UWS) & 0xffffffff}")
    a(f"s_cselect_b32 s{s_lc}, s44, {UWS}")
    a(f"s_cmp_eq_u32 s{s_stage}, 7")
    a(f"s_cselect_b32 s{SA+2}, 0, s{SA+2}")
    a(f"s_cmp_eq_u32 s{s_stage}, 6")
    a(f"s_cselect_b32 s{SB+2}, 0, s{SB+2}")
    if o.upwarm:
        w1 = o.w0 + (11 + o.upwarm - 1) // o.upwarm
        if o.w0:
            a(f"s_cmp_eq_u32 s{s_stage}, {o.w0}")
            a(f"s_cselect_b32 s{SC+2}, {1376*1024}, s{SC+2}")
            a("s_cselect_b32 s59, s54, s59")
        a(f"s_and_b32 s44, s9, 0xffff")
        a(f"s_cmp_eq_u32 s{s_stage}, {w1}")
        a(f"s_cselect_b32 s{SC}, s8, s{SC}")
        a(f"s_cselect_b32 s{SC+1}, s44, s{SC+1}")
        a(f"s_cselect_b32 s{SC+2}, {512*1024}, s{SC+2}")
        a("s_cselect_b32 s59, s54, s59")
    if o.upause > 0:
        a(f"s_cmp_eq_u32 s{s_stage}, {o.upause}")
        a("s_cbranch_scc0 L_up_loop")
        a(f"s_setprio {o.fprio}")
        lds_wait_ge(a, "upp", V_MISC, L_ATT, "8", t0, sleep=4)
        a(f"s_setprio {o.mprio}")
    a("s_branch L_up_loop")
    a.label("L_up_last")
    a("s_waitcnt lgkmcnt(0)")
    umm(1, 1)
    umm_skip(2, 1)
    a(f"s_setprio {o.fprio}")
    st.stamp(5)
    a(f"s_lshl_b32 s44, s{s_urb}, 2")
    a(f"s_and_b32 s45, s{s_fw}, 1")
    a("s_lshl_b32 s45, s45, 1")
    a("s_add_u32 s44, s44, s45")
    a("s_mul_i32 s44, s44, 86")
    a(f"s_add_u32 s44, s44, s{s_u0}")
    a(f"s_and_b32 s45, s{s_cg}, 255")
    a("s_add_u32 s44, s44, s45")
    a("s_lshl_b32 s44, s44, 10")
    a(f"s_add_u32 s44, s44, {HF}")
    a(f"s_lshr_b32 s46, s{s_cg}, 8")
    a(f"s_sub_u32 s{s_cg}, s46, s45")
    a(f"s_lshl_b32 s{s_cg}, s{s_cg}, 10")
    a(f"s_add_u32 s45, s44, {86*1024}")
    a(f"s_mov_b32 s46, {f32bits(-LOG2E)}")
    a("s_mov_b32 s47, s46")
    for u in range(3):
        if u == 2:
            a(f"s_add_u32 s44, s44, s{s_cg}")
            a(f"s_add_u32 s45, s45, s{s_cg}")
        for t in range(2):
            if u == 2:
                a(f"s_bitcmp1_b32 s{s_skip}, {t}")
                a(f"s_cbranch_scc0 {'L_up_e1' if t == 0 else 'L_up_done'}")
            g = UACC[u][t]; up = g + 8
            tm = XF[u & 1][t]
            for i in range(4): a(f"v_pk_mul_f32 {v(g+2*i,2)}, {v(g+2*i,2)}, s[46:47]")
            for i in range(8): a(f"v_exp_f32 v{g+i}, v{g+i}")
            for i in range(4): a(f"v_pk_add_f32 {v(g+2*i,2)}, {v(g+2*i,2)}, 1.0 op_sel_hi:[1,0]")
            for i in range(8): a(f"v_rcp_f32 v{g+i}, v{g+i}")
            for i in range(4): a(f"v_pk_mul_f32 {v(g+2*i,2)}, {v(g+2*i,2)}, {v(up+2*i,2)}")
            for i in range(4): a(f"v_cvt_pk_bf16_f32 v{tm+i}, v{g+2*i}, v{g+2*i+1}")
            a(f"buffer_store_dwordx4 {v(tm,4)}, v{V_L16}, s[{SWS}:{SWS+3}], s{44+t} offen offset:{(u&1)*1024} sc1")
            if u == 2 and t == 0: a.label("L_up_e1")
    a.label("L_up_done")
    a(f"s_lshl_b32 s44, s{s_urb}, 2")
    a(f"s_add_u32 s44, s44, s{s_fw}")
    a("s_lshl_b32 s44, s44, 7")
    a(f"s_add_u32 s44, s44, {CH}")
    post(a, 44)
    st.stamp(8)
    s_h0, s_h1, s_w, s_i, s_T, s_nt, s_idx, s_dl = 49, 50, 51, 52, 53, 54, 55, 56
    R = Regs(16)
    ACC = [R.alloc(16) for _ in range(4)]
    HFR = [[R.alloc(4) for _ in range(2)] for _ in range(8)]
    WF = [[R.alloc(4) for _ in range(2)] for _ in range(2)]
    G = 8; VOUT = 10; da = [11, 12]; db = [R.alloc(), R.alloc()]
    hi.append(R.hi)
    fbar(a, t0)
    a(f"ds_read_b32 v{t0+3}, v{V_MISC} offset:{L_NONCE}")
    if not o.gapw:
        srd(a, SA, 8, 9, 512*1024)
        a(f"s_lshl_b32 s{s_w}, s{s_fw}, 17")
        a(f"s_mov_b32 m0, s{s_lb}")
        a(f"s_mov_b32 s{s_i}, 14")
        a.label("L_wo_ld")
        a(f"buffer_load_dwordx4 v{vsrc}, s[{SA}:{SA+3}], s{s_w} offen lds")
        a("s_add_u32 m0, m0, 1024")
        a(f"s_add_u32 s{s_w}, s{s_w}, 8192")
        a(f"s_sub_u32 s{s_i}, s{s_i}, 1")
        a(f"s_cmp_lg_u32 s{s_i}, 0")
        a("s_cbranch_scc1 L_wo_ld")
        srd(a, SA, 16, 17, 1376*1024)
    else:
        srd(a, SA, 16, 17, 1376*1024)
        srd(a, SC, 8, 9, 512*1024)
        if o.gapw == 1:
            a(f"s_and_b32 s44, s{S_LOC}, 3")
            a("s_lshl_b32 s44, s44, 2")
            a(f"s_add_u32 s44, s44, s{s_fw}")
            a("s_lshl_b32 s45, s44, 15")
            a(f"s_mul_i32 s44, s44, {86*1024}")
            a(f"s_mov_b32 s{s_i}, {o.nwd}")
            a.label("L_wd_warm")
            a(f"buffer_load_dwordx4 {v(HFR[7][0],4)}, v{vsrc}, s[{SA}:{SA+3}], s44 offen")
            a("s_add_u32 s44, s44, 8192")
            a(f"s_sub_u32 s{s_i}, s{s_i}, 1")
            a(f"s_cmp_lg_u32 s{s_i}, 0")
            a("s_cbranch_scc1 L_wd_warm")
            for i in range(4):
                a(f"buffer_load_dwordx4 {v(HFR[7][0],4)}, v{vsrc}, s[{SC}:{SC+3}], s45 offen")
                a("s_add_u32 s45, s45, 8192")
        elif o.gapw == 2:
            a(f"s_lshl_b32 s44, s{S_LOC}, 2")
            a(f"s_add_u32 s44, s44, s{s_fw}")
            a("s_lshl_b32 s44, s44, 10")
            a("s_mov_b32 s45, s44")
            for i in range(o.nwd):
                a(f"buffer_load_dwordx4 {v(HFR[7][0],4)}, v{V_L16}, s[{SA}:{SA+3}], s44 offen")
                a("s_add_u32 s44, s44, 131072")
            for i in range(o.nwo):
                a(f"buffer_load_dwordx4 {v(HFR[7][0],4)}, v{V_L16}, s[{SC}:{SC+3}], s45 offen")
                a("s_add_u32 s45, s45, 131072")
        a(f"s_mov_b32 s59, {(-2*1024) & 0xffffffff}")
        a(f"s_lshl_b32 s63, s{s_fw}, 17")
    a(f"s_mul_i32 s{s_dl}, s{s_fw}, 6144")
    a(f"s_add_u32 s{s_dl}, s{s_dl}, {DRING}")
    a(f"v_add_u32 v{da[0]}, s{s_dl}, v{wa}")
    a(f"v_xor_b32 v{da[1]}, 64, v{da[0]}")
    a(f"v_add_u32 v{db[0]}, s{s_lb}, v{wa}")
    a(f"v_xor_b32 v{db[1]}, 64, v{db[0]}")
    a(f"s_lshl_b32 s{s_w}, s{s_fw}, 14")
    a(f"s_lshl_b32 s44, s{s_T2}, 1")
    a(f"s_and_b32 s45, s{s_fw}, 1")
    a(f"s_add_u32 s{s_T}, s44, s45")
    a(f"s_xor_b32 s47, s{s_T}, 1")
    for d, sx in ((s_h0, s_T), (s_h1, 47)):
        a(f"s_mul_i32 s{d}, s{sx}, 86")
        a(f"s_add_u32 s{d}, s{d}, s{s_fw}")
        a(f"s_lshl_b32 s{d}, s{d}, 10")
        a(f"s_add_u32 s{d}, s{d}, {HF}")
    a(f"s_lshl_b32 s44, s{s_N2}, 1")
    a(f"s_lshr_b32 s45, s{s_fw}, 1")
    a(f"s_add_u32 s{s_nt}, s44, s45")
    a(f"v_and_b32 v{t0}, 31, v0")
    a(f"v_lshrrev_b32 v{t0+1}, 5, v0")
    a(f"v_lshlrev_b32 v{t0+1}, 4, v{t0+1}")
    a(f"v_lshl_add_u32 v{VOUT}, v{t0}, 10, v{t0+1}")
    a("s_waitcnt lgkmcnt(0)")
    a(f"v_readfirstlane_b32 s{S_NONCE}, v{t0+3}")
    a(f"v_lshlrev_b32 v{t0+1}, 3, v{t0}")
    a(f"s_lshl_b32 s44, s{s_T}, 8")
    a(f"s_add_u32 s44, s44, {GA}")
    a(f"s_mov_b32 s{S_SPIN}, 0")
    a.label("L_g_poll")
    a(f"buffer_load_dwordx2 {v(G,2)}, v{t0+1}, s[{SWS}:{SWS+3}], s44 offen sc1")
    a(f"s_add_u32 s{S_SPIN}, s{S_SPIN}, 1")
    a("s_waitcnt vmcnt(0)")
    a(f"v_cmp_ne_u32 vcc, s{S_NONCE}, v{G+1}")
    a(f"s_cmp_gt_u32 s{S_SPIN}, 200000")
    a("s_cbranch_scc1 L_g_got")
    a("s_cbranch_vccz L_g_got")
    a("s_sleep 8")
    a("s_branch L_g_poll")
    a.label("L_g_got")
    a(f"v_sub_f32 v{G+1}, 1.0, v{G}")
    a(f"s_cmp_eq_u32 s{s_fw}, 0")
    a("s_cbranch_scc0 L_dn_nopoll")
    a(f"s_lshr_b32 s44, s{s_T2}, 1")
    a("s_lshl_b32 s44, s44, 2")
    a(f"s_and_b32 s45, s{s_T2}, 1")
    a("s_add_u32 s44, s44, s45")
    a("s_lshl_b32 s44, s44, 7")
    a(f"s_add_u32 s44, s44, {CH}")
    a(f"v_and_b32 v{t0+2}, 1, v0")
    a(f"v_lshlrev_b32 v{t0+2}, 8, v{t0+2}")
    poll(a, "dn", t0+1, t0+2, 44, 16, 8, at=2 if o.apoll & 2 else 0)
    a.label("L_dn_nopoll")
    fbar(a, t0+1)
    st.stamp(9)
    s_wend, s_hend = 57, 58
    s_o, s_out, s_co = 49, 50, 51
    def ldw(g):
        m = f"s_add_u32 m0, s{s_dl}, {(g%4)*2048}" if g % 4 < 3 else f"s_add_u32 m0, s{s_lb}, {7*2048}"
        p0 = [m, f"s_add_u32 s44, s{s_w}, 8192", f"buffer_load_dwordx4 v{vsrc}, s[{SA}:{SA+3}], s{s_w} offen lds"]
        p1 = ["s_add_u32 m0, m0, 1024", f"s_add_u32 s{s_w}, s{s_w}, 65536", f"buffer_load_dwordx4 v{vsrc}, s[{SA}:{SA+3}], s44 offen lds"]
        if o.stagD: p1 += [f"s_cmp_eq_u32 s{s_w}, s{s_wend}", f"s_cselect_b32 s{s_w}, s46, s{s_w}"]
        return [p0, p1]
    def ldh(g):
        p0 = [f"s_add_u32 s45, s{s_h0}, s{s_h1}", f"buffer_load_dwordx4 {v(HFR[g%4][0],4)}, v{V_L16}, s[{SWS}:{SWS+3}], s{s_h0} offen sc1"]
        p1 = [f"s_add_u32 s{s_h0}, s{s_h0}, 4096", f"buffer_load_dwordx4 {v(HFR[g%4][1],4)}, v{V_L16}, s[{SWS}:{SWS+3}], s45 offen sc1"]
        if o.stagD: p1 += [f"s_cmp_eq_u32 s{s_h0}, s{s_hend}", f"s_cselect_b32 s{s_h0}, s47, s{s_h0}"]
        return [p0, p1]
    def emit(ps):
        for p in ps:
            for l in p: a(l)
    def rdw1(off, buf, ad, n):
        a(f"ds_read_b64_tr_b16 {v(WF[buf][n],2)}, v{ad[n]} offset:{off}")
        a(f"ds_read_b64_tr_b16 {v(WF[buf][n]+2,2)}, v{ad[n]} offset:{off+1024}")
    def rdw(off, buf, ad=da):
        for n in range(2): rdw1(off, buf, ad, n)
    a(f"s_sub_u32 s{s_h1}, s{s_h1}, s{s_h0}")
    a(f"s_mov_b32 s46, s{s_w}")
    a(f"s_mov_b32 s47, s{s_h0}")
    a(f"s_add_u32 s{s_wend}, s46, {21*65536}")
    a(f"s_add_u32 s{s_hend}, s47, {21*4096}")
    if o.stagD:
        a(f"s_and_b32 s44, s{S_LOC}, 3")
        a("s_mul_i32 s44, s44, 5")
        a(f"s_mul_i32 s45, s{s_N2}, 21")
        a("s_lshr_b32 s45, s45, 3")
        a("s_add_u32 s44, s44, s45")
        a("s_cmp_ge_u32 s44, 21")
        a("s_cselect_b32 s45, 21, 0")
        a(f"s_sub_u32 s{s_i}, s44, s45")
    else:
        a(f"s_mov_b32 s{s_i}, 0")
    a(f"s_mov_b32 s{s_w}, s{s_wend}")
    a(f"s_cmp_lt_u32 s{s_fw}, 2")
    a(f"s_cselect_b32 s{s_h0}, s{s_hend}, s47")
    emit(ldw(0))
    a(f"s_lshl_b32 s44, s{s_i}, 16")
    a(f"s_add_u32 s{s_w}, s46, s44")
    emit(ldw(1)); emit(ldh(0))
    a(f"s_lshl_b32 s44, s{s_i}, 12")
    a(f"s_add_u32 s{s_h0}, s47, s44")
    emit(ldw(2)); emit(ldh(1))
    emit(ldw(3)); emit(ldh(2))
    a(f"s_setprio {o.dprio}")
    a("s_waitcnt vmcnt(12)")
    rdw(0, 0)
    def rstep(k):
        b = k & 1
        issued = lambda j: (2 if j + 4 <= 21 else 0) + (2 if j + 3 <= 21 else 0) + (2 if j == 19 else 0) + (1 if (o.gapw and 1 <= j <= 16) else 0)
        a(f"s_waitcnt vmcnt({issued(k-2) + issued(k-1)}) lgkmcnt(0)")
        parts = (ldw(k+4) if k + 4 <= 21 else [[], []]) + (ldh(k+3) if k + 3 <= 21 else [[], []])
        if o.gapw and 1 <= k <= 16:
            parts[3] = parts[3] + ["s_max_i32 s44, s59, 0", f"s_add_u32 m0, s{s_lb}, s44", "s_lshl_b32 s44, s44, 3", "s_add_u32 s44, s44, s63",
                                   f"buffer_load_dwordx4 v{vsrc}, s[{SC}:{SC+3}], s44 offen lds", "s_add_u32 s59, s59, 1024"]
        if k == 19:
            parts = [[f"s_mov_b32 s{SA}, s8", f"s_and_b32 s{SA+1}, s9, 0xffff", f"s_mov_b32 s{SA+2}, {512*1024}",
                      f"s_lshl_b32 s44, s{s_fw}, 17", f"s_add_u32 s44, s44, {14*8192}"],
                     [f"s_add_u32 m0, s{s_lb}, {14*1024}", "s_add_u32 s45, s44, 8192",
                      f"buffer_load_dwordx4 v{vsrc}, s[{SA}:{SA+3}], s44 offen lds"],
                     ["s_add_u32 m0, m0, 1024", "s_nop 0", f"buffer_load_dwordx4 v{vsrc}, s[{SA}:{SA+3}], s45 offen lds"], []]
        if k == 20:
            parts = [[f"s_mov_b32 s{SB}, s20", f"s_and_b32 s{SB+1}, s21, 0xffff", f"s_mov_b32 s{SB+2}, {2048*1024}", f"s_mov_b32 s{SB+3}, 0x20000"],
                     [f"s_lshr_b32 s46, s{s_fw}, 1", f"s_lshl_b32 s44, s{s_T}, 15", "s_lshl_b32 s45, s46, 14", "s_add_u32 s45, s44, s45",
                      f"s_add_u32 s{s_o}, s45, {OF}"],
                     [f"s_lshl_b32 s45, s{s_nt}, 6", f"s_add_u32 s{s_out}, s44, s45", f"s_lshl_b32 s44, s{s_T}, 1", "s_add_u32 s44, s44, s46"],
                     ["s_lshl_b32 s44, s44, 7", f"s_add_u32 s{s_co}, s44, {CO + (DONE if o.done else 0)}"]]
        for n in range(2):
            for t in range(2):
                c = "0" if k == 0 else v(ACC[2*n+t],16)
                a(f"{MF} {v(ACC[2*n+t],16)}, {v(WF[b][n],4)}, {v(HFR[k%4][t],4)}, {c}")
                if n == 0 and k < 21:
                    if (k+1) % 4 < 3: rdw1(((k+1) % 4)*2048, b ^ 1, da, t)
                    else: rdw1(7*2048, b ^ 1, db, t)
                for l in parts[2*n+t]: a(l)
    rstep(0)
    a(f"s_mov_b32 s{s_i}, 4")
    def hold(tag):
        a(f"s_setprio {o.fprio}")
        a(f"v_lshl_add_u32 v{t0+2}, s{s_fw}, 2, v{V_MISC}")
        lds_wait_ge(a, tag, t0+2, L_PAIR, str(o.holdn), t0+1, sleep=4)
    a.label("L_dn_loop")
    if o.hold in (9, 13):
        a(f"s_cmp_eq_u32 s{s_i}, {(17-o.hold)//4}")
        a("s_cbranch_scc0 L_dn_nh")
        hold("hold")
        a.label("L_dn_nh")
    for k in range(1, 5): rstep(k)
    a(f"s_sub_u32 s{s_i}, s{s_i}, 1")
    a(f"s_cmp_lg_u32 s{s_i}, 0")
    a("s_cbranch_scc1 L_dn_loop")
    if o.hold == 17: hold("hold")
    for k in range(17, 22): rstep(k)
    a(f"s_setprio {o.fprio}")
    st.stamp(10)
    if o.early:
        a(f"s_setprio {o.xprio}")
        a(f"v_add_u32 v{t0}, s{s_dl}, v{V_L16}")
        a(f"s_lshl_b32 s44, s{s_fw}, 12")
        a(f"s_add_u32 s44, s44, {UX[0]}")
        a(f"v_add_u32 v{t0+2}, s44, v{V_L16}")
        a(f"s_xor_b32 s44, s{s_fw}, 1")
        a("s_mul_i32 s44, s44, 6144")
        a(f"s_add_u32 s44, s44, {DRING}")
        a("s_lshl_b32 s45, s46, 15")
        a(f"s_add_u32 s45, s45, {STG}")
        a(f"v_add_u32 v{da[0]}, s45, v{wa}")
        a(f"v_xor_b32 v{da[1]}, 64, v{da[0]}")
        for i in range(4):
            a(f"ds_write_b128 v{t0}, {v(ACC[1]+4*i,4)} offset:{i*1024}")
        for i in range(4):
            a(f"ds_write_b128 v{t0+2}, {v(ACC[3]+4*i,4)} offset:{i*1024}")
        a("s_waitcnt vmcnt(0) lgkmcnt(0)")
        a(f"v_add_u32 v{t0}, s44, v{V_L16}")
        a(f"v_xor_b32 v{t0+2}, 4096, v{t0+2}")
        fbar(a, t0+1)
        for i in range(4):
            a(f"ds_read_b128 {v(ACC[1]+4*i,4)}, v{t0} offset:{i*1024}")
        for i in range(4):
            a(f"ds_read_b128 {v(ACC[3]+4*i,4)}, v{t0+2} offset:{i*1024}")
        WF.append([160, 164])
        hi.append(168)
        for n in (1, 0): rdw1(0, 0, da, n)
        BQ = [ACC[0], ACC[2]]
        for n in range(2):
            a(f"s_waitcnt lgkmcnt({4*(1-n)+4})")
            for i in range(8):
                a(f"v_pk_add_f32 {v(BQ[n]+2*i,2)}, {v(BQ[n]+2*i,2)}, {v(ACC[2*n+1]+2*i,2)}")
            for i in range(8):
                a(f"v_pk_mul_f32 {v(BQ[n]+2*i,2)}, {v(BQ[n]+2*i,2)}, {v(G,2)} op_sel:[0,1] op_sel_hi:[1,1]")
        for n in (1, 0): rdw1(2048, 1, da, n)
        a(f"s_lshl_b32 s44, s{s_fw}, 13")
        a(f"v_add_u32 v{t0}, s44, v{V_L16}")
        a(f"v_xor_b32 v{t0+3}, 16384, v{t0}")
        def bsum(): pass
        a(f"s_setprio {o.fprio}")
        if o.early == 2: a("s_barrier")
        if o.tdelay: a(f"s_sleep {o.tdelay}")
        poll(a, "tl", t0+1, None, s_co, 16, o.tsleep, at=1)
    else:
        a("s_waitcnt vmcnt(0)")
        a("s_barrier")
        if o.tdelay: a(f"s_sleep {o.tdelay}")
        if o.apoll & 4: a("s_mov_b64 exec, 1")
        poll_ld(a, t0+1, None, s_co, o.apoll & 4)
        if o.apoll & 4: a("s_mov_b64 exec, -1")
        a("s_lshl_b32 s44, s46, 15")
        a(f"s_add_u32 s44, s44, {STG}")
        a(f"v_add_u32 v{da[0]}, s44, v{wa}")
        a(f"v_xor_b32 v{da[1]}, 64, v{da[0]}")
        a(f"s_lshl_b32 s44, s{s_fw}, 13")
        a(f"v_add_u32 v{t0}, s44, v{V_L16}")
        a(f"v_xor_b32 v{t0+2}, 8192, v{t0}")
        a(f"v_xor_b32 v{t0+3}, 16384, v{t0}")
        for n in range(2):
            for i in range(4):
                a(f"ds_write_b128 v{t0}, {v(ACC[2*n+1]+4*i,4)} offset:{n*4096+i*1024}")
        a("s_waitcnt lgkmcnt(0)")
        a("s_barrier")
        for n in range(2):
            for i in range(4):
                a(f"ds_read_b128 {v(ACC[2*n+1]+4*i,4)}, v{t0+2} offset:{n*4096+i*1024}")
        WF.append([160, 164])
        hi.append(168)
        for n in (1, 0): rdw1(0, 0, da, n)
        BQ = [ACC[0], ACC[2]]
        def bsum():
            for n in range(2):
                a(f"s_waitcnt lgkmcnt({4*(1-n)+4})")
                for i in range(8):
                    a(f"v_pk_add_f32 {v(BQ[n]+2*i,2)}, {v(BQ[n]+2*i,2)}, {v(ACC[2*n+1]+2*i,2)}")
                for i in range(8):
                    a(f"v_pk_mul_f32 {v(BQ[n]+2*i,2)}, {v(BQ[n]+2*i,2)}, {v(G,2)} op_sel:[0,1] op_sel_hi:[1,1]")
        if o.done: poll(a, "tl", t0+1, None, s_co, f"s{S_NONCE}", o.tsleep, first_issued=True, eq=True)
        else: poll(a, "tl", t0+1, None, s_co, 16, o.tsleep, first_issued=True, at=1 if o.apoll & 4 else 0)
    st.stamp(11)
    if st.en: a("s_waitcnt lgkmcnt(0)")
    OFR = [HFR[i >> 1][i & 1] for i in range(16)]
    def ldo(i):
        a(f"buffer_load_dwordx4 {v(OFR[i],4)}, v{V_L16}, s[{SWS}:{SWS+3}], s{s_o} offen offset:{(i&3)*1024} sc1")
        if i & 3 == 3 and i < 15: a(f"s_add_u32 s{s_o}, s{s_o}, 4096")
    for i in range(o.nfirst): ldo(i)
    bsum()
    if o.tprof: st.stamp(2); a("s_waitcnt lgkmcnt(0)")
    if not o.early:
        for n in (1, 0): rdw1(2048, 1, da, n)
    pend = list(range(o.nfirst, 16))
    AO = [ACC[1], ACC[3]]
    for i in range(16):
        buf = i % 3
        a(f"s_waitcnt vmcnt({15-len(pend)-i}) lgkmcnt({4 if i < 15 else 0})")
        if o.tprof and i == 0: st.stamp(3); a("s_waitcnt lgkmcnt(0)")
        for n in (1, 0):
            c = "0" if i == 0 else v(AO[n],16)
            a(f"{MF} {v(AO[n],16)}, {v(WF[buf][n],4)}, {v(OFR[i],4)}, {c}")
            if i < 14: rdw1((i+2)*2048, (i+2) % 3, da, n)
            if pend: ldo(pend.pop(0))
    if o.tprof: st.stamp(4)
    if o.early == 1: a("s_barrier")
    a("s_nop 10")
    for i in range(4):
        for j in (2*i, 2*i+1):
            a(f"v_pk_fma_f32 {v(BQ[1]+2*j,2)}, {v(AO[1]+2*j,2)}, {v(G,2)}, {v(BQ[1]+2*j,2)} op_sel_hi:[1,0,1]")
        a(f"ds_write_b128 v{t0}, {v(BQ[1]+4*i,4)} offset:{32768+i*1024}")
    for i in range(8):
        a(f"v_pk_fma_f32 {v(BQ[0]+2*i,2)}, {v(AO[0]+2*i,2)}, {v(G,2)}, {v(BQ[0]+2*i,2)} op_sel_hi:[1,0,1]")
    a("s_waitcnt lgkmcnt(0)")
    a("s_barrier")
    for i in range(4):
        a(f"ds_read_b128 {v(AO[1]+4*i,4)}, v{t0+3} offset:{32768+i*1024}")
    if o.tprof: st.stamp(5); a("s_waitcnt lgkmcnt(0)")
    T2 = AO[0]
    for p in range(2):
        a(f"s_waitcnt lgkmcnt({2*(1-p)})")
        for i in range(4*p, 4*p+4):
            a(f"v_pk_add_f32 {v(BQ[0]+2*i,2)}, {v(BQ[0]+2*i,2)}, {v(AO[1]+2*i,2)}")
        for i in range(4*p, 4*p+4):
            a(f"v_cvt_pk_bf16_f32 v{T2+i}, v{BQ[0]+2*i}, v{BQ[0]+2*i+1}")
        b = T2 + 4*p
        a("s_nop 1")
        a(f"v_permlane32_swap_b32 v{b}, v{b+2}")
        a(f"v_permlane32_swap_b32 v{b+1}, v{b+3}")
        a("s_nop 1")
        a(f"buffer_store_dwordx4 {v(b,4)}, v{VOUT}, s[{SB}:{SB+3}], s{s_out} offen offset:{32*p}{['', ' sc1', ' nt', ' sc0 sc1', ' sc1 nt'][o.ost]}")
    if o.tprof: st.stamp(8)
    finish(a, st)
    return hi

def build(path):
    global KN
    KN = "kb_kernel" if (o.report or o.instr) else KNAME
    a = Asm()
    a('.amdgcn_target "amdgcn-amd-amdhsa--gfx950"')
    a(".text")
    st = Stamper(a, o.instr, 0)
    kernel_header(a, KN)
    a("s_cmp_ge_u32 s2, 256")
    a("s_cbranch_scc1 L_exit")
    a("s_load_dwordx16 s[4:19], s[0:1], 0")
    a("s_load_dwordx4 s[20:23], s[0:1], 64")
    a("s_load_dwordx2 s[24:25], s[0:1], 80")
    st.init(); st.real(0); st.stamp(1)
    a("v_lshrrev_b32 v1, 6, v0")
    a("v_and_b32 v0, 63, v0")
    a(f"s_and_b32 s{S_XCD}, s2, 7")
    a(f"v_readfirstlane_b32 s{S_WAVE}, v1")
    a(f"s_lshr_b32 s{S_LOC}, s2, 3")
    if o.ctouch:
        a("s_getpc_b64 s[46:47]")
        a.label("L_pc")
        a(f"s_mul_i32 s44, s{S_LOC}, 12")
        a(f"s_add_u32 s44, s44, s{S_WAVE}")
        a("s_lshl_b32 s44, s44, 6")
        a("s_min_u32 s44, s44, L_code_end-L_pc")
        a("s_add_u32 s46, s46, s44")
        a("s_addc_u32 s47, s47, 0")
    a(f"v_lshlrev_b32 v{V_L16}, 4, v0")
    a(f"v_mov_b32 v{V_MISC}, {MISC}")
    a(f"v_mov_b32 v{V_ONE}, 1")
    if st.en: a("s_getreg_b32 s95, hwreg(HW_REG_XCC_ID)")
    if o.ctouch:
        a("v_mov_b32 v5, 0")
        a("s_mov_b64 exec, 1")
        a("global_load_dword v167, v5, s[46:47]")
        a("s_mov_b64 exec, -1")
    a(f"s_cmp_ge_u32 s{S_WAVE}, 8")
    a("s_cbranch_scc1 L_F")
    ahi, fallback = a_waves(a, st)
    a.label("L_F")
    hi = f_waves(a, st) + [ahi]
    a.label("L_code_end")
    fallback()
    a.label("L_exit")
    a("s_endpgm")
    print("vgprs", hi)
    assert max(hi) <= 168
    descs = [kernel_desc(KN, 168)]
    if o.report or o.instr:
        hdr = f"; @launch kernel={KN} grid=(256,1,1) block=(768,1,1) lds={LDS_TOTAL}\n"
        if o.report:
            k, w, i = [int(x) for x in str(o.report).split(",")]
            reporter(a, k, w, i)
            hdr += "; @launch kernel=rep_kernel grid=(1,1,1) block=(64,1,1) lds=0\n"
            descs.append(kernel_desc("rep_kernel", 16))
    else:
        hdr = f"; @launch grid=(256,1,1) block=(768,1,1) lds={LDS_TOTAL}\n"
    a('.section .rodata,"a"')
    open(path, "w").write("; generated by gen/gen28.py\n" + hdr + a.text() + "".join(descs))

if __name__ == "__main__":
    path = sys.argv[1]
    for arg in sys.argv[2:]:
        k, _, val = arg.partition("=")
        assert hasattr(Opt, k), k
        setattr(Opt, k, (val if ',' in val else int(val)) if val else True)
    if Opt.report: Opt.instr = True; Stamper.rt = True
    if Opt.acc: Stamper.acc = True
    if Opt.rt: Stamper.rt = True
    build(path)
```

```python
import math, sys
from asmlib import *

MB = 1 << 20
QF, KF, VF, OF, HF = 0, 2*MB, 4*MB, 6*MB, 8*MB
GA = 14*MB
CNT = 14*MB + 0x10000
CQ, CH, CO = CNT, CNT + 64*128, CNT + 128*128
W0 = 14*MB + 0x20000
DONE = 0x8000
WS_BYTES = 32*MB
LOG2E = 1.4426950408889634
QSCALE = 0.25 * LOG2E
LDS_TOTAL = 163840
KNAME = "gated_mix__mha_block__glu_gated_glu__prompt_kernel"

TS0, TSTR = 0, 33024
TG, TU = 16384, 16384 + 8192 + 32
WIMG = 12288 + 32
UX = [49152, 65536]
UW = [81920]; UWS = 24832
STG = 65536
DRING = 131072
VCONST = 156672
GL = 160768
MISC = LDS_TOTAL - 256
L_NONCE, L_ATT, L_FB, L_GO, L_PAIR, L_POST, L_ST, L_U = 0, 4, 8, 12, 16, 32, 36, 40

S_WAVE, S_NONCE = 26, 27
SWS, SA, SB, SC = 28, 32, 36, 40
S_XCD, S_LOC, S_FBT, S_SPIN = 3, 69, 67, 68
V_L16, V_MISC, V_ONE = 1, 2, 3
MF = "v_mfma_f32_32x32x16_bf16"
SM = "v_smfmac_f32_32x32x32_bf16"

class Opt:
    instr = False
    report = None
    acc = 0
    rt = 0
    ppdelay = 0
    fprio = 2
    mprio = 0
    aprio = 5
    psleep = 2
    stag1 = 0
    stag2 = 1
    pdelay = 0
    dper = 1
    upause = 0
    ost = 0
    pf31 = 1
    upat = 9
    upwarm = 3
    yat = 5
    noffn = 0
    hold = 0
    par = 1
    nb = 2
    hat = 3
    qst = 0
    sl1 = 0
    sl2 = 0
    sl3 = 0
    nbr = 0
    wtouch = 0
    pfirst = 1
    eprio = 2
    hw2 = 0
    hprof = 0
    wsoff = 0
    done = 0
    early = 0
    apoll = 7
    xprio = 0
    pre = 3
    holdn = 1
    w0 = 2
    rotU = 0
    hp = 0
    gapw = 0
    nwd = 11
    nwo = 4
    dprio = 0
    pf0 = 2
    rot = 0
    stagD = 1
    nfirst = 10
    tprof = 0
    tsleep = 1
    cuts = '2,6,10'
    pfup = 4
    stagU = 0
    fpace = 0
    la = 3
    udelay = 0
    xat = 1
    ctouch = 2
    tdelay = 0
o = Opt

def srd(a, d, lo, hi, nbytes):
    if lo == 24 and o.wsoff:
        a(f"s_add_u32 s{d}, s{lo}, {o.wsoff*MB}")
        a(f"s_addc_u32 s{d+1}, s{hi}, 0")
        a(f"s_and_b32 s{d+1}, s{d+1}, 0xffff")
        a(f"s_mov_b32 s{d+2}, {min(nbytes, (256-o.wsoff)*MB)}")
        a(f"s_mov_b32 s{d+3}, 0x20000")
        return
    a(f"s_mov_b32 s{d}, s{lo}")
    a(f"s_and_b32 s{d+1}, s{hi}, 0xffff")
    a(f"s_mov_b32 s{d+2}, {nbytes}")
    a(f"s_mov_b32 s{d+3}, 0x20000")

def finish(a, st):
    if st.en: a("s_waitcnt vmcnt(0)")
    st.stamp(6); st.real(7); st.flush(SWS, S_WAVE, 4)
    a("s_endpgm")

def post(a, s_off):
    a("s_waitcnt vmcnt(0)")
    a("s_mov_b64 exec, 1")
    a(f"buffer_atomic_add v{V_ONE}, off, s[{SWS}:{SWS+3}], s{s_off} sc1")
    a("s_mov_b64 exec, -1")

def poll_ld(a, vt, voff, s_off, at):
    if at:
        a(f"v_mov_b32 v{vt}, 0")
        if voff is None: a(f"buffer_atomic_or v{vt}, off, s[{SWS}:{SWS+3}], s{s_off} sc0 sc1")
        else: a(f"buffer_atomic_or v{vt}, v{voff}, s[{SWS}:{SWS+3}], s{s_off} offen sc0 sc1")
    elif voff is None: a(f"buffer_load_dword v{vt}, off, s[{SWS}:{SWS+3}], s{s_off} sc1")
    else: a(f"buffer_load_dword v{vt}, v{voff}, s[{SWS}:{SWS+3}], s{s_off} offen sc1")

def poll(a, tag, vt, voff, s_off, target, sleep, first_issued=False, eq=False, at=0):
    def ld(): poll_ld(a, vt, voff, s_off, at)
    a(f"s_mov_b32 s{S_SPIN}, 0")
    if at: a(f"s_mov_b64 exec, {(1 << at) - 1}")
    if not first_issued: ld()
    a.label(f"L_{tag}_poll")
    a(f"s_add_u32 s{S_SPIN}, s{S_SPIN}, 1")
    a("s_waitcnt vmcnt(0)")
    a(f"v_cmp_{'ne' if eq else 'gt'}_u32 vcc, {target}, v{vt}")
    a(f"s_cmp_gt_u32 s{S_SPIN}, 200000")
    a(f"s_cbranch_scc1 L_{tag}_got")
    a(f"s_cbranch_vccz L_{tag}_got")
    if sleep: a(f"s_sleep {sleep}")
    ld()
    a(f"s_branch L_{tag}_poll")
    a.label(f"L_{tag}_got")
    if at: a("s_mov_b64 exec, -1")

def lds_wait_ge(a, tag, vaddr, off, target, vt, sleep=1):
    a(f"s_mov_b32 s{S_SPIN}, 0")
    a.label(f"L_{tag}_spin")
    a(f"ds_read_b32 v{vt}, v{vaddr} offset:{off}")
    a(f"s_add_u32 s{S_SPIN}, s{S_SPIN}, 1")
    a("s_waitcnt lgkmcnt(0)")
    a(f"v_cmp_gt_u32 vcc, {target}, v{vt}")
    a(f"s_cmp_gt_u32 s{S_SPIN}, 2000000")
    a(f"s_cbranch_scc1 L_{tag}_ok")
    a(f"s_cbranch_vccz L_{tag}_ok")
    if sleep: a(f"s_sleep {sleep}")
    a(f"s_branch L_{tag}_spin")
    a.label(f"L_{tag}_ok")

def lds_arrive(a, vaddr, off):
    a("s_mov_b64 exec, 1")
    a(f"ds_add_u32 v{vaddr}, v{V_ONE} offset:{off}")
    a("s_mov_b64 exec, -1")

def tile_ids(a, s_rb, s_lc):
    a(f"s_and_b32 s44, s{S_XCD}, 3")
    a("s_lshl_b32 s44, s44, 2")
    a(f"s_and_b32 s45, s{S_LOC}, 3")
    a(f"s_add_u32 s{s_rb}, s44, s45")
    a(f"s_lshr_b32 s{s_lc}, s{S_LOC}, 2")

def ids_up(a, s_rb, s_cg, s_u0):
    a(f"s_and_b32 s44, s{S_XCD}, 2")
    a("s_lshl_b32 s44, s44, 2")
    a(f"s_and_b32 s45, s{S_LOC}, 7")
    a(f"s_add_u32 s{s_rb}, s44, s45")
    quad_start(a, s_u0)
    a(f"s_and_b32 s44, s{S_XCD}, 1")
    if not o.par: a("s_xor_b32 s44, s44, 1")
    a(f"s_sub_u32 s{s_cg}, 6, s44")
    a(f"s_lshr_b32 s45, s{S_LOC}, 3")
    a(f"s_mul_i32 s47, s45, s{s_cg}")
    a(f"s_add_u32 s{s_u0}, s{s_u0}, s47")
    a("s_cmp_eq_u32 s45, 3")
    a("s_cselect_b32 s44, s44, 0")
    a(f"s_sub_u32 s{s_cg}, s{s_cg}, s44")

def quad_start(a, d):
    a(f"s_lshr_b32 s44, s{S_XCD}, 2")
    a("s_mul_i32 s44, s44, 43")
    a(f"s_and_b32 s45, s{S_XCD}, 1")
    if not o.par: a("s_xor_b32 s45, s45, 1")
    a("s_mul_i32 s45, s45, 24")
    a(f"s_add_u32 s{d}, s44, s45")

def stagger(a, mode=None):
    pass
    if mode == 1:
        a(f"s_lshr_b32 s44, s{S_LOC}, 3")
        a("s_lshl_b32 s44, s44, 1")
        a(f"s_add_u32 s44, s44, s{S_LOC}")
        a("s_and_b32 s44, s44, 7")
    elif mode == 2:
        a(f"s_lshr_b32 s44, s{S_LOC}, 3")
        a(f"s_add_u32 s44, s44, s{S_LOC}")
        a("s_and_b32 s44, s44, 3")
        a("s_lshl_b32 s44, s44, 1")
    elif mode == 3:
        a(f"s_lshr_b32 s44, s{S_LOC}, 3")
        a(f"s_add_u32 s44, s44, s{S_LOC}")
        a("s_and_b32 s44, s44, 1")
        a("s_lshl_b32 s44, s44, 2")
    else:
        a("s_mov_b32 s44, 0")

def up_dma_setup(a, t0, vx, vw, s_fw, s_rb, s_cg, s_u0, s_lx, s_lw, s_xoff, s_woff):
    a(f"v_lshrrev_b32 v{t0}, 3, v0")
    a(f"v_and_b32 v{t0+1}, 7, v0")
    a(f"v_lshrrev_b32 v{t0+2}, 1, v{t0}")
    ids_up(a, s_rb, s_cg, s_u0)
    a(f"s_and_b32 s46, s{s_fw}, 1")
    a("s_lshl_b32 s45, s46, 2")
    a(f"v_or_b32 v{t0+2}, s45, v{t0+2}")
    a(f"v_xor_b32 v{t0+1}, v{t0+1}, v{t0+2}")
    a(f"v_lshlrev_b32 v{t0+1}, 4, v{t0+1}")
    a(f"s_lshl_b32 s44, s{s_rb}, 7")
    a(f"s_lshl_b32 s45, s{s_fw}, 3")
    a("s_add_u32 s44, s44, s45")
    a(f"v_add_u32 v{t0}, s44, v{t0}")
    a(f"v_lshl_add_u32 v{vx}, v{t0}, 10, v{t0+1}")
    a("s_movk_i32 s44, 5462")
    a("s_movk_i32 s47, 2752")
    a("s_lshl_b32 s45, s46, 5")
    for j in range(3):
        a(f"v_add_u32 v{t0}, {64*j}, v0")
        a(f"v_mul_u32_u24 v{t0+1}, s44, v{t0}")
        a(f"v_lshrrev_b32 v{t0+1}, 16, v{t0+1}")
        a(f"v_mul_u32_u24 v{t0+2}, 12, v{t0+1}")
        a(f"v_sub_u32 v{t0+2}, v{t0}, v{t0+2}")
        a(f"v_lshrrev_b32 v{t0}, 1, v{t0+2}")
        a(f"v_cmp_gt_u32 vcc, s{s_cg}, v{t0}")
        a(f"v_lshlrev_b32 v{t0+2}, 4, v{t0+2}")
        a(f"v_add_u32 v{t0+1}, s45, v{t0+1}")
        a(f"v_mad_u32_u24 v{vw[j]}, v{t0+1}, s47, v{t0+2}")
        a(f"v_bfrev_b32 v{t0}, 2")
        a(f"v_cndmask_b32 v{vw[j]}, v{t0}, v{vw[j]}, vcc")
    a(f"s_lshl_b32 s{s_lx}, s{s_fw}, 10")
    a(f"s_add_u32 s{s_lx}, s{s_lx}, {UX[0]}")
    a("s_mul_i32 s45, s46, 6144")
    a(f"s_lshr_b32 s46, s{s_fw}, 1")
    a(f"s_mul_i32 s47, s46, {WIMG}")
    a("s_add_u32 s45, s45, s47")
    a(f"s_add_u32 s{s_lw}, s45, {UW[0]}")
    stagger(a, o.stagU)
    a(f"s_lshl_b32 s{s_xoff}, s44, 7")
    a(f"s_mul_i32 s{s_woff}, s44, {64*2752}")

def up_srd(a, s_fw, s_u0):
    srd(a, SA, 4, 5, 2048*1024)
    a(f"s_cmp_lt_u32 s{s_fw}, 2")
    a("s_cselect_b32 s46, s12, s14")
    a("s_cselect_b32 s47, s13, s15")
    a(f"s_lshl_b32 s44, s{s_u0}, 5")
    srd_off(a, SB, 46, 47, 44, 512*2752)

def up_dma_groups(vx, vw, s_lx, s_lw, s_xoff, s_woff):
    g = []
    for j in range(4):
        if j == 0: pre = [f"s_mov_b32 m0, s{s_lx}", f"s_mov_b32 s46, s{s_xoff}"]
        else: pre = ["s_add_u32 m0, m0, 4096", "s_add_u32 s46, s46, 32768"]
        g.append(pre + [f"buffer_load_dwordx4 v{vx}, s[{SA}:{SA+3}], s46 offen lds"])
    for j in range(6):
        if j == 0: pre = [f"s_mov_b32 m0, s{s_lw}", f"s_add_u32 s46, s{s_woff}, {16*2752}"]
        else: pre = ["s_add_u32 m0, m0, 1024", "s_nop 0"]
        so = s_woff if j < 3 else 46
        g.append(pre + [f"buffer_load_dwordx4 v{vw[j%3]}, s[{SB}:{SB+3}], s{so} offen lds"])
    return g

def srd_off(a, d, lo, hi, s_off, total):
    a(f"s_add_u32 s{d}, s{lo}, s{s_off}")
    a(f"s_addc_u32 s{d+1}, s{hi}, 0")
    a(f"s_and_b32 s{d+1}, s{d+1}, 0xffff")
    a(f"s_sub_u32 s{d+2}, {total}, s{s_off}")
    a(f"s_mov_b32 s{d+3}, 0x20000")

def dma_lanes(a, vr8, vc8, vx0, vx1, t, s_rb, s_w):
    a(f"v_lshrrev_b32 v{vr8}, 3, v0")
    a(f"v_and_b32 v{t}, 7, v0")
    a(f"v_lshrrev_b32 v{t+1}, 1, v{vr8}")
    a(f"v_xor_b32 v{t+2}, v{t}, v{t+1}")
    a(f"v_lshlrev_b32 v{t+2}, 4, v{t+2}")
    a(f"s_lshl_b32 s44, s{s_rb}, 7")
    a(f"s_lshl_b32 s45, s{s_w}, 5")
    a("s_add_u32 s44, s44, s45")
    a(f"v_add_u32 v{vx0}, s44, v{vr8}")
    a(f"v_lshl_add_u32 v{vx0}, v{vx0}, 10, v{t+2}")
    a(f"v_xor_b32 v{vx1}, 64, v{vx0}")
    a(f"v_add_u32 v{vx1}, 8192, v{vx1}")
    a(f"v_lshlrev_b32 v{t+1}, 2, v{t+1}")
    a(f"v_and_b32 v{t+1}, 4, v{t+1}")
    a(f"v_xor_b32 v{t}, v{t}, v{t+1}")
    a(f"v_lshlrev_b32 v{vc8}, 4, v{t}")

def dma_lds(a, s_lx, s_lw, s_w):
    a(f"s_lshl_b32 s{s_lx}, s{s_w}, 12")
    a(f"s_lshr_b32 s46, s{s_w}, 1")
    a(f"s_and_b32 s47, s{s_w}, 1")
    a(f"s_mul_i32 s44, s46, {TU-TG}")
    a("s_lshl_b32 s45, s47, 12")
    a("s_add_u32 s44, s44, s45")
    a(f"s_add_u32 s{s_lw}, s44, {TG}")

def start_stage(a, mode, s_lc, s_w, s_xoff, s_woff, pitch):
    if mode == 1:
        a(f"s_lshl_b32 s44, s{S_LOC}, 1")
        a(f"s_add_u32 s44, s44, s{s_lc}")
        a("s_and_b32 s44, s44, 7")
    elif mode == 2:
        a(f"s_lshl_b32 s44, s{S_LOC}, 1")
        a("s_and_b32 s44, s44, 7")
    else:
        a("s_mov_b32 s44, 0")
    a(f"s_lshl_b32 s{s_xoff}, s44, 7")
    a("s_lshl_b32 s44, s44, 1")
    a(f"s_and_b32 s45, s{s_w}, 1")
    a("s_add_u32 s44, s44, s45")
    a("s_lshl_b32 s44, s44, 5")
    a(f"s_mul_i32 s{s_woff}, s44, {pitch}")

def ffn_srd(a, s_w, s_u):
    a(f"s_cmp_lt_u32 s{s_w}, 2")
    a("s_cselect_b32 s46, s12, s14")
    a("s_cselect_b32 s47, s13, s15")
    a(f"s_lshl_b32 s44, s{s_u}, 5")
    a(f"s_add_u32 s{SB}, s46, s44")
    a(f"s_addc_u32 s{SB+1}, s47, 0")
    a(f"s_and_b32 s{SB+1}, s{SB+1}, 0xffff")
    a(f"s_sub_u32 s{SB+2}, {512*2752}, s44")
    a(f"s_mov_b32 s{SB+3}, 0x20000")

class LQ:
    def __init__(self): self.q = []
    def push(self, tag): self.q.append(tag)
    def need(self, tag):
        if tag not in self.q: return None
        i = len(self.q) - 1 - self.q[::-1].index(tag)
        n = len(self.q) - 1 - i
        self.q = self.q[i+1:]
        return n

def a_waves(a, st):
    R = Regs(4)
    vt = R.alloc(); vt2 = R.alloc(); vt3 = R.alloc(); vt4 = R.alloc()
    kaddr = R.alloc(); vaddr = R.alloc(); vcnt = R.alloc(); vstep = R.alloc(); vmask = R.alloc()
    vx0 = R.alloc(); vx1 = R.alloc(); vw = R.alloc()
    GG = R.alloc(4)
    vr8, vc8, vxu = GG, GG+1, GG+2
    Q = [R.alloc(4), R.alloc(4)]; KR = R.alloc(4); V0 = R.alloc(4); V1 = R.alloc(4)
    P = R.alloc(4); S = [R.alloc(16), R.alloc(16)]
    IDX = R.alloc(); vkp = R.alloc()
    O = [R.alloc(16), R.alloc(16)]; C = [R.alloc(16), R.alloc(16)]
    s_head, s_T, s_c, s_kg, s_vg, s_ld, s_tgt = 48, 49, 50, 51, 52, 53, 54
    s_q0, s_q1, s_slot, s_step, s_tok = 55, 56, 57, 58, 59
    a(f"s_cmp_ge_u32 s{S_WAVE}, 4")
    a("s_cbranch_scc1 L_help0")
    s_rb, s_lc, s_um, s_ue = 48, 49, 50, 51
    s_xoff, s_woff, s_lslot, s_cnt, s_lx, s_lw, s_pitch, s_xslot, s_xu, s_lxu = 52, 53, 54, 55, 56, 57, 58, 59, 60, 61
    JUNK = S[0]
    a(f"s_cmp_ge_u32 s{S_LOC}, 24")
    a("s_cbranch_scc1 L_pf")
    tile_ids(a, s_rb, s_lc)
    dma_lanes(a, vr8, vc8, vx0, vx1, vt2, s_rb, S_WAVE)
    dma_lds(a, s_lx, s_lw, S_WAVE)
    a(f"s_mov_b32 s{s_lslot}, 0")
    a(f"s_mov_b32 s{s_cnt}, 0")
    start_stage(a, o.stag1, s_lc, S_WAVE, s_xoff, s_woff, 3072)
    if o.rot:
        a(f"s_mov_b32 s63, s{s_woff}")
        a(f"s_add_u32 s62, s{S_LOC}, s{s_lc}")
        a(f"s_and_b32 s62, s62, {o.rot}")
        a(f"s_lshl_b32 s{s_xoff}, s62, 7")
        a(f"s_mul_i32 s44, s62, {64*3072}")
        a(f"s_add_u32 s{s_woff}, s44, s63")
    a(f"v_mul_u32_u24 v{vw}, 3072, v{vr8}")
    a(f"s_lshr_b32 s44, s{S_XCD}, 2")
    a("s_mul_i32 s44, s44, 6")
    a(f"s_add_u32 s44, s44, s{s_lc}")
    a("s_lshl_b32 s44, s44, 1")
    a("s_add_u32 s44, s44, s46")
    a("s_lshl_b32 s44, s44, 7")
    a(f"v_add3_u32 v{vw}, v{vw}, v{vc8}, s44")
    a("s_waitcnt lgkmcnt(0)")
    srd(a, SA, 4, 5, 2048*1024)
    srd(a, SB, 6, 7, 512*3072)
    a.label("L_ld0")
    a(f"s_add_u32 m0, s{s_lslot}, s{s_lx}")
    a(f"s_add_u32 s44, s{s_xoff}, 16384")
    for j in range(4):
        a(f"buffer_load_dwordx4 v{vx1 if j & 1 else vx0}, s[{SA}:{SA+3}], s{s_xoff if j < 2 else 44} offen lds")
        if j < 3: a("s_add_u32 m0, m0, 1024")
        else: a(f"s_add_u32 m0, s{s_lslot}, s{s_lw}")
        a([f"s_add_u32 s{s_cnt}, s{s_cnt}, 1", f"s_mov_b32 s45, s{s_woff}", f"s_add_u32 s{s_xoff}, s{s_xoff}, 128", "s_nop 0"][j])
    for j in range(4):
        a(f"buffer_load_dwordx4 v{vw}, s[{SB}:{SB+3}], s45 offen lds")
        if j < 3:
            a("s_add_u32 m0, m0, 1024")
            a(f"s_add_u32 s45, s45, {8*3072}")
    if o.rot:
        a(f"s_xor_b32 s44, s{s_cnt}, s62")
        a(f"s_cmp_lt_u32 s{s_cnt}, {o.rot+1}")
        a(f"s_cselect_b32 s44, s44, s{s_cnt}")
        a(f"s_lshl_b32 s{s_xoff}, s44, 7")
        a(f"s_mul_i32 s44, s44, {64*3072}")
        a(f"s_add_u32 s{s_woff}, s44, s63")
    else:
        a(f"s_add_u32 s{s_woff}, s{s_woff}, {64*3072}")
        a(f"s_and_b32 s{s_xoff}, s{s_xoff}, 1023")
        a(f"s_cselect_b32 s46, 0, {512*3072}")
        a(f"s_sub_u32 s{s_woff}, s{s_woff}, s46")
    a(f"s_sub_u32 s{s_lslot}, s{s_lslot}, {TSTR}")
    a(f"s_cselect_b32 s{s_lslot}, {2*TSTR}, s{s_lslot}")
    a(f"s_cmp_lt_u32 s{s_cnt}, 2")
    a("s_cbranch_scc1 L_ld0")
    a(f"s_cmp_eq_u32 s{s_cnt}, 8")
    a("s_cbranch_scc1 L_ld_end")
    a("s_waitcnt vmcnt(8)")
    if o.hprof:
        for c_, slot in ((2, 95), (3, 100), (5, 101)):
            lab = a.newlabel("hp")
            a(f"s_cmp_eq_u32 s{s_cnt}, {c_}"); a(f"s_cbranch_scc0 {lab}")
            a("s_memrealtime s[96:97]"); a("s_waitcnt lgkmcnt(0)"); a(f"s_sub_u32 s{slot}, s96, s70")
            a.label(lab)
    a("s_barrier")
    a("s_branch L_ld0")
    a.label("L_pf")
    a(f"v_lshrrev_b32 v{vt}, 3, v0")
    a(f"v_and_b32 v{vt2}, 7, v0")
    a(f"v_lshlrev_b32 v{vt2}, 4, v{vt2}")
    a(f"v_lshl_add_u32 v{vx0}, v{vt}, 10, v{vt2}")
    a(f"v_mov_b32 v{vt3}, 1024")
    a(f"v_mov_b32 v{vt4}, 2560")
    a("v_cmp_gt_u32 vcc, 32, v0")
    a(f"s_sub_u32 s46, s{S_LOC}, 24")
    a("s_lshl_b32 s46, s46, 2")
    a(f"s_add_u32 s46, s46, s{S_WAVE}")
    a(f"v_cndmask_b32 v{vt3}, v{vt4}, v{vt3}, vcc")
    a(f"v_add_u32 v{vx1}, v{vt3}, v{V_L16}")
    a(f"s_and_b32 s44, s{S_XCD}, 3")
    a("s_lshl_b32 s44, s44, 5")
    a("s_add_u32 s44, s44, s46")
    a(f"s_lshl_b32 s{s_xoff}, s44, 14")
    a(f"s_add_u32 s{s_xoff}, s{s_xoff}, {128*o.pf0}")
    a(f"s_lshr_b32 s44, s{S_XCD}, 2")
    a("s_mul_i32 s44, s44, 1536")
    a(f"s_mul_i32 s{s_woff}, s46, {2*3072}")
    a(f"s_add_u32 s{s_woff}, s{s_woff}, s44")
    a(f"s_add_u32 s{s_woff}, s{s_woff}, {64*3072*o.pf0}")
    a(f"s_mov_b32 s{s_cnt}, {o.pf0}")
    a("s_waitcnt lgkmcnt(0)")
    srd(a, SA, 4, 5, 2048*1024)
    srd(a, SB, 6, 7, 512*3072)
    if o.sl2:
        a(f"s_cmp_eq_u32 s{S_LOC}, 31")
        a("s_cbranch_scc0 L_pf1")
        a(f"s_sleep {o.sl2}")
    a.label("L_pf1")
    a(f"s_add_u32 s44, s{s_xoff}, 8192")
    a(f"buffer_load_dwordx4 {v(JUNK,4)}, v{vx0}, s[{SA}:{SA+3}], s{s_xoff} offen")
    a(f"buffer_load_dwordx4 {v(JUNK,4)}, v{vx0}, s[{SA}:{SA+3}], s44 offen")
    a(f"buffer_load_dwordx4 {v(JUNK,4)}, v{V_L16}, s[{SB}:{SB+3}], s{s_woff} offen")
    a(f"buffer_load_dwordx4 {v(JUNK,4)}, v{vx1}, s[{SB}:{SB+3}], s{s_woff} offen")
    a(f"buffer_load_dwordx4 {v(JUNK,4)}, v{V_L16}, s[{SB}:{SB+3}], s{s_woff} offen offset:3584")
    a(f"s_add_u32 s{s_xoff}, s{s_xoff}, 128")
    a(f"s_add_u32 s{s_woff}, s{s_woff}, {64*3072}")
    a(f"s_add_u32 s{s_cnt}, s{s_cnt}, 1")
    a(f"s_cmp_lt_u32 s{s_cnt}, 8")
    a("s_cbranch_scc1 L_pf1")
    if o.pfup:
        if not o.pf31:
            a(f"s_cmp_eq_u32 s{S_LOC}, 31")
            a("s_cbranch_scc1 L_pf3")
        srd(a, SB, 12, 13, 512*2752)
        srd(a, SC, 14, 15, 512*2752)
        quad_start(a, 44)
        a("s_lshl_b32 s44, s44, 5")
        a(f"s_mul_i32 s{s_woff}, s46, 2752")
        a(f"s_add_u32 s{s_woff}, s{s_woff}, s44")
        a(f"s_and_b32 s44, s{S_XCD}, 3")
        a("s_xor_b32 s44, s44, 1")
        a("s_lshl_b32 s44, s44, 5")
        a("s_add_u32 s44, s44, s46")
        a(f"s_lshl_b32 s{s_xoff}, s44, 14")
        a(f"s_mov_b32 s{s_cnt}, 0")
        a.label("L_pf2")
        a("s_mov_b32 exec_hi, 0x3ffff")
        a(f"buffer_load_dwordx4 {v(JUNK,4)}, v{V_L16}, s[{SB}:{SB+3}], s{s_woff} offen")
        a(f"buffer_load_dwordx4 {v(JUNK,4)}, v{V_L16}, s[{SC}:{SC+3}], s{s_woff} offen")
        a("s_mov_b32 exec_hi, -1")
        a(f"buffer_load_dwordx4 {v(JUNK,4)}, v{vx0}, s[{SA}:{SA+3}], s{s_xoff} offen")
        a(f"s_add_u32 s{s_woff}, s{s_woff}, {32*2752}")
        a(f"s_add_u32 s{s_cnt}, s{s_cnt}, 1")
        a(f"s_bitcmp1_b32 s{s_cnt}, 0")
        a(f"s_mov_b32 s44, {(128-8192) & 0xffffffff}")
        a("s_cselect_b32 s44, 8192, s44")
        a(f"s_add_u32 s{s_xoff}, s{s_xoff}, s44")
        a(f"s_cmp_lt_u32 s{s_cnt}, {o.pfup}")
        a("s_cbranch_scc1 L_pf2")
    a.label("L_pf3")
    for i in range(6): a("s_barrier")
    a.label("L_ld_end")
    srd(a, SWS, 24, 25, WS_BYTES)
    a("s_waitcnt vmcnt(8)")
    a("s_barrier")
    a("s_waitcnt vmcnt(0)")
    a("s_branch L_b7")

    a.label("L_help0")
    GT = S[0]
    a(f"v_lshl_add_u32 v{vt2}, v0, 2, v{V_MISC}")
    a(f"v_mov_b32 v{vt}, 0")
    a(f"ds_write_b32 v{vt2}, v{vt}")
    a("s_waitcnt lgkmcnt(0)")
    srd(a, SWS, 24, 25, WS_BYTES)
    srd(a, SC, 22, 23, 256)
    a(f"s_cmp_eq_u32 s{S_WAVE}, 4")
    a("s_cbranch_scc0 L_help2")
    a(f"s_cmp_eq_u32 s{S_LOC}, 31")
    a("s_cbranch_scc0 L_help2")
    a("s_setprio 3")
    a(f"s_add_u32 s46, s24, {W0 + o.wsoff*MB}")
    a("s_addc_u32 s47, s25, 0")
    a("s_load_dword s45, s[46:47], 0 glc")
    for i in range(4): a(f"v_mov_b32 v{GT+i}, 0")
    a(f"s_lshl_b32 s46, s{S_XCD}, 12")
    a(f"s_add_u32 s46, s46, {CNT}")
    for i in range(4):
        a(f"buffer_store_dwordx4 {v(GT,4)}, v{V_L16}, s[{SWS}:{SWS+3}], s46 offen offset:{i*1024} sc1")
    a("s_waitcnt lgkmcnt(0)")
    a("s_mul_i32 s45, s45, 0x19660d")
    a("s_add_u32 s45, s45, 0x3c6ef35f")
    a("s_max_u32 s45, s45, 1")
    a(f"v_mov_b32 v{vt3}, s45")
    a(f"s_lshl_b32 s46, s{S_XCD}, 2")
    a("s_waitcnt vmcnt(0)")
    a("s_mov_b64 exec, 1")
    a(f"buffer_store_dword v{vt3}, off, s[{SC}:{SC+3}], s46 sc1")
    a("s_mov_b64 exec, -1")
    a("s_setprio 0")
    if st.en:
        a("s_memrealtime s[96:97]"); a("s_waitcnt lgkmcnt(0)"); a("s_sub_u32 s95, s96, s70")
    a.label("L_help2")
    a.label("L_help3")
    a.label("L_help4")
    if o.hprof:
        a("s_memrealtime s[96:97]"); a("s_waitcnt lgkmcnt(0)"); a("s_sub_u32 s95, s96, s70")
    a("s_barrier")
    st.stamp(2)
    hv = S[1]
    tmp = Asm()
    tmp(f"v_and_b32 v{vt2}, 7, v0")
    tmp(f"v_lshlrev_b32 v{vt2}, 2, v{vt2}")
    tmp(f"s_sub_u32 s48, s{S_WAVE}, 4")
    up_dma_setup(tmp, hv, hv+4, [hv+5, hv+6, hv+7], 48, 49, 50, 51, 60, 61, 62, 63)
    n4 = (len(tmp.lines) + 3) // 4
    for i in range(4):
        a.lines += tmp.lines[i*n4:(i+1)*n4]
        a("s_barrier")
    a(f"s_cmp_eq_u32 s{S_WAVE}, 4")
    a("s_cbranch_scc0 L_help5")
    a(f"buffer_load_dword v{vt}, v{vt2}, s[{SC}:{SC+3}], 0 offen sc1")
    a.label("L_help5")
    hv = S[1]
    up_srd(a, 48, 51)
    a(f"s_add_u32 s61, s61, {UWS}")
    hg = up_dma_groups(hv+4, [hv+5, hv+6, hv+7], 60, 61, 62, 63)
    def hx():
        for grp in hg[:4]:
            for l in grp: a(l)
    def hw():
        for grp in hg[4:]:
            for l in grp: a(l)
    def hw0():
        hw()
        a(f"s_add_u32 s61, s61, {UWS}")
        a(f"s_add_u32 s63, s63, {64*2752}")
    plan = [([hw0], [hx, hw], []), ([], [hw0, hx], [hw]), ([], [hw0], [hx, hw]), ([hw0], [hx], [hw]), ([], [], [hw0, hx, hw])][o.hat]
    a("s_barrier")
    if plan[0] and o.sl3: a(f"s_sleep {o.sl3}")
    for f in plan[0]: f()
    a("s_barrier")
    for f in plan[1]: f()
    a("s_barrier")
    for f in plan[2]: f()
    a("s_waitcnt vmcnt(6)")
    lds_arrive(a, V_MISC, L_U)
    a(f"s_cmp_eq_u32 s{S_WAVE}, 4")
    a("s_cbranch_scc0 L_pre")
    a(f"s_mov_b32 s{S_SPIN}, 0")
    a.label("L_np")
    a("s_waitcnt vmcnt(0)")
    a(f"v_cmp_eq_u32 vcc, 0, v{vt}")
    a(f"s_cmp_gt_u32 s{S_SPIN}, 200000")
    a("s_cbranch_scc1 L_ng")
    a("s_cbranch_vccz L_ng")
    a(f"s_add_u32 s{S_SPIN}, s{S_SPIN}, 1")
    a("s_sleep 4")
    a(f"buffer_load_dword v{vt}, v{vt2}, s[{SC}:{SC+3}], 0 offen sc1")
    a("s_branch L_np")
    a.label("L_ng")
    if st.en: a(f"s_add_u32 s100, s{S_SPIN}, 1")
    a("s_mov_b64 exec, 1")
    a(f"ds_write_b32 v{V_MISC}, v{vt} offset:{L_NONCE}")
    a("s_cmp_eq_u32 s2, 255")
    a("s_cbranch_scc0 L_nw")
    a(f"s_mov_b32 s44, {W0}")
    a(f"buffer_store_dword v{vt}, off, s[{SWS}:{SWS+3}], s44 sc1")
    a.label("L_nw")
    a("s_mov_b64 exec, -1")
    a.label("L_pre")
    a(f"s_add_u32 s60, s60, {UX[1]-UX[0]}")
    a("s_add_u32 s62, s62, 128")
    a(f"s_sub_u32 s61, s61, {2*UWS}")
    a(f"s_add_u32 s63, s63, {64*2752}")
    lds_wait_ge(a, "pre", V_MISC, L_ST, "4", vt3, sleep=1)
    hx()
    if o.hw2: hw()
    a("s_waitcnt vmcnt(0)")
    lds_arrive(a, V_MISC, L_ST)
    a("s_branch L_b7x")
    a.label("L_b7")
    a("s_barrier")
    a(f"s_and_b32 s44, s{S_XCD}, 3")
    a("s_lshl_b32 s44, s44, 6")
    a(f"s_lshr_b32 s45, s{S_XCD}, 2")
    a("s_lshl_b32 s45, s45, 5")
    a("s_add_u32 s44, s44, s45")
    a(f"s_add_u32 s44, s44, s{S_LOC}")
    a("s_lshl_b32 s44, s44, 2")
    a(f"s_add_u32 s44, s44, s{S_WAVE}")
    a(f"s_lshl_b32 s{s_tok}, s44, 1")
    a(f"s_lshl_b32 s44, s{s_tok}, 10")
    srd(a, SB, 18, 19, 1024)
    a(f"buffer_load_dwordx4 {v(GT,4)}, v{V_L16}, s[{SB}:{SB+3}], 0 offen")
    a(f"buffer_load_dwordx4 {v(GT+4,4)}, v{V_L16}, s[{SA}:{SA+3}], s44 offen")
    a(f"buffer_load_dwordx4 {v(GT+8,4)}, v{V_L16}, s[{SA}:{SA+3}], s44 offen offset:1024")
    a("s_waitcnt vmcnt(0)")
    for r in range(2):
        a(f"v_mov_b32 v{vt3+r}, 0")
    for i in range(4):
        for r in range(2):
            a(f"v_dot2c_f32_bf16 v{vt3+r}, v{GT+4+4*r+i}, v{GT+i}")
    a("s_nop 2")
    for dpp in ["row_shr:1", "row_shr:2", "row_shr:4", "row_shr:8", "row_bcast:15 row_mask:0xa", "row_bcast:31 row_mask:0xc"]:
        a("s_nop 0")
        for r in range(2):
            a(f"v_add_f32_dpp v{vt3+r}, v{vt3+r}, v{vt3+r} {dpp}")
    for r in range(2): a(f"v_mul_f32 v{vt3+r}, {f32bits(-LOG2E)}, v{vt3+r}")
    for r in range(2): a(f"v_exp_f32 v{vt3+r}, v{vt3+r}")
    a("s_nop 0")
    for r in range(2): a(f"v_add_f32 v{vt3+r}, 1.0, v{vt3+r}")
    for r in range(2): a(f"v_rcp_f32 v{GG+2*r}, v{vt3+r}")
    a.label("L_b7x")
    if o.sl1: a(f"s_sleep {o.sl1}")
    st.stamp(3)
    a(f"s_lshl_b32 s44, s{S_XCD}, 2")
    a(f"s_and_b32 s45, s{S_LOC}, 3")
    a(f"s_add_u32 s{s_head}, s44, s45")
    a(f"s_lshr_b32 s44, s{S_LOC}, 2")
    a("s_lshl_b32 s44, s44, 3")
    a(f"s_and_b32 s45, s{S_WAVE}, 3")
    a("s_lshl_b32 s45, s45, 1")
    a("s_add_u32 s44, s44, s45")
    a(f"s_lshr_b32 s46, s{S_WAVE}, 2")
    a(f"s_add_u32 s{s_T}, s44, s46")
    a(f"s_lshl_b32 s44, s{s_head}, 16")
    a(f"s_lshl_b32 s{s_ld}, s{S_WAVE}, 10")
    a(f"s_add_u32 s{s_kg}, s44, s{s_ld}")
    a(f"s_add_u32 s{s_vg}, s{s_kg}, {VF}")
    a(f"s_add_u32 s{s_kg}, s{s_kg}, {KF}")
    a(f"s_lshl_b32 s45, s{s_T}, 10")
    a(f"s_add_u32 s{s_q0}, s44, s45")
    a(f"s_xor_b32 s{s_q1}, s{s_q0}, 1024")
    a("s_lshl_b32 s46, s46, 12")
    a(f"v_and_b32 v{vkp}, 51, v0")
    a(f"v_bfe_u32 v{vt3}, v0, 2, 1")
    a(f"v_lshl_or_b32 v{vkp}, v{vt3}, 3, v{vkp}")
    a(f"v_bfe_u32 v{vt3}, v0, 3, 1")
    a(f"v_lshl_or_b32 v{vkp}, v{vt3}, 2, v{vkp}")
    a(f"v_lshlrev_b32 v{vkp}, 4, v{vkp}")
    a(f"v_add_u32 v{kaddr}, s46, v{vkp}")
    a(f"v_mov_b32 v{IDX}, 0xdddddddd")
    a(f"v_and_b32 v{vt3}, 15, v0")
    a(f"v_lshlrev_b32 v{vt3}, 4, v{vt3}")
    a(f"v_lshrrev_b32 v{vt4}, 5, v0")
    a(f"v_lshl_add_u32 v{vt4}, v{vt4}, 8, v{vt3}")
    a("s_add_u32 s46, s46, 8192")
    a(f"v_add_u32 v{vaddr}, s46, v{vt4}")
    a(f"v_and_b32 v{vt4}, 16, v0")
    a(f"v_cmp_ne_u32 vcc, 0, v{vt4}")
    a(f"v_add_u32 v{vt3}, {VCONST}, v{vt3}")
    a(f"v_mov_b32 v{vstep}, 1")
    a("s_nop 0")
    a(f"v_cndmask_b32 v{vaddr}, v{vaddr}, v{vt3}, vcc")
    a(f"v_cndmask_b32 v{vstep}, v{vstep}, 0, vcc")
    a(f"s_lshl_b32 s44, s{S_WAVE}, 9")
    a(f"v_add_u32 v{vcnt}, s44, v{vt3}")
    a(f"v_and_b32 v{vt4}, 27, v0")
    a(f"v_cmp_eq_u32 vcc, 16, v{vt4}")
    a(f"v_mov_b32 v{vt3}, 0x3f803f80")
    a(f"s_mov_b32 s{s_c}, 0")
    a(f"s_mov_b32 s{s_tgt}, 16")
    for i in range(4):
        a(f"v_cndmask_b32 v{V1+i}, 0, v{vt3}, vcc")
    a("s_mov_b32 exec_lo, 0xffff0000")
    a("s_mov_b32 exec_hi, 0")
    a(f"ds_write_b128 v{vcnt}, {v(V1,4)}")
    a("s_mov_b64 exec, -1")
    a(f"v_mov_b32 v{P}, 0")
    a(f"v_mov_b32 v{P+1}, 0")
    for i in range(16): a(f"v_pk_mov_b32 {v(O[0]+2*i,2)}, {v(P,2)}, {v(P,2)}")
    a(f"s_mov_b32 s{s_slot}, 32768")
    a("s_mov_b32 s60, 99")
    a(f"s_cmp_lt_u32 s{S_WAVE}, 4")
    a("s_cbranch_scc0 L_at_nogst")
    lds_wait_ge(a, "gtag", V_MISC, L_NONCE, "1", GG+1, sleep=2)
    a(f"v_mov_b32 v{GG+3}, v{GG+1}")
    a(f"s_mov_b32 s60, 0")
    a.label("L_at_nogst")
    a(f"s_cmp_eq_u32 s{S_WAVE}, 0")
    a("s_cbranch_scc0 L_at_waitgo")
    a(f"s_lshr_b32 s44, s{S_XCD}, 1")
    a("s_lshl_b32 s44, s44, 1")
    a(f"s_bfe_u32 s45, s{S_LOC}, 0x10001")
    a("s_add_u32 s44, s44, s45")
    a("s_lshl_b32 s44, s44, 10")
    a(f"s_add_u32 s44, s44, {CQ}")
    a(f"v_min_u32 v{vw}, 5, v0")
    a(f"v_lshlrev_b32 v{vw}, 7, v{vw}")
    lds_wait_ge(a, "atpost", V_MISC, L_POST, "4", vt)
    if o.nbr:
        a(f"s_cmp_ge_u32 s{S_LOC}, 24")
        a("s_cbranch_scc1 L_at_pp")
        a(f"s_sleep {o.pdelay}")
        a("s_branch L_at_ppd")
        a.label("L_at_pp")
        a(f"s_lshl_b32 s45, s{S_XCD}, 10")
        a(f"s_add_u32 s45, s45, {CQ + 6*128}")
        poll(a, "atp", vt, None, 45, 1, 4, at=1 if o.apoll & 1 else 0)
        if o.ppdelay: a(f"s_sleep {o.ppdelay}")
        a.label("L_at_ppd")
    elif o.pdelay: a(f"s_sleep {o.pdelay}")
    st.stamp(2)
    poll(a, "atq", vt, vw, 44, 16, o.psleep, at=6 if o.apoll & 1 else 0)
    if st.en and not o.hprof: a(f"s_mov_b32 s101, s{S_SPIN}")
    a(f"ds_write_b32 v{V_MISC}, v{V_ONE} offset:{L_GO}")
    a("s_branch L_at_go")
    a.label("L_at_waitgo")
    lds_wait_ge(a, "atgo", V_MISC, L_GO, "1", vt)
    a.label("L_at_go")
    st.stamp(4)
    def dma(lit=None):
        if lit is not None: a(f"s_add_u32 m0, s{s_ld}, {lit}")
        else: a(f"s_add_u32 m0, s{s_ld}, s{s_slot}")
        a("s_nop 0")
        a(f"buffer_load_dwordx4 v{V_L16}, s[{SWS}:{SWS+3}], s{s_kg} offen sc1 lds")
        a("s_add_u32 m0, m0, 8192")
        a(f"s_add_u32 s{s_kg}, s{s_kg}, 8192")
        a(f"buffer_load_dwordx4 v{V_L16}, s[{SWS}:{SWS+3}], s{s_vg} offen sc1 lds")
        a(f"s_add_u32 s{s_vg}, s{s_vg}, 8192")
    a(f"buffer_load_dwordx4 {v(Q[0],4)}, v{V_L16}, s[{SWS}:{SWS+3}], s{s_q0} offen sc1")
    a(f"buffer_load_dwordx4 {v(Q[1],4)}, v{V_L16}, s[{SWS}:{SWS+3}], s{s_q1} offen sc1")
    dma(0)
    a("s_waitcnt vmcnt(0) lgkmcnt(0)")
    lds_arrive(a, V_MISC, L_ATT)
    dma(16384)
    lds_wait_ge(a, "at0", V_MISC, L_ATT, "8", vt, sleep=0)
    st.stamp(5)
    a(f"ds_read_b128 {v(V0,4)}, v{V_L16}")
    a(f"ds_read_b128 {v(KR,4)}, v{kaddr}")
    a("s_waitcnt lgkmcnt(1)")
    for q in range(2):
        a(f"{MF} {v(S[q],16)}, {v(V0,4)}, {v(Q[q],4)}, 0")
    a(f"ds_read_b128 {v(V0,4)}, v{vaddr}")
    a("s_nop 9")
    def maxtree(dst, src, first):
        if first:
            a(f"v_max3_f32 v{dst}, v{src}, v{src+1}, v{src+2}")
            rest = list(range(3, 16))
        else:
            rest = list(range(0, 16))
        while len(rest) >= 2:
            a(f"v_max3_f32 v{dst}, v{dst}, v{src+rest[0]}, v{src+rest[1]}")
            rest = rest[2:]
        if rest:
            a(f"v_max_f32 v{dst}, v{dst}, v{src+rest[0]}")
    def setC(q):
        a(f"v_mov_b32 v{vt2}, v{vt}")
        a("s_nop 1")
        a(f"v_permlane32_swap_b32 v{vt}, v{vt2}")
        a("s_nop 1")
        a(f"v_max_f32 v{vt}, v{vt}, v{vt2}")
        a(f"v_sub_f32 v{C[q]}, 0, v{vt}")
        a(f"v_sub_f32 v{C[q]+1}, 0, v{vt}")
        for i in range(1, 8):
            a(f"v_pk_mov_b32 {v(C[q]+2*i,2)}, {v(C[q],2)}, {v(C[q],2)}")
    maxtree(vt, S[0], True)
    setC(0)
    a("s_waitcnt lgkmcnt(0)")
    a("s_nop 0")
    maxtree(vt, S[1], True)
    a(f"{MF} {v(S[0],16)}, {v(KR,4)}, {v(Q[0],4)}, {v(C[0],16)}")
    setC(1)
    for i in range(4):
        a(f"v_pk_mov_b32 {v(S[1]+8+2*i,2)}, {v(P,2)}, {v(P,2)}")
    def e(cur, i): a(f"v_exp_f32 v{cur+i}, v{cur+i}")
    c0, c1, c2 = [int(x) for x in o.cuts.split(",")]
    def body(emit, lq):
        def A(s):
            if emit: a(s)
        def w(tag):
            n = lq.need(tag)
            if n is not None: A(f"s_waitcnt lgkmcnt({n})")
        def E(cur, lo, hi):
            if emit:
                for i in range(lo, hi): e(cur, i)
        def rdv(reg, off, tag):
            A(f"ds_read_b128 {v(reg,4)}, v{vaddr} offset:{off}")
            lq.push(tag)
        for tt in range(4):
            for q in range(2):
                cur = S[q]; nxt = S[q ^ 1]
                stp = 2*tt + q
                if o.aprio >= 3 and stp in (0, o.aprio+1):
                    lab = a.newlabel("pr") if emit else ""
                    A(f"s_cmp_ge_u32 s{S_WAVE}, 4")
                    A(f"s_cbranch_scc1 {lab}")
                    A(f"s_setprio {1 if stp == 0 else 0}")
                    if emit: a.label(lab)
                E(cur, 0, c0)
                if q == 1: w("K")
                A(f"{SM} {v(O[q^1],16)}, {v(V1,4)}, {v(nxt+8,8)}, v{IDX}")
                if q == 0:
                    rdv(V1, tt*1024 + 512, "V1")
                if stp == o.xat:
                    if emit: st.abeg()
                    A("s_waitcnt vmcnt(0)")
                    if emit: st.aend(0)
                    A("s_mov_b64 exec, 1")
                    A(f"ds_add_u32 v{V_MISC}, v{V_ONE} offset:{L_ATT}")
                    A("s_mov_b64 exec, -1")
                    lq.push("X")
                if stp == o.yat - 1:
                    A(f"ds_read_b32 v{vcnt}, v{V_MISC} offset:{L_ATT}")
                    lq.push("CNT")
                E(cur, c0, c1)
                A(f"{MF} {v(nxt,16)}, {v(KR,4)}, {v(Q[q^1],4)}, {v(C[q^1],16)}")
                if q == 0:
                    if tt == 3:
                        A(f"v_add_u32 v{kaddr}, s{s_step}, v{kaddr}")
                        A(f"ds_read_b128 {v(KR,4)}, v{kaddr}")
                    else:
                        A(f"ds_read_b128 {v(KR,4)}, v{kaddr} offset:{(tt+1)*1024}")
                    lq.push("K")
                E(cur, c1, c2)
                if q == 0: w("V0")
                A(f"{SM} {v(O[q],16)}, {v(V0,4)}, {v(cur,8)}, v{IDX}")
                if q == 1:
                    if tt == 3:
                        A(f"v_mad_i32_i24 v{vaddr}, v{vstep}, s{s_step}, v{vaddr}")
                        rdv(V0, 0, "V0")
                    else:
                        rdv(V0, (tt+1)*1024, "V0")
                if stp == o.yat:
                    w("CNT")
                    A(f"v_cmp_gt_u32 vcc, s{s_tgt}, v{vcnt}")
                    A(f"s_cmp_lt_u32 s{s_c}, 6")
                    A("s_cbranch_vccnz L_at_slow")
                    if emit:
                        a.label("L_at_back")
                        a("s_cbranch_scc0 L_at_dmadone")
                        st.abeg()
                        dma()
                        st.aend(2)
                        a(f"s_add_u32 s{s_slot}, s{s_slot}, 16384")
                        a(f"s_cmp_eq_u32 s{s_slot}, 49152")
                        a(f"s_cselect_b32 s{s_slot}, 0, s{s_slot}")
                        a(f"s_cmp_eq_u32 s{s_c}, s60")
                        a("s_cbranch_scc1 L_at_gst")
                        a.label("L_at_dmadone")
                E(cur, c2, 16)
    lq = LQ()
    body(False, lq)
    steady = list(lq.q)
    if o.aprio:
        a(f"s_cmp_lt_u32 s{S_WAVE}, 4")
        a("s_cbranch_scc1 L_at_np")
        a("s_setprio 1")
        a.label("L_at_np")
    st.stamp(8)
    a(".p2align 6")
    a.label("L_at_loop")
    assert o.xat < o.yat - 1 and o.yat <= 5
    a(f"s_bitcmp1_b32 0x24, s{s_c}")
    a(f"s_mov_b32 s44, {(-32768) & 0xffffffff}")
    a(f"s_cselect_b32 s{s_step}, s44, 16384")
    body(True, lq)
    assert lq.q == steady, (lq.q, steady)
    a(f"s_add_u32 s{s_c}, s{s_c}, 1")
    a(f"s_add_u32 s{s_tgt}, s{s_tgt}, 8")
    a(f"s_cmp_lt_u32 s{s_c}, 8")
    a("s_cbranch_scc1 L_at_loop")
    st.stamp(9)
    a(f"{SM} {v(O[1],16)}, {v(V1,4)}, {v(S[1]+8,8)}, v{IDX}")
    a(f"s_and_b32 s44, s{S_WAVE}, 3")
    a("s_lshl_b32 s44, s44, 12")
    a(f"s_lshr_b32 s45, s{S_WAVE}, 2")
    a("s_lshl_b32 s45, s45, 15")
    a("s_add_u32 s44, s44, s45")
    a(f"v_add_u32 v{kaddr}, s44, v{V_L16}")
    a(f"v_xor_b32 v{vaddr}, 32768, v{kaddr}")
    a(f"s_and_b32 s44, s{S_WAVE}, 3")
    a(f"v_lshl_add_u32 v{vt3}, s44, 2, v{V_MISC}")
    a(f"s_lshl_b32 s46, s{s_T}, 5")
    a(f"s_add_u32 s46, s46, s{s_head}")
    a("s_lshl_b32 s46, s46, 10")
    a(f"s_add_u32 s{s_q0}, s46, {OF}")
    a(f"s_lshl_b32 s44, s{s_T}, 1")
    a(f"s_lshr_b32 s45, s{s_head}, 4")
    a("s_add_u32 s44, s44, s45")
    a("s_lshl_b32 s44, s44, 7")
    a(f"s_add_u32 s{s_q1}, s44, {CO}")
    for i in range(3):
        a(f"ds_write_b128 v{kaddr}, {v(O[1]+4*i,4)} offset:{i*1024}")
    a("s_waitcnt lgkmcnt(0)")
    lds_arrive(a, vt3, L_PAIR)
    a(f"s_mov_b32 s{S_SPIN}, 0")
    a.label("L_at_pair")
    a(f"ds_read_b32 v{vt}, v{vt3} offset:{L_PAIR}")
    for i in range(3):
        a(f"ds_read_b128 {v(O[1]+4*i,4)}, v{vaddr} offset:{i*1024}")
    a(f"s_add_u32 s{S_SPIN}, s{S_SPIN}, 1")
    a("s_waitcnt lgkmcnt(0)")
    a(f"v_cmp_gt_u32 vcc, 2, v{vt}")
    a(f"s_cmp_gt_u32 s{S_SPIN}, 2000000")
    a("s_cbranch_scc1 L_at_pok")
    a("s_cbranch_vccz L_at_pok")
    a("s_sleep 1")
    a("s_branch L_at_pair")
    a.label("L_at_pok")
    a(f"v_add_f32 v{O[0]+8}, v{O[0]+8}, v{O[1]+8}")
    for i in range(4):
        a(f"v_pk_add_f32 {v(O[0]+2*i,2)}, {v(O[0]+2*i,2)}, {v(O[1]+2*i,2)}")
    a(f"v_mov_b32 v{vt}, {f32bits(2.0**30)}")
    a(f"v_cmp_nle_f32 vcc, v{O[0]+8}, v{vt}")
    a(f"v_pk_mul_f32 {v(S[0],2)}, {v(O[0],2)}, 0")
    for i in range(1, 4):
        a(f"v_pk_fma_f32 {v(S[0],2)}, {v(O[0]+2*i,2)}, 0, {v(S[0],2)}")
    a(f"v_cmp_u_f32 s[44:45], v{S[0]}, v{S[0]+1}")
    a(f"v_rcp_f32 v{vt}, v{O[0]+8}")
    a("s_nop 2")
    a("s_or_b64 vcc, vcc, s[44:45]")
    a("s_cbranch_vccnz L_at_fallback")
    a.label("L_at_fin")
    for i in range(4):
        a(f"v_pk_mul_f32 {v(O[0]+2*i,2)}, {v(O[0]+2*i,2)}, {v(vt,2)} op_sel_hi:[1,0]")
    for i in range(4):
        a(f"v_cvt_pk_bf16_f32 v{P+i}, v{O[0]+2*i}, v{O[0]+2*i+1}")
    a(f"buffer_store_dwordx4 {v(P,4)}, v{V_L16}, s[{SWS}:{SWS+3}], s{s_q0} offen sc1")
    st.stamp(10)
    if o.done:
        a(f"ds_read_b32 v{vt2}, v{V_MISC} offset:{L_NONCE}")
        a(f"v_mov_b32 v{vt}, 1")
        a(f"s_add_u32 s44, s{s_q1}, {DONE}")
        a("s_waitcnt vmcnt(0)")
        a("s_mov_b64 exec, 1")
        a(f"buffer_atomic_add v{vt}, off, s[{SWS}:{SWS+3}], s{s_q1} sc0 sc1")
        a("s_waitcnt vmcnt(0) lgkmcnt(0)")
        a(f"v_cmp_eq_u32 vcc, 15, v{vt}")
        a("s_cbranch_vccz L_at_notlast")
        a(f"buffer_store_dword v{vt2}, off, s[{SWS}:{SWS+3}], s44 sc1")
        a.label("L_at_notlast")
        a("s_mov_b64 exec, -1")
    else:
        post(a, s_q1)
    st.stamp(11)
    if st.en and not getattr(o, "noffn", 0):
        st.stamp(6); st.real(7)
        for i in range(2 if o.early else 3): a("s_barrier")
        a("s_sleep 40")
        st.flush(SWS, S_WAVE, 4)
        a("s_endpgm")
    finish(a, st)
    a.label("L_at_gst")
    a(f"s_lshl_b32 s44, s{s_tok}, 3")
    a(f"s_add_u32 s44, s44, {GA}")
    a("s_mov_b32 exec_lo, 0")
    a("s_brev_b32 exec_hi, 1")
    a(f"buffer_store_dwordx4 {v(GG,4)}, off, s[{SWS}:{SWS+3}], s44 sc1")
    a("s_mov_b64 exec, -1")
    a("s_branch L_at_dmadone")
    a.label("L_at_slow")
    st.abeg()
    lds_wait_ge(a, "ats", V_MISC, L_ATT, f"s{s_tgt}", vcnt)
    st.aend(1)
    a(f"s_cmp_lt_u32 s{s_c}, 6")
    a("s_branch L_at_back")
    def fallback():
        a.label("L_at_fallback")
        a(f"s_lshl_b32 s46, s{s_head}, 16")
        a(f"s_add_u32 s{s_kg}, s46, {KF}")
        a(f"v_mov_b32 v{vt}, 0xff800000")
        a(f"s_mov_b32 s{s_c}, 0")
        a.label("L_at_fb1")
        a(f"buffer_load_dwordx4 {v(KR,4)}, v{V_L16}, s[{SWS}:{SWS+3}], s{s_kg} offen sc1")
        a(f"s_add_u32 s{s_kg}, s{s_kg}, 1024")
        a("s_waitcnt vmcnt(0)")
        a(f"{MF} {v(S[0],16)}, {v(KR,4)}, {v(Q[0],4)}, 0")
        a("s_nop 15")
        maxtree(vt, S[0], False)
        a(f"s_add_u32 s{s_c}, s{s_c}, 1")
        a(f"s_cmp_lt_u32 s{s_c}, 64")
        a("s_cbranch_scc1 L_at_fb1")
        setC(0)
        for i in range(16):
            a(f"v_mov_b32 v{O[0]+i}, 0")
        a(f"v_and_b32 v{vt}, 15, v0")
        a(f"v_lshlrev_b32 v{vt}, 4, v{vt}")
        a(f"v_lshrrev_b32 v{vt2}, 5, v0")
        a(f"v_lshl_add_u32 v{vaddr}, v{vt2}, 8, v{vt}")
        a(f"s_add_u32 s{s_kg}, s46, {KF}")
        a(f"s_add_u32 s{s_vg}, s46, {VF}")
        a(f"s_mov_b32 s{s_c}, 0")
        a("s_mov_b32 s44, 0xffff")
        a("s_mov_b32 s45, 0xffff")
        a.label("L_at_fb2")
        a(f"buffer_load_dwordx4 {v(KR,4)}, v{vkp}, s[{SWS}:{SWS+3}], s{s_kg} offen sc1")
        a("s_mov_b64 exec, s[44:45]")
        a(f"buffer_load_dwordx4 {v(V0,4)}, v{vaddr}, s[{SWS}:{SWS+3}], s{s_vg} offen sc1")
        a(f"buffer_load_dwordx4 {v(V1,4)}, v{vaddr}, s[{SWS}:{SWS+3}], s{s_vg} offen offset:512 sc1")
        a("s_mov_b64 exec, -1")
        a(f"s_add_u32 s{s_kg}, s{s_kg}, 1024")
        a(f"s_add_u32 s{s_vg}, s{s_vg}, 1024")
        a("s_waitcnt vmcnt(0)")
        a(f"{MF} {v(S[0],16)}, {v(KR,4)}, {v(Q[0],4)}, {v(C[0],16)}")
        a("s_nop 15")
        for i in range(16): e(S[0], i)
        a("s_nop 2")
        a(f"{SM} {v(O[0],16)}, {v(V0,4)}, {v(S[0],8)}, v{IDX}")
        a(f"{SM} {v(O[0],16)}, {v(V1,4)}, {v(S[0]+8,8)}, v{IDX}")
        a("s_nop 15")
        a(f"s_add_u32 s{s_c}, s{s_c}, 1")
        a(f"s_cmp_lt_u32 s{s_c}, 64")
        a("s_cbranch_scc1 L_at_fb2")
        a(f"v_rcp_f32 v{vt}, v{O[0]+8}")
        a("s_branch L_at_fin")
    return R.hi, fallback

def fbar(a, vt):
    tag = a.newlabel("fb")[2:]
    a(f"s_add_u32 s{S_FBT}, s{S_FBT}, 4")
    lds_arrive(a, V_MISC, L_FB)
    lds_wait_ge(a, tag, V_MISC, L_FB, f"s{S_FBT}", vt, sleep=2)

def f_waves(a, st):
    t0 = 4
    vx, vw, uxaddr, uwaddr = 8, [9, 10, 11], [16, 17, 18, 19], 12
    vsrc, wa = 14, 15
    s_fw, s_rb, s_lc, s_stage, s_cb, s_T2, s_N2, s_lb = 48, 49, 50, 53, 54, 60, 61, 62
    s_urb, s_cg, s_u0, s_skip, s_dx, s_dw = 51, 52, 55, 56, 57, 58
    s_lx, s_lw, s_xoff, s_woff = 63, 64, 65, 66
    hi = []
    R = Regs(20)
    xaddr = [R.alloc() for _ in range(4)]; waddr = R.alloc()
    XF = [[R.alloc(4) for _ in range(2)] for _ in range(2)]
    WF = [[R.alloc(4) for _ in range(2)] for _ in range(2)]
    ACC = [[R.alloc(16) for _ in range(2)] for _ in range(2)]
    TMP = R.alloc(16)
    hi.append(R.hi)
    def zero(r, n):
        a(f"v_mov_b32 v{r}, 0")
        a(f"v_mov_b32 v{r+1}, 0")
        for i in range(1, n//2): a(f"v_pk_mov_b32 {v(r+2*i,2)}, {v(r,2)}, {v(r,2)}")
    def xlane():
        a(f"v_and_b32 v{t0}, 31, v0")
        a(f"v_lshrrev_b32 v{t0+1}, 5, v0")
        a(f"v_bfe_u32 v{t0+2}, v{t0}, 1, 3")
        a(f"v_xor_b32 v{t0+2}, v{t0+2}, v{t0+1}")
        a(f"v_lshlrev_b32 v{t0+2}, 4, v{t0+2}")
        a(f"v_lshl_add_u32 v{t0}, v{t0}, 7, v{t0+2}")
    def trlane():
        a(f"v_bfe_u32 v{t0}, v0, 2, 2")
        a(f"v_bfe_u32 v{t0+2}, v0, 4, 1")
        a(f"v_and_b32 v{t0+3}, 3, v0")
        a(f"v_lshlrev_b32 v{t0+3}, 3, v{t0+3}")
    uw2 = 13
    def late_setup():
        xlane()
        a(f"s_and_b32 s44, s{s_fw}, 1")
        a("s_lshl_b32 s47, s44, 13")
        a(f"s_add_u32 s47, s47, {UX[0]}")
        for kk in range(4):
            a(f"v_xor_b32 v{t0+3}, {kk*32}, v{t0}")
            a(f"v_add_u32 v{uxaddr[kk]}, s47, v{t0+3}")
        trlane()
        a(f"v_lshl_add_u32 v{uwaddr}, v{t0+1}, 3, v{t0}")
        a(f"v_mul_u32_u24 v{uwaddr}, 192, v{uwaddr}")
        a(f"v_mul_u32_u24 v{vsrc}, {WIMG}, v{t0+2}")
        a(f"v_add3_u32 v{uwaddr}, v{uwaddr}, v{vsrc}, v{t0+3}")
        a(f"v_add_u32 v{uwaddr}, {UW[0]+UWS}, v{uwaddr}")
        a(f"v_lshl_add_u32 v{t0+3}, v{t0+2}, 5, v{t0+3}")
        a(f"v_lshl_add_u32 v{t0}, v{t0+1}, 2, v{t0}")
        a(f"v_lshl_add_u32 v{t0+3}, v{t0}, 7, v{t0+3}")
        a(f"v_add_u32 v{wa}, v{wa}, v{t0+3}")
        a(f"s_lshl_b32 s{s_lb}, s{s_fw}, 14")
        a(f"s_add_u32 s{s_lb}, s{s_lb}, {STG}")
        a(f"s_lshl_b32 s44, s{S_XCD}, 2")
        a(f"s_and_b32 s45, s{S_LOC}, 3")
        a(f"s_add_u32 s{s_T2}, s44, s45")
        a(f"s_lshr_b32 s{s_N2}, s{S_LOC}, 2")
        a(f"v_lshrrev_b32 v{t0}, 3, v0")
        a(f"v_and_b32 v{t0+1}, 7, v0")
        a(f"v_lshlrev_b32 v{t0+3}, 1, v{t0}")
        a(f"v_and_b32 v{t0+3}, 4, v{t0+3}")
        a(f"v_xor_b32 v{t0+3}, v{t0+1}, v{t0+3}")
        a(f"v_lshlrev_b32 v{t0+3}, 4, v{t0+3}")
        a(f"v_lshl_add_u32 v{t0+3}, v{t0}, 10, v{t0+3}")
        a(f"s_lshl_b32 s44, s{s_N2}, 7")
        a(f"v_add_u32 v{vsrc}, s44, v{t0+3}")
        up_dma_setup(a, t0, vx, vw, s_fw, s_urb, s_cg, s_u0, s_lx, s_lw, s_xoff, s_woff)
        a(f"s_lshr_b32 s46, s{s_fw}, 1")
        a(f"s_cmp_eq_u32 s{s_cg}, 4")
        a("s_cselect_b32 s44, 2, 3")
        a("s_mul_i32 s44, s44, s46")
        a("s_lshl_b32 s47, 1, s46")
        a(f"s_cmp_eq_u32 s{s_cg}, 5")
        a(f"s_cselect_b32 s{s_skip}, s47, 0")
        a(f"s_cmp_eq_u32 s{s_cg}, 6")
        a(f"s_cselect_b32 s{s_skip}, 3, s{s_skip}")
        a("s_cselect_b32 s45, s44, 0")
        a("s_add_u32 s45, s45, 2")
        a("s_lshl_b32 s47, s45, 5")
        a(f"v_add_u32 v{uw2}, s47, v{uwaddr}")
        a("s_lshl_b32 s47, s44, 5")
        a(f"v_add_u32 v{uwaddr}, s47, v{uwaddr}")
        a("s_lshl_b32 s45, s45, 8")
        a(f"s_add_u32 s{s_cg}, s45, s44")
        a(f"s_mov_b32 s{s_dx}, {UX[1]-UX[0]}")
        a(f"s_add_u32 s{s_dw}, s{s_lw}, {3*UWS}")
        up_srd(a, s_fw, s_u0)
    for i in range(4): a(f"v_mov_b32 v{XF[1][0]+i}, 0")
    a(f"s_sub_u32 s{s_fw}, s{S_WAVE}, 8")
    a(f"s_and_b32 s44, s{s_fw}, 1")
    for u in range(2):
        for t in range(2):
            a(f"{MF} {v(ACC[u][t],16)}, {v(XF[1][0],4)}, {v(XF[1][0],4)}, 0")
    a(f"s_lshr_b32 s46, s{s_fw}, 1")
    xlane()
    a("s_lshl_b32 s45, s44, 13")
    for kk in range(4):
        a(f"v_xor_b32 v{t0+3}, {kk*32}, v{t0}")
        a(f"v_add_u32 v{xaddr[kk]}, s45, v{t0+3}")
    trlane()
    a(f"v_lshl_add_u32 v{waddr}, v{t0+1}, 3, v{t0}")
    a(f"v_lshl_add_u32 v{waddr}, v{waddr}, 7, v{t0+3}")
    a(f"v_lshlrev_b32 v{wa}, 5, v{t0}")
    a(f"v_and_b32 v{wa}, 64, v{wa}")
    a("s_lshl_b32 s45, s46, 6")
    a(f"v_xor_b32 v{wa}, s45, v{wa}")
    a(f"v_mul_u32_u24 v{vsrc}, {TU-TG}, v{t0+2}")
    a(f"v_add3_u32 v{waddr}, v{waddr}, v{vsrc}, v{wa}")
    a(f"v_add_u32 v{waddr}, {TG}, v{waddr}")
    tile_ids(a, s_rb, s_lc)
    a(f"s_lshr_b32 s44, s{S_XCD}, 2")
    a("s_mul_i32 s44, s44, 6")
    a(f"s_add_u32 s{s_cb}, s44, s{s_lc}")
    a(f"s_mov_b32 s{s_stage}, 0")
    a(f"s_mov_b32 s{S_FBT}, 0")
    a("s_waitcnt lgkmcnt(0)")
    srd(a, SWS, 24, 25, WS_BYTES)
    a(f"s_cmp_lt_u32 s{S_LOC}, 24")
    a("s_cbranch_scc1 L_E_work")
    for i in range(8): a("s_barrier")
    a("s_branch L_E_late")
    a.label("L_E_work")
    if o.eprio: a(f"s_setprio {o.eprio}")
    def rx(kk, buf, t): a(f"ds_read_b128 {v(XF[buf][t],4)}, v{xaddr[kk]} offset:{t*4096}")
    def rw(kk, buf, u, h): a(f"ds_read_b64_tr_b16 {v(WF[buf][u]+2*h,2)}, v{waddr} offset:{kk*2048+u*32+h*512}")
    if o.hprof:
        a("s_memrealtime s[96:97]"); a("s_waitcnt lgkmcnt(0)"); a("s_sub_u32 s95, s96, s70")
    a("s_barrier")
    st.stamp(2)
    if st.en: a("s_waitcnt lgkmcnt(0)")
    rx(0, 0, 0); rw(0, 0, 0, 0); rw(0, 0, 0, 1); rx(0, 0, 1); rw(0, 0, 1, 0); rw(0, 0, 1, 1)
    a(f"s_cmp_ge_u32 s{s_cb}, 8")
    a("s_cbranch_scc1 L_E_loopV")
    def loop(tag):
        def mm(buf, u, t):
            A_, B_ = (XF[buf][t], WF[buf][u]) if tag == "V" else (WF[buf][u], XF[buf][t])
            a(f"{MF} {v(ACC[u][t],16)}, {v(A_,4)}, {v(B_,4)}, {v(ACC[u][t],16)}")
        a.label(f"L_E_loop{tag}")
        for kk in range(3):
            b = kk & 1; n = b ^ 1
            a("s_waitcnt lgkmcnt(3)")
            mm(b, 0, 0)
            rx(kk+1, n, 0); rw(kk+1, n, 0, 0)
            a("s_waitcnt lgkmcnt(4)")
            mm(b, 0, 1)
            rw(kk+1, n, 0, 1); rx(kk+1, n, 1)
            a("s_waitcnt lgkmcnt(4)")
            mm(b, 1, 0)
            rw(kk+1, n, 1, 0); rw(kk+1, n, 1, 1)
            mm(b, 1, 1)
            if kk == 2:
                a(f"s_add_u32 s{s_stage}, s{s_stage}, 1")
                a(f"s_bitcmp1_b32 0x92, s{s_stage}")
                a(f"s_mov_b32 s45, {(-TSTR) & 0xffffffff}")
                a(f"s_cselect_b32 s44, {2*TSTR}, s45")
        a("s_waitcnt lgkmcnt(3)")
        mm(1, 0, 0)
        for r in xaddr + [waddr]:
            a(f"v_add_u32 v{r}, s44, v{r}")
        a(f"s_cmp_eq_u32 s{s_stage}, 8")
        a("s_waitcnt lgkmcnt(0)")
        mm(1, 0, 1)
        a(f"s_cbranch_scc1 L_E_tail{tag}")
        a("s_barrier")
        rx(0, 0, 0); rw(0, 0, 0, 0); rw(0, 0, 0, 1)
        mm(1, 1, 0)
        rx(0, 0, 1); rw(0, 0, 1, 0); rw(0, 0, 1, 1)
        mm(1, 1, 1)
        a(f"s_branch L_E_loop{tag}")
        a.label(f"L_E_tail{tag}")
        mm(1, 1, 0)
        mm(1, 1, 1)
    loop("T")
    a(f"v_mov_b32 v{t0}, v{V_L16}")
    a(f"s_mov_b32 s47, {4*65536}")
    a("s_branch L_E_epiQ")
    loop("V")
    a(f"v_and_b32 v{t0}, 15, v0")
    a(f"v_lshlrev_b32 v{t0}, 4, v{t0}")
    a(f"v_lshrrev_b32 v{t0+1}, 5, v0")
    a(f"v_lshl_add_u32 v{t0}, v{t0+1}, 8, v{t0}")
    a(f"v_bfe_u32 v{t0+1}, v0, 4, 1")
    a(f"v_lshl_add_u32 v{t0}, v{t0+1}, 18, v{t0}")
    a("s_mov_b32 s47, 512")
    a.label("L_E_epiQ")
    st.stamp(3)
    a(f"s_lshl_b32 s44, s{s_cb}, 19")
    a(f"s_lshr_b32 s45, s{s_fw}, 1")
    a("s_lshl_b32 s45, s45, 17")
    a("s_add_u32 s44, s44, s45")
    a(f"s_lshl_b32 s45, s{s_rb}, 12")
    a("s_add_u32 s44, s44, s45")
    a(f"s_and_b32 s45, s{s_fw}, 1")
    a("s_lshl_b32 s45, s45, 11")
    a("s_add_u32 s44, s44, s45")
    a("s_add_u32 s45, s44, s47")
    a(f"s_cmp_lt_u32 s{s_cb}, 4")
    a("s_cbranch_scc0 L_E_noscale")
    a(f"s_mov_b32 s46, {f32bits(QSCALE)}")
    a("s_mov_b32 s47, s46")
    for i in range(32):
        a(f"v_pk_mul_f32 {v(ACC[0][0]+2*i,2)}, {v(ACC[0][0]+2*i,2)}, s[46:47]")
    a.label("L_E_noscale")
    n = 0
    for u in range(2):
        for t in range(2):
            for half in range(2):
                tm = TMP + 4*(n & 3); n += 1
                src = ACC[u][t] + 8*half
                for i in range(4):
                    a(f"v_cvt_pk_bf16_f32 v{tm+i}, v{src+2*i}, v{src+2*i+1}")
                a(f"buffer_store_dwordx4 {v(tm,4)}, v{t0}, s[{SWS}:{SWS+3}], s{44+half} offen offset:{t*1024} {['sc1', 'sc0 sc1', 'sc1 nt', 'sc0 sc1 nt'][o.qst]}")
        if u == 0:
            a("s_add_u32 s44, s44, 65536")
            a("s_add_u32 s45, s45, 65536")
    a(f"s_and_b32 s44, s{s_cb}, 3")
    a("s_lshl_b32 s44, s44, 1")
    a(f"s_lshr_b32 s45, s{s_fw}, 1")
    a("s_add_u32 s44, s44, s45")
    a("s_lshl_b32 s44, s44, 3")
    a(f"s_lshr_b32 s45, s{s_cb}, 2")
    a("s_lshl_b32 s45, s45, 1")
    a("s_add_u32 s44, s44, s45")
    a(f"s_and_b32 s45, s{s_fw}, 1")
    a("s_add_u32 s44, s44, s45")
    a("s_lshl_b32 s44, s44, 7")
    a(f"s_add_u32 s59, s44, {CQ}")
    a.label("L_E_late")
    lds_arrive(a, V_MISC, L_ST)
    late_setup()
    if o.noffn: finish(a, st)
    R = Regs(20)
    XF = [[R.alloc(4) for _ in range(2)] for _ in range(2)]
    WF = [R.alloc(4) for _ in range(3)]
    UACC = [[R.alloc(16) for _ in range(2)] for _ in range(3)]
    hi.append(R.hi)
    def up_groups():
        g = up_dma_groups(vx, vw, s_lx, s_lw, s_xoff, s_woff)
        g[3] += [f"s_add_u32 s{s_xoff}, s{s_xoff}, 128",
                 f"s_and_b32 s{s_xoff}, s{s_xoff}, 1023",
                 f"s_add_u32 s{s_lx}, s{s_lx}, s{s_dx}",
                 f"s_sub_u32 s{s_dx}, 0, s{s_dx}"]
        g[9] += [f"s_add_u32 s{s_woff}, s{s_woff}, {64*2752}",
                 f"s_cmp_eq_u32 s{s_woff}, {512*2752}",
                 f"s_cselect_b32 s{s_woff}, 0, s{s_woff}",
                 f"s_add_u32 s{s_lw}, s{s_lw}, {UWS}",
                 f"s_cmp_eq_u32 s{s_lw}, s{s_dw}",
                 f"s_cselect_b32 s44, {3*UWS}, 0",
                 f"s_sub_u32 s{s_lw}, s{s_lw}, s44"]
        return g
    a(f"s_movk_i32 s{s_xoff}, 256")
    a(f"s_mov_b32 s{s_woff}, {2*64*2752}")
    zero(UACC[0][0], 96)
    a(f"s_mov_b32 s{s_stage}, 0")
    a(f"s_mov_b32 s{s_rb}, {UX[1]-UX[0]}")
    a(f"s_mov_b32 s{s_lc}, {UWS}")
    def rd_x(kk, buf):
        for t in range(2):
            a(f"ds_read_b128 {v(XF[buf][t],4)}, v{uxaddr[kk]} offset:{t*4096}")
    def rd_w(kk, u):
        off = kk*16*192 + (u*32 if u < 2 else 0)
        ad = uwaddr if u < 2 else uw2
        a(f"ds_read_b64_tr_b16 {v(WF[u],2)}, v{ad} offset:{off}")
        a(f"ds_read_b64_tr_b16 {v(WF[u]+2,2)}, v{ad} offset:{off+4*192}")
    def nops(n):
        if n > 0: a(f"s_nop {n-1}")
    cnt = [0, o.mprio]
    def umm(u, buf, fill=None, after=3):
        for t in range(2):
            a(f"{MF} {v(UACC[u][t],16)}, {v(WF[u],4)}, {v(XF[buf][t],4)}, {v(UACC[u][t],16)}")
            if o.hp:
                want = 2 if (fill and cnt[0] < o.hp) else o.mprio
                if want != cnt[1]: a(f"s_setprio {want}"); cnt[1] = want
                cnt[0] += 1
            if fill:
                for _ in range(o.dper):
                    if fill:
                        for l in fill.pop(0): a(l)
            else:
                nops(o.fpace - (after if t == 1 else 0))
    def postblk():
        lds_wait_ge(a, "tg1", V_MISC, L_NONCE, "1", t0+1)
        a(f"s_cmp_lt_u32 s{S_LOC}, 24")
        a("s_cbranch_scc0 L_E_done2")
        post(a, 59)
        if o.nbr:
            a(f"s_add_u32 s44, s{S_LOC}, s{s_fw}")
            a("s_cmp_eq_u32 s44, 0")
            a("s_cbranch_scc0 L_E_done2")
            a(f"s_lshl_b32 s44, s{S_XCD}, 10")
            a(f"s_add_u32 s44, s44, {CQ + 6*128}")
            a("s_mov_b64 exec, 1")
            a(f"buffer_atomic_add v{V_ONE}, off, s[{SWS}:{SWS+3}], s44 sc1")
            a("s_mov_b64 exec, -1")
        a.label("L_E_done2")
        lds_arrive(a, V_MISC, L_POST)
        st.stamp(4)
    if o.pfirst: postblk()
    lds_wait_ge(a, "u0", V_MISC, L_U, "4", t0, sleep=1)
    rd_x(0, 0)
    for u in range(3): rd_w(0, u)
    def umm_skip(u, buf):
        for t in range(2):
            lab = a.newlabel("upskip")
            a(f"s_bitcmp1_b32 s{s_skip}, {t}")
            a(f"s_cbranch_scc0 {lab}")
            a(f"{MF} {v(UACC[u][t],16)}, {v(WF[u],4)}, {v(XF[buf][t],4)}, {v(UACC[u][t],16)}")
            a.label(lab)
        if o.hp and cnt[1] != o.mprio:
            a(f"s_setprio {o.mprio}"); cnt[1] = o.mprio
    if o.pre == 3:
        a.label("L_ub_loop")
        for kk in range(4):
            buf = kk & 1
            for u in range(3):
                younger = (2-u)*2 + (0 if (u == 0 or kk == 3) else 2 + 2*u)
                a(f"s_waitcnt lgkmcnt({younger})")
                if u == 2: umm_skip(u, buf)
                else: umm(u, buf)
                if kk < 3:
                    if u == 0: rd_x(kk+1, buf ^ 1)
                    rd_w(kk+1, u)
        for r in uxaddr:
            a(f"v_add_u32 v{r}, s{s_rb}, v{r}")
        a(f"v_add_u32 v{uwaddr}, s{s_lc}, v{uwaddr}")
        a(f"v_add_u32 v{uw2}, s{s_lc}, v{uw2}")
        a(f"s_sub_u32 s{s_rb}, 0, s{s_rb}")
        a(f"s_add_u32 s{s_stage}, s{s_stage}, 1")
        a(f"s_bitcmp1_b32 0x12, s{s_stage}")
        a(f"s_mov_b32 s44, {(-2*UWS) & 0xffffffff}")
        a(f"s_cselect_b32 s{s_lc}, s44, {UWS}")
        a(f"s_setprio {o.fprio}")
        a(f"s_cmp_eq_u32 s{s_stage}, 1")
        a("s_cbranch_scc0 L_ub_n1")
        if not o.pfirst: postblk()
        if o.nb == 3:
            if o.pfirst: fbar(a, t0)
            else: lds_wait_ge(a, "upgo", V_MISC, L_POST, "4", t0, sleep=1)
            g_ = up_groups()
            if o.hw2: g_ = g_[:4] + [g_[9][3:]]
            for grp in g_:
                for l in grp: a(l)
        elif o.pfirst: fbar(a, t0)
        lds_wait_ge(a, "u1", V_MISC, L_ST, "8", t0, sleep=1)
        a("s_branch L_ub_n3")
        a.label("L_ub_n1")
        a(f"s_cmp_eq_u32 s{s_stage}, {o.nb}")
        a("s_cbranch_scc1 L_ub_n4")
        a("s_waitcnt vmcnt(0)")
        a("s_branch L_ub_n2")
        a.label("L_ub_n4")
        lds_wait_ge(a, "upb2", V_MISC, L_ATT, "8", t0, sleep=2)
        for grp in up_groups() + up_groups()[4:]:
            for l in grp: a(l)
        a("s_waitcnt vmcnt(6)")
        a.label("L_ub_n2")
        fbar(a, t0)
        a.label("L_ub_n3")
        a(f"s_setprio {o.mprio}")
        rd_x(0, 0)
        for u in range(3): rd_w(0, u)
        a(f"s_cmp_lt_u32 s{s_stage}, {o.nb}")
        a("s_cbranch_scc1 L_ub_loop")
    if o.upwarm:
        srd(a, SC, 16, 17, 1376*1024 if (o.w0 == 0 or (o.w0 == o.nb)) else 0)
        a(f"s_lshl_b32 s44, s{S_LOC}, 2")
        a(f"s_add_u32 s44, s44, s{s_fw}")
        a("s_lshl_b32 s54, s44, 10")
        a("s_mov_b32 s59, s54")
    a.label("L_up_loop")
    groups = up_groups()
    if o.upwarm:
        wl = [f"buffer_load_dwordx4 v[160:163], v{V_L16}, s[{SC}:{SC+3}], s59 offen", "s_add_u32 s59, s59, 131072"]
        groups.append(wl * (o.upwarm // 2)); groups.append(wl * (o.upwarm - o.upwarm // 2))
    for kk in range(3):
        buf = kk & 1
        for u in range(3):
            younger = (2-u)*2 + (0 if u == 0 else 2 + 2*u)
            a(f"s_waitcnt lgkmcnt({younger})")
            if u == 2: umm_skip(u, buf)
            else: umm(u, buf, groups, 5 if u == 0 else 3)
            if u == 0: rd_x(kk+1, buf ^ 1)
            rd_w(kk+1, u)
    assert not groups
    a("s_waitcnt lgkmcnt(4)")
    umm(0, 1)
    a(f"s_cmp_eq_u32 s{s_stage}, 7")
    a("s_cbranch_scc1 L_up_last")
    st.abeg()
    a(f"s_waitcnt vmcnt({6 + o.upwarm}) lgkmcnt(0)")
    st.aend(0)
    a(f"s_add_u32 s{S_FBT}, s{S_FBT}, 4")
    lds_arrive(a, V_MISC, L_FB)
    umm(1, 1)
    a(f"s_setprio {o.fprio}")
    for r in uxaddr:
        a(f"v_add_u32 v{r}, s{s_rb}, v{r}")
    a(f"v_add_u32 v{uwaddr}, s{s_lc}, v{uwaddr}")
    a(f"v_add_u32 v{uw2}, s{s_lc}, v{uw2}")
    st.abeg()
    lds_wait_ge(a, "upb", V_MISC, L_FB, f"s{S_FBT}", t0, sleep=1)
    if o.pre in (1, 2):
        a(f"s_cmp_eq_u32 s{s_stage}, 1")
        a("s_cbranch_scc0 L_up_n1")
        lds_wait_ge(a, "upb2", V_MISC, L_ATT, "8", t0, sleep=2)
        a(f"s_mov_b32 s{SA+2}, {2048*1024}")
        a(f"s_mov_b32 s{SB+2}, s96")
        a(f"s_mov_b32 s{s_lx}, s97")
        a(f"s_mov_b32 s{s_lw}, s98")
        a(f"s_movk_i32 s{s_xoff}, 256")
        a(f"s_mov_b32 s{s_woff}, {2*64*2752}")
        for grp in up_groups() + up_groups()[4:]:
            for l in grp: a(l)
        a("s_waitcnt vmcnt(6)")
        fbar(a, t0)
        a.label("L_up_n1")
    st.aend(1)
    a(f"s_setprio {o.mprio}")
    rd_x(0, 0)
    rd_w(0, 0); rd_w(0, 1)
    umm_skip(2, 1)
    rd_w(0, 2)
    a(f"s_sub_u32 s{s_rb}, 0, s{s_rb}")
    a(f"s_add_u32 s{s_stage}, s{s_stage}, 1")
    a(f"s_bitcmp1_b32 0x12, s{s_stage}")
    a(f"s_mov_b32 s44, {(-2*UWS) & 0xffffffff}")
    a(f"s_cselect_b32 s{s_lc}, s44, {UWS}")
    a(f"s_cmp_eq_u32 s{s_stage}, 7")
    a(f"s_cselect_b32 s{SA+2}, 0, s{SA+2}")
    a(f"s_cmp_eq_u32 s{s_stage}, 6")
    a(f"s_cselect_b32 s{SB+2}, 0, s{SB+2}")
    if o.upwarm:
        w1 = o.w0 + (11 + o.upwarm - 1) // o.upwarm
        if o.w0:
            a(f"s_cmp_eq_u32 s{s_stage}, {o.w0}")
            a(f"s_cselect_b32 s{SC+2}, {1376*1024}, s{SC+2}")
            a("s_cselect_b32 s59, s54, s59")
        a(f"s_and_b32 s44, s9, 0xffff")
        a(f"s_cmp_eq_u32 s{s_stage}, {w1}")
        a(f"s_cselect_b32 s{SC}, s8, s{SC}")
        a(f"s_cselect_b32 s{SC+1}, s44, s{SC+1}")
        a(f"s_cselect_b32 s{SC+2}, {512*1024}, s{SC+2}")
        a("s_cselect_b32 s59, s54, s59")
    if o.upause > 0:
        a(f"s_cmp_eq_u32 s{s_stage}, {o.upause}")
        a("s_cbranch_scc0 L_up_loop")
        a(f"s_setprio {o.fprio}")
        lds_wait_ge(a, "upp", V_MISC, L_ATT, "8", t0, sleep=4)
        a(f"s_setprio {o.mprio}")
    a("s_branch L_up_loop")
    a.label("L_up_last")
    a("s_waitcnt lgkmcnt(0)")
    umm(1, 1)
    umm_skip(2, 1)
    a(f"s_setprio {o.fprio}")
    st.stamp(5)
    a(f"s_lshl_b32 s44, s{s_urb}, 2")
    a(f"s_and_b32 s45, s{s_fw}, 1")
    a("s_lshl_b32 s45, s45, 1")
    a("s_add_u32 s44, s44, s45")
    a("s_mul_i32 s44, s44, 86")
    a(f"s_add_u32 s44, s44, s{s_u0}")
    a(f"s_and_b32 s45, s{s_cg}, 255")
    a("s_add_u32 s44, s44, s45")
    a("s_lshl_b32 s44, s44, 10")
    a(f"s_add_u32 s44, s44, {HF}")
    a(f"s_lshr_b32 s46, s{s_cg}, 8")
    a(f"s_sub_u32 s{s_cg}, s46, s45")
    a(f"s_lshl_b32 s{s_cg}, s{s_cg}, 10")
    a(f"s_add_u32 s45, s44, {86*1024}")
    a(f"s_mov_b32 s46, {f32bits(-LOG2E)}")
    a("s_mov_b32 s47, s46")
    for u in range(3):
        if u == 2:
            a(f"s_add_u32 s44, s44, s{s_cg}")
            a(f"s_add_u32 s45, s45, s{s_cg}")
        for t in range(2):
            if u == 2:
                a(f"s_bitcmp1_b32 s{s_skip}, {t}")
                a(f"s_cbranch_scc0 {'L_up_e1' if t == 0 else 'L_up_done'}")
            g = UACC[u][t]; up = g + 8
            tm = XF[u & 1][t]
            for i in range(4): a(f"v_pk_mul_f32 {v(g+2*i,2)}, {v(g+2*i,2)}, s[46:47]")
            for i in range(8): a(f"v_exp_f32 v{g+i}, v{g+i}")
            for i in range(4): a(f"v_pk_add_f32 {v(g+2*i,2)}, {v(g+2*i,2)}, 1.0 op_sel_hi:[1,0]")
            for i in range(8): a(f"v_rcp_f32 v{g+i}, v{g+i}")
            for i in range(4): a(f"v_pk_mul_f32 {v(g+2*i,2)}, {v(g+2*i,2)}, {v(up+2*i,2)}")
            for i in range(4): a(f"v_cvt_pk_bf16_f32 v{tm+i}, v{g+2*i}, v{g+2*i+1}")
            a(f"buffer_store_dwordx4 {v(tm,4)}, v{V_L16}, s[{SWS}:{SWS+3}], s{44+t} offen offset:{(u&1)*1024} sc1")
            if u == 2 and t == 0: a.label("L_up_e1")
    a.label("L_up_done")
    a(f"s_lshl_b32 s44, s{s_urb}, 2")
    a(f"s_add_u32 s44, s44, s{s_fw}")
    a("s_lshl_b32 s44, s44, 7")
    a(f"s_add_u32 s44, s44, {CH}")
    post(a, 44)
    st.stamp(8)
    s_h0, s_h1, s_w, s_i, s_T, s_nt, s_idx, s_dl = 49, 50, 51, 52, 53, 54, 55, 56
    R = Regs(16)
    ACC = [R.alloc(16) for _ in range(4)]
    HFR = [[R.alloc(4) for _ in range(2)] for _ in range(8)]
    WF = [[R.alloc(4) for _ in range(2)] for _ in range(2)]
    G = 8; VOUT = 10; da = [11, 12]; db = [R.alloc(), R.alloc()]
    hi.append(R.hi)
    fbar(a, t0)
    a(f"ds_read_b32 v{t0+3}, v{V_MISC} offset:{L_NONCE}")
    if not o.gapw:
        srd(a, SA, 8, 9, 512*1024)
        a(f"s_lshl_b32 s{s_w}, s{s_fw}, 17")
        a(f"s_mov_b32 m0, s{s_lb}")
        a(f"s_mov_b32 s{s_i}, 14")
        a.label("L_wo_ld")
        a(f"buffer_load_dwordx4 v{vsrc}, s[{SA}:{SA+3}], s{s_w} offen lds")
        a("s_add_u32 m0, m0, 1024")
        a(f"s_add_u32 s{s_w}, s{s_w}, 8192")
        a(f"s_sub_u32 s{s_i}, s{s_i}, 1")
        a(f"s_cmp_lg_u32 s{s_i}, 0")
        a("s_cbranch_scc1 L_wo_ld")
        srd(a, SA, 16, 17, 1376*1024)
    else:
        srd(a, SA, 16, 17, 1376*1024)
        srd(a, SC, 8, 9, 512*1024)
        if o.gapw == 1:
            a(f"s_and_b32 s44, s{S_LOC}, 3")
            a("s_lshl_b32 s44, s44, 2")
            a(f"s_add_u32 s44, s44, s{s_fw}")
            a("s_lshl_b32 s45, s44, 15")
            a(f"s_mul_i32 s44, s44, {86*1024}")
            a(f"s_mov_b32 s{s_i}, {o.nwd}")
            a.label("L_wd_warm")
            a(f"buffer_load_dwordx4 {v(HFR[7][0],4)}, v{vsrc}, s[{SA}:{SA+3}], s44 offen")
            a("s_add_u32 s44, s44, 8192")
            a(f"s_sub_u32 s{s_i}, s{s_i}, 1")
            a(f"s_cmp_lg_u32 s{s_i}, 0")
            a("s_cbranch_scc1 L_wd_warm")
            for i in range(4):
                a(f"buffer_load_dwordx4 {v(HFR[7][0],4)}, v{vsrc}, s[{SC}:{SC+3}], s45 offen")
                a("s_add_u32 s45, s45, 8192")
        elif o.gapw == 2:
            a(f"s_lshl_b32 s44, s{S_LOC}, 2")
            a(f"s_add_u32 s44, s44, s{s_fw}")
            a("s_lshl_b32 s44, s44, 10")
            a("s_mov_b32 s45, s44")
            for i in range(o.nwd):
                a(f"buffer_load_dwordx4 {v(HFR[7][0],4)}, v{V_L16}, s[{SA}:{SA+3}], s44 offen")
                a("s_add_u32 s44, s44, 131072")
            for i in range(o.nwo):
                a(f"buffer_load_dwordx4 {v(HFR[7][0],4)}, v{V_L16}, s[{SC}:{SC+3}], s45 offen")
                a("s_add_u32 s45, s45, 131072")
        a(f"s_mov_b32 s59, {(-2*1024) & 0xffffffff}")
        a(f"s_lshl_b32 s63, s{s_fw}, 17")
    a(f"s_mul_i32 s{s_dl}, s{s_fw}, 6144")
    a(f"s_add_u32 s{s_dl}, s{s_dl}, {DRING}")
    a(f"v_add_u32 v{da[0]}, s{s_dl}, v{wa}")
    a(f"v_xor_b32 v{da[1]}, 64, v{da[0]}")
    a(f"v_add_u32 v{db[0]}, s{s_lb}, v{wa}")
    a(f"v_xor_b32 v{db[1]}, 64, v{db[0]}")
    a(f"s_lshl_b32 s{s_w}, s{s_fw}, 14")
    a(f"s_lshl_b32 s44, s{s_T2}, 1")
    a(f"s_and_b32 s45, s{s_fw}, 1")
    a(f"s_add_u32 s{s_T}, s44, s45")
    a(f"s_xor_b32 s47, s{s_T}, 1")
    for d, sx in ((s_h0, s_T), (s_h1, 47)):
        a(f"s_mul_i32 s{d}, s{sx}, 86")
        a(f"s_add_u32 s{d}, s{d}, s{s_fw}")
        a(f"s_lshl_b32 s{d}, s{d}, 10")
        a(f"s_add_u32 s{d}, s{d}, {HF}")
    a(f"s_lshl_b32 s44, s{s_N2}, 1")
    a(f"s_lshr_b32 s45, s{s_fw}, 1")
    a(f"s_add_u32 s{s_nt}, s44, s45")
    a(f"v_and_b32 v{t0}, 31, v0")
    a(f"v_lshrrev_b32 v{t0+1}, 5, v0")
    a(f"v_lshlrev_b32 v{t0+1}, 4, v{t0+1}")
    a(f"v_lshl_add_u32 v{VOUT}, v{t0}, 10, v{t0+1}")
    a("s_waitcnt lgkmcnt(0)")
    a(f"v_readfirstlane_b32 s{S_NONCE}, v{t0+3}")
    a(f"v_lshlrev_b32 v{t0+1}, 3, v{t0}")
    a(f"s_lshl_b32 s44, s{s_T}, 8")
    a(f"s_add_u32 s44, s44, {GA}")
    a(f"s_mov_b32 s{S_SPIN}, 0")
    a.label("L_g_poll")
    a(f"buffer_load_dwordx2 {v(G,2)}, v{t0+1}, s[{SWS}:{SWS+3}], s44 offen sc1")
    a(f"s_add_u32 s{S_SPIN}, s{S_SPIN}, 1")
    a("s_waitcnt vmcnt(0)")
    a(f"v_cmp_ne_u32 vcc, s{S_NONCE}, v{G+1}")
    a(f"s_cmp_gt_u32 s{S_SPIN}, 200000")
    a("s_cbranch_scc1 L_g_got")
    a("s_cbranch_vccz L_g_got")
    a("s_sleep 8")
    a("s_branch L_g_poll")
    a.label("L_g_got")
    a(f"v_sub_f32 v{G+1}, 1.0, v{G}")
    a(f"s_cmp_eq_u32 s{s_fw}, 0")
    a("s_cbranch_scc0 L_dn_nopoll")
    a(f"s_lshr_b32 s44, s{s_T2}, 1")
    a("s_lshl_b32 s44, s44, 2")
    a(f"s_and_b32 s45, s{s_T2}, 1")
    a("s_add_u32 s44, s44, s45")
    a("s_lshl_b32 s44, s44, 7")
    a(f"s_add_u32 s44, s44, {CH}")
    a(f"v_and_b32 v{t0+2}, 1, v0")
    a(f"v_lshlrev_b32 v{t0+2}, 8, v{t0+2}")
    poll(a, "dn", t0+1, t0+2, 44, 16, 8, at=2 if o.apoll & 2 else 0)
    a.label("L_dn_nopoll")
    fbar(a, t0+1)
    st.stamp(9)
    s_wend, s_hend = 57, 58
    s_o, s_out, s_co = 49, 50, 51
    def ldw(g):
        m = f"s_add_u32 m0, s{s_dl}, {(g%4)*2048}" if g % 4 < 3 else f"s_add_u32 m0, s{s_lb}, {7*2048}"
        p0 = [m, f"s_add_u32 s44, s{s_w}, 8192", f"buffer_load_dwordx4 v{vsrc}, s[{SA}:{SA+3}], s{s_w} offen lds"]
        p1 = ["s_add_u32 m0, m0, 1024", f"s_add_u32 s{s_w}, s{s_w}, 65536", f"buffer_load_dwordx4 v{vsrc}, s[{SA}:{SA+3}], s44 offen lds"]
        if o.stagD: p1 += [f"s_cmp_eq_u32 s{s_w}, s{s_wend}", f"s_cselect_b32 s{s_w}, s46, s{s_w}"]
        return [p0, p1]
    def ldh(g):
        p0 = [f"s_add_u32 s45, s{s_h0}, s{s_h1}", f"buffer_load_dwordx4 {v(HFR[g%4][0],4)}, v{V_L16}, s[{SWS}:{SWS+3}], s{s_h0} offen sc1"]
        p1 = [f"s_add_u32 s{s_h0}, s{s_h0}, 4096", f"buffer_load_dwordx4 {v(HFR[g%4][1],4)}, v{V_L16}, s[{SWS}:{SWS+3}], s45 offen sc1"]
        if o.stagD: p1 += [f"s_cmp_eq_u32 s{s_h0}, s{s_hend}", f"s_cselect_b32 s{s_h0}, s47, s{s_h0}"]
        return [p0, p1]
    def emit(ps):
        for p in ps:
            for l in p: a(l)
    def rdw1(off, buf, ad, n):
        a(f"ds_read_b64_tr_b16 {v(WF[buf][n],2)}, v{ad[n]} offset:{off}")
        a(f"ds_read_b64_tr_b16 {v(WF[buf][n]+2,2)}, v{ad[n]} offset:{off+1024}")
    def rdw(off, buf, ad=da):
        for n in range(2): rdw1(off, buf, ad, n)
    a(f"s_sub_u32 s{s_h1}, s{s_h1}, s{s_h0}")
    a(f"s_mov_b32 s46, s{s_w}")
    a(f"s_mov_b32 s47, s{s_h0}")
    a(f"s_add_u32 s{s_wend}, s46, {21*65536}")
    a(f"s_add_u32 s{s_hend}, s47, {21*4096}")
    if o.stagD:
        a(f"s_and_b32 s44, s{S_LOC}, 3")
        a("s_mul_i32 s44, s44, 5")
        a(f"s_mul_i32 s45, s{s_N2}, 21")
        a("s_lshr_b32 s45, s45, 3")
        a("s_add_u32 s44, s44, s45")
        a("s_cmp_ge_u32 s44, 21")
        a("s_cselect_b32 s45, 21, 0")
        a(f"s_sub_u32 s{s_i}, s44, s45")
    else:
        a(f"s_mov_b32 s{s_i}, 0")
    a(f"s_mov_b32 s{s_w}, s{s_wend}")
    a(f"s_cmp_lt_u32 s{s_fw}, 2")
    a(f"s_cselect_b32 s{s_h0}, s{s_hend}, s47")
    emit(ldw(0))
    a(f"s_lshl_b32 s44, s{s_i}, 16")
    a(f"s_add_u32 s{s_w}, s46, s44")
    emit(ldw(1)); emit(ldh(0))
    a(f"s_lshl_b32 s44, s{s_i}, 12")
    a(f"s_add_u32 s{s_h0}, s47, s44")
    emit(ldw(2)); emit(ldh(1))
    emit(ldw(3)); emit(ldh(2))
    a(f"s_setprio {o.dprio}")
    a("s_waitcnt vmcnt(12)")
    rdw(0, 0)
    def rstep(k):
        b = k & 1
        issued = lambda j: (2 if j + 4 <= 21 else 0) + (2 if j + 3 <= 21 else 0) + (2 if j == 19 else 0) + (1 if (o.gapw and 1 <= j <= 16) else 0)
        a(f"s_waitcnt vmcnt({issued(k-2) + issued(k-1)}) lgkmcnt(0)")
        parts = (ldw(k+4) if k + 4 <= 21 else [[], []]) + (ldh(k+3) if k + 3 <= 21 else [[], []])
        if o.gapw and 1 <= k <= 16:
            parts[3] = parts[3] + ["s_max_i32 s44, s59, 0", f"s_add_u32 m0, s{s_lb}, s44", "s_lshl_b32 s44, s44, 3", "s_add_u32 s44, s44, s63",
                                   f"buffer_load_dwordx4 v{vsrc}, s[{SC}:{SC+3}], s44 offen lds", "s_add_u32 s59, s59, 1024"]
        if k == 19:
            parts = [[f"s_mov_b32 s{SA}, s8", f"s_and_b32 s{SA+1}, s9, 0xffff", f"s_mov_b32 s{SA+2}, {512*1024}",
                      f"s_lshl_b32 s44, s{s_fw}, 17", f"s_add_u32 s44, s44, {14*8192}"],
                     [f"s_add_u32 m0, s{s_lb}, {14*1024}", "s_add_u32 s45, s44, 8192",
                      f"buffer_load_dwordx4 v{vsrc}, s[{SA}:{SA+3}], s44 offen lds"],
                     ["s_add_u32 m0, m0, 1024", "s_nop 0", f"buffer_load_dwordx4 v{vsrc}, s[{SA}:{SA+3}], s45 offen lds"], []]
        if k == 20:
            parts = [[f"s_mov_b32 s{SB}, s20", f"s_and_b32 s{SB+1}, s21, 0xffff", f"s_mov_b32 s{SB+2}, {2048*1024}", f"s_mov_b32 s{SB+3}, 0x20000"],
                     [f"s_lshr_b32 s46, s{s_fw}, 1", f"s_lshl_b32 s44, s{s_T}, 15", "s_lshl_b32 s45, s46, 14", "s_add_u32 s45, s44, s45",
                      f"s_add_u32 s{s_o}, s45, {OF}"],
                     [f"s_lshl_b32 s45, s{s_nt}, 6", f"s_add_u32 s{s_out}, s44, s45", f"s_lshl_b32 s44, s{s_T}, 1", "s_add_u32 s44, s44, s46"],
                     ["s_lshl_b32 s44, s44, 7", f"s_add_u32 s{s_co}, s44, {CO + (DONE if o.done else 0)}"]]
        for n in range(2):
            for t in range(2):
                c = "0" if k == 0 else v(ACC[2*n+t],16)
                a(f"{MF} {v(ACC[2*n+t],16)}, {v(WF[b][n],4)}, {v(HFR[k%4][t],4)}, {c}")
                if n == 0 and k < 21:
                    if (k+1) % 4 < 3: rdw1(((k+1) % 4)*2048, b ^ 1, da, t)
                    else: rdw1(7*2048, b ^ 1, db, t)
                for l in parts[2*n+t]: a(l)
    rstep(0)
    a(f"s_mov_b32 s{s_i}, 4")
    def hold(tag):
        a(f"s_setprio {o.fprio}")
        a(f"v_lshl_add_u32 v{t0+2}, s{s_fw}, 2, v{V_MISC}")
        lds_wait_ge(a, tag, t0+2, L_PAIR, str(o.holdn), t0+1, sleep=4)
    a.label("L_dn_loop")
    if o.hold in (9, 13):
        a(f"s_cmp_eq_u32 s{s_i}, {(17-o.hold)//4}")
        a("s_cbranch_scc0 L_dn_nh")
        hold("hold")
        a.label("L_dn_nh")
    for k in range(1, 5): rstep(k)
    a(f"s_sub_u32 s{s_i}, s{s_i}, 1")
    a(f"s_cmp_lg_u32 s{s_i}, 0")
    a("s_cbranch_scc1 L_dn_loop")
    if o.hold == 17: hold("hold")
    for k in range(17, 22): rstep(k)
    a(f"s_setprio {o.fprio}")
    st.stamp(10)
    if o.early:
        a(f"s_setprio {o.xprio}")
        a(f"v_add_u32 v{t0}, s{s_dl}, v{V_L16}")
        a(f"s_lshl_b32 s44, s{s_fw}, 12")
        a(f"s_add_u32 s44, s44, {UX[0]}")
        a(f"v_add_u32 v{t0+2}, s44, v{V_L16}")
        a(f"s_xor_b32 s44, s{s_fw}, 1")
        a("s_mul_i32 s44, s44, 6144")
        a(f"s_add_u32 s44, s44, {DRING}")
        a("s_lshl_b32 s45, s46, 15")
        a(f"s_add_u32 s45, s45, {STG}")
        a(f"v_add_u32 v{da[0]}, s45, v{wa}")
        a(f"v_xor_b32 v{da[1]}, 64, v{da[0]}")
        for i in range(4):
            a(f"ds_write_b128 v{t0}, {v(ACC[1]+4*i,4)} offset:{i*1024}")
        for i in range(4):
            a(f"ds_write_b128 v{t0+2}, {v(ACC[3]+4*i,4)} offset:{i*1024}")
        a("s_waitcnt vmcnt(0) lgkmcnt(0)")
        a(f"v_add_u32 v{t0}, s44, v{V_L16}")
        a(f"v_xor_b32 v{t0+2}, 4096, v{t0+2}")
        fbar(a, t0+1)
        for i in range(4):
            a(f"ds_read_b128 {v(ACC[1]+4*i,4)}, v{t0} offset:{i*1024}")
        for i in range(4):
            a(f"ds_read_b128 {v(ACC[3]+4*i,4)}, v{t0+2} offset:{i*1024}")
        WF.append([160, 164])
        hi.append(168)
        for n in (1, 0): rdw1(0, 0, da, n)
        BQ = [ACC[0], ACC[2]]
        for n in range(2):
            a(f"s_waitcnt lgkmcnt({4*(1-n)+4})")
            for i in range(8):
                a(f"v_pk_add_f32 {v(BQ[n]+2*i,2)}, {v(BQ[n]+2*i,2)}, {v(ACC[2*n+1]+2*i,2)}")
            for i in range(8):
                a(f"v_pk_mul_f32 {v(BQ[n]+2*i,2)}, {v(BQ[n]+2*i,2)}, {v(G,2)} op_sel:[0,1] op_sel_hi:[1,1]")
        for n in (1, 0): rdw1(2048, 1, da, n)
        a(f"s_lshl_b32 s44, s{s_fw}, 13")
        a(f"v_add_u32 v{t0}, s44, v{V_L16}")
        a(f"v_xor_b32 v{t0+3}, 16384, v{t0}")
        def bsum(): pass
        a(f"s_setprio {o.fprio}")
        if o.early == 2: a("s_barrier")
        if o.tdelay: a(f"s_sleep {o.tdelay}")
        poll(a, "tl", t0+1, None, s_co, 16, o.tsleep, at=1)
    else:
        a("s_waitcnt vmcnt(0)")
        a("s_barrier")
        if o.tdelay: a(f"s_sleep {o.tdelay}")
        if o.apoll & 4: a("s_mov_b64 exec, 1")
        poll_ld(a, t0+1, None, s_co, o.apoll & 4)
        if o.apoll & 4: a("s_mov_b64 exec, -1")
        a("s_lshl_b32 s44, s46, 15")
        a(f"s_add_u32 s44, s44, {STG}")
        a(f"v_add_u32 v{da[0]}, s44, v{wa}")
        a(f"v_xor_b32 v{da[1]}, 64, v{da[0]}")
        a(f"s_lshl_b32 s44, s{s_fw}, 13")
        a(f"v_add_u32 v{t0}, s44, v{V_L16}")
        a(f"v_xor_b32 v{t0+2}, 8192, v{t0}")
        a(f"v_xor_b32 v{t0+3}, 16384, v{t0}")
        for n in range(2):
            for i in range(4):
                a(f"ds_write_b128 v{t0}, {v(ACC[2*n+1]+4*i,4)} offset:{n*4096+i*1024}")
        a("s_waitcnt lgkmcnt(0)")
        a("s_barrier")
        for n in range(2):
            for i in range(4):
                a(f"ds_read_b128 {v(ACC[2*n+1]+4*i,4)}, v{t0+2} offset:{n*4096+i*1024}")
        WF.append([160, 164])
        hi.append(168)
        for n in (1, 0): rdw1(0, 0, da, n)
        BQ = [ACC[0], ACC[2]]
        def bsum():
            for n in range(2):
                a(f"s_waitcnt lgkmcnt({4*(1-n)+4})")
                for i in range(8):
                    a(f"v_pk_add_f32 {v(BQ[n]+2*i,2)}, {v(BQ[n]+2*i,2)}, {v(ACC[2*n+1]+2*i,2)}")
                for i in range(8):
                    a(f"v_pk_mul_f32 {v(BQ[n]+2*i,2)}, {v(BQ[n]+2*i,2)}, {v(G,2)} op_sel:[0,1] op_sel_hi:[1,1]")
        if o.done: poll(a, "tl", t0+1, None, s_co, f"s{S_NONCE}", o.tsleep, first_issued=True, eq=True)
        else: poll(a, "tl", t0+1, None, s_co, 16, o.tsleep, first_issued=True, at=1 if o.apoll & 4 else 0)
    st.stamp(11)
    if st.en: a("s_waitcnt lgkmcnt(0)")
    OFR = [HFR[i >> 1][i & 1] for i in range(16)]
    def ldo(i):
        a(f"buffer_load_dwordx4 {v(OFR[i],4)}, v{V_L16}, s[{SWS}:{SWS+3}], s{s_o} offen offset:{(i&3)*1024} sc1")
        if i & 3 == 3 and i < 15: a(f"s_add_u32 s{s_o}, s{s_o}, 4096")
    for i in range(o.nfirst): ldo(i)
    bsum()
    if o.tprof: st.stamp(2); a("s_waitcnt lgkmcnt(0)")
    if not o.early:
        for n in (1, 0): rdw1(2048, 1, da, n)
    pend = list(range(o.nfirst, 16))
    AO = [ACC[1], ACC[3]]
    for i in range(16):
        buf = i % 3
        a(f"s_waitcnt vmcnt({15-len(pend)-i}) lgkmcnt({4 if i < 15 else 0})")
        if o.tprof and i == 0: st.stamp(3); a("s_waitcnt lgkmcnt(0)")
        for n in (1, 0):
            c = "0" if i == 0 else v(AO[n],16)
            a(f"{MF} {v(AO[n],16)}, {v(WF[buf][n],4)}, {v(OFR[i],4)}, {c}")
            if i < 14: rdw1((i+2)*2048, (i+2) % 3, da, n)
            if pend: ldo(pend.pop(0))
    if o.tprof: st.stamp(4)
    if o.early == 1: a("s_barrier")
    a("s_nop 10")
    for i in range(4):
        for j in (2*i, 2*i+1):
            a(f"v_pk_fma_f32 {v(BQ[1]+2*j,2)}, {v(AO[1]+2*j,2)}, {v(G,2)}, {v(BQ[1]+2*j,2)} op_sel_hi:[1,0,1]")
        a(f"ds_write_b128 v{t0}, {v(BQ[1]+4*i,4)} offset:{32768+i*1024}")
    for i in range(8):
        a(f"v_pk_fma_f32 {v(BQ[0]+2*i,2)}, {v(AO[0]+2*i,2)}, {v(G,2)}, {v(BQ[0]+2*i,2)} op_sel_hi:[1,0,1]")
    a("s_waitcnt lgkmcnt(0)")
    a("s_barrier")
    for i in range(4):
        a(f"ds_read_b128 {v(AO[1]+4*i,4)}, v{t0+3} offset:{32768+i*1024}")
    if o.tprof: st.stamp(5); a("s_waitcnt lgkmcnt(0)")
    T2 = AO[0]
    for p in range(2):
        a(f"s_waitcnt lgkmcnt({2*(1-p)})")
        for i in range(4*p, 4*p+4):
            a(f"v_pk_add_f32 {v(BQ[0]+2*i,2)}, {v(BQ[0]+2*i,2)}, {v(AO[1]+2*i,2)}")
        for i in range(4*p, 4*p+4):
            a(f"v_cvt_pk_bf16_f32 v{T2+i}, v{BQ[0]+2*i}, v{BQ[0]+2*i+1}")
        b = T2 + 4*p
        a("s_nop 1")
        a(f"v_permlane32_swap_b32 v{b}, v{b+2}")
        a(f"v_permlane32_swap_b32 v{b+1}, v{b+3}")
        a("s_nop 1")
        a(f"buffer_store_dwordx4 {v(b,4)}, v{VOUT}, s[{SB}:{SB+3}], s{s_out} offen offset:{32*p}{['', ' sc1', ' nt', ' sc0 sc1', ' sc1 nt'][o.ost]}")
    if o.tprof: st.stamp(8)
    finish(a, st)
    return hi

def build(path):
    global KN
    KN = "kb_kernel" if (o.report or o.instr) else KNAME
    a = Asm()
    a('.amdgcn_target "amdgcn-amd-amdhsa--gfx950"')
    a(".text")
    st = Stamper(a, o.instr, 0)
    kernel_header(a, KN)
    a("s_cmp_ge_u32 s2, 256")
    a("s_cbranch_scc1 L_exit")
    a("s_load_dwordx16 s[4:19], s[0:1], 0")
    a("s_load_dwordx4 s[20:23], s[0:1], 64")
    a("s_load_dwordx2 s[24:25], s[0:1], 80")
    st.init(); st.real(0); st.stamp(1)
    a("v_lshrrev_b32 v1, 6, v0")
    a("v_and_b32 v0, 63, v0")
    a(f"s_and_b32 s{S_XCD}, s2, 7")
    a(f"v_readfirstlane_b32 s{S_WAVE}, v1")
    a(f"s_lshr_b32 s{S_LOC}, s2, 3")
    if o.ctouch:
        a("s_getpc_b64 s[46:47]")
        a.label("L_pc")
        if o.ctouch == 1:
            a(f"s_mul_i32 s44, s{S_LOC}, 12")
            a(f"s_add_u32 s44, s44, s{S_WAVE}")
            a("s_lshl_b32 s44, s44, 6")
        else:
            a(f"s_sub_u32 s44, s{S_LOC}, 24")
            a(f"s_mul_i32 s44, s44, 12")
            a(f"s_add_u32 s44, s44, s{S_WAVE}")
            a("s_lshl_b32 s44, s44, 8")
        a("s_min_u32 s44, s44, L_code_end-L_pc")
        a("s_add_u32 s46, s46, s44")
        a("s_addc_u32 s47, s47, 0")
    a(f"v_lshlrev_b32 v{V_L16}, 4, v0")
    a(f"v_mov_b32 v{V_MISC}, {MISC}")
    a(f"v_mov_b32 v{V_ONE}, 1")
    if st.en: a("s_getreg_b32 s95, hwreg(HW_REG_XCC_ID)")
    if o.ctouch:
        if o.ctouch == 1:
            a("v_mov_b32 v5, 0")
            a("s_mov_b64 exec, 1")
            a("global_load_dword v167, v5, s[46:47]")
            a("s_mov_b64 exec, -1")
        else:
            a(f"s_cmp_lt_u32 s{S_LOC}, 24")
            a("s_cbranch_scc1 L_nt")
            a("v_lshlrev_b32 v5, 2, v0")
            a("global_load_dword v167, v5, s[46:47]")
            a.label("L_nt")
    a(f"s_cmp_ge_u32 s{S_WAVE}, 8")
    a("s_cbranch_scc1 L_F")
    ahi, fallback = a_waves(a, st)
    a.label("L_F")
    hi = f_waves(a, st) + [ahi]
    a.label("L_code_end")
    fallback()
    a.label("L_exit")
    a("s_endpgm")
    print("vgprs", hi)
    assert max(hi) <= 168
    descs = [kernel_desc(KN, 168)]
    if o.report or o.instr:
        hdr = f"; @launch kernel={KN} grid=(256,1,1) block=(768,1,1) lds={LDS_TOTAL}\n"
        if o.report:
            k, w, i = [int(x) for x in str(o.report).split(",")]
            reporter(a, k, w, i)
            hdr += "; @launch kernel=rep_kernel grid=(1,1,1) block=(64,1,1) lds=0\n"
            descs.append(kernel_desc("rep_kernel", 16))
    else:
        hdr = f"; @launch grid=(256,1,1) block=(768,1,1) lds={LDS_TOTAL}\n"
    a('.section .rodata,"a"')
    open(path, "w").write("; generated by gen/gen33.py\n" + hdr + a.text() + "".join(descs))

if __name__ == "__main__":
    path = sys.argv[1]
    for arg in sys.argv[2:]:
        k, _, val = arg.partition("=")
        assert hasattr(Opt, k), k
        setattr(Opt, k, (val if ',' in val else int(val)) if val else True)
    if Opt.report: Opt.instr = True; Stamper.rt = True
    if Opt.acc: Stamper.acc = True
    if Opt.rt: Stamper.rt = True
    build(path)
```

```python
import sys, re
def lite(src):
    s = open(src).read()
    K = "gated_mix__mha_block__glu_gated_glu__prompt_kernel"
    s = s.replace("    s_cbranch_scc1 L_exit\n", "    s_cbranch_scc1 L_exit\n    s_memrealtime s[70:71]\n", 1)
    i = s.index("L_code_end:")
    j = s.rindex("    s_endpgm\n", 0, i)
    tail = """    s_waitcnt vmcnt(0)
    s_memrealtime s[72:73]
    s_lshl_b32 s94, s2, 2
    s_add_u32 s94, s94, s48
    s_lshl_b32 s94, s94, 3
    s_add_u32 s94, s94, %d
    s_waitcnt lgkmcnt(0)
    v_mov_b32 v4, s70
    v_mov_b32 v5, s72
    s_mov_b64 exec, 1
    buffer_store_dwordx2 v[4:5], off, s[28:31], s94
""" % (24 << 20)
    s = s[:j] + tail + s[j:]
    out = src[:-2] + "_L.s"
    open(out, "w").write(s)
    return out
if __name__ == "__main__":
    for f in sys.argv[1:]: print(lite(f))
```

```python
import sys
from lite import lite
from asmlib import *
K = "gated_mix__mha_block__glu_gated_glu__prompt_kernel"
def make(src):
    s = open(lite(src)).read().replace(K, "kb_kernel")
    s = s.replace("; @launch grid=(256,1,1) block=(768,1,1) lds=163840", "; @launch kernel=kb_kernel grid=(256,1,1) block=(768,1,1) lds=163840\n; @launch kernel=rep_kernel grid=(1,1,1) block=(64,1,1) lds=0")
    a = Asm()
    kernel_header(a, "rep_kernel")
    a("s_cmp_ge_u32 s2, 1"); a("s_cbranch_scc1 L_rep_end")
    a("s_load_dwordx2 s[4:5], s[0:1], 80")
    a("v_lshlrev_b32 v1, 4, v0")
    a("s_waitcnt lgkmcnt(0)")
    a("s_mov_b32 s8, s4"); a("s_and_b32 s9, s5, 0xffff"); a(f"s_mov_b32 s10, {32<<20}"); a("s_mov_b32 s11, 0x20000")
    for j in range(8):
        a(f"s_mov_b32 s12, {(24<<20) + j*1024}")
        a(f"buffer_load_dwordx4 v[{4+4*j}:{7+4*j}], v1, s[8:11], s12 offen")
    a("s_waitcnt vmcnt(0)")
    a("v_readfirstlane_b32 s14, v4")
    a("s_sub_u32 s14, s14, 100000")
    for j in range(32): a(f"v_subrev_u32 v{4+j}, s14, v{4+j}")
    for j in range(1, 16):
        a(f"v_min_u32 v4, v4, v{4+2*j}"); a(f"v_max_u32 v5, v5, v{5+2*j}")
    a("s_nop 1")
    a("v_readlane_b32 s16, v5, 0"); a("v_readlane_b32 s17, v4, 0")
    for l in range(1, 64):
        a(f"v_readlane_b32 s18, v5, {l}"); a(f"v_readlane_b32 s19, v4, {l}")
        a("s_nop 1")
        a("s_max_u32 s16, s16, s18"); a("s_min_u32 s17, s17, s19")
    a("s_sub_u32 s16, s16, s17"); a("s_min_u32 s16, s16, 20000"); a("s_mul_i32 s16, s16, 20")
    a("s_memrealtime s[20:21]"); a("s_waitcnt lgkmcnt(0)")
    a.label("L_rep_spin")
    a("s_memrealtime s[22:23]"); a("s_waitcnt lgkmcnt(0)")
    a("s_sub_u32 s24, s22, s20"); a("s_cmp_lt_u32 s24, s16"); a("s_cbranch_scc1 L_rep_spin")
    a.label("L_rep_end"); a("s_endpgm")
    s = s.replace('.section .rodata,"a"', a.text() + '.section .rodata,"a"') + kernel_desc("rep_kernel", 40)
    out = src[:-2] + "_R.s"
    open(out, "w").write(s); return out
for f in sys.argv[1:]: print(make(f))
```
